```python
import torch

def _softmax(x, axis=-1):
    return torch.softmax(x, dim=axis)
def _gelu(x):
    return torch.nn.functional.gelu(x, approximate="tanh")
def _silu(x):
    return torch.nn.functional.silu(x)
def _sigmoid(x):
    return torch.sigmoid(x)
def _layernorm(x, axis=-1, eps=1e-5):
    m = x.mean(dim=axis, keepdim=True)
    v = x.var(dim=axis, keepdim=True, unbiased=False)
    return (x - m) / torch.sqrt(v + eps)
def _scatter_add(tgt, idx, src, axis=0):
    return tgt.clone().index_add_(axis, idx, src)
def _segment_sum(src, seg, n):
    out = torch.zeros((n,) + src.shape[1:], dtype=src.dtype)
    return out.index_add_(0, seg, src)
def _pad(x, pw):
    flat = tuple(v for pair in reversed(pw) for v in pair)
    return torch.nn.functional.pad(x, flat)

kernel_name = 'parallel_sum__ssm_conv_s4__glu_gated_reglu__prompt'

def setup_inputs():

    _w = (lambda a: (lambda t: t.to(torch.bfloat16) if t.is_floating_point() else t)(torch.as_tensor(a)))
    def _A_setup():
        B, L, D, N = 1, 2048, 448, 256
        A_re = -(lambda _x: torch.exp(torch.as_tensor(_x)))((lambda *s: torch.randn(*s, dtype=torch.bfloat16) * 6.4)(D, N))
        A_im = torch.pi * (lambda *s: torch.randn(*s, dtype=torch.bfloat16) * 0.05)(D, N)
        B_re = (lambda *s: torch.randn(*s, dtype=torch.bfloat16) * 0.1)(D, N)
        B_im = (lambda *s: torch.randn(*s, dtype=torch.bfloat16) * 0.1)(D, N)
        C_re = (lambda *s: torch.randn(*s, dtype=torch.bfloat16) * 0.1)(D, N)
        C_im = (lambda *s: torch.randn(*s, dtype=torch.bfloat16) * 0.1)(D, N)
        log_dt = (lambda *s: torch.randn(*s, dtype=torch.bfloat16) * 0.05)(D) * 0.5 - 4.0
        Dskip = (lambda *s: torch.randn(*s, dtype=torch.bfloat16) * 0.05)(D)
        return {
            "u": _w((lambda *s: torch.randn(*s, dtype=torch.bfloat16) * 0.05)(B, L, D)),
            "A_re": _w(A_re),
            "A_im": _w(A_im),
            "B_re": _w(B_re),
            "B_im": _w(B_im),
            "C_re": _w(C_re),
            "C_im": _w(C_im),
            "log_dt": _w(log_dt),
            "Dskip": _w(Dskip),
        }
    _A_in = _A_setup()

    def _B_setup():
        B, S, D, F = 1, 2048, 448, 1792
        return {
            "x": _w((lambda *s: torch.randn(*s, dtype=torch.bfloat16) * 0.05)(B, S, D)),
            "W_gate": _w((lambda *s: torch.randn(*s, dtype=torch.bfloat16) * 0.4)(D, F) * (2.0 / D) ** 0.5),
            "W_up": _w((lambda *s: torch.randn(*s, dtype=torch.bfloat16) * 0.4)(D, F) * (2.0 / D) ** 0.5),
            "W_down": _w((lambda *s: torch.randn(*s, dtype=torch.bfloat16) * 0.4)(F, D) * (1.0 / F) ** 0.5),
        }
    _B_in = _B_setup()

    return {
        "A_u": _A_in["u"],
        "A_A_re": _A_in["A_re"],
        "A_A_im": _A_in["A_im"],
        "A_B_re": _A_in["B_re"],
        "A_B_im": _A_in["B_im"],
        "A_C_re": _A_in["C_re"],
        "A_C_im": _A_in["C_im"],
        "A_log_dt": _A_in["log_dt"],
        "A_Dskip": _A_in["Dskip"],
        "B_x": _B_in["x"],
        "B_W_gate": _B_in["W_gate"],
        "B_W_up": _B_in["W_up"],
        "B_W_down": _B_in["W_down"],
    }

def reference(A_u, A_A_re, A_A_im, A_B_re, A_B_im, A_C_re, A_C_im, A_log_dt, A_Dskip, B_x, B_W_gate, B_W_up, B_W_down):
    def _A_ref(u, A_re, A_im, B_re, B_im, C_re, C_im, log_dt, Dskip):
        Bsz, L, D = u.shape
        dt = torch.exp(log_dt)[:, None]
        A = A_re + 1j * A_im
        Bc = B_re + 1j * B_im
        Cc = C_re + 1j * C_im
        logdA = dt * A
        dB = dt * Bc
        l = (lambda x, dt: x.to(dt))(torch.arange(L), A_re.dtype)
        P = torch.exp(logdA[:, :, None] * l[None, None, :])
        K = torch.einsum("dn,dnl,dn->dl", Cc, P, dB).real
        L2 = 2 * L
        Kp = _pad(K, ((0, 0), (0, L)))
        up = (lambda x, *d: x.permute(*d))(u, 0, 2, 1)
        up = _pad(up, ((0, 0), (0, 0), (0, L)))
        Kf = (lambda x, axes=(-2,-1): torch.fft.rfft2(x.float(), dim=axes))(Kp[:, None, :], axes=(-2, -1))
        Uf = (lambda x, axes=(-2,-1): torch.fft.rfft2(x.float(), dim=axes))(up[:, :, None, :], axes=(-2, -1))
        Yf = Uf * Kf[None, :, :, :]
        y = (lambda x, s, axes=(-2,-1): torch.fft.irfft2(x, s=s, dim=axes).to(torch.bfloat16))(Yf, (1, L2), axes=(-2, -1))[:, :, 0, :L]
        y = (lambda x, *d: x.permute(*d))(y, 0, 2, 1) + u * Dskip[None, None, :]
        return y

    def _B_ref(x, W_gate, W_up, W_down):
        gate = torch.einsum("bsd,df->bsf", x, W_gate)
        up = torch.einsum("bsd,df->bsf", x, W_up)
        gate = gate * (lambda x, dt: x.to(dt))(gate > 0, gate.dtype)
        h = gate * up
        return torch.einsum("bsf,fd->bsd", h, W_down)

    x = A_u
    xn = _layernorm(x, axis=-1)
    return x + _A_ref(xn, A_A_re, A_A_im, A_B_re, A_B_im, A_C_re, A_C_im, A_log_dt, A_Dskip) + _B_ref(xn, B_W_gate, B_W_up, B_W_down)
```

```python
import re

TRANS = ("v_exp_f32", "v_log_f32", "v_rcp_f32", "v_rsq_f32", "v_sqrt_f32", "v_sin_f32", "v_cos_f32")


def regs_of(tok):
    tok = tok.strip()
    if tok.startswith("-"):
        tok = tok[1:]
    m = re.fullmatch(r"abs\((.*)\)", tok) or re.fullmatch(r"\|(.*)\|", tok)
    if m:
        tok = m.group(1)
    m = re.fullmatch(r"([vas])(\d+)", tok)
    if m:
        return {(m.group(1), int(m.group(2)))}
    m = re.fullmatch(r"([vas])\[(\d+):(\d+)\]", tok)
    if m:
        return {(m.group(1), i) for i in range(int(m.group(2)), int(m.group(3)) + 1)}
    if tok == "vcc":
        return {("s", "vcc")}
    if tok == "m0":
        return {("s", "m0")}
    if tok == "exec":
        return {("s", "exec")}
    return set()


class I:
    __slots__ = ("text", "op", "rd", "wr", "kind", "ops", "mods")

    def __init__(self, text):
        self.text = text
        parts = text.split(None, 1)
        self.op = op = parts[0]
        rest = parts[1] if len(parts) > 1 else ""
        raw = [p.strip() for p in re.split(r",(?![^\[]*\])", rest)] if rest else []
        mods = ""
        if raw:
            last = raw[-1].split(None, 1)
            raw[-1] = last[0] if last else ""
            mods = last[1] if len(last) > 1 else ""
        self.ops = raw
        self.mods = mods
        R = [regs_of(o) for o in raw]
        rd, wr = set(), set()
        U = lambda xs: set().union(*xs) if xs else set()
        if op.startswith("v_mfma"):
            self.kind = "mfma"
            wr = R[0]
            rd = U(R[1:])
        elif op.startswith("ds_read") or op.startswith("ds_bpermute") or op.startswith("ds_swizzle"):
            self.kind = "ds"
            wr = R[0]
            rd = U(R[1:])
        elif op.startswith("ds_"):
            self.kind = "ds"
            rd = U(R)
        elif op.startswith("buffer_load") or op.startswith("global_load"):
            self.kind = "vm"
            if re.search(r"\blds\b", mods):
                rd = U(R) | {("s", "m0")}
            else:
                wr = R[0]
                rd = U(R[1:])
        elif op.startswith("buffer_store") or op.startswith("global_store") or op.startswith("buffer_atomic"):
            self.kind = "vm"
            rd = U(R)
        elif op.startswith("s_load") or op.startswith("s_memtime") or op.startswith("s_memrealtime"):
            self.kind = "smem"
            wr = R[0]
            rd = U(R[1:])
        elif op.startswith("v_"):
            self.kind = "valu"
            wr = set(R[0])
            rd = U(R[1:])
            if op.startswith("v_permlane32_swap") or op.startswith("v_permlane16_swap"):
                wr |= R[1]
                rd |= R[0]
            if op.startswith("v_fmac") or op.startswith("v_dot2c") or "_dpp" in op or op.startswith("v_writelane"):
                rd |= R[0]
            if op.startswith("v_cndmask") and len(raw) == 3:
                rd |= {("s", "vcc")}
            if op.startswith("v_add_co") or op.startswith("v_addc_co"):
                wr |= R[1]
        elif op.startswith("s_"):
            self.kind = "salu"
            if op.startswith(("s_cmp", "s_waitcnt", "s_barrier", "s_nop", "s_branch", "s_cbranch", "s_endpgm",
                              "s_sleep", "s_setprio", "s_setpc", "s_bitcmp")):
                rd = U(R)
            else:
                wr = set(R[0]) if R else set()
                rd = U(R[1:])
                if "saveexec" in op:
                    wr |= {("s", "exec")}
                if op.startswith(("s_addk", "s_mulk")):
                    rd |= R[0]
        else:
            raise ValueError("unknown op " + text)
        self.rd, self.wr = rd, wr


class State:
    def __init__(self):
        self.vm = []
        self.lg = []
        self.smem = set()
        self.t = 0
        self.valu_w = {}
        self.trans_w = {}
        self.dot_w = {}
        self.mfma_w = {}
        self.m0_w = -99
        self.store_r = {}

    def copy(self):
        s = State()
        s.vm = list(self.vm); s.lg = list(self.lg); s.smem = set(self.smem); s.t = self.t
        s.valu_w = dict(self.valu_w); s.trans_w = dict(self.trans_w); s.dot_w = dict(self.dot_w)
        s.mfma_w = dict(self.mfma_w); s.m0_w = self.m0_w; s.store_r = dict(self.store_r)
        return s


class Asm:
    def __init__(self):
        self.items = []
        self.nid = 0
        self.last_vm = None
        self.last_lg = None

    def __call__(self, text):
        for line in text.split("\n"):
            line = line.split(";")[0].strip()
            if not line:
                continue
            if line.endswith(":") or line.startswith("."):
                self.items.append(("raw", line))
                continue
            ins = I(line)
            self.nid += 1
            if ins.kind == "vm":
                self.last_vm = self.nid
            if ins.kind == "ds":
                self.last_lg = self.nid
            self.items.append(("ins", ins, self.nid))

    def comment(self, s):
        self.items.append(("raw", "; " + s))

    def vm_tok(self):
        return self.last_vm

    def lg_tok(self):
        return self.last_lg

    def wait_vm(self, tok):
        self.items.append(("wvm", tok))

    def wait_lg(self, tok):
        self.items.append(("wlg", tok))

    def wait_both(self, vt, lt):
        self.items.append(("wboth", vt, lt))

    def fork(self, name):
        self.items.append(("fork", name))

    def other(self, name):
        self.items.append(("other", name))

    def join(self, name):
        self.items.append(("join", name))

    def reset(self):
        self.items.append(("reset",))

    def render(self):
        out = []
        st = State()
        saved = {}
        self.stats = {"nop": 0, "wait": 0, "ins": 0}

        def emit(t):
            out.append("    " + t)

        def cnt_after(q, tok):
            for k, (i, _) in enumerate(q):
                if i == tok:
                    return len(q) - 1 - k
            return None

        def do_wait(nv, nl):
            s = []
            if nv is not None:
                nv = min(nv, 63)
                if nv < len(st.vm):
                    s.append(f"vmcnt({nv})")
                    st.vm = st.vm[len(st.vm) - nv:] if nv else []
            if nl is not None:
                nl = min(nl, 15)
                if st.smem:
                    nl = 0
                if nl < len(st.lg) or st.smem:
                    s.append(f"lgkmcnt({nl})")
                    st.lg = st.lg[len(st.lg) - nl:] if nl else []
                    st.smem = set()
            if s:
                emit("s_waitcnt " + " ".join(s))
                st.t += 1
                self.stats["wait"] += 1

        for it in self.items:
            k = it[0]
            if k == "raw":
                out.append(it[1])
                continue
            if k == "wvm":
                do_wait(cnt_after(st.vm, it[1]), None); continue
            if k == "wlg":
                do_wait(None, cnt_after(st.lg, it[1])); continue
            if k == "wboth":
                do_wait(cnt_after(st.vm, it[1]), cnt_after(st.lg, it[2])); continue
            if k == "fork":
                saved[it[1]] = st.copy(); continue
            if k == "other":
                saved[it[1] + "/then"] = st
                st = saved[it[1]].copy(); continue
            if k == "join":
                a = saved.pop(it[1] + "/then", None) or saved[it[1]]
                b = st
                assert not a.smem and not b.smem
                if len(a.vm) != len(b.vm):
                    raise AssertionError(f"join {it[1]}: vm queues differ {len(a.vm)} {len(b.vm)}")
                assert not a.lg and not b.lg, f"join {it[1]}: drain lgkm before the join"
                m = b.copy()
                m.vm = [(ib, ra | rb) for (ia, ra), (ib, rb) in zip(a.vm, b.vm)]
                for name in ("valu_w", "trans_w", "store_r"):
                    da, dm = getattr(a, name), getattr(m, name)
                    for r, t in da.items():
                        t2 = t - a.t + m.t
                        if dm.get(r, -99) < t2:
                            dm[r] = t2
                for name in ("dot_w", "mfma_w"):
                    da, dm = getattr(a, name), getattr(m, name)
                    for r, v in da.items():
                        t2 = v[0] - a.t + m.t
                        if r not in dm or dm[r][0] < t2:
                            dm[r] = (t2,) + tuple(v[1:])
                m.m0_w = max(m.m0_w, a.m0_w - a.t + m.t)
                st = m
                continue
            if k == "reset":
                st = State(); continue
            ins, iid = it[1], it[2]
            touched = ins.rd | ins.wr
            if ins.op == "s_waitcnt":
                mv = re.search(r"vmcnt\((\d+)\)", ins.text); ml = re.search(r"lgkmcnt\((\d+)\)", ins.text)
                if mv:
                    n = int(mv.group(1)); st.vm = st.vm[max(0, len(st.vm) - n):] if n else []
                if ml:
                    n = int(ml.group(1))
                    if n == 0:
                        st.lg = []; st.smem = set()
                    elif not st.smem:
                        st.lg = st.lg[max(0, len(st.lg) - n):]
                emit(ins.text); st.t += 1
                continue
            nv = nl = None
            for kx, (i, rs) in enumerate(st.vm):
                if rs & touched:
                    nv = len(st.vm) - 1 - kx
            for kx, (i, rs) in enumerate(st.lg):
                if rs & touched:
                    nl = len(st.lg) - 1 - kx
            if st.smem & touched:
                nl = 0
            do_wait(nv, nl)
            need = 0

            def req(tw, ws):
                nonlocal need
                need = max(need, ws - (st.t - tw - 1))

            isv = ins.kind == "valu"
            for r in touched:
                if r in st.mfma_w:
                    tw, ps, dset = st.mfma_w[r]
                    if ins.kind == "mfma":
                        cset = regs_of(ins.ops[3]); ab = regs_of(ins.ops[1]) | regs_of(ins.ops[2])
                        if r in ab:
                            req(tw, 12 if ps == 8 else 8)
                        elif cset == dset and ins.wr == dset:
                            pass
                        else:
                            req(tw, 10 if ps == 8 else 6)
                    else:
                        req(tw, 12 if ps == 8 else 8)
                if r in st.dot_w and ins.kind in ("valu", "mfma", "vm", "ds"):
                    tw, op = st.dot_w[r]
                    srcc = ins.op == op and ((len(ins.ops) == 4 and r in regs_of(ins.ops[3])
                                              and r not in regs_of(ins.ops[1]) | regs_of(ins.ops[2])))
                    if not srcc:
                        req(tw, 3)
            for r in ins.rd:
                if r in st.valu_w:
                    tw = st.valu_w[r]
                    if r[0] in "va":
                        if ins.kind == "mfma":
                            req(tw, 2)
                        if ins.op.startswith(("v_readfirstlane", "v_readlane")):
                            req(tw, 1)
                        if "_dpp" in ins.op or ins.op.startswith("v_permlane"):
                            req(tw, 2)
                    else:
                        if ins.kind == "vm":
                            req(tw, 5)
                        elif isv:
                            req(tw, 4 if ins.op.startswith(("v_readlane", "v_writelane")) else 2)
                        elif ins.kind in ("salu", "smem"):
                            req(tw, 1)
                if r in st.trans_w and ins.kind in ("valu", "mfma") and not ins.op.startswith(TRANS):
                    req(st.trans_w[r], 1)
                if r == ("s", "m0") and ins.kind == "vm":
                    req(st.m0_w, 1)
            if isv:
                for r in ins.wr:
                    if r in st.store_r:
                        req(st.store_r[r], 2)
            while need > 0:
                n = min(need, 16)
                emit(f"s_nop {n - 1}")
                st.t += n
                need -= n
                self.stats["nop"] += 1
            emit(ins.text)
            self.stats["ins"] += 1
            t = st.t
            st.t += 1
            if ins.op == "s_nop":
                st.t += int(ins.ops[0])
            for r in ins.wr:
                st.valu_w.pop(r, None); st.trans_w.pop(r, None); st.dot_w.pop(r, None); st.mfma_w.pop(r, None)
            if ins.kind == "valu":
                for r in ins.wr:
                    st.valu_w[r] = t
                    if ins.op.startswith(TRANS):
                        st.trans_w[r] = t
                    if ins.op.startswith("v_dot2"):
                        st.dot_w[r] = (t, ins.op)
            elif ins.kind == "mfma":
                ps = 8 if "32x32" in ins.op else 4
                for r in ins.wr:
                    st.mfma_w[r] = (t, ps, frozenset(ins.wr))
            elif ins.kind == "salu":
                if ("s", "m0") in ins.wr:
                    st.m0_w = t
            elif ins.kind == "vm":
                st.vm.append((iid, set(ins.wr)))
                if ("store" in ins.op) and ("x4" in ins.op or "x3" in ins.op):
                    data = regs_of(ins.ops[0]) if ins.op.startswith("buffer") else regs_of(ins.ops[1])
                    for r in data:
                        st.store_r[r] = t
                assert len(st.vm) <= 63 or True
            elif ins.kind == "ds":
                st.lg.append((iid, set(ins.wr)))
            elif ins.kind == "smem":
                st.smem |= set(ins.wr) | {("s", "smem")}
        return "\n".join(out) + "\n"
```

```python
import sys, os
sys.path.insert(0, os.path.dirname(os.path.abspath(__file__)))
from asmdsl import Asm

NAME = "parallel_sum__ssm_conv_s4__glu_gated_reglu__prompt"
STAMP = "--stamp" in sys.argv

WS_H, WS_XT, WS_Y = 0x0, 0x700000, 0x8C0000
WS_ST, WS_CS = 0xA80000, 0xA84000
WS_FH, WS_FY, WS_FL, WS_EP = 0xA90000, 0xAA0000, 0xAA8000, 0xAAC000
WS_TS = 0xAB0000
WS_SIZE = 0xB00000
FSP = 1024
SLOT = [131072, 147456, 114688, 98304]
RB = 98304
SC = 114688
UB = 98304
U_LEN = 4544
U1_OFF = 4640
U_CH = 9280
KX = 118784
KC0, KC_CH, KC_CP = 130512, 16656, 4160
YX = 98304
RX = 98304
NWD = 12
SPIN = 200000

sX, sAre, sAim, sBre, sBim, sCre, sCim, sLdt, sDsk = 4, 6, 8, 10, 12, 14, 16, 18, 20
sWg, sWu, sWd, sOut, sDbg, sWs = 24, 26, 28, 30, 32, 34
rX, rW, rWd, rWs, rOut = "s[36:39]", "s[40:43]", "s[44:47]", "s[48:51]", "s[52:55]"
sw, sxcd, sj, sr1, sc1_, sjc, sr2, sc2, snonce = "s56", "s57", "s58", "s59", "s60", "s61", "s62", "s63", "s64"
sWoff, sWdoff, sDs, scnt = "s65", "s66", "s67", "s68"

a = Asm()
slow = []
nstamp = [0]


def stamp():
    if not STAMP:
        return
    k = nstamp[0]
    nstamp[0] += 1
    a(f"s_memrealtime s[98:99]\ns_waitcnt lgkmcnt(0)\nv_writelane_b32 v254, s98, {k}")


def merge(fg, bg, first=0, every=1):
    out, k = [], 0
    for i, x in enumerate(fg):
        out.append(x)
        if i >= first and (i - first) % every == 0 and k < len(bg):
            out.append(bg[k]); k += 1
    out += bg[k:]
    return out


def poll(name, load, cmp_):
    a(cmp_)
    a(f"s_cbranch_vccnz L_slow_{name}")
    a(f"L_back_{name}:")
    slow.append(f"""L_slow_{name}:
s_mov_b32 {scnt}, 0
L_retry_{name}:
s_add_u32 {scnt}, {scnt}, 1
s_cmp_gt_u32 {scnt}, {SPIN}
s_cbranch_scc1 L_back_{name}
s_sleep 2
{load}
s_waitcnt vmcnt(0)
{cmp_}
s_cbranch_vccnz L_retry_{name}
s_branch L_back_{name}""")


a(f"""
s_cmp_ge_u32 s2, 256
s_cbranch_scc1 L_end
s_load_dwordx16 s[4:19], s[0:1], 0
s_load_dwordx16 s[20:35], s[0:1], 64
s_getpc_b64 s[70:71]
L_pc:
s_and_b32 {sxcd}, s2, 7
s_lshr_b32 {sj}, s2, 3
v_lshrrev_b32 v1, 6, v0
v_and_b32 v255, 63, v0
v_readfirstlane_b32 {sw}, v1
""")
if STAMP:
    a("v_mov_b32 v254, 0")
stamp()
a(f"""
s_and_b32 s69, {sj}, 3
s_lshl_b32 s69, s69, 6
v_lshl_add_u32 v2, v1, 4, v255
v_add_u32 v2, s69, v2
v_lshlrev_b32 v2, 7, v2
v_min_u32 v2, L_codeend-L_pc-4, v2
s_mov_b64 exec, 0xffff
global_load_dword v253, v2, s[70:71]
s_mov_b64 exec, -1
v_lshlrev_b32 v250, 4, v255
s_waitcnt lgkmcnt(0)
s_mov_b32 s36, s{sX}
s_mov_b32 s37, s{sX+1}
s_mov_b32 s38, {2048*896}
s_mov_b32 s39, 0x20000
s_mov_b32 s48, s{sWs}
s_mov_b32 s49, s{sWs+1}
s_mov_b32 s50, {WS_SIZE}
s_mov_b32 s51, 0x20000
s_mov_b32 s42, {448*3584}
s_mov_b32 s43, 0x20000
s_mov_b32 s44, s{sWd}
s_mov_b32 s45, s{sWd+1}
s_mov_b32 s46, {1792*896}
s_mov_b32 s47, 0x20000
s_cmp_lt_u32 {sj}, 4
s_cbranch_scc1 L_helper
""")

a(f"""
s_sub_u32 {sj}, {sj}, 4
s_and_b32 s69, {sj}, 3
s_lshr_b32 {sc2}, {sj}, 2
s_lshr_b32 s72, {sxcd}, 1
s_lshl_b32 s72, s72, 2
s_add_u32 {sr1}, s72, s69
s_and_b32 s72, {sxcd}, 1
s_mul_i32 s72, s72, 7
s_add_u32 {sc1_}, s72, {sc2}
s_mul_i32 s72, {sxcd}, 28
s_add_u32 {sjc}, s72, {sj}
s_lshl_b32 s72, {sxcd}, 2
s_add_u32 {sr2}, s72, s69
""")
a(f"""
s_lshl_b32 s72, {sjc}, 10
s_lshl_b32 s73, {sw}, 8
s_add_u32 s72, s72, s73
v_lshl_add_u32 v4, v255, 2, s72
s_lshr_b32 s73, {sw}, 1
s_lshl_b32 s74, {sjc}, 1
s_add_u32 s73, s73, s74
s_lshl_b32 s73, s73, 1
v_mov_b32 v5, s73
global_load_ushort v16, v5, s[{sLdt}:{sLdt+1}]
global_load_dword v10, v4, s[{sAre}:{sAre+1}]
global_load_dword v11, v4, s[{sAim}:{sAim+1}]
global_load_dword v12, v4, s[{sBre}:{sBre+1}]
global_load_dword v13, v4, s[{sBim}:{sBim+1}]
global_load_dword v14, v4, s[{sCre}:{sCre+1}]
global_load_dword v15, v4, s[{sCim}:{sCim+1}]
global_load_ushort v17, v5, s[{sDsk}:{sDsk+1}]
""")
a(f"""
s_bitcmp1_b32 {sw}, 0
s_cselect_b32 s40, s{sWu}, s{sWg}
s_cselect_b32 s41, s{sWu+1}, s{sWg+1}
s_mov_b32 s52, s{sOut}
s_mov_b32 s53, s{sOut+1}
s_mov_b32 s54, {2048*896}
s_mov_b32 s55, 0x20000
""")
a(f"""
v_lshrrev_b32 v1, 3, v255
v_mul_u32_u24 v1, 896, v1
v_and_b32 v2, 7, v255
v_lshrrev_b32 v6, 4, v255
v_xor_b32 v2, v2, v6
v_lshl_add_u32 v230, v2, 4, v1
v_xor_b32 v231, 64, v230
v_add_u32 v231, {8*896-1024}, v231
v_add_u32 v232, {2*(8*896-1024)}, v230
v_add_u32 v233, {2*(8*896-1024)}, v231
s_lshl_b32 s72, {sr1}, 2
s_add_u32 s72, s72, {sw}
s_mul_i32 s72, s72, {32*896}
s_lshl_b32 s73, {sw}, 12
""")
a(f"""
v_bfe_u32 v1, v255, 2, 2
s_lshr_b32 s74, {sw}, 1
s_lshl_b32 s74, s74, 4
v_add_u32 v1, s74, v1
v_mul_u32_u24 v1, 3584, v1
v_lshl_add_u32 v1, v6, 6, v1
v_and_b32 v2, 3, v255
s_and_b32 s75, {sw}, 1
s_lshl_b32 s76, s75, 1
v_xor_b32 v2, s76, v2
v_lshl_add_u32 v242, v2, 4, v1
v_add_u32 v243, {4*3584-1024}, v242
v_add_u32 v244, {2*(4*3584-1024)}, v242
v_add_u32 v245, {3*(4*3584-1024)}, v242
s_lshl_b32 {sWoff}, {sc1_}, 8
s_lshl_b32 s75, s75, 13
s_lshl_b32 s74, s74, 8
s_add_u32 s77, s75, s74
""")


def w_unit(u):
    g = [f"s_add_u32 m0, s77, {SLOT[u % 4]}\nbuffer_load_dwordx4 v242, {rW}, {sWoff} offen lds"]
    for i in range(1, 4):
        g.append(f"buffer_load_dwordx4 v{242+i}, {rW}, {sWoff} offen offset:{1024*i} lds")
    g[-1] += f"\ns_add_u32 {sWoff}, {sWoff}, {32*3584}"
    return g


def x_block(cb):
    g = [f"s_add_u32 m0, s73, {cb*16384}\nbuffer_load_dwordx4 v230, {rX}, s72 offen lds"]
    for i in range(1, 4):
        g.append(f"buffer_load_dwordx4 v{230+i}, {rX}, s72 offen offset:{1024*i} lds")
    g[-1] += "\ns_add_u32 s72, s72, 128"
    return g


for cb in range(3):
    for g in x_block(cb):
        a(g)
bg0 = []
for cb in range(3, 7):
    bg0 += x_block(cb)
bg0 += w_unit(0)
MARK_U0 = len(bg0)
bg0 += w_unit(1)

a(f"""
s_lshl_b32 s74, {sw}, 12
s_add_u32 s74, s74, {SC}
v_bfe_u32 v1, v255, 1, 2
v_lshlrev_b32 v1, 4, v1
v_lshl_add_u32 v1, v255, 6, v1
v_add_u32 v234, s74, v1
v_xor_b32 v235, 16, v234
v_xor_b32 v236, 32, v234
v_xor_b32 v237, 48, v234
v_lshrrev_b32 v1, 5, v255
v_bfe_u32 v2, v255, 2, 2
v_lshl_add_u32 v1, v1, 3, v2
v_lshlrev_b32 v1, 6, v1
v_bfe_u32 v7, v255, 4, 1
v_bfe_u32 v8, v255, 1, 1
v_lshl_add_u32 v7, v7, 1, v8
v_lshrrev_b32 v2, 1, v2
v_xor_b32 v7, v7, v2
v_lshl_add_u32 v1, v7, 4, v1
v_and_b32 v2, 1, v255
v_lshl_add_u32 v1, v2, 3, v1
v_add_u32 v238, s74, v1
v_xor_b32 v239, 32, v238
v_add_u32 v239, 256, v239
""")
a(f"""
v_lshlrev_b32 v16, 16, v16
v_mul_f32 v16, 0x3fb8aa3b, v16
v_exp_f32 v16, v16
v_lshlrev_b32 v17, 16, v17
v_cvt_pk_bf16_f32 v16, v16, v16
v_readfirstlane_b32 {sDs}, v17
v_lshlrev_b32 v18, 16, v16
v_mul_f32 v19, 0x3fb8aa3b, v18
s_mov_b32 s78, 0xffff0000
""")
stamp()


def cmul(d, x, r, t):
    return [f"v_pk_mul_f32 v[{t}:{t+1}], v[{x}:{x+1}], v[{r}:{r+1}] op_sel_hi:[1,0]",
            f"v_pk_fma_f32 v[{d}:{d+1}], v[{x}:{x+1}], v[{r}:{r+1}], v[{t}:{t+1}] op_sel:[1,1,0] op_sel_hi:[0,1,1] neg_lo:[1,0,0]"]


def kgen_chunk(ck):
    L = []
    un = (lambda d, s: f"v_lshlrev_b32 v{d}, 16, v{s}") if ck == 0 else (lambda d, s: f"v_and_b32 v{d}, s78, v{s}")
    R1, R8, E, T, T2 = 20, 22, 24, 26, 28
    L += [un(30, 10), un(31, 11), un(32, 12), un(33, 13), un(34, 14), un(35, 15)]
    L += ["v_mul_f32 v36, v18, v30", "v_mul_f32 v37, v18, v31",
          "v_mul_f32 v36, 0x3fb8aa3b, v36", "v_mul_f32 v37, 0.15915494, v37"]

    def ev(d, l):
        s = []
        if l == 1:
            s += ["v_exp_f32 v38, v36", "v_fract_f32 v39, v37"]
        else:
            f = {8: "0x41000000", 256: "0x43800000"}[l]
            s += [f"v_mul_f32 v38, {f}, v36", f"v_mul_f32 v39, {f}, v37", "v_exp_f32 v38, v38", "v_fract_f32 v39, v39"]
        s += [f"v_cos_f32 v{d}, v39", f"v_sin_f32 v{d+1}, v39",
              f"v_pk_mul_f32 v[{d}:{d+1}], v[{d}:{d+1}], v[38:39] op_sel_hi:[1,0]"]
        return s
    L += ev(R8, 8) + ev(R1, 1) + ev(E, 256)
    l1s = [0, 1, 2, 3, 4, 5, 6, 7, 8, 256, 258, 260, 262, 264, 512, 516, 520, 768, 772, 776,
           1024, 1032, 1280, 1288, 1536, 1544, 1792, 1800]
    ra = {l: 40 + 2 * i for i, l in enumerate(l1s)}
    LA = cmul(ra[0], 34, 32, T) + [f"v_pk_mul_f32 v[{ra[0]}:{ra[0]+1}], v[{ra[0]}:{ra[0]+1}], v[18:19] op_sel_hi:[1,0]"]
    for l in range(1, 9):
        LA += cmul(ra[l], ra[l - 1], R1, T)
    for l in l1s[9:]:
        LA += cmul(ra[l], ra[l - 256], E, T)
    cols = [0, 1, 2, 3, 256, 256, 258, 260, 4, 5, 6, 7, 260, 260, 262, 264,
            512, 516, 520, 1024, 768, 772, 776, 1536, 1032, 1280, 1288, 1288, 1544, 1792, 1800, 1800]
    PAr, PAi, PBr, PBi = 100, 116, 132, 148
    for k in range(16):
        c0, c1 = ra[cols[2 * k]], ra[cols[2 * k + 1]]
        LA += [f"v_cvt_pk_bf16_f32 v{PAr+k}, v{c0}, v{c1}", f"v_cvt_pk_bf16_f32 v{PAi+k}, -v{c0+1}, -v{c1+1}"]
    rb = lambda j: R8 if j == 1 else 164 + 2 * (j % 2)
    LB = [f"v_cvt_pk_bf16_f32 v{PBr}, 1.0, v{R8}", f"v_cvt_pk_bf16_f32 v{PBi}, 0, v{R8+1}"]
    for j in range(2, 32):
        LB += cmul(rb(j), rb(j - 1), R8, T2)
        if j % 2:
            LB += [f"v_cvt_pk_bf16_f32 v{PBr+j//2}, v{rb(j-1)}, v{rb(j)}",
                   f"v_cvt_pk_bf16_f32 v{PBi+j//2}, v{rb(j-1)+1}, v{rb(j)+1}"]
    n = max(len(LA), len(LB))
    for i in range(n):
        if i < len(LA):
            L.append(LA[i])
        if i < len(LB):
            L.append(LB[i])
    for P, fr in ((PAr, 160), (PBr, 192), (PAi, 176), (PBi, 208)):
        for cq in range(4):
            L.append(f"ds_write_b128 v{234+cq}, v[{P+4*cq}:{P+4*cq+3}]")
        for s in range(4):
            for rd in range(2):
                L.append(f"ds_read_b64_tr_b16 a[{fr+4*s+2*rd}:{fr+4*s+2*rd+1}], v{238+rd} offset:{1024*s}")
    for s in range(8):
        c = "0" if (ck == 0 and s == 0) else "a[144:159]"
        L.append(f"v_mfma_f32_32x32x16_bf16 a[144:159], a[{160+4*s}:{163+4*s}], a[{192+4*s}:{195+4*s}], {c}")
    return L


kg = kgen_chunk(0) + kgen_chunk(1)
tok = {}
k = 0
for i, line in enumerate(kg):
    a(line)
    if i % 14 == 5 and k < len(bg0):
        a(bg0[k]); k += 1
        if k == MARK_U0:
            tok["u0"] = a.vm_tok()
assert k == len(bg0)
tok["u1"] = a.vm_tok()
stamp()

a(f"""
v_and_b32 v1, 31, v255
v_lshrrev_b32 v2, 5, v255
v_bfe_u32 v3, v255, 1, 3
v_xor_b32 v3, v3, v2
v_lshlrev_b32 v3, 4, v3
v_lshl_add_u32 v3, v1, 7, v3
v_add_u32 v4, s73, v3
v_xor_b32 v5, 32, v4
v_xor_b32 v6, 64, v4
v_xor_b32 v7, 96, v4
v_add_u32 v8, 0x10000, v4
v_add_u32 v9, 0x10000, v5
v_add_u32 v10, 0x10000, v6
v_add_u32 v11, 0x10000, v7
""")
a.wait_vm(tok["u0"])
for s in range(28):
    cb = s >> 2
    base = (4 if cb < 4 else 8) + (s & 3)
    a(f"ds_read_b128 a[{4*s}:{4*s+3}], v{base} offset:{(cb % 4)*16384}")
a(f"""
v_bfe_u32 v1, v255, 4, 1
v_lshrrev_b32 v2, 5, v255
v_bfe_u32 v3, v255, 2, 2
v_and_b32 v12, 3, v255
v_mul_u32_u24 v13, {8192+32}, v1
v_lshl_add_u32 v13, v2, 11, v13
v_lshl_add_u32 v13, v3, 6, v13
v_lshl_add_u32 v13, v12, 3, v13
v_add_u32 v240, {RB}, v13
v_xor_b32 v241, 32, v240
s_mul_i32 s74, {sw}, 448
v_lshl_add_u32 v13, v2, 2, v3
v_add_u32 v13, s74, v13
v_mul_u32_u24 v13, 896, v13
v_lshl_add_u32 v13, v1, 6, v13
v_lshl_add_u32 v246, v12, 4, v13
v_add_u32 v247, {8*896-1024}, v246
v_add_u32 v248, {2*(8*896-1024)}, v246
v_add_u32 v249, {3*(8*896-1024)}, v246
s_lshl_b32 {sWdoff}, {sc2}, 7
s_mul_i32 s79, {sw}, {NWD*2048}
s_waitcnt lgkmcnt(0)
s_barrier
""")
stamp()


def wd_pair(kk):
    g = [f"s_add_u32 m0, s79, {(kk % NWD)*2048}\nbuffer_load_dwordx4 v246, {rWd}, {sWdoff} offen lds"]
    for i in range(1, 4):
        g.append(f"buffer_load_dwordx4 v{246+i}, {rWd}, {sWdoff} offen offset:{1024*i} lds")
    g[-1] += f"\ns_add_u32 {sWdoff}, {sWdoff}, {32*896}"
    return g


def wfrag_read(s, t, rd):
    off = SLOT[(s >> 1) % 4] - RB + (s & 1) * 4096 + rd * 1024 + (t >> 1) * 256
    return f"ds_read_b64_tr_b16 a[{112+4*t+2*rd}:{113+4*t+2*rd}], v{240+(t & 1)} offset:{off}"


for t in range(8):
    a(wfrag_read(0, t, 0)); a(wfrag_read(0, t, 1))
for g in w_unit(2):
    a(g)
tok["u2"] = a.vm_tok()

FL_LOAD = f"buffer_load_dword v200, v201, {rWs}, s80 offen sc1"
FL_CMP = f"v_cmp_ne_u32 vcc, {snonce}, v200"
NC_LOAD = f"global_load_dword v202, v203, s[{sDbg}:{sDbg+1}] sc1"
NC_CMP = "v_cmp_eq_u32 vcc, 0, v202"
for s in range(28):
    extra = []
    post = {}
    if s % 2 == 1 and s < 27:
        u = (s + 1) // 2
        a.wait_vm(tok[f"u{u}"])
        a("s_barrier")
        if u + 2 < 14:
            extra += w_unit(u + 2)
            post[len(extra)] = f"u{u+2}"
    if s % 2 == 0 and 2 <= s < 2 + NWD:
        extra += wd_pair(s - 2)
        if s == NWD:
            post[len(extra)] = "wd0"
    if s == 8:
        extra += ["v_mov_b32 v203, 0\n" + NC_LOAD]
    if s == 18:
        extra += [f"v_and_b32 v201, 31, v255\nv_lshlrev_b32 v201, 2, v201",
                  f"s_mul_i32 s80, {sxcd}, {FSP}\ns_add_u32 s80, s80, {WS_FL}", FL_LOAD]
    if s == 14:
        poll("nc", NC_LOAD, NC_CMP)
        a(f"v_readfirstlane_b32 {snonce}, v202")
    if s == 22:
        poll("fl", FL_LOAD, FL_CMP)
        extra += [f"v_and_b32 v204, 31, v255\nv_lshlrev_b32 v205, 3, v204",
                  f"s_lshl_b32 s81, {sr1}, 2\ns_add_u32 s81, s81, {sw}\ns_lshl_b32 s81, s81, 8\ns_add_u32 s81, s81, {WS_ST}",
                  f"buffer_load_dword v206, v205, {rWs}, s81 offen sc1",
                  f"v_bfe_u32 v204, v255, 4, 1\nv_and_b32 v205, 15, v255\nv_lshlrev_b32 v205, 2, v205",
                  f"v_lshl_add_u32 v207, v204, 9, v205\ns_lshl_b32 s81, {sc1_}, 10\ns_add_u32 s81, s81, {WS_CS}"]
    if s == 23:
        extra += [f"buffer_load_dword a{160+t}, v207, {rWs}, s81 offen offset:{64*t} sc1" for t in range(8)]
    if s == 24:
        extra += [f"v_lshrrev_b32 v204, 3, v255\nv_mul_u32_u24 v204, {448*128}, v204",
                  f"v_and_b32 v205, 7, v255\nv_lshl_add_u32 v208, v205, 4, v204",
                  f"v_add_u32 v209, {8*448*128-1024}, v208\ns_lshr_b32 s82, {sw}, 1\ns_lshl_b32 s83, {sjc}, 1",
                  f"s_add_u32 s83, s83, s82\ns_lshl_b32 s83, s83, 7\ns_and_b32 s84, {sw}, 1",
                  f"s_mul_i32 s85, s84, {16*448*128}\ns_add_u32 s83, s83, s85\ns_add_u32 s83, s83, {WS_XT}",
                  f"s_mul_i32 s82, s82, {U_CH}\ns_lshl_b32 s84, s84, 11\ns_add_u32 s82, s82, s84"]
    if s == 25:
        extra += [f"s_add_u32 m0, s82, {UB+U1_OFF+448}\nbuffer_load_dwordx4 v208, {rWs}, s83 offen sc1 lds",
                  f"buffer_load_dwordx4 v209, {rWs}, s83 offen offset:1024 sc1 lds"]
        post[len(extra)] = "u"
    if s == 26:
        extra += ["v_cmp_gt_u32 vcc, 32, v255\nv_mov_b32 v211, 0\nv_mov_b32 v212, 0",
                  "v_cndmask_b32 v210, 0, v206, vcc\nv_cndmask_b32 v213, 0, v206, vcc"]
    k = 0
    for t in range(8):
        c = "0" if s == 0 else f"v[{16*t}:{16*t+15}]"
        a(f"v_mfma_f32_32x32x16_bf16 v[{16*t}:{16*t+15}], a[{112+4*t}:{115+4*t}], a[{4*s}:{4*s+3}], {c}")
        if s < 27:
            a(wfrag_read(s + 1, t, 0)); a(wfrag_read(s + 1, t, 1))
        n = -(-(len(extra) - k) // (8 - t))
        for _ in range(n):
            a(extra[k]); k += 1
            if k in post:
                tok[post[k]] = a.vm_tok()
for t in range(8):
    b = 210 + 2 * (t & 1)
    a(f"v_mfma_f32_32x32x8_bf16 v[{16*t}:{16*t+15}], a[{160+(t & ~1)}:{161+(t & ~1)}], v[{b}:{b+1}], v[{16*t}:{16*t+15}]")
stamp()

a(f"""
s_lshl_b32 s81, {sr1}, 2
s_add_u32 s81, s81, {sw}
s_mul_i32 s86, s81, {112*1024}
s_lshl_b32 s84, {sc1_}, 13
s_add_u32 s86, s86, s84
s_add_u32 s87, s86, 4096
""")
for t in range(8):
    b = 16 * t
    for r in range(8):
        a(f"v_max_f32 v{b+r}, 0, v{b+r}")
    for r in range(0, 8, 2):
        a(f"v_pk_mul_f32 v[{b+r}:{b+r+1}], v[{b+r}:{b+r+1}], v[{b+8+r}:{b+9+r}]")
    for r in range(4):
        a(f"v_cvt_pk_bf16_f32 v{b+8+r}, v{b+2*r}, v{b+2*r+1}")
    a(f"buffer_store_dwordx4 v[{b+8}:{b+11}], v250, {rWs}, s{86+(t >> 2)} offen offset:{1024*(t & 3)} sc1")
tok["h"] = a.vm_tok()
stamp()

a(f"""
s_lshl_b32 s84, {sw}, 11
s_add_u32 s84, s84, {KX}
v_add_u32 v130, s84, v250
v_xor_b32 v131, 2048, v130
s_bitcmp1_b32 {sw}, 0
s_cbranch_scc1 L_kx1
""")
a.fork("kx")
a("ds_write_b128 v130, a[152:155]\nds_write_b128 v130, a[156:159] offset:1024")
for r in range(8):
    a(f"v_accvgpr_read_b32 v{140+r}, a{144+r}")
a("s_waitcnt lgkmcnt(0)\ns_branch L_kx2\nL_kx1:")
a.other("kx")
a("ds_write_b128 v130, a[144:147]\nds_write_b128 v130, a[148:151] offset:1024")
for r in range(8):
    a(f"v_accvgpr_read_b32 v{140+r}, a{152+r}")
a("s_waitcnt lgkmcnt(0)\nL_kx2:")
a.join("kx")
a.wait_vm(tok["u"])
a("s_barrier")
a(f"""
ds_read_b128 v[132:135], v131
ds_read_b128 v[136:139], v131 offset:1024
s_add_u32 s84, s82, {UB}
v_lshl_add_u32 v150, v255, 5, s84
ds_read_b128 v[154:157], v150 offset:{U1_OFF+448}
ds_read_b128 v[158:161], v150 offset:{U1_OFF+448+16}
ds_read_b32 v153, v150 offset:{U1_OFF+448-4}
s_lshr_b32 s84, {sw}, 1
s_mul_i32 s88, s84, {KC_CH}
s_add_u32 s88, s88, {KC0}
v_mov_b32 v152, 0
v_lshrrev_b32 v162, 4, v255
v_mul_u32_u24 v162, {KC_CP+4}, v162
v_and_b32 v163, 15, v255
v_lshl_add_u32 v162, v163, 2, v162
v_add_u32 v162, s88, v162
ds_write_b32 v162, v152 offset:{4096-12}
s_mul_i32 s85, s84, {U_CH}
s_and_b32 s84, {sw}, 1
s_mul_i32 s84, s84, {U1_OFF}
s_add_u32 s85, s85, s84
s_add_u32 s85, s85, {UB}
v_min_u32 v163, 55, v255
v_lshl_add_u32 v163, v163, 3, s85
v_mov_b32 v164, 0
v_mov_b32 v165, 0
ds_write_b64 v163, v[164:165]
""")
for r in range(8):
    a(f"v_add_f32 v{140+r}, v{140+r}, v{132+r}")
a(f"""
v_cmp_eq_u32 vcc, 0, v255
s_and_b32 s84, {sw}, 1
s_cmp_eq_u32 s84, 0
s_cselect_b64 vcc, vcc, 0
v_cndmask_b32 v153, v153, v152, vcc
""")
for i in range(8):
    a(f"v_alignbit_b32 v{166+i}, v{154+i}, v{153+i}, 16")
a(f"ds_write_b128 v150, v[166:169] offset:448\nds_write_b128 v150, v[170:173] offset:464")


def octet_writes(d, areg, off):
    a(f"ds_write_b128 v{areg}, v[{d}:{d+3}] offset:{off+3*KC_CP+12}")
    o1 = off + KC_CP + 4
    a(f"ds_write_b64 v{areg}, v[{d}:{d+1}] offset:{o1}\nds_write_b64 v{areg}, v[{d+2}:{d+3}] offset:{o1+8}")
    for c in (0, 2):
        o = off + c * KC_CP + 4 * c
        a(f"ds_write_b32 v{areg}, v{d} offset:{o}\nds_write_b32 v{areg}, v{d+3} offset:{o+12}")
        a(f"v_mov_b32 v{d+4}, v{d+1}\nv_mov_b32 v{d+5}, v{d+2}") if c == 0 else None
        a(f"ds_write_b64 v{areg}, v[{d+4}:{d+5}] offset:{o+4}")


a(f"""
s_bitcmp1_b32 {sw}, 0
s_cbranch_scc1 L_ko1
""")
a.fork("ko")
a(f"""
v_cmp_eq_u32 vcc, 0, v255
v_mov_b32 v174, {sDs}
v_cndmask_b32 v174, 0, v174, vcc
v_add_f32 v140, v140, v174
s_add_u32 s84, s88, {16*255-12}
v_sub_u32 v175, s84, v250
v_cvt_pk_bf16_f32 v176, v147, v146
v_cvt_pk_bf16_f32 v177, v145, v144
v_cvt_pk_bf16_f32 v178, v143, v142
v_cvt_pk_bf16_f32 v179, v141, v140
""")
octet_writes(176, 175, 0)
a("s_waitcnt lgkmcnt(0)\ns_branch L_ko2\nL_ko1:")
a.other("ko")
a(f"""
s_add_u32 s84, s88, {16*(255-64)-12}
v_sub_u32 v175, s84, v250
v_cvt_pk_bf16_f32 v176, v142, v142
v_cvt_pk_bf16_f32 v177, v141, v141
v_cvt_pk_bf16_f32 v178, v141, v140
v_cvt_pk_bf16_f32 v179, v140, v140
""")
octet_writes(176, 175, 0)
a(f"""
v_lshrrev_b32 v174, 5, v255
v_lshlrev_b32 v174, 9, v174
v_sub_u32 v175, v175, v174
v_subrev_u32 v175, {16*96}, v175
s_mov_b32 s90, 0xaaaaaaaa
s_mov_b32 s91, 0xaaaaaaaa
""")
for hh, (p, q) in enumerate(((143, 144), (145, 146))):
    d = 184 + 8 * hh
    a(f"""
v_cndmask_b32 v174, v{p}, v{q}, s[90:91]
v_cvt_pk_bf16_f32 v{d}, v{q}, v{q}
v_cvt_pk_bf16_f32 v{d+1}, v{q}, v174
v_cvt_pk_bf16_f32 v{d+2}, v{p}, v{p}
v_cvt_pk_bf16_f32 v{d+3}, v{p}, v{p}
""")
    octet_writes(d, 175, 512 * (1 - hh))
a("s_waitcnt lgkmcnt(0)\nL_ko2:")
a.join("ko")
a(f"""
v_and_b32 v140, 1, v255
v_mul_u32_u24 v140, {U1_OFF}, v140
v_bfe_u32 v141, v255, 1, 3
v_lshl_add_u32 v140, v141, 6, v140
v_lshrrev_b32 v142, 4, v255
v_lshl_add_u32 v140, v142, 4, v140
s_lshr_b32 s84, {sw}, 1
s_mul_i32 s84, s84, {U_CH}
s_and_b32 s85, {sw}, 1
s_lshl_b32 s85, s85, 6
s_sub_u32 s84, s84, s85
s_add_u32 s84, s84, {UB+448-384}
v_add_u32 v130, s84, v140
v_and_b32 v140, 3, v255
v_mul_u32_u24 v140, {KC_CP}, v140
v_bfe_u32 v141, v255, 2, 2
v_sub_u32 v141, v142, v141
v_lshl_add_u32 v140, v141, 4, v140
s_sub_u32 s84, s88, s85
s_add_u32 s84, s84, {16*255-64*62}
v_add_u32 v131, s84, v140
s_barrier
""")
stamp()

def a_read(n):
    return f"ds_read_b128 a[{128+4*(n % 4)}:{131+4*(n % 4)}], v131 offset:{64*(62-2*n)}"


for n in range(3):
    a(a_read(n))
for i in range(4):
    for be in range(8):
        a(f"ds_read_b128 a[{16*be+4*i}:{16*be+4*i+3}], v130 offset:{512*be-128*i+384}")
FH_LOAD = f"buffer_load_dword v200, v201, {rWs}, s80 offen sc1"
FH_CMP = f"v_cmp_ne_u32 vcc, {snonce}, v200"
for P in range(8):
    for i in range(4):
        n = 4 * P + i
        if n + 3 < 32:
            a(a_read(n + 3))
        for be in range(8 - P):
            j = P + be
            c = "0" if n == 0 else f"a[{224+4*j}:{227+4*j}]"
            a(f"v_mfma_f32_16x16x32_bf16 a[{224+4*j}:{227+4*j}], a[{128+4*(n % 4)}:{131+4*(n % 4)}], a[{16*be+4*i}:{16*be+4*i+3}], {c}")
        if n == 6:
            a.wait_vm(tok["h"])
            a(f"""
s_mul_i32 s84, s81, {FSP}
s_lshl_b32 s85, {sc1_}, 2
s_add_u32 s84, s84, s85
s_add_u32 s84, s84, {WS_FH}
v_mov_b32 v204, {snonce}
s_mov_b64 exec, 1
buffer_store_dword v204, v203, {rWs}, s84 offen sc1
s_mov_b64 exec, -1
""")
        if n == 16:
            a(f"""
v_and_b32 v201, 15, v255
v_min_u32 v201, 13, v201
v_lshlrev_b32 v201, 2, v201
v_bfe_u32 v204, v255, 4, 1
v_mul_u32_u24 v204, {FSP}, v204
v_add_u32 v201, v201, v204
s_mul_i32 s80, {sr2}, {2*FSP}
s_add_u32 s80, s80, {WS_FH}
{FH_LOAD}
""")
stamp()
poll("fh", FH_LOAD, FH_CMP)
a(f"""
s_lshr_b32 s84, {sw}, 1
s_mul_i32 s85, s84, {112*1024}
v_add_u32 v251, s85, v250
s_xor_b32 s84, s84, 1
s_mul_i32 s85, s84, {112*1024}
v_add_u32 v252, s85, v250
s_mul_i32 s89, {sr2}, {2*112*1024}
s_mul_i32 s85, {sw}, {28*1024}
s_add_u32 s89, s89, s85
""")
NH = 8


def h_load(kk):
    g = []
    for ta in range(2):
        r = 64 + 8 * (kk % NH) + 4 * ta
        g.append(f"buffer_load_dwordx4 v[{r}:{r+3}], v{251+ta}, {rWs}, s89 offen offset:{1024*(kk % 4)} sc1")
    if kk % 4 == 3:
        g[-1] += "\ns_add_u32 s89, s89, 4096"
    return g


for kk in range(NH):
    for g in h_load(kk):
        a(g)
a(f"""
s_lshl_b32 s84, {sw}, 13
s_add_u32 s84, s84, {YX}
v_add_u32 v130, s84, v250
s_barrier
""")
for j in range(8):
    a(f"ds_write_b128 v130, a[{224+4*j}:{227+4*j}] offset:{1024*j}")
a(f"""
v_bfe_u32 v131, v255, 1, 2
v_lshlrev_b32 v131, 8, v131
v_lshrrev_b32 v132, 3, v255
v_lshl_add_u32 v131, v132, 5, v131
v_and_b32 v132, 1, v255
v_lshl_add_u32 v131, v132, 3, v131
s_lshl_b32 s84, {sw}, 11
s_add_u32 s84, s84, {YX}
v_add_u32 v131, s84, v131
s_lshl_b32 s84, {sjc}, 13
s_lshl_b32 s85, {sw}, 11
s_add_u32 s84, s84, s85
s_add_u32 s84, s84, {WS_Y}
s_waitcnt lgkmcnt(0)
s_barrier
""")
for jj in range(2):
    for src in range(4):
        r = 140 + 16 * jj + 4 * src
        for ph in range(2):
            a(f"ds_read_b64 v[{r+2*ph}:{r+2*ph+1}], v131 offset:{8192*src+1024*jj+16*ph}")
for jj in range(2):
    r = 140 + 16 * jj
    a(f"""
v_pk_add_f32 v[{r}:{r+1}], v[{r}:{r+1}], v[{r+4}:{r+5}]
v_pk_add_f32 v[{r+2}:{r+3}], v[{r+2}:{r+3}], v[{r+6}:{r+7}]
v_pk_add_f32 v[{r+8}:{r+9}], v[{r+8}:{r+9}], v[{r+12}:{r+13}]
v_pk_add_f32 v[{r+10}:{r+11}], v[{r+10}:{r+11}], v[{r+14}:{r+15}]
v_cvt_pk_bf16_f32 v{r+4}, v{r}, v{r+8}
v_cvt_pk_bf16_f32 v{r+5}, v{r+2}, v{r+10}
v_cvt_pk_bf16_f32 v{r+6}, v{r+1}, v{r+9}
v_cvt_pk_bf16_f32 v{r+7}, v{r+3}, v{r+11}
buffer_store_dwordx4 v[{r+4}:{r+7}], v250, {rWs}, s84 offen offset:{1024*jj} sc1
""")
tok["y"] = a.vm_tok()
stamp()

a(f"""
v_bfe_u32 v130, v255, 4, 1
v_lshlrev_b32 v130, 5, v130
v_lshrrev_b32 v131, 5, v255
v_lshl_add_u32 v130, v131, 9, v130
v_bfe_u32 v132, v255, 2, 2
v_lshl_add_u32 v130, v132, 6, v130
v_and_b32 v132, 3, v255
v_lshl_add_u32 v130, v132, 3, v130
s_and_b32 s84, {sw}, 1
s_lshl_b32 s84, s84, 8
s_add_u32 s84, s84, s79
v_add_u32 v240, s84, v130
v_xor_b32 v241, 256, v240
""")


def d_read(kk, da, rd):
    r = 128 + 8 * (kk % 2) + 4 * da + 2 * rd
    return f"ds_read_b64_tr_b16 a[{r}:{r+1}], v{240+da} offset:{(kk % NWD)*2048+rd*1024}"


a.wait_vm(tok["wd0"])
for da in range(2):
    for rd in range(2):
        a(d_read(0, da, rd))
FY_LOAD = f"buffer_load_dword v200, v201, {rWs}, s80 offen sc1"
FY_CMP = f"v_cmp_ne_u32 vcc, {snonce}, v200"
for kk in range(28):
    extra = []
    post = {}
    if kk + 1 < 28:
        if f"wd{kk+1}" in tok and kk + 1 >= NWD:
            a.wait_vm(tok[f"wd{kk+1}"])
        extra += [d_read(kk + 1, da, rd) for da in range(2) for rd in range(2)]
    late = []
    if kk % 2 == 1 and kk - 1 + NWD < 28:
        late += wd_pair(kk - 1 + NWD)
        post[len(late)] = f"wd{kk-1+NWD}"
    if kk == 2:
        late += [("wait", "y"), f"""
s_lshr_b32 s84, {sjc}, 5
s_lshl_b32 s84, s84, 2
s_add_u32 s84, s84, {sw}
s_mul_i32 s84, s84, {FSP}
s_and_b32 s85, {sjc}, 31
s_lshl_b32 s85, s85, 2
s_add_u32 s84, s84, s85
s_add_u32 s84, s84, {WS_FY}
v_mov_b32 v204, {snonce}
s_mov_b64 exec, 1
buffer_store_dword v204, v203, {rWs}, s84 offen sc1
s_mov_b64 exec, -1
"""]
    if kk == 8:
        late += ["s_barrier"]
    if kk == 14:
        late += [f"""
v_and_b32 v204, 31, v255
v_lshlrev_b32 v201, 2, v204
s_lshl_b32 s80, {sc2}, 2
s_lshr_b32 s84, {sr2}, 3
s_add_u32 s80, s80, s84
s_mul_i32 s80, s80, {FSP}
s_add_u32 s80, s80, {WS_FY}
{FY_LOAD}
"""]
    if kk == 16:
        late += [f"""
s_lshr_b32 s84, {sw}, 1
s_lshl_b32 s85, {sr2}, 1
s_add_u32 s84, s84, s85
s_lshl_b32 s92, s84, 5
v_add_u32 v205, s92, v204
v_lshlrev_b32 v206, 3, v205
v_mul_u32_u24 v205, 896, v205
v_lshl_add_u32 v205, v131, 3, v205
s_and_b32 s84, {sw}, 1
s_lshl_b32 s85, {sc2}, 1
s_add_u32 s84, s84, s85
s_lshl_b32 s93, s84, 6
s_mov_b32 s85, {WS_ST+4}
buffer_load_dword v148, v206, {rWs}, s85 offen sc1
"""] + [f"buffer_load_dwordx2 v[{140+2*g}:{141+2*g}], v205, {rX}, s93 offen offset:{16*g}" for g in range(4)]
    if kk == 20:
        poll("fy", FY_LOAD, FY_CMP)
        late += [f"""
v_lshlrev_b32 v206, 14, v131
v_add_u32 v206, v206, v201
s_lshl_b32 s84, s93, 11
s_lshl_b32 s85, s92, 2
s_add_u32 s84, s84, s85
s_add_u32 s84, s84, {WS_Y}
"""]
        for g in range(4):
            for e in range(2):
                late += [f"buffer_load_dword v{150+2*g+e}, v206, {rWs}, s84 offen sc1\ns_add_u32 s84, s84, {8192 if e == 0 else 3*8192}"]
    q = 0
    for ta in range(2):
        for da in range(2):
            acc = 16 * (da + 2 * ta)
            c = "0" if kk == 0 else f"v[{acc}:{acc+15}]"
            fa = 128 + 8 * (kk % 2) + 4 * da
            fb = 64 + 8 * (kk % NH) + 4 * ta
            a(f"v_mfma_f32_32x32x16_bf16 v[{acc}:{acc+15}], a[{fa}:{fa+3}], v[{fb}:{fb+3}], {c}")
            if q < len(extra):
                a(extra[q])
            q += 1
    if kk + NH < 28:
        for g in h_load(kk + NH):
            a(g)
    for k, g in enumerate(late):
        if isinstance(g, tuple):
            a.wait_vm(tok[g[1]])
        else:
            a(g)
        if k + 1 in post:
            tok[post[k + 1]] = a.vm_tok()
stamp()
a(f"""
s_mul_i32 s84, {sw}, {3*4096}
s_add_u32 s84, s84, {RX}
v_add_u32 v130, s84, v250
""")
for k in range(1, 4):
    a(f"""
s_xor_b32 s85, {sw}, {k}
s_mul_i32 s85, s85, {3*4096}
s_add_u32 s85, s85, {RX+(k-1)*4096}
v_add_u32 v{132+k}, s85, v250
""")
for k in range(1, 4):
    for g in range(4):
        a(f"ds_write_b128 v130, v[{16*k+4*g}:{16*k+4*g+3}] offset:{(k-1)*4096+1024*g}")
for g in range(4):
    for e in range(2):
        xr, yr, d = 140 + 2 * g + e, 150 + 2 * g + e, 160 + 4 * g + 2 * e
        a(f"""
v_lshlrev_b32 v{d}, 16, v{xr}
v_and_b32 v{d+1}, s78, v{xr}
v_lshlrev_b32 v176, 16, v{yr}
v_and_b32 v177, s78, v{yr}
v_pk_add_f32 v[{d}:{d+1}], v[{d}:{d+1}], v[176:177]
""")
a("s_waitcnt lgkmcnt(0)\ns_barrier")
for k in range(1, 4):
    for g in range(4):
        a(f"ds_read_b128 v[{16*k+4*g}:{16*k+4*g+3}], v{132+k} offset:{1024*g}")
for g in range(4):
    for e in range(2):
        r = 4 * g + 2 * e
        for k in range(1, 4):
            a(f"v_pk_add_f32 v[{r}:{r+1}], v[{r}:{r+1}], v[{16*k+r}:{16*k+r+1}]")
        a(f"v_pk_fma_f32 v[{r}:{r+1}], v[{r}:{r+1}], v[148:149], v[{160+r}:{161+r}] op_sel_hi:[1,0,1]")
    a(f"v_cvt_pk_bf16_f32 v{64+2*g}, v{4*g}, v{4*g+1}\nv_cvt_pk_bf16_f32 v{65+2*g}, v{4*g+2}, v{4*g+3}")
    a(f"buffer_store_dwordx2 v[{64+2*g}:{65+2*g}], v205, {rOut}, s93 offen offset:{16*g}")
stamp()


def stamp_out():
    if not STAMP:
        return
    a(f"""
s_waitcnt vmcnt(0)
s_memrealtime s[98:99]
s_waitcnt lgkmcnt(0)
v_writelane_b32 v254, s98, 15
s_lshl_b32 s84, s2, 2
s_add_u32 s84, s84, {sw}
s_lshl_b32 s84, s84, 6
s_add_u32 s84, s84, {WS_TS}
v_lshlrev_b32 v1, 2, v255
s_mov_b64 exec, 0xffff
buffer_store_dword v254, v1, {rWs}, s84 offen
""")


stamp_out()
a("s_endpgm")

a.reset()
nstamp[0] = 1
shq = "s59"
a(f"""
L_helper:
s_lshl_b32 {shq}, {sxcd}, 2
s_add_u32 {shq}, {shq}, {sj}
v_mov_b32 v203, 0
s_or_b32 s72, {shq}, {sw}
s_cmp_eq_u32 s72, 0
s_cbranch_scc0 L_hnoep
s_mov_b32 s72, {WS_EP}
buffer_load_dword v202, v203, {rWs}, s72 offen sc1
s_waitcnt vmcnt(0)
s_mov_b32 s73, 1664525
v_mul_lo_u32 v202, v202, s73
v_add_u32 v202, 1013904225, v202
v_or_b32 v202, 1, v202
s_mov_b64 exec, 1
global_store_dword v203, v202, s[{sDbg}:{sDbg+1}] sc1
buffer_store_dword v202, v203, {rWs}, s72 offen sc1
s_mov_b64 exec, -1
s_waitcnt vmcnt(0)
L_hnoep:
v_lshrrev_b32 v1, 2, v255
s_lshl_b32 s72, {shq}, 2
s_add_u32 s72, s72, {sw}
s_lshl_b32 s72, s72, 4
v_add_u32 v4, s72, v1
v_mul_u32_u24 v5, 896, v4
v_and_b32 v2, 3, v255
v_lshl_add_u32 v5, v2, 4, v5
""")
for i in range(14):
    a(f"buffer_load_dwordx4 v[{8+4*i}:{11+4*i}], v5, {rX}, 0 offen offset:{64*i}")
a(f"""
s_bitcmp1_b32 {shq}, 0
s_cselect_b32 s40, s{sWu}, s{sWg}
s_cselect_b32 s41, s{sWu+1}, s{sWg+1}
s_lshr_b32 s73, {shq}, 1
s_cmp_lt_u32 s73, 14
s_cselect_b32 s73, s73, 0
s_lshl_b32 s74, s73, 8
v_lshrrev_b32 v6, 4, v255
s_lshl_b32 s75, {sw}, 2
v_add_u32 v6, s75, v6
v_mul_u32_u24 v7, 3584, v6
v_and_b32 v3, 15, v255
v_lshl_add_u32 v7, v3, 4, v7
""")
for i in range(28):
    a(f"buffer_load_dwordx4 v[{72+4*i}:{75+4*i}], v7, {rW}, s74 offen\ns_add_u32 s74, s74, {16*3584}")
a(f"""
s_lshl_b32 s74, {sj}, 2
s_add_u32 s74, s74, {sw}
s_mul_i32 s74, s74, {784*128}
v_lshlrev_b32 v184, 7, v255
""")
for i in range(13):
    a(f"buffer_load_dword v{214+i}, v184, {rWd}, s74 offen\ns_add_u32 s74, s74, {64*128}")
a(f"""
s_mov_b32 s76, 0x3f803f80
s_mov_b32 s77, 0x00003f80
s_mov_b32 s78, 0xffff0000
s_mov_b32 s79, 0x3f800000
v_mov_b32 v64, 0
v_mov_b32 v65, 0
""")
for i in range(56):
    a(f"v_dot2_f32_bf16 v{64+i % 2}, v{8+i}, s76, v{64+i % 2}")
a(f"""
v_add_f32 v64, v64, v65
v_add_f32_dpp v64, v64, v64 quad_perm:[1,0,3,2] row_mask:0xf bank_mask:0xf
v_add_f32_dpp v64, v64, v64 quad_perm:[2,3,0,1] row_mask:0xf bank_mask:0xf
v_mul_f32 v64, {hex(0x3b124925)}, v64
v_cvt_pk_bf16_f32 v65, -v64, -v64
v_and_b32 v66, s78, v65
v_mov_b32 v68, 0
v_mov_b32 v69, 0
""")
for i in range(56):
    t = 186 + 2 * (i % 4)
    a(f"""
v_dot2_f32_bf16 v{t}, v{8+i}, s77, v66
v_dot2_f32_bf16 v{t+1}, v{8+i}, s79, v66
""")
    if i >= 2:
        p = 186 + 2 * ((i - 2) % 4)
        a(f"v_pk_fma_f32 v[68:69], v[{p}:{p+1}], v[{p}:{p+1}], v[68:69]\nv_cvt_pk_bf16_f32 v{6+i}, v{p}, v{p+1}")
for i in (54, 55):
    p = 186 + 2 * (i % 4)
    a(f"v_pk_fma_f32 v[68:69], v[{p}:{p+1}], v[{p}:{p+1}], v[68:69]\nv_cvt_pk_bf16_f32 v{8+i}, v{p}, v{p+1}")
a(f"""
v_add_f32 v68, v68, v69
v_add_f32_dpp v68, v68, v68 quad_perm:[1,0,3,2] row_mask:0xf bank_mask:0xf
v_add_f32_dpp v68, v68, v68 quad_perm:[2,3,0,1] row_mask:0xf bank_mask:0xf
v_add_f32 v67, v64, v66
v_mul_f32 v67, v67, v67
v_mul_f32 v68, {hex(0x3b124925)}, v68
v_sub_f32 v68, v68, v67
v_max_f32 v68, 0, v68
v_cvt_pk_bf16_f32 v68, v68, v68
v_and_b32 v68, s78, v68
v_add_f32 v68, 0x3727c5ac, v68
v_cvt_pk_bf16_f32 v68, v68, v68
v_and_b32 v68, s78, v68
v_sqrt_f32 v68, v68
v_cvt_pk_bf16_f32 v68, v68, v68
v_and_b32 v68, s78, v68
v_rcp_f32 v70, v68
v_fma_f32 v71, -v68, v70, 1.0
v_fma_f32 v70, v70, v71, v70
v_mul_f32 v66, v70, v70
v_lshlrev_b32 v4, 3, v4
s_mov_b32 s74, {WS_ST}
s_mov_b32 s80, 0x11111111
s_mov_b32 s81, 0x11111111
v_mov_b32 v64, v65
v_mov_b32 v65, v66
s_mov_b64 exec, s[80:81]
buffer_store_dwordx2 v[64:65], v4, {rWs}, s74 offen sc1
s_mov_b64 exec, -1
v_mul_u32_u24 v5, 960, v1
s_mul_i32 s75, {sw}, {16*960}
v_lshl_add_u32 v5, v2, 4, v5
v_add_u32 v5, s75, v5
""")
for i in range(56):
    t = 186 + 2 * (i % 4)
    a(f"""
v_lshlrev_b32 v{t}, 16, v{8+i}
v_and_b32 v{t+1}, s78, v{8+i}
v_pk_mul_f32 v[{t}:{t+1}], v[{t}:{t+1}], v[70:71] op_sel_hi:[1,0]
v_cvt_pk_bf16_f32 v{8+i}, v{t}, v{t+1}
""")
    if i % 4 == 3:
        a(f"ds_write_b128 v5, v[{8+i-3}:{8+i}] offset:{64*(i//4)}")
stamp()
L2B = 64 * 960
a(f"""
v_lshrrev_b32 v1, 5, v255
v_bfe_u32 v2, v255, 2, 2
v_lshl_add_u32 v2, v1, 3, v2
v_mul_u32_u24 v2, 960, v2
v_bfe_u32 v4, v255, 4, 1
v_lshl_add_u32 v2, v4, 5, v2
v_and_b32 v4, 3, v255
v_lshl_add_u32 v2, v4, 3, v2
v_add_u32 v2, s75, v2
v_and_b32 v4, 31, v255
v_mul_u32_u24 v4, 144, v4
s_lshl_b32 s74, {sw}, 5
s_add_u32 s74, s74, {L2B}
v_lshl_add_u32 v4, v1, 4, v4
v_add_u32 v4, s74, v4
""")
for b in range(14):
    a(f"ds_read_b64_tr_b16 v[{8+4*b}:{9+4*b}], v2 offset:{64*b}\nds_read_b64_tr_b16 v[{10+4*b}:{11+4*b}], v2 offset:{64*b+4*960}")
for b in range(14):
    a(f"ds_write_b128 v4, v[{8+4*b}:{11+4*b}] offset:{32*144*b}")
for e in range(8):
    a(f"v_mov_b32 v{64+e}, 0")
for i in range(28):
    for d in range(4):
        a(f"v_dot2_f32_bf16 v{64+2*d}, v{72+4*i+d}, s77, v{64+2*d}")
        a(f"v_dot2_f32_bf16 v{65+2*d}, v{72+4*i+d}, s79, v{65+2*d}")
L3B = L2B + 448 * 144
a(f"""
v_lshlrev_b32 v6, 9, v6
v_lshl_add_u32 v6, v3, 5, v6
v_add_u32 v6, {L3B}, v6
ds_write_b128 v6, v[64:67]
ds_write_b128 v6, v[68:71] offset:16
v_lshrrev_b32 v1, 3, v255
v_mul_u32_u24 v1, 144, v1
v_and_b32 v2, 7, v255
v_lshl_add_u32 v1, v2, 4, v1
s_mul_i32 s74, {sw}, {112*144}
s_add_u32 s74, s74, {L2B}
v_add_u32 v1, s74, v1
s_mul_i32 s74, {shq}, {448*128}
s_mul_i32 s75, {sw}, {112*128}
s_add_u32 s74, s74, s75
s_add_u32 s74, s74, {WS_XT}
s_and_b32 s75, {sw}, 1
s_lshl_b32 s75, s75, 8
v_lshl_add_u32 v2, v255, 2, s75
v_add_u32 v6, {L3B}, v2
{NC_LOAD}
s_waitcnt lgkmcnt(0)
s_barrier
""")
for b in range(14):
    a(f"ds_read_b128 v[{8+4*b}:{11+4*b}], v1 offset:{8*144*b}")
for r in range(16):
    a(f"ds_read_b32 v{72+r}, v6 offset:{512*r}")
for b in range(14):
    a(f"buffer_store_dwordx4 v[{8+4*b}:{11+4*b}], v250, {rWs}, s74 offen offset:{1024*(b % 4)} sc1")
    if b % 4 == 3:
        a("s_add_u32 s74, s74, 4096")
for r in range(1, 16):
    a(f"v_add_f32 v72, v72, v{72+r}")
a(f"""
v_cvt_pk_bf16_f32 v73, v72, v72
v_and_b32 v73, s78, v73
v_sub_f32 v74, v72, v73
v_cvt_pk_bf16_f32 v73, v73, v74
s_lshl_b32 s74, {shq}, 9
s_add_u32 s74, s74, {WS_CS}
s_cmp_lt_u32 {shq}, 28
s_cselect_b32 s74, s74, {WS_SIZE}
s_cmp_lt_u32 {sw}, 2
s_cselect_b32 s74, s74, {WS_SIZE}
buffer_store_dword v73, v2, {rWs}, s74 offen sc1
""")
poll("hnc", NC_LOAD, NC_CMP)
a(f"""
s_waitcnt vmcnt(0)
s_barrier
s_cmp_eq_u32 {sw}, 0
s_cbranch_scc0 L_hdone
v_mul_u32_u24 v1, {FSP}, v255
s_lshl_b32 s74, {shq}, 2
s_add_u32 s74, s74, {WS_FL}
s_mov_b64 exec, 0xff
buffer_store_dword v202, v1, {rWs}, s74 offen sc1
s_mov_b64 exec, -1
L_hdone:
""")
stamp()
stamp_out()
a("L_end:\ns_endpgm")
for sp in slow:
    a.reset()
    a(sp)
a("L_codeend:\ns_endpgm")

body = a.render()
ref = open(os.path.join(os.path.dirname(os.path.abspath(__file__)), "..", "cdna_kernels", NAME + ".s.ref")).read()
head = [l for l in ref.split("\n") if l.startswith(";") and "@launch" not in l and "Override" not in l and "grid=ceil" not in l]
txt = "\n".join(head) + f"""
; Generated by tools/gen.py (hand-written generator).
; @launch grid=(256,1,1) block=(256,1,1) lds=163840
.amdgcn_target "amdgcn-amd-amdhsa--gfx950"
.text
.globl {NAME}_kernel
.p2align 8
.type {NAME}_kernel,@function
{NAME}_kernel:
{body}
.section .rodata,"a"
.p2align 6
.amdhsa_kernel {NAME}_kernel
  .amdhsa_next_free_vgpr 512
  .amdhsa_next_free_sgpr 102
  .amdhsa_accum_offset 256
  .amdhsa_group_segment_fixed_size 0
  .amdhsa_kernarg_size 128
  .amdhsa_user_sgpr_count 2
  .amdhsa_user_sgpr_kernarg_segment_ptr 1
  .amdhsa_system_sgpr_workgroup_id_x 1
.end_amdhsa_kernel
"""
out = [x for x in sys.argv[1:] if not x.startswith("--")]
path = out[0] if out else os.path.join(os.path.dirname(os.path.abspath(__file__)), "..", "cdna_kernels", NAME + ".s")
open(path, "w").write(txt)
print(path, a.stats, file=sys.stderr)
```

```python
import sys, os
sys.path.insert(0, os.path.dirname(os.path.abspath(__file__)))
from asmdsl import Asm

NAME = "parallel_sum__ssm_conv_s4__glu_gated_reglu__prompt"
STAMP = "--stamp" in sys.argv

WS_H, WS_XT, WS_Y = 0x0, 0x700000, 0x8C0000
WS_ST, WS_CS = 0xA80000, 0xA84000
WS_FH, WS_FY, WS_FL, WS_EP = 0xA90000, 0xAA0000, 0xAA8000, 0xAAC000
WS_TS = 0xAB0000
WS_SIZE = 0xB00000
FSP = 1024
SLOT = [0, 16384, 32768, 49152]
XB = 32768
SC = 147456
WDS = 65536
UB = 33536
U1_OFF = 4640
U_CH = 9280
KX = 53248
KC0, KC_CH, KC_CP = 16, 16656, 4160
YX = 32768
RX = 0
NWD = 12
SPIN = 200000
FH_AT, FYW_AT, FY_AT = 26, 5, 16
OUTFL = 'sc1' if '--outsc1' in sys.argv else ''

sX, sAre, sAim, sBre, sBim, sCre, sCim, sLdt, sDsk = 4, 6, 8, 10, 12, 14, 16, 18, 20
sWg, sWu, sWd, sOut, sDbg, sWs = 24, 26, 28, 30, 32, 34
rX, rW, rWd, rWs, rOut = "s[36:39]", "s[40:43]", "s[44:47]", "s[48:51]", "s[52:55]"
sw, sxcd, sj, sr1, sc1_, sjc, sr2, sc2, snonce = "s56", "s57", "s58", "s59", "s60", "s61", "s62", "s63", "s64"
sWoff, sWdoff, sDs, scnt = "s65", "s66", "s67", "s68"

a = Asm()
slow = []
nstamp = [0]


SEL = [x.split("=")[1] for x in sys.argv if x.startswith("--sel=")]
SEL = SEL[0] if SEL else "a"


def stamp(kind="a"):
    if not STAMP or kind not in SEL:
        return
    k = nstamp[0]
    nstamp[0] += 1
    a(f"s_memrealtime s[98:99]\ns_waitcnt lgkmcnt(0)\nv_writelane_b32 v254, s98, {k}")


def merge(fg, bg, first=0, every=1):
    out, k = [], 0
    for i, x in enumerate(fg):
        out.append(x)
        if i >= first and (i - first) % every == 0 and k < len(bg):
            out.append(bg[k]); k += 1
    out += bg[k:]
    return out


def poll(name, load, cmp_):
    a(cmp_)
    a(f"s_cbranch_vccnz L_slow_{name}")
    a(f"L_back_{name}:")
    slow.append(f"""L_slow_{name}:
s_mov_b32 {scnt}, 0
L_retry_{name}:
s_add_u32 {scnt}, {scnt}, 1
s_cmp_gt_u32 {scnt}, {SPIN}
s_cbranch_scc1 L_back_{name}
s_sleep 2
{load}
s_waitcnt vmcnt(0)
{cmp_}
s_cbranch_vccnz L_retry_{name}
s_branch L_back_{name}""")


a(f"""
s_cmp_ge_u32 s2, 256
s_cbranch_scc1 L_end
s_load_dwordx16 s[4:19], s[0:1], 0
s_load_dwordx16 s[20:35], s[0:1], 64
s_getpc_b64 s[70:71]
L_pc:
s_and_b32 {sxcd}, s2, 7
s_lshr_b32 {sj}, s2, 3
v_lshrrev_b32 v1, 6, v0
v_and_b32 v255, 63, v0
v_readfirstlane_b32 {sw}, v1
""")
if STAMP:
    a("v_mov_b32 v254, 0")
stamp(SEL[0])
a(f"""
s_and_b32 s69, {sj}, 3
s_lshl_b32 s69, s69, 6
v_lshl_add_u32 v2, v1, 4, v255
v_add_u32 v2, s69, v2
v_lshlrev_b32 v2, 7, v2
v_min_u32 v2, L_codeend-L_pc-4, v2
s_mov_b64 exec, 0xffff
global_load_dword v253, v2, s[70:71]
s_mov_b64 exec, -1
v_lshlrev_b32 v250, 4, v255
s_waitcnt lgkmcnt(0)
s_mov_b32 s36, s{sX}
s_mov_b32 s37, s{sX+1}
s_mov_b32 s38, {2048*896}
s_mov_b32 s39, 0x20000
s_mov_b32 s48, s{sWs}
s_mov_b32 s49, s{sWs+1}
s_mov_b32 s50, {WS_SIZE}
s_mov_b32 s51, 0x20000
s_mov_b32 s42, {448*3584}
s_mov_b32 s43, 0x20000
s_mov_b32 s44, s{sWd}
s_mov_b32 s45, s{sWd+1}
s_mov_b32 s46, {1792*896}
s_mov_b32 s47, 0x20000
s_cmp_lt_u32 {sj}, 4
s_cbranch_scc1 L_helper
""")

a(f"""
s_sub_u32 {sj}, {sj}, 4
s_and_b32 s69, {sj}, 3
s_lshr_b32 {sc2}, {sj}, 2
s_lshr_b32 s72, {sxcd}, 1
s_lshl_b32 s72, s72, 2
s_add_u32 {sr1}, s72, s69
s_and_b32 s72, {sxcd}, 1
s_mul_i32 s72, s72, 7
s_add_u32 {sc1_}, s72, {sc2}
s_mul_i32 s72, {sxcd}, 28
s_add_u32 {sjc}, s72, {sj}
s_lshl_b32 s72, {sxcd}, 2
s_add_u32 {sr2}, s72, s69
""")
a(f"""
s_lshl_b32 s72, {sjc}, 10
s_lshl_b32 s73, {sw}, 8
s_add_u32 s72, s72, s73
v_lshl_add_u32 v4, v255, 2, s72
s_lshr_b32 s73, {sw}, 1
s_lshl_b32 s74, {sjc}, 1
s_add_u32 s73, s73, s74
s_lshl_b32 s73, s73, 1
v_mov_b32 v5, s73
global_load_ushort v198, v5, s[{sLdt}:{sLdt+1}]
global_load_dword v192, v4, s[{sAre}:{sAre+1}]
global_load_dword v193, v4, s[{sAim}:{sAim+1}]
global_load_dword v194, v4, s[{sBre}:{sBre+1}]
global_load_dword v195, v4, s[{sBim}:{sBim+1}]
global_load_dword v196, v4, s[{sCre}:{sCre+1}]
global_load_dword v197, v4, s[{sCim}:{sCim+1}]
global_load_ushort v199, v5, s[{sDsk}:{sDsk+1}]
""")
a(f"""
s_bitcmp1_b32 {sw}, 0
s_cselect_b32 s40, s{sWu}, s{sWg}
s_cselect_b32 s41, s{sWu+1}, s{sWg+1}
s_mov_b32 s52, s{sOut}
s_mov_b32 s53, s{sOut+1}
s_mov_b32 s54, {2048*896}
s_mov_b32 s55, 0x20000
""")
a(f"""
v_lshrrev_b32 v1, 3, v255
v_mul_u32_u24 v1, 896, v1
v_and_b32 v2, 7, v255
v_lshrrev_b32 v6, 4, v255
v_xor_b32 v2, v2, v6
v_lshl_add_u32 v230, v2, 4, v1
v_xor_b32 v231, 64, v230
v_add_u32 v231, {8*896-1024}, v231
v_add_u32 v232, {2*(8*896-1024)}, v230
v_add_u32 v233, {2*(8*896-1024)}, v231
s_lshl_b32 s72, {sr1}, 2
s_add_u32 s72, s72, {sw}
s_mul_i32 s72, s72, {32*896}
s_lshl_b32 s73, {sw}, 12
""")
a(f"""
v_bfe_u32 v1, v255, 2, 2
s_lshr_b32 s74, {sw}, 1
s_lshl_b32 s74, s74, 4
v_add_u32 v1, s74, v1
v_mul_u32_u24 v1, 3584, v1
v_lshl_add_u32 v1, v6, 6, v1
v_and_b32 v2, 3, v255
s_and_b32 s75, {sw}, 1
s_lshl_b32 s76, s75, 1
v_xor_b32 v2, s76, v2
v_lshl_add_u32 v242, v2, 4, v1
v_add_u32 v243, {4*3584-1024}, v242
v_add_u32 v244, {2*(4*3584-1024)}, v242
v_add_u32 v245, {3*(4*3584-1024)}, v242
s_lshl_b32 {sWoff}, {sc1_}, 8
s_lshl_b32 s75, s75, 13
s_lshl_b32 s74, s74, 8
s_add_u32 s77, s75, s74
""")


def w_unit(u):
    g = [f"s_add_u32 m0, s77, {SLOT[u % 4]}\nbuffer_load_dwordx4 v242, {rW}, {sWoff} offen lds"]
    for i in range(1, 4):
        g.append(f"buffer_load_dwordx4 v{242+i}, {rW}, {sWoff} offen offset:{1024*i} lds")
    g[-1] += f"\ns_add_u32 {sWoff}, {sWoff}, {32*3584}"
    return g


def x_block(cb):
    g = [f"s_add_u32 m0, s73, {XB+cb*16384}\nbuffer_load_dwordx4 v230, {rX}, s72 offen lds"]
    for i in range(1, 4):
        g.append(f"buffer_load_dwordx4 v{230+i}, {rX}, s72 offen offset:{1024*i} lds")
    g[-1] += "\ns_add_u32 s72, s72, 128"
    return g


tok = {}
for g in x_block(0) + w_unit(0):
    a(g)
tok["u0"] = a.vm_tok()
for g in x_block(1):
    a(g)
tok["x1"] = a.vm_tok()
for g in w_unit(1):
    a(g)
tok["u1"] = a.vm_tok()

a(f"""
s_lshl_b32 s74, {sw}, 12
s_add_u32 s74, s74, {SC}
v_bfe_u32 v1, v255, 1, 2
v_lshlrev_b32 v1, 4, v1
v_lshl_add_u32 v1, v255, 6, v1
v_add_u32 v234, s74, v1
v_xor_b32 v235, 16, v234
v_xor_b32 v236, 32, v234
v_xor_b32 v237, 48, v234
v_lshrrev_b32 v1, 5, v255
v_bfe_u32 v2, v255, 2, 2
v_lshl_add_u32 v1, v1, 3, v2
v_lshlrev_b32 v1, 6, v1
v_bfe_u32 v7, v255, 4, 1
v_bfe_u32 v8, v255, 1, 1
v_lshl_add_u32 v7, v7, 1, v8
v_lshrrev_b32 v2, 1, v2
v_xor_b32 v7, v7, v2
v_lshl_add_u32 v1, v7, 4, v1
v_and_b32 v2, 1, v255
v_lshl_add_u32 v1, v2, 3, v1
v_add_u32 v238, s74, v1
v_xor_b32 v239, 32, v238
v_add_u32 v239, 256, v239
""")
a(f"""
v_and_b32 v1, 31, v255
v_lshrrev_b32 v2, 5, v255
v_bfe_u32 v3, v255, 1, 3
v_xor_b32 v3, v3, v2
v_lshlrev_b32 v3, 4, v3
v_lshl_add_u32 v3, v1, 7, v3
s_add_u32 s74, s73, {XB}
v_add_u32 v214, s74, v3
v_xor_b32 v215, 32, v214
v_xor_b32 v216, 64, v214
v_xor_b32 v217, 96, v214
v_add_u32 v218, 0x10000, v214
v_add_u32 v219, 0x10000, v215
v_add_u32 v220, 0x10000, v216
v_add_u32 v221, 0x10000, v217
v_bfe_u32 v1, v255, 4, 1
v_bfe_u32 v3, v255, 2, 2
v_and_b32 v12, 3, v255
v_mul_u32_u24 v13, {8192+32}, v1
v_lshl_add_u32 v13, v2, 11, v13
v_lshl_add_u32 v13, v3, 6, v13
v_lshl_add_u32 v240, v12, 3, v13
v_xor_b32 v241, 32, v240
s_mul_i32 s74, {sw}, 448
v_lshl_add_u32 v13, v2, 2, v3
v_add_u32 v13, s74, v13
v_mul_u32_u24 v13, 896, v13
v_lshl_add_u32 v13, v1, 6, v13
v_lshl_add_u32 v246, v12, 4, v13
v_add_u32 v247, {8*896-1024}, v246
v_add_u32 v248, {2*(8*896-1024)}, v246
v_add_u32 v249, {3*(8*896-1024)}, v246
s_lshl_b32 {sWdoff}, {sc2}, 7
s_mul_i32 s79, {sw}, {NWD*2048}
s_add_u32 s79, s79, {WDS}
v_lshlrev_b32 v13, 5, v1
v_lshl_add_u32 v13, v2, 9, v13
v_lshl_add_u32 v13, v3, 6, v13
v_lshl_add_u32 v13, v12, 3, v13
s_and_b32 s74, {sw}, 1
s_lshl_b32 s74, s74, 8
s_add_u32 s74, s74, s79
v_add_u32 v228, s74, v13
v_xor_b32 v229, 256, v228
s_mov_b32 s78, 0xffff0000
""")
a(f"""
v_lshlrev_b32 v198, 16, v198
v_mul_f32 v198, 0x3fb8aa3b, v198
v_exp_f32 v198, v198
v_lshlrev_b32 v199, 16, v199
v_cvt_pk_bf16_f32 v198, v198, v198
v_readfirstlane_b32 {sDs}, v199
v_lshlrev_b32 v198, 16, v198
""")
stamp()


def cmul(d, x, r, t):
    return [f"v_pk_mul_f32 v[{t}:{t+1}], v[{x}:{x+1}], v[{r}:{r+1}] op_sel_hi:[1,0]",
            f"v_pk_fma_f32 v[{d}:{d+1}], v[{x}:{x+1}], v[{r}:{r+1}], v[{t}:{t+1}] op_sel:[1,1,0] op_sel_hi:[0,1,1] neg_lo:[1,0,0]"]


PK = [64, 128]


def kgen_compute(ck):
    L = []
    un = (lambda d, s: f"v_lshlrev_b32 v{d}, 16, v{s}") if ck == 0 else (lambda d, s: f"v_and_b32 v{d}, s78, v{s}")
    R1, R8, E, T = 210, 212, 0, 2
    L += [un(200 + i, 192 + i) for i in range(6)]
    L += ["v_mul_f32 v206, v198, v200", "v_mul_f32 v207, v198, v201",
          "v_mul_f32 v206, 0x3fb8aa3b, v206", "v_mul_f32 v207, 0.15915494, v207"]

    def ev(d, l):
        s = []
        if l == 1:
            s += ["v_exp_f32 v208, v206", "v_fract_f32 v209, v207"]
        else:
            f = {8: "0x41000000", 256: "0x43800000"}[l]
            s += [f"v_mul_f32 v208, {f}, v206", f"v_mul_f32 v209, {f}, v207", "v_exp_f32 v208, v208", "v_fract_f32 v209, v209"]
        s += [f"v_cos_f32 v{d}, v209", f"v_sin_f32 v{d+1}, v209"]
        return s, f"v_pk_mul_f32 v[{d}:{d+1}], v[{d}:{d+1}], v[208:209] op_sel_hi:[1,0]"
    l1s = [0, 1, 2, 3, 4, 5, 6, 7, 8, 256, 258, 260, 262, 264, 512, 516, 520, 768, 772, 776,
           1024, 1032, 1280, 1288, 1536, 1544, 1792, 1800]
    ra = {l: 8 + 2 * i for i, l in enumerate(l1s)}
    wm = cmul(ra[0], 204, 202, T) + [f"v_pk_mul_f32 v[{ra[0]}:{ra[0]+1}], v[{ra[0]}:{ra[0]+1}], v[198:199] op_sel_hi:[1,0]"]
    for (d, l), fill in zip(((R1, 1), (R8, 8), (E, 256)), wm):
        s, last = ev(d, l)
        L += s + [fill, last]
    for l in range(1, 9):
        L += cmul(ra[l], ra[l - 1], R1, T)
    for l in l1s[9:]:
        L += cmul(ra[l], ra[l - 256], E, T)
    cols = [0, 1, 2, 3, 256, 256, 258, 260, 4, 5, 6, 7, 260, 260, 262, 264,
            512, 516, 520, 1024, 768, 772, 776, 1536, 1032, 1280, 1288, 1288, 1544, 1792, 1800, 1800]
    PAr, PAi, PBr, PBi = (PK[ck] + 16 * i for i in range(4))
    for k in range(16):
        c0, c1 = ra[cols[2 * k]], ra[cols[2 * k + 1]]
        L += [f"v_cvt_pk_bf16_f32 v{PAr+k}, v{c0}, v{c1}", f"v_cvt_pk_bf16_f32 v{PAi+k}, -v{c0+1}, -v{c1+1}"]
    rb = lambda j: R8 if j == 1 else 4 + 2 * (j % 2)
    L += [f"v_cvt_pk_bf16_f32 v{PBr}, 1.0, v{R8}", f"v_cvt_pk_bf16_f32 v{PBi}, 0, v{R8+1}"]
    for j in range(2, 32):
        L += cmul(rb(j), rb(j - 1), R8, T)
        if j % 2:
            L += [f"v_cvt_pk_bf16_f32 v{PBr+j//2}, v{rb(j-1)}, v{rb(j)}",
                  f"v_cvt_pk_bf16_f32 v{PBi+j//2}, v{rb(j-1)+1}, v{rb(j)+1}"]
    return L


def kgen_passes(ck):
    R = []
    for i, fr in enumerate((160, 176, 192, 208)):
        P = PK[ck] + 16 * i
        R.append(([f"ds_write_b128 v{234+cq}, v[{P+4*cq}:{P+4*cq+3}]" for cq in range(4)],
                  [f"ds_read_b64_tr_b16 a[{fr+4*s+2*rd}:{fr+4*s+2*rd+1}], v{238+rd} offset:{1024*s}"
                   for s in range(4) for rd in range(2)]))
    return R


def kgen_mfma(ck):
    return [f"v_mfma_f32_32x32x16_bf16 a[144:159], a[{160+4*s}:{163+4*s}], a[{192+4*s}:{195+4*s}], "
            + ("0" if (ck == 0 and s == 0) else "a[144:159]") for s in range(8)]


def x_read(s):
    cb = s >> 2
    return f"ds_read_b128 a[{4*s}:{4*s+3}], v{(214 if cb < 4 else 218) + (s & 3)} offset:{(cb % 4)*16384}"


bg = []
for cb in range(2, 7):
    bg += x_block(cb)
for i, line in enumerate(kgen_compute(0)):
    a(line)
    if i % 10 == 9 and bg:
        a(bg.pop(0))
assert not bg
tok["x6"] = a.vm_tok()
stamp()
for wr, rd in kgen_passes(0):
    bg += wr[:3] + [wr[3] + "\n" + "\n".join(rd)]
for i, line in enumerate(kgen_compute(1)):
    a(line)
    if i % 12 == 6 and bg:
        a(bg.pop(0))
assert not bg
stamp()
a.wait_vm(tok["u0"])
for s in range(4):
    a(x_read(s))
a("s_waitcnt lgkmcnt(0)\ns_barrier")
stamp()


def wd_pair(kk):
    g = [f"s_add_u32 m0, s79, {(kk % NWD)*2048}\nbuffer_load_dwordx4 v246, {rWd}, {sWdoff} offen lds"]
    for i in range(1, 4):
        g.append(f"buffer_load_dwordx4 v{246+i}, {rWd}, {sWdoff} offen offset:{1024*i} lds")
    g[-1] += f"\ns_add_u32 {sWdoff}, {sWdoff}, {32*896}"
    return g


def wfrag_read(s, t, rd):
    off = SLOT[(s >> 1) % 4] + (s & 1) * 4096 + rd * 1024 + (t >> 1) * 256
    return f"ds_read_b64_tr_b16 a[{112+4*t+2*rd}:{113+4*t+2*rd}], v{240+(t & 1)} offset:{off}"


for t in range(8):
    a(wfrag_read(0, t, 0)); a(wfrag_read(0, t, 1))
for g in w_unit(2):
    a(g)
tok["u2"] = a.vm_tok()

FL_LOAD = f"buffer_load_dword v200, v201, {rWs}, s80 offen sc1"
FL_CMP = f"v_cmp_ne_u32 vcc, {snonce}, v200"
NC_LOAD = f"global_load_dword v202, v203, s[{sDbg}:{sDbg+1}] sc1"
NC_CMP = "v_cmp_eq_u32 vcc, 0, v202"
def wd_move(kk):
    return [f"ds_read_b64_tr_b16 a[{8*kk+4*da+2*rd}:{8*kk+4*da+2*rd+1}], v{228+da} offset:{(kk % NWD)*2048+rd*1024}"
            for da in range(2) for rd in range(2)]


kp = []
for wr, rd in kgen_passes(1):
    kp += wr + rd
xr = list(range(8, 28))
ltok = {}
for s in range(28):
    if s % 2 == 0:
        stamp("g")
    extra = []
    if s % 2 == 1 and s < 27:
        u = (s + 1) // 2
        if s in (1, 9):
            a.wait_both(tok[f"u{u}"], ltok["free"])
        else:
            a.wait_vm(tok[f"u{u}"])
        a("s_barrier")
        if u + 2 < 14:
            extra += w_unit(u + 2) + [("vt", f"u{u+2}")]
    if s == 0:
        extra += [("wv", "x1")] + [x_read(k) for k in range(4, 8)] + [("lt", "free")]
    if s in (0, 1):
        extra += kgen_mfma(0)[4 * s:4 * s + 4]
    if s == 1:
        extra += [("wv", "x6")]
    if 1 <= s <= 7:
        extra += [x_read(xr.pop(0)) for _ in range(min(3, len(xr)))]
    if 2 <= s <= 7:
        extra += kp[8 * (s - 2):8 * (s - 1)] + [("lt", "free")]
    if s in (8, 9):
        extra += kgen_mfma(1)[4 * (s - 8):4 * (s - 8) + 4]
    if s % 2 == 0 and 10 <= s <= 20:
        extra += wd_pair(s - 10) + [("vt", f"wd{s-10}")]
    if 14 <= s <= 21:
        kk = s - 14
        if kk % 2 == 0:
            extra += [("wv", f"wd{kk}")]
        extra += wd_move(kk) + [("lt", f"mv{kk}")]
    if 22 <= s <= 25:
        kk = 12 + 2 * (s - 22)
        extra += [("wl", f"mv{kk-11}")] + wd_pair(kk) + [("vt", f"wd{kk}")]
    if s == 11:
        extra += ["v_mov_b32 v203, 0\n" + NC_LOAD]
    if s == 15:
        poll("nc", NC_LOAD, NC_CMP)
        a(f"v_readfirstlane_b32 {snonce}, v202")
    if s == 19:
        extra += [f"v_and_b32 v204, 31, v255\nv_lshlrev_b32 v201, 2, v204\nv_lshlrev_b32 v205, 3, v204",
                  f"s_mul_i32 s80, {sxcd}, {FSP}\ns_add_u32 s80, s80, {WS_FL}",
                  f"s_lshl_b32 s81, {sr1}, 2\ns_add_u32 s81, s81, {sw}\ns_lshl_b32 s90, s81, 8\ns_add_u32 s90, s90, {WS_ST}",
                  f"v_bfe_u32 v204, v255, 4, 1\nv_and_b32 v207, 15, v255\nv_lshlrev_b32 v207, 2, v207",
                  f"v_lshl_add_u32 v207, v204, 9, v207\ns_lshl_b32 s91, {sc1_}, 10\ns_add_u32 s91, s91, {WS_CS}"]
    if s == 17:
        extra += [f"v_lshrrev_b32 v204, 3, v255\nv_mul_u32_u24 v204, {448*128}, v204",
                  f"v_and_b32 v205, 7, v255\nv_lshl_add_u32 v208, v205, 4, v204",
                  f"v_add_u32 v209, {8*448*128-1024}, v208\ns_lshr_b32 s82, {sw}, 1\ns_lshl_b32 s83, {sjc}, 1",
                  f"s_add_u32 s83, s83, s82\ns_lshl_b32 s83, s83, 7\ns_and_b32 s84, {sw}, 1",
                  f"s_mul_i32 s85, s84, {16*448*128}\ns_add_u32 s83, s83, s85\ns_add_u32 s83, s83, {WS_XT}",
                  f"s_mul_i32 s82, s82, {U_CH}\ns_lshl_b32 s84, s84, 11\ns_add_u32 s82, s82, s84"]
    if s == 21:
        extra += [FL_LOAD]
    if s == 24:
        poll("fl", FL_LOAD, FL_CMP)
        extra = [f"buffer_load_dword v206, v205, {rWs}, s90 offen sc1"] + \
                [f"buffer_load_dword a{160+t}, v207, {rWs}, s91 offen offset:{64*t} sc1" for t in range(8)] + extra
    if s == 25:
        extra = [f"s_add_u32 m0, s82, {UB+U1_OFF+448}\nbuffer_load_dwordx4 v208, {rWs}, s83 offen sc1 lds",
                 f"buffer_load_dwordx4 v209, {rWs}, s83 offen offset:1024 sc1 lds", ("vt", "u")] + extra
    if s == 27:
        extra += ["v_cmp_gt_u32 vcc, 32, v255\nv_mov_b32 v211, 0\nv_mov_b32 v212, 0",
                  "v_cndmask_b32 v210, 0, v206, vcc\nv_cndmask_b32 v213, 0, v206, vcc"]
    nreal = sum(1 for e in extra if not isinstance(e, tuple))
    k = done = 0
    for t in range(8):
        if t % 2 == 0 and s > 0:
            a.wait_lg(ltok[f"f{t+1}"])
        c = "0" if s == 0 else f"v[{16*t}:{16*t+15}]"
        a(f"v_mfma_f32_32x32x16_bf16 v[{16*t}:{16*t+15}], a[{112+4*t}:{115+4*t}], a[{4*s}:{4*s+3}], {c}")
        if s < 27:
            a(wfrag_read(s + 1, t, 0)); a(wfrag_read(s + 1, t, 1))
            ltok[f"f{t}"] = a.lg_tok()
        goal = -(-(nreal * (t + 1)) // 8)
        while k < len(extra) and (isinstance(extra[k], tuple) or done < goal):
            e = extra[k]; k += 1
            if isinstance(e, tuple):
                if e[0] == "vt": tok[e[1]] = a.vm_tok()
                if e[0] == "lt": ltok[e[1]] = a.lg_tok()
                if e[0] == "wv": a.wait_vm(tok[e[1]])
                if e[0] == "wl": a.wait_lg(ltok[e[1]])
            else:
                a(e); done += 1
for t in range(8):
    b = 210 + 2 * (t & 1)
    a(f"v_mfma_f32_32x32x8_bf16 v[{16*t}:{16*t+15}], a[{160+(t & ~1)}:{161+(t & ~1)}], v[{b}:{b+1}], v[{16*t}:{16*t+15}]")
stamp()

a(f"""
s_mul_i32 s86, s81, {112*1024}
s_lshl_b32 s84, {sc1_}, 13
s_add_u32 s86, s86, s84
s_add_u32 s87, s86, 4096
""")
for t in range(8):
    b = 16 * t
    for r in range(8):
        a(f"v_max_f32 v{b+r}, 0, v{b+r}")
    for r in range(0, 8, 2):
        a(f"v_pk_mul_f32 v[{b+r}:{b+r+1}], v[{b+r}:{b+r+1}], v[{b+8+r}:{b+9+r}]")
    for r in range(4):
        a(f"v_cvt_pk_bf16_f32 v{b+8+r}, v{b+2*r}, v{b+2*r+1}")
    a(f"buffer_store_dwordx4 v[{b+8}:{b+11}], v250, {rWs}, s{86+(t >> 2)} offen offset:{1024*(t & 3)} sc1")
tok["h"] = a.vm_tok()
stamp()

a(f"""
s_lshl_b32 s84, {sw}, 11
s_add_u32 s84, s84, {KX}
v_add_u32 v130, s84, v250
v_xor_b32 v131, 2048, v130
s_bitcmp1_b32 {sw}, 0
s_cbranch_scc1 L_kx1
""")
a.fork("kx")
a("ds_write_b128 v130, a[152:155]\nds_write_b128 v130, a[156:159] offset:1024")
for r in range(8):
    a(f"v_accvgpr_read_b32 v{140+r}, a{144+r}")
a("s_waitcnt lgkmcnt(0)\ns_branch L_kx2\nL_kx1:")
a.other("kx")
a("ds_write_b128 v130, a[144:147]\nds_write_b128 v130, a[148:151] offset:1024")
for r in range(8):
    a(f"v_accvgpr_read_b32 v{140+r}, a{152+r}")
a("s_waitcnt lgkmcnt(0)\nL_kx2:")
a.join("kx")
a.wait_vm(tok["u"])
a("s_barrier")
a(f"""
ds_read_b128 v[132:135], v131
ds_read_b128 v[136:139], v131 offset:1024
s_add_u32 s84, s82, {UB}
v_lshl_add_u32 v150, v255, 5, s84
ds_read_b128 v[154:157], v150 offset:{U1_OFF+448}
ds_read_b128 v[158:161], v150 offset:{U1_OFF+448+16}
ds_read_b32 v153, v150 offset:{U1_OFF+448-4}
s_lshr_b32 s84, {sw}, 1
s_mul_i32 s88, s84, {KC_CH}
s_add_u32 s88, s88, {KC0}
v_mov_b32 v152, 0
v_lshrrev_b32 v162, 4, v255
v_mul_u32_u24 v162, {KC_CP+4}, v162
v_and_b32 v163, 15, v255
v_lshl_add_u32 v162, v163, 2, v162
v_add_u32 v162, s88, v162
ds_write_b32 v162, v152 offset:{4096-12}
s_mul_i32 s85, s84, {U_CH}
s_and_b32 s84, {sw}, 1
s_mul_i32 s84, s84, {U1_OFF}
s_add_u32 s85, s85, s84
s_add_u32 s85, s85, {UB}
v_min_u32 v163, 55, v255
v_lshl_add_u32 v163, v163, 3, s85
v_mov_b32 v164, 0
v_mov_b32 v165, 0
ds_write_b64 v163, v[164:165]
""")
for r in range(8):
    a(f"v_add_f32 v{140+r}, v{140+r}, v{132+r}")
a(f"""
v_cmp_eq_u32 vcc, 0, v255
s_and_b32 s84, {sw}, 1
s_cmp_eq_u32 s84, 0
s_cselect_b64 vcc, vcc, 0
v_cndmask_b32 v153, v153, v152, vcc
""")
for i in range(8):
    a(f"v_alignbit_b32 v{166+i}, v{154+i}, v{153+i}, 16")
a(f"ds_write_b128 v150, v[166:169] offset:448\nds_write_b128 v150, v[170:173] offset:464")


def octet_writes(d, areg, off):
    a(f"ds_write_b128 v{areg}, v[{d}:{d+3}] offset:{off+3*KC_CP+12}")
    o1 = off + KC_CP + 4
    a(f"ds_write_b64 v{areg}, v[{d}:{d+1}] offset:{o1}\nds_write_b64 v{areg}, v[{d+2}:{d+3}] offset:{o1+8}")
    for c in (0, 2):
        o = off + c * KC_CP + 4 * c
        a(f"ds_write_b32 v{areg}, v{d} offset:{o}\nds_write_b32 v{areg}, v{d+3} offset:{o+12}")
        a(f"v_mov_b32 v{d+4}, v{d+1}\nv_mov_b32 v{d+5}, v{d+2}") if c == 0 else None
        a(f"ds_write_b64 v{areg}, v[{d+4}:{d+5}] offset:{o+4}")


a(f"""
s_bitcmp1_b32 {sw}, 0
s_cbranch_scc1 L_ko1
""")
a.fork("ko")
a(f"""
v_cmp_eq_u32 vcc, 0, v255
v_mov_b32 v174, {sDs}
v_cndmask_b32 v174, 0, v174, vcc
v_add_f32 v140, v140, v174
s_add_u32 s84, s88, {16*255-12}
v_sub_u32 v175, s84, v250
v_cvt_pk_bf16_f32 v176, v147, v146
v_cvt_pk_bf16_f32 v177, v145, v144
v_cvt_pk_bf16_f32 v178, v143, v142
v_cvt_pk_bf16_f32 v179, v141, v140
""")
octet_writes(176, 175, 0)
a("s_waitcnt lgkmcnt(0)\ns_branch L_ko2\nL_ko1:")
a.other("ko")
a(f"""
s_add_u32 s84, s88, {16*(255-64)-12}
v_sub_u32 v175, s84, v250
v_cvt_pk_bf16_f32 v176, v142, v142
v_cvt_pk_bf16_f32 v177, v141, v141
v_cvt_pk_bf16_f32 v178, v141, v140
v_cvt_pk_bf16_f32 v179, v140, v140
""")
octet_writes(176, 175, 0)
a(f"""
v_lshrrev_b32 v174, 5, v255
v_lshlrev_b32 v174, 9, v174
v_sub_u32 v175, v175, v174
v_subrev_u32 v175, {16*96}, v175
s_mov_b32 s90, 0xaaaaaaaa
s_mov_b32 s91, 0xaaaaaaaa
""")
for hh, (p, q) in enumerate(((143, 144), (145, 146))):
    d = 184 + 8 * hh
    a(f"""
v_cndmask_b32 v174, v{p}, v{q}, s[90:91]
v_cvt_pk_bf16_f32 v{d}, v{q}, v{q}
v_cvt_pk_bf16_f32 v{d+1}, v{q}, v174
v_cvt_pk_bf16_f32 v{d+2}, v{p}, v{p}
v_cvt_pk_bf16_f32 v{d+3}, v{p}, v{p}
""")
    octet_writes(d, 175, 512 * (1 - hh))
a("s_waitcnt lgkmcnt(0)\nL_ko2:")
a.join("ko")
a(f"""
v_and_b32 v140, 1, v255
v_mul_u32_u24 v140, {U1_OFF}, v140
v_bfe_u32 v141, v255, 1, 3
v_lshl_add_u32 v140, v141, 6, v140
v_lshrrev_b32 v142, 4, v255
v_lshl_add_u32 v140, v142, 4, v140
s_lshr_b32 s84, {sw}, 1
s_mul_i32 s84, s84, {U_CH}
s_and_b32 s85, {sw}, 1
s_lshl_b32 s85, s85, 6
s_sub_u32 s84, s84, s85
s_add_u32 s84, s84, {UB+448-384}
v_add_u32 v130, s84, v140
v_and_b32 v140, 3, v255
v_mul_u32_u24 v140, {KC_CP}, v140
v_bfe_u32 v141, v255, 2, 2
v_sub_u32 v141, v142, v141
v_lshl_add_u32 v140, v141, 4, v140
s_sub_u32 s84, s88, s85
s_add_u32 s84, s84, {16*255-64*62}
v_add_u32 v131, s84, v140
s_barrier
""")
stamp()

def a_read(n):
    return f"ds_read_b128 a[{128+4*(n % 4)}:{131+4*(n % 4)}], v131 offset:{64*(62-2*n)}"


NH = 8


def h_load(kk):
    g = []
    for ta in range(2):
        r = 128 + 8 * (kk % NH) + 4 * ta
        g.append(f"buffer_load_dwordx4 v[{r}:{r+3}], v{251+ta}, {rWs}, s89 offen offset:{1024*(kk % 4)} sc1")
    if kk % 4 == 3:
        g[-1] += "\ns_add_u32 s89, s89, 4096"
    return g


for n in range(3):
    a(a_read(n))
for i in range(2):
    for be in range(8):
        a(f"ds_read_b128 v[{16*be+4*i}:{16*be+4*i+3}], v130 offset:{512*be-128*i+384}")
FH_LOAD = f"buffer_load_dword v200, v201, {rWs}, s80 offen sc1"
FH_CMP = f"v_cmp_ne_u32 vcc, {snonce}, v200"
fill = {n: [] for n in range(32)}
for i in range(2, 4):
    fill[i - 2] += [f"ds_read_b128 v[{16*be+4*i}:{16*be+4*i+3}], v130 offset:{512*be-128*i+384}" for be in range(8)]
fill[1] += [("lt", "ub")]
fill[2] += [f"s_mul_i32 s84, s81, {FSP}\ns_lshl_b32 s85, {sc1_}, 2", f"s_add_u32 s84, s84, s85\ns_add_u32 s84, s84, {WS_FH}",
            f"v_mov_b32 v204, {snonce}", ("wv", "h"),
            f"s_mov_b64 exec, 1\nbuffer_store_dword v204, v203, {rWs}, s84 offen sc1\ns_mov_b64 exec, -1"]
for kk in range(8, 16):
    n = 3 + (kk - 8)
    if kk % 2 == 0:
        fill[n] += [("wv", f"wd{kk}")]
    fill[n] += wd_move(kk) + [("lt", f"mv{kk}")]
    if kk % 2 == 1:
        fill[n + 1] += [("wl", f"mv{kk}")] + wd_pair(kk + 11) + [("vt", f"wd{kk+11}")]
fill[3] += [f"s_lshl_b32 s84, {sw}, 10\ns_add_u32 s84, s84, {YX}", "v_add_u32 v222, s84, v250"]
fill[12] += ["v_and_b32 v201, 15, v255\nv_min_u32 v201, 13, v201", "v_lshlrev_b32 v201, 2, v201\nv_bfe_u32 v204, v255, 4, 1",
             f"v_mul_u32_u24 v204, {FSP}, v204\nv_add_u32 v201, v201, v204",
             f"s_mul_i32 s80, {sr2}, {2*FSP}\ns_add_u32 s80, s80, {WS_FH}"]
fill[13] += [f"s_lshr_b32 s84, {sw}, 1\ns_mul_i32 s85, s84, {112*1024}", "v_add_u32 v251, s85, v250\ns_xor_b32 s84, s84, 1",
             f"s_mul_i32 s85, s84, {112*1024}\nv_add_u32 v252, s85, v250",
             f"s_mul_i32 s89, {sr2}, {2*112*1024}\ns_mul_i32 s85, {sw}, {28*1024}", "s_add_u32 s89, s89, s85"]
fill[14] += ["v_bfe_u32 v223, v255, 1, 2\nv_lshlrev_b32 v223, 8, v223", "v_lshrrev_b32 v224, 3, v255\nv_lshl_add_u32 v223, v224, 5, v223",
             "v_and_b32 v224, 1, v255\nv_lshl_add_u32 v223, v224, 3, v223",
             f"s_lshl_b32 s84, {sw}, 13\ns_add_u32 s85, s84, {YX+4096}"]
fill[15] += [f"v_add_u32 v224, s85, v223\ns_add_u32 s84, s84, 8192", f"s_and_b32 s84, s84, 0x7fff\ns_add_u32 s84, s84, {YX}",
             "v_add_u32 v223, s84, v223",
             f"s_lshl_b32 s94, {sjc}, 13\ns_lshl_b32 s85, {sw}, 11", f"s_add_u32 s94, s94, s85\ns_add_u32 s94, s94, {WS_Y}"]
fill[FH_AT] += [FH_LOAD]
for j in range(7):
    fill[max(9, 4 * j + 5) + (j == 1)] += [f"ds_write_b128 v222, a[{224+4*j}:{227+4*j}] offset:{4096*((j+1) % 8)}"]
for P in range(8):
    for i in range(4):
        n = 4 * P + i
        if n % 4 == 0 or n < 8:
            stamp("c")
        if n == 8:
            a.wait_lg(ltok["ub"])
            a("s_barrier")
        extra = ([a_read(n + 3)] if n + 3 < 32 else []) + fill[n]
        nreal = sum(1 for e in extra if not isinstance(e, tuple))
        k = done = 0
        for be in range(8 - P):
            j = P + be
            c = "0" if n == 0 else f"a[{224+4*j}:{227+4*j}]"
            a(f"v_mfma_f32_16x16x32_bf16 a[{224+4*j}:{227+4*j}], a[{128+4*(n % 4)}:{131+4*(n % 4)}], v[{16*be+4*i}:{16*be+4*i+3}], {c}")
            goal = -(-(nreal * (be + 1)) // (8 - P))
            while k < len(extra) and (isinstance(extra[k], tuple) or done < goal):
                e = extra[k]; k += 1
                if isinstance(e, tuple):
                    if e[0] == "vt": tok[e[1]] = a.vm_tok()
                    if e[0] == "lt": ltok[e[1]] = a.lg_tok()
                    if e[0] == "wv": a.wait_vm(tok[e[1]])
                    if e[0] == "wl": a.wait_lg(ltok[e[1]])
                else:
                    a(e); done += 1
stamp()
a("ds_write_b128 v222, a[252:255]")
poll("fh", FH_LOAD, FH_CMP)
for kk in range(2):
    for g in h_load(kk):
        a(g)
a("s_waitcnt lgkmcnt(0)\ns_barrier")
for jj in range(2):
    for src in range(4):
        r = 64 + 16 * jj + 4 * src
        for ph in range(2):
            a(f"ds_read_b64 v[{r+2*ph}:{r+2*ph+1}], v{224-jj} offset:{1024*src+16*ph}")
for kk in range(2, NH):
    for g in h_load(kk):
        a(g)
for jj in range(2):
    r = 64 + 16 * jj
    a(f"""
v_pk_add_f32 v[{r}:{r+1}], v[{r}:{r+1}], v[{r+4}:{r+5}]
v_pk_add_f32 v[{r+2}:{r+3}], v[{r+2}:{r+3}], v[{r+6}:{r+7}]
v_pk_add_f32 v[{r+8}:{r+9}], v[{r+8}:{r+9}], v[{r+12}:{r+13}]
v_pk_add_f32 v[{r+10}:{r+11}], v[{r+10}:{r+11}], v[{r+14}:{r+15}]
v_cvt_pk_bf16_f32 v{r+4}, v{r}, v{r+8}
v_cvt_pk_bf16_f32 v{r+5}, v{r+2}, v{r+10}
v_cvt_pk_bf16_f32 v{r+6}, v{r+1}, v{r+9}
v_cvt_pk_bf16_f32 v{r+7}, v{r+3}, v{r+11}
buffer_store_dwordx4 v[{r+4}:{r+7}], v250, {rWs}, s94 offen offset:{1024*jj} sc1
""")
tok["y"] = a.vm_tok()
stamp()


def d_read(kk, da, rd):
    r = 128 + 8 * (kk % 2) + 4 * da + 2 * rd
    return f"ds_read_b64_tr_b16 a[{r}:{r+1}], v{228+da} offset:{(kk % NWD)*2048+rd*1024}"


FY_LOAD = f"buffer_load_dword v200, v201, {rWs}, s80 offen sc1"
FY_CMP = f"v_cmp_ne_u32 vcc, {snonce}, v200"
for kk in range(28):
    if kk % 2 == 0:
        stamp("h")
    extra = []
    if 16 <= kk + 1 < 28:
        if (kk + 1) % 2 == 0:
            extra += [("wv", f"wd{kk+1}")]
        extra += [d_read(kk + 1, da, rd) for da in range(2) for rd in range(2)]
    if kk == 0:
        extra += [f"s_lshr_b32 s84, {sjc}, 5\ns_lshl_b32 s84, s84, 2\ns_add_u32 s84, s84, {sw}",
                  f"s_mul_i32 s84, s84, {FSP}\ns_and_b32 s85, {sjc}, 31\ns_lshl_b32 s85, s85, 2",
                  f"s_add_u32 s84, s84, s85\ns_add_u32 s95, s84, {WS_FY}\nv_mov_b32 v225, {snonce}"]
    if kk == FYW_AT:
        extra += [("wv", "y"), f"s_mov_b64 exec, 1\nbuffer_store_dword v225, v203, {rWs}, s95 offen sc1\ns_mov_b64 exec, -1"]
    if kk == 8:
        extra += ["s_barrier"]
    if kk == 2:
        extra += ["v_and_b32 v204, 31, v255\nv_lshlrev_b32 v201, 2, v204\nv_lshrrev_b32 v226, 5, v255",
                  f"s_lshl_b32 s80, {sc2}, 2\ns_lshr_b32 s84, {sr2}, 3\ns_add_u32 s80, s80, s84",
                  f"s_mul_i32 s80, s80, {FSP}\ns_add_u32 s80, s80, {WS_FY}"]
    if kk == 3:
        extra += [f"s_lshr_b32 s84, {sw}, 1\ns_lshl_b32 s85, {sr2}, 1\ns_add_u32 s84, s84, s85",
                  f"s_lshl_b32 s92, s84, 5\nv_add_u32 v205, s92, v204\nv_lshlrev_b32 v206, 3, v205",
                  "v_mul_u32_u24 v205, 896, v205\nv_lshl_add_u32 v205, v226, 3, v205",
                  f"s_and_b32 s84, {sw}, 1\ns_lshl_b32 s85, {sc2}, 1\ns_add_u32 s84, s84, s85"]
    if kk == 4:
        extra += [f"s_lshl_b32 s93, s84, 6\ns_mov_b32 s85, {WS_ST+4}\nbuffer_load_dword v80, v206, {rWs}, s85 offen sc1",
                  "v_lshlrev_b32 v206, 14, v226\nv_add_u32 v206, v206, v201",
                  "s_lshl_b32 s84, s93, 11\ns_lshl_b32 s85, s92, 2",
                  f"s_add_u32 s84, s84, s85\ns_add_u32 s96, s84, {WS_Y}"]
    if 5 <= kk <= 8:
        g = kk - 5
        extra += [f"buffer_load_dwordx2 v[{64+2*g}:{65+2*g}], v205, {rX}, s93 offen offset:{16*g}"]
    if kk == 9:
        extra += [f"s_mul_i32 s84, {sw}, {3*4096}\ns_add_u32 s84, s84, {RX}\nv_add_u32 v210, s84, v250"]
    if 10 <= kk <= 12:
        k = kk - 9
        extra += [f"s_xor_b32 s85, {sw}, {k}\ns_mul_i32 s85, s85, {3*4096}",
                  f"s_add_u32 s85, s85, {RX+(k-1)*4096}\nv_add_u32 v{210+k}, s85, v250"]
    if kk == FY_AT:
        extra += [FY_LOAD]
    if kk == FY_AT + 4:
        poll("fy", FY_LOAD, FY_CMP)
    if FY_AT + 4 <= kk < FY_AT + 6:
        for g in range(2 * (kk - FY_AT - 4), 2 * (kk - FY_AT - 4) + 2):
            for e in range(2):
                extra += [f"buffer_load_dword v{72+2*g+e}, v206, {rWs}, s96 offen sc1\ns_add_u32 s96, s96, {8192 if e == 0 else 3*8192}"]
    nreal = sum(1 for e in extra if not isinstance(e, tuple))
    k = done = q = 0
    for ta in range(2):
        for da in range(2):
            acc = 16 * (da + 2 * ta)
            c = "0" if kk == 0 else f"v[{acc}:{acc+15}]"
            fa = (8 * kk if kk < 16 else 128 + 8 * (kk % 2)) + 4 * da
            fb = 128 + 8 * (kk % NH) + 4 * ta
            a(f"v_mfma_f32_32x32x16_bf16 v[{acc}:{acc+15}], a[{fa}:{fa+3}], v[{fb}:{fb+3}], {c}")
            q += 1
            if da == 1 and kk + NH < 28:
                a(h_load(kk + NH)[ta])
            goal = -(-(nreal * q) // 4)
            while k < len(extra) and (isinstance(extra[k], tuple) or done < goal):
                e = extra[k]; k += 1
                if isinstance(e, tuple):
                    if e[0] == "wv": a.wait_vm(tok[e[1]])
                else:
                    a(e); done += 1
stamp()
for k in range(1, 4):
    for g in range(4):
        a(f"ds_write_b128 v210, v[{16*k+4*g}:{16*k+4*g+3}] offset:{(k-1)*4096+1024*g}")
        if k < 3:
            e = k - 1
            xr_, yr, d = 64 + 2 * g + e, 72 + 2 * g + e, 96 + 4 * g + 2 * e
            a(f"""
v_lshlrev_b32 v{d}, 16, v{xr_}
v_and_b32 v{d+1}, s78, v{xr_}
v_lshlrev_b32 v112, 16, v{yr}
v_and_b32 v113, s78, v{yr}
v_pk_add_f32 v[{d}:{d+1}], v[{d}:{d+1}], v[112:113]
""")
a(f"""
v_lshlrev_b32 v226, 3, v226
v_add_u32 v205, v205, v226
s_waitcnt lgkmcnt(0)
s_barrier
""")
for g in range(4):
    for k in range(1, 4):
        a(f"ds_read_b128 v[{16*k+4*g}:{16*k+4*g+3}], v{210+k} offset:{1024*g}")
for g in range(4):
    for e in range(2):
        r = 4 * g + 2 * e
        for k in range(1, 4):
            a(f"v_pk_add_f32 v[{r}:{r+1}], v[{r}:{r+1}], v[{16*k+r}:{16*k+r+1}]")
        a(f"v_pk_fma_f32 v[{r}:{r+1}], v[{r}:{r+1}], v[80:81], v[{96+r}:{97+r}] op_sel_hi:[1,0,1]")
    a(f"v_cvt_pk_bf16_f32 v{116+2*g}, v{4*g}, v{4*g+1}\nv_cvt_pk_bf16_f32 v{117+2*g}, v{4*g+2}, v{4*g+3}")
    if g % 2 == 1:
        b = 116 + 2 * (g - 1)
        a(f"v_permlane32_swap_b32 v{b}, v{b+2}\nv_permlane32_swap_b32 v{b+1}, v{b+3}")
        a(f"buffer_store_dwordx4 v[{b}:{b+3}], v205, {rOut}, s93 offen offset:{16*(g-1)} {OUTFL}")
stamp()


def stamp_out():
    if not STAMP:
        return
    a(f"""
s_waitcnt vmcnt(0)
s_memrealtime s[98:99]
s_waitcnt lgkmcnt(0)
v_writelane_b32 v254, s98, 15
s_lshl_b32 s84, s2, 2
s_add_u32 s84, s84, {sw}
s_lshl_b32 s84, s84, 6
s_add_u32 s84, s84, {WS_TS}
v_lshlrev_b32 v1, 2, v255
s_mov_b64 exec, 0xffff
buffer_store_dword v254, v1, {rWs}, s84 offen
""")
    if "--dbgstamp" in sys.argv:
        nm = f"L_nodbg{nstamp[0]}"
        a(f"""
s_lshl_b32 s84, s2, 2
s_add_u32 s84, s84, {sw}
s_cmp_eq_u32 s84, 400
s_cbranch_scc0 {nm}
v_readlane_b32 s84, v254, 0
s_nop 3
v_subrev_u32 v254, s84, v254
s_mov_b64 exec, 0xfffe
global_store_dword v1, v254, s[{sDbg}:{sDbg+1}]
{nm}:
""")


stamp_out()
a("s_endpgm")

a.reset()
nstamp[0] = 1
shq = "s59"
a(f"""
L_helper:
s_lshl_b32 {shq}, {sxcd}, 2
s_add_u32 {shq}, {shq}, {sj}
v_mov_b32 v203, 0
s_or_b32 s72, {shq}, {sw}
s_cmp_eq_u32 s72, 0
s_cbranch_scc0 L_hnoep
s_mov_b32 s72, {WS_EP}
buffer_load_dword v202, v203, {rWs}, s72 offen sc1
s_waitcnt vmcnt(0)
s_mov_b32 s73, 1664525
v_mul_lo_u32 v202, v202, s73
v_add_u32 v202, 1013904225, v202
v_or_b32 v202, 1, v202
s_mov_b64 exec, 1
global_store_dword v203, v202, s[{sDbg}:{sDbg+1}] sc1
buffer_store_dword v202, v203, {rWs}, s72 offen sc1
s_mov_b64 exec, -1
s_waitcnt vmcnt(0)
L_hnoep:
v_lshrrev_b32 v1, 2, v255
s_lshl_b32 s72, {shq}, 2
s_add_u32 s72, s72, {sw}
s_lshl_b32 s72, s72, 4
v_add_u32 v4, s72, v1
v_mul_u32_u24 v5, 896, v4
v_and_b32 v2, 3, v255
v_lshl_add_u32 v5, v2, 4, v5
""")
for i in range(14):
    a(f"buffer_load_dwordx4 v[{8+4*i}:{11+4*i}], v5, {rX}, 0 offen offset:{64*i}")
a(f"""
s_bitcmp1_b32 {shq}, 0
s_cselect_b32 s40, s{sWu}, s{sWg}
s_cselect_b32 s41, s{sWu+1}, s{sWg+1}
s_lshr_b32 s73, {shq}, 1
s_cmp_lt_u32 s73, 14
s_cselect_b32 s73, s73, 0
s_lshl_b32 s82, s73, 8
v_lshrrev_b32 v6, 4, v255
s_lshl_b32 s75, {sw}, 2
v_add_u32 v6, s75, v6
v_mul_u32_u24 v7, 3584, v6
v_and_b32 v3, 15, v255
v_lshl_add_u32 v7, v3, 4, v7
""")
wl = [f"buffer_load_dwordx4 v[{72+4*i}:{75+4*i}], v7, {rW}, s82 offen\ns_add_u32 s82, s82, {16*3584}" for i in range(28)]
for i in range(10):
    a(wl.pop(0))
stamp()
a(f"""
s_mov_b32 s76, 0x3f803f80
s_mov_b32 s77, 0x00003f80
s_mov_b32 s78, 0xffff0000
s_mov_b32 s79, 0x3f800000
v_mov_b32 v64, 0
v_mov_b32 v65, 0
""")
for i in range(56):
    a(f"v_dot2_f32_bf16 v{64+i % 2}, v{8+i}, s76, v{64+i % 2}")
stamp()
a(f"""
v_add_f32 v64, v64, v65
v_add_f32_dpp v64, v64, v64 quad_perm:[1,0,3,2] row_mask:0xf bank_mask:0xf
v_add_f32_dpp v64, v64, v64 quad_perm:[2,3,0,1] row_mask:0xf bank_mask:0xf
v_mul_f32 v64, {hex(0x3b124925)}, v64
v_cvt_pk_bf16_f32 v65, -v64, -v64
v_and_b32 v66, s78, v65
v_mov_b32 v68, 0
v_mov_b32 v69, 0
""")
for i in range(56):
    t = 186 + 2 * (i % 4)
    a(f"""
v_dot2_f32_bf16 v{t}, v{8+i}, s77, v66
v_dot2_f32_bf16 v{t+1}, v{8+i}, s79, v66
""")
    if i >= 2:
        p = 186 + 2 * ((i - 2) % 4)
        a(f"v_pk_fma_f32 v[68:69], v[{p}:{p+1}], v[{p}:{p+1}], v[68:69]\nv_cvt_pk_bf16_f32 v{6+i}, v{p}, v{p+1}")
    if i % 3 == 0 and wl:
        a(wl.pop(0))
assert not wl
stamp()
for i in (54, 55):
    p = 186 + 2 * (i % 4)
    a(f"v_pk_fma_f32 v[68:69], v[{p}:{p+1}], v[{p}:{p+1}], v[68:69]\nv_cvt_pk_bf16_f32 v{8+i}, v{p}, v{p+1}")
a(f"""
v_add_f32 v68, v68, v69
v_add_f32_dpp v68, v68, v68 quad_perm:[1,0,3,2] row_mask:0xf bank_mask:0xf
v_add_f32_dpp v68, v68, v68 quad_perm:[2,3,0,1] row_mask:0xf bank_mask:0xf
v_add_f32 v67, v64, v66
v_mul_f32 v67, v67, v67
v_mul_f32 v68, {hex(0x3b124925)}, v68
v_sub_f32 v68, v68, v67
v_max_f32 v68, 0, v68
v_cvt_pk_bf16_f32 v68, v68, v68
v_and_b32 v68, s78, v68
v_add_f32 v68, 0x3727c5ac, v68
v_cvt_pk_bf16_f32 v68, v68, v68
v_and_b32 v68, s78, v68
v_sqrt_f32 v68, v68
v_cvt_pk_bf16_f32 v68, v68, v68
v_and_b32 v68, s78, v68
v_rcp_f32 v70, v68
v_fma_f32 v71, -v68, v70, 1.0
v_fma_f32 v70, v70, v71, v70
v_mul_f32 v66, v70, v70
v_lshlrev_b32 v4, 3, v4
s_mov_b32 s74, {WS_ST}
s_mov_b32 s80, 0x11111111
s_mov_b32 s81, 0x11111111
v_mov_b32 v64, v65
v_mov_b32 v65, v66
s_mov_b64 exec, s[80:81]
buffer_store_dwordx2 v[64:65], v4, {rWs}, s74 offen sc1
s_mov_b64 exec, -1
v_mul_u32_u24 v5, 960, v1
s_mul_i32 s75, {sw}, {16*960}
v_lshl_add_u32 v5, v2, 4, v5
v_add_u32 v5, s75, v5
""")
for i in range(56):
    t = 186 + 2 * (i % 4)
    a(f"""
v_lshlrev_b32 v{t}, 16, v{8+i}
v_and_b32 v{t+1}, s78, v{8+i}
v_pk_mul_f32 v[{t}:{t+1}], v[{t}:{t+1}], v[70:71] op_sel_hi:[1,0]
v_cvt_pk_bf16_f32 v{8+i}, v{t}, v{t+1}
""")
    if i % 4 == 3:
        a(f"ds_write_b128 v5, v[{8+i-3}:{8+i}] offset:{64*(i//4)}")
stamp()
L2B = 64 * 960
a(f"""
v_lshrrev_b32 v1, 5, v255
v_bfe_u32 v2, v255, 2, 2
v_lshl_add_u32 v2, v1, 3, v2
v_mul_u32_u24 v2, 960, v2
v_bfe_u32 v4, v255, 4, 1
v_lshl_add_u32 v2, v4, 5, v2
v_and_b32 v4, 3, v255
v_lshl_add_u32 v2, v4, 3, v2
v_add_u32 v2, s75, v2
v_and_b32 v4, 31, v255
v_mul_u32_u24 v4, 144, v4
s_lshl_b32 s74, {sw}, 5
s_add_u32 s74, s74, {L2B}
v_lshl_add_u32 v4, v1, 4, v4
v_add_u32 v4, s74, v4
""")
for b in range(14):
    a(f"ds_read_b64_tr_b16 v[{8+4*b}:{9+4*b}], v2 offset:{64*b}\nds_read_b64_tr_b16 v[{10+4*b}:{11+4*b}], v2 offset:{64*b+4*960}")
for b in range(14):
    a(f"ds_write_b128 v4, v[{8+4*b}:{11+4*b}] offset:{32*144*b}")
L3B = L2B + 448 * 144
a(f"""
v_lshlrev_b32 v6, 9, v6
v_lshl_add_u32 v6, v3, 5, v6
v_add_u32 v6, {L3B}, v6
v_lshrrev_b32 v1, 3, v255
v_mul_u32_u24 v1, 144, v1
v_and_b32 v2, 7, v255
v_lshl_add_u32 v1, v2, 4, v1
s_mul_i32 s74, {sw}, {112*144}
s_add_u32 s74, s74, {L2B}
v_add_u32 v1, s74, v1
s_mul_i32 s74, {shq}, {448*128}
s_mul_i32 s75, {sw}, {112*128}
s_add_u32 s74, s74, s75
s_add_u32 s74, s74, {WS_XT}
s_and_b32 s75, {sw}, 1
s_lshl_b32 s75, s75, 8
v_lshl_add_u32 v2, v255, 2, s75
v_add_u32 v5, {L3B}, v2
{NC_LOAD}
s_waitcnt lgkmcnt(0)
s_barrier
""")
stamp()
for b in range(14):
    a(f"ds_read_b128 v[{8+4*b}:{11+4*b}], v1 offset:{8*144*b}")
for e in range(8):
    a(f"v_mov_b32 v{64+e}, 0")
for b in range(14):
    a(f"buffer_store_dwordx4 v[{8+4*b}:{11+4*b}], v250, {rWs}, s74 offen offset:{1024*(b % 4)} sc1")
    if b % 4 == 3:
        a("s_add_u32 s74, s74, 4096")
    for i in (2 * b, 2 * b + 1):
        for d in range(4):
            a(f"v_dot2_f32_bf16 v{64+2*d}, v{72+4*i+d}, s77, v{64+2*d}")
            a(f"v_dot2_f32_bf16 v{65+2*d}, v{72+4*i+d}, s79, v{65+2*d}")
a("""
ds_write_b128 v6, v[64:67]
ds_write_b128 v6, v[68:71] offset:16
s_waitcnt lgkmcnt(0)
s_barrier
""")
stamp()
for r in range(16):
    a(f"ds_read_b32 v{72+r}, v5 offset:{512*r}")
for r in range(1, 16):
    a(f"v_add_f32 v72, v72, v{72+r}")
a(f"""
v_cvt_pk_bf16_f32 v73, v72, v72
v_and_b32 v73, s78, v73
v_sub_f32 v74, v72, v73
v_cvt_pk_bf16_f32 v73, v73, v74
s_lshl_b32 s74, {shq}, 9
s_add_u32 s74, s74, {WS_CS}
s_cmp_lt_u32 {shq}, 28
s_cselect_b32 s74, s74, {WS_SIZE}
s_cmp_lt_u32 {sw}, 2
s_cselect_b32 s74, s74, {WS_SIZE}
buffer_store_dword v73, v2, {rWs}, s74 offen sc1
""")
stamp()
poll("hnc", NC_LOAD, NC_CMP)
a(f"""
s_waitcnt vmcnt(0)
s_barrier
s_cmp_eq_u32 {sw}, 0
s_cbranch_scc0 L_hdone
v_mul_u32_u24 v1, {FSP}, v255
s_lshl_b32 s74, {shq}, 2
s_add_u32 s74, s74, {WS_FL}
s_mov_b64 exec, 0xff
buffer_store_dword v202, v1, {rWs}, s74 offen sc1
s_mov_b64 exec, -1
L_hdone:
""")
stamp()
stamp_out()
a("L_end:\ns_endpgm")
for sp in slow:
    a.reset()
    a(sp)
a("L_codeend:\ns_endpgm")

body = a.render()
ref = open(os.path.join(os.path.dirname(os.path.abspath(__file__)), "..", "cdna_kernels", NAME + ".s.ref")).read()
head = [l for l in ref.split("\n") if l.startswith(";") and "@launch" not in l and "Override" not in l and "grid=ceil" not in l]
txt = "\n".join(head) + f"""
; Generated by tools/gen.py (hand-written generator).
; @launch grid=(256,1,1) block=(256,1,1) lds=163840
.amdgcn_target "amdgcn-amd-amdhsa--gfx950"
.text
.globl {NAME}_kernel
.p2align 8
.type {NAME}_kernel,@function
{NAME}_kernel:
{body}
.section .rodata,"a"
.p2align 6
.amdhsa_kernel {NAME}_kernel
  .amdhsa_next_free_vgpr 512
  .amdhsa_next_free_sgpr 102
  .amdhsa_accum_offset 256
  .amdhsa_group_segment_fixed_size 0
  .amdhsa_kernarg_size 128
  .amdhsa_user_sgpr_count 2
  .amdhsa_user_sgpr_kernarg_segment_ptr 1
  .amdhsa_system_sgpr_workgroup_id_x 1
.end_amdhsa_kernel
"""
out = [x for x in sys.argv[1:] if not x.startswith("--")]
path = out[0] if out else os.path.join(os.path.dirname(os.path.abspath(__file__)), "..", "cdna_kernels", NAME + ".s")
open(path, "w").write(txt)
print(path, a.stats, file=sys.stderr)
```

```python
import sys, os
sys.path.insert(0, os.path.dirname(os.path.abspath(__file__)))
from asmdsl import Asm

NAME = "parallel_sum__ssm_conv_s4__glu_gated_reglu__prompt"
STAMP = "--stamp" in sys.argv

WS_H, WS_XT, WS_Y = 0x0, 0x700000, 0x8C0000
WS_ST, WS_CS = 0xA80000, 0xA84000
WS_FH, WS_FY, WS_FL, WS_EP = 0xA90000, 0xAA0000, 0xAA8000, 0xAAC000
WS_TS = 0xAB0000
WS_SIZE = 0xB00000
FSP = 1024
SLOT = [0, 16384, 32768, 49152]
XB = 32768
SC = 147456
WDS = 65536
UB = 33536
U1_OFF = 4640
U_CH = 9280
KX = 53248
KC0, KC_CH, KC_CP = 16, 16656, 4160
YX = 32768
RX = 0
NWD = 12
SPIN = 200000
ROT = '--norot' not in sys.argv
FH_AT, FYW_AT, FY_AT = 26, 5, 16
OUTFL = 'sc1' if '--outsc1' in sys.argv else ''

sX, sAre, sAim, sBre, sBim, sCre, sCim, sLdt, sDsk = 4, 6, 8, 10, 12, 14, 16, 18, 20
sWg, sWu, sWd, sOut, sDbg, sWs = 24, 26, 28, 30, 32, 34
rX, rW, rWd, rWs, rOut = "s[36:39]", "s[40:43]", "s[44:47]", "s[48:51]", "s[52:55]"
sw, sxcd, sj, sr1, sc1_, sjc, sr2, sc2, snonce = "s56", "s57", "s58", "s59", "s60", "s61", "s62", "s63", "s64"
sWoff, sWdoff, sDs, scnt = "s65", "s66", "s67", "s68"

a = Asm()
slow = []
nstamp = [0]


SEL = [x.split("=")[1] for x in sys.argv if x.startswith("--sel=")]
SEL = SEL[0] if SEL else "a"


def stamp(kind="a"):
    if not STAMP or kind not in SEL:
        return
    k = nstamp[0]
    nstamp[0] += 1
    a(f"s_memrealtime s[98:99]\ns_waitcnt lgkmcnt(0)\nv_writelane_b32 v254, s98, {k}")


def merge(fg, bg, first=0, every=1):
    out, k = [], 0
    for i, x in enumerate(fg):
        out.append(x)
        if i >= first and (i - first) % every == 0 and k < len(bg):
            out.append(bg[k]); k += 1
    out += bg[k:]
    return out


def poll(name, load, cmp_):
    a(cmp_)
    a(f"s_cbranch_vccnz L_slow_{name}")
    a(f"L_back_{name}:")
    slow.append(f"""L_slow_{name}:
s_mov_b32 {scnt}, 0
L_retry_{name}:
s_add_u32 {scnt}, {scnt}, 1
s_cmp_gt_u32 {scnt}, {SPIN}
s_cbranch_scc1 L_back_{name}
s_sleep 2
{load}
s_waitcnt vmcnt(0)
{cmp_}
s_cbranch_vccnz L_retry_{name}
s_branch L_back_{name}""")


WSOFF = (256 << 20) - WS_SIZE if "--wsend" in sys.argv else 0
a(f"""
s_cmp_ge_u32 s2, 256
s_cbranch_scc1 L_end
s_load_dwordx16 s[4:19], s[0:1], 0
s_load_dwordx16 s[20:35], s[0:1], 64
s_getpc_b64 s[70:71]
L_pc:
s_and_b32 {sxcd}, s2, 7
s_lshr_b32 {sj}, s2, 3
v_lshrrev_b32 v1, 6, v0
v_and_b32 v255, 63, v0
v_readfirstlane_b32 {sw}, v1
""")
if STAMP:
    a("v_mov_b32 v254, 0")
stamp(SEL[0])
a(f"""
s_and_b32 s69, {sj}, 3
s_lshl_b32 s72, s69, 6
v_lshl_add_u32 v2, v1, 4, v255
v_add_u32 v2, s72, v2
v_lshlrev_b32 v2, 7, v2
v_min_u32 v2, L_codeend-L_pc-4, v2
s_mov_b64 exec, 0xffff
global_load_dword v253, v2, s[70:71]
s_mov_b64 exec, -1
s_mov_b32 s38, {2048*896}
s_mov_b32 s39, 0x20000
s_mov_b32 s42, {448*3584}
s_mov_b32 s43, 0x20000
s_mov_b32 s50, {WS_SIZE}
s_mov_b32 s51, 0x20000
s_cmp_lt_u32 {sj}, 4
s_cbranch_scc1 L_helper
""")

a(f"""
s_sub_u32 {sj}, {sj}, 4
s_mul_i32 s72, {sxcd}, 28
s_add_u32 {sjc}, s72, {sj}
s_lshl_b32 s72, {sjc}, 10
s_lshl_b32 s73, {sw}, 8
s_add_u32 s72, s72, s73
v_lshl_add_u32 v4, v255, 2, s72
s_lshr_b32 s72, s72, 9
s_lshl_b32 s72, s72, 1
v_mov_b32 v5, s72
s_lshr_b32 {sc2}, {sj}, 2
s_lshr_b32 s72, {sxcd}, 1
s_lshl_b32 s72, s72, 2
s_add_u32 {sr1}, s72, s69
s_waitcnt lgkmcnt(0)
global_load_ushort v198, v5, s[{sLdt}:{sLdt+1}]
global_load_dword v192, v4, s[{sAre}:{sAre+1}]
global_load_dword v193, v4, s[{sAim}:{sAim+1}]
global_load_dword v194, v4, s[{sBre}:{sBre+1}]
global_load_dword v195, v4, s[{sBim}:{sBim+1}]
global_load_dword v196, v4, s[{sCre}:{sCre+1}]
global_load_dword v197, v4, s[{sCim}:{sCim+1}]
global_load_ushort v199, v5, s[{sDsk}:{sDsk+1}]
s_mov_b32 s36, s{sX}
s_mov_b32 s37, s{sX+1}
""")
a(f"""
v_lshrrev_b32 v1, 3, v255
v_mul_u32_u24 v1, 896, v1
v_and_b32 v2, 7, v255
v_lshrrev_b32 v6, 4, v255
v_xor_b32 v2, v2, v6
v_lshl_add_u32 v230, v2, 4, v1
v_xor_b32 v231, 64, v230
v_add_u32 v231, {8*896-1024}, v231
v_add_u32 v232, {2*(8*896-1024)}, v230
v_add_u32 v233, {2*(8*896-1024)}, v231
s_lshl_b32 s81, {sr1}, 2
s_add_u32 s81, s81, {sw}
s_mul_i32 s21, s81, {32*896}
s_lshl_b32 s73, {sw}, 12
s_lshl_b32 s3, s69, 1
s_add_u32 s3, s3, {sc2}
s_sub_u32 s72, s3, 7
s_cselect_b32 s3, s3, s72
""")
if not ROT:
    a("s_mov_b32 s3, 0")
a(f"""
s_lshl_b32 s72, s3, 7
s_add_u32 s72, s72, s21
s_add_u32 s22, s21, 896
""")


def wrap(reg, step, lim, base):
    return f"\ns_add_u32 {reg}, {reg}, {step}\ns_cmp_eq_u32 {reg}, {lim}\ns_cselect_b32 {reg}, {base}, {reg}"


def w_unit(u):
    g = [f"s_add_u32 m0, s77, {SLOT[u % 4]}\nbuffer_load_dwordx4 v242, {rW}, {sWoff} offen lds"]
    for i in range(1, 4):
        g.append(f"buffer_load_dwordx4 v{242+i}, {rW}, {sWoff} offen offset:{1024*i} lds")
    g[-1] += wrap(sWoff, 32 * 3584, "s6", "s23")
    return g


def x_block(cb):
    g = [f"s_add_u32 m0, s73, {XB+cb*16384}\nbuffer_load_dwordx4 v230, {rX}, s72 offen lds"]
    for i in range(1, 4):
        g.append(f"buffer_load_dwordx4 v{230+i}, {rX}, s72 offen offset:{1024*i} lds")
    g[-1] += wrap("s72", 128, "s22", "s21")
    return g


tok = {}
ltok = {}
for g in x_block(0):
    a(g)
a(f"""
s_and_b32 s75, {sxcd}, 1
s_mul_i32 s75, s75, 7
s_add_u32 {sc1_}, s75, {sc2}
s_bitcmp1_b32 {sw}, 0
s_cselect_b32 s40, s{sWu}, s{sWg}
s_cselect_b32 s41, s{sWu+1}, s{sWg+1}
v_bfe_u32 v1, v255, 2, 2
s_lshr_b32 s74, {sw}, 1
s_lshl_b32 s74, s74, 4
v_add_u32 v1, s74, v1
v_mul_u32_u24 v1, 3584, v1
v_lshl_add_u32 v1, v6, 6, v1
v_and_b32 v2, 3, v255
s_and_b32 s75, {sw}, 1
s_lshl_b32 s76, s75, 1
v_xor_b32 v2, s76, v2
v_lshl_add_u32 v242, v2, 4, v1
v_add_u32 v243, {4*3584-1024}, v242
v_add_u32 v244, {2*(4*3584-1024)}, v242
v_add_u32 v245, {3*(4*3584-1024)}, v242
s_lshl_b32 s23, {sc1_}, 8
s_mul_i32 {sWoff}, s3, {64*3584}
s_add_u32 {sWoff}, {sWoff}, s23
s_add_u32 s6, s23, {448*3584}
s_lshl_b32 s75, s75, 13
s_lshl_b32 s74, s74, 8
s_add_u32 s77, s75, s74
""")
for g in w_unit(0):
    a(g)
tok["u0"] = a.vm_tok()

a(f"""
s_add_u32 s74, s73, {SC}
v_bfe_u32 v1, v255, 1, 2
v_lshlrev_b32 v1, 4, v1
v_lshl_add_u32 v1, v255, 6, v1
v_add_u32 v234, s74, v1
v_xor_b32 v235, 16, v234
v_xor_b32 v236, 32, v234
v_xor_b32 v237, 48, v234
v_lshrrev_b32 v1, 5, v255
v_bfe_u32 v2, v255, 2, 2
v_lshl_add_u32 v1, v1, 3, v2
v_lshlrev_b32 v1, 6, v1
v_bfe_u32 v7, v255, 4, 1
v_bfe_u32 v8, v255, 1, 1
v_lshl_add_u32 v7, v7, 1, v8
v_lshrrev_b32 v2, 1, v2
v_xor_b32 v7, v7, v2
v_lshl_add_u32 v1, v7, 4, v1
v_and_b32 v2, 1, v255
v_lshl_add_u32 v1, v2, 3, v1
v_add_u32 v238, s74, v1
v_xor_b32 v239, 32, v238
v_add_u32 v239, 256, v239
s_mov_b32 s78, 0xffff0000
""")
a(f"""
v_lshlrev_b32 v198, 16, v198
v_mul_f32 v198, 0x3fb8aa3b, v198
v_exp_f32 v198, v198
v_cvt_pk_bf16_f32 v198, v198, v198
v_lshlrev_b32 v198, 16, v198
""")
stamp()


def put(items):
    for e in items:
        if isinstance(e, tuple):
            if e[0] == "vt": tok[e[1]] = a.vm_tok()
            if e[0] == "lt": ltok[e[1]] = a.lg_tok()
            if e[0] == "wv": a.wait_vm(tok[e[1]])
            if e[0] == "wl": a.wait_lg(ltok[e[1]])
        else:
            a(e)


def weave(main, extra):
    nreal = sum(1 for e in extra if not isinstance(e, tuple))
    out, k, done = [], 0, 0
    for t, m in enumerate(main):
        out += m if isinstance(m, list) else [m]
        goal = -(-(nreal * (t + 1)) // len(main))
        while k < len(extra) and (isinstance(extra[k], tuple) or done < goal):
            out.append(extra[k])
            done += not isinstance(extra[k], tuple)
            k += 1
    return out


def cmul(d, x, r, t):
    return [f"v_pk_mul_f32 v[{t}:{t+1}], v[{x}:{x+1}], v[{r}:{r+1}] op_sel_hi:[1,0]",
            f"v_pk_fma_f32 v[{d}:{d+1}], v[{x}:{x+1}], v[{r}:{r+1}], v[{t}:{t+1}] op_sel:[1,1,0] op_sel_hi:[0,1,1] neg_lo:[1,0,0]"]


PK = [64, 128]
KF = [(160, 176, 192, 208), (64, 80, 96, 112)]


def k_write(ck, i, cq):
    P = PK[ck] + 16 * i
    return f"ds_write_b128 v{234+cq}, v[{P+4*cq}:{P+4*cq+3}]"


def k_reads(ck, i):
    fr = KF[ck][i]
    return "\n".join(f"ds_read_b64_tr_b16 a[{fr+4*s+2*rd}:{fr+4*s+2*rd+1}], v{238+rd} offset:{1024*s}"
                     for s in range(4) for rd in range(2))


def kgen_head(ck):
    L = []
    un = (lambda d, s: f"v_lshlrev_b32 v{d}, 16, v{s}") if ck == 0 else (lambda d, s: f"v_and_b32 v{d}, s78, v{s}")
    L += [un(200 + i, 192 + i) for i in range(6)]
    L += ["v_mul_f32 v206, v198, v200", "v_mul_f32 v207, v198, v201",
          "v_mul_f32 v206, 0x3fb8aa3b, v206", "v_mul_f32 v207, 0.15915494, v207"]

    def ev(d, l):
        s = []
        if l == 1:
            s += ["v_exp_f32 v208, v206", "v_fract_f32 v209, v207"]
        else:
            f = {8: "0x41000000", 256: "0x43800000"}[l]
            s += [f"v_mul_f32 v208, {f}, v206", f"v_mul_f32 v209, {f}, v207", "v_exp_f32 v208, v208", "v_fract_f32 v209, v209"]
        s += [f"v_cos_f32 v{d}, v209", f"v_sin_f32 v{d+1}, v209"]
        return s, f"v_pk_mul_f32 v[{d}:{d+1}], v[{d}:{d+1}], v[208:209] op_sel_hi:[1,0]"
    wm = cmul(ra[0], 204, 202, T) + [f"v_pk_mul_f32 v[{ra[0]}:{ra[0]+1}], v[{ra[0]}:{ra[0]+1}], v[198:199] op_sel_hi:[1,0]"]
    for (d, l), fill in zip(((R1, 1), (R8, 8), (E, 256)), wm):
        s, last = ev(d, l)
        L += s + [fill, last]
    for l in range(1, 9):
        L += cmul(ra[l], ra[l - 1], R1, T)
    for l in l1s[9:]:
        L += cmul(ra[l], ra[l - 256], E, T)
    return L


R1, R8, E, T = 210, 212, 0, 2
l1s = [0, 1, 2, 3, 4, 5, 6, 7, 8, 256, 258, 260, 262, 264, 512, 516, 520, 768, 772, 776,
       1024, 1032, 1280, 1288, 1536, 1544, 1792, 1800]
ra = {l: 8 + 2 * i for i, l in enumerate(l1s)}
cols = [0, 1, 2, 3, 256, 256, 258, 260, 4, 5, 6, 7, 260, 260, 262, 264,
        512, 516, 520, 1024, 768, 772, 776, 1536, 1032, 1280, 1288, 1288, 1544, 1792, 1800, 1800]


def kgen_tail(ck):
    PAr, PAi, PBr, PBi = (PK[ck] + 16 * i for i in range(4))
    rb = lambda j: R8 if j == 1 else 4 + 2 * (j % 2)
    L = []
    for k in range(16):
        c0, c1 = ra[cols[2 * k]], ra[cols[2 * k + 1]]
        L += [f"v_cvt_pk_bf16_f32 v{PAr+k}, v{c0}, v{c1}", f"v_cvt_pk_bf16_f32 v{PAi+k}, -v{c0+1}, -v{c1+1}"]
    L += [f"v_cvt_pk_bf16_f32 v{PBr}, 1.0, v{R8}", f"v_cvt_pk_bf16_f32 v{PBi}, 0, v{R8+1}"]
    for j in range(2, 32):
        L += cmul(rb(j), rb(j - 1), R8, T)
        if j % 2:
            L += [f"v_cvt_pk_bf16_f32 v{PBr+j//2}, v{rb(j-1)}, v{rb(j)}",
                  f"v_cvt_pk_bf16_f32 v{PBi+j//2}, v{rb(j-1)+1}, v{rb(j)+1}"]
    return L


def k_passes(ck):
    L = []
    for i in range(4):
        L += [k_write(ck, i, cq) for cq in range(3)] + [k_write(ck, i, 3) + "\n" + k_reads(ck, i)]
    return L


def kgen_mfma(ck):
    f = KF[ck]
    return [f"v_mfma_f32_32x32x16_bf16 a[144:159], a[{f[s>>2]+4*(s&3)}:{f[s>>2]+4*(s&3)+3}], "
            f"a[{f[2+(s>>2)]+4*(s&3)}:{f[2+(s>>2)]+4*(s&3)+3}], "
            + ("0" if (ck == 0 and s == 0) else "a[144:159]") for s in range(8)]


def x_read(s):
    cb = s >> 2
    return f"ds_read_b128 a[{4*s}:{4*s+3}], v{(214 if cb < 4 else 218) + (s & 3)} offset:{(cb % 4)*16384}"


bgA = x_block(1) + [("vt", "x1")] + w_unit(1) + [("vt", "u1")] + x_block(2)
bgB = x_block(3) + x_block(4)
bgC = x_block(5) + x_block(6) + [("vt", "x6")]
if "--touchw" in sys.argv:
    bgC += [f"""s_lshl_b32 s74, s69, 1
s_lshr_b32 s75, {sw}, 1
s_add_u32 s74, s74, s75
s_mul_i32 s74, s74, {48*3584}
s_lshl_b32 s75, {sc1_}, 8
s_add_u32 s74, s74, s75
s_add_u32 s74, s74, {64*3584}
v_lshrrev_b32 v222, 1, v255
v_mul_u32_u24 v222, 3584, v222
v_and_b32 v223, 1, v255
v_lshl_add_u32 v222, v223, 7, v222
buffer_load_dword v226, v222, {rW}, s74 offen""",
            f"""s_add_u32 s74, s74, {32*3584}
s_mov_b32 exec_hi, 0
buffer_load_dword v227, v222, {rW}, s74 offen
s_mov_b32 exec_hi, -1"""]
put(weave(kgen_head(0), bgA))
put(weave(kgen_tail(0), bgB + bgC))
stamp()
put(kgen_head(1))
put(weave(kgen_tail(1), k_passes(0)))
stamp()
setup = f"""v_and_b32 v1, 31, v255
v_lshrrev_b32 v2, 5, v255
v_bfe_u32 v3, v255, 1, 3
v_xor_b32 v3, v3, v2
v_lshlrev_b32 v3, 4, v3
v_lshl_add_u32 v3, v1, 7, v3
s_add_u32 s74, s73, {XB}
v_add_u32 v214, s74, v3
v_xor_b32 v215, 32, v214
v_xor_b32 v216, 64, v214
v_xor_b32 v217, 96, v214
v_bfe_u32 v222, v255, 4, 1
v_bfe_u32 v223, v255, 2, 2
v_and_b32 v224, 3, v255
v_mul_u32_u24 v13, {8192+32}, v222
v_lshl_add_u32 v13, v2, 11, v13
v_lshl_add_u32 v13, v223, 6, v13
v_lshl_add_u32 v240, v224, 3, v13
v_xor_b32 v241, 32, v240
v_mov_b32 v225, v2
v_lshlrev_b32 v199, 16, v199""".split("\n")
put(setup[:11] + [("wv", "u0")] + [x_read(s) for s in range(4)] + setup[11:])
a("s_waitcnt lgkmcnt(0)\ns_barrier")
stamp()
late_setup = f"""v_add_u32 v218, 0x10000, v214
v_add_u32 v219, 0x10000, v215
v_add_u32 v220, 0x10000, v216
v_add_u32 v221, 0x10000, v217
v_readfirstlane_b32 {sDs}, v199
v_lshlrev_b32 v250, 4, v255
s_mul_i32 s74, {sw}, 448
v_lshl_add_u32 v226, v225, 2, v223
v_add_u32 v226, s74, v226
v_mul_u32_u24 v226, 896, v226
v_lshl_add_u32 v226, v222, 6, v226
v_lshl_add_u32 v246, v224, 4, v226
v_add_u32 v247, {8*896-1024}, v246
v_add_u32 v248, {2*(8*896-1024)}, v246
v_add_u32 v249, {3*(8*896-1024)}, v246
s_lshl_b32 s8, {sc2}, 7
s_mul_i32 {sWdoff}, s3, {64*896}
s_add_u32 {sWdoff}, {sWdoff}, s8
s_add_u32 s9, s8, {448*896}
s_mul_i32 s79, {sw}, {NWD*2048}
s_add_u32 s79, s79, {WDS}
v_lshlrev_b32 v226, 5, v222
v_lshl_add_u32 v226, v225, 9, v226
v_lshl_add_u32 v226, v223, 6, v226
v_lshl_add_u32 v226, v224, 3, v226
s_and_b32 s74, {sw}, 1
s_lshl_b32 s74, s74, 8
s_add_u32 s74, s74, s79
v_add_u32 v228, s74, v226
v_xor_b32 v229, 256, v228
s_mov_b32 s44, s{sWd}
s_mov_b32 s45, s{sWd+1}
s_mov_b32 s46, {1792*896}
s_mov_b32 s47, 0x20000
s_add_u32 s48, s{sWs}, {WSOFF}
s_addc_u32 s49, s{sWs+1}, 0
s_mov_b32 s52, s{sOut}
s_mov_b32 s53, s{sOut+1}
s_mov_b32 s54, {2048*896}
s_mov_b32 s55, 0x20000
s_lshl_b32 s74, {sxcd}, 2
s_add_u32 {sr2}, s74, s69""".split("\n")
i = [k for k, l in enumerate(late_setup) if l.startswith("s_add_u32 s48")][0]
late_setup[i:i + 2] = [late_setup[i] + "\n" + late_setup[i + 1]]


def wd_pair(kk):
    g = [f"s_add_u32 m0, s79, {(kk % NWD)*2048}\nbuffer_load_dwordx4 v246, {rWd}, {sWdoff} offen lds"]
    for i in range(1, 4):
        g.append(f"buffer_load_dwordx4 v{246+i}, {rWd}, {sWdoff} offen offset:{1024*i} lds")
    g[-1] += wrap(sWdoff, 32 * 896, "s9", "s8")
    return g


def wfrag_read(s, t, rd):
    off = SLOT[(s >> 1) % 4] + (s & 1) * 4096 + rd * 1024 + (t >> 1) * 256
    return f"ds_read_b64_tr_b16 a[{112+4*t+2*rd}:{113+4*t+2*rd}], v{240+(t & 1)} offset:{off}"


for t in range(8):
    a(wfrag_read(0, t, 0)); a(wfrag_read(0, t, 1))
for g in w_unit(2):
    a(g)
tok["u2"] = a.vm_tok()

FL_LOAD = f"buffer_load_dword v200, v201, {rWs}, s80 offen sc1"
FL_CMP = f"v_cmp_ne_u32 vcc, {snonce}, v200"
NC_LOAD = f"global_load_dword v202, v203, s[{sDbg}:{sDbg+1}] sc1"
NC_CMP = "v_cmp_eq_u32 vcc, 0, v202"
def wd_move(kk):
    return [f"ds_read_b64_tr_b16 a[{8*kk+4*da+2*rd}:{8*kk+4*da+2*rd+1}], v{228+da} offset:{(kk % NWD)*2048+rd*1024}"
            for da in range(2) for rd in range(2)]


W0 = 8
for s in range(28):
    if s % 2 == 0:
        stamp("g")
    extra = []
    if s == 27:
        a("s_barrier")
    if s == 10:
        extra += [f"v_subrev_u32 v{r}, {SC}, v{r}" for r in range(234, 240)]
    if s % 2 == 1 and s < 27:
        u = (s + 1) // 2
        if s in (1, 7):
            a.wait_both(tok[f"u{u}"], ltok["free"])
        else:
            a.wait_vm(tok[f"u{u}"])
        a("s_barrier")
        if u + 2 < 14:
            extra += w_unit(u + 2) + [("vt", f"u{u+2}")]
    if s == 0:
        extra += [("wv", "x1")]
    if s == 1:
        extra += [("wv", "x6")]
    if s in (0, 1):
        extra += kgen_mfma(0)[4 * s:4 * s + 4]
    if s <= 5:
        extra += [x_read(k) for k in range(4 * s + 4, 4 * s + 8)] + [("lt", "free")]
    if s in (0, 2, 4):
        n = (4, 18, 99)[s // 2]
        extra += late_setup[:n]
        late_setup = late_setup[n:]
    if s == 6 and "--touchwd" in sys.argv:
        extra += [f"s_mul_i32 s74, s69, {448*896}\ns_mul_i32 s75, {sw}, {112*896}", f"s_add_u32 s74, s74, s75\ns_add_u32 s74, s74, s8",
                  "v_mul_u32_u24 v226, 896, v255", f"buffer_load_dword v227, v226, {rWd}, s74 offen",
                  f"s_add_u32 s74, s74, {48*896}\nbuffer_load_dword v222, v226, {rWd}, s74 offen"]
    if s % 2 == 0 and W0 <= s <= W0 + 10:
        extra += wd_pair(s - W0) + [("vt", f"wd{s-W0}")]
    if W0 + 4 <= s <= W0 + 11:
        kk = s - W0 - 4
        if kk % 2 == 0:
            extra += [("wv", f"wd{kk}")]
        extra += wd_move(kk) + [("lt", f"mv{kk}")]
    if s in (20, 22, 23, 26):
        kk = 12 + 2 * (20, 22, 23, 26).index(s)
        extra += [("wl", f"mv{kk-11}")] + wd_pair(kk) + [("vt", f"wd{kk}")]
    if s == 11:
        extra += ["v_mov_b32 v203, 0\n" + NC_LOAD]
    if s == 15:
        poll("nc", NC_LOAD, NC_CMP)
        a(f"v_readfirstlane_b32 {snonce}, v202")
    if s == 19:
        extra += [f"v_and_b32 v204, 31, v255\nv_lshlrev_b32 v201, 2, v204\nv_lshlrev_b32 v205, 3, v204",
                  f"s_mul_i32 s80, {sxcd}, {FSP}\ns_add_u32 s80, s80, {WS_FL}",
                  f"s_lshl_b32 s90, s81, 8\ns_add_u32 s90, s90, {WS_ST}",
                  f"v_bfe_u32 v204, v255, 4, 1\nv_and_b32 v207, 15, v255\nv_lshlrev_b32 v207, 2, v207",
                  f"v_lshl_add_u32 v207, v204, 9, v207\ns_lshl_b32 s91, {sc1_}, 10\ns_add_u32 s91, s91, {WS_CS}"]
    if s == 17:
        extra += [f"v_lshrrev_b32 v204, 3, v255\nv_mul_u32_u24 v204, {448*128}, v204",
                  f"v_and_b32 v205, 7, v255\nv_lshl_add_u32 v208, v205, 4, v204",
                  f"v_add_u32 v209, {8*448*128-1024}, v208\ns_lshr_b32 s82, {sw}, 1\ns_lshl_b32 s83, {sjc}, 1",
                  f"s_add_u32 s83, s83, s82\ns_lshl_b32 s83, s83, 7\ns_and_b32 s84, {sw}, 1",
                  f"s_mul_i32 s85, s84, {16*448*128}\ns_add_u32 s83, s83, s85\ns_add_u32 s83, s83, {WS_XT}",
                  f"s_mul_i32 s82, s82, {U_CH}\ns_lshl_b32 s84, s84, 11\ns_add_u32 s82, s82, s84"]
    if s == 21:
        extra += [FL_LOAD]
    if s == 24:
        poll("fl", FL_LOAD, FL_CMP)
        extra = [f"buffer_load_dword v206, v205, {rWs}, s90 offen sc1"] + \
                [f"buffer_load_dword a{160+t}, v207, {rWs}, s91 offen offset:{64*t} sc1" for t in range(8)] + extra
    if s == 25:
        extra = [f"s_add_u32 m0, s82, {UB+U1_OFF+448}\nbuffer_load_dwordx4 v208, {rWs}, s83 offen sc1 lds",
                 f"buffer_load_dwordx4 v209, {rWs}, s83 offen offset:1024 sc1 lds", ("vt", "u")] + extra
    if s == 27:
        extra += ["v_cmp_gt_u32 vcc, 32, v255\nv_mov_b32 v211, 0\nv_mov_b32 v212, 0",
                  "v_cndmask_b32 v210, 0, v206, vcc\nv_cndmask_b32 v213, 0, v206, vcc"]
    main = []
    for t in range(8):
        m = []
        if t % 2 == 0 and s > 0:
            m.append(("wl", f"f{t+1}"))
        c = "0" if s == 0 else f"v[{16*t}:{16*t+15}]"
        m.append(f"v_mfma_f32_32x32x16_bf16 v[{16*t}:{16*t+15}], a[{112+4*t}:{115+4*t}], a[{4*s}:{4*s+3}], {c}")
        if s < 27:
            m += [wfrag_read(s + 1, t, 0), wfrag_read(s + 1, t, 1), ("lt", f"f{t}")]
        main.append(m)
    put(weave(main, extra))
for t in range(8):
    b = 210 + 2 * (t & 1)
    a(f"v_mfma_f32_32x32x8_bf16 v[{16*t}:{16*t+15}], a[{160+(t & ~1)}:{161+(t & ~1)}], v[{b}:{b+1}], v[{16*t}:{16*t+15}]")
stamp()

a(f"""
s_mul_i32 s86, s81, {112*1024}
s_lshl_b32 s84, {sc1_}, 13
s_add_u32 s86, s86, s84
s_add_u32 s87, s86, 4096
""")
kp = k_passes(1)
km = kgen_mfma(1)
for t in range(8):
    b = 16 * t
    L = [f"v_max_f32 v{b+r}, 0, v{b+r}" for r in range(8)]
    if t < 6:
        L += [f"v_pk_mul_f32 v[{b+r}:{b+r+1}], v[{b+r}:{b+r+1}], v[{b+8+r}:{b+9+r}]" for r in range(0, 8, 2)]
    else:
        L += [f"v_mul_f32 v{b+r}, v{b+r}, v{b+8+r}" for r in range(8)]
    L += [f"v_cvt_pk_bf16_f32 v{b+8+r}, v{b+2*r}, v{b+2*r+1}" for r in range(4)]
    L += [f"buffer_store_dwordx4 v[{b+8}:{b+11}], v250, {rWs}, s{86+(t >> 2)} offen offset:{1024*(t & 3)} sc1"]
    if t < 6:
        n = (3, 3, 2, 3, 3, 2)[t]
        put(weave(L, kp[:n])); kp = kp[n:]
    else:
        put(weave(km[4 * (t - 6):4 * (t - 6) + 4], L))
tok["h"] = a.vm_tok()
stamp()

a(f"""
s_lshl_b32 s84, {sw}, 11
s_add_u32 s84, s84, {KX}
v_add_u32 v130, s84, v250
v_xor_b32 v131, 2048, v130
s_bitcmp1_b32 {sw}, 0
s_cbranch_scc1 L_kx1
""")
a.fork("kx")
a("ds_write_b128 v130, a[152:155]\nds_write_b128 v130, a[156:159] offset:1024")
for r in range(8):
    a(f"v_accvgpr_read_b32 v{140+r}, a{144+r}")
a("s_waitcnt lgkmcnt(0)\ns_branch L_kx2\nL_kx1:")
a.other("kx")
a("ds_write_b128 v130, a[144:147]\nds_write_b128 v130, a[148:151] offset:1024")
for r in range(8):
    a(f"v_accvgpr_read_b32 v{140+r}, a{152+r}")
a("s_waitcnt lgkmcnt(0)\nL_kx2:")
a.join("kx")
a.wait_vm(tok["u"])
a("s_barrier")
a(f"""
ds_read_b128 v[132:135], v131
ds_read_b128 v[136:139], v131 offset:1024
s_add_u32 s84, s82, {UB}
v_lshl_add_u32 v150, v255, 5, s84
ds_read_b128 v[154:157], v150 offset:{U1_OFF+448}
ds_read_b128 v[158:161], v150 offset:{U1_OFF+448+16}
ds_read_b32 v153, v150 offset:{U1_OFF+448-4}
s_lshr_b32 s84, {sw}, 1
s_mul_i32 s88, s84, {KC_CH}
s_add_u32 s88, s88, {KC0}
v_mov_b32 v152, 0
v_lshrrev_b32 v162, 4, v255
v_mul_u32_u24 v162, {KC_CP+4}, v162
v_and_b32 v163, 15, v255
v_lshl_add_u32 v162, v163, 2, v162
v_add_u32 v162, s88, v162
ds_write_b32 v162, v152 offset:{4096-12}
s_mul_i32 s85, s84, {U_CH}
s_and_b32 s84, {sw}, 1
s_mul_i32 s84, s84, {U1_OFF}
s_add_u32 s85, s85, s84
s_add_u32 s85, s85, {UB}
v_min_u32 v163, 55, v255
v_lshl_add_u32 v163, v163, 3, s85
v_mov_b32 v164, 0
v_mov_b32 v165, 0
ds_write_b64 v163, v[164:165]
""")
for r in range(8):
    a(f"v_add_f32 v{140+r}, v{140+r}, v{132+r}")
a(f"""
v_cmp_eq_u32 vcc, 0, v255
s_and_b32 s84, {sw}, 1
s_cmp_eq_u32 s84, 0
s_cselect_b64 vcc, vcc, 0
v_cndmask_b32 v153, v153, v152, vcc
""")
for i in range(8):
    a(f"v_alignbit_b32 v{166+i}, v{154+i}, v{153+i}, 16")
a(f"ds_write_b128 v150, v[166:169] offset:448\nds_write_b128 v150, v[170:173] offset:464")


def octet_writes(d, areg, off):
    a(f"ds_write_b128 v{areg}, v[{d}:{d+3}] offset:{off+3*KC_CP+12}")
    o1 = off + KC_CP + 4
    a(f"ds_write_b64 v{areg}, v[{d}:{d+1}] offset:{o1}\nds_write_b64 v{areg}, v[{d+2}:{d+3}] offset:{o1+8}")
    for c in (0, 2):
        o = off + c * KC_CP + 4 * c
        a(f"ds_write_b32 v{areg}, v{d} offset:{o}\nds_write_b32 v{areg}, v{d+3} offset:{o+12}")
        a(f"v_mov_b32 v{d+4}, v{d+1}\nv_mov_b32 v{d+5}, v{d+2}") if c == 0 else None
        a(f"ds_write_b64 v{areg}, v[{d+4}:{d+5}] offset:{o+4}")


a(f"""
s_bitcmp1_b32 {sw}, 0
s_cbranch_scc1 L_ko1
""")
a.fork("ko")
a(f"""
v_cmp_eq_u32 vcc, 0, v255
v_mov_b32 v174, {sDs}
v_cndmask_b32 v174, 0, v174, vcc
v_add_f32 v140, v140, v174
s_add_u32 s84, s88, {16*255-12}
v_sub_u32 v175, s84, v250
v_cvt_pk_bf16_f32 v176, v147, v146
v_cvt_pk_bf16_f32 v177, v145, v144
v_cvt_pk_bf16_f32 v178, v143, v142
v_cvt_pk_bf16_f32 v179, v141, v140
""")
octet_writes(176, 175, 0)
a("s_waitcnt lgkmcnt(0)\ns_branch L_ko2\nL_ko1:")
a.other("ko")
a(f"""
s_add_u32 s84, s88, {16*(255-64)-12}
v_sub_u32 v175, s84, v250
v_cvt_pk_bf16_f32 v176, v142, v142
v_cvt_pk_bf16_f32 v177, v141, v141
v_cvt_pk_bf16_f32 v178, v141, v140
v_cvt_pk_bf16_f32 v179, v140, v140
""")
octet_writes(176, 175, 0)
a(f"""
v_lshrrev_b32 v174, 5, v255
v_lshlrev_b32 v174, 9, v174
v_sub_u32 v175, v175, v174
v_subrev_u32 v175, {16*96}, v175
s_mov_b32 s90, 0xaaaaaaaa
s_mov_b32 s91, 0xaaaaaaaa
""")
for hh, (p, q) in enumerate(((143, 144), (145, 146))):
    d = 184 + 8 * hh
    a(f"""
v_cndmask_b32 v174, v{p}, v{q}, s[90:91]
v_cvt_pk_bf16_f32 v{d}, v{q}, v{q}
v_cvt_pk_bf16_f32 v{d+1}, v{q}, v174
v_cvt_pk_bf16_f32 v{d+2}, v{p}, v{p}
v_cvt_pk_bf16_f32 v{d+3}, v{p}, v{p}
""")
    octet_writes(d, 175, 512 * (1 - hh))
a("s_waitcnt lgkmcnt(0)\nL_ko2:")
a.join("ko")
a(f"""
v_and_b32 v140, 1, v255
v_mul_u32_u24 v140, {U1_OFF}, v140
v_bfe_u32 v141, v255, 1, 3
v_lshl_add_u32 v140, v141, 6, v140
v_lshrrev_b32 v142, 4, v255
v_lshl_add_u32 v140, v142, 4, v140
s_lshr_b32 s84, {sw}, 1
s_mul_i32 s84, s84, {U_CH}
s_and_b32 s85, {sw}, 1
s_lshl_b32 s85, s85, 6
s_sub_u32 s84, s84, s85
s_add_u32 s84, s84, {UB+448-384}
v_add_u32 v130, s84, v140
v_and_b32 v140, 3, v255
v_mul_u32_u24 v140, {KC_CP}, v140
v_bfe_u32 v141, v255, 2, 2
v_sub_u32 v141, v142, v141
v_lshl_add_u32 v140, v141, 4, v140
s_sub_u32 s84, s88, s85
s_add_u32 s84, s84, {16*255-64*62}
v_add_u32 v131, s84, v140
s_barrier
""")
stamp()

def a_read(n):
    return f"ds_read_b128 a[{128+4*(n % 4)}:{131+4*(n % 4)}], v131 offset:{64*(62-2*n)}"


NH = 8


def h_load(kk):
    g = []
    for ta in range(2):
        r = 128 + 8 * (kk % NH) + 4 * ta
        g.append(f"buffer_load_dwordx4 v[{r}:{r+3}], v{251+ta}, {rWs}, s89 offen offset:{1024*(kk % 4)} sc1")
    if kk % 4 == 3:
        g[-1] += wrap("s89", 4096, "s11", "s10")
    return g


for n in range(3):
    a(a_read(n))
for i in range(2):
    for be in range(8):
        a(f"ds_read_b128 v[{16*be+4*i}:{16*be+4*i+3}], v130 offset:{512*be-128*i+384}")
FH_LOAD = f"buffer_load_dword v200, v201, {rWs}, s80 offen sc1"
FH_CMP = f"v_cmp_ne_u32 vcc, {snonce}, v200"
fill = {n: [] for n in range(32)}
for i in range(2, 4):
    fill[i - 2] += [f"ds_read_b128 v[{16*be+4*i}:{16*be+4*i+3}], v130 offset:{512*be-128*i+384}" for be in range(8)]
fill[1] += [("lt", "ub")]
fill[2] += [f"s_mul_i32 s84, s81, {FSP}\ns_lshl_b32 s85, {sc1_}, 2", f"s_add_u32 s84, s84, s85\ns_add_u32 s84, s84, {WS_FH}",
            f"v_mov_b32 v204, {snonce}", ("wv", "h"),
            f"s_mov_b64 exec, 1\nbuffer_store_dword v204, v203, {rWs}, s84 offen sc1\ns_mov_b64 exec, -1"]
for kk in range(8, 16):
    n = 3 + (kk - 8)
    if kk % 2 == 0:
        fill[n] += [("wv", f"wd{kk}")]
    fill[n] += wd_move(kk) + [("lt", f"mv{kk}")]
    if kk % 2 == 1:
        fill[n + 1] += [("wl", f"mv{kk}")] + wd_pair(kk + 11) + [("vt", f"wd{kk+11}")]
fill[3] += [f"s_lshl_b32 s84, {sw}, 10\ns_add_u32 s84, s84, {YX}", "v_add_u32 v222, s84, v250"]
fill[12] += ["v_and_b32 v201, 15, v255\nv_min_u32 v201, 13, v201", "v_lshlrev_b32 v201, 2, v201\nv_bfe_u32 v204, v255, 4, 1",
             f"v_mul_u32_u24 v204, {FSP}, v204\nv_add_u32 v201, v201, v204",
             f"s_mul_i32 s80, {sr2}, {2*FSP}\ns_add_u32 s80, s80, {WS_FH}"]
fill[13] += [f"s_lshr_b32 s84, {sw}, 1\ns_mul_i32 s85, s84, {112*1024}", "v_add_u32 v251, s85, v250\ns_xor_b32 s84, s84, 1",
             f"s_mul_i32 s85, s84, {112*1024}\nv_add_u32 v252, s85, v250",
             f"s_mul_i32 s89, {sr2}, {2*112*1024}\ns_mul_i32 s85, {sw}, {28*1024}", "s_add_u32 s10, s89, s85\ns_lshl_b32 s85, s3, 12", f"s_add_u32 s89, s10, s85\ns_add_u32 s11, s10, {28*1024}"]
fill[14] += ["v_bfe_u32 v223, v255, 1, 2\nv_lshlrev_b32 v223, 8, v223", "v_lshrrev_b32 v224, 3, v255\nv_lshl_add_u32 v223, v224, 5, v223",
             "v_and_b32 v224, 1, v255\nv_lshl_add_u32 v223, v224, 3, v223",
             f"s_lshl_b32 s84, {sw}, 13\ns_add_u32 s85, s84, {YX+4096}"]
fill[15] += [f"v_add_u32 v224, s85, v223\ns_add_u32 s84, s84, 8192", f"s_and_b32 s84, s84, 0x7fff\ns_add_u32 s84, s84, {YX}",
             "v_add_u32 v223, s84, v223",
             f"s_lshl_b32 s94, {sjc}, 13\ns_lshl_b32 s85, {sw}, 11", f"s_add_u32 s94, s94, s85\ns_add_u32 s94, s94, {WS_Y}"]
fill[16] += [f"s_lshl_b32 s84, {sc2}, 2\ns_add_u32 s84, s84, {sw}", f"s_lshl_b32 s84, s84, 13\ns_mul_i32 s97, {sr2}, {2*112*1024}"]
fill[17] += ["s_add_u32 s97, s97, s84\nv_lshlrev_b32 v226, 7, v255"]
fill[FH_AT] += [FH_LOAD]
for j in range(7):
    fill[max(9, 4 * j + 5) + (j == 1)] += [f"ds_write_b128 v222, a[{224+4*j}:{227+4*j}] offset:{4096*((j+1) % 8)}"]
for P in range(8):
    for i in range(4):
        n = 4 * P + i
        if n % 4 == 0 or n < 8:
            stamp("c")
        if n == 8:
            a.wait_lg(ltok["ub"])
            a("s_barrier")
        extra = ([a_read(n + 3)] if n + 3 < 32 else []) + fill[n]
        nreal = sum(1 for e in extra if not isinstance(e, tuple))
        k = done = 0
        for be in range(8 - P):
            j = P + be
            c = "0" if n == 0 else f"a[{224+4*j}:{227+4*j}]"
            a(f"v_mfma_f32_16x16x32_bf16 a[{224+4*j}:{227+4*j}], a[{128+4*(n % 4)}:{131+4*(n % 4)}], v[{16*be+4*i}:{16*be+4*i+3}], {c}")
            goal = -(-(nreal * (be + 1)) // (8 - P))
            while k < len(extra) and (isinstance(extra[k], tuple) or done < goal):
                e = extra[k]; k += 1
                if isinstance(e, tuple):
                    if e[0] == "vt": tok[e[1]] = a.vm_tok()
                    if e[0] == "lt": ltok[e[1]] = a.lg_tok()
                    if e[0] == "wv": a.wait_vm(tok[e[1]])
                    if e[0] == "wl": a.wait_lg(ltok[e[1]])
                else:
                    a(e); done += 1
stamp()
a("ds_write_b128 v222, a[252:255]")
poll("fh", FH_LOAD, FH_CMP)
if "--touchh" in sys.argv:
    a(f"buffer_load_dword v227, v226, {rWs}, s97 offen sc1")
for kk in range(2):
    for g in h_load(kk):
        a(g)
a("s_waitcnt lgkmcnt(0)\ns_barrier")
for jj in range(2):
    for src in range(4):
        r = 64 + 16 * jj + 4 * src
        for ph in range(2):
            a(f"ds_read_b64 v[{r+2*ph}:{r+2*ph+1}], v{224-jj} offset:{1024*src+16*ph}")
for kk in range(2, NH):
    for g in h_load(kk):
        a(g)
for jj in range(2):
    r = 64 + 16 * jj
    a(f"""
v_pk_add_f32 v[{r}:{r+1}], v[{r}:{r+1}], v[{r+4}:{r+5}]
v_pk_add_f32 v[{r+2}:{r+3}], v[{r+2}:{r+3}], v[{r+6}:{r+7}]
v_pk_add_f32 v[{r+8}:{r+9}], v[{r+8}:{r+9}], v[{r+12}:{r+13}]
v_pk_add_f32 v[{r+10}:{r+11}], v[{r+10}:{r+11}], v[{r+14}:{r+15}]
v_cvt_pk_bf16_f32 v{r+4}, v{r}, v{r+8}
v_cvt_pk_bf16_f32 v{r+5}, v{r+2}, v{r+10}
v_cvt_pk_bf16_f32 v{r+6}, v{r+1}, v{r+9}
v_cvt_pk_bf16_f32 v{r+7}, v{r+3}, v{r+11}
buffer_store_dwordx4 v[{r+4}:{r+7}], v250, {rWs}, s94 offen offset:{1024*jj} sc1
""")
tok["y"] = a.vm_tok()
stamp()


def d_read(kk, da, rd):
    r = 128 + 8 * (kk % 2) + 4 * da + 2 * rd
    return f"ds_read_b64_tr_b16 a[{r}:{r+1}], v{228+da} offset:{(kk % NWD)*2048+rd*1024}"


FY_LOAD = f"buffer_load_dword v200, v201, {rWs}, s80 offen sc1"
FY_CMP = f"v_cmp_ne_u32 vcc, {snonce}, v200"
for kk in range(28):
    if kk % 2 == 0:
        stamp("h")
    extra = []
    if 16 <= kk + 1 < 28:
        if (kk + 1) % 2 == 0:
            extra += [("wv", f"wd{kk+1}")]
        extra += [d_read(kk + 1, da, rd) for da in range(2) for rd in range(2)]
    if kk == 0:
        extra += [f"s_lshr_b32 s84, {sjc}, 5\ns_lshl_b32 s84, s84, 2\ns_add_u32 s84, s84, {sw}",
                  f"s_mul_i32 s84, s84, {FSP}\ns_and_b32 s85, {sjc}, 31\ns_lshl_b32 s85, s85, 2",
                  f"s_add_u32 s84, s84, s85\ns_add_u32 s95, s84, {WS_FY}\nv_mov_b32 v225, {snonce}"]
    if kk == FYW_AT:
        extra += [("wv", "y"), f"s_mov_b64 exec, 1\nbuffer_store_dword v225, v203, {rWs}, s95 offen sc1\ns_mov_b64 exec, -1"]
    if kk == 8:
        extra += ["s_barrier"]
    if kk == 2:
        extra += ["v_and_b32 v204, 31, v255\nv_lshlrev_b32 v201, 2, v204\nv_lshrrev_b32 v226, 5, v255",
                  f"s_lshl_b32 s80, {sc2}, 2\ns_lshr_b32 s84, {sr2}, 3\ns_add_u32 s80, s80, s84",
                  f"s_mul_i32 s80, s80, {FSP}\ns_add_u32 s80, s80, {WS_FY}"]
    if kk == 3:
        extra += [f"s_lshr_b32 s84, {sw}, 1\ns_lshl_b32 s85, {sr2}, 1\ns_add_u32 s84, s84, s85",
                  f"s_lshl_b32 s92, s84, 5\nv_add_u32 v205, s92, v204\nv_lshlrev_b32 v206, 3, v205",
                  "v_mul_u32_u24 v205, 896, v205\nv_lshl_add_u32 v205, v226, 3, v205",
                  f"s_and_b32 s84, {sw}, 1\ns_lshl_b32 s85, {sc2}, 1\ns_add_u32 s84, s84, s85"]
    if kk == 4:
        extra += [f"s_lshl_b32 s93, s84, 6\ns_mov_b32 s85, {WS_ST+4}\nbuffer_load_dword v80, v206, {rWs}, s85 offen sc1",
                  "v_lshlrev_b32 v206, 14, v226\nv_add_u32 v206, v206, v201",
                  "s_lshl_b32 s84, s93, 11\ns_lshl_b32 s85, s92, 2",
                  f"s_add_u32 s84, s84, s85\ns_add_u32 s96, s84, {WS_Y}"]
    if 5 <= kk <= 8:
        g = kk - 5
        extra += [f"buffer_load_dwordx2 v[{64+2*g}:{65+2*g}], v205, {rX}, s93 offen offset:{16*g}"]
    if kk == 9:
        extra += [f"s_mul_i32 s84, {sw}, {3*4096}\ns_add_u32 s84, s84, {RX}\nv_add_u32 v210, s84, v250"]
    if 10 <= kk <= 12:
        k = kk - 9
        extra += [f"s_xor_b32 s85, {sw}, {k}\ns_mul_i32 s85, s85, {3*4096}",
                  f"s_add_u32 s85, s85, {RX+(k-1)*4096}\nv_add_u32 v{210+k}, s85, v250"]
    if kk == FY_AT:
        extra += [FY_LOAD]
    if kk == FY_AT + 4:
        poll("fy", FY_LOAD, FY_CMP)
    if FY_AT + 4 <= kk < FY_AT + 6:
        for g in range(2 * (kk - FY_AT - 4), 2 * (kk - FY_AT - 4) + 2):
            for e in range(2):
                extra += [f"buffer_load_dword v{72+2*g+e}, v206, {rWs}, s96 offen sc1\ns_add_u32 s96, s96, {8192 if e == 0 else 3*8192}"]
    nreal = sum(1 for e in extra if not isinstance(e, tuple))
    k = done = q = 0
    for ta in range(2):
        for da in range(2):
            acc = 16 * (da + 2 * ta)
            c = "0" if kk == 0 else f"v[{acc}:{acc+15}]"
            fa = (8 * kk if kk < 16 else 128 + 8 * (kk % 2)) + 4 * da
            fb = 128 + 8 * (kk % NH) + 4 * ta
            a(f"v_mfma_f32_32x32x16_bf16 v[{acc}:{acc+15}], a[{fa}:{fa+3}], v[{fb}:{fb+3}], {c}")
            q += 1
            if da == 1 and kk + NH < 28:
                a(h_load(kk + NH)[ta])
            goal = -(-(nreal * q) // 4)
            while k < len(extra) and (isinstance(extra[k], tuple) or done < goal):
                e = extra[k]; k += 1
                if isinstance(e, tuple):
                    if e[0] == "wv": a.wait_vm(tok[e[1]])
                else:
                    a(e); done += 1
stamp()
for k in range(1, 4):
    for g in range(4):
        a(f"ds_write_b128 v210, v[{16*k+4*g}:{16*k+4*g+3}] offset:{(k-1)*4096+1024*g}")
        if k < 3:
            e = k - 1
            xr_, yr, d = 64 + 2 * g + e, 72 + 2 * g + e, 96 + 4 * g + 2 * e
            a(f"""
v_lshlrev_b32 v{d}, 16, v{xr_}
v_and_b32 v{d+1}, s78, v{xr_}
v_lshlrev_b32 v112, 16, v{yr}
v_and_b32 v113, s78, v{yr}
v_pk_add_f32 v[{d}:{d+1}], v[{d}:{d+1}], v[112:113]
""")
a(f"""
v_lshlrev_b32 v226, 3, v226
v_add_u32 v205, v205, v226
s_waitcnt lgkmcnt(0)
s_barrier
""")
for g in range(4):
    for k in range(1, 4):
        a(f"ds_read_b128 v[{16*k+4*g}:{16*k+4*g+3}], v{210+k} offset:{1024*g}")
for g in range(4):
    for e in range(2):
        r = 4 * g + 2 * e
        for k in range(1, 4):
            a(f"v_pk_add_f32 v[{r}:{r+1}], v[{r}:{r+1}], v[{16*k+r}:{16*k+r+1}]")
        a(f"v_pk_fma_f32 v[{r}:{r+1}], v[{r}:{r+1}], v[80:81], v[{96+r}:{97+r}] op_sel_hi:[1,0,1]")
    a(f"v_cvt_pk_bf16_f32 v{116+2*g}, v{4*g}, v{4*g+1}\nv_cvt_pk_bf16_f32 v{117+2*g}, v{4*g+2}, v{4*g+3}")
    if g % 2 == 1:
        b = 116 + 2 * (g - 1)
        a(f"v_permlane32_swap_b32 v{b}, v{b+2}\nv_permlane32_swap_b32 v{b+1}, v{b+3}")
        a(f"buffer_store_dwordx4 v[{b}:{b+3}], v205, {rOut}, s93 offen offset:{16*(g-1)} {OUTFL}")
stamp()


def stamp_out():
    if not STAMP:
        return
    a(f"""
s_waitcnt vmcnt(0)
s_memrealtime s[98:99]
s_waitcnt lgkmcnt(0)
v_writelane_b32 v254, s98, 15
s_lshl_b32 s84, s2, 2
s_add_u32 s84, s84, {sw}
s_lshl_b32 s84, s84, 6
s_add_u32 s84, s84, {WS_TS}
v_lshlrev_b32 v1, 2, v255
s_mov_b64 exec, 0xffff
buffer_store_dword v254, v1, {rWs}, s84 offen
""")
    if "--dbgstamp" in sys.argv:
        nm = f"L_nodbg{nstamp[0]}"
        a(f"""
s_lshl_b32 s84, s2, 2
s_add_u32 s84, s84, {sw}
s_cmp_eq_u32 s84, 400
s_cbranch_scc0 {nm}
v_readlane_b32 s84, v254, 0
s_nop 3
v_subrev_u32 v254, s84, v254
s_mov_b64 exec, 0xfffe
global_store_dword v1, v254, s[{sDbg}:{sDbg+1}]
{nm}:
""")


stamp_out()
a("s_endpgm")

a.reset()
nstamp[0] = 1
shq = "s59"
a(f"""
L_helper:
v_lshlrev_b32 v250, 4, v255
s_waitcnt lgkmcnt(0)
s_mov_b32 s36, s{sX}
s_mov_b32 s37, s{sX+1}
s_add_u32 s48, s{sWs}, {WSOFF}
s_addc_u32 s49, s{sWs+1}, 0
s_lshl_b32 {shq}, {sxcd}, 2
s_add_u32 {shq}, {shq}, {sj}
v_mov_b32 v203, 0
s_or_b32 s72, {shq}, {sw}
s_cmp_eq_u32 s72, 0
s_cbranch_scc0 L_hnoep
s_mov_b32 s72, {WS_EP}
buffer_load_dword v202, v203, {rWs}, s72 offen sc1
s_waitcnt vmcnt(0)
s_mov_b32 s73, 1664525
v_mul_lo_u32 v202, v202, s73
v_add_u32 v202, 1013904225, v202
v_or_b32 v202, 1, v202
s_mov_b64 exec, 1
global_store_dword v203, v202, s[{sDbg}:{sDbg+1}] sc1
buffer_store_dword v202, v203, {rWs}, s72 offen sc1
s_mov_b64 exec, -1
s_waitcnt vmcnt(0)
L_hnoep:
v_lshrrev_b32 v1, 2, v255
s_lshl_b32 s72, {shq}, 2
s_add_u32 s72, s72, {sw}
s_lshl_b32 s72, s72, 4
v_add_u32 v4, s72, v1
v_mul_u32_u24 v5, 896, v4
v_and_b32 v2, 3, v255
v_lshl_add_u32 v5, v2, 4, v5
""")
for i in range(14):
    a(f"buffer_load_dwordx4 v[{8+4*i}:{11+4*i}], v5, {rX}, 0 offen offset:{64*i}")
a(f"""
s_bitcmp1_b32 {shq}, 0
s_cselect_b32 s40, s{sWu}, s{sWg}
s_cselect_b32 s41, s{sWu+1}, s{sWg+1}
s_lshr_b32 s73, {shq}, 1
s_cmp_lt_u32 s73, 14
s_cselect_b32 s73, s73, 0
s_lshl_b32 s82, s73, 8
v_lshrrev_b32 v6, 4, v255
s_lshl_b32 s75, {sw}, 2
v_add_u32 v6, s75, v6
v_mul_u32_u24 v7, 3584, v6
v_and_b32 v3, 15, v255
v_lshl_add_u32 v7, v3, 4, v7
""")
wl = [f"buffer_load_dwordx4 v[{72+4*i}:{75+4*i}], v7, {rW}, s82 offen\ns_add_u32 s82, s82, {16*3584}" for i in range(28)]
for i in range(10):
    a(wl.pop(0))
stamp()
a(f"""
s_mov_b32 s76, 0x3f803f80
s_mov_b32 s77, 0x00003f80
s_mov_b32 s78, 0xffff0000
s_mov_b32 s79, 0x3f800000
v_mov_b32 v64, 0
v_mov_b32 v65, 0
""")
for i in range(56):
    a(f"v_dot2_f32_bf16 v{64+i % 2}, v{8+i}, s76, v{64+i % 2}")
stamp()
a(f"""
v_add_f32 v64, v64, v65
v_add_f32_dpp v64, v64, v64 quad_perm:[1,0,3,2] row_mask:0xf bank_mask:0xf
v_add_f32_dpp v64, v64, v64 quad_perm:[2,3,0,1] row_mask:0xf bank_mask:0xf
v_mul_f32 v64, {hex(0x3b124925)}, v64
v_cvt_pk_bf16_f32 v65, -v64, -v64
v_and_b32 v66, s78, v65
v_mov_b32 v68, 0
v_mov_b32 v69, 0
""")
for i in range(56):
    t = 186 + 2 * (i % 4)
    a(f"""
v_dot2_f32_bf16 v{t}, v{8+i}, s77, v66
v_dot2_f32_bf16 v{t+1}, v{8+i}, s79, v66
""")
    if i >= 2:
        p = 186 + 2 * ((i - 2) % 4)
        a(f"v_pk_fma_f32 v[68:69], v[{p}:{p+1}], v[{p}:{p+1}], v[68:69]\nv_cvt_pk_bf16_f32 v{6+i}, v{p}, v{p+1}")
    if i % 3 == 0 and wl:
        a(wl.pop(0))
assert not wl
stamp()
for i in (54, 55):
    p = 186 + 2 * (i % 4)
    a(f"v_pk_fma_f32 v[68:69], v[{p}:{p+1}], v[{p}:{p+1}], v[68:69]\nv_cvt_pk_bf16_f32 v{8+i}, v{p}, v{p+1}")
a(f"""
v_add_f32 v68, v68, v69
v_add_f32_dpp v68, v68, v68 quad_perm:[1,0,3,2] row_mask:0xf bank_mask:0xf
v_add_f32_dpp v68, v68, v68 quad_perm:[2,3,0,1] row_mask:0xf bank_mask:0xf
v_add_f32 v67, v64, v66
v_mul_f32 v67, v67, v67
v_mul_f32 v68, {hex(0x3b124925)}, v68
v_sub_f32 v68, v68, v67
v_max_f32 v68, 0, v68
v_cvt_pk_bf16_f32 v68, v68, v68
v_and_b32 v68, s78, v68
v_add_f32 v68, 0x3727c5ac, v68
v_cvt_pk_bf16_f32 v68, v68, v68
v_and_b32 v68, s78, v68
v_sqrt_f32 v68, v68
v_cvt_pk_bf16_f32 v68, v68, v68
v_and_b32 v68, s78, v68
v_rcp_f32 v70, v68
v_fma_f32 v71, -v68, v70, 1.0
v_fma_f32 v70, v70, v71, v70
v_mul_f32 v66, v70, v70
v_lshlrev_b32 v4, 3, v4
s_mov_b32 s74, {WS_ST}
s_mov_b32 s80, 0x11111111
s_mov_b32 s81, 0x11111111
v_mov_b32 v64, v65
v_mov_b32 v65, v66
s_mov_b64 exec, s[80:81]
buffer_store_dwordx2 v[64:65], v4, {rWs}, s74 offen sc1
s_mov_b64 exec, -1
v_mul_u32_u24 v5, 960, v1
s_mul_i32 s75, {sw}, {16*960}
v_lshl_add_u32 v5, v2, 4, v5
v_add_u32 v5, s75, v5
""")
for i in range(56):
    t = 186 + 2 * (i % 4)
    a(f"""
v_lshlrev_b32 v{t}, 16, v{8+i}
v_and_b32 v{t+1}, s78, v{8+i}
v_pk_mul_f32 v[{t}:{t+1}], v[{t}:{t+1}], v[70:71] op_sel_hi:[1,0]
v_cvt_pk_bf16_f32 v{8+i}, v{t}, v{t+1}
""")
    if i % 4 == 3:
        a(f"ds_write_b128 v5, v[{8+i-3}:{8+i}] offset:{64*(i//4)}")
stamp()
L2B = 64 * 960
a(f"""
v_lshrrev_b32 v1, 5, v255
v_bfe_u32 v2, v255, 2, 2
v_lshl_add_u32 v2, v1, 3, v2
v_mul_u32_u24 v2, 960, v2
v_bfe_u32 v4, v255, 4, 1
v_lshl_add_u32 v2, v4, 5, v2
v_and_b32 v4, 3, v255
v_lshl_add_u32 v2, v4, 3, v2
v_add_u32 v2, s75, v2
v_and_b32 v4, 31, v255
v_mul_u32_u24 v4, 144, v4
s_lshl_b32 s74, {sw}, 5
s_add_u32 s74, s74, {L2B}
v_lshl_add_u32 v4, v1, 4, v4
v_add_u32 v4, s74, v4
""")
for b in range(14):
    a(f"ds_read_b64_tr_b16 v[{8+4*b}:{9+4*b}], v2 offset:{64*b}\nds_read_b64_tr_b16 v[{10+4*b}:{11+4*b}], v2 offset:{64*b+4*960}")
for b in range(14):
    a(f"ds_write_b128 v4, v[{8+4*b}:{11+4*b}] offset:{32*144*b}")
L3B = L2B + 448 * 144
a(f"""
v_lshlrev_b32 v6, 9, v6
v_lshl_add_u32 v6, v3, 5, v6
v_add_u32 v6, {L3B}, v6
v_lshrrev_b32 v1, 3, v255
v_mul_u32_u24 v1, 144, v1
v_and_b32 v2, 7, v255
v_lshl_add_u32 v1, v2, 4, v1
s_mul_i32 s74, {sw}, {112*144}
s_add_u32 s74, s74, {L2B}
v_add_u32 v1, s74, v1
s_mul_i32 s74, {shq}, {448*128}
s_mul_i32 s75, {sw}, {112*128}
s_add_u32 s74, s74, s75
s_add_u32 s74, s74, {WS_XT}
s_and_b32 s75, {sw}, 1
s_lshl_b32 s75, s75, 8
v_lshl_add_u32 v2, v255, 2, s75
v_add_u32 v5, {L3B}, v2
{NC_LOAD}
s_waitcnt lgkmcnt(0)
s_barrier
""")
stamp()
for b in range(14):
    a(f"ds_read_b128 v[{8+4*b}:{11+4*b}], v1 offset:{8*144*b}")
for e in range(8):
    a(f"v_mov_b32 v{64+e}, 0")
for b in range(14):
    a(f"buffer_store_dwordx4 v[{8+4*b}:{11+4*b}], v250, {rWs}, s74 offen offset:{1024*(b % 4)} sc1")
    if b % 4 == 3:
        a("s_add_u32 s74, s74, 4096")
    for i in (2 * b, 2 * b + 1):
        for d in range(4):
            a(f"v_dot2_f32_bf16 v{64+2*d}, v{72+4*i+d}, s77, v{64+2*d}")
            a(f"v_dot2_f32_bf16 v{65+2*d}, v{72+4*i+d}, s79, v{65+2*d}")
a("""
ds_write_b128 v6, v[64:67]
ds_write_b128 v6, v[68:71] offset:16
s_waitcnt lgkmcnt(0)
s_barrier
""")
stamp()
for r in range(16):
    a(f"ds_read_b32 v{72+r}, v5 offset:{512*r}")
for r in range(1, 16):
    a(f"v_add_f32 v72, v72, v{72+r}")
a(f"""
v_cvt_pk_bf16_f32 v73, v72, v72
v_and_b32 v73, s78, v73
v_sub_f32 v74, v72, v73
v_cvt_pk_bf16_f32 v73, v73, v74
s_lshl_b32 s74, {shq}, 9
s_add_u32 s74, s74, {WS_CS}
s_cmp_lt_u32 {shq}, 28
s_cselect_b32 s74, s74, {WS_SIZE}
s_cmp_lt_u32 {sw}, 2
s_cselect_b32 s74, s74, {WS_SIZE}
buffer_store_dword v73, v2, {rWs}, s74 offen sc1
""")
stamp()
poll("hnc", NC_LOAD, NC_CMP)
a(f"""
s_waitcnt vmcnt(0)
s_barrier
s_cmp_eq_u32 {sw}, 0
s_cbranch_scc0 L_hdone
v_mul_u32_u24 v1, {FSP}, v255
s_lshl_b32 s74, {shq}, 2
s_add_u32 s74, s74, {WS_FL}
s_mov_b64 exec, 0xff
buffer_store_dword v202, v1, {rWs}, s74 offen sc1
s_mov_b64 exec, -1
L_hdone:
""")
stamp()
stamp_out()
a("L_end:\ns_endpgm")
for sp in slow:
    a.reset()
    a(sp)
a("L_codeend:\ns_endpgm")

body = a.render()
ref = open(os.path.join(os.path.dirname(os.path.abspath(__file__)), "..", "cdna_kernels", NAME + ".s.ref")).read()
head = [l for l in ref.split("\n") if l.startswith(";") and "@launch" not in l and "Override" not in l and "grid=ceil" not in l]
txt = "\n".join(head) + f"""
; Generated by tools/gen.py (hand-written generator).
; @launch grid=(256,1,1) block=(256,1,1) lds=163840
.amdgcn_target "amdgcn-amd-amdhsa--gfx950"
.text
.globl {NAME}_kernel
.p2align 8
.type {NAME}_kernel,@function
{NAME}_kernel:
{body}
.section .rodata,"a"
.p2align 6
.amdhsa_kernel {NAME}_kernel
  .amdhsa_next_free_vgpr 512
  .amdhsa_next_free_sgpr 102
  .amdhsa_accum_offset 256
  .amdhsa_group_segment_fixed_size 0
  .amdhsa_kernarg_size 128
  .amdhsa_user_sgpr_count 2
  .amdhsa_user_sgpr_kernarg_segment_ptr 1
  .amdhsa_system_sgpr_workgroup_id_x 1
.end_amdhsa_kernel
"""
out = [x for x in sys.argv[1:] if not x.startswith("--")]
path = out[0] if out else os.path.join(os.path.dirname(os.path.abspath(__file__)), "..", "cdna_kernels", NAME + ".s")
open(path, "w").write(txt)
print(path, a.stats, file=sys.stderr)
```

```python
import re

TRANS = ("v_exp_f32", "v_log_f32", "v_rcp_f32", "v_rsq_f32", "v_sqrt_f32", "v_sin_f32", "v_cos_f32")


def regs_of(tok):
    tok = tok.strip()
    if tok.startswith("-"):
        tok = tok[1:]
    m = re.fullmatch(r"abs\((.*)\)", tok) or re.fullmatch(r"\|(.*)\|", tok)
    if m:
        tok = m.group(1)
    m = re.fullmatch(r"([vas])(\d+)", tok)
    if m:
        return {(m.group(1), int(m.group(2)))}
    m = re.fullmatch(r"([vas])\[(\d+):(\d+)\]", tok)
    if m:
        return {(m.group(1), i) for i in range(int(m.group(2)), int(m.group(3)) + 1)}
    if tok == "vcc":
        return {("s", "vcc")}
    if tok == "m0":
        return {("s", "m0")}
    if tok == "exec":
        return {("s", "exec")}
    return set()


class I:
    __slots__ = ("text", "op", "rd", "wr", "kind", "ops", "mods")

    def __init__(self, text):
        self.text = text
        parts = text.split(None, 1)
        self.op = op = parts[0]
        rest = parts[1] if len(parts) > 1 else ""
        raw = [p.strip() for p in re.split(r",(?![^\[]*\])", rest)] if rest else []
        mods = ""
        if raw:
            last = raw[-1].split(None, 1)
            raw[-1] = last[0] if last else ""
            mods = last[1] if len(last) > 1 else ""
        self.ops = raw
        self.mods = mods
        R = [regs_of(o) for o in raw]
        rd, wr = set(), set()
        U = lambda xs: set().union(*xs) if xs else set()
        if op.startswith("v_mfma"):
            self.kind = "mfma"
            wr = R[0]
            rd = U(R[1:])
        elif op.startswith("ds_read") or op.startswith("ds_bpermute") or op.startswith("ds_swizzle"):
            self.kind = "ds"
            wr = R[0]
            rd = U(R[1:])
        elif op.startswith("ds_"):
            self.kind = "ds"
            rd = U(R)
        elif op.startswith("buffer_load") or op.startswith("global_load"):
            self.kind = "vm"
            if re.search(r"\blds\b", mods):
                rd = U(R) | {("s", "m0")}
            else:
                wr = R[0]
                rd = U(R[1:])
        elif op.startswith("buffer_store") or op.startswith("global_store") or op.startswith("buffer_atomic"):
            self.kind = "vm"
            rd = U(R)
        elif op.startswith("s_load") or op.startswith("s_memtime") or op.startswith("s_memrealtime"):
            self.kind = "smem"
            wr = R[0]
            rd = U(R[1:])
        elif op.startswith("v_"):
            self.kind = "valu"
            wr = set(R[0])
            rd = U(R[1:])
            if op.startswith("v_permlane32_swap") or op.startswith("v_permlane16_swap"):
                wr |= R[1]
                rd |= R[0]
            if op.startswith("v_fmac") or op.startswith("v_dot2c") or "_dpp" in op or op.startswith("v_writelane"):
                rd |= R[0]
            if op.startswith("v_cndmask") and len(raw) == 3:
                rd |= {("s", "vcc")}
            if op.startswith("v_add_co") or op.startswith("v_addc_co"):
                wr |= R[1]
        elif op.startswith("s_"):
            self.kind = "salu"
            if op.startswith(("s_cmp", "s_waitcnt", "s_barrier", "s_nop", "s_branch", "s_cbranch", "s_endpgm",
                              "s_sleep", "s_setprio", "s_setpc", "s_bitcmp")):
                rd = U(R)
            else:
                wr = set(R[0]) if R else set()
                rd = U(R[1:])
                if "saveexec" in op:
                    wr |= {("s", "exec")}
                if op.startswith(("s_addk", "s_mulk")):
                    rd |= R[0]
        else:
            raise ValueError("unknown op " + text)
        self.rd, self.wr = rd, wr


class State:
    def __init__(self):
        self.vm = []
        self.lg = []
        self.smem = set()
        self.t = 0
        self.valu_w = {}
        self.trans_w = {}
        self.dot_w = {}
        self.mfma_w = {}
        self.m0_w = -99
        self.store_r = {}

    def copy(self):
        s = State()
        s.vm = list(self.vm); s.lg = list(self.lg); s.smem = set(self.smem); s.t = self.t
        s.valu_w = dict(self.valu_w); s.trans_w = dict(self.trans_w); s.dot_w = dict(self.dot_w)
        s.mfma_w = dict(self.mfma_w); s.m0_w = self.m0_w; s.store_r = dict(self.store_r)
        return s


class Asm:
    def __init__(self):
        self.items = []
        self.nid = 0
        self.last_vm = None
        self.last_lg = None

    def __call__(self, text):
        for line in text.split("\n"):
            line = line.split(";")[0].strip()
            if not line:
                continue
            if line.endswith(":") or line.startswith("."):
                self.items.append(("raw", line))
                continue
            ins = I(line)
            self.nid += 1
            if ins.kind == "vm":
                self.last_vm = self.nid
            if ins.kind == "ds":
                self.last_lg = self.nid
            self.items.append(("ins", ins, self.nid))

    def comment(self, s):
        self.items.append(("raw", "; " + s))

    def vm_tok(self):
        return self.last_vm

    def lg_tok(self):
        return self.last_lg

    def wait_vm(self, tok):
        self.items.append(("wvm", tok))

    def wait_lg(self, tok):
        self.items.append(("wlg", tok))

    def wait_both(self, vt, lt):
        self.items.append(("wboth", vt, lt))

    def fork(self, name):
        self.items.append(("fork", name))

    def other(self, name):
        self.items.append(("other", name))

    def join(self, name):
        self.items.append(("join", name))

    def reset(self):
        self.items.append(("reset",))

    def render(self):
        out = []
        st = State()
        saved = {}
        self.stats = {"nop": 0, "wait": 0, "ins": 0}

        def emit(t):
            out.append("    " + t)

        def cnt_after(q, tok):
            for k, (i, _) in enumerate(q):
                if i == tok:
                    return len(q) - 1 - k
            return None

        def do_wait(nv, nl):
            s = []
            if nv is not None:
                nv = min(nv, 63)
                if nv < len(st.vm):
                    s.append(f"vmcnt({nv})")
                    st.vm = st.vm[len(st.vm) - nv:] if nv else []
            if nl is not None:
                nl = min(nl, 15)
                if st.smem:
                    nl = 0
                if nl < len(st.lg) or st.smem:
                    s.append(f"lgkmcnt({nl})")
                    st.lg = st.lg[len(st.lg) - nl:] if nl else []
                    st.smem = set()
            if s:
                emit("s_waitcnt " + " ".join(s))
                st.t += 1
                self.stats["wait"] += 1

        for it in self.items:
            k = it[0]
            if k == "raw":
                out.append(it[1])
                continue
            if k == "wvm":
                do_wait(cnt_after(st.vm, it[1]), None); continue
            if k == "wlg":
                do_wait(None, cnt_after(st.lg, it[1])); continue
            if k == "wboth":
                do_wait(cnt_after(st.vm, it[1]), cnt_after(st.lg, it[2])); continue
            if k == "fork":
                saved[it[1]] = st.copy(); continue
            if k == "other":
                saved[it[1] + "/then"] = st
                st = saved[it[1]].copy(); continue
            if k == "join":
                a = saved.pop(it[1] + "/then", None) or saved[it[1]]
                b = st
                assert not a.smem and not b.smem
                if len(a.vm) != len(b.vm):
                    raise AssertionError(f"join {it[1]}: vm queues differ {len(a.vm)} {len(b.vm)}")
                assert not a.lg and not b.lg, f"join {it[1]}: drain lgkm before the join"
                m = b.copy()
                m.vm = [(ib, ra | rb) for (ia, ra), (ib, rb) in zip(a.vm, b.vm)]
                for name in ("valu_w", "trans_w", "store_r"):
                    da, dm = getattr(a, name), getattr(m, name)
                    for r, t in da.items():
                        t2 = t - a.t + m.t
                        if dm.get(r, -99) < t2:
                            dm[r] = t2
                for name in ("dot_w", "mfma_w"):
                    da, dm = getattr(a, name), getattr(m, name)
                    for r, v in da.items():
                        t2 = v[0] - a.t + m.t
                        if r not in dm or dm[r][0] < t2:
                            dm[r] = (t2,) + tuple(v[1:])
                m.m0_w = max(m.m0_w, a.m0_w - a.t + m.t)
                st = m
                continue
            if k == "reset":
                st = State(); continue
            ins, iid = it[1], it[2]
            touched = ins.rd | ins.wr
            if ins.op == "s_waitcnt":
                mv = re.search(r"vmcnt\((\d+)\)", ins.text); ml = re.search(r"lgkmcnt\((\d+)\)", ins.text)
                if mv:
                    n = int(mv.group(1)); st.vm = st.vm[max(0, len(st.vm) - n):] if n else []
                if ml:
                    n = int(ml.group(1))
                    if n == 0:
                        st.lg = []; st.smem = set()
                    elif not st.smem:
                        st.lg = st.lg[max(0, len(st.lg) - n):]
                emit(ins.text); st.t += 1
                continue
            nv = nl = None
            for kx, (i, rs) in enumerate(st.vm):
                if rs & touched:
                    nv = len(st.vm) - 1 - kx
            for kx, (i, rs) in enumerate(st.lg):
                if rs & touched:
                    nl = len(st.lg) - 1 - kx
            if st.smem & touched:
                nl = 0
            do_wait(nv, nl)
            need = 0

            def req(tw, ws):
                nonlocal need
                need = max(need, ws - (st.t - tw - 1))

            isv = ins.kind == "valu"
            for r in touched:
                if r in st.mfma_w:
                    tw, ps, dset = st.mfma_w[r]
                    if ins.kind == "mfma":
                        cset = regs_of(ins.ops[3]); ab = regs_of(ins.ops[1]) | regs_of(ins.ops[2])
                        if r in ab:
                            req(tw, 12 if ps == 8 else 8)
                        elif cset == dset and ins.wr == dset:
                            pass
                        else:
                            req(tw, 10 if ps == 8 else 6)
                    else:
                        req(tw, 12 if ps == 8 else 8)
                if r in st.dot_w and ins.kind in ("valu", "mfma", "vm", "ds"):
                    tw, op = st.dot_w[r]
                    srcc = ins.op == op and ((len(ins.ops) == 4 and r in regs_of(ins.ops[3])
                                              and r not in regs_of(ins.ops[1]) | regs_of(ins.ops[2])))
                    if not srcc:
                        req(tw, 3)
            for r in ins.rd:
                if r in st.valu_w:
                    tw = st.valu_w[r]
                    if r[0] in "va":
                        if ins.kind == "mfma":
                            req(tw, 2)
                        if ins.op.startswith(("v_readfirstlane", "v_readlane")):
                            req(tw, 1)
                        if "_dpp" in ins.op or ins.op.startswith("v_permlane"):
                            req(tw, 2)
                    else:
                        if ins.kind == "vm":
                            req(tw, 5)
                        elif isv:
                            req(tw, 4 if ins.op.startswith(("v_readlane", "v_writelane")) else 2)
                        elif ins.kind in ("salu", "smem"):
                            req(tw, 1)
                if r in st.trans_w and ins.kind in ("valu", "mfma") and not ins.op.startswith(TRANS):
                    req(st.trans_w[r], 1)
                if r == ("s", "m0") and ins.kind == "vm":
                    req(st.m0_w, 1)
            if isv:
                for r in ins.wr:
                    if r in st.store_r:
                        req(st.store_r[r], 2)
            if need == 1 and ins.kind == "vm" and ("s", "m0") in ins.rd and st.m0_w == st.t - 1 and len(out) >= 2:
                prev = out[-2].strip()
                pop = prev.split()[0]
                if pop.startswith("ds_read"):
                    out[-1], out[-2] = out[-2], out[-1]
                    need = 0
            while need > 0:
                n = min(need, 16)
                emit(f"s_nop {n - 1}")
                st.t += n
                need -= n
                self.stats["nop"] += 1
            emit(ins.text)
            self.stats["ins"] += 1
            t = st.t
            st.t += 1
            if ins.op == "s_nop":
                st.t += int(ins.ops[0])
            for r in ins.wr:
                st.valu_w.pop(r, None); st.trans_w.pop(r, None); st.dot_w.pop(r, None); st.mfma_w.pop(r, None)
            if ins.kind == "valu":
                for r in ins.wr:
                    st.valu_w[r] = t
                    if ins.op.startswith(TRANS):
                        st.trans_w[r] = t
                    if ins.op.startswith("v_dot2"):
                        st.dot_w[r] = (t, ins.op)
            elif ins.kind == "mfma":
                ps = 8 if "32x32" in ins.op else 4
                for r in ins.wr:
                    st.mfma_w[r] = (t, ps, frozenset(ins.wr))
            elif ins.kind == "salu":
                if ("s", "m0") in ins.wr:
                    st.m0_w = t
            elif ins.kind == "vm":
                st.vm.append((iid, set(ins.wr)))
                if ("store" in ins.op) and ("x4" in ins.op or "x3" in ins.op):
                    data = regs_of(ins.ops[0]) if ins.op.startswith("buffer") else regs_of(ins.ops[1])
                    for r in data:
                        st.store_r[r] = t
                assert len(st.vm) <= 63 or True
            elif ins.kind == "ds":
                st.lg.append((iid, set(ins.wr)))
            elif ins.kind == "smem":
                st.smem |= set(ins.wr) | {("s", "smem")}
        return "\n".join(out) + "\n"
```

```python
import sys, os
sys.path.insert(0, os.path.dirname(os.path.abspath(__file__)))
from asmdsl import Asm

NAME = "parallel_sum__ssm_conv_s4__glu_gated_reglu__prompt"
STAMP = "--stamp" in sys.argv


def opt(name, dflt):
    v = [x.split('=')[1] for x in sys.argv if x.startswith('--' + name + '=')]
    return type(dflt)(v[0]) if v else dflt


WS_H, WS_XT, WS_Y = 0x0, 0x700000, 0x900000
XTS, YS = 4096 + opt('xtp', 128), 8192 + opt('yp', 128)
WS_ST, WS_CS = 0xB00000, 0xB04000
WS_FH, WS_FY, WS_FL, WS_EP = 0xB10000, 0xB20000, 0xB28000, 0xB2C000
WS_TS = 0xB30000
WS_SIZE = 0xB80000
FSP = 1024
SLOT = [0, 16384, 32768, 49152]
XB = 32768
SC = 147456
UB = 33536
U1_OFF = 4640
U_CH = 9280
KC0, KC_CH, KC_CP = 16, 16656, 4160
YX = 32768
RX = 0
XR = 0
PS = [SC] + [XB + k * 16384 for k in range(2, 7)]
SPIN = 200000
FHW_AT, FH_AT, FH_POLL = opt('fhw', 2), opt('fh', 16), opt('fhp', 20)
FYW_AT, FY_AT, FY_POLL = opt('fyw', 6), opt('fy', 20), opt('fyp', 26)
FL_AT, FL_POLL = opt('fl', 20), opt('flp', 23)
OUTFL = 'sc1' if '--outsc1' in sys.argv else ''
SEL = opt('sel', 'a')
CV = opt('cv', 20)
PAT = opt('pat', 0)
WG = opt('wg', 4)

sX, sAre, sAim, sBre, sBim, sCre, sCim, sLdt, sDsk = 4, 6, 8, 10, 12, 14, 16, 18, 20
sWg, sWu, sWd, sOut, sDbg, sWs = 24, 26, 28, 30, 32, 34
rX, rW, rWd, rWs, rOut = "s[36:39]", "s[40:43]", "s[44:47]", "s[48:51]", "s[52:55]"
sw, sxcd, sj, sr1, sc1_, sjc, sr2, sc2, snonce = "s56", "s57", "s58", "s59", "s60", "s61", "s62", "s63", "s64"
sWoff, sWdoff, sDs, scnt = "s65", "s66", "s67", "s68"
sq, sXoff, sw4k, sWl, sMask = "s69", "s72", "s73", "s77", "s78"
sFL, stg, sUl, sUg, sH0, sH1, sKC, sHoff = "s80", "s81", "s82", "s83", "s86", "s87", "s88", "s89"
sST, sCS, sFHw, sFHr, sY = "s90", "s91", "s92", "s93", "s94"
sOdd = "s[22:23]"

vKC, vKZ, vUZ, vKX, vXR, vXD, vWD, vWF, vKL = 160, 168, 169, 170, 172, 180, 184, 188, 190
vDD, vDF, vCU, vCK, vN4, vN8, vCS, vF, vYW, vYR, vFH, vH = 200, 204, 208, 209, 210, 211, 212, 213, 214, 215, 217, 218
fC, fR, fKG, fQ, fG, vNo, vZ, vL16 = 220, 221, 222, 223, 226, 224, 225, 250

a = Asm()
slow = []
nstamp = [0]
tok, ltok = {}, {}


def stamp(kind="a"):
    if not STAMP or kind not in SEL:
        return
    k = nstamp[0]
    nstamp[0] += 1
    if k > 1:
        a.items.append(("raw", f"    v_writelane_b32 v254, s98, {k-1}"))
    a.items.append(("raw", f"    {CLK} s[98:99]"))


def poll(name, load, cmp_):
    a(cmp_)
    a(f"s_cbranch_vccnz L_slow_{name}")
    a(f"L_back_{name}:")
    slow.append(f"""L_slow_{name}:
s_mov_b32 {scnt}, 0
L_retry_{name}:
s_add_u32 {scnt}, {scnt}, 1
s_cmp_gt_u32 {scnt}, {SPIN}
s_cbranch_scc1 L_back_{name}
s_sleep 1
{load}
s_waitcnt vmcnt(0)
{cmp_}
s_cbranch_vccnz L_retry_{name}
s_branch L_back_{name}""")


def put(items):
    for e in items:
        if isinstance(e, tuple):
            if e[0] == "vt": tok[e[1]] = a.vm_tok()
            if e[0] == "lt": ltok[e[1]] = a.lg_tok()
            if e[0] == "wv": a.wait_vm(tok[e[1]])
            if e[0] == "wl": a.wait_lg(ltok[e[1]])
        else:
            a(e)


def weave(main, extra):
    nreal = sum(1 for e in extra if not isinstance(e, tuple))
    out, k, done = [], 0, 0
    for t, m in enumerate(main):
        out += m if isinstance(m, list) else [m]
        goal = -(-(nreal * (t + 1)) // len(main))
        while k < len(extra) and (isinstance(extra[k], tuple) or done < goal):
            out.append(extra[k])
            done += not isinstance(extra[k], tuple)
            k += 1
    return out


def cost(e):
    if isinstance(e, tuple):
        return 4 if e[0] in ("wv", "wl") else 0
    c = 0
    for l in e.split("\n"):
        op = l.split()[0]
        if op.startswith(("buffer_", "global_")):
            c += CV if "x4" in op else 12
        elif op.startswith("ds_write"):
            c += 28 if "b128" in op or "2_b64" in op else 14
        else:
            c += 4
    return c


def pack(main, extra, cap):
    base = [sum(cost(x) for x in m[1:]) for m in main]
    n, G = len(extra), len(main)
    cs = [cost(e) for e in extra]
    INF = 1 << 60
    best = [[INF] * (n + 1) for _ in range(G + 1)]
    frm = [[0] * (n + 1) for _ in range(G + 1)]
    best[0][0] = 0
    for g in range(G):
        for i in range(n + 1):
            if best[g][i] == INF:
                continue
            load = base[g]
            for j in range(i, n + 1):
                if j > i:
                    load += cs[j - 1]
                v = best[g][i] + 1000 * max(0, load - cap) + load * load // 16
                if v < best[g + 1][j]:
                    best[g + 1][j] = v
                    frm[g + 1][j] = i
    cuts, j = [], n
    for g in range(G, 0, -1):
        cuts.append((frm[g][j], j))
        j = frm[g][j]
    cuts.reverse()
    out = []
    for m, (i, j) in zip(main, cuts):
        out += m + extra[i:j]
    return out


def lines(txt, per=1):
    L = [l for l in txt.strip().split("\n")]
    return ["\n".join(L[i:i + per]) for i in range(0, len(L), per)]


ROT = opt('rot', 0)
HFL = opt('hfl', 'sc1').replace('_', ' ').replace('none', '')


def wrap(reg, step, lim, base):
    return f"s_add_u32 {reg}, {reg}, {step}\ns_cmp_eq_u32 {reg}, {lim}\ns_cselect_b32 {reg}, {base}, {reg}"


def dma4(m0, vo, srd, soff, step, fl=""):
    g = [m0, f"buffer_load_dwordx4 v{vo}, {srd}, {soff} offen {fl} lds"]
    for i in range(1, 4):
        g.append(f"buffer_load_dwordx4 v{vo+i}, {srd}, {soff} offen offset:{1024*i} {fl} lds")
    g.append(f"s_add_u32 {soff}, {soff}, {step}")
    return g


def w_unit(u):
    return dma4(f"s_add_u32 m0, {sWl}, {SLOT[u % 4]}", vWD, rW, sWoff, 32 * 3584)


def x_block(cb):
    return dma4(f"s_add_u32 m0, {sw4k}, {XB+cb*16384}", vXD, rX, sXoff, 128)


def wd_pair(kk):
    g = dma4(f"s_add_u32 m0, {sw4k}, {PS[(kk >> 1) % 6]}", vDD, rWd, sWdoff, 32 * 896)
    if ROT and kk % 4 == 2:
        g[-1] = wrap(sWdoff, 32 * 896, "s9", "s8")
    return g


CLK = "s_memtime" if "--cyc" in sys.argv else "s_memrealtime"
if STAMP:
    a(f"{CLK} s[100:101]")
a(f"""
s_cmp_ge_u32 s2, 256
s_cbranch_scc1 L_end
s_load_dwordx16 s[4:19], s[0:1], 0
s_load_dwordx16 s[20:35], s[0:1], 64
s_getpc_b64 s[70:71]
L_pc:
s_and_b32 {sxcd}, s2, 7
s_lshr_b32 {sj}, s2, 3
v_lshrrev_b32 v1, 6, v0
v_and_b32 v255, 63, v0
v_readfirstlane_b32 {sw}, v1
""")
a(f"""
s_and_b32 {sq}, {sj}, 3
s_lshl_b32 s74, {sq}, 6
v_lshl_add_u32 v2, v1, 4, v255
v_add_u32 v2, s74, v2
v_lshlrev_b32 v2, 7, v2
v_min_u32 v2, L_codeend-L_pc-4, v2
s_mov_b64 exec, 0xffff
global_load_dword v253, v2, s[70:71]
s_mov_b64 exec, -1
s_mov_b32 s38, {2048*896}
s_mov_b32 s39, 0x20000
s_mov_b32 s42, {448*3584}
s_mov_b32 s43, 0x20000
s_mov_b32 s50, {WS_SIZE}
s_mov_b32 s51, 0x20000
v_lshlrev_b32 v{vL16}, 4, v255
s_mov_b32 {sMask}, 0xffff0000
s_cmp_lt_u32 {sj}, 4
s_cbranch_scc1 L_helper
""")

a(f"""
s_sub_u32 {sj}, {sj}, 4
s_mul_i32 s74, {sxcd}, 28
s_add_u32 {sjc}, s74, {sj}
s_lshl_b32 s74, {sjc}, 10
s_lshl_b32 s75, {sw}, 8
s_add_u32 s74, s74, s75
v_lshl_add_u32 v4, v255, 2, s74
s_lshr_b32 s79, s74, 9
s_lshl_b32 s74, s79, 1
v_mov_b32 v5, s74
s_lshr_b32 {sc2}, {sj}, 2
s_lshr_b32 s74, {sxcd}, 1
s_lshl_b32 s74, s74, 2
s_add_u32 {sr1}, s74, {sq}
s_lshl_b32 {stg}, {sr1}, 2
s_add_u32 {stg}, {stg}, {sw}
s_mul_i32 {sXoff}, {stg}, {32*896}
s_lshl_b32 {sw4k}, {sw}, 12
s_and_b32 s74, {sxcd}, 1
s_mul_i32 s74, s74, 7
s_add_u32 {sc1_}, s74, {sc2}
s_lshl_b32 {sWoff}, {sc1_}, 8
s_lshr_b32 s84, {sw}, 1
s_and_b32 s85, {sw}, 1
s_lshl_b32 s74, s85, 13
s_lshl_b32 s75, s84, 12
s_add_u32 {sWl}, s74, s75
v_and_b32 v{fC}, 3, v255
v_bfe_u32 v{fR}, v255, 2, 2
v_lshrrev_b32 v{fKG}, 5, v255
v_lshrrev_b32 v{fQ}, 4, v255
v_and_b32 v{fG}, 1, v{fQ}
v_lshrrev_b32 v6, 3, v255
v_mul_u32_u24 v1, 896, v6
v_and_b32 v2, 7, v255
v_xor_b32 v2, v2, v{fQ}
v_lshl_add_u32 v{vXD}, v2, 4, v1
v_xor_b32 v{vXD+1}, 64, v{vXD}
v_add_u32 v{vXD+1}, {8*896-1024}, v{vXD+1}
v_add_u32 v{vXD+2}, {2*(8*896-1024)}, v{vXD}
v_add_u32 v{vXD+3}, {2*(8*896-1024)}, v{vXD+1}
s_lshl_b32 s74, s84, 4
v_add_u32 v1, s74, v{fR}
v_mul_u32_u24 v1, 3584, v1
v_lshl_add_u32 v1, v{fQ}, 6, v1
s_lshl_b32 s76, s85, 1
v_xor_b32 v2, s76, v{fC}
v_lshl_add_u32 v{vWD}, v2, 4, v1
v_add_u32 v{vWD+1}, {4*3584-1024}, v{vWD}
v_add_u32 v{vWD+2}, {2*(4*3584-1024)}, v{vWD}
v_add_u32 v{vWD+3}, {3*(4*3584-1024)}, v{vWD}
""")
if STAMP:
    a("v_mov_b32 v254, 0\ns_waitcnt lgkmcnt(0)\nv_writelane_b32 v254, s100, 0")
    nstamp[0] = 1
stamp(SEL[0])
a(f"""
s_waitcnt lgkmcnt(0)
global_load_ushort v134, v5, s[{sLdt}:{sLdt+1}]
global_load_dword v128, v4, s[{sAre}:{sAre+1}]
global_load_dword v129, v4, s[{sAim}:{sAim+1}]
global_load_dword v130, v4, s[{sBre}:{sBre+1}]
global_load_dword v131, v4, s[{sBim}:{sBim+1}]
global_load_dword v132, v4, s[{sCre}:{sCre+1}]
global_load_dword v133, v4, s[{sCim}:{sCim+1}]
global_load_ushort v135, v5, s[{sDsk}:{sDsk+1}]
s_mov_b32 s36, s{sX}
s_mov_b32 s37, s{sX+1}
s_bitcmp1_b32 {sw}, 0
s_cselect_b32 s40, s{sWu}, s{sWg}
s_cselect_b32 s41, s{sWu+1}, s{sWg+1}
s_cselect_b64 {sOdd}, -1, 0
""")
put(x_block(0) + w_unit(0) + [("vt", "u0")])
a(f"""
s_add_u32 s74, {sw4k}, {SC}
v_add_u32 v{vKX}, s74, v{vL16}
v_xor_b32 v{vKX+1}, 4096, v{vKX}
v_bfe_u32 v1, v255, 1, 2
v_lshlrev_b32 v7, 4, v1
v_lshl_add_u32 v7, v255, 6, v7
v_add_u32 v{vKL}, s74, v7
v_xor_b32 v{vKL+1}, 16, v{vKL}
v_xor_b32 v{vKL+2}, 32, v{vKL}
v_xor_b32 v{vKL+3}, 48, v{vKL}
v_lshl_add_u32 v7, v{fKG}, 3, v{fR}
v_lshlrev_b32 v7, 6, v7
v_bfe_u32 v8, v255, 1, 1
v_lshl_add_u32 v8, v{fG}, 1, v8
v_lshrrev_b32 v9, 1, v{fR}
v_xor_b32 v8, v8, v9
v_lshl_add_u32 v7, v8, 4, v7
v_and_b32 v10, 1, v255
v_lshl_add_u32 v7, v10, 3, v7
v_add_u32 v{vKL+4}, s74, v7
v_xor_b32 v{vKL+5}, 32, v{vKL+4}
v_add_u32 v{vKL+5}, 256, v{vKL+5}
s_lshl_b32 s76, s85, 5
v_xor_b32 v{vKL+6}, s76, v{vKL+4}
v_xor_b32 v{vKL+7}, s76, v{vKL+5}
v_and_b32 v11, 31, v255
v_bfe_u32 v12, v255, 1, 3
v_xor_b32 v7, v12, v{fKG}
v_lshlrev_b32 v7, 4, v7
v_lshl_add_u32 v7, v11, 7, v7
s_add_u32 s74, {sw4k}, {XB}
v_add_u32 v{vXR}, s74, v7
v_xor_b32 v{vXR+1}, 32, v{vXR}
v_xor_b32 v{vXR+2}, 64, v{vXR}
v_xor_b32 v{vXR+3}, 96, v{vXR}
v_add_u32 v{vXR+4}, 0x10000, v{vXR}
v_add_u32 v{vXR+5}, 0x10000, v{vXR+1}
v_add_u32 v{vXR+6}, 0x10000, v{vXR+2}
v_add_u32 v{vXR+7}, 0x10000, v{vXR+3}
v_lshlrev_b32 v13, 3, v{fC}
v_lshl_add_u32 v13, v{fR}, 6, v13
v_mul_u32_u24 v7, {8192+32}, v{fG}
v_lshl_add_u32 v7, v{fKG}, 11, v7
v_add_u32 v{vWF}, v7, v13
v_xor_b32 v{vWF+1}, 32, v{vWF}
v_lshl_add_u32 v7, v{fG}, 5, v13
v_lshl_add_u32 v7, v{fKG}, 9, v7
s_lshl_b32 s74, s85, 8
s_add_u32 s74, s74, {sw4k}
s_add_u32 s74, s74, 65536
v_add_u32 v{vDF}, s74, v7
v_xor_b32 v{vDF+1}, 256, v{vDF}
v_add_u32 v{vDF+2}, 0x10000, v{vDF}
v_add_u32 v{vDF+3}, 0x10000, v{vDF+1}
s_mul_i32 s74, {sw}, 448
v_lshl_add_u32 v7, v{fKG}, 2, v{fR}
v_add_u32 v7, s74, v7
v_mul_u32_u24 v7, 896, v7
v_lshl_add_u32 v7, v{fG}, 6, v7
v_lshl_add_u32 v{vDD}, v{fC}, 4, v7
v_add_u32 v{vDD+1}, {8*896-1024}, v{vDD}
v_add_u32 v{vDD+2}, {2*(8*896-1024)}, v{vDD}
v_add_u32 v{vDD+3}, {3*(8*896-1024)}, v{vDD}
v_lshlrev_b32 v{vN4}, 2, v11
v_lshlrev_b32 v{vN8}, 3, v11
""")
setup2 = lines(f"""s_mul_i32 {sKC}, s84, {KC_CH}
s_add_u32 {sKC}, {sKC}, {KC0}
s_lshl_b32 s74, s85, 10
s_sub_u32 s74, {sKC}, s74
s_add_u32 s74, s74, {16*255-12}
v_sub_u32 v{vKC}, s74, v{vL16}
v_add_u32 v{vKC+1}, {KC_CP+4}, v{vKC}
v_add_u32 v{vKC+2}, {2*(KC_CP+4)}, v{vKC}
v_add_u32 v{vKC+3}, {3*(KC_CP+4)}, v{vKC}
v_lshlrev_b32 v7, 9, v{fKG}
v_sub_u32 v7, v{vKC}, v7
v_subrev_u32 v{vKC+4}, {16*96}, v7
v_add_u32 v{vKC+5}, {KC_CP+4}, v{vKC+4}
v_add_u32 v{vKC+6}, {2*(KC_CP+4)}, v{vKC+4}
v_add_u32 v{vKC+7}, {3*(KC_CP+4)}, v{vKC+4}
v_and_b32 v11, 15, v255
v_mul_u32_u24 v7, {KC_CP+4}, v{fQ}
v_lshl_add_u32 v7, v11, 2, v7
v_add_u32 v{vKZ}, {sKC}, v7
v_lshlrev_b32 v7, 2, v11
v_lshl_add_u32 v{vCS}, v{fG}, 9, v7
v_min_u32 v7, 52, v7
v_mul_u32_u24 v8, {FSP}, v{fG}
v_add_u32 v{vFH}, v7, v8
s_mul_i32 s75, s84, {U_CH}
s_add_u32 s75, s75, {UB}
s_mul_i32 s74, s85, {U1_OFF}
s_add_u32 s74, s74, s75
v_min_u32 v7, 55, v255
v_lshl_add_u32 v{vUZ}, v7, 3, s74
s_lshl_b32 s74, s85, 11
s_add_u32 {sUl}, s75, s74
s_mul_i32 {sUg}, s79, {XTS}
s_add_u32 {sUg}, {sUg}, s74
s_add_u32 {sUg}, {sUg}, {WS_XT}
v_mul_u32_u24 v7, {U1_OFF}, v10
v_lshl_add_u32 v7, v12, 6, v7
v_lshl_add_u32 v7, v{fQ}, 4, v7
s_lshl_b32 s74, s85, 6
s_sub_u32 s75, s75, s74
s_add_u32 s75, s75, {448-384}
v_add_u32 v{vCU}, s75, v7
v_mul_u32_u24 v7, {KC_CP}, v{fC}
v_sub_u32 v8, v{fQ}, v{fR}
v_lshl_add_u32 v7, v8, 4, v7
s_sub_u32 s74, {sKC}, s74
s_add_u32 s74, s74, {16*255-64*62}
v_add_u32 v{vCK}, s74, v7
s_lshl_b32 s74, {sw}, 10
s_add_u32 s74, s74, {YX}
v_add_u32 v{vYW}, s74, v{vL16}
v_lshlrev_b32 v7, 8, v1
v_lshl_add_u32 v7, v6, 5, v7
v_lshl_add_u32 v7, v10, 3, v7
s_lshl_b32 s74, {sw}, 13
s_add_u32 s75, s74, {YX+4096}
v_add_u32 v{vYR}, s75, v7
s_add_u32 s74, s74, 8192
s_and_b32 s74, s74, 0x7fff
s_add_u32 s74, s74, {YX}
v_add_u32 v{vYR+1}, s74, v7
s_mul_i32 s74, s84, {112*1024}
v_add_u32 v{vH}, s74, v{vL16}
s_sub_u32 s74, {112*1024}, s74
v_add_u32 v{vH+1}, s74, v{vL16}
v_mov_b32 v{vZ}, 0""")
put(setup2[:opt('s2', len(setup2))])
setup2 = setup2[opt('s2', len(setup2)):]
a(f"""
v_lshlrev_b32 v134, 16, v134
v_mul_f32 v134, 0x3fb8aa3b, v134
v_exp_f32 v134, v134
v_cvt_pk_bf16_f32 v134, v134, v134
v_lshlrev_b32 v134, 16, v134
""")
stamp()

PA = [64, 96]
PB = 8
KF = [(160, 176, 192, 208), (224, 240, 80, 96)]
R1, R8, E, T = 146, [148, 150], 0, 2
l1s = [0, 1, 2, 3, 4, 5, 6, 7, 8, 256, 258, 260, 262, 264, 512, 516, 520, 768, 772, 776,
       1024, 1032, 1280, 1288, 1536, 1544, 1792, 1800]
ra = {l: 8 + 2 * i for i, l in enumerate(l1s)}
cols = [0, 1, 2, 3, 256, 256, 258, 260, 4, 5, 6, 7, 260, 260, 262, 264,
        512, 516, 520, 1024, 768, 772, 776, 1536, 1032, 1280, 1288, 1288, 1544, 1792, 1800, 1800]


def cmul(d, x, r, t):
    return [f"v_pk_mul_f32 v[{t}:{t+1}], v[{x}:{x+1}], v[{r}:{r+1}] op_sel_hi:[1,0]",
            f"v_pk_fma_f32 v[{d}:{d+1}], v[{x}:{x+1}], v[{r}:{r+1}], v[{t}:{t+1}] op_sel:[1,1,0] op_sel_hi:[0,1,1] neg_lo:[1,0,0]"]


def k_write(ck, i, cq):
    P = (PA[ck] + 16 * i) if i < 2 else (PB + 16 * (i - 2))
    return f"ds_write_b128 v{vKL+cq}, v[{P+4*cq}:{P+4*cq+3}]"


def k_reads(ck, i):
    fr = KF[ck][i]
    base = vKL + 6 if i < 2 else vKL + 4
    return "\n".join(f"ds_read_b64_tr_b16 a[{fr+4*s+2*rd}:{fr+4*s+2*rd+1}], v{base+rd} offset:{1024*s}"
                     for s in range(4) for rd in range(2))


def kgen_head(ck):
    L = []
    un = (lambda d, s: f"v_lshlrev_b32 v{d}, 16, v{s}") if ck == 0 else (lambda d, s: f"v_and_b32 v{d}, {sMask}, v{s}")
    L += [un(136 + i, 128 + i) for i in range(6)]
    L += ["v_mul_f32 v142, v134, v136", "v_mul_f32 v143, v134, v137",
          "v_mul_f32 v142, 0x3fb8aa3b, v142", "v_mul_f32 v143, 0.15915494, v143"]

    def ev(d, l):
        s = []
        if l == 1:
            s += ["v_exp_f32 v144, v142", "v_fract_f32 v145, v143"]
        else:
            f = {8: "0x41000000", 256: "0x43800000"}[l]
            s += [f"v_mul_f32 v144, {f}, v142", f"v_mul_f32 v145, {f}, v143", "v_exp_f32 v144, v144", "v_fract_f32 v145, v145"]
        s += [f"v_cos_f32 v{d}, v145", f"v_sin_f32 v{d+1}, v145"]
        return s, f"v_pk_mul_f32 v[{d}:{d+1}], v[{d}:{d+1}], v[144:145] op_sel_hi:[1,0]"
    wm = cmul(ra[0], 140, 138, T) + [f"v_pk_mul_f32 v[{ra[0]}:{ra[0]+1}], v[{ra[0]}:{ra[0]+1}], v[134:135] op_sel_hi:[1,0]"]
    for (d, l), fill in zip(((R1, 1), (R8[ck], 8), (E, 256)), wm):
        s, last = ev(d, l)
        L += s + [fill, last]
    for l in range(1, 9):
        L += cmul(ra[l], ra[l - 1], R1, T)
    for l in l1s[9:]:
        L += cmul(ra[l], ra[l - 256], E, T)
    for k in range(16):
        c0, c1 = ra[cols[2 * k]], ra[cols[2 * k + 1]]
        L += [f"v_cvt_pk_bf16_f32 v{PA[ck]+k}, v{c0}, v{c1}", f"v_cvt_pk_bf16_f32 v{PA[ck]+16+k}, -v{c0+1}, -v{c1+1}"]
    return L


def kgen_chain(ck):
    r8 = R8[ck]
    rb = lambda j: r8 if j == 1 else 4 + 2 * (j % 2)
    B = [f"v_cvt_pk_bf16_f32 v{PB}, 1.0, v{r8}", f"v_cvt_pk_bf16_f32 v{PB+16}, 0, v{r8+1}"]
    for j in range(2, 32):
        B += cmul(rb(j), rb(j - 1), r8, T)
        if j % 2:
            B += [f"v_cvt_pk_bf16_f32 v{PB+j//2}, v{rb(j-1)}, v{rb(j)}",
                  f"v_cvt_pk_bf16_f32 v{PB+16+j//2}, v{rb(j-1)+1}, v{rb(j)+1}"]
    return B


def k_pass(ck, i):
    return [k_write(ck, i, cq) for cq in range(4)] + [k_reads(ck, i)]


def at(stream, items):
    out = []
    for i, x in enumerate(stream):
        out += [y for p, y in items if p == i]
        out.append(x)
    return out + [y for p, y in items if p >= len(stream)]


def kgen_mfma(ck):
    f = KF[ck]
    return [f"v_mfma_f32_32x32x16_bf16 a[144:159], a[{f[s>>2]+4*(s&3)}:{f[s>>2]+4*(s&3)+3}], "
            f"a[{f[2+(s>>2)]+4*(s&3)}:{f[2+(s>>2)]+4*(s&3)+3}], "
            + ("0" if (ck == 0 and s == 0) else "a[144:159]") for s in range(8)]


def x_read(s):
    cb = s >> 2
    return f"ds_read_b128 a[{4*s}:{4*s+3}], v{vXR + (0 if cb < 4 else 4) + (s & 3)} offset:{(cb % 4)*16384}"


warm = [f"""s_cmp_eq_u32 {sw}, 0
s_cselect_b32 s12, s{sWg}, s{sWu}
s_cselect_b32 s13, s{sWg+1}, s{sWu+1}
s_cmp_lt_u32 {sw}, 2
s_cselect_b32 s12, s12, s{sWd}
s_cselect_b32 s13, s13, s{sWd+1}
s_mul_i32 s74, {sjc}, {56*128}
v_min_u32 v251, 55, v255
v_lshl_add_u32 v251, v251, 7, s74
global_load_dword v252, v251, s[12:13]"""]
stamp("k")
early = x_block(1) + [("vt", "x1")] + w_unit(1) + [("vt", "u1")]
put(weave(kgen_head(0), early))
stamp("k")
put(weave(kgen_head(1), warm))
stamp("ak"[SEL == "k"])
RD = opt('rd', 3)
p0, p1, p2 = k_pass(0, 0), k_pass(0, 1), k_pass(0, 2)
put(at(kgen_chain(0), list(zip((0, 7, 14, 21, 21 + RD), p0)) + list(zip((30, 37, 44, 51, 51 + RD), p1))
       + list(zip((62, 70, 80, 92), p2))))
stamp("k")
p3, q0, q1, q2 = k_pass(0, 3), k_pass(1, 0), k_pass(1, 1), k_pass(1, 2)
ch = kgen_chain(1)
put([p2[4], p3[0], p3[1]] + at(ch[2:], [(0, p3[2]), (4, p3[3]), (4, ch[0]), (4, ch[1]), (4 + RD, p3[4])]
                                + list(zip((14, 20, 26, 32, 32 + RD), q0)) + list(zip((42, 48, 54, 60, 60 + RD), q1))
                                + list(zip((70, 76, 82, 90), q2))))
stamp("ak"[SEL == "k"])
sc = lines(f"""s_lshl_b32 {sWdoff}, {sc2}, 7
s_mov_b32 s44, s{sWd}
s_mov_b32 s45, s{sWd+1}
s_mov_b32 s46, {1792*896}
s_mov_b32 s47, 0x20000
s_mov_b32 s48, s{sWs}
s_mov_b32 s49, s{sWs+1}
s_mov_b32 s52, s{sOut}
s_mov_b32 s53, s{sOut+1}
s_mov_b32 s54, {2048*896}
s_mov_b32 s55, 0x20000
s_lshl_b32 s74, {sxcd}, 2
s_add_u32 {sr2}, s74, {sq}
s_mul_i32 {sFL}, {sxcd}, {FSP}
s_add_u32 {sFL}, {sFL}, {WS_FL}
s_lshl_b32 {sST}, {stg}, 8
s_add_u32 {sST}, {sST}, {WS_ST}
s_lshl_b32 {sCS}, {sc1_}, 10
s_add_u32 {sCS}, {sCS}, {WS_CS}
v_lshlrev_b32 v135, 16, v135""")
lp = k_pass(1, 3)
put(weave(kgen_mfma(0), [q2[4], lp[0]] + sc[:7] + [lp[1]] + sc[7:14] + [lp[2]] + sc[14:]
          + [lp[3], ("wv", "u0")] + [x_read(s) for s in range(4)] + [lp[4]]))
stamp("k")
a("s_waitcnt lgkmcnt(0)")
stamp("k")
a("s_barrier")
stamp("ak"[SEL == "k"])

fillg = {s: [] for s in range(28)}
fillg[2] += lines(f"""v_readfirstlane_b32 {sDs}, v135
s_mul_i32 {sH0}, {stg}, {112*1024}
s_lshl_b32 s74, {sc1_}, 13
s_add_u32 {sH0}, {sH0}, s74
s_add_u32 {sH1}, {sH0}, 4096
s_mul_i32 s74, {stg}, {FSP}
s_lshl_b32 s75, {sc1_}, 2
s_add_u32 s74, s74, s75
s_add_u32 {sFHw}, s74, {WS_FH}""")
fillg[3] += [f"v_accvgpr_read_b32 v{128+r}, a{144+r}" for r in range(8)]
fillg[2] += []
fillg[4] += [f"ds_read_b128 v[136:139], v{vKX+1}", f"ds_read_b128 v[140:143], v{vKX+1} offset:1024", ("lt", "kr")]
fillg[5] += lines(f"""s_mul_i32 {sFHr}, {sr2}, {2*FSP}
s_add_u32 {sFHr}, {sFHr}, {WS_FH}
s_mul_i32 {sHoff}, {sr2}, {2*112*1024}
s_mul_i32 s74, {sw}, {28*1024}
s_add_u32 s10, {sHoff}, s74""")
fillg[6] += [f"s_lshl_b32 s3, {sq}, 1\ns_add_u32 s3, s3, {sc2}" if ROT == 1 else f"s_mov_b32 s3, {sc2 if ROT else 0}",
             "s_sub_u32 s74, s3, 7\ns_cselect_b32 s3, s3, s74",
             f"s_mov_b32 s8, {sWdoff}\ns_add_u32 s9, s8, {448*896}",
             f"s_mul_i32 s74, s3, {64*896}\ns_add_u32 {sWdoff}, {sWdoff}, s74",
             "s_add_u32 s74, s3, 4\ns_sub_u32 s75, s74, 7\ns_cselect_b32 s74, s74, s75",
             f"s_lshl_b32 s74, s74, 12\ns_add_u32 {sHoff}, s10, s74", f"s_add_u32 s11, s10, {28*1024}"]
fillg[7] += [f"v_add_f32 v{128+r}, v{128+r}, v{136+r}" for r in range(8)]
fillg[9] += lines(f"""v_cmp_eq_u32 vcc, 0, v255
v_mov_b32 v140, {sDs}
s_mov_b32 s74, 0xaaaaaaaa
s_mov_b32 s75, 0xaaaaaaaa
v_cndmask_b32 v140, 0, v140, vcc
v_add_f32 v140, v128, v140
v_cndmask_b32 v141, v131, v132, s[74:75]
v_cndmask_b32 v142, v133, v134, s[74:75]""")
fillg[11] += lines(f"""v_cvt_pk_bf16_f32 v144, v132, v132
v_cvt_pk_bf16_f32 v145, v132, v141
v_cvt_pk_bf16_f32 v146, v131, v131
v_cvt_pk_bf16_f32 v147, v131, v131
v_cvt_pk_bf16_f32 v148, v134, v134
v_cvt_pk_bf16_f32 v149, v134, v142
v_cvt_pk_bf16_f32 v150, v133, v133
v_cvt_pk_bf16_f32 v151, v133, v133""")
fillg[13] += lines(f"""v_cvt_pk_bf16_f32 v136, v135, v134
v_cvt_pk_bf16_f32 v137, v133, v132
v_cvt_pk_bf16_f32 v138, v131, v130
v_cvt_pk_bf16_f32 v139, v129, v140
v_cvt_pk_bf16_f32 v140, v130, v130
v_cvt_pk_bf16_f32 v141, v129, v129
v_cvt_pk_bf16_f32 v142, v129, v128
v_cvt_pk_bf16_f32 v143, v128, v128""")
fillg[15] += [f"v_cndmask_b32 v{136+r}, v{136+r}, v{140+r}, {sOdd}" for r in range(4)]
fillg[17] += lines(f"""s_mul_i32 {sY}, {sjc}, {YS}
s_lshl_b32 s74, {sw}, 11
s_add_u32 {sY}, {sY}, s74
s_add_u32 {sY}, {sY}, {WS_Y}""")
fillg[19] += [f"v_mov_b32 v{r}, 0" for r in (190, 191, 193, 194)]
fillg[21] += [f"v_mov_b32 v{r}, 0" for r in (195, 196, 198, 199)]


def wd_read(kk, r):
    off = PS[(kk >> 1) % 6] - 65536 + (kk & 1) * 2048
    base = vDF if off < 65536 else vDF + 2
    return [f"ds_read_b64_tr_b16 a[{r+4*da+2*rd}:{r+4*da+2*rd+1}], v{base+da} offset:{off % 65536+rd*1024}"
            for da in range(2) for rd in range(2)]


def wd_move(kk):
    return wd_read(kk, 8 * kk)


def wfrag_read(s, t, r):
    off = SLOT[(s >> 1) % 4] + (s & 1) * 4096 + (t >> 1) * 256
    return [f"ds_read_b64_tr_b16 a[{r+2*rd}:{r+2*rd+1}], v{vWF+(t & 1)} offset:{off+rd*1024}" for rd in range(2)]


put(pack([[m] + wfrag_read(0, t, 112 + 4 * t) for t, m in enumerate(kgen_mfma(1))], w_unit(2) + [("vt", "u2")] + fillg[2], 24))
fillg[2] = []
put(x_block(2) + [("vt", "x2")])
put([f"ds_write_b128 v{vKX}, a[152:155]", f"ds_write_b128 v{vKX}, a[156:159] offset:1024", ("lt", "kx")])
stamp("k")

FL_LOAD = f"buffer_load_dword v{vF}, v{vN4}, {rWs}, {sFL} offen sc1"
F_CMP = f"v_cmp_ne_u32 vcc, {snonce}, v{vF}"
NC_LOAD = f"global_load_dword v{vNo}, v{vZ}, s[{sDbg}:{sDbg+1}] sc1"
NC_CMP = f"v_cmp_eq_u32 vcc, 0, v{vNo}"
carry, pre = [], []
for s in range(25):
    if s % 2 == 0 and s > 0:
        stamp("g")
    if 1 <= s <= 4:
        stamp("k")
    extra, dma = [], None
    if s % 2 == 1:
        u = (s + 1) // 2
        lt = {1: "x1", 5: "kr"}.get(s)
        a.wait_both(tok[f"u{u}"], ltok[lt] if lt else None)
        a("s_barrier")
        if u + 2 < 14:
            dma = ([], w_unit(u + 2), f"u{u+2}")
    if s == 0:
        extra += [("wv", "x1")] + [x_read(k) for k in range(4, 8)] + [("lt", "x1")]
    if s % 2 == 0 and 2 <= s <= 8:
        dma = ([], x_block(2 + s // 2), f"x{2+s//2}")
    if s % 2 == 0 and 4 <= s <= 12:
        cb = s // 2
        extra += [("wv", f"x{cb}")] + [x_read(k) for k in range(4 * cb, 4 * cb + 4)] + [("lt", f"x{cb}")]
    if s % 2 == 0 and 10 <= s <= 20:
        p = (s - 10) // 2
        dma = ([("wl", f"x{p+1}")] if p else [], wd_pair(2 * p), f"wd{2*p}")
    if 14 <= s <= 21:
        kk = s - 14
        if kk % 2 == 0:
            extra += [("wv", f"wd{kk}")]
        extra += wd_move(kk) + [("lt", f"mv{kk}")]
    if s in (22, 23, 24):
        kk = 12 + 2 * (s - 22)
        dma = ([("wl", f"mv{kk-11}")], wd_pair(kk), f"wd{kk}")
    if s == 12:
        extra += [NC_LOAD]
    if s == 16:
        poll("nc", NC_LOAD, NC_CMP)
        a(f"v_readfirstlane_b32 {snonce}, v{vNo}")
    if s == FL_AT:
        extra += [FL_LOAD]
    if s == FL_POLL:
        poll("fl", FL_LOAD, F_CMP)
        extra += [f"buffer_load_dword v{vF}, v{vN8}, {rWs}, {sST} offen sc1"]
    if FL_POLL <= s < FL_POLL + 2:
        extra += [f"buffer_load_dword a{160+t}, v{vCS}, {rWs}, {sCS} offen offset:{64*t} sc1"
                  for t in range(4 * (s - FL_POLL), 4 * (s - FL_POLL) + 4)]
    extra += fillg[s]
    AB = opt('ab', '')
    if dma and (('x' in AB and dma[2][0] == 'x') or ('w' in AB and dma[2][0] == 'w') or ('u' in AB and dma[2][0] == 'u')):
        dma = (dma[0], ["s_nop 0"] * 6, dma[2])
    main = []
    for t in range(8):
        if t % WG == 0 and s > 0:
            (main[-1] if main else pre).append(("wl", f"f{t+WG-1}" if not (PAT and t + WG - 1 == 7) else "f6"))
        c = "0" if s == 0 else f"v[{16*t}:{16*t+15}]"
        m = [f"v_mfma_f32_32x32x16_bf16 v[{16*t}:{16*t+15}], a[{112+4*t}:{115+4*t}], a[{4*s}:{4*s+3}], {c}"]
        rd = wfrag_read(s + 1, t, 112 + 4 * t) + [("lt", f"f{t}")]
        if dma and t == 0:
            m += dma[0] + [dma[1][0]]
        if PAT and t % 2 == 1 and not (s == 24 and t == 7):
            carry = rd
        else:
            m += carry + rd
            carry = []
        if dma and t % 2 == 1:
            m.append(dma[1][1 + t // 2])
            if t == 7:
                m += [("vt", dma[2]), dma[1][5]]
        main.append(m)
    put(pre + pack(main, extra, 24))
    pre = []
stamp("g")
a.wait_vm(tok["u13"])
a("s_barrier")
put(wfrag_read(26, 0, 168) + wfrag_read(27, 0, 172))
first = [f"v_cmp_gt_u32 vcc, 32, v255", "v_mov_b32 v152, 0", "v_mov_b32 v153, 0",
         f"s_add_u32 m0, {sUl}, {U1_OFF+448}", f"buffer_load_dwordx4 v{vL16}, {rWs}, {sUg} offen sc1 lds",
         f"buffer_load_dwordx4 v{vL16}, {rWs}, {sUg} offen offset:1024 sc1 lds",
         f"v_cndmask_b32 v192, 0, v{vF}, vcc\nv_cndmask_b32 v197, 0, v{vF}, vcc"]
second = [f"s_sub_u32 {sUg}, {sUg}, 2\ns_add_u32 m0, {sUl}, 448", f"buffer_load_dwordx4 v{vL16}, {rWs}, {sUg} offen sc1 lds",
          f"buffer_load_dwordx4 v{vL16}, {rWs}, {sUg} offen offset:1024 sc1 lds", ("vt", "u")]
main, epi = [], []
for t in range(8):
    r = 168 + 8 * (t % 2)
    cb = (192, 196, 190, 194)[t & 3]
    ops = [(f"a[{112+4*t}:{115+4*t}]", "a[100:103]"), (f"a[{r}:{r+3}]", "a[104:107]"), (f"a[{r+4}:{r+7}]", "a[108:111]"),
           (f"a[{160+(t & 4)}:{163+(t & 4)}]", f"v[{cb}:{cb+3}]")]
    for k, (A, B) in enumerate(ops):
        m = [f"v_mfma_f32_32x32x16_bf16 v[{16*t}:{16*t+15}], {A}, {B}, v[{16*t}:{16*t+15}]"]
        if t < 7 and k in (0, 1):
            m += wfrag_read(26 + k, t + 1, 168 + 8 * ((t + 1) % 2) + 4 * k)
        main.append(m)
    b = 16 * t
    L = [f"v_max_f32 v{b+r}, 0, v{b+r}" for r in range(8)]
    if t < 6:
        L += [f"v_mul_f32 v{b+r}, v{b+r}, v{b+8+r}" for r in range(8)]
    else:
        L += [f"v_pk_mul_f32 v[{b+r}:{b+r+1}], v[{b+r}:{b+r+1}], v[{b+8+r}:{b+9+r}]" for r in range(0, 8, 2)]
    L += [f"v_cvt_pk_bf16_f32 v{b+8+r}, v{b+2*r}, v{b+2*r+1}" for r in range(4)]
    L += [f"buffer_store_dwordx4 v[{b+8}:{b+11}], v{vL16}, {rWs}, {(sH0, sH1)[t >> 2]} offen offset:{1024*(t & 3)} sc1"]
    epi.append(L)
stamp("t")
put(pack(main[:3], first, 24) + pack(main[3:6], second, 24))
for t in range(6):
    stamp("t")
    put(pack(main[4 * t + 6:4 * t + 10], epi[t], 24))
stamp("t")
put(pack(main[30:], epi[6][:8], 24))
rest = epi[6][8:] + epi[7]
stamp()
stamp("t")
a("s_barrier")
stamp("t")


def octet_writes(d, ar, off):
    return [f"ds_write_b128 v{ar+3}, v[{d}:{d+3}] offset:{off}",
            f"ds_write2_b64 v{ar+1}, v[{d}:{d+1}], v[{d+2}:{d+3}] offset0:{off//8} offset1:{off//8+1}"] + \
           [f"ds_write2_b32 v{ar+c}, v{d+k}, v{d+k+1} offset0:{off//4+k} offset1:{off//4+k+1}" for c in (0, 2) for k in (0, 2)]


put(weave(rest, octet_writes(136, vKC, 0) + [f"ds_write_b32 v{vKZ}, v152 offset:{4096-12}", f"ds_write_b64 v{vUZ}, v[152:153]"]))
tok["h"] = a.vm_tok()
stamp("t")
a(f"s_mov_b64 exec, {sOdd}")
put(octet_writes(144, vKC + 4, 512) + octet_writes(148, vKC + 4, 0))
a("s_mov_b64 exec, -1")
stamp("t")
a(f"s_andn2_b64 exec, 1, {sOdd}")
a.wait_vm(tok["u"])
a(f"""ds_write_b16 v{vUZ}, v152 offset:448
s_mov_b64 exec, -1
s_waitcnt lgkmcnt(0)""")
stamp("t")
a("s_barrier")
stamp()
stamp("t")


def a_read(n):
    return f"ds_read_b128 a[{128+4*(n % 4)}:{131+4*(n % 4)}], v{vCK} offset:{64*(62-2*n)}"


def u_read(be, i):
    return f"ds_read_b128 v[{16*be+4*i}:{16*be+4*i+3}], v{vCU} offset:{512*be-128*i+384}"


NH = opt('nh', 12)
ORD = list(range(16, 28)) + list(range(16))


def h_load(i):
    g = []
    for ta in range(2):
        r = 96 + 8 * (i % NH) + 4 * ta
        g.append(f"buffer_load_dwordx4 v[{r}:{r+3}], v{vH+ta}, {rWs}, {sHoff} offen offset:{1024*(i % 4)} {HFL}")
    if i % 4 == 3:
        if ROT:
            g[-1] += "\n" + wrap(sHoff, 4096, "s11", "s10")
        else:
            g[-1] += f"\ns_add_u32 {sHoff}, {sHoff}, 4096" if i != 11 else f"\ns_sub_u32 {sHoff}, {sHoff}, {24*1024}"
    return g


put([a_read(0)] + [u_read(be, 0) for be in range(8)] + [a_read(1), a_read(2)])
FH_LOAD = f"buffer_load_dword v{vF}, v{vFH}, {rWs}, {sFHr} offen sc1"
fill = {n: [] for n in range(32)}
for i in range(1, 4):
    fill[i - 1] += [u_read(be, i) for be in range(8)]
fill[2] += [("lt", "ub")]
fill[FHW_AT] += [("wv", "h"), f"s_mov_b64 exec, 1\nbuffer_store_dword v{vNo}, v{vZ}, {rWs}, {sFHw} offen sc1\ns_mov_b64 exec, -1"]
fill[1] = wd_pair(18) + [("vt", "wd18")] + fill[1]
for kk in range(8, 16):
    n = 3 + (kk - 8)
    if kk % 2 == 0:
        fill[n] += [("wv", f"wd{kk}")]
    fill[n] += wd_move(kk) + [("lt", f"mv{kk}")]
    if kk % 2 == 1:
        fill[n + 2] += [("wl", f"mv{kk}")] + wd_pair(kk + 11) + [("vt", f"wd{kk+11}")]
YB = opt('yb', 15)
fill[FH_AT] += [FH_LOAD]
for j in range(7):
    fill[(YB + 1, YB + 2, YB + 3, max(17, YB + 4), 21, 25, 29)[j]] += [f"ds_write_b128 v{vYW}, a[{224+4*j}:{227+4*j}] offset:{4096*((j+1) % 8)}"]
hl = sum((h_load(kk) for kk in range(NH)), [])
for n in range(FH_POLL, 32):
    if len(hl) > 4:
        fill[n] += [hl.pop(0)]
for P in range(8):
    for i in range(4):
        n = 4 * P + i
        if n % 4 == 0 or n in (2, 6, 10):
            stamp("c")
        if n == YB:
            a.wait_lg(ltok["ub"])
            a("s_barrier")
        if n == FH_POLL:
            poll("fh", FH_LOAD, F_CMP)
        main = []
        for be in range(8 - P):
            j = P + be
            c = "0" if n == 0 else f"a[{224+4*j}:{227+4*j}]"
            main.append(f"v_mfma_f32_16x16x32_bf16 a[{224+4*j}:{227+4*j}], a[{128+4*(n % 4)}:{131+4*(n % 4)}], v[{16*be+4*i}:{16*be+4*i+3}], {c}")
        put(pack([[m] for m in main], ([a_read(n + 3)] if n + 3 < 32 else []) + fill[n], 8))
stamp()
stamp("f")
put(hl[:2])
a(f"ds_write_b128 v{vYW}, a[252:255]")
put(hl[2:4])
stamp("f")
a("s_waitcnt lgkmcnt(0)\ns_barrier")
stamp("f")
for jj in range(2):
    for src in range(4):
        r = 64 + 16 * jj + 4 * src
        for ph in range(2):
            a(f"ds_read_b64 v[{r+2*ph}:{r+2*ph+1}], v{vYR+jj} offset:{1024*src+16*ph}")
put(hl[4:])
stamp("f")
for jj in range(2):
    r = 64 + 16 * jj
    a(f"""
v_pk_add_f32 v[{r}:{r+1}], v[{r}:{r+1}], v[{r+4}:{r+5}]
v_pk_add_f32 v[{r+2}:{r+3}], v[{r+2}:{r+3}], v[{r+6}:{r+7}]
v_pk_add_f32 v[{r+8}:{r+9}], v[{r+8}:{r+9}], v[{r+12}:{r+13}]
v_pk_add_f32 v[{r+10}:{r+11}], v[{r+10}:{r+11}], v[{r+14}:{r+15}]
v_cvt_pk_bf16_f32 v{r+4}, v{r}, v{r+8}
v_cvt_pk_bf16_f32 v{r+5}, v{r+2}, v{r+10}
v_cvt_pk_bf16_f32 v{r+6}, v{r+1}, v{r+9}
v_cvt_pk_bf16_f32 v{r+7}, v{r+3}, v{r+11}
buffer_store_dwordx4 v[{r+4}:{r+7}], v{vL16}, {rWs}, {sY} offen offset:{1024*jj} sc1
""")
tok["y"] = a.vm_tok()
stamp()
stamp("f")

XS = lambda g, e: (82 if g < 3 else 192 - 12) + 4 * g + 2 * e
FY_LOAD = f"buffer_load_dword v{vF}, v{vN4}, {rWs}, s80 offen sc1"
fill = {k: [] for k in range(28)}
fill[0] += lines(f"""s_lshr_b32 s74, {sjc}, 5
s_lshl_b32 s74, s74, 2
s_add_u32 s74, s74, {sw}
s_mul_i32 s74, s74, {FSP}
s_and_b32 s75, {sjc}, 31
s_lshl_b32 s75, s75, 2
s_add_u32 s74, s74, s75
s_add_u32 s95, s74, {WS_FY}""", 2)
fill[FYW_AT] += [("wv", "y"), f"s_mov_b64 exec, 1\nbuffer_store_dword v{vNo}, v{vZ}, {rWs}, s95 offen sc1\ns_mov_b64 exec, -1"]
fill[1] += lines(f"""s_lshl_b32 s80, {sc2}, 2
s_lshr_b32 s74, {sr2}, 3
s_add_u32 s80, s80, s74
s_mul_i32 s80, s80, {FSP}
s_add_u32 s80, s80, {WS_FY}
s_lshl_b32 s74, {sr2}, 1
s_add_u32 s74, s74, s84
s_lshl_b32 s92, s74, 5""", 2)
fill[2] += lines(f"""s_lshl_b32 s74, {sc2}, 1
s_add_u32 s74, s74, s85
s_lshl_b32 s93, s74, 6
s_mul_i32 s74, s92, 896
s_add_u32 s12, s74, s93
v_lshrrev_b32 v230, 2, v255
v_mul_u32_u24 v230, 896, v230
v_xor_b32 v231, v{fC}, v{fQ}
v_lshl_add_u32 v232, v231, 4, v230
v_add_u32 v233, {16*896-1024}, v232""", 3)
fill[3] += lines(f"""s_lshl_b32 s13, {sw}, 11
s_add_u32 m0, s13, {XR}
v_mul_u32_u24 v234, 224, v{vN4}
buffer_load_dwordx4 v232, {rX}, s12 offen lds
buffer_load_dwordx4 v233, {rX}, s12 offen offset:1024 lds""", 2) + [("vt", "xr")]
fill[4] += lines(f"""v_lshl_add_u32 v234, v{fKG}, 4, v234
v_lshlrev_b32 v230, 4, v{fR}
v_lshl_add_u32 v230, v{vN4}, 4, v230
v_lshl_add_u32 v230, v{fKG}, 3, v230
v_add_u32 v236, s13, v230
v_xor_b32 v237, 16, v236
v_xor_b32 v238, 32, v236
v_xor_b32 v239, 48, v236""", 2)
fill[5] += lines(f"""s_lshl_b32 s74, s92, 3
s_add_u32 s74, s74, {WS_ST+4}
buffer_load_dword v80, v{vN8}, {rWs}, s74 offen sc1
v_mul_u32_u24 v235, {2*YS}, v{fKG}
v_add_u32 v235, v235, v{vN4}""", 2)
fill[6] += lines(f"""s_mul_i32 s74, s93, {YS//4}
s_lshl_b32 s75, s92, 2
s_add_u32 s74, s74, s75
s_add_u32 s96, s74, {WS_Y}
s_mul_i32 s74, {sw}, {3*4096}
s_add_u32 s74, s74, {RX}
v_add_u32 v240, s74, v{vL16}""", 2)
for k in range(1, 4):
    fill[9 + k] += [f"s_xor_b32 s74, {sw}, {k}\ns_mul_i32 s74, s74, {3*4096}",
                    f"s_add_u32 s74, s74, {RX+(k-1)*4096}\nv_add_u32 v{240+k}, s74, v{vL16}"]
fill[FY_AT] += [FY_LOAD]
fill[14] += [("wv", "xr")] + [f"ds_read_b64 v[{64+2*g}:{65+2*g}], v{236+g} offset:{XR}" for g in range(4)] + [("lt", "xr")]
for g in range(4):
    for e in range(2):
        fill[16 + g] += [f"v_lshlrev_b32 v{XS(g, e)}, 16, v{64+2*g+e}",
                         f"v_and_b32 v{XS(g, e)+1}, {sMask}, v{64+2*g+e}"]
fill[22] += [("wl", "xr"), "s_barrier"]
for g in range(4):
    for e in range(2):
        fill[min(27, FY_POLL + g // 2)] += [f"buffer_load_dword v{72+2*g+e}, v235, {rWs}, s96 offen sc1\ns_add_u32 s96, s96, {YS if e == 0 else 3*YS}"]
DEF = opt('def', NH)
put([("wv", "wd16")] + wd_read(16, 128))
late = []
for i in range(28):
    kk = ORD[i]
    if i % 2 == 0 and i > 0:
        stamp("h")
    if i < 14:
        stamp("j")
    extra = []
    if i + 1 < 12:
        if (kk + 1) % 2 == 0:
            extra += [("wv", f"wd{kk+1}")]
        extra += wd_read(kk + 1, 128 + 8 * ((kk + 1) % 2))
    if i == FY_POLL:
        poll("fy", FY_LOAD, F_CMP)
    main = []
    for ta in range(2):
        for da in range(2):
            acc = 16 * (da + 2 * ta)
            c = "0" if i == 0 else f"v[{acc}:{acc+15}]"
            fa = (8 * kk if kk < 16 else 128 + 8 * (kk % 2)) + 4 * da
            fb = 96 + 8 * (i % NH) + 4 * ta
            m = [f"v_mfma_f32_32x32x16_bf16 v[{acc}:{acc+15}], a[{fa}:{fa+3}], v[{fb}:{fb+3}], {c}"]
            if acc == 0 and i >= 28 - DEF:
                late.append(m)
                continue
            if da == 1 and i + NH < 28:
                m.append(h_load(i + NH)[ta])
            main.append(m)
    AB = opt('ab', '')
    fl_ = fill[i]
    if 'X' in AB:
        fl_ = [e for e in fl_ if isinstance(e, tuple) or not (" lds" in e or "v80," in e)]
    if 'Y' in AB and i == FYW_AT:
        fl_ = [e for e in fl_ if e != ("wv", "y")]
    if 'D' in AB:
        extra = [e for e in extra if not isinstance(e, tuple)]
    put(pack(main, extra + fl_, 24))
stamp()
stamp("f")
wr = [f"ds_write_b128 v240, v[{16*k+4*g}:{16*k+4*g+3}] offset:{(k-1)*4096+1024*g}" for k in range(1, 4) for g in range(4)]
put(weave(late, wr) if late else wr)
stamp("f")
a("s_waitcnt lgkmcnt(0)")
stamp("f")
a("s_barrier")
stamp("f")
for g in range(4):
    for k in range(1, 4):
        a(f"ds_read_b128 v[{16*k+4*g}:{16*k+4*g+3}], v{240+k} offset:{1024*g}")
stamp("f")
for g in range(4):
    for e in range(2):
        yr, d = 72 + 2 * g + e, XS(g, e)
        a(f"""
v_lshlrev_b32 v112, 16, v{yr}
v_and_b32 v113, {sMask}, v{yr}
v_pk_add_f32 v[{d}:{d+1}], v[{d}:{d+1}], v[112:113]
""")
stamp("f")
for g in range(4):
    for e in range(2):
        r = 4 * g + 2 * e
        for k in range(1, 4):
            a(f"v_pk_add_f32 v[{r}:{r+1}], v[{r}:{r+1}], v[{16*k+r}:{16*k+r+1}]")
        a(f"v_pk_fma_f32 v[{r}:{r+1}], v[{r}:{r+1}], v[80:81], v[{XS(g, e)}:{XS(g, e)+1}] op_sel_hi:[1,0,1]")
    a(f"v_cvt_pk_bf16_f32 v{116+2*g}, v{4*g}, v{4*g+1}\nv_cvt_pk_bf16_f32 v{117+2*g}, v{4*g+2}, v{4*g+3}")
    if g % 2 == 1:
        b = 116 + 2 * (g - 1)
        a(f"v_permlane32_swap_b32 v{b}, v{b+2}\nv_permlane32_swap_b32 v{b+1}, v{b+3}")
        a(f"buffer_store_dwordx4 v[{b}:{b+3}], v234, {rOut}, s12 offen offset:{16*(g-1)} {OUTFL}")
        stamp("f")
stamp()


def stamp_out():
    if not STAMP:
        return
    a(f"""
s_waitcnt vmcnt(0) lgkmcnt(0)
v_writelane_b32 v254, s98, {nstamp[0]-1}
{CLK} s[98:99]
s_waitcnt lgkmcnt(0)
v_writelane_b32 v254, s98, 15
s_lshl_b32 s84, s2, 2
s_add_u32 s84, s84, {sw}
s_lshl_b32 s84, s84, 6
s_add_u32 s84, s84, {WS_TS}
v_lshlrev_b32 v1, 2, v255
s_mov_b64 exec, 0xffff
buffer_store_dword v254, v1, {rWs}, s84 offen
""")


stamp_out()
a("s_endpgm")

a.reset()
NC_LOAD = f"global_load_dword v202, v203, s[{sDbg}:{sDbg+1}] sc1"
NC_CMP = "v_cmp_eq_u32 vcc, 0, v202"
shq = "s59"
a(f"""
L_helper:
s_lshl_b32 {shq}, {sxcd}, 2
s_add_u32 {shq}, {shq}, {sj}
v_mov_b32 v203, 0
v_lshrrev_b32 v1, 2, v255
s_lshl_b32 s83, {shq}, 2
s_add_u32 s83, s83, {sw}
s_lshl_b32 s72, s83, 4
v_add_u32 v4, s72, v1
v_mul_u32_u24 v5, 896, v4
v_and_b32 v2, 3, v255
v_lshl_add_u32 v5, v2, 4, v5
s_lshr_b32 s73, {sxcd}, 1
s_lshl_b32 s73, s73, 2
s_add_u32 s60, s73, {sj}
s_min_u32 s73, s60, 13
s_and_b32 s74, {sxcd}, 1
s_mul_i32 s74, s74, 14
s_add_u32 s61, s73, s74
s_lshr_b32 s73, s61, 1
s_lshl_b32 s82, s73, 8
v_lshrrev_b32 v6, 4, v255
s_lshl_b32 s75, {sw}, 2
v_add_u32 v6, s75, v6
v_mul_u32_u24 v7, 3584, v6
v_and_b32 v3, 15, v255
v_lshl_add_u32 v7, v3, 4, v7
s_mov_b32 s72, {WS_EP}
s_waitcnt lgkmcnt(0)
""")
if STAMP:
    a("v_mov_b32 v254, 0\nv_writelane_b32 v254, s100, 0")
    nstamp[0] = 1
stamp(SEL[0])
a(f"""
s_mov_b32 s36, s{sX}
s_mov_b32 s37, s{sX+1}
s_mov_b32 s48, s{sWs}
s_mov_b32 s49, s{sWs+1}
buffer_load_dword v202, v203, {rWs}, s72 offen sc1
""")
for i in range(14):
    a(f"buffer_load_dwordx4 v[{8+4*i}:{11+4*i}], v5, {rX}, 0 offen offset:{64*i}")
a(f"""
s_mov_b32 s73, 1664525
v_mul_lo_u32 v202, v202, s73
s_cmp_eq_u32 s83, 127
v_add_u32 v202, 1013904225, v202
v_or_b32 v202, 1, v202
s_cbranch_scc0 L_hnoep
s_mov_b64 exec, 1
""")
a.items.append(("raw", f"    global_store_dword v203, v202, s[{sDbg}:{sDbg+1}] sc1"))
a.items.append(("raw", f"    buffer_store_dword v202, v203, {rWs}, s72 offen sc1"))
a(f"""
s_mov_b64 exec, -1
L_hnoep:
s_bitcmp1_b32 s61, 0
s_cselect_b32 s40, s{sWu}, s{sWg}
s_cselect_b32 s41, s{sWu+1}, s{sWg+1}
""")
wl = [f"buffer_load_dwordx4 v[{72+4*i}:{75+4*i}], v7, {rW}, s82 offen\ns_add_u32 s82, s82, {16*3584}" for i in range(28)]
HW0 = opt('hw0', 0)
put(wl[:HW0])
wl = wl[HW0:]
a(f"""
s_mov_b32 s76, 0x3f803f80
s_mov_b32 s77, 0x00003f80
s_mov_b32 s79, 0x3f800000
""")
EXACT = "--noexact" not in sys.argv
L = []
for i in range(56):
    c0, c1 = ("0", "0") if i == 0 else ("v64", "v68")
    L.append([f"v_dot2_f32_bf16 v64, v{8+i}, s76, {c0}", f"v_dot2_f32_bf16 v68, v{8+i}, v{8+i}, {c1}"])
HW1 = opt('hw1', 8)
put(L[0] + weave(L[1:], wl[:HW1]))
wl = wl[HW1:]
stamp()
a(f"""
v_add_f32_dpp v64, v64, v64 quad_perm:[1,0,3,2] row_mask:0xf bank_mask:0xf
v_add_f32_dpp v68, v68, v68 quad_perm:[1,0,3,2] row_mask:0xf bank_mask:0xf
v_lshlrev_b32 v4, 3, v4
v_add_f32_dpp v64, v64, v64 quad_perm:[2,3,0,1] row_mask:0xf bank_mask:0xf
v_add_f32_dpp v68, v68, v68 quad_perm:[2,3,0,1] row_mask:0xf bank_mask:0xf
v_mul_f32 v64, {hex(0x3b124925)}, v64
v_mul_f32 v68, {hex(0x3b124925)}, v68
v_fma_f32 v68, -v64, v64, v68
v_cvt_pk_bf16_f32 v64, -v64, -v64
v_max_f32 v68, 0, v68
v_cvt_pk_bf16_f32 v68, v68, v68
v_and_b32 v68, {sMask}, v68
v_add_f32 v68, 0x3727c5ac, v68
v_cvt_pk_bf16_f32 v68, v68, v68
v_and_b32 v68, {sMask}, v68
v_sqrt_f32 v68, v68
v_and_b32 v66, {sMask}, v64
v_cvt_pk_bf16_f32 v68, v68, v68
v_and_b32 v68, {sMask}, v68
v_rcp_f32 v70, v68
s_mov_b32 s74, {WS_ST}
v_fma_f32 v71, -v68, v70, 1.0
v_fma_f32 v70, v70, v71, v70
v_mul_f32 v65, v70, v70
v_mul_f32 v71, v66, v70
s_mov_b32 s80, 0x11111111
s_mov_b32 s81, 0x11111111
s_mov_b64 exec, s[80:81]
buffer_store_dwordx2 v[64:65], v4, {rWs}, s74 offen sc1
s_mov_b64 exec, -1
v_mul_u32_u24 v5, 960, v1
s_mul_i32 s75, {sw}, {16*960}
v_lshl_add_u32 v5, v2, 4, v5
v_add_u32 v5, s75, v5
""")
L2B = 64 * 960
L3B = L2B + 448 * 144
a(f"""
v_lshrrev_b32 v1, 5, v255
v_bfe_u32 v2, v255, 2, 2
v_lshl_add_u32 v2, v1, 3, v2
v_mul_u32_u24 v2, 960, v2
v_bfe_u32 v4, v255, 4, 1
v_lshl_add_u32 v2, v4, 5, v2
v_and_b32 v4, 3, v255
v_lshl_add_u32 v2, v4, 3, v2
v_add_u32 v194, s75, v2
v_and_b32 v4, 31, v255
v_mul_u32_u24 v4, 144, v4
s_lshl_b32 s74, {sw}, 5
s_add_u32 s74, s74, {L2B}
v_lshl_add_u32 v4, v1, 4, v4
v_add_u32 v195, s74, v4
v_lshlrev_b32 v6, 9, v6
v_lshl_add_u32 v6, v3, 5, v6
v_add_u32 v6, {L3B}, v6
v_lshrrev_b32 v1, 3, v255
v_and_b32 v2, 7, v255
v_lshlrev_b32 v2, 4, v2
v_mul_u32_u24 v197, {XTS}, v1
v_add_u32 v197, v197, v2
v_mul_u32_u24 v1, 144, v1
v_add_u32 v1, v1, v2
s_mul_i32 s74, {sw}, {112*144}
s_add_u32 s74, s74, {L2B}
v_add_u32 v196, s74, v1
s_lshl_b32 s74, {shq}, 7
s_mul_i32 s75, {sw}, {112*XTS}
s_add_u32 s74, s74, s75
s_add_u32 s62, s74, {WS_XT}
s_and_b32 s75, {sw}, 1
s_lshl_b32 s75, s75, 8
v_lshl_add_u32 v2, v255, 2, s75
v_add_u32 v198, {L3B}, v2
""")


L = []
for i in range(56):
    t = 186 + 2 * (i % 4)
    if EXACT:
        g = [f"v_dot2_f32_bf16 v{t}, v{8+i}, s77, v66", f"v_dot2_f32_bf16 v{t+1}, v{8+i}, s79, v66"]
        if i > 0:
            p = 186 + 2 * ((i - 1) % 4)
            g += [f"v_cvt_pk_bf16_f32 v{7+i}, v{p}, v{p+1}", f"v_lshlrev_b32 v{p}, 16, v{7+i}", f"v_and_b32 v{p+1}, {sMask}, v{7+i}",
                  f"v_pk_mul_f32 v[{p}:{p+1}], v[{p}:{p+1}], v[70:71] op_sel_hi:[1,0]", f"v_cvt_pk_bf16_f32 v{7+i}, v{p}, v{p+1}"]
            if i % 4 == 0:
                g.append(f"ds_write_b128 v5, v[{4+i}:{7+i}] offset:{64*(i//4-1)}")
        if i == 55:
            g += ["s_nop 0", f"v_cvt_pk_bf16_f32 v63, v{t}, v{t+1}", f"v_lshlrev_b32 v{t}, 16, v63", f"v_and_b32 v{t+1}, {sMask}, v63",
                  f"v_pk_mul_f32 v[{t}:{t+1}], v[{t}:{t+1}], v[70:71] op_sel_hi:[1,0]", f"v_cvt_pk_bf16_f32 v63, v{t}, v{t+1}",
                  f"ds_write_b128 v5, v[60:63] offset:{64*13}"]
    else:
        g = [f"v_lshlrev_b32 v{t}, 16, v{8+i}", f"v_and_b32 v{t+1}, {sMask}, v{8+i}",
             f"v_pk_fma_f32 v[{t}:{t+1}], v[{t}:{t+1}], v[70:71], v[70:71] op_sel:[0,0,1] op_sel_hi:[1,0,1]",
             f"v_cvt_pk_bf16_f32 v{8+i}, v{t}, v{t+1}"]
        if i % 4 == 3:
            g.append(f"ds_write_b128 v5, v[{8+i-3}:{8+i}] offset:{64*(i//4)}")
    L.append(g)
put(weave(L, wl))
stamp()
for b in range(14):
    a(f"ds_read_b64_tr_b16 v[{8+4*b}:{9+4*b}], v194 offset:{64*b}\nds_read_b64_tr_b16 v[{10+4*b}:{11+4*b}], v194 offset:{64*b+4*960}")
cs = []
for i in range(28):
    for d in range(4):
        c0, c1 = ("0", "0") if i == 0 else (f"v{64+2*d}", f"v{65+2*d}")
        cs += [f"v_dot2_f32_bf16 v{64+2*d}, v{72+4*i+d}, s77, {c0}", f"v_dot2_f32_bf16 v{65+2*d}, v{72+4*i+d}, s79, {c1}"]
NC0 = opt('nc0', 56)
put(weave([f"ds_write_b128 v195, v[{8+4*b}:{11+4*b}] offset:{32*144*b}" for b in range(14)], cs[:NC0]))
a(f"{NC_LOAD}\ns_waitcnt lgkmcnt(0)\ns_barrier")
stamp()
for b in range(14):
    a(f"ds_read_b128 v[{8+4*b}:{11+4*b}], v196 offset:{8*144*b}")
put(weave([f"buffer_store_dwordx4 v[{8+4*b}:{11+4*b}], v197, {rWs}, s62 offen sc1\ns_add_u32 s62, s62, {8*XTS}" for b in range(14)], cs[NC0:]))
a("""
ds_write_b128 v6, v[64:67]
ds_write_b128 v6, v[68:71] offset:16
s_waitcnt lgkmcnt(0)
s_barrier
""")
stamp()
for r in range(16):
    a(f"ds_read_b32 v{72+r}, v198 offset:{512*r}")
for st_ in (8, 4, 2, 1):
    for r in range(st_):
        a(f"v_add_f32 v{72+r}, v{72+r}, v{72+r+st_}")
a(f"""
v_cvt_pk_bf16_f32 v73, v72, v72
v_and_b32 v73, {sMask}, v73
v_sub_f32 v74, v72, v73
v_cvt_pk_bf16_f32 v73, v73, v74
s_lshl_b32 s74, s61, 9
s_add_u32 s74, s74, {WS_CS}
s_cmp_lt_u32 s60, 14
s_cselect_b32 s74, s74, {WS_SIZE}
s_cmp_lt_u32 {sw}, 2
s_cselect_b32 s74, s74, {WS_SIZE}
buffer_store_dword v73, v2, {rWs}, s74 offen sc1
""")
stamp()
poll("hnc", NC_LOAD, NC_CMP)
a(f"""
v_mul_u32_u24 v1, {FSP}, v255
s_lshl_b32 s74, {shq}, 2
s_add_u32 s74, s74, {WS_FL}
s_waitcnt vmcnt(0)
s_barrier
s_cmp_eq_u32 {sw}, 0
s_cbranch_scc0 L_hdone
s_mov_b64 exec, 0xff
buffer_store_dword v202, v1, {rWs}, s74 offen sc1
s_mov_b64 exec, -1
L_hdone:
""")
stamp()
stamp_out()
a("L_end:\ns_endpgm")
for sp in slow:
    a.reset()
    a(sp)
a("L_codeend:\ns_endpgm")

body = a.render()
here = os.path.dirname(os.path.abspath(__file__))
ref = open(os.path.join(here, "..", "cdna_kernels", NAME + ".s.ref")).read()
head = [l for l in ref.split("\n") if l.startswith(";") and "@launch" not in l and "Override" not in l and "grid=ceil" not in l]
txt = "\n".join(head) + f"""
; Generated by tools/gen.py (hand-written generator).  XTS={XTS} YS={YS}
; @launch grid=(256,1,1) block=(256,1,1) lds=163840
.amdgcn_target "amdgcn-amd-amdhsa--gfx950"
.text
.globl {NAME}_kernel
.p2align 8
.type {NAME}_kernel,@function
{NAME}_kernel:
{body}
.section .rodata,"a"
.p2align 6
.amdhsa_kernel {NAME}_kernel
  .amdhsa_next_free_vgpr 512
  .amdhsa_next_free_sgpr 102
  .amdhsa_accum_offset 256
  .amdhsa_group_segment_fixed_size 0
  .amdhsa_kernarg_size 128
  .amdhsa_user_sgpr_count 2
  .amdhsa_user_sgpr_kernarg_segment_ptr 1
  .amdhsa_system_sgpr_workgroup_id_x 1
.end_amdhsa_kernel
"""
out = [x for x in sys.argv[1:] if not x.startswith("--")]
path = out[0] if out else os.path.join(here, "..", "cdna_kernels", NAME + ".s")
open(path, "w").write(txt)
print(path, a.stats, file=sys.stderr)
```

```python
import sys, os
sys.path.insert(0, os.path.dirname(os.path.abspath(__file__)))
from asmdsl import Asm

NAME = "parallel_sum__ssm_conv_s4__glu_gated_reglu__prompt"
STAMP = "--stamp" in sys.argv


def opt(name, dflt):
    v = [x.split('=')[1] for x in sys.argv if x.startswith('--' + name + '=')]
    return type(dflt)(v[0]) if v else dflt


WS_H, WS_XT, WS_Y = 0x0, 0x700000, 0x900000
XTS, YS = 4096 + opt('xtp', 128), 8192 + opt('yp', 128)
WS_ST, WS_CS = 0xB00000, 0xB04000
WS_FH, WS_FY, WS_FL, WS_EP = 0xB10000, 0xB20000, 0xB28000, 0xB2C000
WS_TS = 0xB30000
WS_SIZE = 0xB80000
FSP = 1024
SLOT = [0, 16384, 32768, 49152]
XB = 32768
SC = 147456
UB = 33536
U1_OFF = 4640
U_CH = 9280
KC0, KC_CH, KC_CP = 16, 16656, 4160
YX = 32768
RX = 0
XR = 0
PS = [SC] + [XB + k * 16384 for k in range(2, 7)]
SPIN = 200000
FHW_AT, FH_AT, FH_POLL = opt('fhw', 2), opt('fh', 16), opt('fhp', 20)
FYW_AT, FY_AT, FY_POLL = opt('fyw', 8), opt('fy', 21), opt('fyp', 26)
FL_AT, FL_POLL = opt('fl', 20), opt('flp', 23)
OUTFL = 'sc1' if '--outsc1' in sys.argv else ''
SEL = opt('sel', 'a')
CV = opt('cv', 20)
PAT = opt('pat', 0)
WG = opt('wg', 4)

sX, sAre, sAim, sBre, sBim, sCre, sCim, sLdt, sDsk = 4, 6, 8, 10, 12, 14, 16, 18, 20
sWg, sWu, sWd, sOut, sDbg, sWs = 24, 26, 28, 30, 32, 34
rX, rW, rWd, rWs, rOut = "s[36:39]", "s[40:43]", "s[44:47]", "s[48:51]", "s[52:55]"
sw, sxcd, sj, sr1, sc1_, sjc, sr2, sc2, snonce = "s56", "s57", "s58", "s59", "s60", "s61", "s62", "s63", "s64"
sWoff, sWdoff, sDs, scnt = "s65", "s66", "s67", "s68"
sq, sXoff, sw4k, sWl, sMask = "s69", "s72", "s73", "s77", "s78"
sFL, stg, sUl, sUg, sH0, sH1, sKC, sHoff = "s80", "s81", "s82", "s83", "s86", "s87", "s88", "s89"
sST, sCS, sFHw, sFHr, sY = "s90", "s91", "s92", "s93", "s94"
sOdd = "s[22:23]"

vKC, vKZ, vUZ, vKX, vXR, vXD, vWD, vWF, vKL = 160, 168, 169, 170, 172, 180, 184, 188, 190
vDD, vDF, vCU, vCK, vN4, vN8, vCS, vF, vYW, vYR, vFH, vH = 200, 204, 208, 209, 210, 211, 212, 213, 214, 215, 217, 218
fC, fR, fKG, fQ, fG, vNo, vZ, vL16 = 220, 221, 222, 223, 226, 224, 225, 250

a = Asm()
slow = []
nstamp = [0]
tok, ltok = {}, {}


def stamp(kind="a"):
    if not STAMP or kind not in SEL:
        return
    k = nstamp[0]
    nstamp[0] += 1
    if k > 1:
        a.items.append(("raw", f"    v_writelane_b32 v254, s98, {k-1}"))
    a.items.append(("raw", f"    {CLK} s[98:99]"))


def poll(name, load, cmp_):
    a(cmp_)
    a(f"s_cbranch_vccnz L_slow_{name}")
    a(f"L_back_{name}:")
    slow.append(f"""L_slow_{name}:
s_mov_b32 {scnt}, 0
L_retry_{name}:
s_add_u32 {scnt}, {scnt}, 1
s_cmp_gt_u32 {scnt}, {SPIN}
s_cbranch_scc1 L_back_{name}
s_sleep 1
{load}
s_waitcnt vmcnt(0)
{cmp_}
s_cbranch_vccnz L_retry_{name}
s_branch L_back_{name}""")


def put(items):
    for e in items:
        if isinstance(e, tuple):
            if e[0] == "vt": tok[e[1]] = a.vm_tok()
            if e[0] == "lt": ltok[e[1]] = a.lg_tok()
            if e[0] == "wv": a.wait_vm(tok[e[1]])
            if e[0] == "wl": a.wait_lg(ltok[e[1]])
        else:
            a(e)


def weave(main, extra):
    nreal = sum(1 for e in extra if not isinstance(e, tuple))
    out, k, done = [], 0, 0
    for t, m in enumerate(main):
        out += m if isinstance(m, list) else [m]
        goal = -(-(nreal * (t + 1)) // len(main))
        while k < len(extra) and (isinstance(extra[k], tuple) or done < goal):
            out.append(extra[k])
            done += not isinstance(extra[k], tuple)
            k += 1
    return out


def cost(e):
    if isinstance(e, tuple):
        return 4 if e[0] in ("wv", "wl") else 0
    c = 0
    for l in e.split("\n"):
        op = l.split()[0]
        if op.startswith(("buffer_", "global_")):
            c += CV if "x4" in op else 12
        elif op.startswith("ds_write"):
            c += 28 if "b128" in op or "2_b64" in op else 14
        else:
            c += 4
    return c


def pack(main, extra, cap):
    base = [sum(cost(x) for x in m[1:]) for m in main]
    n, G = len(extra), len(main)
    cs = [cost(e) for e in extra]
    INF = 1 << 60
    best = [[INF] * (n + 1) for _ in range(G + 1)]
    frm = [[0] * (n + 1) for _ in range(G + 1)]
    best[0][0] = 0
    for g in range(G):
        for i in range(n + 1):
            if best[g][i] == INF:
                continue
            load = base[g]
            for j in range(i, n + 1):
                if j > i:
                    load += cs[j - 1]
                v = best[g][i] + 1000 * max(0, load - cap) + load * load // 16
                if v < best[g + 1][j]:
                    best[g + 1][j] = v
                    frm[g + 1][j] = i
    cuts, j = [], n
    for g in range(G, 0, -1):
        cuts.append((frm[g][j], j))
        j = frm[g][j]
    cuts.reverse()
    out = []
    for m, (i, j) in zip(main, cuts):
        out += m + extra[i:j]
    return out


def lines(txt, per=1):
    L = [l for l in txt.strip().split("\n")]
    return ["\n".join(L[i:i + per]) for i in range(0, len(L), per)]


ROT = opt('rot', 0)
HFL = opt('hfl', 'sc1').replace('_', ' ').replace('none', '')


def wrap(reg, step, lim, base):
    return f"s_add_u32 {reg}, {reg}, {step}\ns_cmp_eq_u32 {reg}, {lim}\ns_cselect_b32 {reg}, {base}, {reg}"


def dma4(m0, vo, srd, soff, step, fl=""):
    g = [m0, f"buffer_load_dwordx4 v{vo}, {srd}, {soff} offen {fl} lds"]
    for i in range(1, 4):
        g.append(f"buffer_load_dwordx4 v{vo+i}, {srd}, {soff} offen offset:{1024*i} {fl} lds")
    g.append(f"s_add_u32 {soff}, {soff}, {step}")
    return g


def w_unit(u):
    return dma4(f"s_add_u32 m0, {sWl}, {SLOT[u % 4]}", vWD, rW, sWoff, 32 * 3584)


def x_block(cb):
    return dma4(f"s_add_u32 m0, {sw4k}, {XB+cb*16384}", vXD, rX, sXoff, 128)


def wd_pair(kk):
    g = dma4(f"s_add_u32 m0, {sw4k}, {PS[(kk >> 1) % 6]}", vDD, rWd, sWdoff, 32 * 896)
    if ROT and kk % 4 == 2:
        g[-1] = wrap(sWdoff, 32 * 896, "s9", "s8")
    return g


CLK = "s_memtime" if "--cyc" in sys.argv else "s_memrealtime"
if STAMP:
    a(f"{CLK} s[100:101]")
a(f"""
s_cmp_ge_u32 s2, 256
s_cbranch_scc1 L_end
s_load_dwordx16 s[4:19], s[0:1], 0
s_load_dwordx16 s[20:35], s[0:1], 64
s_getpc_b64 s[70:71]
L_pc:
s_and_b32 {sxcd}, s2, 7
s_lshr_b32 {sj}, s2, 3
v_lshrrev_b32 v1, 6, v0
v_and_b32 v255, 63, v0
v_readfirstlane_b32 {sw}, v1
""")
a(f"""
s_and_b32 {sq}, {sj}, 3
s_lshl_b32 s74, {sq}, 6
v_lshl_add_u32 v2, v1, 4, v255
v_add_u32 v2, s74, v2
v_lshlrev_b32 v2, 7, v2
v_min_u32 v2, L_codeend-L_pc-4, v2
s_mov_b64 exec, 0xffff
{"global_load_dword v253, v2, s[70:71]" if "--nocodepf" not in sys.argv else ""}
s_mov_b64 exec, -1
s_mov_b32 s38, {2048*896}
s_mov_b32 s39, 0x20000
s_mov_b32 s42, {448*3584}
s_mov_b32 s43, 0x20000
s_mov_b32 s50, {WS_SIZE}
s_mov_b32 s51, 0x20000
v_lshlrev_b32 v{vL16}, 4, v255
s_mov_b32 {sMask}, 0xffff0000
s_cmp_lt_u32 {sj}, 4
s_cbranch_scc1 L_helper
""")

a(f"""
s_sub_u32 {sj}, {sj}, 4
s_mul_i32 s74, {sxcd}, 28
s_add_u32 {sjc}, s74, {sj}
s_lshl_b32 s74, {sjc}, 10
s_lshl_b32 s75, {sw}, 8
s_add_u32 s74, s74, s75
v_lshl_add_u32 v4, v255, 2, s74
s_lshr_b32 s79, s74, 9
s_lshl_b32 s74, s79, 1
v_mov_b32 v5, s74
s_lshr_b32 {sc2}, {sj}, 2
s_lshr_b32 s74, {sxcd}, 1
s_lshl_b32 s74, s74, 2
s_add_u32 {sr1}, s74, {sq}
s_lshl_b32 {stg}, {sr1}, 2
s_add_u32 {stg}, {stg}, {sw}
s_mul_i32 {sXoff}, {stg}, {32*896}
s_lshl_b32 {sw4k}, {sw}, 12
s_and_b32 s74, {sxcd}, 1
s_mul_i32 s74, s74, 7
s_add_u32 {sc1_}, s74, {sc2}
s_lshl_b32 {sWoff}, {sc1_}, 8
s_lshr_b32 s84, {sw}, 1
s_and_b32 s85, {sw}, 1
s_lshl_b32 s74, s85, 13
s_lshl_b32 s75, s84, 12
s_add_u32 {sWl}, s74, s75
v_and_b32 v{fC}, 3, v255
v_bfe_u32 v{fR}, v255, 2, 2
v_lshrrev_b32 v{fKG}, 5, v255
v_lshrrev_b32 v{fQ}, 4, v255
v_and_b32 v{fG}, 1, v{fQ}
v_lshrrev_b32 v6, 3, v255
v_mul_u32_u24 v1, 896, v6
v_and_b32 v2, 7, v255
v_xor_b32 v2, v2, v{fQ}
v_lshl_add_u32 v{vXD}, v2, 4, v1
v_xor_b32 v{vXD+1}, 64, v{vXD}
v_add_u32 v{vXD+1}, {8*896-1024}, v{vXD+1}
v_add_u32 v{vXD+2}, {2*(8*896-1024)}, v{vXD}
v_add_u32 v{vXD+3}, {2*(8*896-1024)}, v{vXD+1}
s_lshl_b32 s74, s84, 4
v_add_u32 v1, s74, v{fR}
v_mul_u32_u24 v1, 3584, v1
v_lshl_add_u32 v1, v{fQ}, 6, v1
s_lshl_b32 s76, s85, 1
v_xor_b32 v2, s76, v{fC}
v_lshl_add_u32 v{vWD}, v2, 4, v1
v_add_u32 v{vWD+1}, {4*3584-1024}, v{vWD}
v_add_u32 v{vWD+2}, {2*(4*3584-1024)}, v{vWD}
v_add_u32 v{vWD+3}, {3*(4*3584-1024)}, v{vWD}
""")
if STAMP:
    a("v_mov_b32 v254, 0\ns_waitcnt lgkmcnt(0)\nv_writelane_b32 v254, s100, 0")
    nstamp[0] = 1
stamp(SEL[0])
a(f"""
s_waitcnt lgkmcnt(0)
global_load_ushort v134, v5, s[{sLdt}:{sLdt+1}]
global_load_dword v128, v4, s[{sAre}:{sAre+1}]
global_load_dword v129, v4, s[{sAim}:{sAim+1}]
global_load_dword v130, v4, s[{sBre}:{sBre+1}]
global_load_dword v131, v4, s[{sBim}:{sBim+1}]
global_load_dword v132, v4, s[{sCre}:{sCre+1}]
global_load_dword v133, v4, s[{sCim}:{sCim+1}]
global_load_ushort v135, v5, s[{sDsk}:{sDsk+1}]
s_mov_b32 s36, s{sX}
s_mov_b32 s37, s{sX+1}
s_bitcmp1_b32 {sw}, 0
s_cselect_b32 s40, s{sWu}, s{sWg}
s_cselect_b32 s41, s{sWu+1}, s{sWg+1}
s_cselect_b64 {sOdd}, -1, 0
""")
put(x_block(0) + w_unit(0) + [("vt", "u0")])
a(f"""
s_add_u32 s74, {sw4k}, {SC}
v_add_u32 v{vKX}, s74, v{vL16}
v_xor_b32 v{vKX+1}, 4096, v{vKX}
v_bfe_u32 v1, v255, 1, 2
v_lshlrev_b32 v7, 4, v1
v_lshl_add_u32 v7, v255, 6, v7
v_add_u32 v{vKL}, s74, v7
v_xor_b32 v{vKL+1}, 16, v{vKL}
v_xor_b32 v{vKL+2}, 32, v{vKL}
v_xor_b32 v{vKL+3}, 48, v{vKL}
v_lshl_add_u32 v7, v{fKG}, 3, v{fR}
v_lshlrev_b32 v7, 6, v7
v_bfe_u32 v8, v255, 1, 1
v_lshl_add_u32 v8, v{fG}, 1, v8
v_lshrrev_b32 v9, 1, v{fR}
v_xor_b32 v8, v8, v9
v_lshl_add_u32 v7, v8, 4, v7
v_and_b32 v10, 1, v255
v_lshl_add_u32 v7, v10, 3, v7
v_add_u32 v{vKL+4}, s74, v7
v_xor_b32 v{vKL+5}, 32, v{vKL+4}
v_add_u32 v{vKL+5}, 256, v{vKL+5}
s_lshl_b32 s76, s85, 5
v_xor_b32 v{vKL+6}, s76, v{vKL+4}
v_xor_b32 v{vKL+7}, s76, v{vKL+5}
v_and_b32 v11, 31, v255
v_bfe_u32 v12, v255, 1, 3
v_xor_b32 v7, v12, v{fKG}
v_lshlrev_b32 v7, 4, v7
v_lshl_add_u32 v7, v11, 7, v7
s_add_u32 s74, {sw4k}, {XB}
v_add_u32 v{vXR}, s74, v7
v_xor_b32 v{vXR+1}, 32, v{vXR}
v_xor_b32 v{vXR+2}, 64, v{vXR}
v_xor_b32 v{vXR+3}, 96, v{vXR}
v_add_u32 v{vXR+4}, 0x10000, v{vXR}
v_add_u32 v{vXR+5}, 0x10000, v{vXR+1}
v_add_u32 v{vXR+6}, 0x10000, v{vXR+2}
v_add_u32 v{vXR+7}, 0x10000, v{vXR+3}
v_lshlrev_b32 v13, 3, v{fC}
v_lshl_add_u32 v13, v{fR}, 6, v13
v_mul_u32_u24 v7, {8192+32}, v{fG}
v_lshl_add_u32 v7, v{fKG}, 11, v7
v_add_u32 v{vWF}, v7, v13
v_xor_b32 v{vWF+1}, 32, v{vWF}
v_lshl_add_u32 v7, v{fG}, 5, v13
v_lshl_add_u32 v7, v{fKG}, 9, v7
s_lshl_b32 s74, s85, 8
s_add_u32 s74, s74, {sw4k}
s_add_u32 s74, s74, 65536
v_add_u32 v{vDF}, s74, v7
v_xor_b32 v{vDF+1}, 256, v{vDF}
v_add_u32 v{vDF+2}, 0x10000, v{vDF}
v_add_u32 v{vDF+3}, 0x10000, v{vDF+1}
s_mul_i32 s74, {sw}, 448
v_lshl_add_u32 v7, v{fKG}, 2, v{fR}
v_add_u32 v7, s74, v7
v_mul_u32_u24 v7, 896, v7
v_lshl_add_u32 v7, v{fG}, 6, v7
v_lshl_add_u32 v{vDD}, v{fC}, 4, v7
v_add_u32 v{vDD+1}, {8*896-1024}, v{vDD}
v_add_u32 v{vDD+2}, {2*(8*896-1024)}, v{vDD}
v_add_u32 v{vDD+3}, {3*(8*896-1024)}, v{vDD}
v_lshlrev_b32 v{vN4}, 2, v11
v_lshlrev_b32 v{vN8}, 3, v11
""")
setup2 = lines(f"""s_mul_i32 {sKC}, s84, {KC_CH}
s_add_u32 {sKC}, {sKC}, {KC0}
s_lshl_b32 s74, s85, 10
s_sub_u32 s74, {sKC}, s74
s_add_u32 s74, s74, {16*255-12}
v_sub_u32 v{vKC}, s74, v{vL16}
v_add_u32 v{vKC+1}, {KC_CP+4}, v{vKC}
v_add_u32 v{vKC+2}, {2*(KC_CP+4)}, v{vKC}
v_add_u32 v{vKC+3}, {3*(KC_CP+4)}, v{vKC}
v_lshlrev_b32 v7, 9, v{fKG}
v_sub_u32 v7, v{vKC}, v7
v_subrev_u32 v{vKC+4}, {16*96}, v7
v_add_u32 v{vKC+5}, {KC_CP+4}, v{vKC+4}
v_add_u32 v{vKC+6}, {2*(KC_CP+4)}, v{vKC+4}
v_add_u32 v{vKC+7}, {3*(KC_CP+4)}, v{vKC+4}
v_and_b32 v11, 15, v255
v_mul_u32_u24 v7, {KC_CP+4}, v{fQ}
v_lshl_add_u32 v7, v11, 2, v7
v_add_u32 v{vKZ}, {sKC}, v7
v_lshlrev_b32 v7, 2, v11
v_lshl_add_u32 v{vCS}, v{fG}, 9, v7
v_min_u32 v7, 52, v7
v_mul_u32_u24 v8, {FSP}, v{fG}
v_add_u32 v{vFH}, v7, v8
s_mul_i32 s75, s84, {U_CH}
s_add_u32 s75, s75, {UB}
s_mul_i32 s74, s85, {U1_OFF}
s_add_u32 s74, s74, s75
v_min_u32 v7, 55, v255
v_lshl_add_u32 v{vUZ}, v7, 3, s74
s_lshl_b32 s74, s85, 11
s_add_u32 {sUl}, s75, s74
s_mul_i32 {sUg}, s79, {XTS}
s_add_u32 {sUg}, {sUg}, s74
s_add_u32 {sUg}, {sUg}, {WS_XT}
v_mul_u32_u24 v7, {U1_OFF}, v10
v_lshl_add_u32 v7, v12, 6, v7
v_lshl_add_u32 v7, v{fQ}, 4, v7
s_lshl_b32 s74, s85, 6
s_sub_u32 s75, s75, s74
s_add_u32 s75, s75, {448-384}
v_add_u32 v{vCU}, s75, v7
v_mul_u32_u24 v7, {KC_CP}, v{fC}
v_sub_u32 v8, v{fQ}, v{fR}
v_lshl_add_u32 v7, v8, 4, v7
s_sub_u32 s74, {sKC}, s74
s_add_u32 s74, s74, {16*255-64*62}
v_add_u32 v{vCK}, s74, v7
s_lshl_b32 s74, {sw}, 10
s_add_u32 s74, s74, {YX}
v_add_u32 v{vYW}, s74, v{vL16}
v_lshlrev_b32 v7, 8, v1
v_lshl_add_u32 v7, v6, 5, v7
v_lshl_add_u32 v7, v10, 3, v7
s_lshl_b32 s74, {sw}, 13
s_add_u32 s75, s74, {YX+4096}
v_add_u32 v{vYR}, s75, v7
s_add_u32 s74, s74, 8192
s_and_b32 s74, s74, 0x7fff
s_add_u32 s74, s74, {YX}
v_add_u32 v{vYR+1}, s74, v7
s_mul_i32 s74, s84, {112*1024}
v_add_u32 v{vH}, s74, v{vL16}
s_sub_u32 s74, {112*1024}, s74
v_add_u32 v{vH+1}, s74, v{vL16}
v_mov_b32 v{vZ}, 0
s_lshl_b32 s74, {sxcd}, 2
s_add_u32 {sr2}, s74, {sq}
s_lshl_b32 s74, {sr2}, 1
s_add_u32 s74, s74, s84
s_lshl_b32 s97, s74, 5
s_lshl_b32 s74, {sc2}, 1
s_add_u32 s74, s74, s85
s_lshl_b32 s17, s74, 6
s_mul_i32 s74, s97, 896
s_add_u32 s16, s74, s17
v_lshrrev_b32 v7, 2, v255
v_mul_u32_u24 v7, 896, v7
v_xor_b32 v8, v{fC}, v{fQ}
v_lshl_add_u32 v227, v8, 4, v7""")
put(setup2[:opt('s2', len(setup2))])
setup2 = setup2[opt('s2', len(setup2)):]
a(f"""
v_lshlrev_b32 v134, 16, v134
v_mul_f32 v134, 0x3fb8aa3b, v134
v_exp_f32 v134, v134
v_cvt_pk_bf16_f32 v134, v134, v134
v_lshlrev_b32 v134, 16, v134
""")
stamp()

PA = [64, 96]
PB = 8
KF = [(160, 176, 192, 208), (224, 240, 80, 96)]
R1, R8, E, T = 146, [148, 150], 0, 2
l1s = [0, 1, 2, 3, 4, 5, 6, 7, 8, 256, 258, 260, 262, 264, 512, 516, 520, 768, 772, 776,
       1024, 1032, 1280, 1288, 1536, 1544, 1792, 1800]
ra = {l: 8 + 2 * i for i, l in enumerate(l1s)}
cols = [0, 1, 2, 3, 256, 256, 258, 260, 4, 5, 6, 7, 260, 260, 262, 264,
        512, 516, 520, 1024, 768, 772, 776, 1536, 1032, 1280, 1288, 1288, 1544, 1792, 1800, 1800]


def cmul(d, x, r, t):
    return [f"v_pk_mul_f32 v[{t}:{t+1}], v[{x}:{x+1}], v[{r}:{r+1}] op_sel_hi:[1,0]",
            f"v_pk_fma_f32 v[{d}:{d+1}], v[{x}:{x+1}], v[{r}:{r+1}], v[{t}:{t+1}] op_sel:[1,1,0] op_sel_hi:[0,1,1] neg_lo:[1,0,0]"]


def k_write(ck, i, cq):
    P = (PA[ck] + 16 * i) if i < 2 else (PB + 16 * (i - 2))
    return f"ds_write_b128 v{vKL+cq}, v[{P+4*cq}:{P+4*cq+3}]"


def k_reads(ck, i):
    fr = KF[ck][i]
    base = vKL + 6 if i < 2 else vKL + 4
    return "\n".join(f"ds_read_b64_tr_b16 a[{fr+4*s+2*rd}:{fr+4*s+2*rd+1}], v{base+rd} offset:{1024*s}"
                     for s in range(4) for rd in range(2))


def kgen_head(ck):
    L = []
    un = (lambda d, s: f"v_lshlrev_b32 v{d}, 16, v{s}") if ck == 0 else (lambda d, s: f"v_and_b32 v{d}, {sMask}, v{s}")
    L += [un(136 + i, 128 + i) for i in range(6)]
    L += ["v_mul_f32 v142, v134, v136", "v_mul_f32 v143, v134, v137",
          "v_mul_f32 v142, 0x3fb8aa3b, v142", "v_mul_f32 v143, 0.15915494, v143"]

    def ev(d, l):
        s = []
        if l == 1:
            s += ["v_exp_f32 v144, v142", "v_fract_f32 v145, v143"]
        else:
            f = {8: "0x41000000", 256: "0x43800000"}[l]
            s += [f"v_mul_f32 v144, {f}, v142", f"v_mul_f32 v145, {f}, v143", "v_exp_f32 v144, v144", "v_fract_f32 v145, v145"]
        s += [f"v_cos_f32 v{d}, v145", f"v_sin_f32 v{d+1}, v145"]
        return s, f"v_pk_mul_f32 v[{d}:{d+1}], v[{d}:{d+1}], v[144:145] op_sel_hi:[1,0]"
    wm = cmul(ra[0], 140, 138, T) + [f"v_pk_mul_f32 v[{ra[0]}:{ra[0]+1}], v[{ra[0]}:{ra[0]+1}], v[134:135] op_sel_hi:[1,0]"]
    for (d, l), fill in zip(((R1, 1), (R8[ck], 8), (E, 256)), wm):
        s, last = ev(d, l)
        L += s + [fill, last]
    for l in range(1, 9):
        L += cmul(ra[l], ra[l - 1], R1, T)
    for l in l1s[9:]:
        L += cmul(ra[l], ra[l - 256], E, T)
    for k in range(16):
        c0, c1 = ra[cols[2 * k]], ra[cols[2 * k + 1]]
        L += [f"v_cvt_pk_bf16_f32 v{PA[ck]+k}, v{c0}, v{c1}", f"v_cvt_pk_bf16_f32 v{PA[ck]+16+k}, -v{c0+1}, -v{c1+1}"]
    return L


def kgen_chain(ck):
    r8 = R8[ck]
    rb = lambda j: r8 if j == 1 else 4 + 2 * (j % 2)
    B = [f"v_cvt_pk_bf16_f32 v{PB}, 1.0, v{r8}", f"v_cvt_pk_bf16_f32 v{PB+16}, 0, v{r8+1}"]
    for j in range(2, 32):
        B += cmul(rb(j), rb(j - 1), r8, T)
        if j % 2:
            B += [f"v_cvt_pk_bf16_f32 v{PB+j//2}, v{rb(j-1)}, v{rb(j)}",
                  f"v_cvt_pk_bf16_f32 v{PB+16+j//2}, v{rb(j-1)+1}, v{rb(j)+1}"]
    return B


def k_pass(ck, i):
    return [k_write(ck, i, cq) for cq in range(4)] + [k_reads(ck, i)]


def at(stream, items):
    out = []
    for i, x in enumerate(stream):
        out += [y for p, y in items if p == i]
        out.append(x)
    return out + [y for p, y in items if p >= len(stream)]


def kgen_mfma(ck):
    f = KF[ck]
    return [f"v_mfma_f32_32x32x16_bf16 a[144:159], a[{f[s>>2]+4*(s&3)}:{f[s>>2]+4*(s&3)+3}], "
            f"a[{f[2+(s>>2)]+4*(s&3)}:{f[2+(s>>2)]+4*(s&3)+3}], "
            + ("0" if (ck == 0 and s == 0) else "a[144:159]") for s in range(8)]


def x_read(s):
    cb = s >> 2
    return f"ds_read_b128 a[{4*s}:{4*s+3}], v{vXR + (0 if cb < 4 else 4) + (s & 3)} offset:{(cb % 4)*16384}"


warm = [f"""s_cmp_eq_u32 {sw}, 0
s_cselect_b32 s12, s{sWg}, s{sWu}
s_cselect_b32 s13, s{sWg+1}, s{sWu+1}
s_cmp_lt_u32 {sw}, 2
s_cselect_b32 s12, s12, s{sWd}
s_cselect_b32 s13, s13, s{sWd+1}
s_mul_i32 s74, {sjc}, {56*128}
v_min_u32 v251, 55, v255
v_lshl_add_u32 v251, v251, 7, s74
global_load_dword v252, v251, s[12:13]"""] if "--nowarm" not in sys.argv else []
stamp("k")
early = x_block(1) + [("vt", "x1")] + w_unit(1) + [("vt", "u1")]
put(weave(kgen_head(0), early))
stamp("k")
warm += [f"buffer_load_dwordx4 v[242:245], v227, {rX}, s16 offen",
         f"s_add_u32 s74, s16, {16*896}\nbuffer_load_dwordx4 v[246:249], v227, {rX}, s74 offen"]
put(weave(kgen_head(1), warm))
stamp("ak"[SEL == "k"])
RD = opt('rd', 3)
p0, p1, p2 = k_pass(0, 0), k_pass(0, 1), k_pass(0, 2)
put(at(kgen_chain(0), list(zip((0, 7, 14, 21, 21 + RD), p0)) + list(zip((30, 37, 44, 51, 51 + RD), p1))
       + list(zip((62, 70, 80, 92), p2))))
stamp("k")
p3, q0, q1, q2 = k_pass(0, 3), k_pass(1, 0), k_pass(1, 1), k_pass(1, 2)
ch = kgen_chain(1)
put([p2[4], p3[0], p3[1]] + at(ch[2:], [(0, p3[2]), (4, p3[3]), (4, ch[0]), (4, ch[1]), (4 + RD, p3[4])]
                                + list(zip((14, 20, 26, 32, 32 + RD), q0)) + list(zip((42, 48, 54, 60, 60 + RD), q1))
                                + list(zip((70, 76, 82, 90), q2))))
stamp("ak"[SEL == "k"])
sc = lines(f"""s_lshl_b32 {sWdoff}, {sc2}, 7
s_mov_b32 s44, s{sWd}
s_mov_b32 s45, s{sWd+1}
s_mov_b32 s46, {1792*896}
s_mov_b32 s47, 0x20000
s_mov_b32 s48, s{sWs}
s_mov_b32 s49, s{sWs+1}
s_mov_b32 s52, s{sOut}
s_mov_b32 s53, s{sOut+1}
s_mov_b32 s54, {2048*896}
s_mov_b32 s55, 0x20000
s_mul_i32 {sFL}, {sxcd}, {FSP}
s_add_u32 {sFL}, {sFL}, {WS_FL}
s_lshl_b32 {sST}, {stg}, 8
s_add_u32 {sST}, {sST}, {WS_ST}
s_lshl_b32 {sCS}, {sc1_}, 10
s_add_u32 {sCS}, {sCS}, {WS_CS}
v_lshlrev_b32 v135, 16, v135""")
lp = k_pass(1, 3)
put(weave(kgen_mfma(0), [q2[4], lp[0]] + sc[:6] + [lp[1]] + sc[6:12] + [lp[2]] + sc[12:]
          + [lp[3], ("wv", "u0")] + [x_read(s) for s in range(4)] + [lp[4]]))
stamp("k")
a("s_waitcnt lgkmcnt(0)")
stamp("k")
a("s_barrier")
stamp("ak"[SEL == "k"])

fillg = {s: [] for s in range(28)}
fillg[2] += lines(f"""v_readfirstlane_b32 {sDs}, v135
s_mul_i32 {sH0}, {stg}, {112*1024}
s_lshl_b32 s74, {sc1_}, 13
s_add_u32 {sH0}, {sH0}, s74
s_add_u32 {sH1}, {sH0}, 4096
s_mul_i32 s74, {stg}, {FSP}
s_lshl_b32 s75, {sc1_}, 2
s_add_u32 s74, s74, s75
s_add_u32 {sFHw}, s74, {WS_FH}""")
fillg[3] += [f"v_accvgpr_read_b32 v{128+r}, a{144+r}" for r in range(8)]
fillg[2] += []
fillg[4] += [f"ds_read_b128 v[136:139], v{vKX+1}", f"ds_read_b128 v[140:143], v{vKX+1} offset:1024", ("lt", "kr")]
fillg[5] += lines(f"""s_mul_i32 {sFHr}, {sr2}, {2*FSP}
s_add_u32 {sFHr}, {sFHr}, {WS_FH}
s_mul_i32 {sHoff}, {sr2}, {2*112*1024}
s_mul_i32 s74, {sw}, {28*1024}
s_add_u32 s10, {sHoff}, s74""")
fillg[6] += [f"s_lshl_b32 s3, {sq}, 1\ns_add_u32 s3, s3, {sc2}" if ROT == 1 else f"s_mov_b32 s3, {sc2 if ROT else 0}",
             "s_sub_u32 s74, s3, 7\ns_cselect_b32 s3, s3, s74",
             f"s_mov_b32 s8, {sWdoff}\ns_add_u32 s9, s8, {448*896}",
             f"s_mul_i32 s74, s3, {64*896}\ns_add_u32 {sWdoff}, {sWdoff}, s74",
             "s_add_u32 s74, s3, 4\ns_sub_u32 s75, s74, 7\ns_cselect_b32 s74, s74, s75",
             f"s_lshl_b32 s74, s74, 12\ns_add_u32 {sHoff}, s10, s74", f"s_add_u32 s11, s10, {28*1024}"]
fillg[7] += [f"v_add_f32 v{128+r}, v{128+r}, v{136+r}" for r in range(8)]
fillg[9] += lines(f"""v_cmp_eq_u32 vcc, 0, v255
v_mov_b32 v140, {sDs}
s_mov_b32 s74, 0xaaaaaaaa
s_mov_b32 s75, 0xaaaaaaaa
v_cndmask_b32 v140, 0, v140, vcc
v_add_f32 v140, v128, v140
v_cndmask_b32 v141, v131, v132, s[74:75]
v_cndmask_b32 v142, v133, v134, s[74:75]""")
fillg[11] += lines(f"""v_cvt_pk_bf16_f32 v144, v132, v132
v_cvt_pk_bf16_f32 v145, v132, v141
v_cvt_pk_bf16_f32 v146, v131, v131
v_cvt_pk_bf16_f32 v147, v131, v131
v_cvt_pk_bf16_f32 v148, v134, v134
v_cvt_pk_bf16_f32 v149, v134, v142
v_cvt_pk_bf16_f32 v150, v133, v133
v_cvt_pk_bf16_f32 v151, v133, v133""")
fillg[13] += lines(f"""v_cvt_pk_bf16_f32 v136, v135, v134
v_cvt_pk_bf16_f32 v137, v133, v132
v_cvt_pk_bf16_f32 v138, v131, v130
v_cvt_pk_bf16_f32 v139, v129, v140
v_cvt_pk_bf16_f32 v140, v130, v130
v_cvt_pk_bf16_f32 v141, v129, v129
v_cvt_pk_bf16_f32 v142, v129, v128
v_cvt_pk_bf16_f32 v143, v128, v128""")
fillg[15] += [f"v_cndmask_b32 v{136+r}, v{136+r}, v{140+r}, {sOdd}" for r in range(4)]
fillg[17] += lines(f"""s_mul_i32 {sY}, {sjc}, {YS}
s_lshl_b32 s74, {sw}, 11
s_add_u32 {sY}, {sY}, s74
s_add_u32 {sY}, {sY}, {WS_Y}""")
fillg[19] += [f"v_mov_b32 v{r}, 0" for r in (190, 191, 193, 194)]
fillg[21] += [f"v_mov_b32 v{r}, 0" for r in (195, 196, 198, 199)]


def wd_read(kk, r):
    off = PS[(kk >> 1) % 6] - 65536 + (kk & 1) * 2048
    base = vDF if off < 65536 else vDF + 2
    return [f"ds_read_b64_tr_b16 a[{r+4*da+2*rd}:{r+4*da+2*rd+1}], v{base+da} offset:{off % 65536+rd*1024}"
            for da in range(2) for rd in range(2)]


def wd_move(kk):
    return wd_read(kk, 8 * kk)


def wfrag_read(s, t, r):
    off = SLOT[(s >> 1) % 4] + (s & 1) * 4096 + (t >> 1) * 256
    return [f"ds_read_b64_tr_b16 a[{r+2*rd}:{r+2*rd+1}], v{vWF+(t & 1)} offset:{off+rd*1024}" for rd in range(2)]


put(pack([[m] + wfrag_read(0, t, 112 + 4 * t) for t, m in enumerate(kgen_mfma(1))], w_unit(2) + [("vt", "u2")] + fillg[2], 24))
fillg[2] = []
put(x_block(2) + [("vt", "x2")])
put([f"ds_write_b128 v{vKX}, a[152:155]", f"ds_write_b128 v{vKX}, a[156:159] offset:1024", ("lt", "kx")])
stamp("k")

FL_LOAD = f"buffer_load_dword v{vF}, v{vN4}, {rWs}, {sFL} offen sc1"
F_CMP = f"v_cmp_ne_u32 vcc, {snonce}, v{vF}"
NC_LOAD = f"global_load_dword v{vNo}, v{vZ}, s[{sDbg}:{sDbg+1}] sc1"
NC_CMP = f"v_cmp_eq_u32 vcc, 0, v{vNo}"
carry, pre = [], []
for s in range(25):
    if s % 2 == 0 and s > 0:
        stamp("g")
    if 1 <= s <= 4:
        stamp("k")
    extra, dma = [], None
    if s % 2 == 1:
        u = (s + 1) // 2
        lt = {1: "x1", 5: "kr"}.get(s)
        a.wait_both(tok[f"u{u}"], ltok[lt] if lt else None)
        a("s_barrier")
        if u + 2 < 14:
            dma = ([], w_unit(u + 2), f"u{u+2}")
    if s == 0:
        extra += [("wv", "x1")] + [x_read(k) for k in range(4, 8)] + [("lt", "x1")]
    if s % 2 == 0 and 2 <= s <= 8:
        dma = ([], x_block(2 + s // 2), f"x{2+s//2}")
    if s % 2 == 0 and 4 <= s <= 12:
        cb = s // 2
        extra += [("wv", f"x{cb}")] + [x_read(k) for k in range(4 * cb, 4 * cb + 4)] + [("lt", f"x{cb}")]
    if s % 2 == 0 and 10 <= s <= 20:
        p = (s - 10) // 2
        dma = ([("wl", f"x{p+1}")] if p else [], wd_pair(2 * p), f"wd{2*p}")
    if 14 <= s <= 21:
        kk = s - 14
        if kk % 2 == 0:
            extra += [("wv", f"wd{kk}")]
        extra += wd_move(kk) + [("lt", f"mv{kk}")]
    if s in (22, 23, 24):
        kk = 12 + 2 * (s - 22)
        dma = ([("wl", f"mv{kk-11}")], wd_pair(kk), f"wd{kk}")
    if s == 12:
        extra += [NC_LOAD]
    if s == 16:
        poll("nc", NC_LOAD, NC_CMP)
        a(f"v_readfirstlane_b32 {snonce}, v{vNo}")
    if s == FL_AT:
        extra += [FL_LOAD]
    if s == FL_POLL:
        poll("fl", FL_LOAD, F_CMP)
        extra += [f"buffer_load_dword v{vF}, v{vN8}, {rWs}, {sST} offen sc1",
                  f"s_lshl_b32 s74, s97, 3\ns_add_u32 s74, s74, {WS_ST+4}\nbuffer_load_dword v228, v{vN8}, {rWs}, s74 offen sc1"]
    if FL_POLL <= s < FL_POLL + 2:
        extra += [f"buffer_load_dword a{160+t}, v{vCS}, {rWs}, {sCS} offen offset:{64*t} sc1"
                  for t in range(4 * (s - FL_POLL), 4 * (s - FL_POLL) + 4)]
    extra += fillg[s]
    AB = opt('ab', '')
    if dma and (('x' in AB and dma[2][0] == 'x') or ('w' in AB and dma[2][0] == 'w') or ('u' in AB and dma[2][0] == 'u')):
        dma = (dma[0], ["s_nop 0"] * 6, dma[2])
    main = []
    for t in range(8):
        if t % WG == 0 and s > 0:
            (main[-1] if main else pre).append(("wl", f"f{t+WG-1}" if not (PAT and t + WG - 1 == 7) else "f6"))
        c = "0" if s == 0 else f"v[{16*t}:{16*t+15}]"
        m = [f"v_mfma_f32_32x32x16_bf16 v[{16*t}:{16*t+15}], a[{112+4*t}:{115+4*t}], a[{4*s}:{4*s+3}], {c}"]
        rd = wfrag_read(s + 1, t, 112 + 4 * t) + [("lt", f"f{t}")]
        if dma and t == 0:
            m += dma[0] + [dma[1][0]]
        if PAT and t % 2 == 1 and not (s == 24 and t == 7):
            carry = rd
        else:
            m += carry + rd
            carry = []
        if dma and t % 2 == 1:
            m.append(dma[1][1 + t // 2])
            if t == 7:
                m += [("vt", dma[2]), dma[1][5]]
        main.append(m)
    put(pre + pack(main, extra, 24))
    pre = []
stamp("g")
a.wait_vm(tok["u13"])
a("s_barrier")
put(wfrag_read(26, 0, 168) + wfrag_read(27, 0, 172))
first = [f"v_cmp_gt_u32 vcc, 32, v255", "v_mov_b32 v152, 0", "v_mov_b32 v153, 0",
         f"s_add_u32 m0, {sUl}, {U1_OFF+448}", f"buffer_load_dwordx4 v{vL16}, {rWs}, {sUg} offen sc1 lds",
         f"buffer_load_dwordx4 v{vL16}, {rWs}, {sUg} offen offset:1024 sc1 lds",
         f"v_cndmask_b32 v192, 0, v{vF}, vcc\nv_cndmask_b32 v197, 0, v{vF}, vcc"]
second = [f"s_sub_u32 {sUg}, {sUg}, 2\ns_add_u32 m0, {sUl}, 448", f"buffer_load_dwordx4 v{vL16}, {rWs}, {sUg} offen sc1 lds",
          f"buffer_load_dwordx4 v{vL16}, {rWs}, {sUg} offen offset:1024 sc1 lds", ("vt", "u")]
main, epi = [], []
for t in range(8):
    r = 168 + 8 * (t % 2)
    cb = (192, 196, 190, 194)[t & 3]
    ops = [(f"a[{112+4*t}:{115+4*t}]", "a[100:103]"), (f"a[{r}:{r+3}]", "a[104:107]"), (f"a[{r+4}:{r+7}]", "a[108:111]"),
           (f"a[{160+(t & 4)}:{163+(t & 4)}]", f"v[{cb}:{cb+3}]")]
    for k, (A, B) in enumerate(ops):
        m = [f"v_mfma_f32_32x32x16_bf16 v[{16*t}:{16*t+15}], {A}, {B}, v[{16*t}:{16*t+15}]"]
        if t < 7 and k in (0, 1):
            m += wfrag_read(26 + k, t + 1, 168 + 8 * ((t + 1) % 2) + 4 * k)
        main.append(m)
    b = 16 * t
    L = [f"v_max_f32 v{b+r}, 0, v{b+r}" for r in range(8)]
    if t < 6:
        L += [f"v_mul_f32 v{b+r}, v{b+r}, v{b+8+r}" for r in range(8)]
    else:
        L += [f"v_pk_mul_f32 v[{b+r}:{b+r+1}], v[{b+r}:{b+r+1}], v[{b+8+r}:{b+9+r}]" for r in range(0, 8, 2)]
    L += [f"v_cvt_pk_bf16_f32 v{b+8+r}, v{b+2*r}, v{b+2*r+1}" for r in range(4)]
    L += [f"buffer_store_dwordx4 v[{b+8}:{b+11}], v{vL16}, {rWs}, {(sH0, sH1)[t >> 2]} offen offset:{1024*(t & 3)} sc1"]
    epi.append(L)
stamp("t")
put(pack(main[:3], first, 24) + pack(main[3:6], second, 24))
for t in range(6):
    stamp("t")
    put(pack(main[4 * t + 6:4 * t + 10], epi[t], 24))
stamp("t")
put(pack(main[30:], epi[6][:8], 24))
rest = epi[6][8:] + epi[7]
stamp()
stamp("t")
a("s_barrier")
stamp("t")


def octet_writes(d, ar, off):
    return [f"ds_write_b128 v{ar+3}, v[{d}:{d+3}] offset:{off}",
            f"ds_write2_b64 v{ar+1}, v[{d}:{d+1}], v[{d+2}:{d+3}] offset0:{off//8} offset1:{off//8+1}"] + \
           [f"ds_write2_b32 v{ar+c}, v{d+k}, v{d+k+1} offset0:{off//4+k} offset1:{off//4+k+1}" for c in (0, 2) for k in (0, 2)]


put(weave(rest, octet_writes(136, vKC, 0) + [f"ds_write_b32 v{vKZ}, v152 offset:{4096-12}", f"ds_write_b64 v{vUZ}, v[152:153]"]))
tok["h"] = a.vm_tok()
stamp("t")
a(f"s_mov_b64 exec, {sOdd}")
put(octet_writes(144, vKC + 4, 512) + octet_writes(148, vKC + 4, 0))
a("s_mov_b64 exec, -1")
stamp("t")
a(f"s_andn2_b64 exec, 1, {sOdd}")
a.wait_vm(tok["u"])
a(f"""ds_write_b16 v{vUZ}, v152 offset:448
s_mov_b64 exec, -1
s_waitcnt lgkmcnt(0)""")
stamp("t")
a("s_barrier")
stamp()
stamp("t")


def a_read(n):
    return f"ds_read_b128 a[{128+4*(n % 4)}:{131+4*(n % 4)}], v{vCK} offset:{64*(62-2*n)}"


def u_read(be, i):
    return f"ds_read_b128 v[{16*be+4*i}:{16*be+4*i+3}], v{vCU} offset:{512*be-128*i+384}"


NH = opt('nh', 8)
ORD = list(range(16, 28)) + list(range(16))


def h_load(i):
    g = []
    for ta in range(2):
        r = 96 + 8 * (i % NH) + 4 * ta
        g.append(f"buffer_load_dwordx4 v[{r}:{r+3}], v{vH+ta}, {rWs}, {sHoff} offen offset:{1024*(i % 4)} {HFL}")
    if i % 4 == 3:
        if ROT:
            g[-1] += "\n" + wrap(sHoff, 4096, "s11", "s10")
        else:
            g[-1] += f"\ns_add_u32 {sHoff}, {sHoff}, 4096" if i != 11 else f"\ns_sub_u32 {sHoff}, {sHoff}, {24*1024}"
    return g


put([a_read(0)] + [u_read(be, 0) for be in range(8)] + [a_read(1), a_read(2)])
FH_LOAD = f"buffer_load_dword v{vF}, v{vFH}, {rWs}, {sFHr} offen sc1"
fill = {n: [] for n in range(32)}
for i in range(1, 4):
    fill[i - 1] += [u_read(be, i) for be in range(8)]
fill[2] += [("lt", "ub")]
fill[FHW_AT] += [("wv", "h"), f"s_mov_b64 exec, 1\nbuffer_store_dword v{vNo}, v{vZ}, {rWs}, {sFHw} offen sc1\ns_mov_b64 exec, -1"]
fill[1] = wd_pair(18) + [("vt", "wd18")] + fill[1]
for kk in range(8, 16):
    n = 3 + (kk - 8)
    if kk % 2 == 0:
        fill[n] += [("wv", f"wd{kk}")]
    fill[n] += wd_move(kk) + [("lt", f"mv{kk}")]
    if kk % 2 == 1:
        fill[n + 2] += [("wl", f"mv{kk}")] + wd_pair(kk + 11) + [("vt", f"wd{kk+11}")]
YB = opt('yb', 15)
fill[FH_AT] += [FH_LOAD]
for j in range(7):
    fill[(YB + 1, YB + 2, YB + 3, max(17, YB + 4), 21, 25, 29)[j]] += [f"ds_write_b128 v{vYW}, a[{224+4*j}:{227+4*j}] offset:{4096*((j+1) % 8)}"]
hl = [(i, g) for i in range(28) for g in h_load(i)]
for n in range(FH_POLL, 32):
    if hl[0][0] < NH:
        fill[n] += [hl.pop(0)[1]]
for P in range(8):
    for i in range(4):
        n = 4 * P + i
        if n % 4 == 0 or n in (2, 6, 10):
            stamp("c")
        if n == YB:
            a.wait_lg(ltok["ub"])
            a("s_barrier")
        if n == FH_POLL:
            poll("fh", FH_LOAD, F_CMP)
        main = []
        for be in range(8 - P):
            j = P + be
            c = "0" if n == 0 else f"a[{224+4*j}:{227+4*j}]"
            main.append(f"v_mfma_f32_16x16x32_bf16 a[{224+4*j}:{227+4*j}], a[{128+4*(n % 4)}:{131+4*(n % 4)}], v[{16*be+4*i}:{16*be+4*i+3}], {c}")
        put(pack([[m] for m in main], ([a_read(n + 3)] if n + 3 < 32 else []) + fill[n], 8))
stamp()
stamp("f")
put([("wv", "wd16")] + wd_read(16, 128))
a(f"ds_write_b128 v{vYW}, a[252:255]")
ltok["y7"] = a.lg_tok()
stamp()
stamp("f")

XS = lambda g, e: (80 if g < 4 else 0) + 4 * g + 2 * e
FY_LOAD = f"buffer_load_dword v{vF}, v{vN4}, {rWs}, s80 offen sc1"
fill = {k: [] for k in range(28)}
fill[0] += [("wl", "y7"), "s_barrier"]
for jj in range(2):
    r = 64 + 16 * jj
    fill[0] += [f"ds_read_b64 v[{r+4*src+2*ph}:{r+4*src+2*ph+1}], v{vYR+jj} offset:{1024*src+16*ph}"
                for src in range(4) for ph in range(2)]
    fill[1 + jj] += [f"v_add_f32 v{r+k}, v{r+k}, v{r+k+4}" for k in (0, 1, 2, 3, 8, 9, 10, 11)]
    fill[1 + jj] += [f"v_cvt_pk_bf16_f32 v{r+4+k}, v{r+o}, v{r+8+o}" for k, o in enumerate((0, 2, 1, 3))] + \
        [f"buffer_store_dwordx4 v[{r+4}:{r+7}], v{vL16}, {rWs}, {sY} offen offset:{1024*jj} sc1", ("vt", "y")]
fill[4] += lines(f"""s_lshr_b32 s74, {sjc}, 5
s_lshl_b32 s74, s74, 2
s_add_u32 s74, s74, {sw}
s_mul_i32 s74, s74, {FSP}
s_and_b32 s75, {sjc}, 31
s_lshl_b32 s75, s75, 2
s_add_u32 s74, s74, s75
s_add_u32 s95, s74, {WS_FY}""", 2)
fill[FYW_AT] += [("wv", "y"), f"s_mov_b64 exec, 1\nbuffer_store_dword v{vNo}, v{vZ}, {rWs}, s95 offen sc1\ns_mov_b64 exec, -1"]
fill[5] += lines(f"""s_lshl_b32 s80, {sc2}, 2
s_lshr_b32 s74, {sr2}, 3
s_add_u32 s80, s80, s74
s_mul_i32 s80, s80, {FSP}
s_add_u32 s80, s80, {WS_FY}
s_lshl_b32 s13, {sw}, 11
v_add_u32 v230, s13, v{vL16}""", 2)
fill[9] += [f"ds_write_b128 v230, v[242:245] offset:{XR}"] + lines(f"""v_mul_u32_u24 v234, 224, v{vN4}
v_lshl_add_u32 v234, v{fKG}, 4, v234""")
fill[10] += [f"ds_write_b128 v230, v[246:249] offset:{XR+1024}"] + lines(f"""v_lshlrev_b32 v231, 4, v{fR}
v_lshl_add_u32 v231, v{vN4}, 4, v231
v_lshl_add_u32 v231, v{fKG}, 3, v231""")
fill[12] += lines(f"""v_add_u32 v236, s13, v231
v_xor_b32 v237, 16, v236
v_xor_b32 v238, 32, v236
v_xor_b32 v239, 48, v236
v_mul_u32_u24 v235, {2*YS}, v{fKG}
v_add_u32 v235, v235, v{vN4}""") + [f"ds_read_b64 v[{64+2*g}:{65+2*g}], v{236+g} offset:{XR}" for g in range(4)] + [("lt", "xr")]
fill[13] += lines(f"""s_mul_i32 s74, s17, {YS//4}
s_lshl_b32 s75, s97, 2
s_add_u32 s74, s74, s75
s_add_u32 s96, s74, {WS_Y}
s_mul_i32 s74, {sw}, {3*4096}
s_add_u32 s74, s74, {RX}
v_add_u32 v240, s74, v{vL16}""", 2)
for k in range(1, 4):
    fill[13 + k] += [f"s_xor_b32 s74, {sw}, {k}\ns_mul_i32 s74, s74, {3*4096}",
                     f"s_add_u32 s74, s74, {RX+(k-1)*4096}\nv_add_u32 v{240+k}, s74, v{vL16}"]
fill[FY_AT] += [FY_LOAD]
for g in range(4):
    for e in range(2):
        fill[17 + g] += [f"v_lshlrev_b32 v{XS(g, e)}, 16, v{64+2*g+e}", f"v_and_b32 v{XS(g, e)+1}, {sMask}, v{64+2*g+e}"]
fill[22] += [("wl", "xr"), "s_barrier"]
for g in range(4):
    for e in range(2):
        fill[min(27, FY_POLL + g // 2)] += [f"buffer_load_dword v{72+2*g+e}, v235, {rWs}, s96 offen sc1\ns_add_u32 s96, s96, {YS if e == 0 else 3*YS}"]
DEF = opt('def', NH)
late = []
HL0 = opt('hl0', 1)
for i in range(28):
    kk = ORD[i]
    if i % 2 == 0 and i > 0:
        stamp("h")
    if i < 14:
        stamp("j")
    extra = []
    if i + 1 < 12:
        if (kk + 1) % 2 == 0:
            extra += [("wv", f"wd{kk+1}")]
        extra += wd_read(kk + 1, 128 + 8 * ((kk + 1) % 2))
    if i == FY_POLL:
        poll("fy", FY_LOAD, F_CMP)
    main = []
    for ta in range(2):
        for da in range(2):
            acc = 16 * (da + 2 * ta)
            c = "0" if i == 0 else f"v[{acc}:{acc+15}]"
            fa = (8 * kk if kk < 16 else 128 + 8 * (kk % 2)) + 4 * da
            fb = 96 + 8 * (i % NH) + 4 * ta
            m = [f"v_mfma_f32_32x32x16_bf16 v[{acc}:{acc+15}], a[{fa}:{fa+3}], v[{fb}:{fb+3}], {c}"]
            if acc == 0 and i >= 28 - DEF:
                late.append(m)
                continue
            if hl and i >= HL0 and (da, ta) != (0, 0) and (hl[0][0] < i + NH or (hl[0][0] == i + NH and da == 1 and len(hl) % 2 == ta % 2)):
                m.append(hl.pop(0)[1])
            main.append(m)
    AB = opt('ab', '')
    fl_ = fill[i]
    if 'X' in AB:
        fl_ = [e for e in fl_ if isinstance(e, tuple) or not (" lds" in e or "v80," in e)]
    if 'Y' in AB and i == FYW_AT:
        fl_ = [e for e in fl_ if e != ("wv", "y")]
    if 'D' in AB:
        extra = [e for e in extra if not isinstance(e, tuple)]
    put(pack(main, extra + fl_, 24))
assert not hl
stamp()
stamp("f")
wr = [f"ds_write_b128 v240, v[{16*k+4*g}:{16*k+4*g+3}] offset:{(k-1)*4096+1024*g}" for k in range(1, 4) for g in range(4)]
put(weave(late, wr) if late else wr)
stamp("f")
a("s_waitcnt lgkmcnt(0)")
stamp("f")
a("s_barrier")
stamp("f")
for g in range(4):
    for k in range(1, 4):
        a(f"ds_read_b128 v[{16*k+4*g}:{16*k+4*g+3}], v{240+k} offset:{1024*g}")
stamp("f")
for g in range(4):
    for e in range(2):
        yr, d = 72 + 2 * g + e, XS(g, e)
        a(f"""
v_lshlrev_b32 v112, 16, v{yr}
v_and_b32 v113, {sMask}, v{yr}
v_pk_add_f32 v[{d}:{d+1}], v[{d}:{d+1}], v[112:113]
""")
stamp("f")
for g in range(4):
    for e in range(2):
        r = 4 * g + 2 * e
        for k in range(1, 4):
            a(f"v_pk_add_f32 v[{r}:{r+1}], v[{r}:{r+1}], v[{16*k+r}:{16*k+r+1}]")
        a(f"v_pk_fma_f32 v[{r}:{r+1}], v[{r}:{r+1}], v[228:229], v[{XS(g, e)}:{XS(g, e)+1}] op_sel_hi:[1,0,1]")
    a(f"v_cvt_pk_bf16_f32 v{116+2*g}, v{4*g}, v{4*g+1}\nv_cvt_pk_bf16_f32 v{117+2*g}, v{4*g+2}, v{4*g+3}")
    if g % 2 == 1:
        b = 116 + 2 * (g - 1)
        a(f"v_permlane32_swap_b32 v{b}, v{b+2}\nv_permlane32_swap_b32 v{b+1}, v{b+3}")
        a(f"buffer_store_dwordx4 v[{b}:{b+3}], v234, {rOut}, s16 offen offset:{16*(g-1)} {OUTFL}")
        stamp("f")
stamp()


def stamp_out():
    if not STAMP:
        return
    a(f"""
s_waitcnt vmcnt(0) lgkmcnt(0)
v_writelane_b32 v254, s98, {nstamp[0]-1}
{CLK} s[98:99]
s_waitcnt lgkmcnt(0)
v_writelane_b32 v254, s98, 15
s_lshl_b32 s84, s2, 2
s_add_u32 s84, s84, {sw}
s_lshl_b32 s84, s84, 6
s_add_u32 s84, s84, {WS_TS}
v_lshlrev_b32 v1, 2, v255
s_mov_b64 exec, 0xffff
buffer_store_dword v254, v1, {rWs}, s84 offen
""")


stamp_out()
a("s_endpgm")

a.reset()
NC_LOAD = f"global_load_dword v202, v203, s[{sDbg}:{sDbg+1}] sc1"
NC_CMP = "v_cmp_eq_u32 vcc, 0, v202"
shq = "s59"
a(f"""
L_helper:
s_lshl_b32 {shq}, {sxcd}, 2
s_add_u32 {shq}, {shq}, {sj}
v_mov_b32 v203, 0
v_lshrrev_b32 v1, 2, v255
s_lshl_b32 s83, {shq}, 2
s_add_u32 s83, s83, {sw}
s_lshl_b32 s72, s83, 4
v_add_u32 v4, s72, v1
v_mul_u32_u24 v5, 896, v4
v_and_b32 v2, 3, v255
v_lshl_add_u32 v5, v2, 4, v5
s_lshr_b32 s73, {sxcd}, 1
s_lshl_b32 s73, s73, 2
s_add_u32 s60, s73, {sj}
s_min_u32 s73, s60, 13
s_and_b32 s74, {sxcd}, 1
s_mul_i32 s74, s74, 14
s_add_u32 s61, s73, s74
s_lshr_b32 s73, s61, 1
s_lshl_b32 s82, s73, 8
v_lshrrev_b32 v6, 4, v255
s_lshl_b32 s75, {sw}, 2
v_add_u32 v6, s75, v6
v_mul_u32_u24 v7, 3584, v6
v_and_b32 v3, 15, v255
v_lshl_add_u32 v7, v3, 4, v7
s_mov_b32 s72, {WS_EP}
s_waitcnt lgkmcnt(0)
""")
if STAMP:
    a("v_mov_b32 v254, 0\nv_writelane_b32 v254, s100, 0")
    nstamp[0] = 1
stamp(SEL[0])
a(f"""
s_mov_b32 s36, s{sX}
s_mov_b32 s37, s{sX+1}
s_mov_b32 s48, s{sWs}
s_mov_b32 s49, s{sWs+1}
buffer_load_dword v202, v203, {rWs}, s72 offen sc1
""")
for i in range(14):
    a(f"buffer_load_dwordx4 v[{8+4*i}:{11+4*i}], v5, {rX}, 0 offen offset:{64*i}")
a(f"""
s_mov_b32 s73, 1664525
v_mul_lo_u32 v202, v202, s73
s_cmp_eq_u32 s83, 127
v_add_u32 v202, 1013904225, v202
v_or_b32 v202, 1, v202
s_cbranch_scc0 L_hnoep
s_mov_b64 exec, 1
""")
a.items.append(("raw", f"    global_store_dword v203, v202, s[{sDbg}:{sDbg+1}] sc1"))
a.items.append(("raw", f"    buffer_store_dword v202, v203, {rWs}, s72 offen sc1"))
a(f"""
s_mov_b64 exec, -1
L_hnoep:
s_bitcmp1_b32 s61, 0
s_cselect_b32 s40, s{sWu}, s{sWg}
s_cselect_b32 s41, s{sWu+1}, s{sWg+1}
""")
wl = [f"buffer_load_dwordx4 v[{72+4*i}:{75+4*i}], v7, {rW}, s82 offen\ns_add_u32 s82, s82, {16*3584}" for i in range(28)]
HW0 = opt('hw0', 0)
put(wl[:HW0])
wl = wl[HW0:]
a(f"""
s_mov_b32 s76, 0x3f803f80
s_mov_b32 s77, 0x00003f80
s_mov_b32 s79, 0x3f800000
""")
EXACT = "--noexact" not in sys.argv
L = []
for i in range(56):
    c0, c1 = ("0", "0") if i == 0 else ("v64", "v68")
    L.append([f"v_dot2_f32_bf16 v64, v{8+i}, s76, {c0}", f"v_dot2_f32_bf16 v68, v{8+i}, v{8+i}, {c1}"])
HW1 = opt('hw1', 8)
put(L[0] + weave(L[1:], wl[:HW1]))
wl = wl[HW1:]
stamp()
a(f"""
v_add_f32_dpp v64, v64, v64 quad_perm:[1,0,3,2] row_mask:0xf bank_mask:0xf
v_add_f32_dpp v68, v68, v68 quad_perm:[1,0,3,2] row_mask:0xf bank_mask:0xf
v_lshlrev_b32 v4, 3, v4
v_add_f32_dpp v64, v64, v64 quad_perm:[2,3,0,1] row_mask:0xf bank_mask:0xf
v_add_f32_dpp v68, v68, v68 quad_perm:[2,3,0,1] row_mask:0xf bank_mask:0xf
v_mul_f32 v64, {hex(0x3b124925)}, v64
v_mul_f32 v68, {hex(0x3b124925)}, v68
v_fma_f32 v68, -v64, v64, v68
v_cvt_pk_bf16_f32 v64, -v64, -v64
v_max_f32 v68, 0, v68
v_cvt_pk_bf16_f32 v68, v68, v68
v_and_b32 v68, {sMask}, v68
v_add_f32 v68, 0x3727c5ac, v68
v_cvt_pk_bf16_f32 v68, v68, v68
v_and_b32 v68, {sMask}, v68
v_sqrt_f32 v68, v68
v_and_b32 v66, {sMask}, v64
v_cvt_pk_bf16_f32 v68, v68, v68
v_and_b32 v68, {sMask}, v68
v_rcp_f32 v70, v68
s_mov_b32 s74, {WS_ST}
v_fma_f32 v71, -v68, v70, 1.0
v_fma_f32 v70, v70, v71, v70
v_mul_f32 v65, v70, v70
v_mul_f32 v71, v66, v70
s_mov_b32 s80, 0x11111111
s_mov_b32 s81, 0x11111111
s_mov_b64 exec, s[80:81]
buffer_store_dwordx2 v[64:65], v4, {rWs}, s74 offen sc1
s_mov_b64 exec, -1
v_mul_u32_u24 v5, 960, v1
s_mul_i32 s75, {sw}, {16*960}
v_lshl_add_u32 v5, v2, 4, v5
v_add_u32 v5, s75, v5
""")
L2B = 64 * 960
L3B = L2B + 448 * 144
a(f"""
v_lshrrev_b32 v1, 5, v255
v_bfe_u32 v2, v255, 2, 2
v_lshl_add_u32 v2, v1, 3, v2
v_mul_u32_u24 v2, 960, v2
v_bfe_u32 v4, v255, 4, 1
v_lshl_add_u32 v2, v4, 5, v2
v_and_b32 v4, 3, v255
v_lshl_add_u32 v2, v4, 3, v2
v_add_u32 v194, s75, v2
v_and_b32 v4, 31, v255
v_mul_u32_u24 v4, 144, v4
s_lshl_b32 s74, {sw}, 5
s_add_u32 s74, s74, {L2B}
v_lshl_add_u32 v4, v1, 4, v4
v_add_u32 v195, s74, v4
v_lshlrev_b32 v6, 9, v6
v_lshl_add_u32 v6, v3, 5, v6
v_add_u32 v6, {L3B}, v6
v_lshrrev_b32 v1, 3, v255
v_and_b32 v2, 7, v255
v_lshlrev_b32 v2, 4, v2
v_mul_u32_u24 v197, {XTS}, v1
v_add_u32 v197, v197, v2
v_mul_u32_u24 v1, 144, v1
v_add_u32 v1, v1, v2
s_mul_i32 s74, {sw}, {112*144}
s_add_u32 s74, s74, {L2B}
v_add_u32 v196, s74, v1
s_lshl_b32 s74, {shq}, 7
s_mul_i32 s75, {sw}, {112*XTS}
s_add_u32 s74, s74, s75
s_add_u32 s62, s74, {WS_XT}
s_and_b32 s75, {sw}, 1
s_lshl_b32 s75, s75, 8
v_lshl_add_u32 v2, v255, 2, s75
v_add_u32 v198, {L3B}, v2
""")


L = []
for i in range(56):
    t = 186 + 2 * (i % 4)
    if EXACT:
        g = [f"v_dot2_f32_bf16 v{t}, v{8+i}, s77, v66", f"v_dot2_f32_bf16 v{t+1}, v{8+i}, s79, v66"]
        if i > 0:
            p = 186 + 2 * ((i - 1) % 4)
            g += [f"v_cvt_pk_bf16_f32 v{7+i}, v{p}, v{p+1}", f"v_lshlrev_b32 v{p}, 16, v{7+i}", f"v_and_b32 v{p+1}, {sMask}, v{7+i}",
                  f"v_pk_mul_f32 v[{p}:{p+1}], v[{p}:{p+1}], v[70:71] op_sel_hi:[1,0]", f"v_cvt_pk_bf16_f32 v{7+i}, v{p}, v{p+1}"]
            if i % 4 == 0:
                g.append(f"ds_write_b128 v5, v[{4+i}:{7+i}] offset:{64*(i//4-1)}")
        if i == 55:
            g += ["s_nop 0", f"v_cvt_pk_bf16_f32 v63, v{t}, v{t+1}", f"v_lshlrev_b32 v{t}, 16, v63", f"v_and_b32 v{t+1}, {sMask}, v63",
                  f"v_pk_mul_f32 v[{t}:{t+1}], v[{t}:{t+1}], v[70:71] op_sel_hi:[1,0]", f"v_cvt_pk_bf16_f32 v63, v{t}, v{t+1}",
                  f"ds_write_b128 v5, v[60:63] offset:{64*13}"]
    else:
        g = [f"v_lshlrev_b32 v{t}, 16, v{8+i}", f"v_and_b32 v{t+1}, {sMask}, v{8+i}",
             f"v_pk_fma_f32 v[{t}:{t+1}], v[{t}:{t+1}], v[70:71], v[70:71] op_sel:[0,0,1] op_sel_hi:[1,0,1]",
             f"v_cvt_pk_bf16_f32 v{8+i}, v{t}, v{t+1}"]
        if i % 4 == 3:
            g.append(f"ds_write_b128 v5, v[{8+i-3}:{8+i}] offset:{64*(i//4)}")
    L.append(g)
put(weave(L, wl))
stamp()
for b in range(14):
    a(f"ds_read_b64_tr_b16 v[{8+4*b}:{9+4*b}], v194 offset:{64*b}\nds_read_b64_tr_b16 v[{10+4*b}:{11+4*b}], v194 offset:{64*b+4*960}")
cs = []
for i in range(28):
    for d in range(4):
        c0, c1 = ("0", "0") if i == 0 else (f"v{64+2*d}", f"v{65+2*d}")
        cs += [f"v_dot2_f32_bf16 v{64+2*d}, v{72+4*i+d}, s77, {c0}", f"v_dot2_f32_bf16 v{65+2*d}, v{72+4*i+d}, s79, {c1}"]
NC0 = opt('nc0', 56)
put(weave([f"ds_write_b128 v195, v[{8+4*b}:{11+4*b}] offset:{32*144*b}" for b in range(14)], cs[:NC0]))
a(f"{NC_LOAD}\ns_waitcnt lgkmcnt(0)\ns_barrier")
stamp()
for b in range(14):
    a(f"ds_read_b128 v[{8+4*b}:{11+4*b}], v196 offset:{8*144*b}")
put(weave([f"buffer_store_dwordx4 v[{8+4*b}:{11+4*b}], v197, {rWs}, s62 offen sc1\ns_add_u32 s62, s62, {8*XTS}" for b in range(14)], cs[NC0:]))
a("""
ds_write_b128 v6, v[64:67]
ds_write_b128 v6, v[68:71] offset:16
s_waitcnt lgkmcnt(0)
s_barrier
""")
stamp()
for r in range(16):
    a(f"ds_read_b32 v{72+r}, v198 offset:{512*r}")
for st_ in (8, 4, 2, 1):
    for r in range(st_):
        a(f"v_add_f32 v{72+r}, v{72+r}, v{72+r+st_}")
a(f"""
v_cvt_pk_bf16_f32 v73, v72, v72
v_and_b32 v73, {sMask}, v73
v_sub_f32 v74, v72, v73
v_cvt_pk_bf16_f32 v73, v73, v74
s_lshl_b32 s74, s61, 9
s_add_u32 s74, s74, {WS_CS}
s_cmp_lt_u32 s60, 14
s_cselect_b32 s74, s74, {WS_SIZE}
s_cmp_lt_u32 {sw}, 2
s_cselect_b32 s74, s74, {WS_SIZE}
buffer_store_dword v73, v2, {rWs}, s74 offen sc1
""")
stamp()
poll("hnc", NC_LOAD, NC_CMP)
a(f"""
v_mul_u32_u24 v1, {FSP}, v255
s_lshl_b32 s74, {shq}, 2
s_add_u32 s74, s74, {WS_FL}
s_waitcnt vmcnt(0)
s_barrier
s_cmp_eq_u32 {sw}, 0
s_cbranch_scc0 L_hdone
s_mov_b64 exec, 0xff
buffer_store_dword v202, v1, {rWs}, s74 offen sc1
s_mov_b64 exec, -1
L_hdone:
""")
stamp()
stamp_out()
a("L_end:\ns_endpgm")
for sp in slow:
    a.reset()
    a(sp)
a("L_codeend:\ns_endpgm")

body = a.render()
here = os.path.dirname(os.path.abspath(__file__))
ref = open(os.path.join(here, "..", "cdna_kernels", NAME + ".s.ref")).read()
head = [l for l in ref.split("\n") if l.startswith(";") and "@launch" not in l and "Override" not in l and "grid=ceil" not in l]
txt = "\n".join(head) + f"""
; Generated by tools/gen.py (hand-written generator).  XTS={XTS} YS={YS}
; @launch grid=(256,1,1) block=(256,1,1) lds=163840
.amdgcn_target "amdgcn-amd-amdhsa--gfx950"
.text
.globl {NAME}_kernel
.p2align 8
.type {NAME}_kernel,@function
{NAME}_kernel:
{body}
.section .rodata,"a"
.p2align 6
.amdhsa_kernel {NAME}_kernel
  .amdhsa_next_free_vgpr 512
  .amdhsa_next_free_sgpr 102
  .amdhsa_accum_offset 256
  .amdhsa_group_segment_fixed_size 0
  .amdhsa_kernarg_size 128
  .amdhsa_user_sgpr_count 2
  .amdhsa_user_sgpr_kernarg_segment_ptr 1
  .amdhsa_system_sgpr_workgroup_id_x 1
.end_amdhsa_kernel
"""
out = [x for x in sys.argv[1:] if not x.startswith("--")]
path = out[0] if out else os.path.join(here, "..", "cdna_kernels", NAME + ".s")
open(path, "w").write(txt)
print(path, a.stats, file=sys.stderr)
```

```python
import sys, os
sys.path.insert(0, os.path.dirname(os.path.abspath(__file__)))
from asmdsl import Asm

NAME = "parallel_sum__ssm_conv_s4__glu_gated_reglu__prompt"
STAMP = "--stamp" in sys.argv


def opt(name, dflt):
    v = [x.split('=')[1] for x in sys.argv if x.startswith('--' + name + '=')]
    return type(dflt)(v[0]) if v else dflt


WS_H, WS_XT, WS_Y = 0x0, 0x700000, 0x900000
XTS, YS = 4096 + opt('xtp', 128), 8192 + opt('yp', 128)
WS_ST, WS_CS = 0xB00000, 0xB04000
WS_FH, WS_FY, WS_FL, WS_EP = 0xB10000, 0xB20000, 0xB28000, 0xB2C000
WS_TS = 0xB30000
WS_SIZE = 0xB80000
FSP = 1024
SLOT = [0, 16384, 32768, 49152]
XB = 32768
SC = 147456
UB = 33536
U1_OFF = 4640
U_CH = 9280
KC0, KC_CH, KC_CP = 16, 16656, 4160
YX = 32768
RX = 0
XR = 0
PS = [SC] + [XB + k * 16384 for k in range(2, 7)]
SPIN = 200000
FHW_AT, FH_AT, FH_POLL = opt('fhw', 2), opt('fh', 16), opt('fhp', 20)
FYW_AT, FY_AT, FY_POLL = opt('fyw', 8), opt('fy', 21), opt('fyp', 26)
FL_AT, FL_POLL = opt('fl', 20), opt('flp', 23)
OUTFL = 'sc1' if '--outsc1' in sys.argv else ''
SEL = opt('sel', 'a')
CV = opt('cv', 20)
PAT = opt('pat', 0)
WG = opt('wg', 4)

sX, sAre, sAim, sBre, sBim, sCre, sCim, sLdt, sDsk = 4, 6, 8, 10, 12, 14, 16, 18, 20
sWg, sWu, sWd, sOut, sDbg, sWs = 24, 26, 28, 30, 32, 34
rX, rW, rWd, rWs, rOut = "s[36:39]", "s[40:43]", "s[44:47]", "s[48:51]", "s[52:55]"
sw, sxcd, sj, sr1, sc1_, sjc, sr2, sc2, snonce = "s56", "s57", "s58", "s59", "s60", "s61", "s62", "s63", "s64"
sWoff, sWdoff, sDs, scnt = "s65", "s66", "s67", "s68"
sq, sXoff, sw4k, sWl, sMask = "s69", "s72", "s73", "s77", "s78"
sFL, stg, sUl, sUg, sH0, sH1, sKC, sHoff = "s80", "s81", "s82", "s83", "s86", "s87", "s88", "s89"
sST, sCS, sFHw, sFHr, sY = "s90", "s91", "s92", "s93", "s94"
sOdd = "s[22:23]"

vKC, vKZ, vUZ, vKX, vXR, vXD, vWD, vWF, vKL = 160, 168, 169, 170, 172, 180, 184, 188, 190
vDD, vDF, vCU, vCK, vN4, vN8, vCS, vF, vYW, vYR, vFH, vH = 200, 204, 208, 209, 210, 211, 212, 213, 214, 215, 217, 218
fC, fR, fKG, fQ, fG, vNo, vZ, vL16 = 220, 221, 222, 223, 226, 224, 225, 250

a = Asm()
slow = []
nstamp = [0]
tok, ltok = {}, {}


def stamp(kind="a"):
    if not STAMP or kind not in SEL:
        return
    k = nstamp[0]
    nstamp[0] += 1
    if k > 1:
        a.items.append(("raw", f"    v_writelane_b32 v254, s98, {k-1}"))
    a.items.append(("raw", f"    {CLK} s[98:99]"))


def poll(name, load, cmp_):
    a(cmp_)
    a(f"s_cbranch_vccnz L_slow_{name}")
    a(f"L_back_{name}:")
    slow.append(f"""L_slow_{name}:
s_mov_b32 {scnt}, 0
L_retry_{name}:
s_add_u32 {scnt}, {scnt}, 1
s_cmp_gt_u32 {scnt}, {SPIN}
s_cbranch_scc1 L_back_{name}
s_sleep 1
{load}
s_waitcnt vmcnt(0)
{cmp_}
s_cbranch_vccnz L_retry_{name}
s_branch L_back_{name}""")


def put(items):
    for e in items:
        if isinstance(e, tuple):
            if e[0] == "vt": tok[e[1]] = a.vm_tok()
            if e[0] == "lt": ltok[e[1]] = a.lg_tok()
            if e[0] == "wv": a.wait_vm(tok[e[1]])
            if e[0] == "wl": a.wait_lg(ltok[e[1]])
        else:
            a(e)


def weave(main, extra):
    nreal = sum(1 for e in extra if not isinstance(e, tuple))
    out, k, done = [], 0, 0
    for t, m in enumerate(main):
        out += m if isinstance(m, list) else [m]
        goal = -(-(nreal * (t + 1)) // len(main))
        while k < len(extra) and (isinstance(extra[k], tuple) or done < goal):
            out.append(extra[k])
            done += not isinstance(extra[k], tuple)
            k += 1
    return out


def cost(e):
    if isinstance(e, tuple):
        return 4 if e[0] in ("wv", "wl") else 0
    c = 0
    for l in e.split("\n"):
        op = l.split()[0]
        if op.startswith(("buffer_", "global_")):
            c += CV if "x4" in op else 12
        elif op.startswith("ds_write"):
            c += 28 if "b128" in op or "2_b64" in op else 14
        else:
            c += 4
    return c


def pack(main, extra, cap):
    base = [sum(cost(x) for x in m[1:]) for m in main]
    n, G = len(extra), len(main)
    cs = [cost(e) for e in extra]
    INF = 1 << 60
    best = [[INF] * (n + 1) for _ in range(G + 1)]
    frm = [[0] * (n + 1) for _ in range(G + 1)]
    best[0][0] = 0
    for g in range(G):
        for i in range(n + 1):
            if best[g][i] == INF:
                continue
            load = base[g]
            for j in range(i, n + 1):
                if j > i:
                    load += cs[j - 1]
                v = best[g][i] + 1000 * max(0, load - cap) + load * load // 16
                if v < best[g + 1][j]:
                    best[g + 1][j] = v
                    frm[g + 1][j] = i
    cuts, j = [], n
    for g in range(G, 0, -1):
        cuts.append((frm[g][j], j))
        j = frm[g][j]
    cuts.reverse()
    out = []
    for m, (i, j) in zip(main, cuts):
        out += m + extra[i:j]
    return out


def lines(txt, per=1):
    L = [l for l in txt.strip().split("\n")]
    return ["\n".join(L[i:i + per]) for i in range(0, len(L), per)]


ROT = opt('rot', 0)
HFL = opt('hfl', 'sc1').replace('_', ' ').replace('none', '')


def wrap(reg, step, lim, base):
    return f"s_add_u32 {reg}, {reg}, {step}\ns_cmp_eq_u32 {reg}, {lim}\ns_cselect_b32 {reg}, {base}, {reg}"


def dma4(m0, vo, srd, soff, step, fl=""):
    g = [m0, f"buffer_load_dwordx4 v{vo}, {srd}, {soff} offen {fl} lds"]
    for i in range(1, 4):
        g.append(f"buffer_load_dwordx4 v{vo+i}, {srd}, {soff} offen offset:{1024*i} {fl} lds")
    g.append(f"s_add_u32 {soff}, {soff}, {step}")
    return g


def w_unit(u):
    return dma4(f"s_add_u32 m0, {sWl}, {SLOT[u % 4]}", vWD, rW, sWoff, 32 * 3584)


def x_block(cb):
    return dma4(f"s_add_u32 m0, {sw4k}, {XB+cb*16384}", vXD, rX, sXoff, 128)


def wd_pair(kk):
    g = dma4(f"s_add_u32 m0, {sw4k}, {PS[(kk >> 1) % 6]}", vDD, rWd, sWdoff, 32 * 896)
    if ROT and kk % 4 == 2:
        g[-1] = wrap(sWdoff, 32 * 896, "s9", "s8")
    return g


CLK = "s_memtime" if "--cyc" in sys.argv else "s_memrealtime"
if STAMP:
    a(f"{CLK} s[100:101]")
a(f"""
s_cmp_ge_u32 s2, 256
s_cbranch_scc1 L_end
s_load_dwordx16 s[4:19], s[0:1], 0
s_load_dwordx16 s[20:35], s[0:1], 64
s_getpc_b64 s[70:71]
L_pc:
s_and_b32 {sxcd}, s2, 7
s_lshr_b32 {sj}, s2, 3
v_lshrrev_b32 v1, 6, v0
v_and_b32 v255, 63, v0
v_readfirstlane_b32 {sw}, v1
""")
a(f"""
s_and_b32 {sq}, {sj}, 3
s_lshl_b32 s74, {sq}, 6
v_lshl_add_u32 v2, v1, 4, v255
v_add_u32 v2, s74, v2
v_lshlrev_b32 v2, 7, v2
v_min_u32 v2, L_codeend-L_pc-4, v2
s_mov_b64 exec, 0xffff
{"global_load_dword v253, v2, s[70:71]" if "--nocodepf" not in sys.argv else ""}
s_mov_b64 exec, -1
s_mov_b32 s38, {2048*896}
s_mov_b32 s39, 0x20000
s_mov_b32 s42, {448*3584}
s_mov_b32 s43, 0x20000
s_mov_b32 s50, {WS_SIZE}
s_mov_b32 s51, 0x20000
v_lshlrev_b32 v{vL16}, 4, v255
s_mov_b32 {sMask}, 0xffff0000
s_cmp_lt_u32 {sj}, 4
s_cbranch_scc1 L_helper
""")

a(f"""
s_sub_u32 {sj}, {sj}, 4
s_mul_i32 s74, {sxcd}, 28
s_add_u32 {sjc}, s74, {sj}
s_lshl_b32 s74, {sjc}, 10
s_lshl_b32 s75, {sw}, 8
s_add_u32 s74, s74, s75
v_lshl_add_u32 v4, v255, 2, s74
s_lshr_b32 s79, s74, 9
s_lshl_b32 s74, s79, 1
v_mov_b32 v5, s74
s_lshr_b32 {sc2}, {sj}, 2
s_lshr_b32 s74, {sxcd}, 1
s_lshl_b32 s74, s74, 2
s_add_u32 {sr1}, s74, {sq}
s_lshl_b32 {stg}, {sr1}, 2
s_add_u32 {stg}, {stg}, {sw}
s_mul_i32 {sXoff}, {stg}, {32*896}
s_lshl_b32 {sw4k}, {sw}, 12
s_and_b32 s74, {sxcd}, 1
s_mul_i32 s74, s74, 7
s_add_u32 {sc1_}, s74, {sc2}
s_lshl_b32 {sWoff}, {sc1_}, 8
s_lshr_b32 s84, {sw}, 1
s_and_b32 s85, {sw}, 1
s_lshl_b32 s74, s85, 13
s_lshl_b32 s75, s84, 12
s_add_u32 {sWl}, s74, s75
v_and_b32 v{fC}, 3, v255
v_bfe_u32 v{fR}, v255, 2, 2
v_lshrrev_b32 v{fKG}, 5, v255
v_lshrrev_b32 v{fQ}, 4, v255
v_and_b32 v{fG}, 1, v{fQ}
v_lshrrev_b32 v6, 3, v255
v_mul_u32_u24 v1, 896, v6
v_and_b32 v2, 7, v255
v_xor_b32 v2, v2, v{fQ}
v_lshl_add_u32 v{vXD}, v2, 4, v1
v_xor_b32 v{vXD+1}, 64, v{vXD}
v_add_u32 v{vXD+1}, {8*896-1024}, v{vXD+1}
v_add_u32 v{vXD+2}, {2*(8*896-1024)}, v{vXD}
v_add_u32 v{vXD+3}, {2*(8*896-1024)}, v{vXD+1}
s_lshl_b32 s74, s84, 4
v_add_u32 v1, s74, v{fR}
v_mul_u32_u24 v1, 3584, v1
v_lshl_add_u32 v1, v{fQ}, 6, v1
s_lshl_b32 s76, s85, 1
v_xor_b32 v2, s76, v{fC}
v_lshl_add_u32 v{vWD}, v2, 4, v1
v_add_u32 v{vWD+1}, {4*3584-1024}, v{vWD}
v_add_u32 v{vWD+2}, {2*(4*3584-1024)}, v{vWD}
v_add_u32 v{vWD+3}, {3*(4*3584-1024)}, v{vWD}
""")
if STAMP:
    a("v_mov_b32 v254, 0\ns_waitcnt lgkmcnt(0)\nv_writelane_b32 v254, s100, 0")
    nstamp[0] = 1
stamp(SEL[0])
a(f"""
s_waitcnt lgkmcnt(0)
global_load_ushort v134, v5, s[{sLdt}:{sLdt+1}]
global_load_dword v128, v4, s[{sAre}:{sAre+1}]
global_load_dword v129, v4, s[{sAim}:{sAim+1}]
global_load_dword v130, v4, s[{sBre}:{sBre+1}]
global_load_dword v131, v4, s[{sBim}:{sBim+1}]
global_load_dword v132, v4, s[{sCre}:{sCre+1}]
global_load_dword v133, v4, s[{sCim}:{sCim+1}]
global_load_ushort v135, v5, s[{sDsk}:{sDsk+1}]
s_mov_b32 s36, s{sX}
s_mov_b32 s37, s{sX+1}
s_bitcmp1_b32 {sw}, 0
s_cselect_b32 s40, s{sWu}, s{sWg}
s_cselect_b32 s41, s{sWu+1}, s{sWg+1}
s_cselect_b64 {sOdd}, -1, 0
""")
LATE = opt('late', 0)
first_dma = x_block(0) + w_unit(0) + [("vt", "u0")]
if not LATE:
    put(first_dma)
a(f"""
s_add_u32 s74, {sw4k}, {SC}
v_add_u32 v{vKX}, s74, v{vL16}
v_xor_b32 v{vKX+1}, 4096, v{vKX}
v_bfe_u32 v1, v255, 1, 2
v_lshlrev_b32 v7, 4, v1
v_lshl_add_u32 v7, v255, 6, v7
v_add_u32 v{vKL}, s74, v7
v_xor_b32 v{vKL+1}, 16, v{vKL}
v_xor_b32 v{vKL+2}, 32, v{vKL}
v_xor_b32 v{vKL+3}, 48, v{vKL}
v_lshl_add_u32 v7, v{fKG}, 3, v{fR}
v_lshlrev_b32 v7, 6, v7
v_bfe_u32 v8, v255, 1, 1
v_lshl_add_u32 v8, v{fG}, 1, v8
v_lshrrev_b32 v9, 1, v{fR}
v_xor_b32 v8, v8, v9
v_lshl_add_u32 v7, v8, 4, v7
v_and_b32 v10, 1, v255
v_lshl_add_u32 v7, v10, 3, v7
v_add_u32 v{vKL+4}, s74, v7
v_xor_b32 v{vKL+5}, 32, v{vKL+4}
v_add_u32 v{vKL+5}, 256, v{vKL+5}
s_lshl_b32 s76, s85, 5
v_xor_b32 v{vKL+6}, s76, v{vKL+4}
v_xor_b32 v{vKL+7}, s76, v{vKL+5}
v_and_b32 v11, 31, v255
v_bfe_u32 v12, v255, 1, 3
v_xor_b32 v7, v12, v{fKG}
v_lshlrev_b32 v7, 4, v7
v_lshl_add_u32 v7, v11, 7, v7
s_add_u32 s74, {sw4k}, {XB}
v_add_u32 v{vXR}, s74, v7
v_xor_b32 v{vXR+1}, 32, v{vXR}
v_xor_b32 v{vXR+2}, 64, v{vXR}
v_xor_b32 v{vXR+3}, 96, v{vXR}
v_add_u32 v{vXR+4}, 0x10000, v{vXR}
v_add_u32 v{vXR+5}, 0x10000, v{vXR+1}
v_add_u32 v{vXR+6}, 0x10000, v{vXR+2}
v_add_u32 v{vXR+7}, 0x10000, v{vXR+3}
v_lshlrev_b32 v13, 3, v{fC}
v_lshl_add_u32 v13, v{fR}, 6, v13
v_mul_u32_u24 v7, {8192+32}, v{fG}
v_lshl_add_u32 v7, v{fKG}, 11, v7
v_add_u32 v{vWF}, v7, v13
v_xor_b32 v{vWF+1}, 32, v{vWF}
v_lshl_add_u32 v7, v{fG}, 5, v13
v_lshl_add_u32 v7, v{fKG}, 9, v7
s_lshl_b32 s74, s85, 8
s_add_u32 s74, s74, {sw4k}
s_add_u32 s74, s74, 65536
v_add_u32 v{vDF}, s74, v7
v_xor_b32 v{vDF+1}, 256, v{vDF}
v_add_u32 v{vDF+2}, 0x10000, v{vDF}
v_add_u32 v{vDF+3}, 0x10000, v{vDF+1}
s_mul_i32 s74, {sw}, 448
v_lshl_add_u32 v7, v{fKG}, 2, v{fR}
v_add_u32 v7, s74, v7
v_mul_u32_u24 v7, 896, v7
v_lshl_add_u32 v7, v{fG}, 6, v7
v_lshl_add_u32 v{vDD}, v{fC}, 4, v7
v_add_u32 v{vDD+1}, {8*896-1024}, v{vDD}
v_add_u32 v{vDD+2}, {2*(8*896-1024)}, v{vDD}
v_add_u32 v{vDD+3}, {3*(8*896-1024)}, v{vDD}
v_lshlrev_b32 v{vN4}, 2, v11
v_lshlrev_b32 v{vN8}, 3, v11
""")
setup2 = lines(f"""s_mul_i32 {sKC}, s84, {KC_CH}
s_add_u32 {sKC}, {sKC}, {KC0}
s_lshl_b32 s74, s85, 10
s_sub_u32 s74, {sKC}, s74
s_add_u32 s74, s74, {16*255-12}
v_sub_u32 v{vKC}, s74, v{vL16}
v_add_u32 v{vKC+1}, {KC_CP+4}, v{vKC}
v_add_u32 v{vKC+2}, {2*(KC_CP+4)}, v{vKC}
v_add_u32 v{vKC+3}, {3*(KC_CP+4)}, v{vKC}
v_lshlrev_b32 v7, 9, v{fKG}
v_sub_u32 v7, v{vKC}, v7
v_subrev_u32 v{vKC+4}, {16*96}, v7
v_add_u32 v{vKC+5}, {KC_CP+4}, v{vKC+4}
v_add_u32 v{vKC+6}, {2*(KC_CP+4)}, v{vKC+4}
v_add_u32 v{vKC+7}, {3*(KC_CP+4)}, v{vKC+4}
v_and_b32 v11, 15, v255
v_mul_u32_u24 v7, {KC_CP+4}, v{fQ}
v_lshl_add_u32 v7, v11, 2, v7
v_add_u32 v{vKZ}, {sKC}, v7
v_lshlrev_b32 v7, 2, v11
v_lshl_add_u32 v{vCS}, v{fG}, 9, v7
v_min_u32 v7, 52, v7
v_mul_u32_u24 v8, {FSP}, v{fG}
v_add_u32 v{vFH}, v7, v8
s_mul_i32 s75, s84, {U_CH}
s_add_u32 s75, s75, {UB}
s_mul_i32 s74, s85, {U1_OFF}
s_add_u32 s74, s74, s75
v_min_u32 v7, 55, v255
v_lshl_add_u32 v{vUZ}, v7, 3, s74
s_lshl_b32 s74, s85, 11
s_add_u32 {sUl}, s75, s74
s_mul_i32 {sUg}, s79, {XTS}
s_add_u32 {sUg}, {sUg}, s74
s_add_u32 {sUg}, {sUg}, {WS_XT}
v_mul_u32_u24 v7, {U1_OFF}, v10
v_lshl_add_u32 v7, v12, 6, v7
v_lshl_add_u32 v7, v{fQ}, 4, v7
s_lshl_b32 s74, s85, 6
s_sub_u32 s75, s75, s74
s_add_u32 s75, s75, {448-384}
v_add_u32 v{vCU}, s75, v7
v_mul_u32_u24 v7, {KC_CP}, v{fC}
v_sub_u32 v8, v{fQ}, v{fR}
v_lshl_add_u32 v7, v8, 4, v7
s_sub_u32 s74, {sKC}, s74
s_add_u32 s74, s74, {16*255-64*62}
v_add_u32 v{vCK}, s74, v7
s_lshl_b32 s74, {sw}, 10
s_add_u32 s74, s74, {YX}
v_add_u32 v{vYW}, s74, v{vL16}
v_lshlrev_b32 v7, 8, v1
v_lshl_add_u32 v7, v6, 5, v7
v_lshl_add_u32 v7, v10, 3, v7
s_lshl_b32 s74, {sw}, 13
s_add_u32 s75, s74, {YX+4096}
v_add_u32 v{vYR}, s75, v7
s_add_u32 s74, s74, 8192
s_and_b32 s74, s74, 0x7fff
s_add_u32 s74, s74, {YX}
v_add_u32 v{vYR+1}, s74, v7
s_mul_i32 s74, s84, {112*1024}
v_add_u32 v{vH}, s74, v{vL16}
s_sub_u32 s74, {112*1024}, s74
v_add_u32 v{vH+1}, s74, v{vL16}
v_mov_b32 v{vZ}, 0
s_lshl_b32 s74, {sxcd}, 2
s_add_u32 {sr2}, s74, {sq}
s_lshl_b32 s74, {sr2}, 1
s_add_u32 s74, s74, s84
s_lshl_b32 s97, s74, 5
s_lshl_b32 s74, {sc2}, 1
s_add_u32 s74, s74, s85
s_lshl_b32 s17, s74, 6
s_mul_i32 s74, s97, 896
s_add_u32 s16, s74, s17
v_lshrrev_b32 v7, 2, v255
v_mul_u32_u24 v7, 896, v7
v_xor_b32 v8, v{fC}, v{fQ}
v_lshl_add_u32 v227, v8, 4, v7""")
put(setup2[:opt('s2', len(setup2))])
setup2 = setup2[opt('s2', len(setup2)):]
a(f"""
v_lshlrev_b32 v134, 16, v134
v_mul_f32 v134, 0x3fb8aa3b, v134
v_exp_f32 v134, v134
v_cvt_pk_bf16_f32 v134, v134, v134
v_lshlrev_b32 v134, 16, v134
""")
stamp()

PA = [64, 96]
PB = 8
KF = [(160, 176, 192, 208), (224, 240, 80, 96)]
R1, R8, E, T = 146, [148, 150], 0, 2
l1s = [0, 1, 2, 3, 4, 5, 6, 7, 8, 256, 258, 260, 262, 264, 512, 516, 520, 768, 772, 776,
       1024, 1032, 1280, 1288, 1536, 1544, 1792, 1800]
ra = {l: 8 + 2 * i for i, l in enumerate(l1s)}
cols = [0, 1, 2, 3, 256, 256, 258, 260, 4, 5, 6, 7, 260, 260, 262, 264,
        512, 516, 520, 1024, 768, 772, 776, 1536, 1032, 1280, 1288, 1288, 1544, 1792, 1800, 1800]


def cmul(d, x, r, t):
    return [f"v_pk_mul_f32 v[{t}:{t+1}], v[{x}:{x+1}], v[{r}:{r+1}] op_sel_hi:[1,0]",
            f"v_pk_fma_f32 v[{d}:{d+1}], v[{x}:{x+1}], v[{r}:{r+1}], v[{t}:{t+1}] op_sel:[1,1,0] op_sel_hi:[0,1,1] neg_lo:[1,0,0]"]


def k_write(ck, i, cq):
    P = (PA[ck] + 16 * i) if i < 2 else (PB + 16 * (i - 2))
    return f"ds_write_b128 v{vKL+cq}, v[{P+4*cq}:{P+4*cq+3}]"


def k_reads(ck, i):
    fr = KF[ck][i]
    base = vKL + 6 if i < 2 else vKL + 4
    return "\n".join(f"ds_read_b64_tr_b16 a[{fr+4*s+2*rd}:{fr+4*s+2*rd+1}], v{base+rd} offset:{1024*s}"
                     for s in range(4) for rd in range(2))


def kgen_head(ck):
    L = []
    un = (lambda d, s: f"v_lshlrev_b32 v{d}, 16, v{s}") if ck == 0 else (lambda d, s: f"v_and_b32 v{d}, {sMask}, v{s}")
    L += [un(136 + i, 128 + i) for i in range(6)]
    L += ["v_mul_f32 v142, v134, v136", "v_mul_f32 v143, v134, v137",
          "v_mul_f32 v142, 0x3fb8aa3b, v142", "v_mul_f32 v143, 0.15915494, v143"]

    def ev(d, l):
        s = []
        if l == 1:
            s += ["v_exp_f32 v144, v142", "v_fract_f32 v145, v143"]
        else:
            f = {8: "0x41000000", 256: "0x43800000"}[l]
            s += [f"v_mul_f32 v144, {f}, v142", f"v_mul_f32 v145, {f}, v143", "v_exp_f32 v144, v144", "v_fract_f32 v145, v145"]
        s += [f"v_cos_f32 v{d}, v145", f"v_sin_f32 v{d+1}, v145"]
        return s, f"v_pk_mul_f32 v[{d}:{d+1}], v[{d}:{d+1}], v[144:145] op_sel_hi:[1,0]"
    wm = cmul(ra[0], 140, 138, T) + [f"v_pk_mul_f32 v[{ra[0]}:{ra[0]+1}], v[{ra[0]}:{ra[0]+1}], v[134:135] op_sel_hi:[1,0]"]
    for (d, l), fill in zip(((R1, 1), (R8[ck], 8), (E, 256)), wm):
        s, last = ev(d, l)
        L += s + [fill, last]
    for l in range(1, 9):
        L += cmul(ra[l], ra[l - 1], R1, T)
    for l in l1s[9:]:
        L += cmul(ra[l], ra[l - 256], E, T)
    for k in range(16):
        c0, c1 = ra[cols[2 * k]], ra[cols[2 * k + 1]]
        L += [f"v_cvt_pk_bf16_f32 v{PA[ck]+k}, v{c0}, v{c1}", f"v_cvt_pk_bf16_f32 v{PA[ck]+16+k}, -v{c0+1}, -v{c1+1}"]
    return L


def kgen_chain(ck):
    r8 = R8[ck]
    rb = lambda j: r8 if j == 1 else 4 + 2 * (j % 2)
    B = [f"v_cvt_pk_bf16_f32 v{PB}, 1.0, v{r8}", f"v_cvt_pk_bf16_f32 v{PB+16}, 0, v{r8+1}"]
    for j in range(2, 32):
        B += cmul(rb(j), rb(j - 1), r8, T)
        if j % 2:
            B += [f"v_cvt_pk_bf16_f32 v{PB+j//2}, v{rb(j-1)}, v{rb(j)}",
                  f"v_cvt_pk_bf16_f32 v{PB+16+j//2}, v{rb(j-1)+1}, v{rb(j)+1}"]
    return B


def k_pass(ck, i):
    return [k_write(ck, i, cq) for cq in range(4)] + [k_reads(ck, i)]


def at(stream, items):
    out = []
    for i, x in enumerate(stream):
        out += [y for p, y in items if p == i]
        out.append(x)
    return out + [y for p, y in items if p >= len(stream)]


def kgen_mfma(ck):
    f = KF[ck]
    return [f"v_mfma_f32_32x32x16_bf16 a[144:159], a[{f[s>>2]+4*(s&3)}:{f[s>>2]+4*(s&3)+3}], "
            f"a[{f[2+(s>>2)]+4*(s&3)}:{f[2+(s>>2)]+4*(s&3)+3}], "
            + ("0" if (ck == 0 and s == 0) else "a[144:159]") for s in range(8)]


def x_read(s):
    cb = s >> 2
    return f"ds_read_b128 a[{4*s}:{4*s+3}], v{vXR + (0 if cb < 4 else 4) + (s & 3)} offset:{(cb % 4)*16384}"


warm = [f"""s_cmp_eq_u32 {sw}, 0
s_cselect_b32 s12, s{sWg}, s{sWu}
s_cselect_b32 s13, s{sWg+1}, s{sWu+1}
s_cmp_lt_u32 {sw}, 2
s_cselect_b32 s12, s12, s{sWd}
s_cselect_b32 s13, s13, s{sWd+1}
s_mul_i32 s74, {sjc}, {56*128}
v_min_u32 v251, 55, v255
v_lshl_add_u32 v251, v251, 7, s74
global_load_dword v252, v251, s[12:13]"""] if "--nowarm" not in sys.argv else []
stamp("k")
early = x_block(1) + [("vt", "x1")] + w_unit(1) + [("vt", "u1")]
if LATE == 1:
    put(weave(kgen_head(0), first_dma + early))
elif LATE == 2:
    put(weave(kgen_head(0), first_dma))
    warm = early + warm
else:
    put(weave(kgen_head(0), early))
stamp("k")
warm += [f"buffer_load_dwordx4 v[242:245], v227, {rX}, s16 offen",
         f"s_add_u32 s74, s16, {16*896}\nbuffer_load_dwordx4 v[246:249], v227, {rX}, s74 offen"]
put(weave(kgen_head(1), warm))
stamp("ak"[SEL == "k"])
RD = opt('rd', 3)
p0, p1, p2 = k_pass(0, 0), k_pass(0, 1), k_pass(0, 2)
put(at(kgen_chain(0), list(zip((0, 7, 14, 21, 21 + RD), p0)) + list(zip((30, 37, 44, 51, 51 + RD), p1))
       + list(zip((62, 70, 80, 92), p2))))
stamp("k")
p3, q0, q1, q2 = k_pass(0, 3), k_pass(1, 0), k_pass(1, 1), k_pass(1, 2)
ch = kgen_chain(1)
put([p2[4], p3[0], p3[1]] + at(ch[2:], [(0, p3[2]), (4, p3[3]), (4, ch[0]), (4, ch[1]), (4 + RD, p3[4])]
                                + list(zip((14, 20, 26, 32, 32 + RD), q0)) + list(zip((42, 48, 54, 60, 60 + RD), q1))
                                + list(zip((70, 76, 82, 90), q2))))
stamp("ak"[SEL == "k"])
sc = lines(f"""s_lshl_b32 {sWdoff}, {sc2}, 7
s_mov_b32 s44, s{sWd}
s_mov_b32 s45, s{sWd+1}
s_mov_b32 s46, {1792*896}
s_mov_b32 s47, 0x20000
s_mov_b32 s48, s{sWs}
s_mov_b32 s49, s{sWs+1}
s_mov_b32 s52, s{sOut}
s_mov_b32 s53, s{sOut+1}
s_mov_b32 s54, {2048*896}
s_mov_b32 s55, 0x20000
s_mul_i32 {sFL}, {sxcd}, {FSP}
s_add_u32 {sFL}, {sFL}, {WS_FL}
s_lshl_b32 {sST}, {stg}, 8
s_add_u32 {sST}, {sST}, {WS_ST}
s_lshl_b32 {sCS}, {sc1_}, 10
s_add_u32 {sCS}, {sCS}, {WS_CS}
v_lshlrev_b32 v135, 16, v135""")
lp = k_pass(1, 3)
put(weave(kgen_mfma(0), [q2[4], lp[0]] + sc[:6] + [lp[1]] + sc[6:12] + [lp[2]] + sc[12:]
          + [lp[3], ("wv", "u0")] + [x_read(s) for s in range(4)] + [lp[4]]))
stamp("k")
a("s_waitcnt lgkmcnt(0)")
stamp("k")
a("s_barrier")
stamp("ak"[SEL == "k"])

fillg = {s: [] for s in range(28)}
fillg[2] += lines(f"""v_readfirstlane_b32 {sDs}, v135
s_mul_i32 {sH0}, {stg}, {112*1024}
s_lshl_b32 s74, {sc1_}, 13
s_add_u32 {sH0}, {sH0}, s74
s_add_u32 {sH1}, {sH0}, 4096
s_mul_i32 s74, {stg}, {FSP}
s_lshl_b32 s75, {sc1_}, 2
s_add_u32 s74, s74, s75
s_add_u32 {sFHw}, s74, {WS_FH}""")
fillg[3] += [f"v_accvgpr_read_b32 v{128+r}, a{144+r}" for r in range(8)]
fillg[2] += []
fillg[4] += [f"ds_read_b128 v[136:139], v{vKX+1}", f"ds_read_b128 v[140:143], v{vKX+1} offset:1024", ("lt", "kr")]
fillg[5] += lines(f"""s_mul_i32 {sFHr}, {sr2}, {2*FSP}
s_add_u32 {sFHr}, {sFHr}, {WS_FH}
s_mul_i32 {sHoff}, {sr2}, {2*112*1024}
s_mul_i32 s74, {sw}, {28*1024}
s_add_u32 s10, {sHoff}, s74""")
fillg[6] += [f"s_lshl_b32 s3, {sq}, 1\ns_add_u32 s3, s3, {sc2}" if ROT == 1 else f"s_mov_b32 s3, {sc2 if ROT else 0}",
             "s_sub_u32 s74, s3, 7\ns_cselect_b32 s3, s3, s74",
             f"s_mov_b32 s8, {sWdoff}\ns_add_u32 s9, s8, {448*896}",
             f"s_mul_i32 s74, s3, {64*896}\ns_add_u32 {sWdoff}, {sWdoff}, s74",
             "s_add_u32 s74, s3, 4\ns_sub_u32 s75, s74, 7\ns_cselect_b32 s74, s74, s75",
             f"s_lshl_b32 s74, s74, 12\ns_add_u32 {sHoff}, s10, s74", f"s_add_u32 s11, s10, {28*1024}"]
fillg[7] += [f"v_add_f32 v{128+r}, v{128+r}, v{136+r}" for r in range(8)]
fillg[9] += lines(f"""v_cmp_eq_u32 vcc, 0, v255
v_mov_b32 v140, {sDs}
s_mov_b32 s74, 0xaaaaaaaa
s_mov_b32 s75, 0xaaaaaaaa
v_cndmask_b32 v140, 0, v140, vcc
v_add_f32 v140, v128, v140
v_cndmask_b32 v141, v131, v132, s[74:75]
v_cndmask_b32 v142, v133, v134, s[74:75]""")
fillg[11] += lines(f"""v_cvt_pk_bf16_f32 v144, v132, v132
v_cvt_pk_bf16_f32 v145, v132, v141
v_cvt_pk_bf16_f32 v146, v131, v131
v_cvt_pk_bf16_f32 v147, v131, v131
v_cvt_pk_bf16_f32 v148, v134, v134
v_cvt_pk_bf16_f32 v149, v134, v142
v_cvt_pk_bf16_f32 v150, v133, v133
v_cvt_pk_bf16_f32 v151, v133, v133""")
fillg[13] += lines(f"""v_cvt_pk_bf16_f32 v136, v135, v134
v_cvt_pk_bf16_f32 v137, v133, v132
v_cvt_pk_bf16_f32 v138, v131, v130
v_cvt_pk_bf16_f32 v139, v129, v140
v_cvt_pk_bf16_f32 v140, v130, v130
v_cvt_pk_bf16_f32 v141, v129, v129
v_cvt_pk_bf16_f32 v142, v129, v128
v_cvt_pk_bf16_f32 v143, v128, v128""")
fillg[15] += [f"v_cndmask_b32 v{136+r}, v{136+r}, v{140+r}, {sOdd}" for r in range(4)]
fillg[17] += lines(f"""s_mul_i32 {sY}, {sjc}, {YS}
s_lshl_b32 s74, {sw}, 11
s_add_u32 {sY}, {sY}, s74
s_add_u32 {sY}, {sY}, {WS_Y}""")
fillg[19] += [f"v_mov_b32 v{r}, 0" for r in (190, 191, 193, 194)]
fillg[21] += [f"v_mov_b32 v{r}, 0" for r in (195, 196, 198, 199)]


def wd_read(kk, r):
    off = PS[(kk >> 1) % 6] - 65536 + (kk & 1) * 2048
    base = vDF if off < 65536 else vDF + 2
    return [f"ds_read_b64_tr_b16 a[{r+4*da+2*rd}:{r+4*da+2*rd+1}], v{base+da} offset:{off % 65536+rd*1024}"
            for da in range(2) for rd in range(2)]


def wd_move(kk):
    return wd_read(kk, 8 * kk)


def wfrag_read(s, t, r):
    off = SLOT[(s >> 1) % 4] + (s & 1) * 4096 + (t >> 1) * 256
    return [f"ds_read_b64_tr_b16 a[{r+2*rd}:{r+2*rd+1}], v{vWF+(t & 1)} offset:{off+rd*1024}" for rd in range(2)]


put(pack([[m] + wfrag_read(0, t, 112 + 4 * t) for t, m in enumerate(kgen_mfma(1))], w_unit(2) + [("vt", "u2")] + fillg[2], 24))
fillg[2] = []
put(x_block(2) + [("vt", "x2")])
put([f"ds_write_b128 v{vKX}, a[152:155]", f"ds_write_b128 v{vKX}, a[156:159] offset:1024", ("lt", "kx")])
stamp("k")

FL_LOAD = f"buffer_load_dword v{vF}, v{vN4}, {rWs}, {sFL} offen sc1"
F_CMP = f"v_cmp_ne_u32 vcc, {snonce}, v{vF}"
NC_LOAD = f"global_load_dword v{vNo}, v{vZ}, s[{sDbg}:{sDbg+1}] sc1"
NC_CMP = f"v_cmp_eq_u32 vcc, 0, v{vNo}"
carry, pre = [], []
for s in range(25):
    if s % 2 == 0 and s > 0:
        stamp("g")
    if 1 <= s <= 4:
        stamp("k")
    extra, dma = [], None
    if s % 2 == 1:
        u = (s + 1) // 2
        lt = {1: "x1", 5: "kr"}.get(s)
        a.wait_both(tok[f"u{u}"], ltok[lt] if lt else None)
        a("s_barrier")
        if u + 2 < 14:
            dma = ([], w_unit(u + 2), f"u{u+2}")
    if s == 0:
        extra += [("wv", "x1")] + [x_read(k) for k in range(4, 8)] + [("lt", "x1")]
    if s % 2 == 0 and 2 <= s <= 8:
        dma = ([], x_block(2 + s // 2), f"x{2+s//2}")
    if s % 2 == 0 and 4 <= s <= 12:
        cb = s // 2
        extra += [("wv", f"x{cb}")] + [x_read(k) for k in range(4 * cb, 4 * cb + 4)] + [("lt", f"x{cb}")]
    if s % 2 == 0 and 10 <= s <= 20:
        p = (s - 10) // 2
        dma = ([("wl", f"x{p+1}")] if p else [], wd_pair(2 * p), f"wd{2*p}")
    if 14 <= s <= 21:
        kk = s - 14
        if kk % 2 == 0:
            extra += [("wv", f"wd{kk}")]
        extra += wd_move(kk) + [("lt", f"mv{kk}")]
    if s in (22, 23, 24):
        kk = 12 + 2 * (s - 22)
        dma = ([("wl", f"mv{kk-11}")], wd_pair(kk), f"wd{kk}")
    if s == 12:
        extra += [NC_LOAD]
    if s == 16:
        poll("nc", NC_LOAD, NC_CMP)
        a(f"v_readfirstlane_b32 {snonce}, v{vNo}")
    if s == FL_AT:
        extra += [FL_LOAD]
    if s == FL_POLL:
        poll("fl", FL_LOAD, F_CMP)
        extra += [f"buffer_load_dword v{vF}, v{vN8}, {rWs}, {sST} offen sc1",
                  f"s_lshl_b32 s74, s97, 3\ns_add_u32 s74, s74, {WS_ST+4}\nbuffer_load_dword v228, v{vN8}, {rWs}, s74 offen sc1"]
    if FL_POLL <= s < FL_POLL + 2:
        extra += [f"buffer_load_dword a{160+t}, v{vCS}, {rWs}, {sCS} offen offset:{64*t} sc1"
                  for t in range(4 * (s - FL_POLL), 4 * (s - FL_POLL) + 4)]
    extra += fillg[s]
    AB = opt('ab', '')
    if dma and (('x' in AB and dma[2][0] == 'x') or ('w' in AB and dma[2][0] == 'w') or ('u' in AB and dma[2][0] == 'u')):
        dma = (dma[0], ["s_nop 0"] * 6, dma[2])
    main = []
    for t in range(8):
        if t % WG == 0 and s > 0:
            (main[-1] if main else pre).append(("wl", f"f{t+WG-1}" if not (PAT and t + WG - 1 == 7) else "f6"))
        c = "0" if s == 0 else f"v[{16*t}:{16*t+15}]"
        m = [f"v_mfma_f32_32x32x16_bf16 v[{16*t}:{16*t+15}], a[{112+4*t}:{115+4*t}], a[{4*s}:{4*s+3}], {c}"]
        rd = wfrag_read(s + 1, t, 112 + 4 * t) + [("lt", f"f{t}")]
        if dma and t == 0:
            m += dma[0] + [dma[1][0]]
        if PAT and t % 2 == 1 and not (s == 24 and t == 7):
            carry = rd
        else:
            m += carry + rd
            carry = []
        if dma and t % 2 == 1:
            m.append(dma[1][1 + t // 2])
            if t == 7:
                m += [("vt", dma[2]), dma[1][5]]
        main.append(m)
    put(pre + pack(main, extra, 24))
    pre = []
stamp("g")
a.wait_vm(tok["u13"])
a("s_barrier")
put(wfrag_read(26, 0, 168) + wfrag_read(27, 0, 172))
first = [f"v_cmp_gt_u32 vcc, 32, v255", "v_mov_b32 v152, 0", "v_mov_b32 v153, 0",
         f"s_add_u32 m0, {sUl}, {U1_OFF+448}", f"buffer_load_dwordx4 v{vL16}, {rWs}, {sUg} offen sc1 lds",
         f"buffer_load_dwordx4 v{vL16}, {rWs}, {sUg} offen offset:1024 sc1 lds",
         f"v_cndmask_b32 v192, 0, v{vF}, vcc\nv_cndmask_b32 v197, 0, v{vF}, vcc"]
second = [f"s_sub_u32 {sUg}, {sUg}, 2\ns_add_u32 m0, {sUl}, 448", f"buffer_load_dwordx4 v{vL16}, {rWs}, {sUg} offen sc1 lds",
          f"buffer_load_dwordx4 v{vL16}, {rWs}, {sUg} offen offset:1024 sc1 lds", ("vt", "u")]
main, epi = [], []
for t in range(8):
    r = 168 + 8 * (t % 2)
    cb = (192, 196, 190, 194)[t & 3]
    ops = [(f"a[{112+4*t}:{115+4*t}]", "a[100:103]"), (f"a[{r}:{r+3}]", "a[104:107]"), (f"a[{r+4}:{r+7}]", "a[108:111]"),
           (f"a[{160+(t & 4)}:{163+(t & 4)}]", f"v[{cb}:{cb+3}]")]
    for k, (A, B) in enumerate(ops):
        m = [f"v_mfma_f32_32x32x16_bf16 v[{16*t}:{16*t+15}], {A}, {B}, v[{16*t}:{16*t+15}]"]
        if t < 7 and k in (0, 1):
            m += wfrag_read(26 + k, t + 1, 168 + 8 * ((t + 1) % 2) + 4 * k)
        main.append(m)
    b = 16 * t
    L = [f"v_max_f32 v{b+r}, 0, v{b+r}" for r in range(8)]
    if t < 6:
        L += [f"v_mul_f32 v{b+r}, v{b+r}, v{b+8+r}" for r in range(8)]
    else:
        L += [f"v_pk_mul_f32 v[{b+r}:{b+r+1}], v[{b+r}:{b+r+1}], v[{b+8+r}:{b+9+r}]" for r in range(0, 8, 2)]
    L += [f"v_cvt_pk_bf16_f32 v{b+8+r}, v{b+2*r}, v{b+2*r+1}" for r in range(4)]
    L += [f"buffer_store_dwordx4 v[{b+8}:{b+11}], v{vL16}, {rWs}, {(sH0, sH1)[t >> 2]} offen offset:{1024*(t & 3)} sc1"]
    epi.append(L)
stamp("t")
put(pack(main[:3], first, 24) + pack(main[3:6], second, 24))
for t in range(6):
    stamp("t")
    put(pack(main[4 * t + 6:4 * t + 10], epi[t], 24))
stamp("t")
put(pack(main[30:], epi[6][:8], 24))
rest = epi[6][8:] + epi[7]
stamp()
stamp("t")
a("s_barrier")
stamp("t")


def octet_writes(d, ar, off):
    return [f"ds_write_b128 v{ar+3}, v[{d}:{d+3}] offset:{off}",
            f"ds_write2_b64 v{ar+1}, v[{d}:{d+1}], v[{d+2}:{d+3}] offset0:{off//8} offset1:{off//8+1}"] + \
           [f"ds_write2_b32 v{ar+c}, v{d+k}, v{d+k+1} offset0:{off//4+k} offset1:{off//4+k+1}" for c in (0, 2) for k in (0, 2)]


put(weave(rest, octet_writes(136, vKC, 0) + [f"ds_write_b32 v{vKZ}, v152 offset:{4096-12}", f"ds_write_b64 v{vUZ}, v[152:153]"]))
tok["h"] = a.vm_tok()
stamp("t")
a(f"s_mov_b64 exec, {sOdd}")
put(octet_writes(144, vKC + 4, 512) + octet_writes(148, vKC + 4, 0))
a("s_mov_b64 exec, -1")
stamp("t")
a(f"s_andn2_b64 exec, 1, {sOdd}")
a.wait_vm(tok["u"])
a(f"""ds_write_b16 v{vUZ}, v152 offset:448
s_mov_b64 exec, -1
s_waitcnt lgkmcnt(0)""")
stamp("t")
a("s_barrier")
stamp()
stamp("t")


def a_read(n):
    return f"ds_read_b128 a[{128+4*(n % 4)}:{131+4*(n % 4)}], v{vCK} offset:{64*(62-2*n)}"


def u_read(be, i):
    return f"ds_read_b128 v[{16*be+4*i}:{16*be+4*i+3}], v{vCU} offset:{512*be-128*i+384}"


NH = opt('nh', 8)
ORD = list(range(16, 28)) + list(range(16))


def h_load(i):
    g = []
    for ta in range(2):
        r = 96 + 8 * (i % NH) + 4 * ta
        g.append(f"buffer_load_dwordx4 v[{r}:{r+3}], v{vH+ta}, {rWs}, {sHoff} offen offset:{1024*(i % 4)} {HFL}")
    if i % 4 == 3:
        if ROT:
            g[-1] += "\n" + wrap(sHoff, 4096, "s11", "s10")
        else:
            g[-1] += f"\ns_add_u32 {sHoff}, {sHoff}, 4096" if i != 11 else f"\ns_sub_u32 {sHoff}, {sHoff}, {24*1024}"
    return g


put([a_read(0)] + [u_read(be, 0) for be in range(8)] + [a_read(1), a_read(2)])
FH_LOAD = f"buffer_load_dword v{vF}, v{vFH}, {rWs}, {sFHr} offen sc1"
fill = {n: [] for n in range(32)}
for i in range(1, 4):
    fill[i - 1] += [u_read(be, i) for be in range(8)]
fill[2] += [("lt", "ub")]
fill[FHW_AT] += [("wv", "h"), f"s_mov_b64 exec, 1\nbuffer_store_dword v{vNo}, v{vZ}, {rWs}, {sFHw} offen sc1\ns_mov_b64 exec, -1"]
fill[1] = wd_pair(18) + [("vt", "wd18")] + fill[1]
for kk in range(8, 16):
    n = 3 + (kk - 8)
    if kk % 2 == 0:
        fill[n] += [("wv", f"wd{kk}")]
    fill[n] += wd_move(kk) + [("lt", f"mv{kk}")]
    if kk % 2 == 1:
        fill[n + 2] += [("wl", f"mv{kk}")] + wd_pair(kk + 11) + [("vt", f"wd{kk+11}")]
YB = opt('yb', 15)
fill[FH_AT] += [FH_LOAD]
for j in range(7):
    fill[(YB + 1, YB + 2, YB + 3, max(17, YB + 4), 21, 25, 29)[j]] += [f"ds_write_b128 v{vYW}, a[{224+4*j}:{227+4*j}] offset:{4096*((j+1) % 8)}"]
hl = [(i, g) for i in range(28) for g in h_load(i)]
for n in range(FH_POLL, 32):
    if hl[0][0] < NH:
        fill[n] += [hl.pop(0)[1]]
for P in range(8):
    for i in range(4):
        n = 4 * P + i
        if n % 4 == 0 or n in (2, 6, 10):
            stamp("c")
        if n == YB:
            a.wait_lg(ltok["ub"])
            a("s_barrier")
        if n == FH_POLL:
            poll("fh", FH_LOAD, F_CMP)
        main = []
        for be in range(8 - P):
            j = P + be
            c = "0" if n == 0 else f"a[{224+4*j}:{227+4*j}]"
            main.append(f"v_mfma_f32_16x16x32_bf16 a[{224+4*j}:{227+4*j}], a[{128+4*(n % 4)}:{131+4*(n % 4)}], v[{16*be+4*i}:{16*be+4*i+3}], {c}")
        put(pack([[m] for m in main], ([a_read(n + 3)] if n + 3 < 32 else []) + fill[n], 8))
stamp()
stamp("f")
put([("wv", "wd16")] + wd_read(16, 128))
a(f"ds_write_b128 v{vYW}, a[252:255]")
ltok["y7"] = a.lg_tok()
stamp()
stamp("f")

XS = lambda g, e: (80 if g < 4 else 0) + 4 * g + 2 * e
FY_LOAD = f"buffer_load_dword v{vF}, v{vN4}, {rWs}, s80 offen sc1"
fill = {k: [] for k in range(28)}
fill[0] += [("wl", "y7"), "s_barrier"]
for jj in range(2):
    r = 64 + 16 * jj
    fill[0] += [f"ds_read_b64 v[{r+4*src+2*ph}:{r+4*src+2*ph+1}], v{vYR+jj} offset:{1024*src+16*ph}"
                for src in range(4) for ph in range(2)]
    fill[1 + jj] += [f"v_add_f32 v{r+k}, v{r+k}, v{r+k+4}" for k in (0, 1, 2, 3, 8, 9, 10, 11)]
    fill[1 + jj] += [f"v_cvt_pk_bf16_f32 v{r+4+k}, v{r+o}, v{r+8+o}" for k, o in enumerate((0, 2, 1, 3))] + \
        [f"buffer_store_dwordx4 v[{r+4}:{r+7}], v{vL16}, {rWs}, {sY} offen offset:{1024*jj} sc1", ("vt", "y")]
fill[4] += lines(f"""s_lshr_b32 s74, {sjc}, 5
s_lshl_b32 s74, s74, 2
s_add_u32 s74, s74, {sw}
s_mul_i32 s74, s74, {FSP}
s_and_b32 s75, {sjc}, 31
s_lshl_b32 s75, s75, 2
s_add_u32 s74, s74, s75
s_add_u32 s95, s74, {WS_FY}""", 2)
fill[FYW_AT] += [("wv", "y"), f"s_mov_b64 exec, 1\nbuffer_store_dword v{vNo}, v{vZ}, {rWs}, s95 offen sc1\ns_mov_b64 exec, -1"]
fill[5] += lines(f"""s_lshl_b32 s80, {sc2}, 2
s_lshr_b32 s74, {sr2}, 3
s_add_u32 s80, s80, s74
s_mul_i32 s80, s80, {FSP}
s_add_u32 s80, s80, {WS_FY}
s_lshl_b32 s13, {sw}, 11
v_add_u32 v230, s13, v{vL16}""", 2)
fill[9] += [f"ds_write_b128 v230, v[242:245] offset:{XR}"] + lines(f"""v_mul_u32_u24 v234, 224, v{vN4}
v_lshl_add_u32 v234, v{fKG}, 4, v234""")
fill[10] += [f"ds_write_b128 v230, v[246:249] offset:{XR+1024}"] + lines(f"""v_lshlrev_b32 v231, 4, v{fR}
v_lshl_add_u32 v231, v{vN4}, 4, v231
v_lshl_add_u32 v231, v{fKG}, 3, v231""")
fill[12] += lines(f"""v_add_u32 v236, s13, v231
v_xor_b32 v237, 16, v236
v_xor_b32 v238, 32, v236
v_xor_b32 v239, 48, v236
v_mul_u32_u24 v235, {2*YS}, v{fKG}
v_add_u32 v235, v235, v{vN4}""") + [f"ds_read_b64 v[{64+2*g}:{65+2*g}], v{236+g} offset:{XR}" for g in range(4)] + [("lt", "xr")]
fill[13] += lines(f"""s_mul_i32 s74, s17, {YS//4}
s_lshl_b32 s75, s97, 2
s_add_u32 s74, s74, s75
s_add_u32 s96, s74, {WS_Y}
s_mul_i32 s74, {sw}, {3*4096}
s_add_u32 s74, s74, {RX}
v_add_u32 v240, s74, v{vL16}""", 2)
for k in range(1, 4):
    fill[13 + k] += [f"s_xor_b32 s74, {sw}, {k}\ns_mul_i32 s74, s74, {3*4096}",
                     f"s_add_u32 s74, s74, {RX+(k-1)*4096}\nv_add_u32 v{240+k}, s74, v{vL16}"]
fill[FY_AT] += [FY_LOAD]
for g in range(4):
    for e in range(2):
        fill[17 + g] += [f"v_lshlrev_b32 v{XS(g, e)}, 16, v{64+2*g+e}", f"v_and_b32 v{XS(g, e)+1}, {sMask}, v{64+2*g+e}"]
fill[22] += [("wl", "xr"), "s_barrier"]
for g in range(4):
    for e in range(2):
        fill[min(27, FY_POLL + g // 2)] += [f"buffer_load_dword v{72+2*g+e}, v235, {rWs}, s96 offen sc1\ns_add_u32 s96, s96, {YS if e == 0 else 3*YS}"]
DEF = opt('def', NH)
late = []
HL0 = opt('hl0', 1)
for i in range(28):
    kk = ORD[i]
    if i % 2 == 0 and i > 0:
        stamp("h")
    if i < 14:
        stamp("j")
    extra = []
    if i + 1 < 12:
        if (kk + 1) % 2 == 0:
            extra += [("wv", f"wd{kk+1}")]
        extra += wd_read(kk + 1, 128 + 8 * ((kk + 1) % 2))
    if i == FY_POLL:
        poll("fy", FY_LOAD, F_CMP)
    main = []
    for ta in range(2):
        for da in range(2):
            acc = 16 * (da + 2 * ta)
            c = "0" if i == 0 else f"v[{acc}:{acc+15}]"
            fa = (8 * kk if kk < 16 else 128 + 8 * (kk % 2)) + 4 * da
            fb = 96 + 8 * (i % NH) + 4 * ta
            m = [f"v_mfma_f32_32x32x16_bf16 v[{acc}:{acc+15}], a[{fa}:{fa+3}], v[{fb}:{fb+3}], {c}"]
            if acc == 0 and i >= 28 - DEF:
                late.append(m)
                continue
            if hl and i >= HL0 and (da, ta) != (0, 0) and (hl[0][0] < i + NH or (hl[0][0] == i + NH and da == 1 and len(hl) % 2 == ta % 2)):
                m.append(hl.pop(0)[1])
            main.append(m)
    AB = opt('ab', '')
    fl_ = fill[i]
    if 'X' in AB:
        fl_ = [e for e in fl_ if isinstance(e, tuple) or not (" lds" in e or "v80," in e)]
    if 'Y' in AB and i == FYW_AT:
        fl_ = [e for e in fl_ if e != ("wv", "y")]
    if 'D' in AB:
        extra = [e for e in extra if not isinstance(e, tuple)]
    put(pack(main, extra + fl_, 24))
assert not hl
stamp()
stamp("f")
wr = [f"ds_write_b128 v240, v[{16*k+4*g}:{16*k+4*g+3}] offset:{(k-1)*4096+1024*g}" for k in range(1, 4) for g in range(4)]
put(weave(late, wr) if late else wr)
stamp("f")
a("s_waitcnt lgkmcnt(0)")
stamp("f")
a("s_barrier")
stamp("f")
for g in range(4):
    for k in range(1, 4):
        a(f"ds_read_b128 v[{16*k+4*g}:{16*k+4*g+3}], v{240+k} offset:{1024*g}")
stamp("f")
for g in range(4):
    for e in range(2):
        yr, d = 72 + 2 * g + e, XS(g, e)
        a(f"""
v_lshlrev_b32 v112, 16, v{yr}
v_and_b32 v113, {sMask}, v{yr}
v_pk_add_f32 v[{d}:{d+1}], v[{d}:{d+1}], v[112:113]
""")
stamp("f")
for g in range(4):
    for e in range(2):
        r = 4 * g + 2 * e
        for k in range(1, 4):
            a(f"v_pk_add_f32 v[{r}:{r+1}], v[{r}:{r+1}], v[{16*k+r}:{16*k+r+1}]")
        a(f"v_pk_fma_f32 v[{r}:{r+1}], v[{r}:{r+1}], v[228:229], v[{XS(g, e)}:{XS(g, e)+1}] op_sel_hi:[1,0,1]")
    a(f"v_cvt_pk_bf16_f32 v{116+2*g}, v{4*g}, v{4*g+1}\nv_cvt_pk_bf16_f32 v{117+2*g}, v{4*g+2}, v{4*g+3}")
    if g % 2 == 1:
        b = 116 + 2 * (g - 1)
        a(f"v_permlane32_swap_b32 v{b}, v{b+2}\nv_permlane32_swap_b32 v{b+1}, v{b+3}")
        a(f"buffer_store_dwordx4 v[{b}:{b+3}], v234, {rOut}, s16 offen offset:{16*(g-1)} {OUTFL}")
        stamp("f")
stamp()


def stamp_out():
    if not STAMP:
        return
    a(f"""
s_waitcnt vmcnt(0) lgkmcnt(0)
v_writelane_b32 v254, s98, {nstamp[0]-1}
{CLK} s[98:99]
s_waitcnt lgkmcnt(0)
v_writelane_b32 v254, s98, 15
s_lshl_b32 s84, s2, 2
s_add_u32 s84, s84, {sw}
s_lshl_b32 s84, s84, 6
s_add_u32 s84, s84, {WS_TS}
v_lshlrev_b32 v1, 2, v255
s_mov_b64 exec, 0xffff
buffer_store_dword v254, v1, {rWs}, s84 offen
""")


stamp_out()
a("s_endpgm")

a.reset()
NC_LOAD = f"global_load_dword v202, v203, s[{sDbg}:{sDbg+1}] sc1"
NC_CMP = "v_cmp_eq_u32 vcc, 0, v202"
shq = "s59"
a(f"""
L_helper:
s_lshl_b32 {shq}, {sxcd}, 2
s_add_u32 {shq}, {shq}, {sj}
v_mov_b32 v203, 0
v_lshrrev_b32 v1, 2, v255
s_lshl_b32 s83, {shq}, 2
s_add_u32 s83, s83, {sw}
s_lshl_b32 s72, s83, 4
v_add_u32 v4, s72, v1
v_mul_u32_u24 v5, 896, v4
v_and_b32 v2, 3, v255
v_lshl_add_u32 v5, v2, 4, v5
s_lshr_b32 s73, {sxcd}, 1
s_lshl_b32 s73, s73, 2
s_add_u32 s60, s73, {sj}
s_min_u32 s73, s60, 13
s_and_b32 s74, {sxcd}, 1
s_mul_i32 s74, s74, 14
s_add_u32 s61, s73, s74
s_lshr_b32 s73, s61, 1
s_lshl_b32 s82, s73, 8
v_lshrrev_b32 v6, 4, v255
s_lshl_b32 s75, {sw}, 2
v_add_u32 v6, s75, v6
v_mul_u32_u24 v7, 3584, v6
v_and_b32 v3, 15, v255
v_lshl_add_u32 v7, v3, 4, v7
s_mov_b32 s72, {WS_EP}
s_waitcnt lgkmcnt(0)
""")
if STAMP:
    a("v_mov_b32 v254, 0\nv_writelane_b32 v254, s100, 0")
    nstamp[0] = 1
stamp(SEL[0])
a(f"""
s_mov_b32 s36, s{sX}
s_mov_b32 s37, s{sX+1}
s_mov_b32 s48, s{sWs}
s_mov_b32 s49, s{sWs+1}
buffer_load_dword v202, v203, {rWs}, s72 offen sc1
""")
for i in range(14):
    a(f"buffer_load_dwordx4 v[{8+4*i}:{11+4*i}], v5, {rX}, 0 offen offset:{64*i}")
a(f"""
s_mov_b32 s73, 1664525
v_mul_lo_u32 v202, v202, s73
s_cmp_eq_u32 s83, 127
v_add_u32 v202, 1013904225, v202
v_or_b32 v202, 1, v202
s_cbranch_scc0 L_hnoep
s_mov_b64 exec, 1
""")
a.items.append(("raw", f"    global_store_dword v203, v202, s[{sDbg}:{sDbg+1}] sc1"))
a.items.append(("raw", f"    buffer_store_dword v202, v203, {rWs}, s72 offen sc1"))
a(f"""
s_mov_b64 exec, -1
L_hnoep:
s_bitcmp1_b32 s61, 0
s_cselect_b32 s40, s{sWu}, s{sWg}
s_cselect_b32 s41, s{sWu+1}, s{sWg+1}
""")
wl = [f"buffer_load_dwordx4 v[{72+4*i}:{75+4*i}], v7, {rW}, s82 offen\ns_add_u32 s82, s82, {16*3584}" for i in range(28)]
HW0 = opt('hw0', 0)
put(wl[:HW0])
wl = wl[HW0:]
a(f"""
s_mov_b32 s76, 0x3f803f80
s_mov_b32 s77, 0x00003f80
s_mov_b32 s79, 0x3f800000
""")
EXACT = "--noexact" not in sys.argv
L = []
for i in range(56):
    c0, c1 = ("0", "0") if i == 0 else ("v64", "v68")
    L.append([f"v_dot2_f32_bf16 v64, v{8+i}, s76, {c0}", f"v_dot2_f32_bf16 v68, v{8+i}, v{8+i}, {c1}"])
HW1 = opt('hw1', 8)
put(L[0] + weave(L[1:], wl[:HW1]))
wl = wl[HW1:]
stamp()
a(f"""
v_add_f32_dpp v64, v64, v64 quad_perm:[1,0,3,2] row_mask:0xf bank_mask:0xf
v_add_f32_dpp v68, v68, v68 quad_perm:[1,0,3,2] row_mask:0xf bank_mask:0xf
v_lshlrev_b32 v4, 3, v4
v_add_f32_dpp v64, v64, v64 quad_perm:[2,3,0,1] row_mask:0xf bank_mask:0xf
v_add_f32_dpp v68, v68, v68 quad_perm:[2,3,0,1] row_mask:0xf bank_mask:0xf
v_mul_f32 v64, {hex(0x3b124925)}, v64
v_mul_f32 v68, {hex(0x3b124925)}, v68
v_fma_f32 v68, -v64, v64, v68
v_cvt_pk_bf16_f32 v64, -v64, -v64
v_max_f32 v68, 0, v68
v_cvt_pk_bf16_f32 v68, v68, v68
v_and_b32 v68, {sMask}, v68
v_add_f32 v68, 0x3727c5ac, v68
v_cvt_pk_bf16_f32 v68, v68, v68
v_and_b32 v68, {sMask}, v68
v_sqrt_f32 v68, v68
v_and_b32 v66, {sMask}, v64
v_cvt_pk_bf16_f32 v68, v68, v68
v_and_b32 v68, {sMask}, v68
v_rcp_f32 v70, v68
s_mov_b32 s74, {WS_ST}
v_fma_f32 v71, -v68, v70, 1.0
v_fma_f32 v70, v70, v71, v70
v_mul_f32 v65, v70, v70
v_mul_f32 v71, v66, v70
s_mov_b32 s80, 0x11111111
s_mov_b32 s81, 0x11111111
s_mov_b64 exec, s[80:81]
buffer_store_dwordx2 v[64:65], v4, {rWs}, s74 offen sc1
s_mov_b64 exec, -1
v_mul_u32_u24 v5, 960, v1
s_mul_i32 s75, {sw}, {16*960}
v_lshl_add_u32 v5, v2, 4, v5
v_add_u32 v5, s75, v5
""")
L2B = 64 * 960
L3B = L2B + 448 * 144
a(f"""
v_lshrrev_b32 v1, 5, v255
v_bfe_u32 v2, v255, 2, 2
v_lshl_add_u32 v2, v1, 3, v2
v_mul_u32_u24 v2, 960, v2
v_bfe_u32 v4, v255, 4, 1
v_lshl_add_u32 v2, v4, 5, v2
v_and_b32 v4, 3, v255
v_lshl_add_u32 v2, v4, 3, v2
v_add_u32 v194, s75, v2
v_and_b32 v4, 31, v255
v_mul_u32_u24 v4, 144, v4
s_lshl_b32 s74, {sw}, 5
s_add_u32 s74, s74, {L2B}
v_lshl_add_u32 v4, v1, 4, v4
v_add_u32 v195, s74, v4
v_lshlrev_b32 v6, 9, v6
v_lshl_add_u32 v6, v3, 5, v6
v_add_u32 v6, {L3B}, v6
v_lshrrev_b32 v1, 3, v255
v_and_b32 v2, 7, v255
v_lshlrev_b32 v2, 4, v2
v_mul_u32_u24 v197, {XTS}, v1
v_add_u32 v197, v197, v2
v_mul_u32_u24 v1, 144, v1
v_add_u32 v1, v1, v2
s_mul_i32 s74, {sw}, {112*144}
s_add_u32 s74, s74, {L2B}
v_add_u32 v196, s74, v1
s_lshl_b32 s74, {shq}, 7
s_mul_i32 s75, {sw}, {112*XTS}
s_add_u32 s74, s74, s75
s_add_u32 s62, s74, {WS_XT}
s_and_b32 s75, {sw}, 1
s_lshl_b32 s75, s75, 8
v_lshl_add_u32 v2, v255, 2, s75
v_add_u32 v198, {L3B}, v2
""")


L = []
for i in range(56):
    t = 186 + 2 * (i % 4)
    if EXACT:
        g = [f"v_dot2_f32_bf16 v{t}, v{8+i}, s77, v66", f"v_dot2_f32_bf16 v{t+1}, v{8+i}, s79, v66"]
        if i > 0:
            p = 186 + 2 * ((i - 1) % 4)
            g += [f"v_cvt_pk_bf16_f32 v{7+i}, v{p}, v{p+1}", f"v_lshlrev_b32 v{p}, 16, v{7+i}", f"v_and_b32 v{p+1}, {sMask}, v{7+i}",
                  f"v_pk_mul_f32 v[{p}:{p+1}], v[{p}:{p+1}], v[70:71] op_sel_hi:[1,0]", f"v_cvt_pk_bf16_f32 v{7+i}, v{p}, v{p+1}"]
            if i % 4 == 0:
                g.append(f"ds_write_b128 v5, v[{4+i}:{7+i}] offset:{64*(i//4-1)}")
        if i == 55:
            g += ["s_nop 0", f"v_cvt_pk_bf16_f32 v63, v{t}, v{t+1}", f"v_lshlrev_b32 v{t}, 16, v63", f"v_and_b32 v{t+1}, {sMask}, v63",
                  f"v_pk_mul_f32 v[{t}:{t+1}], v[{t}:{t+1}], v[70:71] op_sel_hi:[1,0]", f"v_cvt_pk_bf16_f32 v63, v{t}, v{t+1}",
                  f"ds_write_b128 v5, v[60:63] offset:{64*13}"]
    else:
        g = [f"v_lshlrev_b32 v{t}, 16, v{8+i}", f"v_and_b32 v{t+1}, {sMask}, v{8+i}",
             f"v_pk_fma_f32 v[{t}:{t+1}], v[{t}:{t+1}], v[70:71], v[70:71] op_sel:[0,0,1] op_sel_hi:[1,0,1]",
             f"v_cvt_pk_bf16_f32 v{8+i}, v{t}, v{t+1}"]
        if i % 4 == 3:
            g.append(f"ds_write_b128 v5, v[{8+i-3}:{8+i}] offset:{64*(i//4)}")
    L.append(g)
HW2 = opt('hw2', 99)
put(weave(L, wl[:HW2]))
wl = wl[HW2:]
stamp()
HW3 = opt('hw3', 99)
put(wl[:min(HW3, 12)])
wl2 = wl[min(HW3, 12):HW3]
wl = wl[HW3:]
for b in range(14):
    a(f"ds_read_b64_tr_b16 v[{8+4*b}:{9+4*b}], v194 offset:{64*b}\nds_read_b64_tr_b16 v[{10+4*b}:{11+4*b}], v194 offset:{64*b+4*960}")
cs = []
for i in range(28):
    for d in range(4):
        c0, c1 = ("0", "0") if i == 0 else (f"v{64+2*d}", f"v{65+2*d}")
        cs += [f"v_dot2_f32_bf16 v{64+2*d}, v{72+4*i+d}, s77, {c0}", f"v_dot2_f32_bf16 v{65+2*d}, v{72+4*i+d}, s79, {c1}"]
NC0 = opt('nc0', 56)
put(weave([f"ds_write_b128 v195, v[{8+4*b}:{11+4*b}] offset:{32*144*b}" for b in range(14)], wl2 + cs[:NC0]))
a(f"{NC_LOAD}\ns_waitcnt lgkmcnt(0)\ns_barrier")
stamp()
for b in range(14):
    a(f"ds_read_b128 v[{8+4*b}:{11+4*b}], v196 offset:{8*144*b}")
put(weave([f"buffer_store_dwordx4 v[{8+4*b}:{11+4*b}], v197, {rWs}, s62 offen sc1\ns_add_u32 s62, s62, {8*XTS}" for b in range(14)], [] if wl else cs[NC0:]))
if wl:
    put(wl + cs[NC0:])
a("""
ds_write_b128 v6, v[64:67]
ds_write_b128 v6, v[68:71] offset:16
s_waitcnt lgkmcnt(0)
s_barrier
""")
stamp()
for r in range(16):
    a(f"ds_read_b32 v{72+r}, v198 offset:{512*r}")
for st_ in (8, 4, 2, 1):
    for r in range(st_):
        a(f"v_add_f32 v{72+r}, v{72+r}, v{72+r+st_}")
a(f"""
v_cvt_pk_bf16_f32 v73, v72, v72
v_and_b32 v73, {sMask}, v73
v_sub_f32 v74, v72, v73
v_cvt_pk_bf16_f32 v73, v73, v74
s_lshl_b32 s74, s61, 9
s_add_u32 s74, s74, {WS_CS}
s_cmp_lt_u32 s60, 14
s_cselect_b32 s74, s74, {WS_SIZE}
s_cmp_lt_u32 {sw}, 2
s_cselect_b32 s74, s74, {WS_SIZE}
buffer_store_dword v73, v2, {rWs}, s74 offen sc1
""")
stamp()
poll("hnc", NC_LOAD, NC_CMP)
a(f"""
v_mul_u32_u24 v1, {FSP}, v255
s_lshl_b32 s74, {shq}, 2
s_add_u32 s74, s74, {WS_FL}
s_waitcnt vmcnt(0)
s_barrier
s_cmp_eq_u32 {sw}, 0
s_cbranch_scc0 L_hdone
s_mov_b64 exec, 0xff
buffer_store_dword v202, v1, {rWs}, s74 offen sc1
s_mov_b64 exec, -1
L_hdone:
""")
stamp()
stamp_out()
a("L_end:\ns_endpgm")
for sp in slow:
    a.reset()
    a(sp)
a("L_codeend:\ns_endpgm")

body = a.render()
here = os.path.dirname(os.path.abspath(__file__))
ref = open(os.path.join(here, "..", "cdna_kernels", NAME + ".s.ref")).read()
head = [l for l in ref.split("\n") if l.startswith(";") and "@launch" not in l and "Override" not in l and "grid=ceil" not in l]
txt = "\n".join(head) + f"""
; Generated by tools/gen.py (hand-written generator).  XTS={XTS} YS={YS}
; @launch grid=(256,1,1) block=(256,1,1) lds=163840
.amdgcn_target "amdgcn-amd-amdhsa--gfx950"
.text
.globl {NAME}_kernel
.p2align 8
.type {NAME}_kernel,@function
{NAME}_kernel:
{body}
.section .rodata,"a"
.p2align 6
.amdhsa_kernel {NAME}_kernel
  .amdhsa_next_free_vgpr 512
  .amdhsa_next_free_sgpr 102
  .amdhsa_accum_offset 256
  .amdhsa_group_segment_fixed_size 0
  .amdhsa_kernarg_size 128
  .amdhsa_user_sgpr_count 2
  .amdhsa_user_sgpr_kernarg_segment_ptr 1
  .amdhsa_system_sgpr_workgroup_id_x 1
.end_amdhsa_kernel
"""
out = [x for x in sys.argv[1:] if not x.startswith("--")]
path = out[0] if out else os.path.join(here, "..", "cdna_kernels", NAME + ".s")
open(path, "w").write(txt)
print(path, a.stats, file=sys.stderr)
```

```python
import sys, os
sys.path.insert(0, os.path.dirname(os.path.abspath(__file__)))
from asmdsl import Asm

NAME = "parallel_sum__ssm_conv_s4__glu_gated_reglu__prompt"
STAMP = "--stamp" in sys.argv


def opt(name, dflt):
    v = [x.split('=')[1] for x in sys.argv if x.startswith('--' + name + '=')]
    return type(dflt)(v[0]) if v else dflt


WS_H, WS_XT, WS_Y = 0x0, 0x700000, 0x900000
XTS, YS = 4096 + opt('xtp', 128), 8192 + opt('yp', 128)
WS_ST, WS_CS = 0xB00000, 0xB04000
WS_FH, WS_FY, WS_FL, WS_EP = 0xB10000, 0xB20000, 0xB28000, 0xB2C000
WS_TS = 0xB30000
WS_SIZE = 0xB80000
FSP = 1024
SLOT = [0, 16384, 32768, 49152]
XB = 32768
SC = 147456
UB = 33536
U1_OFF = 4640
U_CH = 9280
KC0, KC_CH, KC_CP = 16, 16656, 4160
YX = 32768
RX = 0
XR = 0
PS = [SC] + [XB + k * 16384 for k in range(2, 7)]
SPIN = 200000
FHW_AT, FH_AT, FH_POLL = opt('fhw', 2), opt('fh', 16), opt('fhp', 20)
FYW_AT, FY_AT, FY_POLL = opt('fyw', 8), opt('fy', 21), opt('fyp', 26)
FL_AT, FL_POLL = opt('fl', 20), opt('flp', 23)
OUTFL = 'sc1' if '--outsc1' in sys.argv else ''
SEL = opt('sel', 'a')
CV = opt('cv', 20)
PAT = opt('pat', 0)
WG = opt('wg', 4)

sX, sAre, sAim, sBre, sBim, sCre, sCim, sLdt, sDsk = 4, 6, 8, 10, 12, 14, 16, 18, 20
sWg, sWu, sWd, sOut, sDbg, sWs = 24, 26, 28, 30, 32, 34
rX, rW, rWd, rWs, rOut = "s[36:39]", "s[40:43]", "s[44:47]", "s[48:51]", "s[52:55]"
sw, sxcd, sj, sr1, sc1_, sjc, sr2, sc2, snonce = "s56", "s57", "s58", "s59", "s60", "s61", "s62", "s63", "s64"
sWoff, sWdoff, sDs, scnt = "s65", "s66", "s67", "s68"
sq, sXoff, sw4k, sWl, sMask = "s69", "s72", "s73", "s77", "s78"
sFL, stg, sUl, sUg, sH0, sH1, sKC, sHoff = "s80", "s81", "s82", "s83", "s86", "s87", "s88", "s89"
sST, sCS, sFHw, sFHr, sY = "s90", "s91", "s92", "s93", "s94"
sOdd = "s[22:23]"

vKC, vKZ, vUZ, vKX, vXR, vXD, vWD, vWF, vKL = 160, 168, 169, 170, 172, 180, 184, 188, 190
vDD, vDF, vCU, vCK, vN4, vN8, vCS, vF, vYW, vYR, vFH, vH = 200, 204, 208, 209, 210, 211, 212, 213, 214, 215, 217, 218
fC, fR, fKG, fQ, fG, vNo, vZ, vL16 = 220, 221, 222, 223, 226, 224, 225, 250

a = Asm()
slow = []
nstamp = [0]
tok, ltok = {}, {}


def stamp(kind="a"):
    if not STAMP or kind not in SEL:
        return
    k = nstamp[0]
    nstamp[0] += 1
    if k > 1:
        a.items.append(("raw", f"    v_writelane_b32 v254, s98, {k-1}"))
    a.items.append(("raw", f"    {CLK} s[98:99]"))


def poll(name, load, cmp_):
    a(cmp_)
    a(f"s_cbranch_vccnz L_slow_{name}")
    a(f"L_back_{name}:")
    slow.append(f"""L_slow_{name}:
s_mov_b32 {scnt}, 0
L_retry_{name}:
s_add_u32 {scnt}, {scnt}, 1
s_cmp_gt_u32 {scnt}, {SPIN}
s_cbranch_scc1 L_back_{name}
s_sleep 1
{load}
s_waitcnt vmcnt(0)
{cmp_}
s_cbranch_vccnz L_retry_{name}
s_branch L_back_{name}""")


def put(items):
    for e in items:
        if isinstance(e, tuple):
            if e[0] == "vt": tok[e[1]] = a.vm_tok()
            if e[0] == "lt": ltok[e[1]] = a.lg_tok()
            if e[0] == "wv": a.wait_vm(tok[e[1]])
            if e[0] == "wl": a.wait_lg(ltok[e[1]])
        else:
            a(e)


def weave(main, extra):
    nreal = sum(1 for e in extra if not isinstance(e, tuple))
    out, k, done = [], 0, 0
    for t, m in enumerate(main):
        out += m if isinstance(m, list) else [m]
        goal = -(-(nreal * (t + 1)) // len(main))
        while k < len(extra) and (isinstance(extra[k], tuple) or done < goal):
            out.append(extra[k])
            done += not isinstance(extra[k], tuple)
            k += 1
    return out


def cost(e):
    if isinstance(e, tuple):
        return 4 if e[0] in ("wv", "wl") else 0
    c = 0
    for l in e.split("\n"):
        op = l.split()[0]
        if op.startswith(("buffer_", "global_")):
            c += CV if "x4" in op else 12
        elif op.startswith("ds_write"):
            c += 28 if "b128" in op or "2_b64" in op else 14
        else:
            c += 4
    return c


def pack(main, extra, cap):
    base = [sum(cost(x) for x in m[1:]) for m in main]
    n, G = len(extra), len(main)
    cs = [cost(e) for e in extra]
    INF = 1 << 60
    best = [[INF] * (n + 1) for _ in range(G + 1)]
    frm = [[0] * (n + 1) for _ in range(G + 1)]
    best[0][0] = 0
    for g in range(G):
        for i in range(n + 1):
            if best[g][i] == INF:
                continue
            load = base[g]
            for j in range(i, n + 1):
                if j > i:
                    load += cs[j - 1]
                v = best[g][i] + 1000 * max(0, load - cap) + load * load // 16
                if v < best[g + 1][j]:
                    best[g + 1][j] = v
                    frm[g + 1][j] = i
    cuts, j = [], n
    for g in range(G, 0, -1):
        cuts.append((frm[g][j], j))
        j = frm[g][j]
    cuts.reverse()
    out = []
    for m, (i, j) in zip(main, cuts):
        out += m + extra[i:j]
    return out


def lines(txt, per=1):
    L = [l for l in txt.strip().split("\n")]
    return ["\n".join(L[i:i + per]) for i in range(0, len(L), per)]


ROT = opt('rot', 0)
HFL = opt('hfl', 'sc1').replace('_', ' ').replace('none', '')


def wrap(reg, step, lim, base):
    return f"s_add_u32 {reg}, {reg}, {step}\ns_cmp_eq_u32 {reg}, {lim}\ns_cselect_b32 {reg}, {base}, {reg}"


def dma4(m0, vo, srd, soff, step, fl=""):
    g = [m0, f"buffer_load_dwordx4 v{vo}, {srd}, {soff} offen {fl} lds"]
    for i in range(1, 4):
        g.append(f"buffer_load_dwordx4 v{vo+i}, {srd}, {soff} offen offset:{1024*i} {fl} lds")
    g.append(f"s_add_u32 {soff}, {soff}, {step}")
    return g


def w_unit(u):
    return dma4(f"s_add_u32 m0, {sWl}, {SLOT[u % 4]}", vWD, rW, sWoff, 32 * 3584)


def x_block(cb):
    return dma4(f"s_add_u32 m0, {sw4k}, {XB+cb*16384}", vXD, rX, sXoff, 128)


def wd_pair(kk):
    g = dma4(f"s_add_u32 m0, {sw4k}, {PS[(kk >> 1) % 6]}", vDD, rWd, sWdoff, 32 * 896)
    if ROT and kk % 4 == 2:
        g[-1] = wrap(sWdoff, 32 * 896, "s9", "s8")
    return g


CLK = "s_memtime" if "--cyc" in sys.argv else "s_memrealtime"
if STAMP:
    a(f"{CLK} s[100:101]")
a(f"""
s_cmp_ge_u32 s2, 256
s_cbranch_scc1 L_end
s_load_dwordx16 s[4:19], s[0:1], 0
s_load_dwordx16 s[20:35], s[0:1], 64
s_getpc_b64 s[70:71]
L_pc:
s_and_b32 {sxcd}, s2, 7
s_lshr_b32 {sj}, s2, 3
v_lshrrev_b32 v1, 6, v0
v_and_b32 v255, 63, v0
v_readfirstlane_b32 {sw}, v1
""")
a(f"""
s_and_b32 {sq}, {sj}, 3
s_lshl_b32 s74, {sq}, 6
v_lshl_add_u32 v2, v1, 4, v255
v_add_u32 v2, s74, v2
v_lshlrev_b32 v2, 7, v2
v_min_u32 v2, L_codeend-L_pc-4, v2
s_mov_b64 exec, 0xffff
{"global_load_dword v253, v2, s[70:71]" if "--nocodepf" not in sys.argv else ""}
s_mov_b64 exec, -1
s_mov_b32 s38, {2048*896}
s_mov_b32 s39, 0x20000
s_mov_b32 s42, {448*3584}
s_mov_b32 s43, 0x20000
s_mov_b32 s50, {WS_SIZE}
s_mov_b32 s51, 0x20000
v_lshlrev_b32 v{vL16}, 4, v255
s_mov_b32 {sMask}, 0xffff0000
s_cmp_lt_u32 {sj}, 4
s_cbranch_scc1 L_helper
""")

a(f"""
s_sub_u32 {sj}, {sj}, 4
s_mul_i32 s74, {sxcd}, 28
s_add_u32 {sjc}, s74, {sj}
s_lshl_b32 s74, {sjc}, 10
s_lshl_b32 s75, {sw}, 8
s_add_u32 s74, s74, s75
v_lshl_add_u32 v4, v255, 2, s74
s_lshr_b32 s79, s74, 9
s_lshl_b32 s74, s79, 1
v_mov_b32 v5, s74
s_lshr_b32 {sc2}, {sj}, 2
s_lshr_b32 s74, {sxcd}, 1
s_lshl_b32 s74, s74, 2
s_add_u32 {sr1}, s74, {sq}
s_lshl_b32 {stg}, {sr1}, 2
s_add_u32 {stg}, {stg}, {sw}
s_mul_i32 {sXoff}, {stg}, {32*896}
s_lshl_b32 {sw4k}, {sw}, 12
s_and_b32 s74, {sxcd}, 1
s_mul_i32 s74, s74, 7
s_add_u32 {sc1_}, s74, {sc2}
s_lshl_b32 {sWoff}, {sc1_}, 8
s_lshr_b32 s84, {sw}, 1
s_and_b32 s85, {sw}, 1
s_lshl_b32 s74, s85, 13
s_lshl_b32 s75, s84, 12
s_add_u32 {sWl}, s74, s75
v_and_b32 v{fC}, 3, v255
v_bfe_u32 v{fR}, v255, 2, 2
v_lshrrev_b32 v{fKG}, 5, v255
v_lshrrev_b32 v{fQ}, 4, v255
v_and_b32 v{fG}, 1, v{fQ}
v_lshrrev_b32 v6, 3, v255
v_mul_u32_u24 v1, 896, v6
v_and_b32 v2, 7, v255
v_xor_b32 v2, v2, v{fQ}
v_lshl_add_u32 v{vXD}, v2, 4, v1
v_xor_b32 v{vXD+1}, 64, v{vXD}
v_add_u32 v{vXD+1}, {8*896-1024}, v{vXD+1}
v_add_u32 v{vXD+2}, {2*(8*896-1024)}, v{vXD}
v_add_u32 v{vXD+3}, {2*(8*896-1024)}, v{vXD+1}
s_lshl_b32 s74, s84, 4
v_add_u32 v1, s74, v{fR}
v_mul_u32_u24 v1, 3584, v1
v_lshl_add_u32 v1, v{fQ}, 6, v1
s_lshl_b32 s76, s85, 1
v_xor_b32 v2, s76, v{fC}
v_lshl_add_u32 v{vWD}, v2, 4, v1
v_add_u32 v{vWD+1}, {4*3584-1024}, v{vWD}
v_add_u32 v{vWD+2}, {2*(4*3584-1024)}, v{vWD}
v_add_u32 v{vWD+3}, {3*(4*3584-1024)}, v{vWD}
""")
if STAMP:
    a("v_mov_b32 v254, 0\ns_waitcnt lgkmcnt(0)\nv_writelane_b32 v254, s100, 0")
    nstamp[0] = 1
stamp(SEL[0])
a(f"""
s_waitcnt lgkmcnt(0)
global_load_ushort v134, v5, s[{sLdt}:{sLdt+1}]
global_load_dword v128, v4, s[{sAre}:{sAre+1}]
global_load_dword v129, v4, s[{sAim}:{sAim+1}]
global_load_dword v130, v4, s[{sBre}:{sBre+1}]
global_load_dword v131, v4, s[{sBim}:{sBim+1}]
global_load_dword v132, v4, s[{sCre}:{sCre+1}]
global_load_dword v133, v4, s[{sCim}:{sCim+1}]
global_load_ushort v135, v5, s[{sDsk}:{sDsk+1}]
s_mov_b32 s36, s{sX}
s_mov_b32 s37, s{sX+1}
s_bitcmp1_b32 {sw}, 0
s_cselect_b32 s40, s{sWu}, s{sWg}
s_cselect_b32 s41, s{sWu+1}, s{sWg+1}
s_cselect_b64 {sOdd}, -1, 0
""")
LATE = opt('late', 2)
first_dma = x_block(0) + w_unit(0) + [("vt", "u0")]
if not LATE:
    put(first_dma)
a(f"""
s_add_u32 s74, {sw4k}, {SC}
v_add_u32 v{vKX}, s74, v{vL16}
v_xor_b32 v{vKX+1}, 4096, v{vKX}
v_bfe_u32 v1, v255, 1, 2
v_lshlrev_b32 v7, 4, v1
v_lshl_add_u32 v7, v255, 6, v7
v_add_u32 v{vKL}, s74, v7
v_xor_b32 v{vKL+1}, 16, v{vKL}
v_xor_b32 v{vKL+2}, 32, v{vKL}
v_xor_b32 v{vKL+3}, 48, v{vKL}
v_lshl_add_u32 v7, v{fKG}, 3, v{fR}
v_lshlrev_b32 v7, 6, v7
v_bfe_u32 v8, v255, 1, 1
v_lshl_add_u32 v8, v{fG}, 1, v8
v_lshrrev_b32 v9, 1, v{fR}
v_xor_b32 v8, v8, v9
v_lshl_add_u32 v7, v8, 4, v7
v_and_b32 v10, 1, v255
v_lshl_add_u32 v7, v10, 3, v7
v_add_u32 v{vKL+4}, s74, v7
v_xor_b32 v{vKL+5}, 32, v{vKL+4}
v_add_u32 v{vKL+5}, 256, v{vKL+5}
s_lshl_b32 s76, s85, 5
v_xor_b32 v{vKL+6}, s76, v{vKL+4}
v_xor_b32 v{vKL+7}, s76, v{vKL+5}
v_and_b32 v11, 31, v255
v_bfe_u32 v12, v255, 1, 3
v_xor_b32 v7, v12, v{fKG}
v_lshlrev_b32 v7, 4, v7
v_lshl_add_u32 v7, v11, 7, v7
s_add_u32 s74, {sw4k}, {XB}
v_add_u32 v{vXR}, s74, v7
v_xor_b32 v{vXR+1}, 32, v{vXR}
v_xor_b32 v{vXR+2}, 64, v{vXR}
v_xor_b32 v{vXR+3}, 96, v{vXR}
v_add_u32 v{vXR+4}, 0x10000, v{vXR}
v_add_u32 v{vXR+5}, 0x10000, v{vXR+1}
v_add_u32 v{vXR+6}, 0x10000, v{vXR+2}
v_add_u32 v{vXR+7}, 0x10000, v{vXR+3}
v_lshlrev_b32 v13, 3, v{fC}
v_lshl_add_u32 v13, v{fR}, 6, v13
v_mul_u32_u24 v7, {8192+32}, v{fG}
v_lshl_add_u32 v7, v{fKG}, 11, v7
v_add_u32 v{vWF}, v7, v13
v_xor_b32 v{vWF+1}, 32, v{vWF}
v_lshl_add_u32 v7, v{fG}, 5, v13
v_lshl_add_u32 v7, v{fKG}, 9, v7
s_lshl_b32 s74, s85, 8
s_add_u32 s74, s74, {sw4k}
s_add_u32 s74, s74, 65536
v_add_u32 v{vDF}, s74, v7
v_xor_b32 v{vDF+1}, 256, v{vDF}
v_add_u32 v{vDF+2}, 0x10000, v{vDF}
v_add_u32 v{vDF+3}, 0x10000, v{vDF+1}
s_mul_i32 s74, {sw}, 448
v_lshl_add_u32 v7, v{fKG}, 2, v{fR}
v_add_u32 v7, s74, v7
v_mul_u32_u24 v7, 896, v7
v_lshl_add_u32 v7, v{fG}, 6, v7
v_lshl_add_u32 v{vDD}, v{fC}, 4, v7
v_add_u32 v{vDD+1}, {8*896-1024}, v{vDD}
v_add_u32 v{vDD+2}, {2*(8*896-1024)}, v{vDD}
v_add_u32 v{vDD+3}, {3*(8*896-1024)}, v{vDD}
v_lshlrev_b32 v{vN4}, 2, v11
v_lshlrev_b32 v{vN8}, 3, v11
""")
setup2 = lines(f"""s_mul_i32 {sKC}, s84, {KC_CH}
s_add_u32 {sKC}, {sKC}, {KC0}
s_lshl_b32 s74, s85, 10
s_sub_u32 s74, {sKC}, s74
s_add_u32 s74, s74, {16*255-12}
v_sub_u32 v{vKC}, s74, v{vL16}
v_add_u32 v{vKC+1}, {KC_CP+4}, v{vKC}
v_add_u32 v{vKC+2}, {2*(KC_CP+4)}, v{vKC}
v_add_u32 v{vKC+3}, {3*(KC_CP+4)}, v{vKC}
v_lshlrev_b32 v7, 9, v{fKG}
v_sub_u32 v7, v{vKC}, v7
v_subrev_u32 v{vKC+4}, {16*96}, v7
v_add_u32 v{vKC+5}, {KC_CP+4}, v{vKC+4}
v_add_u32 v{vKC+6}, {2*(KC_CP+4)}, v{vKC+4}
v_add_u32 v{vKC+7}, {3*(KC_CP+4)}, v{vKC+4}
v_and_b32 v11, 15, v255
v_mul_u32_u24 v7, {KC_CP+4}, v{fQ}
v_lshl_add_u32 v7, v11, 2, v7
v_add_u32 v{vKZ}, {sKC}, v7
v_lshlrev_b32 v7, 2, v11
v_lshl_add_u32 v{vCS}, v{fG}, 9, v7
v_min_u32 v7, 52, v7
v_mul_u32_u24 v8, {FSP}, v{fG}
v_add_u32 v{vFH}, v7, v8
s_mul_i32 s75, s84, {U_CH}
s_add_u32 s75, s75, {UB}
s_mul_i32 s74, s85, {U1_OFF}
s_add_u32 s74, s74, s75
v_min_u32 v7, 55, v255
v_lshl_add_u32 v{vUZ}, v7, 3, s74
s_lshl_b32 s74, s85, 11
s_add_u32 {sUl}, s75, s74
s_mul_i32 {sUg}, s79, {XTS}
s_add_u32 {sUg}, {sUg}, s74
s_add_u32 {sUg}, {sUg}, {WS_XT}
v_mul_u32_u24 v7, {U1_OFF}, v10
v_lshl_add_u32 v7, v12, 6, v7
v_lshl_add_u32 v7, v{fQ}, 4, v7
s_lshl_b32 s74, s85, 6
s_sub_u32 s75, s75, s74
s_add_u32 s75, s75, {448-384}
v_add_u32 v{vCU}, s75, v7
v_mul_u32_u24 v7, {KC_CP}, v{fC}
v_sub_u32 v8, v{fQ}, v{fR}
v_lshl_add_u32 v7, v8, 4, v7
s_sub_u32 s74, {sKC}, s74
s_add_u32 s74, s74, {16*255-64*62}
v_add_u32 v{vCK}, s74, v7
s_lshl_b32 s74, {sw}, 10
s_add_u32 s74, s74, {YX}
v_add_u32 v{vYW}, s74, v{vL16}
v_lshlrev_b32 v7, 8, v1
v_lshl_add_u32 v7, v6, 5, v7
v_lshl_add_u32 v7, v10, 3, v7
s_lshl_b32 s74, {sw}, 13
s_add_u32 s75, s74, {YX+4096}
v_add_u32 v{vYR}, s75, v7
s_add_u32 s74, s74, 8192
s_and_b32 s74, s74, 0x7fff
s_add_u32 s74, s74, {YX}
v_add_u32 v{vYR+1}, s74, v7
s_mul_i32 s74, s84, {112*1024}
v_add_u32 v{vH}, s74, v{vL16}
s_sub_u32 s74, {112*1024}, s74
v_add_u32 v{vH+1}, s74, v{vL16}
v_mov_b32 v{vZ}, 0
s_lshl_b32 s74, {sxcd}, 2
s_add_u32 {sr2}, s74, {sq}
s_lshl_b32 s74, {sr2}, 1
s_add_u32 s74, s74, s84
s_lshl_b32 s97, s74, 5
s_lshl_b32 s74, {sc2}, 1
s_add_u32 s74, s74, s85
s_lshl_b32 s17, s74, 6
s_mul_i32 s74, s97, 896
s_add_u32 s16, s74, s17
v_lshrrev_b32 v7, 2, v255
v_mul_u32_u24 v7, 896, v7
v_xor_b32 v8, v{fC}, v{fQ}
v_lshl_add_u32 v227, v8, 4, v7""")
put(setup2[:opt('s2', len(setup2))])
setup2 = setup2[opt('s2', len(setup2)):]
a(f"""
v_lshlrev_b32 v134, 16, v134
v_mul_f32 v134, 0x3fb8aa3b, v134
v_exp_f32 v134, v134
v_cvt_pk_bf16_f32 v134, v134, v134
v_lshlrev_b32 v134, 16, v134
""")
stamp()

PA = [64, 96]
PB = 8
KF = [(160, 176, 192, 208), (224, 240, 80, 96)]
R1, R8, E, T = 146, [148, 150], 0, 2
l1s = [0, 1, 2, 3, 4, 5, 6, 7, 8, 256, 258, 260, 262, 264, 512, 516, 520, 768, 772, 776,
       1024, 1032, 1280, 1288, 1536, 1544, 1792, 1800]
ra = {l: 8 + 2 * i for i, l in enumerate(l1s)}
cols = [0, 1, 2, 3, 256, 256, 258, 260, 4, 5, 6, 7, 260, 260, 262, 264,
        512, 516, 520, 1024, 768, 772, 776, 1536, 1032, 1280, 1288, 1288, 1544, 1792, 1800, 1800]


def cmul(d, x, r, t):
    return [f"v_pk_mul_f32 v[{t}:{t+1}], v[{x}:{x+1}], v[{r}:{r+1}] op_sel_hi:[1,0]",
            f"v_pk_fma_f32 v[{d}:{d+1}], v[{x}:{x+1}], v[{r}:{r+1}], v[{t}:{t+1}] op_sel:[1,1,0] op_sel_hi:[0,1,1] neg_lo:[1,0,0]"]


def k_write(ck, i, cq):
    P = (PA[ck] + 16 * i) if i < 2 else (PB + 16 * (i - 2))
    return f"ds_write_b128 v{vKL+cq}, v[{P+4*cq}:{P+4*cq+3}]"


def k_reads(ck, i):
    fr = KF[ck][i]
    base = vKL + 6 if i < 2 else vKL + 4
    return "\n".join(f"ds_read_b64_tr_b16 a[{fr+4*s+2*rd}:{fr+4*s+2*rd+1}], v{base+rd} offset:{1024*s}"
                     for s in range(4) for rd in range(2))


def kgen_head(ck):
    L = []
    un = (lambda d, s: f"v_lshlrev_b32 v{d}, 16, v{s}") if ck == 0 else (lambda d, s: f"v_and_b32 v{d}, {sMask}, v{s}")
    L += [un(136 + i, 128 + i) for i in range(6)]
    L += ["v_mul_f32 v142, v134, v136", "v_mul_f32 v143, v134, v137",
          "v_mul_f32 v142, 0x3fb8aa3b, v142", "v_mul_f32 v143, 0.15915494, v143"]

    def ev(d, l):
        s = []
        if l == 1:
            s += ["v_exp_f32 v144, v142", "v_fract_f32 v145, v143"]
        else:
            f = {8: "0x41000000", 256: "0x43800000"}[l]
            s += [f"v_mul_f32 v144, {f}, v142", f"v_mul_f32 v145, {f}, v143", "v_exp_f32 v144, v144", "v_fract_f32 v145, v145"]
        s += [f"v_cos_f32 v{d}, v145", f"v_sin_f32 v{d+1}, v145"]
        return s, f"v_pk_mul_f32 v[{d}:{d+1}], v[{d}:{d+1}], v[144:145] op_sel_hi:[1,0]"
    wm = cmul(ra[0], 140, 138, T) + [f"v_pk_mul_f32 v[{ra[0]}:{ra[0]+1}], v[{ra[0]}:{ra[0]+1}], v[134:135] op_sel_hi:[1,0]"]
    for (d, l), fill in zip(((R1, 1), (R8[ck], 8), (E, 256)), wm):
        s, last = ev(d, l)
        L += s + [fill, last]
    for l in range(1, 9):
        L += cmul(ra[l], ra[l - 1], R1, T)
    for l in l1s[9:]:
        L += cmul(ra[l], ra[l - 256], E, T)
    for k in range(16):
        c0, c1 = ra[cols[2 * k]], ra[cols[2 * k + 1]]
        L += [f"v_cvt_pk_bf16_f32 v{PA[ck]+k}, v{c0}, v{c1}", f"v_cvt_pk_bf16_f32 v{PA[ck]+16+k}, -v{c0+1}, -v{c1+1}"]
    return L


def kgen_chain(ck):
    r8 = R8[ck]
    rb = lambda j: r8 if j == 1 else 4 + 2 * (j % 2)
    B = [f"v_cvt_pk_bf16_f32 v{PB}, 1.0, v{r8}", f"v_cvt_pk_bf16_f32 v{PB+16}, 0, v{r8+1}"]
    for j in range(2, 32):
        B += cmul(rb(j), rb(j - 1), r8, T)
        if j % 2:
            B += [f"v_cvt_pk_bf16_f32 v{PB+j//2}, v{rb(j-1)}, v{rb(j)}",
                  f"v_cvt_pk_bf16_f32 v{PB+16+j//2}, v{rb(j-1)+1}, v{rb(j)+1}"]
    return B


def k_pass(ck, i):
    return [k_write(ck, i, cq) for cq in range(4)] + [k_reads(ck, i)]


def at(stream, items):
    out = []
    for i, x in enumerate(stream):
        out += [y for p, y in items if p == i]
        out.append(x)
    return out + [y for p, y in items if p >= len(stream)]


def kgen_mfma(ck):
    f = KF[ck]
    return [f"v_mfma_f32_32x32x16_bf16 a[144:159], a[{f[s>>2]+4*(s&3)}:{f[s>>2]+4*(s&3)+3}], "
            f"a[{f[2+(s>>2)]+4*(s&3)}:{f[2+(s>>2)]+4*(s&3)+3}], "
            + ("0" if (ck == 0 and s == 0) else "a[144:159]") for s in range(8)]


def x_read(s):
    cb = s >> 2
    return f"ds_read_b128 a[{4*s}:{4*s+3}], v{vXR + (0 if cb < 4 else 4) + (s & 3)} offset:{(cb % 4)*16384}"


warm = [f"""s_cmp_eq_u32 {sw}, 0
s_cselect_b32 s12, s{sWg}, s{sWu}
s_cselect_b32 s13, s{sWg+1}, s{sWu+1}
s_cmp_lt_u32 {sw}, 2
s_cselect_b32 s12, s12, s{sWd}
s_cselect_b32 s13, s13, s{sWd+1}
s_mul_i32 s74, {sjc}, {56*128}
v_min_u32 v251, 55, v255
v_lshl_add_u32 v251, v251, 7, s74
global_load_dword v252, v251, s[12:13]"""] if "--nowarm" not in sys.argv else []
for _ in range(opt('dmain', 0)):
    a("s_sleep 16")
stamp("k")
early = x_block(1) + [("vt", "x1")] + w_unit(1) + [("vt", "u1")]
if LATE == 1:
    put(weave(kgen_head(0), first_dma + early))
elif LATE == 2:
    put(weave(kgen_head(0), first_dma))
    warm = early + warm
else:
    put(weave(kgen_head(0), early))
stamp("k")
warm += [f"buffer_load_dwordx4 v[242:245], v227, {rX}, s16 offen",
         f"s_add_u32 s74, s16, {16*896}\nbuffer_load_dwordx4 v[246:249], v227, {rX}, s74 offen"]
put(weave(kgen_head(1), warm))
stamp("ak"[SEL == "k"])
RD = opt('rd', 3)
p0, p1, p2 = k_pass(0, 0), k_pass(0, 1), k_pass(0, 2)
put(at(kgen_chain(0), list(zip((0, 7, 14, 21, 21 + RD), p0)) + list(zip((30, 37, 44, 51, 51 + RD), p1))
       + list(zip((62, 70, 80, 92), p2))))
stamp("k")
p3, q0, q1, q2 = k_pass(0, 3), k_pass(1, 0), k_pass(1, 1), k_pass(1, 2)
ch = kgen_chain(1)
put([p2[4], p3[0], p3[1]] + at(ch[2:], [(0, p3[2]), (4, p3[3]), (4, ch[0]), (4, ch[1]), (4 + RD, p3[4])]
                                + list(zip((14, 20, 26, 32, 32 + RD), q0)) + list(zip((42, 48, 54, 60, 60 + RD), q1))
                                + list(zip((70, 76, 82, 90), q2))))
stamp("ak"[SEL == "k"])
sc = lines(f"""s_lshl_b32 {sWdoff}, {sc2}, 7
s_mov_b32 s44, s{sWd}
s_mov_b32 s45, s{sWd+1}
s_mov_b32 s46, {1792*896}
s_mov_b32 s47, 0x20000
s_mov_b32 s48, s{sWs}
s_mov_b32 s49, s{sWs+1}
s_mov_b32 s52, s{sOut}
s_mov_b32 s53, s{sOut+1}
s_mov_b32 s54, {2048*896}
s_mov_b32 s55, 0x20000
s_mul_i32 {sFL}, {sxcd}, {FSP}
s_add_u32 {sFL}, {sFL}, {WS_FL}
s_lshl_b32 {sST}, {stg}, 8
s_add_u32 {sST}, {sST}, {WS_ST}
s_lshl_b32 {sCS}, {sc1_}, 10
s_add_u32 {sCS}, {sCS}, {WS_CS}
v_lshlrev_b32 v135, 16, v135""")
lp = k_pass(1, 3)
put(weave(kgen_mfma(0), [q2[4], lp[0]] + sc[:6] + [lp[1]] + sc[6:12] + [lp[2]] + sc[12:]
          + [lp[3], ("wv", "u0")] + [x_read(s) for s in range(4)] + [lp[4]]))
stamp("k")
a("s_waitcnt lgkmcnt(0)")
stamp("k")
a("s_barrier")
stamp("ak"[SEL == "k"])

fillg = {s: [] for s in range(28)}
fillg[2] += lines(f"""v_readfirstlane_b32 {sDs}, v135
s_mul_i32 {sH0}, {stg}, {112*1024}
s_lshl_b32 s74, {sc1_}, 13
s_add_u32 {sH0}, {sH0}, s74
s_add_u32 {sH1}, {sH0}, 4096
s_mul_i32 s74, {stg}, {FSP}
s_lshl_b32 s75, {sc1_}, 2
s_add_u32 s74, s74, s75
s_add_u32 {sFHw}, s74, {WS_FH}""")
fillg[3] += [f"v_accvgpr_read_b32 v{128+r}, a{144+r}" for r in range(8)]
fillg[2] += []
fillg[4] += [f"ds_read_b128 v[136:139], v{vKX+1}", f"ds_read_b128 v[140:143], v{vKX+1} offset:1024", ("lt", "kr")]
fillg[5] += lines(f"""s_mul_i32 {sFHr}, {sr2}, {2*FSP}
s_add_u32 {sFHr}, {sFHr}, {WS_FH}
s_mul_i32 {sHoff}, {sr2}, {2*112*1024}
s_mul_i32 s74, {sw}, {28*1024}
s_add_u32 s10, {sHoff}, s74""")
fillg[6] += [f"s_lshl_b32 s3, {sq}, 1\ns_add_u32 s3, s3, {sc2}" if ROT == 1 else f"s_mov_b32 s3, {sc2 if ROT else 0}",
             "s_sub_u32 s74, s3, 7\ns_cselect_b32 s3, s3, s74",
             f"s_mov_b32 s8, {sWdoff}\ns_add_u32 s9, s8, {448*896}",
             f"s_mul_i32 s74, s3, {64*896}\ns_add_u32 {sWdoff}, {sWdoff}, s74",
             "s_add_u32 s74, s3, 4\ns_sub_u32 s75, s74, 7\ns_cselect_b32 s74, s74, s75",
             f"s_lshl_b32 s74, s74, 12\ns_add_u32 {sHoff}, s10, s74", f"s_add_u32 s11, s10, {28*1024}"]
fillg[7] += [f"v_add_f32 v{128+r}, v{128+r}, v{136+r}" for r in range(8)]
fillg[9] += lines(f"""v_cmp_eq_u32 vcc, 0, v255
v_mov_b32 v140, {sDs}
s_mov_b32 s74, 0xaaaaaaaa
s_mov_b32 s75, 0xaaaaaaaa
v_cndmask_b32 v140, 0, v140, vcc
v_add_f32 v140, v128, v140
v_cndmask_b32 v141, v131, v132, s[74:75]
v_cndmask_b32 v142, v133, v134, s[74:75]""")
fillg[11] += lines(f"""v_cvt_pk_bf16_f32 v144, v132, v132
v_cvt_pk_bf16_f32 v145, v132, v141
v_cvt_pk_bf16_f32 v146, v131, v131
v_cvt_pk_bf16_f32 v147, v131, v131
v_cvt_pk_bf16_f32 v148, v134, v134
v_cvt_pk_bf16_f32 v149, v134, v142
v_cvt_pk_bf16_f32 v150, v133, v133
v_cvt_pk_bf16_f32 v151, v133, v133""")
fillg[13] += lines(f"""v_cvt_pk_bf16_f32 v136, v135, v134
v_cvt_pk_bf16_f32 v137, v133, v132
v_cvt_pk_bf16_f32 v138, v131, v130
v_cvt_pk_bf16_f32 v139, v129, v140
v_cvt_pk_bf16_f32 v140, v130, v130
v_cvt_pk_bf16_f32 v141, v129, v129
v_cvt_pk_bf16_f32 v142, v129, v128
v_cvt_pk_bf16_f32 v143, v128, v128""")
fillg[15] += [f"v_cndmask_b32 v{136+r}, v{136+r}, v{140+r}, {sOdd}" for r in range(4)]
fillg[17] += lines(f"""s_mul_i32 {sY}, {sjc}, {YS}
s_lshl_b32 s74, {sw}, 11
s_add_u32 {sY}, {sY}, s74
s_add_u32 {sY}, {sY}, {WS_Y}""")
fillg[19] += [f"v_mov_b32 v{r}, 0" for r in (190, 191, 193, 194)]
fillg[21] += [f"v_mov_b32 v{r}, 0" for r in (195, 196, 198, 199)]


def wd_read(kk, r):
    off = PS[(kk >> 1) % 6] - 65536 + (kk & 1) * 2048
    base = vDF if off < 65536 else vDF + 2
    return [f"ds_read_b64_tr_b16 a[{r+4*da+2*rd}:{r+4*da+2*rd+1}], v{base+da} offset:{off % 65536+rd*1024}"
            for da in range(2) for rd in range(2)]


def wd_move(kk):
    return wd_read(kk, 8 * kk)


def wfrag_read(s, t, r):
    off = SLOT[(s >> 1) % 4] + (s & 1) * 4096 + (t >> 1) * 256
    return [f"ds_read_b64_tr_b16 a[{r+2*rd}:{r+2*rd+1}], v{vWF+(t & 1)} offset:{off+rd*1024}" for rd in range(2)]


put(pack([[m] + wfrag_read(0, t, 112 + 4 * t) for t, m in enumerate(kgen_mfma(1))], w_unit(2) + [("vt", "u2")] + fillg[2], 24))
fillg[2] = []
put(x_block(2) + [("vt", "x2")])
put([f"ds_write_b128 v{vKX}, a[152:155]", f"ds_write_b128 v{vKX}, a[156:159] offset:1024", ("lt", "kx")])
stamp("k")

FL_LOAD = f"buffer_load_dword v{vF}, v{vN4}, {rWs}, {sFL} offen sc1"
F_CMP = f"v_cmp_ne_u32 vcc, {snonce}, v{vF}"
NC_LOAD = f"global_load_dword v{vNo}, v{vZ}, s[{sDbg}:{sDbg+1}] sc1"
NC_CMP = f"v_cmp_eq_u32 vcc, 0, v{vNo}"
carry, pre = [], []
for s in range(25):
    if s % 2 == 0 and s > 0:
        stamp("g")
    if 1 <= s <= 4:
        stamp("k")
    extra, dma = [], None
    if s % 2 == 1:
        u = (s + 1) // 2
        lt = {1: "x1", 5: "kr"}.get(s)
        a.wait_both(tok[f"u{u}"], ltok[lt] if lt else None)
        a("s_barrier")
        if u + 2 < 14:
            dma = ([], w_unit(u + 2), f"u{u+2}")
    if s == 0:
        extra += [("wv", "x1")] + [x_read(k) for k in range(4, 8)] + [("lt", "x1")]
    if s % 2 == 0 and 2 <= s <= 8:
        dma = ([], x_block(2 + s // 2), f"x{2+s//2}")
    if s % 2 == 0 and 4 <= s <= 12:
        cb = s // 2
        extra += [("wv", f"x{cb}")] + [x_read(k) for k in range(4 * cb, 4 * cb + 4)] + [("lt", f"x{cb}")]
    if s % 2 == 0 and 10 <= s <= 20:
        p = (s - 10) // 2
        dma = ([("wl", f"x{p+1}")] if p else [], wd_pair(2 * p), f"wd{2*p}")
    if 14 <= s <= 21:
        kk = s - 14
        if kk % 2 == 0:
            extra += [("wv", f"wd{kk}")]
        extra += wd_move(kk) + [("lt", f"mv{kk}")]
    if s in (22, 23, 24):
        kk = 12 + 2 * (s - 22)
        dma = ([("wl", f"mv{kk-11}")], wd_pair(kk), f"wd{kk}")
    if s == 12:
        extra += [NC_LOAD]
    if s == 16:
        poll("nc", NC_LOAD, NC_CMP)
        a(f"v_readfirstlane_b32 {snonce}, v{vNo}")
    if s == FL_AT:
        extra += [FL_LOAD]
    if s == FL_POLL:
        poll("fl", FL_LOAD, F_CMP)
        extra += [f"buffer_load_dword v{vF}, v{vN8}, {rWs}, {sST} offen sc1",
                  f"s_lshl_b32 s74, s97, 3\ns_add_u32 s74, s74, {WS_ST+4}\nbuffer_load_dword v228, v{vN8}, {rWs}, s74 offen sc1"]
    if FL_POLL <= s < FL_POLL + 2:
        extra += [f"buffer_load_dword a{160+t}, v{vCS}, {rWs}, {sCS} offen offset:{64*t} sc1"
                  for t in range(4 * (s - FL_POLL), 4 * (s - FL_POLL) + 4)]
    extra += fillg[s]
    AB = opt('ab', '')
    if dma and (('x' in AB and dma[2][0] == 'x') or ('w' in AB and dma[2][0] == 'w') or ('u' in AB and dma[2][0] == 'u')):
        dma = (dma[0], ["s_nop 0"] * 6, dma[2])
    main = []
    for t in range(8):
        if t % WG == 0 and s > 0:
            (main[-1] if main else pre).append(("wl", f"f{t+WG-1}" if not (PAT and t + WG - 1 == 7) else "f6"))
        c = "0" if s == 0 else f"v[{16*t}:{16*t+15}]"
        m = [f"v_mfma_f32_32x32x16_bf16 v[{16*t}:{16*t+15}], a[{112+4*t}:{115+4*t}], a[{4*s}:{4*s+3}], {c}"]
        rd = wfrag_read(s + 1, t, 112 + 4 * t) + [("lt", f"f{t}")]
        if dma and t == 0:
            m += dma[0] + [dma[1][0]]
        if PAT and t % 2 == 1 and not (s == 24 and t == 7):
            carry = rd
        else:
            m += carry + rd
            carry = []
        if dma and t % 2 == 1:
            m.append(dma[1][1 + t // 2])
            if t == 7:
                m += [("vt", dma[2]), dma[1][5]]
        main.append(m)
    put(pre + pack(main, extra, 24))
    pre = []
stamp("g")
a.wait_vm(tok["u13"])
a("s_barrier")
put(wfrag_read(26, 0, 168) + wfrag_read(27, 0, 172))
first = [f"v_cmp_gt_u32 vcc, 32, v255", "v_mov_b32 v152, 0", "v_mov_b32 v153, 0",
         f"s_add_u32 m0, {sUl}, {U1_OFF+448}", f"buffer_load_dwordx4 v{vL16}, {rWs}, {sUg} offen sc1 lds",
         f"buffer_load_dwordx4 v{vL16}, {rWs}, {sUg} offen offset:1024 sc1 lds",
         f"v_cndmask_b32 v192, 0, v{vF}, vcc\nv_cndmask_b32 v197, 0, v{vF}, vcc"]
second = [f"s_sub_u32 {sUg}, {sUg}, 2\ns_add_u32 m0, {sUl}, 448", f"buffer_load_dwordx4 v{vL16}, {rWs}, {sUg} offen sc1 lds",
          f"buffer_load_dwordx4 v{vL16}, {rWs}, {sUg} offen offset:1024 sc1 lds", ("vt", "u")]
main, epi = [], []
for t in range(8):
    r = 168 + 8 * (t % 2)
    cb = (192, 196, 190, 194)[t & 3]
    ops = [(f"a[{112+4*t}:{115+4*t}]", "a[100:103]"), (f"a[{r}:{r+3}]", "a[104:107]"), (f"a[{r+4}:{r+7}]", "a[108:111]"),
           (f"a[{160+(t & 4)}:{163+(t & 4)}]", f"v[{cb}:{cb+3}]")]
    for k, (A, B) in enumerate(ops):
        m = [f"v_mfma_f32_32x32x16_bf16 v[{16*t}:{16*t+15}], {A}, {B}, v[{16*t}:{16*t+15}]"]
        if t < 7 and k in (0, 1):
            m += wfrag_read(26 + k, t + 1, 168 + 8 * ((t + 1) % 2) + 4 * k)
        main.append(m)
    b = 16 * t
    L = [f"v_max_f32 v{b+r}, 0, v{b+r}" for r in range(8)]
    if t < 6:
        L += [f"v_mul_f32 v{b+r}, v{b+r}, v{b+8+r}" for r in range(8)]
    else:
        L += [f"v_pk_mul_f32 v[{b+r}:{b+r+1}], v[{b+r}:{b+r+1}], v[{b+8+r}:{b+9+r}]" for r in range(0, 8, 2)]
    L += [f"v_cvt_pk_bf16_f32 v{b+8+r}, v{b+2*r}, v{b+2*r+1}" for r in range(4)]
    L += [f"buffer_store_dwordx4 v[{b+8}:{b+11}], v{vL16}, {rWs}, {(sH0, sH1)[t >> 2]} offen offset:{1024*(t & 3)} sc1"]
    epi.append(L)
stamp("t")
put(pack(main[:3], first, 24) + pack(main[3:6], second, 24))
for t in range(6):
    stamp("t")
    put(pack(main[4 * t + 6:4 * t + 10], epi[t], 24))
stamp("t")
put(pack(main[30:], epi[6][:8], 24))
rest = epi[6][8:] + epi[7]
stamp()
stamp("t")
a("s_barrier")
stamp("t")


def octet_writes(d, ar, off):
    return [f"ds_write_b128 v{ar+3}, v[{d}:{d+3}] offset:{off}",
            f"ds_write2_b64 v{ar+1}, v[{d}:{d+1}], v[{d+2}:{d+3}] offset0:{off//8} offset1:{off//8+1}"] + \
           [f"ds_write2_b32 v{ar+c}, v{d+k}, v{d+k+1} offset0:{off//4+k} offset1:{off//4+k+1}" for c in (0, 2) for k in (0, 2)]


put(weave(rest, octet_writes(136, vKC, 0) + [f"ds_write_b32 v{vKZ}, v152 offset:{4096-12}", f"ds_write_b64 v{vUZ}, v[152:153]"]))
tok["h"] = a.vm_tok()
stamp("t")
a(f"s_mov_b64 exec, {sOdd}")
put(octet_writes(144, vKC + 4, 512) + octet_writes(148, vKC + 4, 0))
a("s_mov_b64 exec, -1")
stamp("t")
a(f"s_andn2_b64 exec, 1, {sOdd}")
a.wait_vm(tok["u"])
a(f"""ds_write_b16 v{vUZ}, v152 offset:448
s_mov_b64 exec, -1
s_waitcnt lgkmcnt(0)""")
stamp("t")
a("s_barrier")
stamp()
stamp("t")


def a_read(n):
    return f"ds_read_b128 a[{128+4*(n % 4)}:{131+4*(n % 4)}], v{vCK} offset:{64*(62-2*n)}"


def u_read(be, i):
    return f"ds_read_b128 v[{16*be+4*i}:{16*be+4*i+3}], v{vCU} offset:{512*be-128*i+384}"


NH = opt('nh', 8)
ORD = list(range(16, 28)) + list(range(16))


def h_load(i):
    g = []
    for ta in range(2):
        r = 96 + 8 * (i % NH) + 4 * ta
        g.append(f"buffer_load_dwordx4 v[{r}:{r+3}], v{vH+ta}, {rWs}, {sHoff} offen offset:{1024*(i % 4)} {HFL}")
    if i % 4 == 3:
        if ROT:
            g[-1] += "\n" + wrap(sHoff, 4096, "s11", "s10")
        else:
            g[-1] += f"\ns_add_u32 {sHoff}, {sHoff}, 4096" if i != 11 else f"\ns_sub_u32 {sHoff}, {sHoff}, {24*1024}"
    return g


put([a_read(0)] + [u_read(be, 0) for be in range(8)] + [a_read(1), a_read(2)])
FH_LOAD = f"buffer_load_dword v{vF}, v{vFH}, {rWs}, {sFHr} offen sc1"
fill = {n: [] for n in range(32)}
for i in range(1, 4):
    fill[i - 1] += [u_read(be, i) for be in range(8)]
fill[2] += [("lt", "ub")]
fill[FHW_AT] += [("wv", "h"), f"s_mov_b64 exec, 1\nbuffer_store_dword v{vNo}, v{vZ}, {rWs}, {sFHw} offen sc1\ns_mov_b64 exec, -1"]
fill[1] = wd_pair(18) + [("vt", "wd18")] + fill[1]
for kk in range(8, 16):
    n = 3 + (kk - 8)
    if kk % 2 == 0:
        fill[n] += [("wv", f"wd{kk}")]
    fill[n] += wd_move(kk) + [("lt", f"mv{kk}")]
    if kk % 2 == 1:
        fill[n + 2] += [("wl", f"mv{kk}")] + wd_pair(kk + 11) + [("vt", f"wd{kk+11}")]
YB = opt('yb', 15)
fill[FH_AT] += [FH_LOAD]
for j in range(7):
    fill[(YB + 1, YB + 2, YB + 3, max(17, YB + 4), 21, 25, 29)[j]] += [f"ds_write_b128 v{vYW}, a[{224+4*j}:{227+4*j}] offset:{4096*((j+1) % 8)}"]
hl = [(i, g) for i in range(28) for g in h_load(i)]
for n in range(FH_POLL, 32):
    if hl[0][0] < NH:
        fill[n] += [hl.pop(0)[1]]
for P in range(8):
    for i in range(4):
        n = 4 * P + i
        if n % 4 == 0 or n in (2, 6, 10):
            stamp("c")
        if n == YB:
            a.wait_lg(ltok["ub"])
            a("s_barrier")
        if n == FH_POLL:
            poll("fh", FH_LOAD, F_CMP)
        main = []
        for be in range(8 - P):
            j = P + be
            c = "0" if n == 0 else f"a[{224+4*j}:{227+4*j}]"
            main.append(f"v_mfma_f32_16x16x32_bf16 a[{224+4*j}:{227+4*j}], a[{128+4*(n % 4)}:{131+4*(n % 4)}], v[{16*be+4*i}:{16*be+4*i+3}], {c}")
        put(pack([[m] for m in main], ([a_read(n + 3)] if n + 3 < 32 else []) + fill[n], 8))
stamp()
stamp("f")
put([("wv", "wd16")] + wd_read(16, 128))
a(f"ds_write_b128 v{vYW}, a[252:255]")
ltok["y7"] = a.lg_tok()
stamp()
stamp("f")

XS = lambda g, e: (80 if g < 4 else 0) + 4 * g + 2 * e
FY_LOAD = f"buffer_load_dword v{vF}, v{vN4}, {rWs}, s80 offen sc1"
fill = {k: [] for k in range(28)}
fill[0] += [("wl", "y7"), "s_barrier"]
for jj in range(2):
    r = 64 + 16 * jj
    fill[0] += [f"ds_read_b64 v[{r+4*src+2*ph}:{r+4*src+2*ph+1}], v{vYR+jj} offset:{1024*src+16*ph}"
                for src in range(4) for ph in range(2)]
    fill[1 + jj] += [f"v_add_f32 v{r+k}, v{r+k}, v{r+k+4}" for k in (0, 1, 2, 3, 8, 9, 10, 11)]
    fill[1 + jj] += [f"v_cvt_pk_bf16_f32 v{r+4+k}, v{r+o}, v{r+8+o}" for k, o in enumerate((0, 2, 1, 3))] + \
        [f"buffer_store_dwordx4 v[{r+4}:{r+7}], v{vL16}, {rWs}, {sY} offen offset:{1024*jj} sc1", ("vt", "y")]
fill[4] += lines(f"""s_lshr_b32 s74, {sjc}, 5
s_lshl_b32 s74, s74, 2
s_add_u32 s74, s74, {sw}
s_mul_i32 s74, s74, {FSP}
s_and_b32 s75, {sjc}, 31
s_lshl_b32 s75, s75, 2
s_add_u32 s74, s74, s75
s_add_u32 s95, s74, {WS_FY}""", 2)
fill[FYW_AT] += [("wv", "y"), f"s_mov_b64 exec, 1\nbuffer_store_dword v{vNo}, v{vZ}, {rWs}, s95 offen sc1\ns_mov_b64 exec, -1"]
fill[5] += lines(f"""s_lshl_b32 s80, {sc2}, 2
s_lshr_b32 s74, {sr2}, 3
s_add_u32 s80, s80, s74
s_mul_i32 s80, s80, {FSP}
s_add_u32 s80, s80, {WS_FY}
s_lshl_b32 s13, {sw}, 11
v_add_u32 v230, s13, v{vL16}""", 2)
fill[9] += [f"ds_write_b128 v230, v[242:245] offset:{XR}"] + lines(f"""v_mul_u32_u24 v234, 224, v{vN4}
v_lshl_add_u32 v234, v{fKG}, 4, v234""")
fill[10] += [f"ds_write_b128 v230, v[246:249] offset:{XR+1024}"] + lines(f"""v_lshlrev_b32 v231, 4, v{fR}
v_lshl_add_u32 v231, v{vN4}, 4, v231
v_lshl_add_u32 v231, v{fKG}, 3, v231""")
fill[12] += lines(f"""v_add_u32 v236, s13, v231
v_xor_b32 v237, 16, v236
v_xor_b32 v238, 32, v236
v_xor_b32 v239, 48, v236
v_mul_u32_u24 v235, {2*YS}, v{fKG}
v_add_u32 v235, v235, v{vN4}""") + [f"ds_read_b64 v[{64+2*g}:{65+2*g}], v{236+g} offset:{XR}" for g in range(4)] + [("lt", "xr")]
fill[13] += lines(f"""s_mul_i32 s74, s17, {YS//4}
s_lshl_b32 s75, s97, 2
s_add_u32 s74, s74, s75
s_add_u32 s96, s74, {WS_Y}
s_mul_i32 s74, {sw}, {3*4096}
s_add_u32 s74, s74, {RX}
v_add_u32 v240, s74, v{vL16}""", 2)
for k in range(1, 4):
    fill[13 + k] += [f"s_xor_b32 s74, {sw}, {k}\ns_mul_i32 s74, s74, {3*4096}",
                     f"s_add_u32 s74, s74, {RX+(k-1)*4096}\nv_add_u32 v{240+k}, s74, v{vL16}"]
fill[FY_AT] += [FY_LOAD]
for g in range(4):
    for e in range(2):
        fill[17 + g] += [f"v_lshlrev_b32 v{XS(g, e)}, 16, v{64+2*g+e}", f"v_and_b32 v{XS(g, e)+1}, {sMask}, v{64+2*g+e}"]
fill[22] += [("wl", "xr"), "s_barrier"]
for g in range(4):
    for e in range(2):
        fill[min(27, FY_POLL + g // 2)] += [f"buffer_load_dword v{72+2*g+e}, v235, {rWs}, s96 offen sc1\ns_add_u32 s96, s96, {YS if e == 0 else 3*YS}"]
DEF = opt('def', NH)
late = []
HL0 = opt('hl0', 1)
for i in range(28):
    kk = ORD[i]
    if i % 2 == 0 and i > 0:
        stamp("h")
    if i < 14:
        stamp("j")
    extra = []
    if i + 1 < 12:
        if (kk + 1) % 2 == 0:
            extra += [("wv", f"wd{kk+1}")]
        extra += wd_read(kk + 1, 128 + 8 * ((kk + 1) % 2))
    if i == FY_POLL:
        poll("fy", FY_LOAD, F_CMP)
    main = []
    for ta in range(2):
        for da in range(2):
            acc = 16 * (da + 2 * ta)
            c = "0" if i == 0 else f"v[{acc}:{acc+15}]"
            fa = (8 * kk if kk < 16 else 128 + 8 * (kk % 2)) + 4 * da
            fb = 96 + 8 * (i % NH) + 4 * ta
            m = [f"v_mfma_f32_32x32x16_bf16 v[{acc}:{acc+15}], a[{fa}:{fa+3}], v[{fb}:{fb+3}], {c}"]
            if acc == 0 and i >= 28 - DEF:
                late.append(m)
                continue
            if hl and i >= HL0 and (da, ta) != (0, 0) and (hl[0][0] < i + NH or (hl[0][0] == i + NH and da == 1 and len(hl) % 2 == ta % 2)):
                m.append(hl.pop(0)[1])
            main.append(m)
    AB = opt('ab', '')
    fl_ = fill[i]
    if 'X' in AB:
        fl_ = [e for e in fl_ if isinstance(e, tuple) or not (" lds" in e or "v80," in e)]
    if 'Y' in AB and i == FYW_AT:
        fl_ = [e for e in fl_ if e != ("wv", "y")]
    if 'D' in AB:
        extra = [e for e in extra if not isinstance(e, tuple)]
    put(pack(main, extra + fl_, 24))
assert not hl
stamp()
stamp("f")
wr = [f"ds_write_b128 v240, v[{16*k+4*g}:{16*k+4*g+3}] offset:{(k-1)*4096+1024*g}" for k in range(1, 4) for g in range(4)]
put(weave(late, wr) if late else wr)
stamp("f")
a("s_waitcnt lgkmcnt(0)")
stamp("f")
a("s_barrier")
stamp("f")
for g in range(4):
    for k in range(1, 4):
        a(f"ds_read_b128 v[{16*k+4*g}:{16*k+4*g+3}], v{240+k} offset:{1024*g}")
stamp("f")
for g in range(4):
    for e in range(2):
        yr, d = 72 + 2 * g + e, XS(g, e)
        a(f"""
v_lshlrev_b32 v112, 16, v{yr}
v_and_b32 v113, {sMask}, v{yr}
v_pk_add_f32 v[{d}:{d+1}], v[{d}:{d+1}], v[112:113]
""")
stamp("f")
for g in range(4):
    for e in range(2):
        r = 4 * g + 2 * e
        for k in range(1, 4):
            a(f"v_pk_add_f32 v[{r}:{r+1}], v[{r}:{r+1}], v[{16*k+r}:{16*k+r+1}]")
        a(f"v_pk_fma_f32 v[{r}:{r+1}], v[{r}:{r+1}], v[228:229], v[{XS(g, e)}:{XS(g, e)+1}] op_sel_hi:[1,0,1]")
    a(f"v_cvt_pk_bf16_f32 v{116+2*g}, v{4*g}, v{4*g+1}\nv_cvt_pk_bf16_f32 v{117+2*g}, v{4*g+2}, v{4*g+3}")
    if g % 2 == 1:
        b = 116 + 2 * (g - 1)
        a(f"v_permlane32_swap_b32 v{b}, v{b+2}\nv_permlane32_swap_b32 v{b+1}, v{b+3}")
        a(f"buffer_store_dwordx4 v[{b}:{b+3}], v234, {rOut}, s16 offen offset:{16*(g-1)} {OUTFL}")
        stamp("f")
stamp()


def stamp_out():
    if not STAMP:
        return
    a(f"""
s_waitcnt vmcnt(0) lgkmcnt(0)
v_writelane_b32 v254, s98, {nstamp[0]-1}
{CLK} s[98:99]
s_waitcnt lgkmcnt(0)
v_writelane_b32 v254, s98, 15
s_lshl_b32 s84, s2, 2
s_add_u32 s84, s84, {sw}
s_lshl_b32 s84, s84, 6
s_add_u32 s84, s84, {WS_TS}
v_lshlrev_b32 v1, 2, v255
s_mov_b64 exec, 0xffff
buffer_store_dword v254, v1, {rWs}, s84 offen
""")


stamp_out()
a("s_endpgm")

a.reset()
NC_LOAD = f"global_load_dword v202, v203, s[{sDbg}:{sDbg+1}] sc1"
NC_CMP = "v_cmp_eq_u32 vcc, 0, v202"
shq = "s59"
a(f"""
L_helper:
s_lshl_b32 {shq}, {sxcd}, 2
s_add_u32 {shq}, {shq}, {sj}
v_mov_b32 v203, 0
v_lshrrev_b32 v1, 2, v255
s_lshl_b32 s83, {shq}, 2
s_add_u32 s83, s83, {sw}
s_lshl_b32 s72, s83, 4
v_add_u32 v4, s72, v1
v_mul_u32_u24 v5, 896, v4
v_and_b32 v2, 3, v255
v_lshl_add_u32 v5, v2, 4, v5
s_lshr_b32 s73, {sxcd}, 1
s_lshl_b32 s73, s73, 2
s_add_u32 s60, s73, {sj}
s_min_u32 s73, s60, 13
s_and_b32 s74, {sxcd}, 1
s_mul_i32 s74, s74, 14
s_add_u32 s61, s73, s74
s_lshr_b32 s73, s61, 1
s_lshl_b32 s82, s73, 8
v_lshrrev_b32 v6, 4, v255
s_lshl_b32 s75, {sw}, 2
v_add_u32 v6, s75, v6
v_mul_u32_u24 v7, 3584, v6
v_and_b32 v3, 15, v255
v_lshl_add_u32 v7, v3, 4, v7
s_mov_b32 s72, {WS_EP}
s_waitcnt lgkmcnt(0)
""")
if STAMP:
    a("v_mov_b32 v254, 0\nv_writelane_b32 v254, s100, 0")
    nstamp[0] = 1
stamp(SEL[0])
a(f"""
s_mov_b32 s36, s{sX}
s_mov_b32 s37, s{sX+1}
s_mov_b32 s48, s{sWs}
s_mov_b32 s49, s{sWs+1}
buffer_load_dword v202, v203, {rWs}, s72 offen sc1
""")
for i in range(14):
    a(f"buffer_load_dwordx4 v[{8+4*i}:{11+4*i}], v5, {rX}, 0 offen offset:{64*i}")
a(f"""
s_mov_b32 s73, 1664525
v_mul_lo_u32 v202, v202, s73
s_cmp_eq_u32 s83, 127
v_add_u32 v202, 1013904225, v202
v_or_b32 v202, 1, v202
s_cbranch_scc0 L_hnoep
s_mov_b64 exec, 1
""")
a.items.append(("raw", f"    global_store_dword v203, v202, s[{sDbg}:{sDbg+1}] sc1"))
a.items.append(("raw", f"    buffer_store_dword v202, v203, {rWs}, s72 offen sc1"))
a(f"""
s_mov_b64 exec, -1
L_hnoep:
s_bitcmp1_b32 s61, 0
s_cselect_b32 s40, s{sWu}, s{sWg}
s_cselect_b32 s41, s{sWu+1}, s{sWg+1}
""")
wl = [f"buffer_load_dwordx4 v[{72+4*i}:{75+4*i}], v7, {rW}, s82 offen\ns_add_u32 s82, s82, {16*3584}" for i in range(28)]
HW0 = opt('hw0', 0)
put(wl[:HW0])
wl = wl[HW0:]
a(f"""
s_mov_b32 s76, 0x3f803f80
s_mov_b32 s77, 0x00003f80
s_mov_b32 s79, 0x3f800000
""")
for _ in range(opt('dhelp', 0)):
    a("s_sleep 16")
EXACT = "--noexact" not in sys.argv
L = []
for i in range(56):
    c0, c1 = ("0", "0") if i == 0 else ("v64", "v68")
    L.append([f"v_dot2_f32_bf16 v64, v{8+i}, s76, {c0}", f"v_dot2_f32_bf16 v68, v{8+i}, v{8+i}, {c1}"])
HW1 = opt('hw1', 0)
put(L[0] + weave(L[1:], wl[:HW1]))
wl = wl[HW1:]
stamp()
a(f"""
v_add_f32_dpp v64, v64, v64 quad_perm:[1,0,3,2] row_mask:0xf bank_mask:0xf
v_add_f32_dpp v68, v68, v68 quad_perm:[1,0,3,2] row_mask:0xf bank_mask:0xf
v_lshlrev_b32 v4, 3, v4
v_add_f32_dpp v64, v64, v64 quad_perm:[2,3,0,1] row_mask:0xf bank_mask:0xf
v_add_f32_dpp v68, v68, v68 quad_perm:[2,3,0,1] row_mask:0xf bank_mask:0xf
v_mul_f32 v64, {hex(0x3b124925)}, v64
v_mul_f32 v68, {hex(0x3b124925)}, v68
v_fma_f32 v68, -v64, v64, v68
v_cvt_pk_bf16_f32 v64, -v64, -v64
v_max_f32 v68, 0, v68
v_cvt_pk_bf16_f32 v68, v68, v68
v_and_b32 v68, {sMask}, v68
v_add_f32 v68, 0x3727c5ac, v68
v_cvt_pk_bf16_f32 v68, v68, v68
v_and_b32 v68, {sMask}, v68
v_sqrt_f32 v68, v68
v_and_b32 v66, {sMask}, v64
v_cvt_pk_bf16_f32 v68, v68, v68
v_and_b32 v68, {sMask}, v68
v_rcp_f32 v70, v68
s_mov_b32 s74, {WS_ST}
v_fma_f32 v71, -v68, v70, 1.0
v_fma_f32 v70, v70, v71, v70
v_mul_f32 v65, v70, v70
v_mul_f32 v71, v66, v70
s_mov_b32 s80, 0x11111111
s_mov_b32 s81, 0x11111111
s_mov_b64 exec, s[80:81]
buffer_store_dwordx2 v[64:65], v4, {rWs}, s74 offen sc1
s_mov_b64 exec, -1
v_mul_u32_u24 v5, 960, v1
s_mul_i32 s75, {sw}, {16*960}
v_lshl_add_u32 v5, v2, 4, v5
v_add_u32 v5, s75, v5
""")
L2B = 64 * 960
L3B = L2B + 448 * 144
a(f"""
v_lshrrev_b32 v1, 5, v255
v_bfe_u32 v2, v255, 2, 2
v_lshl_add_u32 v2, v1, 3, v2
v_mul_u32_u24 v2, 960, v2
v_bfe_u32 v4, v255, 4, 1
v_lshl_add_u32 v2, v4, 5, v2
v_and_b32 v4, 3, v255
v_lshl_add_u32 v2, v4, 3, v2
v_add_u32 v194, s75, v2
v_and_b32 v4, 31, v255
v_mul_u32_u24 v4, 144, v4
s_lshl_b32 s74, {sw}, 5
s_add_u32 s74, s74, {L2B}
v_lshl_add_u32 v4, v1, 4, v4
v_add_u32 v195, s74, v4
v_lshlrev_b32 v6, 9, v6
v_lshl_add_u32 v6, v3, 5, v6
v_add_u32 v6, {L3B}, v6
v_lshrrev_b32 v1, 3, v255
v_and_b32 v2, 7, v255
v_lshlrev_b32 v2, 4, v2
v_mul_u32_u24 v197, {XTS}, v1
v_add_u32 v197, v197, v2
v_mul_u32_u24 v1, 144, v1
v_add_u32 v1, v1, v2
s_mul_i32 s74, {sw}, {112*144}
s_add_u32 s74, s74, {L2B}
v_add_u32 v196, s74, v1
s_lshl_b32 s74, {shq}, 7
s_mul_i32 s75, {sw}, {112*XTS}
s_add_u32 s74, s74, s75
s_add_u32 s62, s74, {WS_XT}
s_and_b32 s75, {sw}, 1
s_lshl_b32 s75, s75, 8
v_lshl_add_u32 v2, v255, 2, s75
v_add_u32 v198, {L3B}, v2
""")


L = []
for i in range(56):
    t = 186 + 2 * (i % 4)
    if EXACT:
        g = [f"v_dot2_f32_bf16 v{t}, v{8+i}, s77, v66", f"v_dot2_f32_bf16 v{t+1}, v{8+i}, s79, v66"]
        if i > 0:
            p = 186 + 2 * ((i - 1) % 4)
            g += [f"v_cvt_pk_bf16_f32 v{7+i}, v{p}, v{p+1}", f"v_lshlrev_b32 v{p}, 16, v{7+i}", f"v_and_b32 v{p+1}, {sMask}, v{7+i}",
                  f"v_pk_mul_f32 v[{p}:{p+1}], v[{p}:{p+1}], v[70:71] op_sel_hi:[1,0]", f"v_cvt_pk_bf16_f32 v{7+i}, v{p}, v{p+1}"]
            if i % 4 == 0:
                g.append(f"ds_write_b128 v5, v[{4+i}:{7+i}] offset:{64*(i//4-1)}")
        if i == 55:
            g += ["s_nop 0", f"v_cvt_pk_bf16_f32 v63, v{t}, v{t+1}", f"v_lshlrev_b32 v{t}, 16, v63", f"v_and_b32 v{t+1}, {sMask}, v63",
                  f"v_pk_mul_f32 v[{t}:{t+1}], v[{t}:{t+1}], v[70:71] op_sel_hi:[1,0]", f"v_cvt_pk_bf16_f32 v63, v{t}, v{t+1}",
                  f"ds_write_b128 v5, v[60:63] offset:{64*13}"]
    else:
        g = [f"v_lshlrev_b32 v{t}, 16, v{8+i}", f"v_and_b32 v{t+1}, {sMask}, v{8+i}",
             f"v_pk_fma_f32 v[{t}:{t+1}], v[{t}:{t+1}], v[70:71], v[70:71] op_sel:[0,0,1] op_sel_hi:[1,0,1]",
             f"v_cvt_pk_bf16_f32 v{8+i}, v{t}, v{t+1}"]
        if i % 4 == 3:
            g.append(f"ds_write_b128 v5, v[{8+i-3}:{8+i}] offset:{64*(i//4)}")
    L.append(g)
HW2 = opt('hw2', 10)
put(weave(L, wl[:HW2]))
wl = wl[HW2:]
stamp()
HW3 = opt('hw3', 99)
put(wl[:min(HW3, 12)])
wl2 = wl[min(HW3, 12):HW3]
wl = wl[HW3:]
for b in range(14):
    a(f"ds_read_b64_tr_b16 v[{8+4*b}:{9+4*b}], v194 offset:{64*b}\nds_read_b64_tr_b16 v[{10+4*b}:{11+4*b}], v194 offset:{64*b+4*960}")
cs = []
for i in range(28):
    for d in range(4):
        c0, c1 = ("0", "0") if i == 0 else (f"v{64+2*d}", f"v{65+2*d}")
        cs += [f"v_dot2_f32_bf16 v{64+2*d}, v{72+4*i+d}, s77, {c0}", f"v_dot2_f32_bf16 v{65+2*d}, v{72+4*i+d}, s79, {c1}"]
NC0 = opt('nc0', 0)
put(weave([f"ds_write_b128 v195, v[{8+4*b}:{11+4*b}] offset:{32*144*b}" for b in range(14)], wl2 + cs[:NC0]))
a(f"{NC_LOAD}\ns_waitcnt lgkmcnt(0)\ns_barrier")
stamp()
for b in range(14):
    a(f"ds_read_b128 v[{8+4*b}:{11+4*b}], v196 offset:{8*144*b}")
put(weave([f"buffer_store_dwordx4 v[{8+4*b}:{11+4*b}], v197, {rWs}, s62 offen sc1\ns_add_u32 s62, s62, {8*XTS}" for b in range(14)], [] if wl else cs[NC0:]))
if wl:
    put(wl + cs[NC0:])
a("""
ds_write_b128 v6, v[64:67]
ds_write_b128 v6, v[68:71] offset:16
s_waitcnt lgkmcnt(0)
s_barrier
""")
stamp()
for r in range(16):
    a(f"ds_read_b32 v{72+r}, v198 offset:{512*r}")
for st_ in (8, 4, 2, 1):
    for r in range(st_):
        a(f"v_add_f32 v{72+r}, v{72+r}, v{72+r+st_}")
a(f"""
v_cvt_pk_bf16_f32 v73, v72, v72
v_and_b32 v73, {sMask}, v73
v_sub_f32 v74, v72, v73
v_cvt_pk_bf16_f32 v73, v73, v74
s_lshl_b32 s74, s61, 9
s_add_u32 s74, s74, {WS_CS}
s_cmp_lt_u32 s60, 14
s_cselect_b32 s74, s74, {WS_SIZE}
s_cmp_lt_u32 {sw}, 2
s_cselect_b32 s74, s74, {WS_SIZE}
buffer_store_dword v73, v2, {rWs}, s74 offen sc1
""")
stamp()
poll("hnc", NC_LOAD, NC_CMP)
a(f"""
v_mul_u32_u24 v1, {FSP}, v255
s_lshl_b32 s74, {shq}, 2
s_add_u32 s74, s74, {WS_FL}
s_waitcnt vmcnt(0)
s_barrier
s_cmp_eq_u32 {sw}, 0
s_cbranch_scc0 L_hdone
s_mov_b64 exec, 0xff
buffer_store_dword v202, v1, {rWs}, s74 offen sc1
s_mov_b64 exec, -1
L_hdone:
""")
stamp()
stamp_out()
a("L_end:\ns_endpgm")
for sp in slow:
    a.reset()
    a(sp)
a("L_codeend:\ns_endpgm")

body = a.render()
here = os.path.dirname(os.path.abspath(__file__))
ref = open(os.path.join(here, "..", "cdna_kernels", NAME + ".s.ref")).read()
head = [l for l in ref.split("\n") if l.startswith(";") and "@launch" not in l and "Override" not in l and "grid=ceil" not in l]
txt = "\n".join(head) + f"""
; Generated by tools/gen.py (hand-written generator).  XTS={XTS} YS={YS}
; @launch grid=(256,1,1) block=(256,1,1) lds=163840
.amdgcn_target "amdgcn-amd-amdhsa--gfx950"
.text
.globl {NAME}_kernel
.p2align 8
.type {NAME}_kernel,@function
{NAME}_kernel:
{body}
.section .rodata,"a"
.p2align 6
.amdhsa_kernel {NAME}_kernel
  .amdhsa_next_free_vgpr 512
  .amdhsa_next_free_sgpr 102
  .amdhsa_accum_offset 256
  .amdhsa_group_segment_fixed_size 0
  .amdhsa_kernarg_size 128
  .amdhsa_user_sgpr_count 2
  .amdhsa_user_sgpr_kernarg_segment_ptr 1
  .amdhsa_system_sgpr_workgroup_id_x 1
.end_amdhsa_kernel
"""
out = [x for x in sys.argv[1:] if not x.startswith("--")]
path = out[0] if out else os.path.join(here, "..", "cdna_kernels", NAME + ".s")
open(path, "w").write(txt)
print(path, a.stats, file=sys.stderr)
```

```python
import sys, os
sys.path.insert(0, os.path.dirname(os.path.abspath(__file__)))
from asmdsl import Asm

NAME = "parallel_sum__ssm_conv_s4__glu_gated_reglu__prompt"
STAMP = "--stamp" in sys.argv


def opt(name, dflt):
    v = [x.split('=')[1] for x in sys.argv if x.startswith('--' + name + '=')]
    return type(dflt)(v[0]) if v else dflt


WS_H, WS_XT, WS_Y = 0x0, 0x700000, 0x900000
XTS, YS = 4096 + opt('xtp', 128), 8192 + opt('yp', 128)
WS_ST, WS_CS = 0xB00000, 0xB04000
WS_FH, WS_FY, WS_FL, WS_EP = 0xB10000, 0xB20000, 0xB28000, 0xB2C000
WS_TS = 0xB30000
WS_SIZE = 0xB80000
FSP = 1024
SLOT = [0, 16384, 32768, 49152]
XB = 32768
SC = 147456
UB = 33536
U1_OFF = 4640
U_CH = 9280
KC0, KC_CH, KC_CP = 16, 16656, 4160
YX = 32768
RX = 0
XR = 0
PS = [SC] + [XB + k * 16384 for k in range(2, 7)]
SPIN = 200000
FHW_AT, FH_AT, FH_POLL = opt('fhw', 2), opt('fh', 16), opt('fhp', 20)
FYW_AT, FY_AT, FY_POLL = opt('fyw', 8), opt('fy', 21), opt('fyp', 26)
FL_AT, FL_POLL = opt('fl', 20), opt('flp', 23)
OUTFL = 'sc1' if '--outsc1' in sys.argv else ''
SEL = opt('sel', 'a')
CV = opt('cv', 20)
PAT = opt('pat', 0)
WG = opt('wg', 4)

sX, sAre, sAim, sBre, sBim, sCre, sCim, sLdt, sDsk = 4, 6, 8, 10, 12, 14, 16, 18, 20
sWg, sWu, sWd, sOut, sDbg, sWs = 24, 26, 28, 30, 32, 34
rX, rW, rWd, rWs, rOut = "s[36:39]", "s[40:43]", "s[44:47]", "s[48:51]", "s[52:55]"
sw, sxcd, sj, sr1, sc1_, sjc, sr2, sc2, snonce = "s56", "s57", "s58", "s59", "s60", "s61", "s62", "s63", "s64"
sWoff, sWdoff, sDs, scnt = "s65", "s66", "s67", "s68"
sq, sXoff, sw4k, sWl, sMask = "s69", "s72", "s73", "s77", "s78"
sFL, stg, sUl, sUg, sH0, sH1, sKC, sHoff = "s80", "s81", "s82", "s83", "s86", "s87", "s88", "s89"
sST, sCS, sFHw, sFHr, sY = "s90", "s91", "s92", "s93", "s94"
sOdd = "s[22:23]"

vKC, vKZ, vUZ, vKX, vXR, vXD, vWD, vWF, vKL = 160, 168, 169, 170, 172, 180, 184, 188, 190
vDD, vDF, vCU, vCK, vN4, vN8, vCS, vF, vYW, vYR, vFH, vH = 200, 204, 208, 209, 210, 211, 212, 213, 214, 215, 217, 218
fC, fR, fKG, fQ, fG, vNo, vZ, vL16 = 220, 221, 222, 223, 226, 224, 225, 250

a = Asm()
slow = []
nstamp = [0]
tok, ltok = {}, {}


def stamp(kind="a"):
    if not STAMP or kind not in SEL:
        return
    k = nstamp[0]
    nstamp[0] += 1
    if k > 1:
        a.items.append(("raw", f"    v_writelane_b32 v254, s98, {k-1}"))
    a.items.append(("raw", f"    {CLK} s[98:99]"))


def poll(name, load, cmp_):
    a(cmp_)
    a(f"s_cbranch_vccnz L_slow_{name}")
    a(f"L_back_{name}:")
    slow.append(f"""L_slow_{name}:
s_mov_b32 {scnt}, 0
L_retry_{name}:
s_add_u32 {scnt}, {scnt}, 1
s_cmp_gt_u32 {scnt}, {SPIN}
s_cbranch_scc1 L_back_{name}
s_sleep 1
{load}
s_waitcnt vmcnt(0)
{cmp_}
s_cbranch_vccnz L_retry_{name}
s_branch L_back_{name}""")


def put(items):
    for e in items:
        if isinstance(e, tuple):
            if e[0] == "vt": tok[e[1]] = a.vm_tok()
            if e[0] == "lt": ltok[e[1]] = a.lg_tok()
            if e[0] == "wv": a.wait_vm(tok[e[1]])
            if e[0] == "wl": a.wait_lg(ltok[e[1]])
        else:
            a(e)


def weave(main, extra):
    nreal = sum(1 for e in extra if not isinstance(e, tuple))
    out, k, done = [], 0, 0
    for t, m in enumerate(main):
        out += m if isinstance(m, list) else [m]
        goal = -(-(nreal * (t + 1)) // len(main))
        while k < len(extra) and (isinstance(extra[k], tuple) or done < goal):
            out.append(extra[k])
            done += not isinstance(extra[k], tuple)
            k += 1
    return out


def cost(e):
    if isinstance(e, tuple):
        return 4 if e[0] in ("wv", "wl") else 0
    c = 0
    for l in e.split("\n"):
        op = l.split()[0]
        if op.startswith(("buffer_", "global_")):
            c += CV if "x4" in op else 12
        elif op.startswith("ds_write"):
            c += 28 if "b128" in op or "2_b64" in op else 14
        else:
            c += 4
    return c


def pack(main, extra, cap):
    base = [sum(cost(x) for x in m[1:]) for m in main]
    n, G = len(extra), len(main)
    cs = [cost(e) for e in extra]
    INF = 1 << 60
    best = [[INF] * (n + 1) for _ in range(G + 1)]
    frm = [[0] * (n + 1) for _ in range(G + 1)]
    best[0][0] = 0
    for g in range(G):
        for i in range(n + 1):
            if best[g][i] == INF:
                continue
            load = base[g]
            for j in range(i, n + 1):
                if j > i:
                    load += cs[j - 1]
                v = best[g][i] + 1000 * max(0, load - cap) + load * load // 16
                if v < best[g + 1][j]:
                    best[g + 1][j] = v
                    frm[g + 1][j] = i
    cuts, j = [], n
    for g in range(G, 0, -1):
        cuts.append((frm[g][j], j))
        j = frm[g][j]
    cuts.reverse()
    out = []
    for m, (i, j) in zip(main, cuts):
        out += m + extra[i:j]
    return out


def lines(txt, per=1):
    L = [l for l in txt.strip().split("\n")]
    return ["\n".join(L[i:i + per]) for i in range(0, len(L), per)]


ROT = opt('rot', 0)
HFL = opt('hfl', 'sc1').replace('_', ' ').replace('none', '')


def wrap(reg, step, lim, base):
    return f"s_add_u32 {reg}, {reg}, {step}\ns_cmp_eq_u32 {reg}, {lim}\ns_cselect_b32 {reg}, {base}, {reg}"


def dma4(m0, vo, srd, soff, step, fl=""):
    g = [m0, f"buffer_load_dwordx4 v{vo}, {srd}, {soff} offen {fl} lds"]
    for i in range(1, 4):
        g.append(f"buffer_load_dwordx4 v{vo+i}, {srd}, {soff} offen offset:{1024*i} {fl} lds")
    g.append(f"s_add_u32 {soff}, {soff}, {step}")
    return g


def w_unit(u):
    return dma4(f"s_add_u32 m0, {sWl}, {SLOT[u % 4]}", vWD, rW, sWoff, 32 * 3584)


def x_block(cb):
    return dma4(f"s_add_u32 m0, {sw4k}, {XB+cb*16384}", vXD, rX, sXoff, 128)


def wd_pair(kk):
    g = dma4(f"s_add_u32 m0, {sw4k}, {PS[(kk >> 1) % 6]}", vDD, rWd, sWdoff, 32 * 896)
    if ROT and kk % 4 == 2:
        g[-1] = wrap(sWdoff, 32 * 896, "s9", "s8")
    return g


CLK = "s_memtime" if "--cyc" in sys.argv else "s_memrealtime"
if STAMP:
    a(f"{CLK} s[100:101]")
a(f"""
s_cmp_ge_u32 s2, 256
s_cbranch_scc1 L_end
s_load_dwordx16 s[4:19], s[0:1], 0
s_load_dwordx16 s[20:35], s[0:1], 64
s_getpc_b64 s[70:71]
L_pc:
s_and_b32 {sxcd}, s2, 7
s_lshr_b32 {sj}, s2, 3
v_lshrrev_b32 v1, 6, v0
v_and_b32 v255, 63, v0
v_readfirstlane_b32 {sw}, v1
""")
a(f"""
s_and_b32 {sq}, {sj}, 3
s_lshl_b32 s74, {sq}, 6
v_lshl_add_u32 v2, v1, 4, v255
v_add_u32 v2, s74, v2
v_lshlrev_b32 v2, 7, v2
v_min_u32 v2, L_codeend-L_pc-4, v2
s_mov_b64 exec, 0xffff
{"global_load_dword v253, v2, s[70:71]" if "--nocodepf" not in sys.argv else ""}
s_mov_b64 exec, -1
s_mov_b32 s38, {2048*896}
s_mov_b32 s39, 0x20000
s_mov_b32 s42, {448*3584}
s_mov_b32 s43, 0x20000
s_mov_b32 s50, {WS_SIZE}
s_mov_b32 s51, 0x20000
v_lshlrev_b32 v{vL16}, 4, v255
s_mov_b32 {sMask}, 0xffff0000
s_cmp_lt_u32 {sj}, 4
s_cbranch_scc1 L_helper
""")

a(f"""
s_sub_u32 {sj}, {sj}, 4
s_mul_i32 s74, {sxcd}, 28
s_add_u32 {sjc}, s74, {sj}
s_lshl_b32 s74, {sjc}, 10
s_lshl_b32 s75, {sw}, 8
s_add_u32 s74, s74, s75
v_lshl_add_u32 v4, v255, 2, s74
s_lshr_b32 s79, s74, 9
s_lshl_b32 s74, s79, 1
v_mov_b32 v5, s74
s_lshr_b32 {sc2}, {sj}, 2
s_lshr_b32 s74, {sxcd}, 1
s_lshl_b32 s74, s74, 2
s_add_u32 {sr1}, s74, {sq}
s_lshl_b32 {stg}, {sr1}, 2
s_add_u32 {stg}, {stg}, {sw}
s_mul_i32 {sXoff}, {stg}, {32*896}
s_lshl_b32 {sw4k}, {sw}, 12
s_and_b32 s74, {sxcd}, 1
s_mul_i32 s74, s74, 7
s_add_u32 {sc1_}, s74, {sc2}
s_lshl_b32 {sWoff}, {sc1_}, 8
s_lshr_b32 s84, {sw}, 1
s_and_b32 s85, {sw}, 1
s_lshl_b32 s74, s85, 13
s_lshl_b32 s75, s84, 12
s_add_u32 {sWl}, s74, s75
v_and_b32 v{fC}, 3, v255
v_bfe_u32 v{fR}, v255, 2, 2
v_lshrrev_b32 v{fKG}, 5, v255
v_lshrrev_b32 v{fQ}, 4, v255
v_and_b32 v{fG}, 1, v{fQ}
v_lshrrev_b32 v6, 3, v255
v_mul_u32_u24 v1, 896, v6
v_and_b32 v2, 7, v255
v_xor_b32 v2, v2, v{fQ}
v_lshl_add_u32 v{vXD}, v2, 4, v1
v_xor_b32 v{vXD+1}, 64, v{vXD}
v_add_u32 v{vXD+1}, {8*896-1024}, v{vXD+1}
v_add_u32 v{vXD+2}, {2*(8*896-1024)}, v{vXD}
v_add_u32 v{vXD+3}, {2*(8*896-1024)}, v{vXD+1}
s_lshl_b32 s74, s84, 4
v_add_u32 v1, s74, v{fR}
v_mul_u32_u24 v1, 3584, v1
v_lshl_add_u32 v1, v{fQ}, 6, v1
s_lshl_b32 s76, s85, 1
v_xor_b32 v2, s76, v{fC}
v_lshl_add_u32 v{vWD}, v2, 4, v1
v_add_u32 v{vWD+1}, {4*3584-1024}, v{vWD}
v_add_u32 v{vWD+2}, {2*(4*3584-1024)}, v{vWD}
v_add_u32 v{vWD+3}, {3*(4*3584-1024)}, v{vWD}
""")
if STAMP:
    a("v_mov_b32 v254, 0\ns_waitcnt lgkmcnt(0)\nv_writelane_b32 v254, s100, 0")
    nstamp[0] = 1
stamp(SEL[0])
a(f"""
s_waitcnt lgkmcnt(0)
global_load_ushort v134, v5, s[{sLdt}:{sLdt+1}]
global_load_dword v128, v4, s[{sAre}:{sAre+1}]
global_load_dword v129, v4, s[{sAim}:{sAim+1}]
global_load_dword v130, v4, s[{sBre}:{sBre+1}]
global_load_dword v131, v4, s[{sBim}:{sBim+1}]
global_load_dword v132, v4, s[{sCre}:{sCre+1}]
global_load_dword v133, v4, s[{sCim}:{sCim+1}]
global_load_ushort v135, v5, s[{sDsk}:{sDsk+1}]
s_mov_b32 s36, s{sX}
s_mov_b32 s37, s{sX+1}
s_bitcmp1_b32 {sw}, 0
s_cselect_b32 s40, s{sWu}, s{sWg}
s_cselect_b32 s41, s{sWu+1}, s{sWg+1}
s_cselect_b64 {sOdd}, -1, 0
""")
if "--notlb" not in sys.argv:
    a(f"""
v_min_u32 v14, 5, v255
v_lshlrev_b32 v14, 21, v14
v_mov_b32 v15, 0
s_mov_b64 exec, 0x3f
global_load_dword v152, v14, s[{sWs}:{sWs+1}]
s_mov_b64 exec, 1
global_load_dword v153, v15, s[{sOut}:{sOut+1}]
global_load_dword v154, v15, s[{sWd}:{sWd+1}]
global_load_dword v155, v15, s[{sDbg}:{sDbg+1}]
s_mov_b64 exec, -1
""")
LATE = opt('late', 2)
first_dma = x_block(0) + w_unit(0) + [("vt", "u0")]
if not LATE:
    put(first_dma)
a(f"""
s_add_u32 s74, {sw4k}, {SC}
v_add_u32 v{vKX}, s74, v{vL16}
v_xor_b32 v{vKX+1}, 4096, v{vKX}
v_bfe_u32 v1, v255, 1, 2
v_lshlrev_b32 v7, 4, v1
v_lshl_add_u32 v7, v255, 6, v7
v_add_u32 v{vKL}, s74, v7
v_xor_b32 v{vKL+1}, 16, v{vKL}
v_xor_b32 v{vKL+2}, 32, v{vKL}
v_xor_b32 v{vKL+3}, 48, v{vKL}
v_lshl_add_u32 v7, v{fKG}, 3, v{fR}
v_lshlrev_b32 v7, 6, v7
v_bfe_u32 v8, v255, 1, 1
v_lshl_add_u32 v8, v{fG}, 1, v8
v_lshrrev_b32 v9, 1, v{fR}
v_xor_b32 v8, v8, v9
v_lshl_add_u32 v7, v8, 4, v7
v_and_b32 v10, 1, v255
v_lshl_add_u32 v7, v10, 3, v7
v_add_u32 v{vKL+4}, s74, v7
v_xor_b32 v{vKL+5}, 32, v{vKL+4}
v_add_u32 v{vKL+5}, 256, v{vKL+5}
s_lshl_b32 s76, s85, 5
v_xor_b32 v{vKL+6}, s76, v{vKL+4}
v_xor_b32 v{vKL+7}, s76, v{vKL+5}
v_and_b32 v11, 31, v255
v_bfe_u32 v12, v255, 1, 3
v_xor_b32 v7, v12, v{fKG}
v_lshlrev_b32 v7, 4, v7
v_lshl_add_u32 v7, v11, 7, v7
s_add_u32 s74, {sw4k}, {XB}
v_add_u32 v{vXR}, s74, v7
v_xor_b32 v{vXR+1}, 32, v{vXR}
v_xor_b32 v{vXR+2}, 64, v{vXR}
v_xor_b32 v{vXR+3}, 96, v{vXR}
v_add_u32 v{vXR+4}, 0x10000, v{vXR}
v_add_u32 v{vXR+5}, 0x10000, v{vXR+1}
v_add_u32 v{vXR+6}, 0x10000, v{vXR+2}
v_add_u32 v{vXR+7}, 0x10000, v{vXR+3}
v_lshlrev_b32 v13, 3, v{fC}
v_lshl_add_u32 v13, v{fR}, 6, v13
v_mul_u32_u24 v7, {8192+32}, v{fG}
v_lshl_add_u32 v7, v{fKG}, 11, v7
v_add_u32 v{vWF}, v7, v13
v_xor_b32 v{vWF+1}, 32, v{vWF}
v_lshl_add_u32 v7, v{fG}, 5, v13
v_lshl_add_u32 v7, v{fKG}, 9, v7
s_lshl_b32 s74, s85, 8
s_add_u32 s74, s74, {sw4k}
s_add_u32 s74, s74, 65536
v_add_u32 v{vDF}, s74, v7
v_xor_b32 v{vDF+1}, 256, v{vDF}
v_add_u32 v{vDF+2}, 0x10000, v{vDF}
v_add_u32 v{vDF+3}, 0x10000, v{vDF+1}
s_mul_i32 s74, {sw}, 448
v_lshl_add_u32 v7, v{fKG}, 2, v{fR}
v_add_u32 v7, s74, v7
v_mul_u32_u24 v7, 896, v7
v_lshl_add_u32 v7, v{fG}, 6, v7
v_lshl_add_u32 v{vDD}, v{fC}, 4, v7
v_add_u32 v{vDD+1}, {8*896-1024}, v{vDD}
v_add_u32 v{vDD+2}, {2*(8*896-1024)}, v{vDD}
v_add_u32 v{vDD+3}, {3*(8*896-1024)}, v{vDD}
v_lshlrev_b32 v{vN4}, 2, v11
v_lshlrev_b32 v{vN8}, 3, v11
""")
setup2 = lines(f"""s_mul_i32 {sKC}, s84, {KC_CH}
s_add_u32 {sKC}, {sKC}, {KC0}
s_lshl_b32 s74, s85, 10
s_sub_u32 s74, {sKC}, s74
s_add_u32 s74, s74, {16*255-12}
v_sub_u32 v{vKC}, s74, v{vL16}
v_add_u32 v{vKC+1}, {KC_CP+4}, v{vKC}
v_add_u32 v{vKC+2}, {2*(KC_CP+4)}, v{vKC}
v_add_u32 v{vKC+3}, {3*(KC_CP+4)}, v{vKC}
v_lshlrev_b32 v7, 9, v{fKG}
v_sub_u32 v7, v{vKC}, v7
v_subrev_u32 v{vKC+4}, {16*96}, v7
v_add_u32 v{vKC+5}, {KC_CP+4}, v{vKC+4}
v_add_u32 v{vKC+6}, {2*(KC_CP+4)}, v{vKC+4}
v_add_u32 v{vKC+7}, {3*(KC_CP+4)}, v{vKC+4}
v_and_b32 v11, 15, v255
v_mul_u32_u24 v7, {KC_CP+4}, v{fQ}
v_lshl_add_u32 v7, v11, 2, v7
v_add_u32 v{vKZ}, {sKC}, v7
v_lshlrev_b32 v7, 2, v11
v_lshl_add_u32 v{vCS}, v{fG}, 9, v7
v_min_u32 v7, 52, v7
v_mul_u32_u24 v8, {FSP}, v{fG}
v_add_u32 v{vFH}, v7, v8
s_mul_i32 s75, s84, {U_CH}
s_add_u32 s75, s75, {UB}
s_mul_i32 s74, s85, {U1_OFF}
s_add_u32 s74, s74, s75
v_min_u32 v7, 55, v255
v_lshl_add_u32 v{vUZ}, v7, 3, s74
s_lshl_b32 s74, s85, 11
s_add_u32 {sUl}, s75, s74
s_mul_i32 {sUg}, s79, {XTS}
s_add_u32 {sUg}, {sUg}, s74
s_add_u32 {sUg}, {sUg}, {WS_XT}
v_mul_u32_u24 v7, {U1_OFF}, v10
v_lshl_add_u32 v7, v12, 6, v7
v_lshl_add_u32 v7, v{fQ}, 4, v7
s_lshl_b32 s74, s85, 6
s_sub_u32 s75, s75, s74
s_add_u32 s75, s75, {448-384}
v_add_u32 v{vCU}, s75, v7
v_mul_u32_u24 v7, {KC_CP}, v{fC}
v_sub_u32 v8, v{fQ}, v{fR}
v_lshl_add_u32 v7, v8, 4, v7
s_sub_u32 s74, {sKC}, s74
s_add_u32 s74, s74, {16*255-64*62}
v_add_u32 v{vCK}, s74, v7
s_lshl_b32 s74, {sw}, 10
s_add_u32 s74, s74, {YX}
v_add_u32 v{vYW}, s74, v{vL16}
v_lshlrev_b32 v7, 8, v1
v_lshl_add_u32 v7, v6, 5, v7
v_lshl_add_u32 v7, v10, 3, v7
s_lshl_b32 s74, {sw}, 13
s_add_u32 s75, s74, {YX+4096}
v_add_u32 v{vYR}, s75, v7
s_add_u32 s74, s74, 8192
s_and_b32 s74, s74, 0x7fff
s_add_u32 s74, s74, {YX}
v_add_u32 v{vYR+1}, s74, v7
s_mul_i32 s74, s84, {112*1024}
v_add_u32 v{vH}, s74, v{vL16}
s_sub_u32 s74, {112*1024}, s74
v_add_u32 v{vH+1}, s74, v{vL16}
v_mov_b32 v{vZ}, 0
s_lshl_b32 s74, {sxcd}, 2
s_add_u32 {sr2}, s74, {sq}
s_lshl_b32 s74, {sr2}, 1
s_add_u32 s74, s74, s84
s_lshl_b32 s97, s74, 5
s_lshl_b32 s74, {sc2}, 1
s_add_u32 s74, s74, s85
s_lshl_b32 s17, s74, 6
s_mul_i32 s74, s97, 896
s_add_u32 s16, s74, s17
v_lshrrev_b32 v7, 2, v255
v_mul_u32_u24 v7, 896, v7
v_xor_b32 v8, v{fC}, v{fQ}
v_lshl_add_u32 v227, v8, 4, v7""")
put(setup2[:opt('s2', len(setup2))])
setup2 = setup2[opt('s2', len(setup2)):]
a(f"""
v_lshlrev_b32 v134, 16, v134
v_mul_f32 v134, 0x3fb8aa3b, v134
v_exp_f32 v134, v134
v_cvt_pk_bf16_f32 v134, v134, v134
v_lshlrev_b32 v134, 16, v134
""")
stamp()

PA = [64, 96]
PB = 8
KF = [(160, 176, 192, 208), (224, 240, 80, 96)]
R1, R8, E, T = 146, [148, 150], 0, 2
l1s = [0, 1, 2, 3, 4, 5, 6, 7, 8, 256, 258, 260, 262, 264, 512, 516, 520, 768, 772, 776,
       1024, 1032, 1280, 1288, 1536, 1544, 1792, 1800]
ra = {l: 8 + 2 * i for i, l in enumerate(l1s)}
cols = [0, 1, 2, 3, 256, 256, 258, 260, 4, 5, 6, 7, 260, 260, 262, 264,
        512, 516, 520, 1024, 768, 772, 776, 1536, 1032, 1280, 1288, 1288, 1544, 1792, 1800, 1800]


def cmul(d, x, r, t):
    return [f"v_pk_mul_f32 v[{t}:{t+1}], v[{x}:{x+1}], v[{r}:{r+1}] op_sel_hi:[1,0]",
            f"v_pk_fma_f32 v[{d}:{d+1}], v[{x}:{x+1}], v[{r}:{r+1}], v[{t}:{t+1}] op_sel:[1,1,0] op_sel_hi:[0,1,1] neg_lo:[1,0,0]"]


def k_write(ck, i, cq):
    P = (PA[ck] + 16 * i) if i < 2 else (PB + 16 * (i - 2))
    return f"ds_write_b128 v{vKL+cq}, v[{P+4*cq}:{P+4*cq+3}]"


def k_reads(ck, i):
    fr = KF[ck][i]
    base = vKL + 6 if i < 2 else vKL + 4
    return "\n".join(f"ds_read_b64_tr_b16 a[{fr+4*s+2*rd}:{fr+4*s+2*rd+1}], v{base+rd} offset:{1024*s}"
                     for s in range(4) for rd in range(2))


def kgen_head(ck):
    L = []
    un = (lambda d, s: f"v_lshlrev_b32 v{d}, 16, v{s}") if ck == 0 else (lambda d, s: f"v_and_b32 v{d}, {sMask}, v{s}")
    L += [un(136 + i, 128 + i) for i in range(6)]
    L += ["v_mul_f32 v142, v134, v136", "v_mul_f32 v143, v134, v137",
          "v_mul_f32 v142, 0x3fb8aa3b, v142", "v_mul_f32 v143, 0.15915494, v143"]

    def ev(d, l):
        s = []
        if l == 1:
            s += ["v_exp_f32 v144, v142", "v_fract_f32 v145, v143"]
        else:
            f = {8: "0x41000000", 256: "0x43800000"}[l]
            s += [f"v_mul_f32 v144, {f}, v142", f"v_mul_f32 v145, {f}, v143", "v_exp_f32 v144, v144", "v_fract_f32 v145, v145"]
        s += [f"v_cos_f32 v{d}, v145", f"v_sin_f32 v{d+1}, v145"]
        return s, f"v_pk_mul_f32 v[{d}:{d+1}], v[{d}:{d+1}], v[144:145] op_sel_hi:[1,0]"
    wm = cmul(ra[0], 140, 138, T) + [f"v_pk_mul_f32 v[{ra[0]}:{ra[0]+1}], v[{ra[0]}:{ra[0]+1}], v[134:135] op_sel_hi:[1,0]"]
    for (d, l), fill in zip(((R1, 1), (R8[ck], 8), (E, 256)), wm):
        s, last = ev(d, l)
        L += s + [fill, last]
    for l in range(1, 9):
        L += cmul(ra[l], ra[l - 1], R1, T)
    for l in l1s[9:]:
        L += cmul(ra[l], ra[l - 256], E, T)
    for k in range(16):
        c0, c1 = ra[cols[2 * k]], ra[cols[2 * k + 1]]
        L += [f"v_cvt_pk_bf16_f32 v{PA[ck]+k}, v{c0}, v{c1}", f"v_cvt_pk_bf16_f32 v{PA[ck]+16+k}, -v{c0+1}, -v{c1+1}"]
    return L


def kgen_chain(ck):
    r8 = R8[ck]
    rb = lambda j: r8 if j == 1 else 4 + 2 * (j % 2)
    B = [f"v_cvt_pk_bf16_f32 v{PB}, 1.0, v{r8}", f"v_cvt_pk_bf16_f32 v{PB+16}, 0, v{r8+1}"]
    for j in range(2, 32):
        B += cmul(rb(j), rb(j - 1), r8, T)
        if j % 2:
            B += [f"v_cvt_pk_bf16_f32 v{PB+j//2}, v{rb(j-1)}, v{rb(j)}",
                  f"v_cvt_pk_bf16_f32 v{PB+16+j//2}, v{rb(j-1)+1}, v{rb(j)+1}"]
    return B


def k_pass(ck, i):
    return [k_write(ck, i, cq) for cq in range(4)] + [k_reads(ck, i)]


def at(stream, items):
    out = []
    for i, x in enumerate(stream):
        out += [y for p, y in items if p == i]
        out.append(x)
    return out + [y for p, y in items if p >= len(stream)]


def kgen_mfma(ck):
    f = KF[ck]
    return [f"v_mfma_f32_32x32x16_bf16 a[144:159], a[{f[s>>2]+4*(s&3)}:{f[s>>2]+4*(s&3)+3}], "
            f"a[{f[2+(s>>2)]+4*(s&3)}:{f[2+(s>>2)]+4*(s&3)+3}], "
            + ("0" if (ck == 0 and s == 0) else "a[144:159]") for s in range(8)]


def x_read(s):
    cb = s >> 2
    return f"ds_read_b128 a[{4*s}:{4*s+3}], v{vXR + (0 if cb < 4 else 4) + (s & 3)} offset:{(cb % 4)*16384}"


warm = [f"""s_cmp_eq_u32 {sw}, 0
s_cselect_b32 s12, s{sWg}, s{sWu}
s_cselect_b32 s13, s{sWg+1}, s{sWu+1}
s_cmp_lt_u32 {sw}, 2
s_cselect_b32 s12, s12, s{sWd}
s_cselect_b32 s13, s13, s{sWd+1}
s_mul_i32 s74, {sjc}, {56*128}
v_min_u32 v251, 55, v255
v_lshl_add_u32 v251, v251, 7, s74
global_load_dword v252, v251, s[12:13]"""] if "--nowarm" not in sys.argv else []
for _ in range(opt('dmain', 0)):
    a("s_sleep 16")
stamp("k")
early = x_block(1) + [("vt", "x1")] + w_unit(1) + [("vt", "u1")]
if LATE == 1:
    put(weave(kgen_head(0), first_dma + early))
elif LATE == 2:
    put(weave(kgen_head(0), first_dma))
    warm = early + warm
else:
    put(weave(kgen_head(0), early))
stamp("k")
warm += [f"buffer_load_dwordx4 v[242:245], v227, {rX}, s16 offen",
         f"s_add_u32 s74, s16, {16*896}\nbuffer_load_dwordx4 v[246:249], v227, {rX}, s74 offen"]
put(weave(kgen_head(1), warm))
stamp("ak"[SEL == "k"])
RD = opt('rd', 3)
p0, p1, p2 = k_pass(0, 0), k_pass(0, 1), k_pass(0, 2)
put(at(kgen_chain(0), list(zip((0, 7, 14, 21, 21 + RD), p0)) + list(zip((30, 37, 44, 51, 51 + RD), p1))
       + list(zip((62, 70, 80, 92), p2))))
stamp("k")
p3, q0, q1, q2 = k_pass(0, 3), k_pass(1, 0), k_pass(1, 1), k_pass(1, 2)
ch = kgen_chain(1)
put([p2[4], p3[0], p3[1]] + at(ch[2:], [(0, p3[2]), (4, p3[3]), (4, ch[0]), (4, ch[1]), (4 + RD, p3[4])]
                                + list(zip((14, 20, 26, 32, 32 + RD), q0)) + list(zip((42, 48, 54, 60, 60 + RD), q1))
                                + list(zip((70, 76, 82, 90), q2))))
stamp("ak"[SEL == "k"])
sc = lines(f"""s_lshl_b32 {sWdoff}, {sc2}, 7
s_mov_b32 s44, s{sWd}
s_mov_b32 s45, s{sWd+1}
s_mov_b32 s46, {1792*896}
s_mov_b32 s47, 0x20000
s_mov_b32 s48, s{sWs}
s_mov_b32 s49, s{sWs+1}
s_mov_b32 s52, s{sOut}
s_mov_b32 s53, s{sOut+1}
s_mov_b32 s54, {2048*896}
s_mov_b32 s55, 0x20000
s_mul_i32 {sFL}, {sxcd}, {FSP}
s_add_u32 {sFL}, {sFL}, {WS_FL}
s_lshl_b32 {sST}, {stg}, 8
s_add_u32 {sST}, {sST}, {WS_ST}
s_lshl_b32 {sCS}, {sc1_}, 10
s_add_u32 {sCS}, {sCS}, {WS_CS}
v_lshlrev_b32 v135, 16, v135""")
lp = k_pass(1, 3)
put(weave(kgen_mfma(0), [q2[4], lp[0]] + sc[:6] + [lp[1]] + sc[6:12] + [lp[2]] + sc[12:]
          + [lp[3], ("wv", "u0")] + [x_read(s) for s in range(4)] + [lp[4]]))
stamp("k")
a("s_waitcnt lgkmcnt(0)")
stamp("k")
a("s_barrier")
stamp("ak"[SEL == "k"])

fillg = {s: [] for s in range(28)}
fillg[2] += lines(f"""v_readfirstlane_b32 {sDs}, v135
s_mul_i32 {sH0}, {stg}, {112*1024}
s_lshl_b32 s74, {sc1_}, 13
s_add_u32 {sH0}, {sH0}, s74
s_add_u32 {sH1}, {sH0}, 4096
s_mul_i32 s74, {stg}, {FSP}
s_lshl_b32 s75, {sc1_}, 2
s_add_u32 s74, s74, s75
s_add_u32 {sFHw}, s74, {WS_FH}""")
fillg[3] += [f"v_accvgpr_read_b32 v{128+r}, a{144+r}" for r in range(8)]
fillg[2] += []
fillg[4] += [f"ds_read_b128 v[136:139], v{vKX+1}", f"ds_read_b128 v[140:143], v{vKX+1} offset:1024", ("lt", "kr")]
fillg[5] += lines(f"""s_mul_i32 {sFHr}, {sr2}, {2*FSP}
s_add_u32 {sFHr}, {sFHr}, {WS_FH}
s_mul_i32 {sHoff}, {sr2}, {2*112*1024}
s_mul_i32 s74, {sw}, {28*1024}
s_add_u32 s10, {sHoff}, s74""")
fillg[6] += [f"s_lshl_b32 s3, {sq}, 1\ns_add_u32 s3, s3, {sc2}" if ROT == 1 else f"s_mov_b32 s3, {sc2 if ROT else 0}",
             "s_sub_u32 s74, s3, 7\ns_cselect_b32 s3, s3, s74",
             f"s_mov_b32 s8, {sWdoff}\ns_add_u32 s9, s8, {448*896}",
             f"s_mul_i32 s74, s3, {64*896}\ns_add_u32 {sWdoff}, {sWdoff}, s74",
             "s_add_u32 s74, s3, 4\ns_sub_u32 s75, s74, 7\ns_cselect_b32 s74, s74, s75",
             f"s_lshl_b32 s74, s74, 12\ns_add_u32 {sHoff}, s10, s74", f"s_add_u32 s11, s10, {28*1024}"]
fillg[7] += [f"v_add_f32 v{128+r}, v{128+r}, v{136+r}" for r in range(8)]
fillg[9] += lines(f"""v_cmp_eq_u32 vcc, 0, v255
v_mov_b32 v140, {sDs}
s_mov_b32 s74, 0xaaaaaaaa
s_mov_b32 s75, 0xaaaaaaaa
v_cndmask_b32 v140, 0, v140, vcc
v_add_f32 v140, v128, v140
v_cndmask_b32 v141, v131, v132, s[74:75]
v_cndmask_b32 v142, v133, v134, s[74:75]""")
fillg[11] += lines(f"""v_cvt_pk_bf16_f32 v144, v132, v132
v_cvt_pk_bf16_f32 v145, v132, v141
v_cvt_pk_bf16_f32 v146, v131, v131
v_cvt_pk_bf16_f32 v147, v131, v131
v_cvt_pk_bf16_f32 v148, v134, v134
v_cvt_pk_bf16_f32 v149, v134, v142
v_cvt_pk_bf16_f32 v150, v133, v133
v_cvt_pk_bf16_f32 v151, v133, v133""")
fillg[13] += lines(f"""v_cvt_pk_bf16_f32 v136, v135, v134
v_cvt_pk_bf16_f32 v137, v133, v132
v_cvt_pk_bf16_f32 v138, v131, v130
v_cvt_pk_bf16_f32 v139, v129, v140
v_cvt_pk_bf16_f32 v140, v130, v130
v_cvt_pk_bf16_f32 v141, v129, v129
v_cvt_pk_bf16_f32 v142, v129, v128
v_cvt_pk_bf16_f32 v143, v128, v128""")
fillg[15] += [f"v_cndmask_b32 v{136+r}, v{136+r}, v{140+r}, {sOdd}" for r in range(4)]
fillg[17] += lines(f"""s_mul_i32 {sY}, {sjc}, {YS}
s_lshl_b32 s74, {sw}, 11
s_add_u32 {sY}, {sY}, s74
s_add_u32 {sY}, {sY}, {WS_Y}""")
fillg[19] += [f"v_mov_b32 v{r}, 0" for r in (190, 191, 193, 194)]
fillg[21] += [f"v_mov_b32 v{r}, 0" for r in (195, 196, 198, 199)]


def wd_read(kk, r):
    off = PS[(kk >> 1) % 6] - 65536 + (kk & 1) * 2048
    base = vDF if off < 65536 else vDF + 2
    return [f"ds_read_b64_tr_b16 a[{r+4*da+2*rd}:{r+4*da+2*rd+1}], v{base+da} offset:{off % 65536+rd*1024}"
            for da in range(2) for rd in range(2)]


def wd_move(kk):
    return wd_read(kk, 8 * kk)


def wfrag_read(s, t, r):
    off = SLOT[(s >> 1) % 4] + (s & 1) * 4096 + (t >> 1) * 256
    return [f"ds_read_b64_tr_b16 a[{r+2*rd}:{r+2*rd+1}], v{vWF+(t & 1)} offset:{off+rd*1024}" for rd in range(2)]


put(pack([[m] + wfrag_read(0, t, 112 + 4 * t) for t, m in enumerate(kgen_mfma(1))], w_unit(2) + [("vt", "u2")] + fillg[2], 24))
fillg[2] = []
put(x_block(2) + [("vt", "x2")])
put([f"ds_write_b128 v{vKX}, a[152:155]", f"ds_write_b128 v{vKX}, a[156:159] offset:1024", ("lt", "kx")])
stamp("k")

FL_LOAD = f"buffer_load_dword v{vF}, v{vN4}, {rWs}, {sFL} offen sc1"
F_CMP = f"v_cmp_ne_u32 vcc, {snonce}, v{vF}"
NC_LOAD = f"global_load_dword v{vNo}, v{vZ}, s[{sDbg}:{sDbg+1}] sc1"
NC_CMP = f"v_cmp_eq_u32 vcc, 0, v{vNo}"
carry, pre = [], []
for s in range(25):
    if s % 2 == 0 and s > 0:
        stamp("g")
    if 1 <= s <= 4:
        stamp("k")
    extra, dma = [], None
    if s % 2 == 1:
        u = (s + 1) // 2
        lt = {1: "x1", 5: "kr"}.get(s)
        a.wait_both(tok[f"u{u}"], ltok[lt] if lt else None)
        a("s_barrier")
        if u + 2 < 14:
            dma = ([], w_unit(u + 2), f"u{u+2}")
    if s == 0:
        extra += [("wv", "x1")] + [x_read(k) for k in range(4, 8)] + [("lt", "x1")]
    if s % 2 == 0 and 2 <= s <= 8:
        dma = ([], x_block(2 + s // 2), f"x{2+s//2}")
    if s % 2 == 0 and 4 <= s <= 12:
        cb = s // 2
        extra += [("wv", f"x{cb}")] + [x_read(k) for k in range(4 * cb, 4 * cb + 4)] + [("lt", f"x{cb}")]
    if s % 2 == 0 and 10 <= s <= 20:
        p = (s - 10) // 2
        dma = ([("wl", f"x{p+1}")] if p else [], wd_pair(2 * p), f"wd{2*p}")
    if 14 <= s <= 21:
        kk = s - 14
        if kk % 2 == 0:
            extra += [("wv", f"wd{kk}")]
        extra += wd_move(kk) + [("lt", f"mv{kk}")]
    if s in (22, 23, 24):
        kk = 12 + 2 * (s - 22)
        dma = ([("wl", f"mv{kk-11}")], wd_pair(kk), f"wd{kk}")
    if s == 12:
        extra += [NC_LOAD]
    if s == 16:
        poll("nc", NC_LOAD, NC_CMP)
        a(f"v_readfirstlane_b32 {snonce}, v{vNo}")
    if s == FL_AT:
        extra += [FL_LOAD]
    if s == FL_POLL:
        poll("fl", FL_LOAD, F_CMP)
        extra += [f"buffer_load_dword v{vF}, v{vN8}, {rWs}, {sST} offen sc1",
                  f"s_lshl_b32 s74, s97, 3\ns_add_u32 s74, s74, {WS_ST+4}\nbuffer_load_dword v228, v{vN8}, {rWs}, s74 offen sc1"]
    if FL_POLL <= s < FL_POLL + 2:
        extra += [f"buffer_load_dword a{160+t}, v{vCS}, {rWs}, {sCS} offen offset:{64*t} sc1"
                  for t in range(4 * (s - FL_POLL), 4 * (s - FL_POLL) + 4)]
    extra += fillg[s]
    AB = opt('ab', '')
    if dma and (('x' in AB and dma[2][0] == 'x') or ('w' in AB and dma[2][0] == 'w') or ('u' in AB and dma[2][0] == 'u')):
        dma = (dma[0], ["s_nop 0"] * 6, dma[2])
    main = []
    for t in range(8):
        if t % WG == 0 and s > 0:
            (main[-1] if main else pre).append(("wl", f"f{t+WG-1}" if not (PAT and t + WG - 1 == 7) else "f6"))
        c = "0" if s == 0 else f"v[{16*t}:{16*t+15}]"
        m = [f"v_mfma_f32_32x32x16_bf16 v[{16*t}:{16*t+15}], a[{112+4*t}:{115+4*t}], a[{4*s}:{4*s+3}], {c}"]
        rd = wfrag_read(s + 1, t, 112 + 4 * t) + [("lt", f"f{t}")]
        if dma and t == 0:
            m += dma[0] + [dma[1][0]]
        if PAT and t % 2 == 1 and not (s == 24 and t == 7):
            carry = rd
        else:
            m += carry + rd
            carry = []
        if dma and t % 2 == 1:
            m.append(dma[1][1 + t // 2])
            if t == 7:
                m += [("vt", dma[2]), dma[1][5]]
        main.append(m)
    put(pre + pack(main, extra, 24))
    pre = []
stamp("g")
a.wait_vm(tok["u13"])
a("s_barrier")
put(wfrag_read(26, 0, 168) + wfrag_read(27, 0, 172))
first = [f"v_cmp_gt_u32 vcc, 32, v255", "v_mov_b32 v152, 0", "v_mov_b32 v153, 0",
         f"s_add_u32 m0, {sUl}, {U1_OFF+448}", f"buffer_load_dwordx4 v{vL16}, {rWs}, {sUg} offen sc1 lds",
         f"buffer_load_dwordx4 v{vL16}, {rWs}, {sUg} offen offset:1024 sc1 lds",
         f"v_cndmask_b32 v192, 0, v{vF}, vcc\nv_cndmask_b32 v197, 0, v{vF}, vcc"]
second = [f"s_sub_u32 {sUg}, {sUg}, 2\ns_add_u32 m0, {sUl}, 448", f"buffer_load_dwordx4 v{vL16}, {rWs}, {sUg} offen sc1 lds",
          f"buffer_load_dwordx4 v{vL16}, {rWs}, {sUg} offen offset:1024 sc1 lds", ("vt", "u")]
main, epi = [], []
for t in range(8):
    r = 168 + 8 * (t % 2)
    cb = (192, 196, 190, 194)[t & 3]
    ops = [(f"a[{112+4*t}:{115+4*t}]", "a[100:103]"), (f"a[{r}:{r+3}]", "a[104:107]"), (f"a[{r+4}:{r+7}]", "a[108:111]"),
           (f"a[{160+(t & 4)}:{163+(t & 4)}]", f"v[{cb}:{cb+3}]")]
    for k, (A, B) in enumerate(ops):
        m = [f"v_mfma_f32_32x32x16_bf16 v[{16*t}:{16*t+15}], {A}, {B}, v[{16*t}:{16*t+15}]"]
        if t < 7 and k in (0, 1):
            m += wfrag_read(26 + k, t + 1, 168 + 8 * ((t + 1) % 2) + 4 * k)
        main.append(m)
    b = 16 * t
    L = [f"v_max_f32 v{b+r}, 0, v{b+r}" for r in range(8)]
    if t < 6:
        L += [f"v_mul_f32 v{b+r}, v{b+r}, v{b+8+r}" for r in range(8)]
    else:
        L += [f"v_pk_mul_f32 v[{b+r}:{b+r+1}], v[{b+r}:{b+r+1}], v[{b+8+r}:{b+9+r}]" for r in range(0, 8, 2)]
    L += [f"v_cvt_pk_bf16_f32 v{b+8+r}, v{b+2*r}, v{b+2*r+1}" for r in range(4)]
    L += [f"buffer_store_dwordx4 v[{b+8}:{b+11}], v{vL16}, {rWs}, {(sH0, sH1)[t >> 2]} offen offset:{1024*(t & 3)} sc1"]
    epi.append(L)
stamp("t")
put(pack(main[:3], first, 24) + pack(main[3:6], second, 24))
for t in range(6):
    stamp("t")
    put(pack(main[4 * t + 6:4 * t + 10], epi[t], 24))
stamp("t")
put(pack(main[30:], epi[6][:8], 24))
rest = epi[6][8:] + epi[7]
stamp()
stamp("t")
a("s_barrier")
stamp("t")


def octet_writes(d, ar, off):
    return [f"ds_write_b128 v{ar+3}, v[{d}:{d+3}] offset:{off}",
            f"ds_write2_b64 v{ar+1}, v[{d}:{d+1}], v[{d+2}:{d+3}] offset0:{off//8} offset1:{off//8+1}"] + \
           [f"ds_write2_b32 v{ar+c}, v{d+k}, v{d+k+1} offset0:{off//4+k} offset1:{off//4+k+1}" for c in (0, 2) for k in (0, 2)]


put(weave(rest, octet_writes(136, vKC, 0) + [f"ds_write_b32 v{vKZ}, v152 offset:{4096-12}", f"ds_write_b64 v{vUZ}, v[152:153]"]))
tok["h"] = a.vm_tok()
stamp("t")
a(f"s_mov_b64 exec, {sOdd}")
put(octet_writes(144, vKC + 4, 512) + octet_writes(148, vKC + 4, 0))
a("s_mov_b64 exec, -1")
stamp("t")
a(f"s_andn2_b64 exec, 1, {sOdd}")
a.wait_vm(tok["u"])
a(f"""ds_write_b16 v{vUZ}, v152 offset:448
s_mov_b64 exec, -1
s_waitcnt lgkmcnt(0)""")
stamp("t")
a("s_barrier")
stamp()
stamp("t")


def a_read(n):
    return f"ds_read_b128 a[{128+4*(n % 4)}:{131+4*(n % 4)}], v{vCK} offset:{64*(62-2*n)}"


def u_read(be, i):
    return f"ds_read_b128 v[{16*be+4*i}:{16*be+4*i+3}], v{vCU} offset:{512*be-128*i+384}"


NH = opt('nh', 8)
ORD = list(range(16, 28)) + list(range(16))


def h_load(i):
    g = []
    for ta in range(2):
        r = 96 + 8 * (i % NH) + 4 * ta
        g.append(f"buffer_load_dwordx4 v[{r}:{r+3}], v{vH+ta}, {rWs}, {sHoff} offen offset:{1024*(i % 4)} {HFL}")
    if i % 4 == 3:
        if ROT:
            g[-1] += "\n" + wrap(sHoff, 4096, "s11", "s10")
        else:
            g[-1] += f"\ns_add_u32 {sHoff}, {sHoff}, 4096" if i != 11 else f"\ns_sub_u32 {sHoff}, {sHoff}, {24*1024}"
    return g


put([a_read(0)] + [u_read(be, 0) for be in range(8)] + [a_read(1), a_read(2)])
FH_LOAD = f"buffer_load_dword v{vF}, v{vFH}, {rWs}, {sFHr} offen sc1"
fill = {n: [] for n in range(32)}
for i in range(1, 4):
    fill[i - 1] += [u_read(be, i) for be in range(8)]
fill[2] += [("lt", "ub")]
fill[FHW_AT] += [("wv", "h"), f"s_mov_b64 exec, 1\nbuffer_store_dword v{vNo}, v{vZ}, {rWs}, {sFHw} offen sc1\ns_mov_b64 exec, -1"]
fill[1] = wd_pair(18) + [("vt", "wd18")] + fill[1]
for kk in range(8, 16):
    n = 3 + (kk - 8)
    if kk % 2 == 0:
        fill[n] += [("wv", f"wd{kk}")]
    fill[n] += wd_move(kk) + [("lt", f"mv{kk}")]
    if kk % 2 == 1:
        fill[n + 2] += [("wl", f"mv{kk}")] + wd_pair(kk + 11) + [("vt", f"wd{kk+11}")]
YB = opt('yb', 15)
fill[FH_AT] += [FH_LOAD]
for j in range(7):
    fill[(YB + 1, YB + 2, YB + 3, max(17, YB + 4), 21, 25, 29)[j]] += [f"ds_write_b128 v{vYW}, a[{224+4*j}:{227+4*j}] offset:{4096*((j+1) % 8)}"]
hl = [(i, g) for i in range(28) for g in h_load(i)]
for n in range(FH_POLL, 32):
    if hl[0][0] < NH:
        fill[n] += [hl.pop(0)[1]]
for P in range(8):
    for i in range(4):
        n = 4 * P + i
        if n % 4 == 0 or n in (2, 6, 10):
            stamp("c")
        if n == YB:
            a.wait_lg(ltok["ub"])
            a("s_barrier")
        if n == FH_POLL:
            poll("fh", FH_LOAD, F_CMP)
        main = []
        for be in range(8 - P):
            j = P + be
            c = "0" if n == 0 else f"a[{224+4*j}:{227+4*j}]"
            main.append(f"v_mfma_f32_16x16x32_bf16 a[{224+4*j}:{227+4*j}], a[{128+4*(n % 4)}:{131+4*(n % 4)}], v[{16*be+4*i}:{16*be+4*i+3}], {c}")
        put(pack([[m] for m in main], ([a_read(n + 3)] if n + 3 < 32 else []) + fill[n], 8))
stamp()
stamp("f")
put([("wv", "wd16")] + wd_read(16, 128))
a(f"ds_write_b128 v{vYW}, a[252:255]")
ltok["y7"] = a.lg_tok()
stamp()
stamp("f")

XS = lambda g, e: (80 if g < 4 else 0) + 4 * g + 2 * e
FY_LOAD = f"buffer_load_dword v{vF}, v{vN4}, {rWs}, s80 offen sc1"
fill = {k: [] for k in range(28)}
fill[0] += [("wl", "y7"), "s_barrier"]
for jj in range(2):
    r = 64 + 16 * jj
    fill[0] += [f"ds_read_b64 v[{r+4*src+2*ph}:{r+4*src+2*ph+1}], v{vYR+jj} offset:{1024*src+16*ph}"
                for src in range(4) for ph in range(2)]
    fill[1 + jj] += [f"v_add_f32 v{r+k}, v{r+k}, v{r+k+4}" for k in (0, 1, 2, 3, 8, 9, 10, 11)]
    fill[1 + jj] += [f"v_cvt_pk_bf16_f32 v{r+4+k}, v{r+o}, v{r+8+o}" for k, o in enumerate((0, 2, 1, 3))] + \
        [f"buffer_store_dwordx4 v[{r+4}:{r+7}], v{vL16}, {rWs}, {sY} offen offset:{1024*jj} sc1", ("vt", "y")]
fill[4] += lines(f"""s_lshr_b32 s74, {sjc}, 5
s_lshl_b32 s74, s74, 2
s_add_u32 s74, s74, {sw}
s_mul_i32 s74, s74, {FSP}
s_and_b32 s75, {sjc}, 31
s_lshl_b32 s75, s75, 2
s_add_u32 s74, s74, s75
s_add_u32 s95, s74, {WS_FY}""", 2)
fill[FYW_AT] += [("wv", "y"), f"s_mov_b64 exec, 1\nbuffer_store_dword v{vNo}, v{vZ}, {rWs}, s95 offen sc1\ns_mov_b64 exec, -1"]
fill[5] += lines(f"""s_lshl_b32 s80, {sc2}, 2
s_lshr_b32 s74, {sr2}, 3
s_add_u32 s80, s80, s74
s_mul_i32 s80, s80, {FSP}
s_add_u32 s80, s80, {WS_FY}
s_lshl_b32 s13, {sw}, 11
v_add_u32 v230, s13, v{vL16}""", 2)
fill[9] += [f"ds_write_b128 v230, v[242:245] offset:{XR}"] + lines(f"""v_mul_u32_u24 v234, 224, v{vN4}
v_lshl_add_u32 v234, v{fKG}, 4, v234""")
fill[10] += [f"ds_write_b128 v230, v[246:249] offset:{XR+1024}"] + lines(f"""v_lshlrev_b32 v231, 4, v{fR}
v_lshl_add_u32 v231, v{vN4}, 4, v231
v_lshl_add_u32 v231, v{fKG}, 3, v231""")
fill[12] += lines(f"""v_add_u32 v236, s13, v231
v_xor_b32 v237, 16, v236
v_xor_b32 v238, 32, v236
v_xor_b32 v239, 48, v236
v_mul_u32_u24 v235, {2*YS}, v{fKG}
v_add_u32 v235, v235, v{vN4}""") + [f"ds_read_b64 v[{64+2*g}:{65+2*g}], v{236+g} offset:{XR}" for g in range(4)] + [("lt", "xr")]
fill[13] += lines(f"""s_mul_i32 s74, s17, {YS//4}
s_lshl_b32 s75, s97, 2
s_add_u32 s74, s74, s75
s_add_u32 s96, s74, {WS_Y}
s_mul_i32 s74, {sw}, {3*4096}
s_add_u32 s74, s74, {RX}
v_add_u32 v240, s74, v{vL16}""", 2)
for k in range(1, 4):
    fill[13 + k] += [f"s_xor_b32 s74, {sw}, {k}\ns_mul_i32 s74, s74, {3*4096}",
                     f"s_add_u32 s74, s74, {RX+(k-1)*4096}\nv_add_u32 v{240+k}, s74, v{vL16}"]
fill[FY_AT] += [FY_LOAD]
for g in range(4):
    for e in range(2):
        fill[17 + g] += [f"v_lshlrev_b32 v{XS(g, e)}, 16, v{64+2*g+e}", f"v_and_b32 v{XS(g, e)+1}, {sMask}, v{64+2*g+e}"]
fill[22] += [("wl", "xr"), "s_barrier"]
for g in range(4):
    for e in range(2):
        fill[min(27, FY_POLL + g // 2)] += [f"buffer_load_dword v{72+2*g+e}, v235, {rWs}, s96 offen sc1\ns_add_u32 s96, s96, {YS if e == 0 else 3*YS}"]
DEF = opt('def', NH)
late = []
HL0 = opt('hl0', 1)
for i in range(28):
    kk = ORD[i]
    if i % 2 == 0 and i > 0:
        stamp("h")
    if i < 14:
        stamp("j")
    extra = []
    if i + 1 < 12:
        if (kk + 1) % 2 == 0:
            extra += [("wv", f"wd{kk+1}")]
        extra += wd_read(kk + 1, 128 + 8 * ((kk + 1) % 2))
    if i == FY_POLL:
        poll("fy", FY_LOAD, F_CMP)
    main = []
    for ta in range(2):
        for da in range(2):
            acc = 16 * (da + 2 * ta)
            c = "0" if i == 0 else f"v[{acc}:{acc+15}]"
            fa = (8 * kk if kk < 16 else 128 + 8 * (kk % 2)) + 4 * da
            fb = 96 + 8 * (i % NH) + 4 * ta
            m = [f"v_mfma_f32_32x32x16_bf16 v[{acc}:{acc+15}], a[{fa}:{fa+3}], v[{fb}:{fb+3}], {c}"]
            if acc == 0 and i >= 28 - DEF:
                late.append(m)
                continue
            if hl and i >= HL0 and (da, ta) != (0, 0) and (hl[0][0] < i + NH or (hl[0][0] == i + NH and da == 1 and len(hl) % 2 == ta % 2)):
                m.append(hl.pop(0)[1])
            main.append(m)
    AB = opt('ab', '')
    fl_ = fill[i]
    if 'X' in AB:
        fl_ = [e for e in fl_ if isinstance(e, tuple) or not (" lds" in e or "v80," in e)]
    if 'Y' in AB and i == FYW_AT:
        fl_ = [e for e in fl_ if e != ("wv", "y")]
    if 'D' in AB:
        extra = [e for e in extra if not isinstance(e, tuple)]
    put(pack(main, extra + fl_, 24))
assert not hl
stamp()
stamp("f")
wr = [f"ds_write_b128 v240, v[{16*k+4*g}:{16*k+4*g+3}] offset:{(k-1)*4096+1024*g}" for k in range(1, 4) for g in range(4)]
put(weave(late, wr) if late else wr)
stamp("f")
a("s_waitcnt lgkmcnt(0)")
stamp("f")
a("s_barrier")
stamp("f")
for g in range(4):
    for k in range(1, 4):
        a(f"ds_read_b128 v[{16*k+4*g}:{16*k+4*g+3}], v{240+k} offset:{1024*g}")
stamp("f")
for g in range(4):
    for e in range(2):
        yr, d = 72 + 2 * g + e, XS(g, e)
        a(f"""
v_lshlrev_b32 v112, 16, v{yr}
v_and_b32 v113, {sMask}, v{yr}
v_pk_add_f32 v[{d}:{d+1}], v[{d}:{d+1}], v[112:113]
""")
stamp("f")
for g in range(4):
    for e in range(2):
        r = 4 * g + 2 * e
        for k in range(1, 4):
            a(f"v_pk_add_f32 v[{r}:{r+1}], v[{r}:{r+1}], v[{16*k+r}:{16*k+r+1}]")
        a(f"v_pk_fma_f32 v[{r}:{r+1}], v[{r}:{r+1}], v[228:229], v[{XS(g, e)}:{XS(g, e)+1}] op_sel_hi:[1,0,1]")
    a(f"v_cvt_pk_bf16_f32 v{116+2*g}, v{4*g}, v{4*g+1}\nv_cvt_pk_bf16_f32 v{117+2*g}, v{4*g+2}, v{4*g+3}")
    if g % 2 == 1:
        b = 116 + 2 * (g - 1)
        a(f"v_permlane32_swap_b32 v{b}, v{b+2}\nv_permlane32_swap_b32 v{b+1}, v{b+3}")
        a(f"buffer_store_dwordx4 v[{b}:{b+3}], v234, {rOut}, s16 offen offset:{16*(g-1)} {OUTFL}")
        stamp("f")
stamp()


def stamp_out():
    if not STAMP:
        return
    a(f"""
s_waitcnt vmcnt(0) lgkmcnt(0)
v_writelane_b32 v254, s98, {nstamp[0]-1}
{CLK} s[98:99]
s_waitcnt lgkmcnt(0)
v_writelane_b32 v254, s98, 15
s_lshl_b32 s84, s2, 2
s_add_u32 s84, s84, {sw}
s_lshl_b32 s84, s84, 6
s_add_u32 s84, s84, {WS_TS}
v_lshlrev_b32 v1, 2, v255
s_mov_b64 exec, 0xffff
buffer_store_dword v254, v1, {rWs}, s84 offen
""")


stamp_out()
a("s_endpgm")

a.reset()
NC_LOAD = f"global_load_dword v202, v203, s[{sDbg}:{sDbg+1}] sc1"
NC_CMP = "v_cmp_eq_u32 vcc, 0, v202"
shq = "s59"
a(f"""
L_helper:
s_lshl_b32 {shq}, {sxcd}, 2
s_add_u32 {shq}, {shq}, {sj}
v_mov_b32 v203, 0
v_lshrrev_b32 v1, 2, v255
s_lshl_b32 s83, {shq}, 2
s_add_u32 s83, s83, {sw}
s_lshl_b32 s72, s83, 4
v_add_u32 v4, s72, v1
v_mul_u32_u24 v5, 896, v4
v_and_b32 v2, 3, v255
v_lshl_add_u32 v5, v2, 4, v5
s_lshr_b32 s73, {sxcd}, 1
s_lshl_b32 s73, s73, 2
s_add_u32 s60, s73, {sj}
s_min_u32 s73, s60, 13
s_and_b32 s74, {sxcd}, 1
s_mul_i32 s74, s74, 14
s_add_u32 s61, s73, s74
s_lshr_b32 s73, s61, 1
s_lshl_b32 s82, s73, 8
v_lshrrev_b32 v6, 4, v255
s_lshl_b32 s75, {sw}, 2
v_add_u32 v6, s75, v6
v_mul_u32_u24 v7, 3584, v6
v_and_b32 v3, 15, v255
v_lshl_add_u32 v7, v3, 4, v7
s_mov_b32 s72, {WS_EP}
s_waitcnt lgkmcnt(0)
""")
if STAMP:
    a("v_mov_b32 v254, 0\nv_writelane_b32 v254, s100, 0")
    nstamp[0] = 1
stamp(SEL[0])
a(f"""
s_mov_b32 s36, s{sX}
s_mov_b32 s37, s{sX+1}
s_mov_b32 s48, s{sWs}
s_mov_b32 s49, s{sWs+1}
buffer_load_dword v202, v203, {rWs}, s72 offen sc1
""")
for i in range(14):
    a(f"buffer_load_dwordx4 v[{8+4*i}:{11+4*i}], v5, {rX}, 0 offen offset:{64*i}")
a(f"""
s_mov_b32 s73, 1664525
v_mul_lo_u32 v202, v202, s73
s_cmp_eq_u32 s83, 127
v_add_u32 v202, 1013904225, v202
v_or_b32 v202, 1, v202
s_cbranch_scc0 L_hnoep
s_mov_b64 exec, 1
""")
a.items.append(("raw", f"    global_store_dword v203, v202, s[{sDbg}:{sDbg+1}] sc1"))
a.items.append(("raw", f"    buffer_store_dword v202, v203, {rWs}, s72 offen sc1"))
a(f"""
s_mov_b64 exec, -1
L_hnoep:
s_bitcmp1_b32 s61, 0
s_cselect_b32 s40, s{sWu}, s{sWg}
s_cselect_b32 s41, s{sWu+1}, s{sWg+1}
""")
wl = [f"buffer_load_dwordx4 v[{72+4*i}:{75+4*i}], v7, {rW}, s82 offen\ns_add_u32 s82, s82, {16*3584}" for i in range(28)]
HW0 = opt('hw0', 0)
put(wl[:HW0])
wl = wl[HW0:]
a(f"""
s_mov_b32 s76, 0x3f803f80
s_mov_b32 s77, 0x00003f80
s_mov_b32 s79, 0x3f800000
""")
for _ in range(opt('dhelp', 0)):
    a("s_sleep 16")
EXACT = "--noexact" not in sys.argv
L = []
for i in range(56):
    c0, c1 = ("0", "0") if i == 0 else ("v64", "v68")
    L.append([f"v_dot2_f32_bf16 v64, v{8+i}, s76, {c0}", f"v_dot2_f32_bf16 v68, v{8+i}, v{8+i}, {c1}"])
HW1 = opt('hw1', 0)
put(L[0] + weave(L[1:], wl[:HW1]))
wl = wl[HW1:]
stamp()
a(f"""
v_add_f32_dpp v64, v64, v64 quad_perm:[1,0,3,2] row_mask:0xf bank_mask:0xf
v_add_f32_dpp v68, v68, v68 quad_perm:[1,0,3,2] row_mask:0xf bank_mask:0xf
v_lshlrev_b32 v4, 3, v4
v_add_f32_dpp v64, v64, v64 quad_perm:[2,3,0,1] row_mask:0xf bank_mask:0xf
v_add_f32_dpp v68, v68, v68 quad_perm:[2,3,0,1] row_mask:0xf bank_mask:0xf
v_mul_f32 v64, {hex(0x3b124925)}, v64
v_mul_f32 v68, {hex(0x3b124925)}, v68
v_fma_f32 v68, -v64, v64, v68
v_cvt_pk_bf16_f32 v64, -v64, -v64
v_max_f32 v68, 0, v68
v_cvt_pk_bf16_f32 v68, v68, v68
v_and_b32 v68, {sMask}, v68
v_add_f32 v68, 0x3727c5ac, v68
v_cvt_pk_bf16_f32 v68, v68, v68
v_and_b32 v68, {sMask}, v68
v_sqrt_f32 v68, v68
v_and_b32 v66, {sMask}, v64
v_cvt_pk_bf16_f32 v68, v68, v68
v_and_b32 v68, {sMask}, v68
v_rcp_f32 v70, v68
s_mov_b32 s74, {WS_ST}
v_fma_f32 v71, -v68, v70, 1.0
v_fma_f32 v70, v70, v71, v70
v_mul_f32 v65, v70, v70
v_mul_f32 v71, v66, v70
s_mov_b32 s80, 0x11111111
s_mov_b32 s81, 0x11111111
s_mov_b64 exec, s[80:81]
buffer_store_dwordx2 v[64:65], v4, {rWs}, s74 offen sc1
s_mov_b64 exec, -1
v_mul_u32_u24 v5, 960, v1
s_mul_i32 s75, {sw}, {16*960}
v_lshl_add_u32 v5, v2, 4, v5
v_add_u32 v5, s75, v5
""")
L2B = 64 * 960
L3B = L2B + 448 * 144
a(f"""
v_lshrrev_b32 v1, 5, v255
v_bfe_u32 v2, v255, 2, 2
v_lshl_add_u32 v2, v1, 3, v2
v_mul_u32_u24 v2, 960, v2
v_bfe_u32 v4, v255, 4, 1
v_lshl_add_u32 v2, v4, 5, v2
v_and_b32 v4, 3, v255
v_lshl_add_u32 v2, v4, 3, v2
v_add_u32 v194, s75, v2
v_and_b32 v4, 31, v255
v_mul_u32_u24 v4, 144, v4
s_lshl_b32 s74, {sw}, 5
s_add_u32 s74, s74, {L2B}
v_lshl_add_u32 v4, v1, 4, v4
v_add_u32 v195, s74, v4
v_lshlrev_b32 v6, 9, v6
v_lshl_add_u32 v6, v3, 5, v6
v_add_u32 v6, {L3B}, v6
v_lshrrev_b32 v1, 3, v255
v_and_b32 v2, 7, v255
v_lshlrev_b32 v2, 4, v2
v_mul_u32_u24 v197, {XTS}, v1
v_add_u32 v197, v197, v2
v_mul_u32_u24 v1, 144, v1
v_add_u32 v1, v1, v2
s_mul_i32 s74, {sw}, {112*144}
s_add_u32 s74, s74, {L2B}
v_add_u32 v196, s74, v1
s_lshl_b32 s74, {shq}, 7
s_mul_i32 s75, {sw}, {112*XTS}
s_add_u32 s74, s74, s75
s_add_u32 s62, s74, {WS_XT}
s_and_b32 s75, {sw}, 1
s_lshl_b32 s75, s75, 8
v_lshl_add_u32 v2, v255, 2, s75
v_add_u32 v198, {L3B}, v2
""")


L = []
for i in range(56):
    t = 186 + 2 * (i % 4)
    if EXACT:
        g = [f"v_dot2_f32_bf16 v{t}, v{8+i}, s77, v66", f"v_dot2_f32_bf16 v{t+1}, v{8+i}, s79, v66"]
        if i > 0:
            p = 186 + 2 * ((i - 1) % 4)
            g += [f"v_cvt_pk_bf16_f32 v{7+i}, v{p}, v{p+1}", f"v_lshlrev_b32 v{p}, 16, v{7+i}", f"v_and_b32 v{p+1}, {sMask}, v{7+i}",
                  f"v_pk_mul_f32 v[{p}:{p+1}], v[{p}:{p+1}], v[70:71] op_sel_hi:[1,0]", f"v_cvt_pk_bf16_f32 v{7+i}, v{p}, v{p+1}"]
            if i % 4 == 0:
                g.append(f"ds_write_b128 v5, v[{4+i}:{7+i}] offset:{64*(i//4-1)}")
        if i == 55:
            g += ["s_nop 0", f"v_cvt_pk_bf16_f32 v63, v{t}, v{t+1}", f"v_lshlrev_b32 v{t}, 16, v63", f"v_and_b32 v{t+1}, {sMask}, v63",
                  f"v_pk_mul_f32 v[{t}:{t+1}], v[{t}:{t+1}], v[70:71] op_sel_hi:[1,0]", f"v_cvt_pk_bf16_f32 v63, v{t}, v{t+1}",
                  f"ds_write_b128 v5, v[60:63] offset:{64*13}"]
    else:
        g = [f"v_lshlrev_b32 v{t}, 16, v{8+i}", f"v_and_b32 v{t+1}, {sMask}, v{8+i}",
             f"v_pk_fma_f32 v[{t}:{t+1}], v[{t}:{t+1}], v[70:71], v[70:71] op_sel:[0,0,1] op_sel_hi:[1,0,1]",
             f"v_cvt_pk_bf16_f32 v{8+i}, v{t}, v{t+1}"]
        if i % 4 == 3:
            g.append(f"ds_write_b128 v5, v[{8+i-3}:{8+i}] offset:{64*(i//4)}")
    L.append(g)
HW2 = opt('hw2', 10)
put(weave(L, wl[:HW2]))
wl = wl[HW2:]
stamp()
HW3 = opt('hw3', 99)
put(wl[:min(HW3, 12)])
wl2 = wl[min(HW3, 12):HW3]
wl = wl[HW3:]
for b in range(14):
    a(f"ds_read_b64_tr_b16 v[{8+4*b}:{9+4*b}], v194 offset:{64*b}\nds_read_b64_tr_b16 v[{10+4*b}:{11+4*b}], v194 offset:{64*b+4*960}")
cs = []
for i in range(28):
    for d in range(4):
        c0, c1 = ("0", "0") if i == 0 else (f"v{64+2*d}", f"v{65+2*d}")
        cs += [f"v_dot2_f32_bf16 v{64+2*d}, v{72+4*i+d}, s77, {c0}", f"v_dot2_f32_bf16 v{65+2*d}, v{72+4*i+d}, s79, {c1}"]
NC0 = opt('nc0', 0)
put(weave([f"ds_write_b128 v195, v[{8+4*b}:{11+4*b}] offset:{32*144*b}" for b in range(14)], wl2 + cs[:NC0]))
a(f"{NC_LOAD}\ns_waitcnt lgkmcnt(0)\ns_barrier")
stamp()
for b in range(14):
    a(f"ds_read_b128 v[{8+4*b}:{11+4*b}], v196 offset:{8*144*b}")
put(weave([f"buffer_store_dwordx4 v[{8+4*b}:{11+4*b}], v197, {rWs}, s62 offen sc1\ns_add_u32 s62, s62, {8*XTS}" for b in range(14)], [] if wl else cs[NC0:]))
if wl:
    put(wl + cs[NC0:])
a("""
ds_write_b128 v6, v[64:67]
ds_write_b128 v6, v[68:71] offset:16
s_waitcnt lgkmcnt(0)
s_barrier
""")
stamp()
for r in range(16):
    a(f"ds_read_b32 v{72+r}, v198 offset:{512*r}")
for st_ in (8, 4, 2, 1):
    for r in range(st_):
        a(f"v_add_f32 v{72+r}, v{72+r}, v{72+r+st_}")
a(f"""
v_cvt_pk_bf16_f32 v73, v72, v72
v_and_b32 v73, {sMask}, v73
v_sub_f32 v74, v72, v73
v_cvt_pk_bf16_f32 v73, v73, v74
s_lshl_b32 s74, s61, 9
s_add_u32 s74, s74, {WS_CS}
s_cmp_lt_u32 s60, 14
s_cselect_b32 s74, s74, {WS_SIZE}
s_cmp_lt_u32 {sw}, 2
s_cselect_b32 s74, s74, {WS_SIZE}
buffer_store_dword v73, v2, {rWs}, s74 offen sc1
""")
stamp()
poll("hnc", NC_LOAD, NC_CMP)
a(f"""
v_mul_u32_u24 v1, {FSP}, v255
s_lshl_b32 s74, {shq}, 2
s_add_u32 s74, s74, {WS_FL}
s_waitcnt vmcnt(0)
s_barrier
s_cmp_eq_u32 {sw}, 0
s_cbranch_scc0 L_hdone
s_mov_b64 exec, 0xff
buffer_store_dword v202, v1, {rWs}, s74 offen sc1
s_mov_b64 exec, -1
L_hdone:
""")
stamp()
stamp_out()
a("L_end:\ns_endpgm")
for sp in slow:
    a.reset()
    a(sp)
a("L_codeend:\ns_endpgm")

body = a.render()
here = os.path.dirname(os.path.abspath(__file__))
ref = open(os.path.join(here, "..", "cdna_kernels", NAME + ".s.ref")).read()
head = [l for l in ref.split("\n") if l.startswith(";") and "@launch" not in l and "Override" not in l and "grid=ceil" not in l]
txt = "\n".join(head) + f"""
; Generated by tools/gen.py (hand-written generator).  XTS={XTS} YS={YS}
; @launch grid=(256,1,1) block=(256,1,1) lds=163840
.amdgcn_target "amdgcn-amd-amdhsa--gfx950"
.text
.globl {NAME}_kernel
.p2align 8
.type {NAME}_kernel,@function
{NAME}_kernel:
{body}
.section .rodata,"a"
.p2align 6
.amdhsa_kernel {NAME}_kernel
  .amdhsa_next_free_vgpr 512
  .amdhsa_next_free_sgpr 102
  .amdhsa_accum_offset 256
  .amdhsa_group_segment_fixed_size 0
  .amdhsa_kernarg_size 128
  .amdhsa_user_sgpr_count 2
  .amdhsa_user_sgpr_kernarg_segment_ptr 1
  .amdhsa_system_sgpr_workgroup_id_x 1
.end_amdhsa_kernel
"""
out = [x for x in sys.argv[1:] if not x.startswith("--")]
path = out[0] if out else os.path.join(here, "..", "cdna_kernels", NAME + ".s")
open(path, "w").write(txt)
print(path, a.stats, file=sys.stderr)
```

```python
import sys, os
sys.path.insert(0, os.path.dirname(os.path.abspath(__file__)))
from asmdsl import Asm

NAME = "parallel_sum__ssm_conv_s4__glu_gated_reglu__prompt"
STAMP = "--stamp" in sys.argv


def opt(name, dflt):
    v = [x.split('=')[1] for x in sys.argv if x.startswith('--' + name + '=')]
    return type(dflt)(v[0]) if v else dflt


WS_H, WS_XT, WS_Y = 0x0, 0x700000, 0x900000
XTS, YS = 4096 + opt('xtp', 128), 8192 + opt('yp', 128)
WS_ST, WS_CS = 0xB00000, 0xB04000
WS_FH, WS_FY, WS_FL, WS_EP = 0xB10000, 0xB20000, 0xB28000, 0xB2C000
WS_TS = 0xB30000
WS_SIZE = 0xB80000
FSP = 1024
SLOT = [0, 16384, 32768, 49152]
XB = 32768
SC = 147456
UB = 33536
U1_OFF = 4640
U_CH = 9280
KC0, KC_CH, KC_CP = 16, 16656, 4160
YX = 32768
RX = 0
XR = 0
PS = [SC] + [XB + k * 16384 for k in range(2, 7)]
SPIN = 200000
FHW_AT, FH_AT, FH_POLL = opt('fhw', 2), opt('fh', 16), opt('fhp', 20)
FYW_AT, FY_AT, FY_POLL = opt('fyw', 8), opt('fy', 21), opt('fyp', 26)
FL_AT, FL_POLL = opt('fl', 20), opt('flp', 23)
OUTFL = 'sc1' if '--outsc1' in sys.argv else ''
SEL = opt('sel', 'a')
CV = opt('cv', 20)
PAT = opt('pat', 0)
WG = opt('wg', 4)

sX, sAre, sAim, sBre, sBim, sCre, sCim, sLdt, sDsk = 4, 6, 8, 10, 12, 14, 16, 18, 20
sWg, sWu, sWd, sOut, sDbg, sWs = 24, 26, 28, 30, 32, 34
rX, rW, rWd, rWs, rOut = "s[36:39]", "s[40:43]", "s[44:47]", "s[48:51]", "s[52:55]"
sw, sxcd, sj, sr1, sc1_, sjc, sr2, sc2, snonce = "s56", "s57", "s58", "s59", "s60", "s61", "s62", "s63", "s64"
sWoff, sWdoff, sDs, scnt = "s65", "s66", "s67", "s68"
sq, sXoff, sw4k, sWl, sMask = "s69", "s72", "s73", "s77", "s78"
sFL, stg, sUl, sUg, sH0, sH1, sKC, sHoff = "s80", "s81", "s82", "s83", "s86", "s87", "s88", "s89"
sST, sCS, sFHw, sFHr, sY = "s90", "s91", "s92", "s93", "s94"
sOdd = "s[22:23]"

vKC, vKZ, vUZ, vKX, vXR, vXD, vWD, vWF, vKL = 160, 168, 169, 170, 172, 180, 184, 188, 190
vDD, vDF, vCU, vCK, vN4, vN8, vCS, vF, vYW, vYR, vFH, vH = 200, 204, 208, 209, 210, 211, 212, 213, 214, 215, 217, 218
fC, fR, fKG, fQ, fG, vNo, vZ, vL16 = 220, 221, 222, 223, 226, 224, 225, 250

a = Asm()
slow = []
nstamp = [0]
tok, ltok = {}, {}


def stamp(kind="a"):
    if not STAMP or kind not in SEL:
        return
    k = nstamp[0]
    nstamp[0] += 1
    if k > 1:
        a.items.append(("raw", f"    v_writelane_b32 v254, s98, {k-1}"))
    a.items.append(("raw", f"    {CLK} s[98:99]"))


def poll(name, load, cmp_):
    a(cmp_)
    a(f"s_cbranch_vccnz L_slow_{name}")
    a(f"L_back_{name}:")
    slow.append(f"""L_slow_{name}:
s_mov_b32 {scnt}, 0
L_retry_{name}:
s_add_u32 {scnt}, {scnt}, 1
s_cmp_gt_u32 {scnt}, {SPIN}
s_cbranch_scc1 L_back_{name}
s_sleep 1
{load}
s_waitcnt vmcnt(0)
{cmp_}
s_cbranch_vccnz L_retry_{name}
s_branch L_back_{name}""")


def put(items):
    for e in items:
        if isinstance(e, tuple):
            if e[0] == "vt": tok[e[1]] = a.vm_tok()
            if e[0] == "lt": ltok[e[1]] = a.lg_tok()
            if e[0] == "wv": a.wait_vm(tok[e[1]])
            if e[0] == "wl": a.wait_lg(ltok[e[1]])
        else:
            a(e)


def weave(main, extra):
    nreal = sum(1 for e in extra if not isinstance(e, tuple))
    out, k, done = [], 0, 0
    for t, m in enumerate(main):
        out += m if isinstance(m, list) else [m]
        goal = -(-(nreal * (t + 1)) // len(main))
        while k < len(extra) and (isinstance(extra[k], tuple) or done < goal):
            out.append(extra[k])
            done += not isinstance(extra[k], tuple)
            k += 1
    return out


def cost(e):
    if isinstance(e, tuple):
        return 4 if e[0] in ("wv", "wl") else 0
    c = 0
    for l in e.split("\n"):
        op = l.split()[0]
        if op.startswith(("buffer_", "global_")):
            c += CV if "x4" in op else 12
        elif op.startswith("ds_write"):
            c += 28 if "b128" in op or "2_b64" in op else 14
        else:
            c += 4
    return c


def pack(main, extra, cap):
    base = [sum(cost(x) for x in m[1:]) for m in main]
    n, G = len(extra), len(main)
    cs = [cost(e) for e in extra]
    INF = 1 << 60
    best = [[INF] * (n + 1) for _ in range(G + 1)]
    frm = [[0] * (n + 1) for _ in range(G + 1)]
    best[0][0] = 0
    for g in range(G):
        for i in range(n + 1):
            if best[g][i] == INF:
                continue
            load = base[g]
            for j in range(i, n + 1):
                if j > i:
                    load += cs[j - 1]
                v = best[g][i] + 1000 * max(0, load - cap) + load * load // 16
                if v < best[g + 1][j]:
                    best[g + 1][j] = v
                    frm[g + 1][j] = i
    cuts, j = [], n
    for g in range(G, 0, -1):
        cuts.append((frm[g][j], j))
        j = frm[g][j]
    cuts.reverse()
    out = []
    for m, (i, j) in zip(main, cuts):
        out += m + extra[i:j]
    return out


def lines(txt, per=1):
    L = [l for l in txt.strip().split("\n")]
    return ["\n".join(L[i:i + per]) for i in range(0, len(L), per)]


ROT = opt('rot', 0)
HFL = opt('hfl', 'sc1').replace('_', ' ').replace('none', '')


def wrap(reg, step, lim, base):
    return f"s_add_u32 {reg}, {reg}, {step}\ns_cmp_eq_u32 {reg}, {lim}\ns_cselect_b32 {reg}, {base}, {reg}"


def dma4(m0, vo, srd, soff, step, fl=""):
    g = [m0, f"buffer_load_dwordx4 v{vo}, {srd}, {soff} offen {fl} lds"]
    for i in range(1, 4):
        g.append(f"buffer_load_dwordx4 v{vo+i}, {srd}, {soff} offen offset:{1024*i} {fl} lds")
    g.append(f"s_add_u32 {soff}, {soff}, {step}")
    return g


def w_unit(u):
    return dma4(f"s_add_u32 m0, {sWl}, {SLOT[u % 4]}", vWD, rW, sWoff, 32 * 3584)


def x_block(cb):
    return dma4(f"s_add_u32 m0, {sw4k}, {XB+cb*16384}", vXD, rX, sXoff, 128)


def wd_pair(kk):
    g = dma4(f"s_add_u32 m0, {sw4k}, {PS[(kk >> 1) % 6]}", vDD, rWd, sWdoff, 32 * 896)
    if ROT and kk % 4 == 2:
        g[-1] = wrap(sWdoff, 32 * 896, "s9", "s8")
    return g


CLK = "s_memtime" if "--cyc" in sys.argv else "s_memrealtime"
if STAMP:
    a(f"{CLK} s[100:101]")
a(f"""
s_cmp_ge_u32 s2, 256
s_cbranch_scc1 L_end
s_load_dwordx16 s[4:19], s[0:1], 0
s_load_dwordx16 s[20:35], s[0:1], 64
s_getpc_b64 s[70:71]
L_pc:
s_and_b32 {sxcd}, s2, 7
s_lshr_b32 {sj}, s2, 3
v_lshrrev_b32 v1, 6, v0
v_and_b32 v255, 63, v0
v_readfirstlane_b32 {sw}, v1
""")
a(f"""
s_and_b32 {sq}, {sj}, 3
s_lshl_b32 s74, {sq}, 6
v_lshl_add_u32 v2, v1, 4, v255
v_add_u32 v2, s74, v2
v_lshlrev_b32 v2, 7, v2
v_min_u32 v2, L_codeend-L_pc-4, v2
s_mov_b64 exec, 0xffff
{"global_load_dword v253, v2, s[70:71]" if "--nocodepf" not in sys.argv else ""}
s_mov_b64 exec, -1
s_mov_b32 s38, {2048*896}
s_mov_b32 s39, 0x20000
s_mov_b32 s42, {448*3584}
s_mov_b32 s43, 0x20000
s_mov_b32 s50, {WS_SIZE}
s_mov_b32 s51, 0x20000
v_lshlrev_b32 v{vL16}, 4, v255
s_mov_b32 {sMask}, 0xffff0000
s_cmp_lt_u32 {sj}, 4
s_cbranch_scc1 L_helper
""")

a(f"""
s_sub_u32 {sj}, {sj}, 4
s_mul_i32 s74, {sxcd}, 28
s_add_u32 {sjc}, s74, {sj}
s_lshl_b32 s74, {sjc}, 10
s_lshl_b32 s75, {sw}, 8
s_add_u32 s74, s74, s75
v_lshl_add_u32 v4, v255, 2, s74
s_lshr_b32 s79, s74, 9
s_lshl_b32 s74, s79, 1
v_mov_b32 v5, s74
s_lshr_b32 {sc2}, {sj}, 2
s_lshr_b32 s74, {sxcd}, 1
s_lshl_b32 s74, s74, 2
s_add_u32 {sr1}, s74, {sq}
s_lshl_b32 {stg}, {sr1}, 2
s_add_u32 {stg}, {stg}, {sw}
s_mul_i32 {sXoff}, {stg}, {32*896}
s_lshl_b32 {sw4k}, {sw}, 12
s_and_b32 s74, {sxcd}, 1
s_mul_i32 s74, s74, 7
s_add_u32 {sc1_}, s74, {sc2}
s_lshl_b32 {sWoff}, {sc1_}, 8
s_lshr_b32 s84, {sw}, 1
s_and_b32 s85, {sw}, 1
s_lshl_b32 s74, s85, 13
s_lshl_b32 s75, s84, 12
s_add_u32 {sWl}, s74, s75
v_and_b32 v{fC}, 3, v255
v_bfe_u32 v{fR}, v255, 2, 2
v_lshrrev_b32 v{fKG}, 5, v255
v_lshrrev_b32 v{fQ}, 4, v255
v_and_b32 v{fG}, 1, v{fQ}
v_lshrrev_b32 v6, 3, v255
v_mul_u32_u24 v1, 896, v6
v_and_b32 v2, 7, v255
v_xor_b32 v2, v2, v{fQ}
v_lshl_add_u32 v{vXD}, v2, 4, v1
v_xor_b32 v{vXD+1}, 64, v{vXD}
v_add_u32 v{vXD+1}, {8*896-1024}, v{vXD+1}
v_add_u32 v{vXD+2}, {2*(8*896-1024)}, v{vXD}
v_add_u32 v{vXD+3}, {2*(8*896-1024)}, v{vXD+1}
s_lshl_b32 s74, s84, 4
v_add_u32 v1, s74, v{fR}
v_mul_u32_u24 v1, 3584, v1
v_lshl_add_u32 v1, v{fQ}, 6, v1
s_lshl_b32 s76, s85, 1
v_xor_b32 v2, s76, v{fC}
v_lshl_add_u32 v{vWD}, v2, 4, v1
v_add_u32 v{vWD+1}, {4*3584-1024}, v{vWD}
v_add_u32 v{vWD+2}, {2*(4*3584-1024)}, v{vWD}
v_add_u32 v{vWD+3}, {3*(4*3584-1024)}, v{vWD}
""")
if STAMP:
    a("v_mov_b32 v254, 0\ns_waitcnt lgkmcnt(0)\nv_writelane_b32 v254, s100, 0")
    nstamp[0] = 1
stamp(SEL[0])
a(f"""
s_waitcnt lgkmcnt(0)
global_load_ushort v134, v5, s[{sLdt}:{sLdt+1}]
global_load_dword v128, v4, s[{sAre}:{sAre+1}]
global_load_dword v129, v4, s[{sAim}:{sAim+1}]
global_load_dword v130, v4, s[{sBre}:{sBre+1}]
global_load_dword v131, v4, s[{sBim}:{sBim+1}]
global_load_dword v132, v4, s[{sCre}:{sCre+1}]
global_load_dword v133, v4, s[{sCim}:{sCim+1}]
global_load_ushort v135, v5, s[{sDsk}:{sDsk+1}]
s_mov_b32 s36, s{sX}
s_mov_b32 s37, s{sX+1}
s_bitcmp1_b32 {sw}, 0
s_cselect_b32 s40, s{sWu}, s{sWg}
s_cselect_b32 s41, s{sWu+1}, s{sWg+1}
s_cselect_b64 {sOdd}, -1, 0
""")
if "--tlb" in sys.argv:
    a(f"""
v_min_u32 v14, 5, v255
v_lshlrev_b32 v14, 21, v14
v_mov_b32 v15, 0
s_mov_b64 exec, 0x3f
global_load_dword v152, v14, s[{sWs}:{sWs+1}]
s_mov_b64 exec, 1
global_load_dword v153, v15, s[{sOut}:{sOut+1}]
global_load_dword v154, v15, s[{sWd}:{sWd+1}]
global_load_dword v155, v15, s[{sDbg}:{sDbg+1}]
s_mov_b64 exec, -1
""")
LATE = opt('late', 2)
first_dma = x_block(0) + w_unit(0) + [("vt", "u0")]
if not LATE:
    put(first_dma)
a(f"""
s_add_u32 s74, {sw4k}, {SC}
v_add_u32 v{vKX}, s74, v{vL16}
v_xor_b32 v{vKX+1}, 4096, v{vKX}
v_bfe_u32 v1, v255, 1, 2
v_lshlrev_b32 v7, 4, v1
v_lshl_add_u32 v7, v255, 6, v7
v_add_u32 v{vKL}, s74, v7
v_xor_b32 v{vKL+1}, 16, v{vKL}
v_xor_b32 v{vKL+2}, 32, v{vKL}
v_xor_b32 v{vKL+3}, 48, v{vKL}
v_lshl_add_u32 v7, v{fKG}, 3, v{fR}
v_lshlrev_b32 v7, 6, v7
v_bfe_u32 v8, v255, 1, 1
v_lshl_add_u32 v8, v{fG}, 1, v8
v_lshrrev_b32 v9, 1, v{fR}
v_xor_b32 v8, v8, v9
v_lshl_add_u32 v7, v8, 4, v7
v_and_b32 v10, 1, v255
v_lshl_add_u32 v7, v10, 3, v7
v_add_u32 v{vKL+4}, s74, v7
v_xor_b32 v{vKL+5}, 32, v{vKL+4}
v_add_u32 v{vKL+5}, 256, v{vKL+5}
s_lshl_b32 s76, s85, 5
v_xor_b32 v{vKL+6}, s76, v{vKL+4}
v_xor_b32 v{vKL+7}, s76, v{vKL+5}
v_and_b32 v11, 31, v255
v_bfe_u32 v12, v255, 1, 3
v_xor_b32 v7, v12, v{fKG}
v_lshlrev_b32 v7, 4, v7
v_lshl_add_u32 v7, v11, 7, v7
s_add_u32 s74, {sw4k}, {XB}
v_add_u32 v{vXR}, s74, v7
v_xor_b32 v{vXR+1}, 32, v{vXR}
v_xor_b32 v{vXR+2}, 64, v{vXR}
v_xor_b32 v{vXR+3}, 96, v{vXR}
v_add_u32 v{vXR+4}, 0x10000, v{vXR}
v_add_u32 v{vXR+5}, 0x10000, v{vXR+1}
v_add_u32 v{vXR+6}, 0x10000, v{vXR+2}
v_add_u32 v{vXR+7}, 0x10000, v{vXR+3}
v_lshlrev_b32 v13, 3, v{fC}
v_lshl_add_u32 v13, v{fR}, 6, v13
v_mul_u32_u24 v7, {8192+32}, v{fG}
v_lshl_add_u32 v7, v{fKG}, 11, v7
v_add_u32 v{vWF}, v7, v13
v_xor_b32 v{vWF+1}, 32, v{vWF}
v_lshl_add_u32 v7, v{fG}, 5, v13
v_lshl_add_u32 v7, v{fKG}, 9, v7
s_lshl_b32 s74, s85, 8
s_add_u32 s74, s74, {sw4k}
s_add_u32 s74, s74, 65536
v_add_u32 v{vDF}, s74, v7
v_xor_b32 v{vDF+1}, 256, v{vDF}
v_add_u32 v{vDF+2}, 0x10000, v{vDF}
v_add_u32 v{vDF+3}, 0x10000, v{vDF+1}
s_mul_i32 s74, {sw}, 448
v_lshl_add_u32 v7, v{fKG}, 2, v{fR}
v_add_u32 v7, s74, v7
v_mul_u32_u24 v7, 896, v7
v_lshl_add_u32 v7, v{fG}, 6, v7
v_lshl_add_u32 v{vDD}, v{fC}, 4, v7
v_add_u32 v{vDD+1}, {8*896-1024}, v{vDD}
v_add_u32 v{vDD+2}, {2*(8*896-1024)}, v{vDD}
v_add_u32 v{vDD+3}, {3*(8*896-1024)}, v{vDD}
v_lshlrev_b32 v{vN4}, 2, v11
v_lshlrev_b32 v{vN8}, 3, v11
""")
setup2 = lines(f"""s_mul_i32 {sKC}, s84, {KC_CH}
s_add_u32 {sKC}, {sKC}, {KC0}
s_lshl_b32 s74, s85, 10
s_sub_u32 s74, {sKC}, s74
s_add_u32 s74, s74, {16*255-12}
v_sub_u32 v{vKC}, s74, v{vL16}
v_add_u32 v{vKC+1}, {KC_CP+4}, v{vKC}
v_add_u32 v{vKC+2}, {2*(KC_CP+4)}, v{vKC}
v_add_u32 v{vKC+3}, {3*(KC_CP+4)}, v{vKC}
v_lshlrev_b32 v7, 9, v{fKG}
v_sub_u32 v7, v{vKC}, v7
v_subrev_u32 v{vKC+4}, {16*96}, v7
v_add_u32 v{vKC+5}, {KC_CP+4}, v{vKC+4}
v_add_u32 v{vKC+6}, {2*(KC_CP+4)}, v{vKC+4}
v_add_u32 v{vKC+7}, {3*(KC_CP+4)}, v{vKC+4}
v_and_b32 v11, 15, v255
v_mul_u32_u24 v7, {KC_CP+4}, v{fQ}
v_lshl_add_u32 v7, v11, 2, v7
v_add_u32 v{vKZ}, {sKC}, v7
v_lshlrev_b32 v7, 2, v11
v_lshl_add_u32 v{vCS}, v{fG}, 9, v7
v_min_u32 v7, 52, v7
v_mul_u32_u24 v8, {FSP}, v{fG}
v_add_u32 v{vFH}, v7, v8
s_mul_i32 s75, s84, {U_CH}
s_add_u32 s75, s75, {UB}
s_mul_i32 s74, s85, {U1_OFF}
s_add_u32 s74, s74, s75
v_min_u32 v7, 55, v255
v_lshl_add_u32 v{vUZ}, v7, 3, s74
s_lshl_b32 s74, s85, 11
s_add_u32 {sUl}, s75, s74
s_mul_i32 {sUg}, s79, {XTS}
s_add_u32 {sUg}, {sUg}, s74
s_add_u32 {sUg}, {sUg}, {WS_XT}
v_mul_u32_u24 v7, {U1_OFF}, v10
v_lshl_add_u32 v7, v12, 6, v7
v_lshl_add_u32 v7, v{fQ}, 4, v7
s_lshl_b32 s74, s85, 6
s_sub_u32 s75, s75, s74
s_add_u32 s75, s75, {448-384}
v_add_u32 v{vCU}, s75, v7
v_mul_u32_u24 v7, {KC_CP}, v{fC}
v_sub_u32 v8, v{fQ}, v{fR}
v_lshl_add_u32 v7, v8, 4, v7
s_sub_u32 s74, {sKC}, s74
s_add_u32 s74, s74, {16*255-64*62}
v_add_u32 v{vCK}, s74, v7
s_lshl_b32 s74, {sw}, 10
s_add_u32 s74, s74, {YX}
v_add_u32 v{vYW}, s74, v{vL16}
v_lshlrev_b32 v7, 8, v1
v_lshl_add_u32 v7, v6, 5, v7
v_lshl_add_u32 v7, v10, 3, v7
s_lshl_b32 s74, {sw}, 13
s_add_u32 s75, s74, {YX+4096}
v_add_u32 v{vYR}, s75, v7
s_add_u32 s74, s74, 8192
s_and_b32 s74, s74, 0x7fff
s_add_u32 s74, s74, {YX}
v_add_u32 v{vYR+1}, s74, v7
s_mul_i32 s74, s84, {112*1024}
v_add_u32 v{vH}, s74, v{vL16}
s_sub_u32 s74, {112*1024}, s74
v_add_u32 v{vH+1}, s74, v{vL16}
v_mov_b32 v{vZ}, 0
s_lshl_b32 s74, {sxcd}, 2
s_add_u32 {sr2}, s74, {sq}
s_lshl_b32 s74, {sr2}, 1
s_add_u32 s74, s74, s84
s_lshl_b32 s97, s74, 5
s_lshl_b32 s74, {sc2}, 1
s_add_u32 s74, s74, s85
s_lshl_b32 s17, s74, 6
s_mul_i32 s74, s97, 896
s_add_u32 s16, s74, s17
v_lshrrev_b32 v7, 2, v255
v_mul_u32_u24 v7, 896, v7
v_xor_b32 v8, v{fC}, v{fQ}
v_lshl_add_u32 v227, v8, 4, v7""")
put(setup2[:opt('s2', len(setup2))])
setup2 = setup2[opt('s2', len(setup2)):]
a(f"""
v_lshlrev_b32 v134, 16, v134
v_mul_f32 v134, 0x3fb8aa3b, v134
v_exp_f32 v134, v134
v_cvt_pk_bf16_f32 v134, v134, v134
v_lshlrev_b32 v134, 16, v134
""")
stamp()

PA = [64, 96]
PB = 8
KF = [(160, 176, 192, 208), (224, 240, 80, 96)]
R1, R8, E, T = 146, [148, 150], 0, 2
l1s = [0, 1, 2, 3, 4, 5, 6, 7, 8, 256, 258, 260, 262, 264, 512, 516, 520, 768, 772, 776,
       1024, 1032, 1280, 1288, 1536, 1544, 1792, 1800]
ra = {l: 8 + 2 * i for i, l in enumerate(l1s)}
cols = [0, 1, 2, 3, 256, 256, 258, 260, 4, 5, 6, 7, 260, 260, 262, 264,
        512, 516, 520, 1024, 768, 772, 776, 1536, 1032, 1280, 1288, 1288, 1544, 1792, 1800, 1800]


def cmul(d, x, r, t):
    return [f"v_pk_mul_f32 v[{t}:{t+1}], v[{x}:{x+1}], v[{r}:{r+1}] op_sel_hi:[1,0]",
            f"v_pk_fma_f32 v[{d}:{d+1}], v[{x}:{x+1}], v[{r}:{r+1}], v[{t}:{t+1}] op_sel:[1,1,0] op_sel_hi:[0,1,1] neg_lo:[1,0,0]"]


def k_write(ck, i, cq):
    P = (PA[ck] + 16 * i) if i < 2 else (PB + 16 * (i - 2))
    return f"ds_write_b128 v{vKL+cq}, v[{P+4*cq}:{P+4*cq+3}]"


def k_reads(ck, i):
    fr = KF[ck][i]
    base = vKL + 6 if i < 2 else vKL + 4
    return "\n".join(f"ds_read_b64_tr_b16 a[{fr+4*s+2*rd}:{fr+4*s+2*rd+1}], v{base+rd} offset:{1024*s}"
                     for s in range(4) for rd in range(2))


def kgen_head(ck):
    L = []
    un = (lambda d, s: f"v_lshlrev_b32 v{d}, 16, v{s}") if ck == 0 else (lambda d, s: f"v_and_b32 v{d}, {sMask}, v{s}")
    L += [un(136 + i, 128 + i) for i in range(6)]
    L += ["v_mul_f32 v142, v134, v136", "v_mul_f32 v143, v134, v137",
          "v_mul_f32 v142, 0x3fb8aa3b, v142", "v_mul_f32 v143, 0.15915494, v143"]

    def ev(d, l):
        s = []
        if l == 1:
            s += ["v_exp_f32 v144, v142", "v_fract_f32 v145, v143"]
        else:
            f = {8: "0x41000000", 256: "0x43800000"}[l]
            s += [f"v_mul_f32 v144, {f}, v142", f"v_mul_f32 v145, {f}, v143", "v_exp_f32 v144, v144", "v_fract_f32 v145, v145"]
        s += [f"v_cos_f32 v{d}, v145", f"v_sin_f32 v{d+1}, v145"]
        return s, f"v_pk_mul_f32 v[{d}:{d+1}], v[{d}:{d+1}], v[144:145] op_sel_hi:[1,0]"
    wm = cmul(ra[0], 140, 138, T) + [f"v_pk_mul_f32 v[{ra[0]}:{ra[0]+1}], v[{ra[0]}:{ra[0]+1}], v[134:135] op_sel_hi:[1,0]"]
    for (d, l), fill in zip(((R1, 1), (R8[ck], 8), (E, 256)), wm):
        s, last = ev(d, l)
        L += s + [fill, last]
    for l in range(1, 9):
        L += cmul(ra[l], ra[l - 1], R1, T)
    for l in l1s[9:]:
        L += cmul(ra[l], ra[l - 256], E, T)
    for k in range(16):
        c0, c1 = ra[cols[2 * k]], ra[cols[2 * k + 1]]
        L += [f"v_cvt_pk_bf16_f32 v{PA[ck]+k}, v{c0}, v{c1}", f"v_cvt_pk_bf16_f32 v{PA[ck]+16+k}, -v{c0+1}, -v{c1+1}"]
    return L


def kgen_chain(ck):
    r8 = R8[ck]
    rb = lambda j: r8 if j == 1 else 4 + 2 * (j % 2)
    B = [f"v_cvt_pk_bf16_f32 v{PB}, 1.0, v{r8}", f"v_cvt_pk_bf16_f32 v{PB+16}, 0, v{r8+1}"]
    for j in range(2, 32):
        B += cmul(rb(j), rb(j - 1), r8, T)
        if j % 2:
            B += [f"v_cvt_pk_bf16_f32 v{PB+j//2}, v{rb(j-1)}, v{rb(j)}",
                  f"v_cvt_pk_bf16_f32 v{PB+16+j//2}, v{rb(j-1)+1}, v{rb(j)+1}"]
    return B


def k_pass(ck, i):
    return [k_write(ck, i, cq) for cq in range(4)] + [k_reads(ck, i)]


def at(stream, items):
    out = []
    for i, x in enumerate(stream):
        out += [y for p, y in items if p == i]
        out.append(x)
    return out + [y for p, y in items if p >= len(stream)]


def kgen_mfma(ck):
    f = KF[ck]
    return [f"v_mfma_f32_32x32x16_bf16 a[144:159], a[{f[s>>2]+4*(s&3)}:{f[s>>2]+4*(s&3)+3}], "
            f"a[{f[2+(s>>2)]+4*(s&3)}:{f[2+(s>>2)]+4*(s&3)+3}], "
            + ("0" if (ck == 0 and s == 0) else "a[144:159]") for s in range(8)]


def x_read(s):
    cb = s >> 2
    return f"ds_read_b128 a[{4*s}:{4*s+3}], v{vXR + (0 if cb < 4 else 4) + (s & 3)} offset:{(cb % 4)*16384}"


WM = opt('wm', 0)
if WM == 0:
    warm = [f"""s_cmp_eq_u32 {sw}, 0
s_cselect_b32 s12, s{sWg}, s{sWu}
s_cselect_b32 s13, s{sWg+1}, s{sWu+1}
s_cmp_lt_u32 {sw}, 2
s_cselect_b32 s12, s12, s{sWd}
s_cselect_b32 s13, s13, s{sWd+1}
s_mul_i32 s74, {sjc}, {56*128}
v_min_u32 v251, 55, v255
v_lshl_add_u32 v251, v251, 7, s74
global_load_dword v252, v251, s[12:13]"""]
else:
    warm = [f"""s_lshl_b32 s74, {sjc}, 1
s_add_u32 s74, s74, s84
s_mul_i32 s74, s74, 3584
v_min_u32 v251, 27, v255
v_lshlrev_b32 v251, 7, v251
s_mov_b64 exec, 0xfffffff
buffer_load_dword v252, v251, {rW}, s74 offen
s_mov_b64 exec, -1"""]
for _ in range(opt('dmain', 0)):
    a("s_sleep 16")
stamp("k")
early = x_block(1) + [("vt", "x1")] + w_unit(1) + [("vt", "u1")]
if LATE == 1:
    put(weave(kgen_head(0), first_dma + early))
elif LATE == 2:
    put(weave(kgen_head(0), first_dma))
    warm = early + warm
elif LATE == 3:
    put(weave(kgen_head(0), first_dma + warm))
    warm = early
else:
    put(weave(kgen_head(0), early))
stamp("k")
XRES = [f"buffer_load_dwordx4 v[242:245], v227, {rX}, s16 offen",
        f"s_add_u32 s74, s16, {16*896}\nbuffer_load_dwordx4 v[246:249], v227, {rX}, s74 offen"]
XRAT = opt('xrat', 0)
if XRAT == 0:
    warm += XRES
put(weave(kgen_head(1), warm))
stamp("ak"[SEL == "k"])
RD = opt('rd', 3)
p0, p1, p2 = k_pass(0, 0), k_pass(0, 1), k_pass(0, 2)
put(at(kgen_chain(0), list(zip((0, 7, 14, 21, 21 + RD), p0)) + list(zip((30, 37, 44, 51, 51 + RD), p1))
       + list(zip((62, 70, 80, 92), p2))))
stamp("k")
p3, q0, q1, q2 = k_pass(0, 3), k_pass(1, 0), k_pass(1, 1), k_pass(1, 2)
ch = kgen_chain(1)
put([p2[4], p3[0], p3[1]] + at(ch[2:], [(0, p3[2]), (4, p3[3]), (4, ch[0]), (4, ch[1]), (4 + RD, p3[4])]
                                + list(zip((14, 20, 26, 32, 32 + RD), q0)) + list(zip((42, 48, 54, 60, 60 + RD), q1))
                                + list(zip((70, 76, 82, 90), q2))))
stamp("ak"[SEL == "k"])
sc = lines(f"""s_lshl_b32 {sWdoff}, {sc2}, 7
s_mov_b32 s44, s{sWd}
s_mov_b32 s45, s{sWd+1}
s_mov_b32 s46, {1792*896}
s_mov_b32 s47, 0x20000
s_mov_b32 s48, s{sWs}
s_mov_b32 s49, s{sWs+1}
s_mov_b32 s52, s{sOut}
s_mov_b32 s53, s{sOut+1}
s_mov_b32 s54, {2048*896}
s_mov_b32 s55, 0x20000
s_mul_i32 {sFL}, {sxcd}, {FSP}
s_add_u32 {sFL}, {sFL}, {WS_FL}
s_lshl_b32 {sST}, {stg}, 8
s_add_u32 {sST}, {sST}, {WS_ST}
s_lshl_b32 {sCS}, {sc1_}, 10
s_add_u32 {sCS}, {sCS}, {WS_CS}
v_lshlrev_b32 v135, 16, v135""")
lp = k_pass(1, 3)
put(weave(kgen_mfma(0), [q2[4], lp[0]] + sc[:6] + [lp[1]] + sc[6:12] + [lp[2]] + sc[12:]
          + [lp[3], ("wv", "u0")] + [x_read(s) for s in range(4)] + [lp[4]]))
stamp("k")
a("s_waitcnt lgkmcnt(0)")
stamp("k")
a("s_barrier")
stamp("ak"[SEL == "k"])

fillg = {s: [] for s in range(28)}
fillg[2] += lines(f"""v_readfirstlane_b32 {sDs}, v135
s_mul_i32 {sH0}, {stg}, {112*1024}
s_lshl_b32 s74, {sc1_}, 13
s_add_u32 {sH0}, {sH0}, s74
s_add_u32 {sH1}, {sH0}, 4096
s_mul_i32 s74, {stg}, {FSP}
s_lshl_b32 s75, {sc1_}, 2
s_add_u32 s74, s74, s75
s_add_u32 {sFHw}, s74, {WS_FH}""")
fillg[3] += [f"v_accvgpr_read_b32 v{128+r}, a{144+r}" for r in range(8)]
fillg[2] += []
fillg[4] += [f"ds_read_b128 v[136:139], v{vKX+1}", f"ds_read_b128 v[140:143], v{vKX+1} offset:1024", ("lt", "kr")]
fillg[5] += lines(f"""s_mul_i32 {sFHr}, {sr2}, {2*FSP}
s_add_u32 {sFHr}, {sFHr}, {WS_FH}
s_mul_i32 {sHoff}, {sr2}, {2*112*1024}
s_mul_i32 s74, {sw}, {28*1024}
s_add_u32 s10, {sHoff}, s74""")
fillg[6] += [f"s_lshl_b32 s3, {sq}, 1\ns_add_u32 s3, s3, {sc2}" if ROT == 1 else f"s_mov_b32 s3, {sc2 if ROT else 0}",
             "s_sub_u32 s74, s3, 7\ns_cselect_b32 s3, s3, s74",
             f"s_mov_b32 s8, {sWdoff}\ns_add_u32 s9, s8, {448*896}",
             f"s_mul_i32 s74, s3, {64*896}\ns_add_u32 {sWdoff}, {sWdoff}, s74",
             "s_add_u32 s74, s3, 4\ns_sub_u32 s75, s74, 7\ns_cselect_b32 s74, s74, s75",
             f"s_lshl_b32 s74, s74, 12\ns_add_u32 {sHoff}, s10, s74", f"s_add_u32 s11, s10, {28*1024}"]
fillg[7] += [f"v_add_f32 v{128+r}, v{128+r}, v{136+r}" for r in range(8)]
fillg[9] += lines(f"""v_cmp_eq_u32 vcc, 0, v255
v_mov_b32 v140, {sDs}
s_mov_b32 s74, 0xaaaaaaaa
s_mov_b32 s75, 0xaaaaaaaa
v_cndmask_b32 v140, 0, v140, vcc
v_add_f32 v140, v128, v140
v_cndmask_b32 v141, v131, v132, s[74:75]
v_cndmask_b32 v142, v133, v134, s[74:75]""")
fillg[11] += lines(f"""v_cvt_pk_bf16_f32 v144, v132, v132
v_cvt_pk_bf16_f32 v145, v132, v141
v_cvt_pk_bf16_f32 v146, v131, v131
v_cvt_pk_bf16_f32 v147, v131, v131
v_cvt_pk_bf16_f32 v148, v134, v134
v_cvt_pk_bf16_f32 v149, v134, v142
v_cvt_pk_bf16_f32 v150, v133, v133
v_cvt_pk_bf16_f32 v151, v133, v133""")
fillg[13] += lines(f"""v_cvt_pk_bf16_f32 v136, v135, v134
v_cvt_pk_bf16_f32 v137, v133, v132
v_cvt_pk_bf16_f32 v138, v131, v130
v_cvt_pk_bf16_f32 v139, v129, v140
v_cvt_pk_bf16_f32 v140, v130, v130
v_cvt_pk_bf16_f32 v141, v129, v129
v_cvt_pk_bf16_f32 v142, v129, v128
v_cvt_pk_bf16_f32 v143, v128, v128""")
fillg[15] += [f"v_cndmask_b32 v{136+r}, v{136+r}, v{140+r}, {sOdd}" for r in range(4)]
fillg[17] += lines(f"""s_mul_i32 {sY}, {sjc}, {YS}
s_lshl_b32 s74, {sw}, 11
s_add_u32 {sY}, {sY}, s74
s_add_u32 {sY}, {sY}, {WS_Y}""")
fillg[19] += [f"v_mov_b32 v{r}, 0" for r in (190, 191, 193, 194)]
fillg[21] += [f"v_mov_b32 v{r}, 0" for r in (195, 196, 198, 199)]


def wd_read(kk, r):
    off = PS[(kk >> 1) % 6] - 65536 + (kk & 1) * 2048
    base = vDF if off < 65536 else vDF + 2
    return [f"ds_read_b64_tr_b16 a[{r+4*da+2*rd}:{r+4*da+2*rd+1}], v{base+da} offset:{off % 65536+rd*1024}"
            for da in range(2) for rd in range(2)]


def wd_move(kk):
    return wd_read(kk, 8 * kk)


def wfrag_read(s, t, r):
    off = SLOT[(s >> 1) % 4] + (s & 1) * 4096 + (t >> 1) * 256
    return [f"ds_read_b64_tr_b16 a[{r+2*rd}:{r+2*rd+1}], v{vWF+(t & 1)} offset:{off+rd*1024}" for rd in range(2)]


put(pack([[m] + wfrag_read(0, t, 112 + 4 * t) for t, m in enumerate(kgen_mfma(1))], w_unit(2) + [("vt", "u2")] + fillg[2], 24))
fillg[2] = []
put(x_block(2) + [("vt", "x2")])
put([f"ds_write_b128 v{vKX}, a[152:155]", f"ds_write_b128 v{vKX}, a[156:159] offset:1024", ("lt", "kx")])
stamp("k")

FL_LOAD = f"buffer_load_dword v{vF}, v{vN4}, {rWs}, {sFL} offen sc1"
F_CMP = f"v_cmp_ne_u32 vcc, {snonce}, v{vF}"
NC_LOAD = f"global_load_dword v{vNo}, v{vZ}, s[{sDbg}:{sDbg+1}] sc1"
NC_CMP = f"v_cmp_eq_u32 vcc, 0, v{vNo}"
WDS = [int(c) for c in opt('wds', '22,23,24').split(',')]
carry, pre = [], []
for s in range(25):
    if s % 2 == 0 and s > 0:
        stamp("g")
    if 1 <= s <= 4:
        stamp("k")
    extra, dma = [], None
    if s % 2 == 1:
        u = (s + 1) // 2
        lt = {1: "x1", 5: "kr"}.get(s)
        a.wait_both(tok[f"u{u}"], ltok[lt] if lt else None)
        a("s_barrier")
        if u + 2 < 14:
            dma = ([], w_unit(u + 2), f"u{u+2}")
    if s == 0:
        extra += [("wv", "x1")] + [x_read(k) for k in range(4, 8)] + [("lt", "x1")]
    if s % 2 == 0 and 2 <= s <= 8:
        dma = ([], x_block(2 + s // 2), f"x{2+s//2}")
    if s % 2 == 0 and 4 <= s <= 12:
        cb = s // 2
        extra += [("wv", f"x{cb}")] + [x_read(k) for k in range(4 * cb, 4 * cb + 4)] + [("lt", f"x{cb}")]
    if s % 2 == 0 and 10 <= s <= 20:
        p = (s - 10) // 2
        dma = ([("wl", f"x{p+1}")] if p else [], wd_pair(2 * p), f"wd{2*p}")
    if 14 <= s <= 21:
        kk = s - 14
        if kk % 2 == 0:
            extra += [("wv", f"wd{kk}")]
        extra += wd_move(kk) + [("lt", f"mv{kk}")]
    if s in WDS:
        kk = 12 + 2 * WDS.index(s)
        dma = ([("wl", f"mv{kk-11}")], wd_pair(kk), f"wd{kk}")
    if s == 12:
        extra += [NC_LOAD]
    if s == 16:
        poll("nc", NC_LOAD, NC_CMP)
        a(f"v_readfirstlane_b32 {snonce}, v{vNo}")
    if s == FL_AT:
        extra += [FL_LOAD]
    if s == FL_POLL:
        poll("fl", FL_LOAD, F_CMP)
        extra += [f"buffer_load_dword v{vF}, v{vN8}, {rWs}, {sST} offen sc1",
                  f"s_lshl_b32 s74, s97, 3\ns_add_u32 s74, s74, {WS_ST+4}\nbuffer_load_dword v228, v{vN8}, {rWs}, s74 offen sc1"]
    if FL_POLL <= s < FL_POLL + 2:
        extra += [f"buffer_load_dword a{160+t}, v{vCS}, {rWs}, {sCS} offen offset:{64*t} sc1"
                  for t in range(4 * (s - FL_POLL), 4 * (s - FL_POLL) + 4)]
    extra += fillg[s]
    AB = opt('ab', '')
    if dma and (('x' in AB and dma[2][0] == 'x') or ('w' in AB and dma[2][0] == 'w') or ('u' in AB and dma[2][0] == 'u')):
        dma = (dma[0], ["s_nop 0"] * 6, dma[2])
    main = []
    for t in range(8):
        if t % WG == 0 and s > 0:
            (main[-1] if main else pre).append(("wl", f"f{t+WG-1}" if not (PAT and t + WG - 1 == 7) else "f6"))
        c = "0" if s == 0 else f"v[{16*t}:{16*t+15}]"
        m = [f"v_mfma_f32_32x32x16_bf16 v[{16*t}:{16*t+15}], a[{112+4*t}:{115+4*t}], a[{4*s}:{4*s+3}], {c}"]
        rd = wfrag_read(s + 1, t, 112 + 4 * t) + [("lt", f"f{t}")]
        if dma and t == 0:
            m += dma[0] + [dma[1][0]]
        if PAT and t % 2 == 1 and not (s == 24 and t == 7):
            carry = rd
        else:
            m += carry + rd
            carry = []
        if dma and t % 2 == 1:
            m.append(dma[1][1 + t // 2])
            if t == 7:
                m += [("vt", dma[2]), dma[1][5]]
        main.append(m)
    put(pre + pack(main, extra, 24))
    pre = []
stamp("g")
a.wait_vm(tok["u13"])
a("s_barrier")
put(wfrag_read(26, 0, 168) + wfrag_read(27, 0, 172))
first = [f"v_cmp_gt_u32 vcc, 32, v255", "v_mov_b32 v152, 0", "v_mov_b32 v153, 0",
         f"s_add_u32 m0, {sUl}, {U1_OFF+448}", f"buffer_load_dwordx4 v{vL16}, {rWs}, {sUg} offen sc1 lds",
         f"buffer_load_dwordx4 v{vL16}, {rWs}, {sUg} offen offset:1024 sc1 lds",
         f"v_cndmask_b32 v192, 0, v{vF}, vcc\nv_cndmask_b32 v197, 0, v{vF}, vcc"]
second = [f"s_sub_u32 {sUg}, {sUg}, 2\ns_add_u32 m0, {sUl}, 448", f"buffer_load_dwordx4 v{vL16}, {rWs}, {sUg} offen sc1 lds",
          f"buffer_load_dwordx4 v{vL16}, {rWs}, {sUg} offen offset:1024 sc1 lds", ("vt", "u")]
main, epi = [], []
for t in range(8):
    r = 168 + 8 * (t % 2)
    cb = (192, 196, 190, 194)[t & 3]
    ops = [(f"a[{112+4*t}:{115+4*t}]", "a[100:103]"), (f"a[{r}:{r+3}]", "a[104:107]"), (f"a[{r+4}:{r+7}]", "a[108:111]"),
           (f"a[{160+(t & 4)}:{163+(t & 4)}]", f"v[{cb}:{cb+3}]")]
    for k, (A, B) in enumerate(ops):
        m = [f"v_mfma_f32_32x32x16_bf16 v[{16*t}:{16*t+15}], {A}, {B}, v[{16*t}:{16*t+15}]"]
        if t < 7 and k in (0, 1):
            m += wfrag_read(26 + k, t + 1, 168 + 8 * ((t + 1) % 2) + 4 * k)
        main.append(m)
    b = 16 * t
    L = [f"v_max_f32 v{b+r}, 0, v{b+r}" for r in range(8)]
    if t < 6:
        L += [f"v_mul_f32 v{b+r}, v{b+r}, v{b+8+r}" for r in range(8)]
    else:
        L += [f"v_pk_mul_f32 v[{b+r}:{b+r+1}], v[{b+r}:{b+r+1}], v[{b+8+r}:{b+9+r}]" for r in range(0, 8, 2)]
    L += [f"v_cvt_pk_bf16_f32 v{b+8+r}, v{b+2*r}, v{b+2*r+1}" for r in range(4)]
    L += [f"buffer_store_dwordx4 v[{b+8}:{b+11}], v{vL16}, {rWs}, {(sH0, sH1)[t >> 2]} offen offset:{1024*(t & 3)} sc1"]
    epi.append(L)
stamp("t")
put(pack(main[:3], first, 24) + pack(main[3:6], second, 24))
for t in range(6):
    stamp("t")
    put(pack(main[4 * t + 6:4 * t + 10], epi[t], 24))
stamp("t")
put(pack(main[30:], epi[6][:8], 24))
rest = epi[6][8:] + epi[7]
stamp()
stamp("t")
a("s_barrier")
stamp("t")


def octet_writes(d, ar, off):
    return [f"ds_write_b128 v{ar+3}, v[{d}:{d+3}] offset:{off}",
            f"ds_write2_b64 v{ar+1}, v[{d}:{d+1}], v[{d+2}:{d+3}] offset0:{off//8} offset1:{off//8+1}"] + \
           [f"ds_write2_b32 v{ar+c}, v{d+k}, v{d+k+1} offset0:{off//4+k} offset1:{off//4+k+1}" for c in (0, 2) for k in (0, 2)]


put(weave(rest, octet_writes(136, vKC, 0) + [f"ds_write_b32 v{vKZ}, v152 offset:{4096-12}", f"ds_write_b64 v{vUZ}, v[152:153]"]))
tok["h"] = a.vm_tok()
stamp("t")
a(f"s_mov_b64 exec, {sOdd}")
put(octet_writes(144, vKC + 4, 512) + octet_writes(148, vKC + 4, 0))
a("s_mov_b64 exec, -1")
stamp("t")
a(f"s_andn2_b64 exec, 1, {sOdd}")
a.wait_vm(tok["u"])
a(f"""ds_write_b16 v{vUZ}, v152 offset:448
s_mov_b64 exec, -1
s_waitcnt lgkmcnt(0)""")
stamp("t")
a("s_barrier")
stamp()
stamp("t")


def a_read(n):
    return f"ds_read_b128 a[{128+4*(n % 4)}:{131+4*(n % 4)}], v{vCK} offset:{64*(62-2*n)}"


def u_read(be, i):
    return f"ds_read_b128 v[{16*be+4*i}:{16*be+4*i+3}], v{vCU} offset:{512*be-128*i+384}"


NH = opt('nh', 8)
ORD = list(range(16, 28)) + list(range(16))


def h_load(i):
    g = []
    for ta in range(2):
        r = 96 + 8 * (i % NH) + 4 * ta
        g.append(f"buffer_load_dwordx4 v[{r}:{r+3}], v{vH+ta}, {rWs}, {sHoff} offen offset:{1024*(i % 4)} {HFL}")
    if i % 4 == 3:
        if ROT:
            g[-1] += "\n" + wrap(sHoff, 4096, "s11", "s10")
        else:
            g[-1] += f"\ns_add_u32 {sHoff}, {sHoff}, 4096" if i != 11 else f"\ns_sub_u32 {sHoff}, {sHoff}, {24*1024}"
    return g


put([a_read(0)] + [u_read(be, 0) for be in range(8)] + [a_read(1), a_read(2)])
FH_LOAD = f"buffer_load_dword v{vF}, v{vFH}, {rWs}, {sFHr} offen sc1"
fill = {n: [] for n in range(32)}
for i in range(1, 4):
    fill[i - 1] += [u_read(be, i) for be in range(8)]
fill[2] += [("lt", "ub")]
if XRAT:
    fill[3] += XRES
fill[FHW_AT] += [("wv", "h"), f"s_mov_b64 exec, 1\nbuffer_store_dword v{vNo}, v{vZ}, {rWs}, {sFHw} offen sc1\ns_mov_b64 exec, -1"]
for k, kk in enumerate(range(12 + 2 * len(WDS), 20, 2)):
    fill[opt('w18', 1) + k] = wd_pair(kk) + [("vt", f"wd{kk}")] + fill[opt('w18', 1) + k]
for kk in range(8, 16):
    n = 3 + (kk - 8)
    if kk % 2 == 0:
        fill[n] += [("wv", f"wd{kk}")]
    fill[n] += wd_move(kk) + [("lt", f"mv{kk}")]
    if kk % 2 == 1:
        fill[n + 2] += [("wl", f"mv{kk}")] + wd_pair(kk + 11) + [("vt", f"wd{kk+11}")]
YB = opt('yb', 15)
fill[FH_AT] += [FH_LOAD]
for j in range(7):
    fill[(YB + 1, YB + 2, YB + 3, max(17, YB + 4), 21, 25, 29)[j]] += [f"ds_write_b128 v{vYW}, a[{224+4*j}:{227+4*j}] offset:{4096*((j+1) % 8)}"]
hl = [(i, g) for i in range(28) for g in h_load(i)]
for n in range(FH_POLL, 32):
    if hl[0][0] < NH:
        fill[n] += [hl.pop(0)[1]]
for P in range(8):
    for i in range(4):
        n = 4 * P + i
        if n % 4 == 0 or n in (2, 6, 10):
            stamp("c")
        if n == YB:
            a.wait_lg(ltok["ub"])
            a("s_barrier")
        if n == FH_POLL:
            poll("fh", FH_LOAD, F_CMP)
        main = []
        for be in range(8 - P):
            j = P + be
            c = "0" if n == 0 else f"a[{224+4*j}:{227+4*j}]"
            main.append(f"v_mfma_f32_16x16x32_bf16 a[{224+4*j}:{227+4*j}], a[{128+4*(n % 4)}:{131+4*(n % 4)}], v[{16*be+4*i}:{16*be+4*i+3}], {c}")
        put(pack([[m] for m in main], ([a_read(n + 3)] if n + 3 < 32 else []) + fill[n], 8))
stamp()
stamp("f")
put([("wv", "wd16")] + wd_read(16, 128))
a(f"ds_write_b128 v{vYW}, a[252:255]")
ltok["y7"] = a.lg_tok()
stamp()
stamp("f")

XS = lambda g, e: (80 if g < 4 else 0) + 4 * g + 2 * e
FY_LOAD = f"buffer_load_dword v{vF}, v{vN4}, {rWs}, s80 offen sc1"
fill = {k: [] for k in range(28)}
fill[0] += [("wl", "y7"), "s_barrier"]
for jj in range(2):
    r = 64 + 16 * jj
    fill[0] += [f"ds_read_b64 v[{r+4*src+2*ph}:{r+4*src+2*ph+1}], v{vYR+jj} offset:{1024*src+16*ph}"
                for src in range(4) for ph in range(2)]
    fill[1 + jj] += [f"v_add_f32 v{r+k}, v{r+k}, v{r+k+4}" for k in (0, 1, 2, 3, 8, 9, 10, 11)]
    fill[1 + jj] += [f"v_cvt_pk_bf16_f32 v{r+4+k}, v{r+o}, v{r+8+o}" for k, o in enumerate((0, 2, 1, 3))] + \
        [f"buffer_store_dwordx4 v[{r+4}:{r+7}], v{vL16}, {rWs}, {sY} offen offset:{1024*jj} sc1", ("vt", "y")]
fill[4] += lines(f"""s_lshr_b32 s74, {sjc}, 5
s_lshl_b32 s74, s74, 2
s_add_u32 s74, s74, {sw}
s_mul_i32 s74, s74, {FSP}
s_and_b32 s75, {sjc}, 31
s_lshl_b32 s75, s75, 2
s_add_u32 s74, s74, s75
s_add_u32 s95, s74, {WS_FY}""", 2)
fill[FYW_AT] += [("wv", "y"), f"s_mov_b64 exec, 1\nbuffer_store_dword v{vNo}, v{vZ}, {rWs}, s95 offen sc1\ns_mov_b64 exec, -1"]
fill[5] += lines(f"""s_lshl_b32 s80, {sc2}, 2
s_lshr_b32 s74, {sr2}, 3
s_add_u32 s80, s80, s74
s_mul_i32 s80, s80, {FSP}
s_add_u32 s80, s80, {WS_FY}
s_lshl_b32 s13, {sw}, 11
v_add_u32 v230, s13, v{vL16}""", 2)
fill[9] += [f"ds_write_b128 v230, v[242:245] offset:{XR}"] + lines(f"""v_mul_u32_u24 v234, 224, v{vN4}
v_lshl_add_u32 v234, v{fKG}, 4, v234""")
fill[10] += [f"ds_write_b128 v230, v[246:249] offset:{XR+1024}"] + lines(f"""v_lshlrev_b32 v231, 4, v{fR}
v_lshl_add_u32 v231, v{vN4}, 4, v231
v_lshl_add_u32 v231, v{fKG}, 3, v231""")
fill[12] += lines(f"""v_add_u32 v236, s13, v231
v_xor_b32 v237, 16, v236
v_xor_b32 v238, 32, v236
v_xor_b32 v239, 48, v236
v_mul_u32_u24 v235, {2*YS}, v{fKG}
v_add_u32 v235, v235, v{vN4}""") + [f"ds_read_b64 v[{64+2*g}:{65+2*g}], v{236+g} offset:{XR}" for g in range(4)] + [("lt", "xr")]
fill[13] += lines(f"""s_mul_i32 s74, s17, {YS//4}
s_lshl_b32 s75, s97, 2
s_add_u32 s74, s74, s75
s_add_u32 s96, s74, {WS_Y}
s_mul_i32 s74, {sw}, {3*4096}
s_add_u32 s74, s74, {RX}
v_add_u32 v240, s74, v{vL16}""", 2)
for k in range(1, 4):
    fill[13 + k] += [f"s_xor_b32 s74, {sw}, {k}\ns_mul_i32 s74, s74, {3*4096}",
                     f"s_add_u32 s74, s74, {RX+(k-1)*4096}\nv_add_u32 v{240+k}, s74, v{vL16}"]
fill[FY_AT] += [FY_LOAD]
for g in range(4):
    for e in range(2):
        fill[17 + g] += [f"v_lshlrev_b32 v{XS(g, e)}, 16, v{64+2*g+e}", f"v_and_b32 v{XS(g, e)+1}, {sMask}, v{64+2*g+e}"]
fill[22] += [("wl", "xr"), "s_barrier"]
for g in range(4):
    for e in range(2):
        fill[min(27, FY_POLL + g // 2)] += [f"buffer_load_dword v{72+2*g+e}, v235, {rWs}, s96 offen sc1\ns_add_u32 s96, s96, {YS if e == 0 else 3*YS}"]
DEF = opt('def', NH)
late = []
HL0 = opt('hl0', 1)
for i in range(28):
    kk = ORD[i]
    if i % 2 == 0 and i > 0:
        stamp("h")
    if i < 14:
        stamp("j")
    extra = []
    if i + 1 < 12:
        if (kk + 1) % 2 == 0:
            extra += [("wv", f"wd{kk+1}")]
        extra += wd_read(kk + 1, 128 + 8 * ((kk + 1) % 2))
    if i == FY_POLL:
        poll("fy", FY_LOAD, F_CMP)
    main = []
    for ta in range(2):
        for da in range(2):
            acc = 16 * (da + 2 * ta)
            c = "0" if i == 0 else f"v[{acc}:{acc+15}]"
            fa = (8 * kk if kk < 16 else 128 + 8 * (kk % 2)) + 4 * da
            fb = 96 + 8 * (i % NH) + 4 * ta
            m = [f"v_mfma_f32_32x32x16_bf16 v[{acc}:{acc+15}], a[{fa}:{fa+3}], v[{fb}:{fb+3}], {c}"]
            if acc == 0 and i >= 28 - DEF:
                late.append(m)
                continue
            if hl and i >= HL0 and (da, ta) != (0, 0) and (hl[0][0] < i + NH or (hl[0][0] == i + NH and da == 1 and len(hl) % 2 == ta % 2)):
                m.append(hl.pop(0)[1])
            main.append(m)
    AB = opt('ab', '')
    fl_ = fill[i]
    if 'X' in AB:
        fl_ = [e for e in fl_ if isinstance(e, tuple) or not (" lds" in e or "v80," in e)]
    if 'Y' in AB and i == FYW_AT:
        fl_ = [e for e in fl_ if e != ("wv", "y")]
    if 'D' in AB:
        extra = [e for e in extra if not isinstance(e, tuple)]
    put(pack(main, extra + fl_, 24))
assert not hl
stamp()
stamp("f")
wr = [f"ds_write_b128 v240, v[{16*k+4*g}:{16*k+4*g+3}] offset:{(k-1)*4096+1024*g}" for k in range(1, 4) for g in range(4)]
put(weave(late, wr) if late else wr)
stamp("f")
a("s_waitcnt lgkmcnt(0)")
stamp("f")
a("s_barrier")
stamp("f")
for g in range(4):
    for k in range(1, 4):
        a(f"ds_read_b128 v[{16*k+4*g}:{16*k+4*g+3}], v{240+k} offset:{1024*g}")
stamp("f")
for g in range(4):
    for e in range(2):
        yr, d = 72 + 2 * g + e, XS(g, e)
        a(f"""
v_lshlrev_b32 v112, 16, v{yr}
v_and_b32 v113, {sMask}, v{yr}
v_pk_add_f32 v[{d}:{d+1}], v[{d}:{d+1}], v[112:113]
""")
stamp("f")
for g in range(4):
    for e in range(2):
        r = 4 * g + 2 * e
        for k in range(1, 4):
            a(f"v_pk_add_f32 v[{r}:{r+1}], v[{r}:{r+1}], v[{16*k+r}:{16*k+r+1}]")
        a(f"v_pk_fma_f32 v[{r}:{r+1}], v[{r}:{r+1}], v[228:229], v[{XS(g, e)}:{XS(g, e)+1}] op_sel_hi:[1,0,1]")
    a(f"v_cvt_pk_bf16_f32 v{116+2*g}, v{4*g}, v{4*g+1}\nv_cvt_pk_bf16_f32 v{117+2*g}, v{4*g+2}, v{4*g+3}")
    if g % 2 == 1:
        b = 116 + 2 * (g - 1)
        a(f"v_permlane32_swap_b32 v{b}, v{b+2}\nv_permlane32_swap_b32 v{b+1}, v{b+3}")
        a(f"buffer_store_dwordx4 v[{b}:{b+3}], v234, {rOut}, s16 offen offset:{16*(g-1)} {OUTFL}")
        stamp("f")
stamp()


def stamp_out():
    if not STAMP:
        return
    a(f"""
s_waitcnt vmcnt(0) lgkmcnt(0)
v_writelane_b32 v254, s98, {nstamp[0]-1}
{CLK} s[98:99]
s_waitcnt lgkmcnt(0)
v_writelane_b32 v254, s98, 15
s_lshl_b32 s84, s2, 2
s_add_u32 s84, s84, {sw}
s_lshl_b32 s84, s84, 6
s_add_u32 s84, s84, {WS_TS}
v_lshlrev_b32 v1, 2, v255
s_mov_b64 exec, 0xffff
buffer_store_dword v254, v1, {rWs}, s84 offen
""")


stamp_out()
a("s_endpgm")

a.reset()
NC_LOAD = f"global_load_dword v202, v203, s[{sDbg}:{sDbg+1}] sc1"
NC_CMP = "v_cmp_eq_u32 vcc, 0, v202"
shq = "s59"
a(f"""
L_helper:
s_lshl_b32 {shq}, {sxcd}, 2
s_add_u32 {shq}, {shq}, {sj}
v_mov_b32 v203, 0
v_lshrrev_b32 v1, 2, v255
s_lshl_b32 s83, {shq}, 2
s_add_u32 s83, s83, {sw}
s_lshl_b32 s72, s83, 4
v_add_u32 v4, s72, v1
v_mul_u32_u24 v5, 896, v4
v_and_b32 v2, 3, v255
v_lshl_add_u32 v5, v2, 4, v5
s_lshr_b32 s73, {sxcd}, 1
s_lshl_b32 s73, s73, 2
s_add_u32 s60, s73, {sj}
s_min_u32 s73, s60, 13
s_and_b32 s74, {sxcd}, 1
s_mul_i32 s74, s74, 14
s_add_u32 s61, s73, s74
s_lshr_b32 s73, s61, 1
s_lshl_b32 s82, s73, 8
v_lshrrev_b32 v6, 4, v255
s_lshl_b32 s75, {sw}, 2
v_add_u32 v6, s75, v6
v_mul_u32_u24 v7, 3584, v6
v_and_b32 v3, 15, v255
v_lshl_add_u32 v7, v3, 4, v7
s_mov_b32 s72, {WS_EP}
s_waitcnt lgkmcnt(0)
""")
if STAMP:
    a("v_mov_b32 v254, 0\nv_writelane_b32 v254, s100, 0")
    nstamp[0] = 1
stamp(SEL[0])
a(f"""
s_mov_b32 s36, s{sX}
s_mov_b32 s37, s{sX+1}
s_mov_b32 s48, s{sWs}
s_mov_b32 s49, s{sWs+1}
buffer_load_dword v202, v203, {rWs}, s72 offen sc1
""")
for i in range(14):
    a(f"buffer_load_dwordx4 v[{8+4*i}:{11+4*i}], v5, {rX}, 0 offen offset:{64*i}")
a(f"""
s_mov_b32 s73, 1664525
v_mul_lo_u32 v202, v202, s73
s_cmp_eq_u32 s83, 127
v_add_u32 v202, 1013904225, v202
v_or_b32 v202, 1, v202
s_cbranch_scc0 L_hnoep
s_mov_b64 exec, 1
""")
a.items.append(("raw", f"    global_store_dword v203, v202, s[{sDbg}:{sDbg+1}] sc1"))
a.items.append(("raw", f"    buffer_store_dword v202, v203, {rWs}, s72 offen sc1"))
a(f"""
s_mov_b64 exec, -1
L_hnoep:
s_bitcmp1_b32 s61, 0
s_cselect_b32 s40, s{sWu}, s{sWg}
s_cselect_b32 s41, s{sWu+1}, s{sWg+1}
""")
wl = [f"buffer_load_dwordx4 v[{72+4*i}:{75+4*i}], v7, {rW}, s82 offen\ns_add_u32 s82, s82, {16*3584}" for i in range(28)]
HW0 = opt('hw0', 0)
put(wl[:HW0])
wl = wl[HW0:]
a(f"""
s_mov_b32 s76, 0x3f803f80
s_mov_b32 s77, 0x00003f80
s_mov_b32 s79, 0x3f800000
""")
for _ in range(opt('dhelp', 0)):
    a("s_sleep 16")
EXACT = "--noexact" not in sys.argv
L = []
for i in range(56):
    c0, c1 = ("0", "0") if i == 0 else ("v64", "v68")
    L.append([f"v_dot2_f32_bf16 v64, v{8+i}, s76, {c0}", f"v_dot2_f32_bf16 v68, v{8+i}, v{8+i}, {c1}"])
HW1 = opt('hw1', 0)
put(L[0] + weave(L[1:], wl[:HW1]))
wl = wl[HW1:]
stamp()
a(f"""
v_add_f32_dpp v64, v64, v64 quad_perm:[1,0,3,2] row_mask:0xf bank_mask:0xf
v_add_f32_dpp v68, v68, v68 quad_perm:[1,0,3,2] row_mask:0xf bank_mask:0xf
v_lshlrev_b32 v4, 3, v4
v_add_f32_dpp v64, v64, v64 quad_perm:[2,3,0,1] row_mask:0xf bank_mask:0xf
v_add_f32_dpp v68, v68, v68 quad_perm:[2,3,0,1] row_mask:0xf bank_mask:0xf
v_mul_f32 v64, {hex(0x3b124925)}, v64
v_mul_f32 v68, {hex(0x3b124925)}, v68
v_fma_f32 v68, -v64, v64, v68
v_cvt_pk_bf16_f32 v64, -v64, -v64
v_max_f32 v68, 0, v68
v_cvt_pk_bf16_f32 v68, v68, v68
v_and_b32 v68, {sMask}, v68
v_add_f32 v68, 0x3727c5ac, v68
v_cvt_pk_bf16_f32 v68, v68, v68
v_and_b32 v68, {sMask}, v68
v_sqrt_f32 v68, v68
v_and_b32 v66, {sMask}, v64
v_cvt_pk_bf16_f32 v68, v68, v68
v_and_b32 v68, {sMask}, v68
v_rcp_f32 v70, v68
s_mov_b32 s74, {WS_ST}
v_fma_f32 v71, -v68, v70, 1.0
v_fma_f32 v70, v70, v71, v70
v_mul_f32 v65, v70, v70
v_mul_f32 v71, v66, v70
s_mov_b32 s80, 0x11111111
s_mov_b32 s81, 0x11111111
s_mov_b64 exec, s[80:81]
buffer_store_dwordx2 v[64:65], v4, {rWs}, s74 offen sc1
s_mov_b64 exec, -1
v_mul_u32_u24 v5, 960, v1
s_mul_i32 s75, {sw}, {16*960}
v_lshl_add_u32 v5, v2, 4, v5
v_add_u32 v5, s75, v5
""")
L2B = 64 * 960
L3B = L2B + 448 * 144
a(f"""
v_lshrrev_b32 v1, 5, v255
v_bfe_u32 v2, v255, 2, 2
v_lshl_add_u32 v2, v1, 3, v2
v_mul_u32_u24 v2, 960, v2
v_bfe_u32 v4, v255, 4, 1
v_lshl_add_u32 v2, v4, 5, v2
v_and_b32 v4, 3, v255
v_lshl_add_u32 v2, v4, 3, v2
v_add_u32 v194, s75, v2
v_and_b32 v4, 31, v255
v_mul_u32_u24 v4, 144, v4
s_lshl_b32 s74, {sw}, 5
s_add_u32 s74, s74, {L2B}
v_lshl_add_u32 v4, v1, 4, v4
v_add_u32 v195, s74, v4
v_lshlrev_b32 v6, 9, v6
v_lshl_add_u32 v6, v3, 5, v6
v_add_u32 v6, {L3B}, v6
v_lshrrev_b32 v1, 3, v255
v_and_b32 v2, 7, v255
v_lshlrev_b32 v2, 4, v2
v_mul_u32_u24 v197, {XTS}, v1
v_add_u32 v197, v197, v2
v_mul_u32_u24 v1, 144, v1
v_add_u32 v1, v1, v2
s_mul_i32 s74, {sw}, {112*144}
s_add_u32 s74, s74, {L2B}
v_add_u32 v196, s74, v1
s_lshl_b32 s74, {shq}, 7
s_mul_i32 s75, {sw}, {112*XTS}
s_add_u32 s74, s74, s75
s_add_u32 s62, s74, {WS_XT}
s_and_b32 s75, {sw}, 1
s_lshl_b32 s75, s75, 8
v_lshl_add_u32 v2, v255, 2, s75
v_add_u32 v198, {L3B}, v2
""")


L = []
for i in range(56):
    t = 186 + 2 * (i % 4)
    if EXACT:
        g = [f"v_dot2_f32_bf16 v{t}, v{8+i}, s77, v66", f"v_dot2_f32_bf16 v{t+1}, v{8+i}, s79, v66"]
        if i > 0:
            p = 186 + 2 * ((i - 1) % 4)
            g += [f"v_cvt_pk_bf16_f32 v{7+i}, v{p}, v{p+1}", f"v_lshlrev_b32 v{p}, 16, v{7+i}", f"v_and_b32 v{p+1}, {sMask}, v{7+i}",
                  f"v_pk_mul_f32 v[{p}:{p+1}], v[{p}:{p+1}], v[70:71] op_sel_hi:[1,0]", f"v_cvt_pk_bf16_f32 v{7+i}, v{p}, v{p+1}"]
            if i % 4 == 0:
                g.append(f"ds_write_b128 v5, v[{4+i}:{7+i}] offset:{64*(i//4-1)}")
        if i == 55:
            g += ["s_nop 0", f"v_cvt_pk_bf16_f32 v63, v{t}, v{t+1}", f"v_lshlrev_b32 v{t}, 16, v63", f"v_and_b32 v{t+1}, {sMask}, v63",
                  f"v_pk_mul_f32 v[{t}:{t+1}], v[{t}:{t+1}], v[70:71] op_sel_hi:[1,0]", f"v_cvt_pk_bf16_f32 v63, v{t}, v{t+1}",
                  f"ds_write_b128 v5, v[60:63] offset:{64*13}"]
    else:
        g = [f"v_lshlrev_b32 v{t}, 16, v{8+i}", f"v_and_b32 v{t+1}, {sMask}, v{8+i}",
             f"v_pk_fma_f32 v[{t}:{t+1}], v[{t}:{t+1}], v[70:71], v[70:71] op_sel:[0,0,1] op_sel_hi:[1,0,1]",
             f"v_cvt_pk_bf16_f32 v{8+i}, v{t}, v{t+1}"]
        if i % 4 == 3:
            g.append(f"ds_write_b128 v5, v[{8+i-3}:{8+i}] offset:{64*(i//4)}")
    L.append(g)
HW2 = opt('hw2', 10)
put(weave(L, wl[:HW2]))
wl = wl[HW2:]
stamp()
if WM:
    a(f"""
s_mul_i32 s74, s83, {98*128}
v_min_u32 v199, 48, v255
v_lshlrev_b32 v199, 7, v199
v_add_u32 v199, s74, v199
global_load_dword v200, v199, s[{sWd}:{sWd+1}]
global_load_dword v201, v199, s[{sWd}:{sWd+1}] offset:{0}
""".replace("global_load_dword v201, v199, s[28:29] offset:0", f"v_add_u32 v199, {49*128}, v199\nglobal_load_dword v201, v199, s[28:29]"))
HW3 = opt('hw3', 99)
put(wl[:min(HW3, 12)])
wl2 = wl[min(HW3, 12):HW3]
wl = wl[HW3:]
for b in range(14):
    a(f"ds_read_b64_tr_b16 v[{8+4*b}:{9+4*b}], v194 offset:{64*b}\nds_read_b64_tr_b16 v[{10+4*b}:{11+4*b}], v194 offset:{64*b+4*960}")
cs = []
for i in range(28):
    for d in range(4):
        c0, c1 = ("0", "0") if i == 0 else (f"v{64+2*d}", f"v{65+2*d}")
        cs += [f"v_dot2_f32_bf16 v{64+2*d}, v{72+4*i+d}, s77, {c0}", f"v_dot2_f32_bf16 v{65+2*d}, v{72+4*i+d}, s79, {c1}"]
NC0 = opt('nc0', 0)
put(weave([f"ds_write_b128 v195, v[{8+4*b}:{11+4*b}] offset:{32*144*b}" for b in range(14)], wl2 + cs[:NC0]))
a(f"{NC_LOAD}\ns_waitcnt lgkmcnt(0)\ns_barrier")
stamp()
for b in range(14):
    a(f"ds_read_b128 v[{8+4*b}:{11+4*b}], v196 offset:{8*144*b}")
put(weave([f"buffer_store_dwordx4 v[{8+4*b}:{11+4*b}], v197, {rWs}, s62 offen sc1\ns_add_u32 s62, s62, {8*XTS}" for b in range(14)], [] if wl else cs[NC0:]))
if wl:
    put(wl + cs[NC0:])
a("""
ds_write_b128 v6, v[64:67]
ds_write_b128 v6, v[68:71] offset:16
s_waitcnt lgkmcnt(0)
s_barrier
""")
stamp()
for r in range(16):
    a(f"ds_read_b32 v{72+r}, v198 offset:{512*r}")
for st_ in (8, 4, 2, 1):
    for r in range(st_):
        a(f"v_add_f32 v{72+r}, v{72+r}, v{72+r+st_}")
a(f"""
v_cvt_pk_bf16_f32 v73, v72, v72
v_and_b32 v73, {sMask}, v73
v_sub_f32 v74, v72, v73
v_cvt_pk_bf16_f32 v73, v73, v74
s_lshl_b32 s74, s61, 9
s_add_u32 s74, s74, {WS_CS}
s_cmp_lt_u32 s60, 14
s_cselect_b32 s74, s74, {WS_SIZE}
s_cmp_lt_u32 {sw}, 2
s_cselect_b32 s74, s74, {WS_SIZE}
buffer_store_dword v73, v2, {rWs}, s74 offen sc1
""")
stamp()
poll("hnc", NC_LOAD, NC_CMP)
a(f"""
v_mul_u32_u24 v1, {FSP}, v255
s_lshl_b32 s74, {shq}, 2
s_add_u32 s74, s74, {WS_FL}
s_waitcnt vmcnt(0)
s_barrier
s_cmp_eq_u32 {sw}, 0
s_cbranch_scc0 L_hdone
s_mov_b64 exec, 0xff
buffer_store_dword v202, v1, {rWs}, s74 offen sc1
s_mov_b64 exec, -1
L_hdone:
""")
stamp()
stamp_out()
a("L_end:\ns_endpgm")
for sp in slow:
    a.reset()
    a(sp)
a("L_codeend:\ns_endpgm")

body = a.render()
here = os.path.dirname(os.path.abspath(__file__))
ref = open(os.path.join(here, "..", "cdna_kernels", NAME + ".s.ref")).read()
head = [l for l in ref.split("\n") if l.startswith(";") and "@launch" not in l and "Override" not in l and "grid=ceil" not in l]
txt = "\n".join(head) + f"""
; Generated by tools/gen.py (hand-written generator).  XTS={XTS} YS={YS}
; @launch grid=(256,1,1) block=(256,1,1) lds=163840
.amdgcn_target "amdgcn-amd-amdhsa--gfx950"
.text
.globl {NAME}_kernel
.p2align 8
.type {NAME}_kernel,@function
{NAME}_kernel:
{body}
.section .rodata,"a"
.p2align 6
.amdhsa_kernel {NAME}_kernel
  .amdhsa_next_free_vgpr 512
  .amdhsa_next_free_sgpr 102
  .amdhsa_accum_offset 256
  .amdhsa_group_segment_fixed_size 0
  .amdhsa_kernarg_size 128
  .amdhsa_user_sgpr_count 2
  .amdhsa_user_sgpr_kernarg_segment_ptr 1
  .amdhsa_system_sgpr_workgroup_id_x 1
.end_amdhsa_kernel
"""
out = [x for x in sys.argv[1:] if not x.startswith("--")]
path = out[0] if out else os.path.join(here, "..", "cdna_kernels", NAME + ".s")
open(path, "w").write(txt)
print(path, a.stats, file=sys.stderr)
```

```python
import sys, os
sys.path.insert(0, os.path.dirname(os.path.abspath(__file__)))
from asmdsl import Asm

NAME = "parallel_sum__ssm_conv_s4__glu_gated_reglu__prompt"
STAMP = "--stamp" in sys.argv


def opt(name, dflt):
    v = [x.split('=')[1] for x in sys.argv if x.startswith('--' + name + '=')]
    return type(dflt)(v[0]) if v else dflt


WS_H, WS_XT, WS_Y = 0x0, 0x700000, 0x900000
XTS, YS = 4096 + 128, 16384 + 128
WS_ST, WS_CS = 0xD00000, 0xD04000
WS_FH, WS_FL, WS_EP = 0xD10000, 0xD28000, 0xD2C000
WS_TS = 0xD30000
WS_SIZE = 0xD80000
FSP = 1024
SLOT = [0, 16384, 32768, 49152]
XB = 32768
SC = 147456
UB = 33536
U1_OFF = 4640
U_CH = 9280
KC0, KC_CH, KC_CP = 16, 16656, 4160
YX = 32768
RX = 0
XR = 0
PS = [SC] + [XB + k * 16384 for k in range(2, 7)]
SPIN = 200000
FHW_AT, FH_AT, FH_POLL = opt('fhw', 2), opt('fh', 8), opt('fhp', 13)
FYW_AT, FY_AT, FY_POLL = opt('fyw', 8), opt('fy', 21), opt('fyp', 26)
FL_AT, FL_POLL = opt('fl', 20), opt('flp', 23)
OUTFL = 'sc1' if '--outsc1' in sys.argv else ''
SEL = opt('sel', 'a')
CV = opt('cv', 20)
PAT = opt('pat', 0)
WG = opt('wg', 4)

sX, sAre, sAim, sBre, sBim, sCre, sCim, sLdt, sDsk = 4, 6, 8, 10, 12, 14, 16, 18, 20
sWg, sWu, sWd, sOut, sDbg, sWs = 24, 26, 28, 30, 32, 34
rX, rW, rWd, rWs, rOut = "s[36:39]", "s[40:43]", "s[44:47]", "s[48:51]", "s[52:55]"
sw, sxcd, sj, sr1, sc1_, sjc, sr2, sc2, snonce = "s56", "s57", "s58", "s59", "s60", "s61", "s62", "s63", "s64"
sWoff, sWdoff, sDs, scnt = "s65", "s66", "s67", "s68"
sq, sXoff, sw4k, sWl, sMask = "s69", "s72", "s73", "s77", "s78"
sFL, stg, sUl, sUg, sH0, sH1, sKC, sHoff = "s80", "s81", "s82", "s83", "s86", "s87", "s88", "s89"
sST, sCS, sFHw, sFHr, sY = "s90", "s91", "s92", "s93", "s94"
sOdd = "s[22:23]"

vKC, vKZ, vUZ, vKX, vXR, vXD, vWD, vWF, vKL = 160, 168, 169, 170, 172, 180, 184, 188, 190
vDD, vDF, vCU, vCK, vN4, vN8, vCS, vF, vYW, vYR, vFH, vH = 200, 204, 208, 209, 210, 211, 212, 213, 214, 215, 217, 218
fC, fR, fKG, fQ, fG, vNo, vZ, vL16 = 220, 221, 222, 223, 226, 224, 225, 250

a = Asm()
slow = []
nstamp = [0]
tok, ltok = {}, {}


def stamp(kind="a"):
    if not STAMP or kind not in SEL:
        return
    k = nstamp[0]
    nstamp[0] += 1
    if k > 1:
        a.items.append(("raw", f"    v_writelane_b32 v254, s98, {k-1}"))
    a.items.append(("raw", f"    {CLK} s[98:99]"))


def poll(name, load, cmp_, first=""):
    a(cmp_)
    a(f"s_cbranch_vccnz L_slow_{name}")
    a(f"L_back_{name}:")
    slow.append(f"""L_slow_{name}:
{first}
s_mov_b32 {scnt}, 0
L_retry_{name}:
s_add_u32 {scnt}, {scnt}, 1
s_cmp_gt_u32 {scnt}, {SPIN}
s_cbranch_scc1 L_back_{name}
s_sleep 1
{load}
s_waitcnt vmcnt(0)
{cmp_}
s_cbranch_vccnz L_retry_{name}
s_branch L_back_{name}""")


def put(items):
    for e in items:
        if isinstance(e, tuple):
            if e[0] == "vt": tok[e[1]] = a.vm_tok()
            if e[0] == "lt": ltok[e[1]] = a.lg_tok()
            if e[0] == "wv": a.wait_vm(tok[e[1]])
            if e[0] == "wl": a.wait_lg(ltok[e[1]])
        else:
            a(e)


def weave(main, extra):
    nreal = sum(1 for e in extra if not isinstance(e, tuple))
    out, k, done = [], 0, 0
    for t, m in enumerate(main):
        out += m if isinstance(m, list) else [m]
        goal = -(-(nreal * (t + 1)) // len(main))
        while k < len(extra) and (isinstance(extra[k], tuple) or done < goal):
            out.append(extra[k])
            done += not isinstance(extra[k], tuple)
            k += 1
    return out


def cost(e):
    if isinstance(e, tuple):
        return 4 if e[0] in ("wv", "wl") else 0
    c = 0
    for l in e.split("\n"):
        op = l.split()[0]
        if op.startswith(("buffer_", "global_")):
            c += CV if "x4" in op else 12
        elif op.startswith("ds_write"):
            c += 28 if "b128" in op or "2_b64" in op else 14
        else:
            c += 4
    return c


def pack(main, extra, cap):
    base = [sum(cost(x) for x in m[1:]) for m in main]
    n, G = len(extra), len(main)
    cs = [cost(e) for e in extra]
    INF = 1 << 60
    best = [[INF] * (n + 1) for _ in range(G + 1)]
    frm = [[0] * (n + 1) for _ in range(G + 1)]
    best[0][0] = 0
    for g in range(G):
        for i in range(n + 1):
            if best[g][i] == INF:
                continue
            load = base[g]
            for j in range(i, n + 1):
                if j > i:
                    load += cs[j - 1]
                v = best[g][i] + 1000 * max(0, load - cap) + load * load // 16
                if v < best[g + 1][j]:
                    best[g + 1][j] = v
                    frm[g + 1][j] = i
    cuts, j = [], n
    for g in range(G, 0, -1):
        cuts.append((frm[g][j], j))
        j = frm[g][j]
    cuts.reverse()
    out = []
    for m, (i, j) in zip(main, cuts):
        out += m + extra[i:j]
    return out


def lines(txt, per=1):
    L = [l for l in txt.strip().split("\n")]
    return ["\n".join(L[i:i + per]) for i in range(0, len(L), per)]


ROT = opt('rot', 0)
HFL = opt('hfl', 'sc1').replace('_', ' ').replace('none', '')


def wrap(reg, step, lim, base):
    return f"s_add_u32 {reg}, {reg}, {step}\ns_cmp_eq_u32 {reg}, {lim}\ns_cselect_b32 {reg}, {base}, {reg}"


def dma4(m0, vo, srd, soff, step, fl=""):
    g = [m0, f"buffer_load_dwordx4 v{vo}, {srd}, {soff} offen {fl} lds"]
    for i in range(1, 4):
        g.append(f"buffer_load_dwordx4 v{vo+i}, {srd}, {soff} offen offset:{1024*i} {fl} lds")
    g.append(f"s_add_u32 {soff}, {soff}, {step}")
    return g


def w_unit(u):
    return dma4(f"s_add_u32 m0, {sWl}, {SLOT[u % 4]}", vWD, rW, sWoff, 32 * 3584)


def x_block(cb):
    return dma4(f"s_add_u32 m0, {sw4k}, {XB+cb*16384}", vXD, rX, sXoff, 128)


def wd_pair(kk):
    g = dma4(f"s_add_u32 m0, {sw4k}, {PS[(kk >> 1) % 6]}", vDD, rWd, sWdoff, 32 * 896)
    if ROT and kk % 4 == 2:
        g[-1] = wrap(sWdoff, 32 * 896, "s9", "s8")
    return g


CLK = "s_memtime" if "--cyc" in sys.argv else "s_memrealtime"
if STAMP:
    a(f"{CLK} s[100:101]")
a(f"""
s_cmp_ge_u32 s2, 256
s_cbranch_scc1 L_end
s_load_dwordx16 s[4:19], s[0:1], 0
s_load_dwordx16 s[20:35], s[0:1], 64
s_getpc_b64 s[70:71]
L_pc:
s_and_b32 {sxcd}, s2, 7
s_lshr_b32 {sj}, s2, 3
v_lshrrev_b32 v1, 6, v0
v_and_b32 v255, 63, v0
v_readfirstlane_b32 {sw}, v1
""")
a(f"""
s_and_b32 {sq}, {sj}, 3
s_mul_i32 s74, {sq}, 80
v_mul_u32_u24 v2, 20, v1
v_add3_u32 v2, s74, v2, v255
v_lshlrev_b32 v2, 7, v2
v_min_u32 v2, L_codeend-L_pc-4, v2
s_mov_b64 exec, 0xfffff
{"global_load_dword v253, v2, s[70:71]" if "--nocodepf" not in sys.argv else ""}
s_mov_b64 exec, -1
s_mov_b32 s38, {2048*896}
s_mov_b32 s39, 0x20000
s_mov_b32 s42, {448*3584}
s_mov_b32 s43, 0x20000
s_mov_b32 s50, {WS_SIZE}
s_mov_b32 s51, 0x20000
v_lshlrev_b32 v{vL16}, 4, v255
s_mov_b32 {sMask}, 0xffff0000
s_cmp_lt_u32 {sj}, 4
s_cbranch_scc1 L_helper
""")

a(f"""
s_sub_u32 {sj}, {sj}, 4
s_mul_i32 s74, {sxcd}, 28
s_add_u32 {sjc}, s74, {sj}
s_lshl_b32 s74, {sjc}, 10
s_lshl_b32 s75, {sw}, 8
s_add_u32 s74, s74, s75
v_lshl_add_u32 v4, v255, 2, s74
s_lshr_b32 s79, s74, 9
s_lshl_b32 s74, s79, 1
v_mov_b32 v5, s74
s_lshr_b32 {sc2}, {sj}, 2
s_lshr_b32 s74, {sxcd}, 1
s_lshl_b32 s74, s74, 2
s_add_u32 {sr1}, s74, {sq}
s_lshl_b32 {stg}, {sr1}, 2
s_add_u32 {stg}, {stg}, {sw}
s_mul_i32 {sXoff}, {stg}, {32*896}
s_lshl_b32 {sw4k}, {sw}, 12
s_and_b32 s74, {sxcd}, 1
s_mul_i32 s74, s74, 7
s_add_u32 {sc1_}, s74, {sc2}
s_lshl_b32 {sWoff}, {sc1_}, 8
s_lshr_b32 s84, {sw}, 1
s_and_b32 s85, {sw}, 1
s_lshl_b32 s74, s85, 13
s_lshl_b32 s75, s84, 12
s_add_u32 {sWl}, s74, s75
v_and_b32 v{fC}, 3, v255
v_bfe_u32 v{fR}, v255, 2, 2
v_lshrrev_b32 v{fKG}, 5, v255
v_lshrrev_b32 v{fQ}, 4, v255
v_and_b32 v{fG}, 1, v{fQ}
v_lshrrev_b32 v6, 3, v255
v_mul_u32_u24 v1, 896, v6
v_and_b32 v2, 7, v255
v_xor_b32 v2, v2, v{fQ}
v_lshl_add_u32 v{vXD}, v2, 4, v1
v_xor_b32 v{vXD+1}, 64, v{vXD}
v_add_u32 v{vXD+1}, {8*896-1024}, v{vXD+1}
v_add_u32 v{vXD+2}, {2*(8*896-1024)}, v{vXD}
v_add_u32 v{vXD+3}, {2*(8*896-1024)}, v{vXD+1}
s_lshl_b32 s74, s84, 4
v_add_u32 v1, s74, v{fR}
v_mul_u32_u24 v1, 3584, v1
v_lshl_add_u32 v1, v{fQ}, 6, v1
s_lshl_b32 s76, s85, 1
v_xor_b32 v2, s76, v{fC}
v_lshl_add_u32 v{vWD}, v2, 4, v1
v_add_u32 v{vWD+1}, {4*3584-1024}, v{vWD}
v_add_u32 v{vWD+2}, {2*(4*3584-1024)}, v{vWD}
v_add_u32 v{vWD+3}, {3*(4*3584-1024)}, v{vWD}
""")
if STAMP:
    a("v_mov_b32 v254, 0\ns_waitcnt lgkmcnt(0)\nv_writelane_b32 v254, s100, 0")
    nstamp[0] = 1
stamp(SEL[0])
a(f"""
s_waitcnt lgkmcnt(0)
global_load_ushort v134, v5, s[{sLdt}:{sLdt+1}]
global_load_dword v128, v4, s[{sAre}:{sAre+1}]
global_load_dword v129, v4, s[{sAim}:{sAim+1}]
global_load_dword v130, v4, s[{sBre}:{sBre+1}]
global_load_dword v131, v4, s[{sBim}:{sBim+1}]
global_load_dword v132, v4, s[{sCre}:{sCre+1}]
global_load_dword v133, v4, s[{sCim}:{sCim+1}]
global_load_ushort v135, v5, s[{sDsk}:{sDsk+1}]
s_mov_b32 s36, s{sX}
s_mov_b32 s37, s{sX+1}
s_bitcmp1_b32 {sw}, 0
s_cselect_b32 s40, s{sWu}, s{sWg}
s_cselect_b32 s41, s{sWu+1}, s{sWg+1}
s_cselect_b64 {sOdd}, -1, 0
""")
if "--tlb" in sys.argv:
    a(f"""
v_min_u32 v14, 5, v255
v_lshlrev_b32 v14, 21, v14
v_mov_b32 v15, 0
s_mov_b64 exec, 0x3f
global_load_dword v152, v14, s[{sWs}:{sWs+1}]
s_mov_b64 exec, 1
global_load_dword v153, v15, s[{sOut}:{sOut+1}]
global_load_dword v154, v15, s[{sWd}:{sWd+1}]
global_load_dword v155, v15, s[{sDbg}:{sDbg+1}]
s_mov_b64 exec, -1
""")
LATE = opt('late', 2)
first_dma = x_block(0) + w_unit(0) + [("vt", "u0")]
if not LATE:
    put(first_dma)
a(f"""
s_add_u32 s74, {sw4k}, {SC}
v_add_u32 v{vKX}, s74, v{vL16}
v_xor_b32 v{vKX+1}, 4096, v{vKX}
v_bfe_u32 v1, v255, 1, 2
v_lshlrev_b32 v7, 4, v1
v_lshl_add_u32 v7, v255, 6, v7
v_add_u32 v{vKL}, s74, v7
v_xor_b32 v{vKL+1}, 16, v{vKL}
v_xor_b32 v{vKL+2}, 32, v{vKL}
v_xor_b32 v{vKL+3}, 48, v{vKL}
v_lshl_add_u32 v7, v{fKG}, 3, v{fR}
v_lshlrev_b32 v7, 6, v7
v_bfe_u32 v8, v255, 1, 1
v_lshl_add_u32 v8, v{fG}, 1, v8
v_lshrrev_b32 v9, 1, v{fR}
v_xor_b32 v8, v8, v9
v_lshl_add_u32 v7, v8, 4, v7
v_and_b32 v10, 1, v255
v_lshl_add_u32 v7, v10, 3, v7
v_add_u32 v{vKL+4}, s74, v7
v_xor_b32 v{vKL+5}, 32, v{vKL+4}
v_add_u32 v{vKL+5}, 256, v{vKL+5}
s_lshl_b32 s76, s85, 5
v_xor_b32 v{vKL+6}, s76, v{vKL+4}
v_xor_b32 v{vKL+7}, s76, v{vKL+5}
v_and_b32 v11, 31, v255
v_bfe_u32 v12, v255, 1, 3
v_xor_b32 v7, v12, v{fKG}
v_lshlrev_b32 v7, 4, v7
v_lshl_add_u32 v7, v11, 7, v7
s_add_u32 s74, {sw4k}, {XB}
v_add_u32 v{vXR}, s74, v7
v_xor_b32 v{vXR+1}, 32, v{vXR}
v_xor_b32 v{vXR+2}, 64, v{vXR}
v_xor_b32 v{vXR+3}, 96, v{vXR}
v_add_u32 v{vXR+4}, 0x10000, v{vXR}
v_add_u32 v{vXR+5}, 0x10000, v{vXR+1}
v_add_u32 v{vXR+6}, 0x10000, v{vXR+2}
v_add_u32 v{vXR+7}, 0x10000, v{vXR+3}
v_lshlrev_b32 v13, 3, v{fC}
v_lshl_add_u32 v13, v{fR}, 6, v13
v_mul_u32_u24 v7, {8192+32}, v{fG}
v_lshl_add_u32 v7, v{fKG}, 11, v7
v_add_u32 v{vWF}, v7, v13
v_xor_b32 v{vWF+1}, 32, v{vWF}
v_lshl_add_u32 v7, v{fG}, 5, v13
v_lshl_add_u32 v7, v{fKG}, 9, v7
s_lshl_b32 s74, s85, 8
s_add_u32 s74, s74, {sw4k}
s_add_u32 s74, s74, 65536
v_add_u32 v{vDF}, s74, v7
v_xor_b32 v{vDF+1}, 256, v{vDF}
v_add_u32 v{vDF+2}, 0x10000, v{vDF}
v_add_u32 v{vDF+3}, 0x10000, v{vDF+1}
s_mul_i32 s74, {sw}, 448
v_lshl_add_u32 v7, v{fKG}, 2, v{fR}
v_add_u32 v7, s74, v7
v_mul_u32_u24 v7, 896, v7
v_lshl_add_u32 v7, v{fG}, 6, v7
v_lshl_add_u32 v{vDD}, v{fC}, 4, v7
v_add_u32 v{vDD+1}, {8*896-1024}, v{vDD}
v_add_u32 v{vDD+2}, {2*(8*896-1024)}, v{vDD}
v_add_u32 v{vDD+3}, {3*(8*896-1024)}, v{vDD}
v_lshlrev_b32 v{vN4}, 2, v11
v_lshlrev_b32 v{vN8}, 3, v11
""")
setup2 = lines(f"""s_mul_i32 {sKC}, s84, {KC_CH}
s_add_u32 {sKC}, {sKC}, {KC0}
s_lshl_b32 s74, s85, 10
s_sub_u32 s74, {sKC}, s74
s_add_u32 s74, s74, {16*255-12}
v_sub_u32 v{vKC}, s74, v{vL16}
v_add_u32 v{vKC+1}, {KC_CP+4}, v{vKC}
v_add_u32 v{vKC+2}, {2*(KC_CP+4)}, v{vKC}
v_add_u32 v{vKC+3}, {3*(KC_CP+4)}, v{vKC}
v_lshlrev_b32 v7, 9, v{fKG}
v_sub_u32 v7, v{vKC}, v7
v_subrev_u32 v{vKC+4}, {16*96}, v7
v_add_u32 v{vKC+5}, {KC_CP+4}, v{vKC+4}
v_add_u32 v{vKC+6}, {2*(KC_CP+4)}, v{vKC+4}
v_add_u32 v{vKC+7}, {3*(KC_CP+4)}, v{vKC+4}
v_and_b32 v11, 15, v255
v_mul_u32_u24 v7, {KC_CP+4}, v{fQ}
v_lshl_add_u32 v7, v11, 2, v7
v_add_u32 v{vKZ}, {sKC}, v7
v_lshlrev_b32 v7, 2, v11
v_lshl_add_u32 v{vCS}, v{fG}, 9, v7
s_mul_i32 s74, {sw}, 7
s_lshr_b32 s74, s74, 1
v_add_lshl_u32 v7, v{fC}, s74, 2
v_mul_u32_u24 v8, {FSP}, v{fG}
v_add_u32 v{vFH}, v7, v8
s_mul_i32 s75, s84, {U_CH}
s_add_u32 s75, s75, {UB}
s_mul_i32 s74, s85, {U1_OFF}
s_add_u32 s74, s74, s75
v_min_u32 v7, 55, v255
v_lshl_add_u32 v{vUZ}, v7, 3, s74
s_lshl_b32 s74, s85, 11
s_add_u32 {sUl}, s75, s74
s_mul_i32 {sUg}, s79, {XTS}
s_add_u32 {sUg}, {sUg}, s74
s_add_u32 {sUg}, {sUg}, {WS_XT}
v_mul_u32_u24 v7, {U1_OFF}, v10
v_lshl_add_u32 v7, v12, 6, v7
v_lshl_add_u32 v7, v{fQ}, 4, v7
s_lshl_b32 s74, s85, 6
s_sub_u32 s75, s75, s74
s_add_u32 s75, s75, {448-384}
v_add_u32 v{vCU}, s75, v7
v_mul_u32_u24 v7, {KC_CP}, v{fC}
v_sub_u32 v8, v{fQ}, v{fR}
v_lshl_add_u32 v7, v8, 4, v7
s_sub_u32 s74, {sKC}, s74
s_add_u32 s74, s74, {16*255-64*62}
v_add_u32 v{vCK}, s74, v7
s_lshl_b32 s74, {sw}, 10
s_add_u32 s74, s74, {YX}
v_add_u32 v{vYW}, s74, v{vL16}
v_lshlrev_b32 v7, 4, v{fC}
v_lshl_add_u32 v7, v{fQ}, 6, v7
v_lshl_add_u32 v229, v{fR}, 8, v7
v_lshlrev_b32 v7, 2, v{fC}
v_lshl_add_u32 v7, v{fQ}, 8, v7
v_lshl_add_u32 v7, v{fR}, 5, v7
s_lshl_b32 s74, {sw}, 13
s_add_u32 s75, s74, {YX+4096}
v_add_u32 v{vYR}, s75, v7
s_add_u32 s74, s74, 8192
s_and_b32 s74, s74, 0x7fff
s_add_u32 s74, s74, {YX}
v_add_u32 v{vYR+1}, s74, v7
s_mul_i32 s74, s84, {112*1024}
v_add_u32 v{vH}, s74, v{vL16}
s_sub_u32 s74, {112*1024}, s74
v_add_u32 v{vH+1}, s74, v{vL16}
v_mov_b32 v{vZ}, 0
s_lshl_b32 s74, {sxcd}, 2
s_add_u32 {sr2}, s74, {sq}
s_lshl_b32 s74, {sr2}, 1
s_add_u32 s74, s74, s84
s_lshl_b32 s97, s74, 5
s_lshl_b32 s74, {sc2}, 1
s_add_u32 s74, s74, s85
s_lshl_b32 s17, s74, 6
s_mul_i32 s74, s97, 896
s_add_u32 s16, s74, s17
v_lshrrev_b32 v7, 2, v255
v_mul_u32_u24 v7, 896, v7
v_xor_b32 v8, v{fC}, v{fQ}
v_lshl_add_u32 v227, v8, 4, v7""")
put(setup2[:opt('s2', len(setup2))])
setup2 = setup2[opt('s2', len(setup2)):]
a(f"""
v_lshlrev_b32 v134, 16, v134
v_mul_f32 v134, 0x3fb8aa3b, v134
v_exp_f32 v134, v134
v_cvt_pk_bf16_f32 v134, v134, v134
v_lshlrev_b32 v134, 16, v134
""")
stamp()

PA = [64, 96]
PB = 8
KF = [(160, 176, 192, 208), (224, 240, 80, 96)]
R1, R8, E, T = 146, [148, 150], 0, 2
l1s = [0, 1, 2, 3, 4, 5, 6, 7, 8, 256, 258, 260, 262, 264, 512, 516, 520, 768, 772, 776,
       1024, 1032, 1280, 1288, 1536, 1544, 1792, 1800]
ra = {l: 8 + 2 * i for i, l in enumerate(l1s)}
cols = [0, 1, 2, 3, 256, 256, 258, 260, 4, 5, 6, 7, 260, 260, 262, 264,
        512, 516, 520, 1024, 768, 772, 776, 1536, 1032, 1280, 1288, 1288, 1544, 1792, 1800, 1800]


def cmul(d, x, r, t):
    return [f"v_pk_mul_f32 v[{t}:{t+1}], v[{x}:{x+1}], v[{r}:{r+1}] op_sel_hi:[1,0]",
            f"v_pk_fma_f32 v[{d}:{d+1}], v[{x}:{x+1}], v[{r}:{r+1}], v[{t}:{t+1}] op_sel:[1,1,0] op_sel_hi:[0,1,1] neg_lo:[1,0,0]"]


def k_write(ck, i, cq):
    P = (PA[ck] + 16 * i) if i < 2 else (PB + 16 * (i - 2))
    return f"ds_write_b128 v{vKL+cq}, v[{P+4*cq}:{P+4*cq+3}]"


def k_reads(ck, i):
    fr = KF[ck][i]
    base = vKL + 6 if i < 2 else vKL + 4
    return "\n".join(f"ds_read_b64_tr_b16 a[{fr+4*s+2*rd}:{fr+4*s+2*rd+1}], v{base+rd} offset:{1024*s}"
                     for s in range(4) for rd in range(2))


def kgen_head(ck):
    L = []
    un = (lambda d, s: f"v_lshlrev_b32 v{d}, 16, v{s}") if ck == 0 else (lambda d, s: f"v_and_b32 v{d}, {sMask}, v{s}")
    L += [un(136 + i, 128 + i) for i in range(6)]
    L += ["v_mul_f32 v142, v134, v136", "v_mul_f32 v143, v134, v137",
          "v_mul_f32 v142, 0x3fb8aa3b, v142", "v_mul_f32 v143, 0.15915494, v143"]

    def ev(d, l):
        s = []
        if l == 1:
            s += ["v_exp_f32 v144, v142", "v_fract_f32 v145, v143"]
        else:
            f = {8: "0x41000000", 256: "0x43800000"}[l]
            s += [f"v_mul_f32 v144, {f}, v142", f"v_mul_f32 v145, {f}, v143", "v_exp_f32 v144, v144", "v_fract_f32 v145, v145"]
        s += [f"v_cos_f32 v{d}, v145", f"v_sin_f32 v{d+1}, v145"]
        return s, f"v_pk_mul_f32 v[{d}:{d+1}], v[{d}:{d+1}], v[144:145] op_sel_hi:[1,0]"
    wm = cmul(ra[0], 140, 138, T) + [f"v_pk_mul_f32 v[{ra[0]}:{ra[0]+1}], v[{ra[0]}:{ra[0]+1}], v[134:135] op_sel_hi:[1,0]"]
    for (d, l), fill in zip(((R1, 1), (R8[ck], 8), (E, 256)), wm):
        s, last = ev(d, l)
        L += s + [fill, last]
    for l in range(1, 9):
        L += cmul(ra[l], ra[l - 1], R1, T)
    for l in l1s[9:]:
        L += cmul(ra[l], ra[l - 256], E, T)
    for k in range(16):
        c0, c1 = ra[cols[2 * k]], ra[cols[2 * k + 1]]
        L += [f"v_cvt_pk_bf16_f32 v{PA[ck]+k}, v{c0}, v{c1}", f"v_cvt_pk_bf16_f32 v{PA[ck]+16+k}, -v{c0+1}, -v{c1+1}"]
    return L


def kgen_chain(ck):
    r8 = R8[ck]
    rb = lambda j: r8 if j == 1 else 4 + 2 * (j % 2)
    B = [f"v_cvt_pk_bf16_f32 v{PB}, 1.0, v{r8}", f"v_cvt_pk_bf16_f32 v{PB+16}, 0, v{r8+1}"]
    for j in range(2, 32):
        B += cmul(rb(j), rb(j - 1), r8, T)
        if j % 2:
            B += [f"v_cvt_pk_bf16_f32 v{PB+j//2}, v{rb(j-1)}, v{rb(j)}",
                  f"v_cvt_pk_bf16_f32 v{PB+16+j//2}, v{rb(j-1)+1}, v{rb(j)+1}"]
    return B


def k_pass(ck, i):
    return [k_write(ck, i, cq) for cq in range(4)] + [k_reads(ck, i)]


def at(stream, items):
    out = []
    for i, x in enumerate(stream):
        out += [y for p, y in items if p == i]
        out.append(x)
    return out + [y for p, y in items if p >= len(stream)]


def kgen_mfma(ck):
    f = KF[ck]
    return [f"v_mfma_f32_32x32x16_bf16 a[144:159], a[{f[s>>2]+4*(s&3)}:{f[s>>2]+4*(s&3)+3}], "
            f"a[{f[2+(s>>2)]+4*(s&3)}:{f[2+(s>>2)]+4*(s&3)+3}], "
            + ("0" if (ck == 0 and s == 0) else "a[144:159]") for s in range(8)]


def x_read(s):
    cb = s >> 2
    return f"ds_read_b128 a[{4*s}:{4*s+3}], v{vXR + (0 if cb < 4 else 4) + (s & 3)} offset:{(cb % 4)*16384}"


WM = opt('wm', 0)
if WM == 0:
    warm = [f"""s_cmp_eq_u32 {sw}, 0
s_cselect_b32 s12, s{sWg}, s{sWu}
s_cselect_b32 s13, s{sWg+1}, s{sWu+1}
s_cmp_lt_u32 {sw}, 2
s_cselect_b32 s12, s12, s{sWd}
s_cselect_b32 s13, s13, s{sWd+1}
s_mul_i32 s74, {sjc}, {56*128}
v_min_u32 v251, 55, v255
v_lshl_add_u32 v251, v251, 7, s74
global_load_dword v252, v251, s[12:13]"""]
else:
    warm = [f"""s_lshl_b32 s74, {sjc}, 1
s_add_u32 s74, s74, s84
s_mul_i32 s74, s74, 3584
v_min_u32 v251, 27, v255
v_lshlrev_b32 v251, 7, v251
s_mov_b64 exec, 0xfffffff
buffer_load_dword v252, v251, {rW}, s74 offen
s_mov_b64 exec, -1"""]
for _ in range(opt('dmain', 0)):
    a("s_sleep 16")
stamp("k")
early = x_block(1) + [("vt", "x1")] + w_unit(1) + [("vt", "u1")]
if LATE == 1:
    put(weave(kgen_head(0), first_dma + early))
elif LATE == 2:
    put(weave(kgen_head(0), first_dma))
    warm = early + warm
elif LATE == 3:
    put(weave(kgen_head(0), first_dma + warm))
    warm = early
else:
    put(weave(kgen_head(0), early))
stamp("k")
XRES = [f"buffer_load_dwordx4 v[242:245], v227, {rX}, s16 offen",
        f"s_add_u32 s74, s16, {16*896}\nbuffer_load_dwordx4 v[246:249], v227, {rX}, s74 offen"]
XRAT = opt('xrat', 0)
if XRAT == 0:
    warm += XRES
put(weave(kgen_head(1), warm))
stamp("ak"[SEL == "k"])
RD = opt('rd', 3)
p0, p1, p2 = k_pass(0, 0), k_pass(0, 1), k_pass(0, 2)
put(at(kgen_chain(0), list(zip((0, 7, 14, 21, 21 + RD), p0)) + list(zip((30, 37, 44, 51, 51 + RD), p1))
       + list(zip((62, 70, 80, 92), p2))))
stamp("k")
p3, q0, q1, q2 = k_pass(0, 3), k_pass(1, 0), k_pass(1, 1), k_pass(1, 2)
ch = kgen_chain(1)
put([p2[4], p3[0], p3[1]] + at(ch[2:], [(0, p3[2]), (4, p3[3]), (4, ch[0]), (4, ch[1]), (4 + RD, p3[4])]
                                + list(zip((14, 20, 26, 32, 32 + RD), q0)) + list(zip((42, 48, 54, 60, 60 + RD), q1))
                                + list(zip((70, 76, 82, 90), q2))))
stamp("ak"[SEL == "k"])
sc = lines(f"""s_lshl_b32 {sWdoff}, {sc2}, 7
s_mov_b32 s44, s{sWd}
s_mov_b32 s45, s{sWd+1}
s_mov_b32 s46, {1792*896}
s_mov_b32 s47, 0x20000
s_mov_b32 s48, s{sWs}
s_mov_b32 s49, s{sWs+1}
s_mov_b32 s52, s{sOut}
s_mov_b32 s53, s{sOut+1}
s_mov_b32 s54, {2048*896}
s_mov_b32 s55, 0x20000
s_mul_i32 {sFL}, {sxcd}, {FSP}
s_add_u32 {sFL}, {sFL}, {WS_FL}
s_lshl_b32 {sST}, {stg}, 8
s_add_u32 {sST}, {sST}, {WS_ST}
s_lshl_b32 {sCS}, {sc1_}, 10
s_add_u32 {sCS}, {sCS}, {WS_CS}
v_lshlrev_b32 v135, 16, v135""")
lp = k_pass(1, 3)
put(weave(kgen_mfma(0), [q2[4], lp[0]] + sc[:6] + [lp[1]] + sc[6:12] + [lp[2]] + sc[12:]
          + [lp[3], ("wv", "u0")] + [x_read(s) for s in range(4)] + [lp[4]]))
stamp("k")
a("s_waitcnt lgkmcnt(0)")
stamp("k")
a("s_barrier")
stamp("ak"[SEL == "k"])

fillg = {s: [] for s in range(28)}
fillg[2] += lines(f"""v_readfirstlane_b32 {sDs}, v135
s_mul_i32 {sH0}, {stg}, {112*1024}
s_lshl_b32 s74, {sc1_}, 13
s_add_u32 {sH0}, {sH0}, s74
s_add_u32 {sH1}, {sH0}, 4096
s_mul_i32 s74, {stg}, {FSP}
s_lshl_b32 s75, {sc1_}, 2
s_add_u32 s74, s74, s75
s_add_u32 {sFHw}, s74, {WS_FH}""")
fillg[3] += [f"v_accvgpr_read_b32 v{128+r}, a{144+r}" for r in range(8)]
fillg[2] += []
fillg[4] += [f"ds_read_b128 v[136:139], v{vKX+1}", f"ds_read_b128 v[140:143], v{vKX+1} offset:1024", ("lt", "kr")]
fillg[5] += lines(f"""s_mul_i32 {sFHr}, {sr2}, {2*FSP}
s_add_u32 {sFHr}, {sFHr}, {WS_FH}
s_mul_i32 {sHoff}, {sr2}, {2*112*1024}
s_mul_i32 s74, {sw}, {28*1024}
s_add_u32 s10, {sHoff}, s74""")
fillg[6] += [f"s_lshl_b32 s3, {sq}, 1\ns_add_u32 s3, s3, {sc2}" if ROT == 1 else f"s_mov_b32 s3, {sc2 if ROT else 0}",
             "s_sub_u32 s74, s3, 7\ns_cselect_b32 s3, s3, s74",
             f"s_mov_b32 s8, {sWdoff}\ns_add_u32 s9, s8, {448*896}",
             f"s_mul_i32 s74, s3, {64*896}\ns_add_u32 {sWdoff}, {sWdoff}, s74",
             "s_add_u32 s74, s3, 4\ns_sub_u32 s75, s74, 7\ns_cselect_b32 s74, s74, s75",
             f"s_lshl_b32 s74, s74, 12\ns_add_u32 {sHoff}, s10, s74", f"s_add_u32 s11, s10, {28*1024}"]
fillg[7] += [f"v_add_f32 v{128+r}, v{128+r}, v{136+r}" for r in range(8)]
fillg[9] += lines(f"""v_cmp_eq_u32 vcc, 0, v255
v_mov_b32 v140, {sDs}
s_mov_b32 s74, 0xaaaaaaaa
s_mov_b32 s75, 0xaaaaaaaa
v_cndmask_b32 v140, 0, v140, vcc
v_add_f32 v140, v128, v140
v_cndmask_b32 v141, v131, v132, s[74:75]
v_cndmask_b32 v142, v133, v134, s[74:75]""")
fillg[11] += lines(f"""v_cvt_pk_bf16_f32 v144, v132, v132
v_cvt_pk_bf16_f32 v145, v132, v141
v_cvt_pk_bf16_f32 v146, v131, v131
v_cvt_pk_bf16_f32 v147, v131, v131
v_cvt_pk_bf16_f32 v148, v134, v134
v_cvt_pk_bf16_f32 v149, v134, v142
v_cvt_pk_bf16_f32 v150, v133, v133
v_cvt_pk_bf16_f32 v151, v133, v133""")
fillg[13] += lines(f"""v_cvt_pk_bf16_f32 v136, v135, v134
v_cvt_pk_bf16_f32 v137, v133, v132
v_cvt_pk_bf16_f32 v138, v131, v130
v_cvt_pk_bf16_f32 v139, v129, v140
v_cvt_pk_bf16_f32 v140, v130, v130
v_cvt_pk_bf16_f32 v141, v129, v129
v_cvt_pk_bf16_f32 v142, v129, v128
v_cvt_pk_bf16_f32 v143, v128, v128""")
fillg[15] += [f"v_cndmask_b32 v{136+r}, v{136+r}, v{140+r}, {sOdd}" for r in range(4)]
fillg[17] += lines(f"""s_mul_i32 {sY}, {sjc}, {YS}
s_lshl_b32 s74, {sw}, 12
s_add_u32 {sY}, {sY}, s74
s_add_u32 {sY}, {sY}, {WS_Y}""")
fillg[19] += [f"v_mov_b32 v{r}, 0" for r in (190, 191, 193, 194)]
fillg[21] += [f"v_mov_b32 v{r}, 0" for r in (195, 196, 198, 199)]


def wd_read(kk, r):
    off = PS[(kk >> 1) % 6] - 65536 + (kk & 1) * 2048
    base = vDF if off < 65536 else vDF + 2
    return [f"ds_read_b64_tr_b16 a[{r+4*da+2*rd}:{r+4*da+2*rd+1}], v{base+da} offset:{off % 65536+rd*1024}"
            for da in range(2) for rd in range(2)]


def wd_move(kk):
    return wd_read(kk, 8 * kk)


def wfrag_read(s, t, r):
    off = SLOT[(s >> 1) % 4] + (s & 1) * 4096 + (t >> 1) * 256
    return [f"ds_read_b64_tr_b16 a[{r+2*rd}:{r+2*rd+1}], v{vWF+(t & 1)} offset:{off+rd*1024}" for rd in range(2)]


put(pack([[m] + wfrag_read(0, t, 112 + 4 * t) for t, m in enumerate(kgen_mfma(1))], w_unit(2) + [("vt", "u2")] + fillg[2], 24))
fillg[2] = []
put(x_block(2) + [("vt", "x2")])
put([f"ds_write_b128 v{vKX}, a[152:155]", f"ds_write_b128 v{vKX}, a[156:159] offset:1024", ("lt", "kx")])
stamp("k")

FL_LOAD = f"buffer_load_dword v{vF}, v{vN4}, {rWs}, {sFL} offen sc1"
F_CMP = f"v_cmp_ne_u32 vcc, {snonce}, v{vF}"
NC_LOAD = f"global_load_dword v{vNo}, v{vZ}, s[{sDbg}:{sDbg+1}] sc1"
NC_CMP = f"v_cmp_eq_u32 vcc, 0, v{vNo}"
WDS = [int(c) for c in opt('wds', '22,23,24').split(',')]
carry, pre = [], []
for s in range(25):
    if s % 2 == 0 and s > 0:
        stamp("g")
    if 1 <= s <= 4:
        stamp("k")
    extra, dma = [], None
    if s % 2 == 1:
        u = (s + 1) // 2
        lt = {1: "x1", 5: "kr"}.get(s)
        a.wait_both(tok[f"u{u}"], ltok[lt] if lt else None)
        a("s_barrier")
        if u + 2 < 14:
            dma = ([], w_unit(u + 2), f"u{u+2}")
    if s == 0:
        extra += [("wv", "x1")] + [x_read(k) for k in range(4, 8)] + [("lt", "x1")]
    if s % 2 == 0 and 2 <= s <= 8:
        dma = ([], x_block(2 + s // 2), f"x{2+s//2}")
    if s % 2 == 0 and 4 <= s <= 12:
        cb = s // 2
        extra += [("wv", f"x{cb}")] + [x_read(k) for k in range(4 * cb, 4 * cb + 4)] + [("lt", f"x{cb}")]
    if s % 2 == 0 and 10 <= s <= 20:
        p = (s - 10) // 2
        dma = ([("wl", f"x{p+1}")] if p else [], wd_pair(2 * p), f"wd{2*p}")
    if 14 <= s <= 21:
        kk = s - 14
        if kk % 2 == 0:
            extra += [("wv", f"wd{kk}")]
        extra += wd_move(kk) + [("lt", f"mv{kk}")]
    if s in WDS:
        kk = 12 + 2 * WDS.index(s)
        dma = ([("wl", f"mv{kk-11}")], wd_pair(kk), f"wd{kk}")
    if s == 12:
        extra += [NC_LOAD]
    if s == 16:
        poll("nc", NC_LOAD, NC_CMP)
        a(f"v_readfirstlane_b32 {snonce}, v{vNo}")
    if s == FL_AT:
        extra += [FL_LOAD]
    if s == FL_POLL:
        poll("fl", FL_LOAD, F_CMP)
        extra += [f"buffer_load_dword v{vF}, v{vN8}, {rWs}, {sST} offen sc1",
                  f"s_lshl_b32 s74, s97, 3\ns_add_u32 s74, s74, {WS_ST+4}\nbuffer_load_dword v228, v{vN8}, {rWs}, s74 offen sc1"]
    if FL_POLL <= s < FL_POLL + 2:
        extra += [f"buffer_load_dword a{160+t}, v{vCS}, {rWs}, {sCS} offen offset:{64*t} sc1"
                  for t in range(4 * (s - FL_POLL), 4 * (s - FL_POLL) + 4)]
    extra += fillg[s]
    AB = opt('ab', '')
    if dma and (('x' in AB and dma[2][0] == 'x') or ('w' in AB and dma[2][0] == 'w') or ('u' in AB and dma[2][0] == 'u')):
        dma = (dma[0], ["s_nop 0"] * 6, dma[2])
    main = []
    for t in range(8):
        if t % WG == 0 and s > 0:
            (main[-1] if main else pre).append(("wl", f"f{t+WG-1}" if not (PAT and t + WG - 1 == 7) else "f6"))
        c = "0" if s == 0 else f"v[{16*t}:{16*t+15}]"
        m = [f"v_mfma_f32_32x32x16_bf16 v[{16*t}:{16*t+15}], a[{112+4*t}:{115+4*t}], a[{4*s}:{4*s+3}], {c}"]
        rd = wfrag_read(s + 1, t, 112 + 4 * t) + [("lt", f"f{t}")]
        if dma and t == 0:
            m += dma[0] + [dma[1][0]]
        if PAT and t % 2 == 1 and not (s == 24 and t == 7):
            carry = rd
        else:
            m += carry + rd
            carry = []
        if dma and t % 2 == 1:
            m.append(dma[1][1 + t // 2])
            if t == 7:
                m += [("vt", dma[2]), dma[1][5]]
        main.append(m)
    put(pre + pack(main, extra, 24))
    pre = []
stamp("g")
a.wait_vm(tok["u13"])
a("s_barrier")
put(wfrag_read(26, 0, 168) + wfrag_read(27, 0, 172))
first = [f"v_cmp_gt_u32 vcc, 32, v255", "v_mov_b32 v152, 0", "v_mov_b32 v153, 0",
         f"s_add_u32 m0, {sUl}, {U1_OFF+448}", f"buffer_load_dwordx4 v{vL16}, {rWs}, {sUg} offen sc1 lds",
         f"buffer_load_dwordx4 v{vL16}, {rWs}, {sUg} offen offset:1024 sc1 lds",
         f"v_cndmask_b32 v192, 0, v{vF}, vcc\nv_cndmask_b32 v197, 0, v{vF}, vcc"]
second = [f"s_sub_u32 {sUg}, {sUg}, 2\ns_add_u32 m0, {sUl}, 448", f"buffer_load_dwordx4 v{vL16}, {rWs}, {sUg} offen sc1 lds",
          f"buffer_load_dwordx4 v{vL16}, {rWs}, {sUg} offen offset:1024 sc1 lds", ("vt", "u")]
main, epi = [], []
for t in range(8):
    r = 168 + 8 * (t % 2)
    cb = (192, 196, 190, 194)[t & 3]
    ops = [(f"a[{112+4*t}:{115+4*t}]", "a[100:103]"), (f"a[{r}:{r+3}]", "a[104:107]"), (f"a[{r+4}:{r+7}]", "a[108:111]"),
           (f"a[{160+(t & 4)}:{163+(t & 4)}]", f"v[{cb}:{cb+3}]")]
    for k, (A, B) in enumerate(ops):
        m = [f"v_mfma_f32_32x32x16_bf16 v[{16*t}:{16*t+15}], {A}, {B}, v[{16*t}:{16*t+15}]"]
        if t < 7 and k in (0, 1):
            m += wfrag_read(26 + k, t + 1, 168 + 8 * ((t + 1) % 2) + 4 * k)
        main.append(m)
    b = 16 * t
    L = [f"v_max_f32 v{b+r}, 0, v{b+r}" for r in range(8)]
    if t < 6:
        L += [f"v_mul_f32 v{b+r}, v{b+r}, v{b+8+r}" for r in range(8)]
    else:
        L += [f"v_pk_mul_f32 v[{b+r}:{b+r+1}], v[{b+r}:{b+r+1}], v[{b+8+r}:{b+9+r}]" for r in range(0, 8, 2)]
    L += [f"v_cvt_pk_bf16_f32 v{b+8+r}, v{b+2*r}, v{b+2*r+1}" for r in range(4)]
    L += [f"buffer_store_dwordx4 v[{b+8}:{b+11}], v{vL16}, {rWs}, {(sH0, sH1)[t >> 2]} offen offset:{1024*(t & 3)} sc1"]
    epi.append(L)
stamp("t")
put(pack(main[:3], first, 24) + pack(main[3:6], second, 24))
for t in range(6):
    stamp("t")
    put(pack(main[4 * t + 6:4 * t + 10], epi[t], 24))
stamp("t")
put(pack(main[30:], epi[6][:8], 24))
rest = epi[6][8:] + epi[7]
stamp()
stamp("t")
a("s_barrier")
stamp("t")


def octet_writes(d, ar, off):
    return [f"ds_write_b128 v{ar+3}, v[{d}:{d+3}] offset:{off}",
            f"ds_write2_b64 v{ar+1}, v[{d}:{d+1}], v[{d+2}:{d+3}] offset0:{off//8} offset1:{off//8+1}"] + \
           [f"ds_write2_b32 v{ar+c}, v{d+k}, v{d+k+1} offset0:{off//4+k} offset1:{off//4+k+1}" for c in (0, 2) for k in (0, 2)]


put(weave(rest, octet_writes(136, vKC, 0) + [f"ds_write_b32 v{vKZ}, v152 offset:{4096-12}", f"ds_write_b64 v{vUZ}, v[152:153]"]))
tok["h"] = a.vm_tok()
stamp("t")
a(f"s_mov_b64 exec, {sOdd}")
put(octet_writes(144, vKC + 4, 512) + octet_writes(148, vKC + 4, 0))
a("s_mov_b64 exec, -1")
stamp("t")
a(f"s_andn2_b64 exec, 1, {sOdd}")
a.wait_vm(tok["u"])
a(f"""ds_write_b16 v{vUZ}, v152 offset:448
s_mov_b64 exec, -1
s_waitcnt lgkmcnt(0)""")
stamp("t")
a("s_barrier")
stamp()
stamp("t")


def a_read(n):
    return f"ds_read_b128 a[{128+4*(n % 4)}:{131+4*(n % 4)}], v{vCK} offset:{64*(62-2*n)}"


def u_read(be, i):
    return f"ds_read_b128 v[{16*be+4*i}:{16*be+4*i+3}], v{vCU} offset:{512*be-128*i+384}"


NH = opt('nh', 12)
ORD = list(range(16, 28)) + list(range(16))


def h_load(i):
    g = []
    for ta in range(2):
        r = 96 + 8 * (i % NH) + 4 * ta
        g.append(f"buffer_load_dwordx4 v[{r}:{r+3}], v{vH+ta}, {rWs}, {sHoff} offen offset:{1024*(i % 4)} {HFL}")
    if i % 4 == 3:
        if ROT:
            g[-1] += "\n" + wrap(sHoff, 4096, "s11", "s10")
        else:
            g[-1] += f"\ns_add_u32 {sHoff}, {sHoff}, 4096" if i != 11 else f"\ns_sub_u32 {sHoff}, {sHoff}, {24*1024}"
    return g


put([a_read(0)] + [u_read(be, 0) for be in range(8)] + [a_read(1), a_read(2)])
FH_LOAD = f"buffer_load_dword v{vF}, v{vFH}, {rWs}, {sFHr} offen sc1"
fill = {n: [] for n in range(32)}
for i in range(1, 4):
    fill[i - 1] += [u_read(be, i) for be in range(8)]
fill[2] += [("lt", "ub")]
if XRAT:
    fill[3] += XRES
fill[FHW_AT] += [("wv", "h"), f"s_mov_b64 exec, 1\nbuffer_store_dword v{vNo}, v{vZ}, {rWs}, {sFHw} offen sc1\ns_mov_b64 exec, -1"]
for k, kk in enumerate(range(12 + 2 * len(WDS), 20, 2)):
    fill[opt('w18', 1) + k] = wd_pair(kk) + [("vt", f"wd{kk}")] + fill[opt('w18', 1) + k]
for kk in range(8, 16):
    n = 3 + (kk - 8)
    if kk % 2 == 0:
        fill[n] += [("wv", f"wd{kk}")]
    fill[n] += wd_move(kk) + [("lt", f"mv{kk}")]
    if kk % 2 == 1:
        fill[n + 2] += [("wl", f"mv{kk}")] + wd_pair(kk + 11) + [("vt", f"wd{kk+11}")]
YB = opt('yb', 15)
fill[FH_AT] += [FH_LOAD]
for j in range(7):
    fill[(YB + 1, YB + 2, YB + 3, max(17, YB + 4), 21, 25, 29)[j]] += [f"ds_write_b128 v{vYW}, a[{224+4*j}:{227+4*j}] offset:{4096*((j+1) % 8)}"]
cfill = fill


def conv_group(n, more):
    P, i = n >> 2, n & 3
    if n % 4 == 0 or n in (2, 6, 10):
        stamp("c")
    if n == YB:
        a.wait_lg(ltok["ub"])
        a("s_barrier")
    main = []
    for be in range(8 - P):
        j = P + be
        c = "0" if n == 0 else f"a[{224+4*j}:{227+4*j}]"
        main.append(f"v_mfma_f32_16x16x32_bf16 a[{224+4*j}:{227+4*j}], a[{128+4*(n % 4)}:{131+4*(n % 4)}], v[{16*be+4*i}:{16*be+4*i+3}], {c}")
    put(pack([[m] for m in main], ([a_read(n + 3)] if n + 3 < 32 else []) + cfill[n] + more, 8))


def stamp_out():
    if not STAMP:
        return
    a(f"""
s_waitcnt vmcnt(0) lgkmcnt(0)
v_writelane_b32 v254, s98, {nstamp[0]-1}
{CLK} s[98:99]
s_waitcnt lgkmcnt(0)
v_writelane_b32 v254, s98, 15
s_lshl_b32 s84, s2, 2
s_add_u32 s84, s84, {sw}
s_lshl_b32 s84, s84, 6
s_add_u32 s84, s84, {WS_TS}
v_lshlrev_b32 v1, 2, v255
s_mov_b64 exec, 0xffff
buffer_store_dword v254, v1, {rWs}, s84 offen
""")


XS = lambda g, e: 80 + 4 * g + 2 * e
YR = lambda k: (200 if k < 4 else 236) + 2 * k
Y_AT = opt('y', 22)
Y_LOAD = [f"s_add_u32 s74, s96, {(4*(k >> 1)+(k & 1))*YS}\nbuffer_load_dwordx2 v[{YR(k)}:{YR(k)+1}], v235, {rWs}, s74 offen sc1" for k in range(8)]
Y_CMP = "\n".join([f"v_xor_b32 v{vF}, {snonce}, v{YR(0)+1}"] +
                  [f"v_bitop3_b32 v{vF}, v{vF}, v{YR(k)+1}, v{vNo} bitop3:0xf6" for k in range(1, 8)] + [f"v_cmp_ne_u32 vcc, 0, v{vF}"])
DEF = opt('def', NH)
HL0 = opt('hl0', 1)


def finish(early):
    V = "a" if early else "b"
    hl = [(i, g) for i in range(28) for g in h_load(i)]
    for n in range(FH_POLL, 32):
        more = []
        if early and hl[0][0] < NH:
            more = [hl.pop(0)[1]]
        if not early and n == opt('fh2', 26):
            more = [FH_LOAD]
        conv_group(n, more)
    stamp()
    stamp("f")
    put([("wv", "wd16")] + wd_read(16, 128))
    a(f"ds_write_b128 v{vYW}, a[252:255]")
    ltok["y7"] = a.lg_tok()
    fill = {k: [] for k in range(28)}
    ysum = [[f"v_mov_b32 v{r}, v{vNo}" for r in (193, 195, 197, 199)] + [("wl", "y7"), "s_barrier"], [], [], []]
    for jj in range(2):
        for hh in range(2):
            q = 192 + 4 * hh
            for ph in range(2):
                r = 64 + 16 * jj + 8 * hh + 4 * ph
                ysum[jj] += [f"ds_read_b32 v{r+src}, v{vYR+jj} offset:{1024*src+128*hh+16*ph}" for src in range(4)]
                ysum[1 + jj + (jj > 0)] += [f"v_add_f32 v{r}, v{r}, v{r+1}", f"v_add_f32 v{r+2}, v{r+2}, v{r+3}",
                                            f"v_cvt_pk_bf16_f32 v{q+2*ph}, v{r}, v{r+2}"]
            ysum[1 + jj + (jj > 0)] += [f"buffer_store_dwordx4 v[{q}:{q+3}], v229, {rWs}, {sY} offen offset:{2048*jj+1024*hh} sc1"]
    ysum[1], ysum[2] = [e for e in ysum[1] if e.startswith("ds_")], [e for e in ysum[1] if not e.startswith("ds_")]
    if early:
        for k in range(4):
            fill[k] += ysum[k]
    else:
        put(sum(ysum, []))
        poll("fh", FH_LOAD, F_CMP)
        for _ in range(opt('hb', 8)):
            a(hl.pop(0)[1])
    stamp()
    stamp("f")
    fill[5] += [f"s_lshl_b32 s13, {sw}, 11\nv_add_u32 v230, s13, v{vL16}"]
    fill[9] += [f"ds_write_b128 v230, v[242:245] offset:{XR}"] + lines(f"""v_mul_u32_u24 v234, 224, v{vN4}
v_lshl_add_u32 v234, v{fKG}, 4, v234""")
    fill[10] += [f"ds_write_b128 v230, v[246:249] offset:{XR+1024}"] + lines(f"""v_lshlrev_b32 v231, 4, v{fR}
v_lshl_add_u32 v231, v{vN4}, 4, v231
v_lshl_add_u32 v231, v{fKG}, 3, v231""")
    fill[12] += lines(f"""v_add_u32 v236, s13, v231
v_xor_b32 v237, 16, v236
v_xor_b32 v238, 32, v236
v_xor_b32 v239, 48, v236
v_mul_u32_u24 v235, {2*YS}, v{fKG}
v_add_u32 v235, v235, v{vN8}""") + [f"ds_read_b64 v[{64+2*g}:{65+2*g}], v{236+g} offset:{XR}" for g in range(4)] + [("lt", "xr")]
    fill[13] += lines(f"""s_mul_i32 s74, s17, {YS//4}
s_lshl_b32 s75, s97, 3
s_add_u32 s74, s74, s75
s_add_u32 s96, s74, {WS_Y}
s_mul_i32 s74, {sw}, {3*4096}
s_add_u32 s74, s74, {RX}
v_add_u32 v240, s74, v{vL16}""", 2)
    for k in range(1, 4):
        fill[13 + k] += [f"s_xor_b32 s74, {sw}, {k}\ns_mul_i32 s74, s74, {3*4096}",
                         f"s_add_u32 s74, s74, {RX+(k-1)*4096}\nv_add_u32 v{240+k}, s74, v{vL16}"]
    for g in range(4):
        for e in range(2):
            fill[17 + g] += [f"v_lshlrev_b32 v{XS(g, e)}, 16, v{64+2*g+e}", f"v_and_b32 v{XS(g, e)+1}, {sMask}, v{64+2*g+e}"]
    fill[22] += [("wl", "xr"), "s_barrier"]
    for k, e in enumerate(Y_LOAD):
        fill[Y_AT + k // 2] += [e]
    late = []
    for i in range(28):
        kk = ORD[i]
        if i % 2 == 0 and i > 0:
            stamp("h")
        if i < 14:
            stamp("j")
        extra = []
        if i + 1 < 12:
            if (kk + 1) % 2 == 0:
                extra += [("wv", f"wd{kk+1}")]
            extra += wd_read(kk + 1, 128 + 8 * ((kk + 1) % 2))
        main = []
        for ta in range(2):
            for da in range(2):
                acc = 16 * (da + 2 * ta)
                c = "0" if i == 0 else f"v[{acc}:{acc+15}]"
                fa = (8 * kk if kk < 16 else 128 + 8 * (kk % 2)) + 4 * da
                fb = 96 + 8 * (i % NH) + 4 * ta
                m = [f"v_mfma_f32_32x32x16_bf16 v[{acc}:{acc+15}], a[{fa}:{fa+3}], v[{fb}:{fb+3}], {c}"]
                if acc == 0 and i >= 28 - DEF:
                    late.append(m)
                    continue
                if hl and (i >= HL0 or not early) and (da, ta) != (0, 0) and (hl[0][0] < i + NH or (hl[0][0] == i + NH and da == 1 and len(hl) % 2 == ta % 2)):
                    m.append(hl.pop(0)[1])
                main.append(m)
        put(pack(main, extra + fill[i], 24))
    assert not hl
    stamp()
    stamp("f")
    wr = [f"ds_write_b128 v240, v[{16*k+4*g}:{16*k+4*g+3}] offset:{(k-1)*4096+1024*g}" for k in range(1, 4) for g in range(4)]
    put(weave(late, wr) if late else wr)
    stamp("f")
    a("s_waitcnt lgkmcnt(0)")
    stamp("f")
    a("s_barrier")
    stamp("f")
    for g in range(4):
        for k in range(1, 4):
            a(f"ds_read_b128 v[{16*k+4*g}:{16*k+4*g+3}], v{240+k} offset:{1024*g}")
    stamp("f")
    poll("y" + V, "\n".join(Y_LOAD), Y_CMP)
    for g in range(4):
        for e in range(2):
            yr, d = YR(2 * g + e), XS(g, e)
            a(f"""
v_lshlrev_b32 v112, 16, v{yr}
v_and_b32 v113, {sMask}, v{yr}
v_pk_add_f32 v[{d}:{d+1}], v[{d}:{d+1}], v[112:113]
""")
    stamp("f")
    for g in range(4):
        for e in range(2):
            r = 4 * g + 2 * e
            for k in range(1, 4):
                a(f"v_pk_add_f32 v[{r}:{r+1}], v[{r}:{r+1}], v[{16*k+r}:{16*k+r+1}]")
            a(f"v_pk_fma_f32 v[{r}:{r+1}], v[{r}:{r+1}], v[228:229], v[{XS(g, e)}:{XS(g, e)+1}] op_sel_hi:[1,0,1]")
        a(f"v_cvt_pk_bf16_f32 v{116+2*g}, v{4*g}, v{4*g+1}\nv_cvt_pk_bf16_f32 v{117+2*g}, v{4*g+2}, v{4*g+3}")
        if g % 2 == 1:
            b = 116 + 2 * (g - 1)
            a(f"v_permlane32_swap_b32 v{b}, v{b+2}\nv_permlane32_swap_b32 v{b+1}, v{b+3}")
            a(f"buffer_store_dwordx4 v[{b}:{b+3}], v234, {rOut}, s16 offen offset:{16*(g-1)} {OUTFL}")
            stamp("f")
    stamp()
    stamp_out()
    a("s_endpgm")


for n in range(FH_POLL):
    conv_group(n, [])
a(F_CMP)
a("s_cbranch_vccnz L_late")
a.fork("h")
keep = (dict(tok), dict(ltok), nstamp[0])
finish(True)
a("L_late:")
a.other("h")
tok.clear(); tok.update(keep[0]); ltok.clear(); ltok.update(keep[1]); nstamp[0] = keep[2]
finish(False)


a.reset()
NC_LOAD = f"global_load_dword v202, v203, s[{sDbg}:{sDbg+1}] sc1"
NC_CMP = "v_cmp_eq_u32 vcc, 0, v202"
shq = "s59"
a(f"""
L_helper:
s_lshl_b32 {shq}, {sxcd}, 2
s_add_u32 {shq}, {shq}, {sj}
v_mov_b32 v203, 0
v_lshrrev_b32 v1, 2, v255
s_lshl_b32 s83, {shq}, 2
s_add_u32 s83, s83, {sw}
s_lshl_b32 s72, s83, 4
v_add_u32 v4, s72, v1
v_mul_u32_u24 v5, 896, v4
v_and_b32 v2, 3, v255
v_lshl_add_u32 v5, v2, 4, v5
s_lshr_b32 s73, {sxcd}, 1
s_lshl_b32 s73, s73, 2
s_add_u32 s60, s73, {sj}
s_min_u32 s73, s60, 13
s_and_b32 s74, {sxcd}, 1
s_mul_i32 s74, s74, 14
s_add_u32 s61, s73, s74
s_lshr_b32 s73, s61, 1
s_lshl_b32 s82, s73, 8
v_lshrrev_b32 v6, 4, v255
s_lshl_b32 s75, {sw}, 2
v_add_u32 v6, s75, v6
v_mul_u32_u24 v7, 3584, v6
v_and_b32 v3, 15, v255
v_lshl_add_u32 v7, v3, 4, v7
s_mov_b32 s72, {WS_EP}
s_waitcnt lgkmcnt(0)
""")
if STAMP:
    a("v_mov_b32 v254, 0\nv_writelane_b32 v254, s100, 0")
    nstamp[0] = 1
stamp(SEL[0])
a(f"""
s_mov_b32 s36, s{sX}
s_mov_b32 s37, s{sX+1}
s_mov_b32 s48, s{sWs}
s_mov_b32 s49, s{sWs+1}
buffer_load_dword v202, v203, {rWs}, s72 offen sc1
""")
for i in range(14):
    a(f"buffer_load_dwordx4 v[{8+4*i}:{11+4*i}], v5, {rX}, 0 offen offset:{64*i}")
a(f"""
s_mov_b32 s73, 1664525
v_mul_lo_u32 v202, v202, s73
s_cmp_eq_u32 s83, 127
v_add_u32 v202, 1013904225, v202
v_or_b32 v202, 1, v202
s_cbranch_scc0 L_hnoep
s_mov_b64 exec, 1
""")
a.items.append(("raw", f"    global_store_dword v203, v202, s[{sDbg}:{sDbg+1}] sc1"))
a.items.append(("raw", f"    buffer_store_dword v202, v203, {rWs}, s72 offen sc1"))
a(f"""
s_mov_b64 exec, -1
L_hnoep:
s_bitcmp1_b32 s61, 0
s_cselect_b32 s40, s{sWu}, s{sWg}
s_cselect_b32 s41, s{sWu+1}, s{sWg+1}
""")
wl = [f"buffer_load_dwordx4 v[{72+4*i}:{75+4*i}], v7, {rW}, s82 offen\ns_add_u32 s82, s82, {16*3584}" for i in range(28)]
HW0 = opt('hw0', 0)
put(wl[:HW0])
wl = wl[HW0:]
a(f"""
s_mov_b32 s76, 0x3f803f80
s_mov_b32 s77, 0x00003f80
s_mov_b32 s79, 0x3f800000
""")
for _ in range(opt('dhelp', 0)):
    a("s_sleep 16")
EXACT = "--noexact" not in sys.argv
L = []
for i in range(56):
    c0, c1 = ("0", "0") if i == 0 else ("v64", "v68")
    L.append([f"v_dot2_f32_bf16 v64, v{8+i}, s76, {c0}", f"v_dot2_f32_bf16 v68, v{8+i}, v{8+i}, {c1}"])
HW1 = opt('hw1', 0)
put(L[0] + weave(L[1:], wl[:HW1]))
wl = wl[HW1:]
stamp()
a(f"""
v_add_f32_dpp v64, v64, v64 quad_perm:[1,0,3,2] row_mask:0xf bank_mask:0xf
v_add_f32_dpp v68, v68, v68 quad_perm:[1,0,3,2] row_mask:0xf bank_mask:0xf
v_lshlrev_b32 v4, 3, v4
v_add_f32_dpp v64, v64, v64 quad_perm:[2,3,0,1] row_mask:0xf bank_mask:0xf
v_add_f32_dpp v68, v68, v68 quad_perm:[2,3,0,1] row_mask:0xf bank_mask:0xf
v_mul_f32 v64, {hex(0x3b124925)}, v64
v_mul_f32 v68, {hex(0x3b124925)}, v68
v_fma_f32 v68, -v64, v64, v68
v_cvt_pk_bf16_f32 v64, -v64, -v64
v_max_f32 v68, 0, v68
v_cvt_pk_bf16_f32 v68, v68, v68
v_and_b32 v68, {sMask}, v68
v_add_f32 v68, 0x3727c5ac, v68
v_cvt_pk_bf16_f32 v68, v68, v68
v_and_b32 v68, {sMask}, v68
v_sqrt_f32 v68, v68
v_and_b32 v66, {sMask}, v64
v_cvt_pk_bf16_f32 v68, v68, v68
v_and_b32 v68, {sMask}, v68
v_rcp_f32 v70, v68
s_mov_b32 s74, {WS_ST}
v_fma_f32 v71, -v68, v70, 1.0
v_fma_f32 v70, v70, v71, v70
v_mul_f32 v65, v70, v70
v_mul_f32 v71, v66, v70
s_mov_b32 s80, 0x11111111
s_mov_b32 s81, 0x11111111
s_mov_b64 exec, s[80:81]
buffer_store_dwordx2 v[64:65], v4, {rWs}, s74 offen sc1
s_mov_b64 exec, -1
v_mul_u32_u24 v5, 960, v1
s_mul_i32 s75, {sw}, {16*960}
v_lshl_add_u32 v5, v2, 4, v5
v_add_u32 v5, s75, v5
""")
L2B = 64 * 960
L3B = L2B + 448 * 144
a(f"""
v_lshrrev_b32 v1, 5, v255
v_bfe_u32 v2, v255, 2, 2
v_lshl_add_u32 v2, v1, 3, v2
v_mul_u32_u24 v2, 960, v2
v_bfe_u32 v4, v255, 4, 1
v_lshl_add_u32 v2, v4, 5, v2
v_and_b32 v4, 3, v255
v_lshl_add_u32 v2, v4, 3, v2
v_add_u32 v194, s75, v2
v_and_b32 v4, 31, v255
v_mul_u32_u24 v4, 144, v4
s_lshl_b32 s74, {sw}, 5
s_add_u32 s74, s74, {L2B}
v_lshl_add_u32 v4, v1, 4, v4
v_add_u32 v195, s74, v4
v_lshlrev_b32 v6, 9, v6
v_lshl_add_u32 v6, v3, 5, v6
v_add_u32 v6, {L3B}, v6
v_lshrrev_b32 v1, 3, v255
v_and_b32 v2, 7, v255
v_lshlrev_b32 v2, 4, v2
v_mul_u32_u24 v197, {XTS}, v1
v_add_u32 v197, v197, v2
v_mul_u32_u24 v1, 144, v1
v_add_u32 v1, v1, v2
s_mul_i32 s74, {sw}, {112*144}
s_add_u32 s74, s74, {L2B}
v_add_u32 v196, s74, v1
s_lshl_b32 s74, {shq}, 7
s_mul_i32 s75, {sw}, {112*XTS}
s_add_u32 s74, s74, s75
s_add_u32 s62, s74, {WS_XT}
s_and_b32 s75, {sw}, 1
s_lshl_b32 s75, s75, 8
v_lshl_add_u32 v2, v255, 2, s75
v_add_u32 v198, {L3B}, v2
""")


L = []
for i in range(56):
    t = 186 + 2 * (i % 4)
    if EXACT:
        g = [f"v_dot2_f32_bf16 v{t}, v{8+i}, s77, v66", f"v_dot2_f32_bf16 v{t+1}, v{8+i}, s79, v66"]
        if i > 0:
            p = 186 + 2 * ((i - 1) % 4)
            g += [f"v_cvt_pk_bf16_f32 v{7+i}, v{p}, v{p+1}", f"v_lshlrev_b32 v{p}, 16, v{7+i}", f"v_and_b32 v{p+1}, {sMask}, v{7+i}",
                  f"v_pk_mul_f32 v[{p}:{p+1}], v[{p}:{p+1}], v[70:71] op_sel_hi:[1,0]", f"v_cvt_pk_bf16_f32 v{7+i}, v{p}, v{p+1}"]
            if i % 4 == 0:
                g.append(f"ds_write_b128 v5, v[{4+i}:{7+i}] offset:{64*(i//4-1)}")
        if i == 55:
            g += ["s_nop 0", f"v_cvt_pk_bf16_f32 v63, v{t}, v{t+1}", f"v_lshlrev_b32 v{t}, 16, v63", f"v_and_b32 v{t+1}, {sMask}, v63",
                  f"v_pk_mul_f32 v[{t}:{t+1}], v[{t}:{t+1}], v[70:71] op_sel_hi:[1,0]", f"v_cvt_pk_bf16_f32 v63, v{t}, v{t+1}",
                  f"ds_write_b128 v5, v[60:63] offset:{64*13}"]
    else:
        g = [f"v_lshlrev_b32 v{t}, 16, v{8+i}", f"v_and_b32 v{t+1}, {sMask}, v{8+i}",
             f"v_pk_fma_f32 v[{t}:{t+1}], v[{t}:{t+1}], v[70:71], v[70:71] op_sel:[0,0,1] op_sel_hi:[1,0,1]",
             f"v_cvt_pk_bf16_f32 v{8+i}, v{t}, v{t+1}"]
        if i % 4 == 3:
            g.append(f"ds_write_b128 v5, v[{8+i-3}:{8+i}] offset:{64*(i//4)}")
    L.append(g)
HW2 = opt('hw2', 10)
put(weave(L, wl[:HW2]))
wl = wl[HW2:]
stamp()
if WM:
    a(f"""
s_mul_i32 s74, s83, {98*128}
v_min_u32 v199, 48, v255
v_lshlrev_b32 v199, 7, v199
v_add_u32 v199, s74, v199
global_load_dword v200, v199, s[{sWd}:{sWd+1}]
global_load_dword v201, v199, s[{sWd}:{sWd+1}] offset:{0}
""".replace("global_load_dword v201, v199, s[28:29] offset:0", f"v_add_u32 v199, {49*128}, v199\nglobal_load_dword v201, v199, s[28:29]"))
HW3 = opt('hw3', 99)
put(wl[:min(HW3, 12)])
wl2 = wl[min(HW3, 12):HW3]
wl = wl[HW3:]
for b in range(14):
    a(f"ds_read_b64_tr_b16 v[{8+4*b}:{9+4*b}], v194 offset:{64*b}\nds_read_b64_tr_b16 v[{10+4*b}:{11+4*b}], v194 offset:{64*b+4*960}")
cs = []
for i in range(28):
    for d in range(4):
        c0, c1 = ("0", "0") if i == 0 else (f"v{64+2*d}", f"v{65+2*d}")
        cs += [f"v_dot2_f32_bf16 v{64+2*d}, v{72+4*i+d}, s77, {c0}", f"v_dot2_f32_bf16 v{65+2*d}, v{72+4*i+d}, s79, {c1}"]
NC0 = opt('nc0', 0)
put(weave([f"ds_write_b128 v195, v[{8+4*b}:{11+4*b}] offset:{32*144*b}" for b in range(14)], wl2 + cs[:NC0]))
a(f"{NC_LOAD}\ns_waitcnt lgkmcnt(0)\ns_barrier")
stamp()
for b in range(14):
    a(f"ds_read_b128 v[{8+4*b}:{11+4*b}], v196 offset:{8*144*b}")
put(weave([f"buffer_store_dwordx4 v[{8+4*b}:{11+4*b}], v197, {rWs}, s62 offen sc1\ns_add_u32 s62, s62, {8*XTS}" for b in range(14)], [] if wl else cs[NC0:]))
if wl:
    put(wl + cs[NC0:])
a("""
ds_write_b128 v6, v[64:67]
ds_write_b128 v6, v[68:71] offset:16
s_waitcnt lgkmcnt(0)
s_barrier
""")
stamp()
for r in range(16):
    a(f"ds_read_b32 v{72+r}, v198 offset:{512*r}")
for st_ in (8, 4, 2, 1):
    for r in range(st_):
        a(f"v_add_f32 v{72+r}, v{72+r}, v{72+r+st_}")
a(f"""
v_cvt_pk_bf16_f32 v73, v72, v72
v_and_b32 v73, {sMask}, v73
v_sub_f32 v74, v72, v73
v_cvt_pk_bf16_f32 v73, v73, v74
s_lshl_b32 s74, s61, 9
s_add_u32 s74, s74, {WS_CS}
s_cmp_lt_u32 s60, 14
s_cselect_b32 s74, s74, {WS_SIZE}
s_cmp_lt_u32 {sw}, 2
s_cselect_b32 s74, s74, {WS_SIZE}
buffer_store_dword v73, v2, {rWs}, s74 offen sc1
""")
stamp()
poll("hnc", NC_LOAD, NC_CMP)
a(f"""
v_mul_u32_u24 v1, {FSP}, v255
s_lshl_b32 s74, {shq}, 2
s_add_u32 s74, s74, {WS_FL}
s_waitcnt vmcnt(0)
s_barrier
s_cmp_eq_u32 {sw}, 0
s_cbranch_scc0 L_hdone
s_mov_b64 exec, 0xff
buffer_store_dword v202, v1, {rWs}, s74 offen sc1
s_mov_b64 exec, -1
L_hdone:
""")
stamp()
stamp_out()
a("L_end:\ns_endpgm")
for sp in slow:
    a.reset()
    a(sp)
a("L_codeend:\ns_endpgm")

body = a.render()
here = os.path.dirname(os.path.abspath(__file__))
ref = open(os.path.join(here, "..", "cdna_kernels", NAME + ".s.ref")).read()
head = [l for l in ref.split("\n") if l.startswith(";") and "@launch" not in l and "Override" not in l and "grid=ceil" not in l]
txt = "\n".join(head) + f"""
; Generated by tools/gen.py (hand-written generator).  XTS={XTS} YS={YS} TAG=1
; @launch grid=(256,1,1) block=(256,1,1) lds=163840
.amdgcn_target "amdgcn-amd-amdhsa--gfx950"
.text
.globl {NAME}_kernel
.p2align 8
.type {NAME}_kernel,@function
{NAME}_kernel:
{body}
.section .rodata,"a"
.p2align 6
.amdhsa_kernel {NAME}_kernel
  .amdhsa_next_free_vgpr 512
  .amdhsa_next_free_sgpr 102
  .amdhsa_accum_offset 256
  .amdhsa_group_segment_fixed_size 0
  .amdhsa_kernarg_size 128
  .amdhsa_user_sgpr_count 2
  .amdhsa_user_sgpr_kernarg_segment_ptr 1
  .amdhsa_system_sgpr_workgroup_id_x 1
.end_amdhsa_kernel
"""
out = [x for x in sys.argv[1:] if not x.startswith("--")]
path = out[0] if out else os.path.join(here, "..", "cdna_kernels", NAME + ".s")
open(path, "w").write(txt)
print(path, a.stats, file=sys.stderr)
```

```python
import sys, os
sys.path.insert(0, os.path.dirname(os.path.abspath(__file__)))
from asmdsl import Asm

NAME = "parallel_sum__ssm_conv_s4__glu_gated_reglu__prompt"
STAMP = "--stamp" in sys.argv


def opt(name, dflt):
    v = [x.split('=')[1] for x in sys.argv if x.startswith('--' + name + '=')]
    return type(dflt)(v[0]) if v else dflt


WS_H, WS_XT, WS_Y = 0x0, 0x700000, 0x900000
XTS, YS = 4096 + opt('xtp', 128), 8192 + opt('yp', 128)
WS_ST, WS_CS = 0xB00000, 0xB04000
WS_FH, WS_FY, WS_FL, WS_EP = 0xB10000, 0xB20000, 0xB28000, 0xB2C000
WS_TS = 0xB30000
WS_SIZE = 0xB80000
FSP = 1024
SLOT = [0, 16384, 32768, 49152]
XB = 32768
SC = 147456
UB = 33536
U1_OFF = 4640
U_CH = 9280
KC0, KC_CH, KC_CP = 16, 16656, 4160
YX = 32768
RX = 65536
XR = 49152
PS = [SC] + [XB + k * 16384 for k in range(2, 7)]
SPIN = 200000
FHW_AT, FH_AT, FH_POLL = opt('fhw', 2), opt('fh', 16), opt('fhp', 20)
FYW_AT, FY_AT, FY_POLL = opt('fyw', 8), opt('fy', 21), opt('fyp', 26)
FL_AT, FL_POLL = opt('fl', 20), opt('flp', 23)
OUTFL = 'sc1' if '--outsc1' in sys.argv else ''
SEL = opt('sel', 'a')
CV = opt('cv', 20)
PAT = opt('pat', 0)
WG = opt('wg', 4)

sX, sAre, sAim, sBre, sBim, sCre, sCim, sLdt, sDsk = 4, 6, 8, 10, 12, 14, 16, 18, 20
sWg, sWu, sWd, sOut, sDbg, sWs = 24, 26, 28, 30, 32, 34
rX, rW, rWd, rWs, rOut = "s[36:39]", "s[40:43]", "s[44:47]", "s[48:51]", "s[52:55]"
sw, sxcd, sj, sr1, sc1_, sjc, sr2, sc2, snonce = "s56", "s57", "s58", "s59", "s60", "s61", "s62", "s63", "s64"
sWoff, sWdoff, sDs, scnt = "s65", "s66", "s67", "s68"
sq, sXoff, sw4k, sWl, sMask = "s69", "s72", "s73", "s77", "s78"
sFL, stg, sUl, sUg, sH0, sH1, sKC, sHoff = "s80", "s81", "s82", "s83", "s86", "s87", "s88", "s89"
sST, sCS, sFHw, sFHr, sY = "s90", "s91", "s92", "s93", "s94"
sOdd = "s[22:23]"

vKC, vKZ, vUZ, vKX, vXR, vXD, vWD, vWF, vKL = 160, 168, 169, 170, 172, 180, 184, 188, 190
vDD, vDF, vCU, vCK, vN4, vN8, vCS, vF, vYW, vYR, vFH, vH = 200, 204, 208, 209, 210, 211, 212, 213, 214, 215, 217, 218
fC, fR, fKG, fQ, fG, vNo, vZ, vL16 = 220, 221, 222, 223, 226, 224, 225, 250

a = Asm()
slow = []
nstamp = [0]
tok, ltok = {}, {}


def stamp(kind="a"):
    if not STAMP or kind not in SEL:
        return
    k = nstamp[0]
    nstamp[0] += 1
    if k > 1:
        a.items.append(("raw", f"    v_writelane_b32 v254, s98, {k-1}"))
    a.items.append(("raw", f"    {CLK} s[98:99]"))


def poll(name, load, cmp_):
    a(cmp_)
    a(f"s_cbranch_vccnz L_slow_{name}")
    a(f"L_back_{name}:")
    slow.append(f"""L_slow_{name}:
s_mov_b32 {scnt}, 0
L_retry_{name}:
s_add_u32 {scnt}, {scnt}, 1
s_cmp_gt_u32 {scnt}, {SPIN}
s_cbranch_scc1 L_back_{name}
s_sleep 1
{load}
s_waitcnt vmcnt(0)
{cmp_}
s_cbranch_vccnz L_retry_{name}
s_branch L_back_{name}""")


def put(items):
    for e in items:
        if isinstance(e, tuple):
            if e[0] == "vt": tok[e[1]] = a.vm_tok()
            if e[0] == "lt": ltok[e[1]] = a.lg_tok()
            if e[0] == "wv": a.wait_vm(tok[e[1]])
            if e[0] == "wl": a.wait_lg(ltok[e[1]])
        else:
            a(e)


def weave(main, extra):
    nreal = sum(1 for e in extra if not isinstance(e, tuple))
    out, k, done = [], 0, 0
    for t, m in enumerate(main):
        out += m if isinstance(m, list) else [m]
        goal = -(-(nreal * (t + 1)) // len(main))
        while k < len(extra) and (isinstance(extra[k], tuple) or done < goal):
            out.append(extra[k])
            done += not isinstance(extra[k], tuple)
            k += 1
    return out


def cost(e):
    if isinstance(e, tuple):
        return 4 if e[0] in ("wv", "wl") else 0
    c = 0
    for l in e.split("\n"):
        op = l.split()[0]
        if op.startswith(("buffer_", "global_")):
            c += CV if "x4" in op else 12
        elif op.startswith("ds_write"):
            c += 28 if "b128" in op or "2_b64" in op else 14
        else:
            c += 4
    return c


def pack(main, extra, cap):
    base = [sum(cost(x) for x in m[1:]) for m in main]
    n, G = len(extra), len(main)
    cs = [cost(e) for e in extra]
    INF = 1 << 60
    best = [[INF] * (n + 1) for _ in range(G + 1)]
    frm = [[0] * (n + 1) for _ in range(G + 1)]
    best[0][0] = 0
    for g in range(G):
        for i in range(n + 1):
            if best[g][i] == INF:
                continue
            load = base[g]
            for j in range(i, n + 1):
                if j > i:
                    load += cs[j - 1]
                v = best[g][i] + 1000 * max(0, load - cap) + load * load // 16
                if v < best[g + 1][j]:
                    best[g + 1][j] = v
                    frm[g + 1][j] = i
    cuts, j = [], n
    for g in range(G, 0, -1):
        cuts.append((frm[g][j], j))
        j = frm[g][j]
    cuts.reverse()
    out = []
    for m, (i, j) in zip(main, cuts):
        out += m + extra[i:j]
    return out


def lines(txt, per=1):
    L = [l for l in txt.strip().split("\n")]
    return ["\n".join(L[i:i + per]) for i in range(0, len(L), per)]


ROT = opt('rot', 0)
HFL = opt('hfl', 'sc1').replace('_', ' ').replace('none', '')


def wrap(reg, step, lim, base):
    return f"s_add_u32 {reg}, {reg}, {step}\ns_cmp_eq_u32 {reg}, {lim}\ns_cselect_b32 {reg}, {base}, {reg}"


def dma4(m0, vo, srd, soff, step, fl=""):
    g = [m0, f"buffer_load_dwordx4 v{vo}, {srd}, {soff} offen {fl} lds"]
    for i in range(1, 4):
        g.append(f"buffer_load_dwordx4 v{vo+i}, {srd}, {soff} offen offset:{1024*i} {fl} lds")
    g.append(f"s_add_u32 {soff}, {soff}, {step}")
    return g


def w_unit(u):
    return dma4(f"s_add_u32 m0, {sWl}, {SLOT[u % 4]}", vWD, rW, sWoff, 32 * 3584)


def x_block(cb):
    return dma4(f"s_add_u32 m0, {sw4k}, {XB+cb*16384}", vXD, rX, sXoff, 128)


def wd_pair(kk):
    g = dma4(f"s_add_u32 m0, {sw4k}, {PS[(kk >> 1) % 6]}", vDD, rWd, sWdoff, 32 * 896)
    if ROT and kk % 4 == 2:
        g[-1] = wrap(sWdoff, 32 * 896, "s9", "s8")
    return g


CLK = "s_memtime" if "--cyc" in sys.argv else "s_memrealtime"
if STAMP:
    a(f"{CLK} s[100:101]")
a(f"""
s_cmp_ge_u32 s2, 256
s_cbranch_scc1 L_end
s_load_dwordx16 s[4:19], s[0:1], 0
s_load_dwordx16 s[20:35], s[0:1], 64
s_getpc_b64 s[70:71]
L_pc:
s_and_b32 {sxcd}, s2, 7
s_lshr_b32 {sj}, s2, 3
v_lshrrev_b32 v1, 6, v0
v_and_b32 v255, 63, v0
v_readfirstlane_b32 {sw}, v1
""")
a(f"""
s_and_b32 {sq}, {sj}, 3
s_lshl_b32 s74, {sq}, 6
v_lshl_add_u32 v2, v1, 4, v255
v_add_u32 v2, s74, v2
v_lshlrev_b32 v2, 7, v2
v_min_u32 v2, L_codeend-L_pc-4, v2
s_mov_b64 exec, 0xffff
{"global_load_dword v253, v2, s[70:71]" if "--nocodepf" not in sys.argv else ""}
s_mov_b64 exec, -1
s_mov_b32 s38, {2048*896}
s_mov_b32 s39, 0x20000
s_mov_b32 s42, {448*3584}
s_mov_b32 s43, 0x20000
s_mov_b32 s50, {WS_SIZE}
s_mov_b32 s51, 0x20000
v_lshlrev_b32 v{vL16}, 4, v255
s_mov_b32 {sMask}, 0xffff0000
s_cmp_lt_u32 {sj}, 4
s_cbranch_scc1 L_helper
""")

a(f"""
s_sub_u32 {sj}, {sj}, 4
s_mul_i32 s74, {sxcd}, 28
s_add_u32 {sjc}, s74, {sj}
s_lshl_b32 s74, {sjc}, 10
s_lshl_b32 s75, {sw}, 8
s_add_u32 s74, s74, s75
v_lshl_add_u32 v4, v255, 2, s74
s_lshr_b32 s79, s74, 9
s_lshl_b32 s74, s79, 1
v_mov_b32 v5, s74
s_lshr_b32 {sc2}, {sj}, 2
s_lshr_b32 s74, {sxcd}, 1
s_lshl_b32 s74, s74, 2
s_add_u32 {sr1}, s74, {sq}
s_lshl_b32 {stg}, {sr1}, 2
s_add_u32 {stg}, {stg}, {sw}
s_mul_i32 {sXoff}, {stg}, {32*896}
s_lshl_b32 {sw4k}, {sw}, 12
s_and_b32 s74, {sxcd}, 1
s_mul_i32 s74, s74, 7
s_add_u32 {sc1_}, s74, {sc2}
s_lshl_b32 {sWoff}, {sc1_}, 8
s_lshr_b32 s84, {sw}, 1
s_and_b32 s85, {sw}, 1
s_lshl_b32 s74, s85, 13
s_lshl_b32 s75, s84, 12
s_add_u32 {sWl}, s74, s75
v_and_b32 v{fC}, 3, v255
v_bfe_u32 v{fR}, v255, 2, 2
v_lshrrev_b32 v{fKG}, 5, v255
v_lshrrev_b32 v{fQ}, 4, v255
v_and_b32 v{fG}, 1, v{fQ}
v_lshrrev_b32 v6, 3, v255
v_mul_u32_u24 v1, 896, v6
v_and_b32 v2, 7, v255
v_xor_b32 v2, v2, v{fQ}
v_lshl_add_u32 v{vXD}, v2, 4, v1
v_xor_b32 v{vXD+1}, 64, v{vXD}
v_add_u32 v{vXD+1}, {8*896-1024}, v{vXD+1}
v_add_u32 v{vXD+2}, {2*(8*896-1024)}, v{vXD}
v_add_u32 v{vXD+3}, {2*(8*896-1024)}, v{vXD+1}
s_lshl_b32 s74, s84, 4
v_add_u32 v1, s74, v{fR}
v_mul_u32_u24 v1, 3584, v1
v_lshl_add_u32 v1, v{fQ}, 6, v1
s_lshl_b32 s76, s85, 1
v_xor_b32 v2, s76, v{fC}
v_lshl_add_u32 v{vWD}, v2, 4, v1
v_add_u32 v{vWD+1}, {4*3584-1024}, v{vWD}
v_add_u32 v{vWD+2}, {2*(4*3584-1024)}, v{vWD}
v_add_u32 v{vWD+3}, {3*(4*3584-1024)}, v{vWD}
""")
if STAMP:
    a("v_mov_b32 v254, 0\ns_waitcnt lgkmcnt(0)\nv_writelane_b32 v254, s100, 0")
    nstamp[0] = 1
stamp(SEL[0])
a(f"""
s_waitcnt lgkmcnt(0)
global_load_ushort v134, v5, s[{sLdt}:{sLdt+1}]
global_load_dword v128, v4, s[{sAre}:{sAre+1}]
global_load_dword v129, v4, s[{sAim}:{sAim+1}]
global_load_dword v130, v4, s[{sBre}:{sBre+1}]
global_load_dword v131, v4, s[{sBim}:{sBim+1}]
global_load_dword v132, v4, s[{sCre}:{sCre+1}]
global_load_dword v133, v4, s[{sCim}:{sCim+1}]
global_load_ushort v135, v5, s[{sDsk}:{sDsk+1}]
s_mov_b32 s36, s{sX}
s_mov_b32 s37, s{sX+1}
s_bitcmp1_b32 {sw}, 0
s_cselect_b32 s40, s{sWu}, s{sWg}
s_cselect_b32 s41, s{sWu+1}, s{sWg+1}
s_cselect_b64 {sOdd}, -1, 0
""")
if "--tlb" in sys.argv:
    a(f"""
v_min_u32 v14, 5, v255
v_lshlrev_b32 v14, 21, v14
v_mov_b32 v15, 0
s_mov_b64 exec, 0x3f
global_load_dword v152, v14, s[{sWs}:{sWs+1}]
s_mov_b64 exec, 1
global_load_dword v153, v15, s[{sOut}:{sOut+1}]
global_load_dword v154, v15, s[{sWd}:{sWd+1}]
global_load_dword v155, v15, s[{sDbg}:{sDbg+1}]
s_mov_b64 exec, -1
""")
LATE = opt('late', 2)
first_dma = x_block(0) + w_unit(0) + [("vt", "u0")]
if not LATE:
    put(first_dma)
a(f"""
s_add_u32 s74, {sw4k}, {SC}
v_add_u32 v{vKX}, s74, v{vL16}
v_xor_b32 v{vKX+1}, 4096, v{vKX}
v_bfe_u32 v1, v255, 1, 2
v_lshlrev_b32 v7, 4, v1
v_lshl_add_u32 v7, v255, 6, v7
v_add_u32 v{vKL}, s74, v7
v_xor_b32 v{vKL+1}, 16, v{vKL}
v_xor_b32 v{vKL+2}, 32, v{vKL}
v_xor_b32 v{vKL+3}, 48, v{vKL}
v_lshl_add_u32 v7, v{fKG}, 3, v{fR}
v_lshlrev_b32 v7, 6, v7
v_bfe_u32 v8, v255, 1, 1
v_lshl_add_u32 v8, v{fG}, 1, v8
v_lshrrev_b32 v9, 1, v{fR}
v_xor_b32 v8, v8, v9
v_lshl_add_u32 v7, v8, 4, v7
v_and_b32 v10, 1, v255
v_lshl_add_u32 v7, v10, 3, v7
v_add_u32 v{vKL+4}, s74, v7
v_xor_b32 v{vKL+5}, 32, v{vKL+4}
v_add_u32 v{vKL+5}, 256, v{vKL+5}
s_lshl_b32 s76, s85, 5
v_xor_b32 v{vKL+6}, s76, v{vKL+4}
v_xor_b32 v{vKL+7}, s76, v{vKL+5}
v_and_b32 v11, 31, v255
v_bfe_u32 v12, v255, 1, 3
v_xor_b32 v7, v12, v{fKG}
v_lshlrev_b32 v7, 4, v7
v_lshl_add_u32 v7, v11, 7, v7
s_add_u32 s74, {sw4k}, {XB}
v_add_u32 v{vXR}, s74, v7
v_xor_b32 v{vXR+1}, 32, v{vXR}
v_xor_b32 v{vXR+2}, 64, v{vXR}
v_xor_b32 v{vXR+3}, 96, v{vXR}
v_add_u32 v{vXR+4}, 0x10000, v{vXR}
v_add_u32 v{vXR+5}, 0x10000, v{vXR+1}
v_add_u32 v{vXR+6}, 0x10000, v{vXR+2}
v_add_u32 v{vXR+7}, 0x10000, v{vXR+3}
v_lshlrev_b32 v13, 3, v{fC}
v_lshl_add_u32 v13, v{fR}, 6, v13
v_mul_u32_u24 v7, {8192+32}, v{fG}
v_lshl_add_u32 v7, v{fKG}, 11, v7
v_add_u32 v{vWF}, v7, v13
v_xor_b32 v{vWF+1}, 32, v{vWF}
v_lshl_add_u32 v7, v{fG}, 5, v13
v_lshl_add_u32 v7, v{fKG}, 9, v7
s_lshl_b32 s74, s85, 8
s_add_u32 s74, s74, {sw4k}
s_add_u32 s74, s74, 65536
v_add_u32 v{vDF}, s74, v7
v_xor_b32 v{vDF+1}, 256, v{vDF}
v_add_u32 v{vDF+2}, 0x10000, v{vDF}
v_add_u32 v{vDF+3}, 0x10000, v{vDF+1}
s_mul_i32 s74, {sw}, 448
v_lshl_add_u32 v7, v{fKG}, 2, v{fR}
v_add_u32 v7, s74, v7
v_mul_u32_u24 v7, 896, v7
v_lshl_add_u32 v7, v{fG}, 6, v7
v_lshl_add_u32 v{vDD}, v{fC}, 4, v7
v_add_u32 v{vDD+1}, {8*896-1024}, v{vDD}
v_add_u32 v{vDD+2}, {2*(8*896-1024)}, v{vDD}
v_add_u32 v{vDD+3}, {3*(8*896-1024)}, v{vDD}
v_lshlrev_b32 v{vN4}, 2, v11
v_lshlrev_b32 v{vN8}, 3, v11
""")
setup2 = lines(f"""s_mul_i32 {sKC}, s84, {KC_CH}
s_add_u32 {sKC}, {sKC}, {KC0}
s_lshl_b32 s74, s85, 10
s_sub_u32 s74, {sKC}, s74
s_add_u32 s74, s74, {16*255-12}
v_sub_u32 v{vKC}, s74, v{vL16}
v_add_u32 v{vKC+1}, {KC_CP+4}, v{vKC}
v_add_u32 v{vKC+2}, {2*(KC_CP+4)}, v{vKC}
v_add_u32 v{vKC+3}, {3*(KC_CP+4)}, v{vKC}
v_lshlrev_b32 v7, 9, v{fKG}
v_sub_u32 v7, v{vKC}, v7
s_mul_i32 s74, s85, 1536
s_sub_u32 s74, 2560, s74
v_subrev_u32 v{vKC+4}, s74, v7
v_add_u32 v{vKC+5}, {KC_CP+4}, v{vKC+4}
v_add_u32 v{vKC+6}, {2*(KC_CP+4)}, v{vKC+4}
v_add_u32 v{vKC+7}, {3*(KC_CP+4)}, v{vKC+4}
v_and_b32 v11, 15, v255
v_mul_u32_u24 v7, {KC_CP+4}, v{fQ}
v_lshl_add_u32 v7, v11, 2, v7
v_add_u32 v{vKZ}, {sKC}, v7
v_lshlrev_b32 v7, 2, v11
v_lshlrev_b32 v{vCS}, 2, v{vN4}
v_min_u32 v7, 52, v7
v_mul_u32_u24 v8, {FSP}, v{fG}
v_add_u32 v{vFH}, v7, v8
s_mul_i32 s75, s84, {U_CH}
s_add_u32 s75, s75, {UB}
s_mul_i32 s74, s85, {U1_OFF}
s_add_u32 s74, s74, s75
v_min_u32 v7, 55, v255
v_lshl_add_u32 v{vUZ}, v7, 3, s74
s_lshl_b32 s74, s85, 11
s_add_u32 {sUl}, s75, s74
s_mul_i32 {sUg}, s79, {XTS}
s_add_u32 {sUg}, {sUg}, s74
s_add_u32 {sUg}, {sUg}, {WS_XT}
v_mul_u32_u24 v7, {U1_OFF}, v10
v_lshl_add_u32 v7, v12, 6, v7
v_lshl_add_u32 v7, v{fQ}, 4, v7
s_lshl_b32 s74, s85, 6
s_sub_u32 s75, s75, s74
s_add_u32 s75, s75, {448-384}
v_add_u32 v{vCU}, s75, v7
v_mul_u32_u24 v7, {KC_CP}, v{fC}
v_sub_u32 v8, v{fQ}, v{fR}
v_lshl_add_u32 v7, v8, 4, v7
s_sub_u32 s74, {sKC}, s74
s_add_u32 s74, s74, {16*255-64*62}
v_add_u32 v{vCK}, s74, v7
s_lshl_b32 s74, {sw}, 10
s_add_u32 s74, s74, {YX}
v_add_u32 v{vYW}, s74, v{vL16}
v_lshlrev_b32 v7, 8, v1
v_lshl_add_u32 v7, v6, 5, v7
v_lshl_add_u32 v7, v10, 3, v7
s_lshl_b32 s74, {sw}, 13
s_add_u32 s75, s74, {YX+4096}
v_add_u32 v{vYR}, s75, v7
s_add_u32 s74, s74, 8192
s_and_b32 s74, s74, 0x7fff
s_add_u32 s74, s74, {YX}
v_add_u32 v{vYR+1}, s74, v7
s_mul_i32 s74, s84, {112*1024}
v_add_u32 v{vH}, s74, v{vL16}
s_sub_u32 s74, {112*1024}, s74
v_add_u32 v{vH+1}, s74, v{vL16}
v_mov_b32 v{vZ}, 0
s_lshl_b32 s74, {sxcd}, 2
s_add_u32 {sr2}, s74, {sq}
s_lshl_b32 s74, {sr2}, 1
s_add_u32 s74, s74, s84
s_lshl_b32 s97, s74, 5
s_lshl_b32 s74, {sc2}, 1
s_add_u32 s74, s74, s85
s_lshl_b32 s17, s74, 6
s_mul_i32 s74, s97, 896
s_add_u32 s16, s74, s17
v_lshrrev_b32 v7, 2, v255
v_mul_u32_u24 v7, 896, v7
v_xor_b32 v8, v{fC}, v{fQ}
v_lshl_add_u32 v227, v8, 4, v7""")
put(setup2[:opt('s2', len(setup2))])
setup2 = setup2[opt('s2', len(setup2)):]
a(f"""
v_lshlrev_b32 v134, 16, v134
v_mul_f32 v134, 0x3fb8aa3b, v134
v_exp_f32 v134, v134
v_cvt_pk_bf16_f32 v134, v134, v134
v_lshlrev_b32 v134, 16, v134
""")
stamp()

PA = [64, 96]
PB = 8
KF = [(160, 176, 192, 208), (224, 240, 80, 96)]
R1, R8, E, T = 146, [148, 150], 0, 2
l1s = [0, 1, 2, 3, 4, 5, 6, 7, 8, 256, 258, 260, 262, 264, 512, 516, 520, 768, 772, 776,
       1024, 1032, 1280, 1288, 1536, 1544, 1792, 1800]
ra = {l: 8 + 2 * i for i, l in enumerate(l1s)}
cols = [0, 1, 2, 3, 256, 256, 258, 260, 4, 5, 6, 7, 260, 260, 262, 264,
        512, 516, 520, 1024, 768, 772, 776, 1536, 1032, 1280, 1288, 1288, 1544, 1792, 1800, 1800]


def cmul(d, x, r, t):
    return [f"v_pk_mul_f32 v[{t}:{t+1}], v[{x}:{x+1}], v[{r}:{r+1}] op_sel_hi:[1,0]",
            f"v_pk_fma_f32 v[{d}:{d+1}], v[{x}:{x+1}], v[{r}:{r+1}], v[{t}:{t+1}] op_sel:[1,1,0] op_sel_hi:[0,1,1] neg_lo:[1,0,0]"]


def k_write(ck, i, cq):
    P = (PA[ck] + 16 * i) if i < 2 else (PB + 16 * (i - 2))
    return f"ds_write_b128 v{vKL+cq}, v[{P+4*cq}:{P+4*cq+3}]"


def k_reads(ck, i):
    fr = KF[ck][i]
    base = vKL + 6 if i < 2 else vKL + 4
    return "\n".join(f"ds_read_b64_tr_b16 a[{fr+4*s+2*rd}:{fr+4*s+2*rd+1}], v{base+rd} offset:{1024*s}"
                     for s in range(4) for rd in range(2))


def kgen_head(ck):
    L = []
    un = (lambda d, s: f"v_lshlrev_b32 v{d}, 16, v{s}") if ck == 0 else (lambda d, s: f"v_and_b32 v{d}, {sMask}, v{s}")
    L += [un(136 + i, 128 + i) for i in range(6)]
    L += ["v_mul_f32 v142, v134, v136", "v_mul_f32 v143, v134, v137",
          "v_mul_f32 v142, 0x3fb8aa3b, v142", "v_mul_f32 v143, 0.15915494, v143"]

    def ev(d, l):
        s = []
        if l == 1:
            s += ["v_exp_f32 v144, v142", "v_fract_f32 v145, v143"]
        else:
            f = {8: "0x41000000", 256: "0x43800000"}[l]
            s += [f"v_mul_f32 v144, {f}, v142", f"v_mul_f32 v145, {f}, v143", "v_exp_f32 v144, v144", "v_fract_f32 v145, v145"]
        s += [f"v_cos_f32 v{d}, v145", f"v_sin_f32 v{d+1}, v145"]
        return s, f"v_pk_mul_f32 v[{d}:{d+1}], v[{d}:{d+1}], v[144:145] op_sel_hi:[1,0]"
    wm = cmul(ra[0], 140, 138, T) + [f"v_pk_mul_f32 v[{ra[0]}:{ra[0]+1}], v[{ra[0]}:{ra[0]+1}], v[134:135] op_sel_hi:[1,0]"]
    for (d, l), fill in zip(((R1, 1), (R8[ck], 8), (E, 256)), wm):
        s, last = ev(d, l)
        L += s + [fill, last]
    for l in range(1, 9):
        L += cmul(ra[l], ra[l - 1], R1, T)
    for l in l1s[9:]:
        L += cmul(ra[l], ra[l - 256], E, T)
    for k in range(16):
        c0, c1 = ra[cols[2 * k]], ra[cols[2 * k + 1]]
        L += [f"v_cvt_pk_bf16_f32 v{PA[ck]+k}, v{c0}, v{c1}", f"v_cvt_pk_bf16_f32 v{PA[ck]+16+k}, -v{c0+1}, -v{c1+1}"]
    return L


def kgen_chain(ck):
    r8 = R8[ck]
    rb = lambda j: r8 if j == 1 else 4 + 2 * (j % 2)
    B = [f"v_cvt_pk_bf16_f32 v{PB}, 1.0, v{r8}", f"v_cvt_pk_bf16_f32 v{PB+16}, 0, v{r8+1}"]
    for j in range(2, 32):
        B += cmul(rb(j), rb(j - 1), r8, T)
        if j % 2:
            B += [f"v_cvt_pk_bf16_f32 v{PB+j//2}, v{rb(j-1)}, v{rb(j)}",
                  f"v_cvt_pk_bf16_f32 v{PB+16+j//2}, v{rb(j-1)+1}, v{rb(j)+1}"]
    return B


def k_pass(ck, i):
    return [k_write(ck, i, cq) for cq in range(4)] + [k_reads(ck, i)]


def at(stream, items):
    out = []
    for i, x in enumerate(stream):
        out += [y for p, y in items if p == i]
        out.append(x)
    return out + [y for p, y in items if p >= len(stream)]


def kgen_mfma(ck):
    f = KF[ck]
    return [f"v_mfma_f32_32x32x16_bf16 a[144:159], a[{f[s>>2]+4*(s&3)}:{f[s>>2]+4*(s&3)+3}], "
            f"a[{f[2+(s>>2)]+4*(s&3)}:{f[2+(s>>2)]+4*(s&3)+3}], "
            + ("0" if (ck == 0 and s == 0) else "a[144:159]") for s in range(8)]


def x_read(s):
    cb = s >> 2
    return f"ds_read_b128 a[{4*s}:{4*s+3}], v{vXR + (0 if cb < 4 else 4) + (s & 3)} offset:{(cb % 4)*16384}"


WM = opt('wm', 0)
if WM == 0:
    warm = [f"""s_cmp_eq_u32 {sw}, 0
s_cselect_b32 s12, s{sWg}, s{sWu}
s_cselect_b32 s13, s{sWg+1}, s{sWu+1}
s_cmp_lt_u32 {sw}, 2
s_cselect_b32 s12, s12, s{sWd}
s_cselect_b32 s13, s13, s{sWd+1}
s_mul_i32 s74, {sjc}, {56*128}
v_min_u32 v251, 55, v255
v_lshl_add_u32 v251, v251, 7, s74
global_load_dword v252, v251, s[12:13]"""]
else:
    warm = [f"""s_lshl_b32 s74, {sjc}, 1
s_add_u32 s74, s74, s84
s_mul_i32 s74, s74, 3584
v_min_u32 v251, 27, v255
v_lshlrev_b32 v251, 7, v251
s_mov_b64 exec, 0xfffffff
buffer_load_dword v252, v251, {rW}, s74 offen
s_mov_b64 exec, -1"""]
for _ in range(opt('dmain', 0)):
    a("s_sleep 16")
stamp("k")
early = x_block(1) + [("vt", "x1")] + w_unit(1) + [("vt", "u1")]
if LATE == 1:
    put(weave(kgen_head(0), first_dma + early))
elif LATE == 2:
    put(weave(kgen_head(0), first_dma))
    warm = early + warm
elif LATE == 3:
    put(weave(kgen_head(0), first_dma + warm))
    warm = early
else:
    put(weave(kgen_head(0), early))
stamp("k")
XRES = [f"buffer_load_dwordx4 v[242:245], v227, {rX}, s16 offen",
        f"s_add_u32 s74, s16, {16*896}\nbuffer_load_dwordx4 v[246:249], v227, {rX}, s74 offen"]
XRAT = opt('xrat', 0)
if XRAT == 0:
    warm += XRES
put(weave(kgen_head(1), warm))
stamp("ak"[SEL == "k"])
RD = opt('rd', 3)
p0, p1, p2 = k_pass(0, 0), k_pass(0, 1), k_pass(0, 2)
XE = opt('xe', 0)
xe = sum((x_block(cb) + [("vt", f"x{cb}")] for cb in range(2, 2 + XE)), [])
n0 = 7 * opt('xe0', 3)
put(weave(at(kgen_chain(0), list(zip((0, 7, 14, 21, 21 + RD), p0)) + list(zip((30, 37, 44, 51, 51 + RD), p1))
             + list(zip((62, 70, 80, 92), p2))), xe[:n0]))
stamp("k")
p3, q0, q1, q2 = k_pass(0, 3), k_pass(1, 0), k_pass(1, 1), k_pass(1, 2)
ch = kgen_chain(1)
put([p2[4], p3[0], p3[1]] + weave(at(ch[2:], [(0, p3[2]), (4, p3[3]), (4, ch[0]), (4, ch[1]), (4 + RD, p3[4])]
                                      + list(zip((14, 20, 26, 32, 32 + RD), q0)) + list(zip((42, 48, 54, 60, 60 + RD), q1))
                                      + list(zip((70, 76, 82, 90), q2))), xe[n0:]))
stamp("ak"[SEL == "k"])
sc = lines(f"""s_lshl_b32 {sWdoff}, {sc2}, 7
s_mov_b32 s44, s{sWd}
s_mov_b32 s45, s{sWd+1}
s_mov_b32 s46, {1792*896}
s_mov_b32 s47, 0x20000
s_mov_b32 s48, s{sWs}
s_mov_b32 s49, s{sWs+1}
s_mov_b32 s52, s{sOut}
s_mov_b32 s53, s{sOut+1}
s_mov_b32 s54, {2048*896}
s_mov_b32 s55, 0x20000
s_mul_i32 {sFL}, {sxcd}, {FSP}
s_add_u32 {sFL}, {sFL}, {WS_FL}
s_lshl_b32 {sST}, {stg}, 8
s_add_u32 {sST}, {sST}, {WS_ST}
s_lshl_b32 {sCS}, {sc1_}, 10
s_add_u32 {sCS}, {sCS}, {WS_CS}
v_lshlrev_b32 v135, 16, v135""")
lp = k_pass(1, 3)
put(weave(kgen_mfma(0), [q2[4], lp[0]] + sc[:6] + [lp[1]] + sc[6:12] + [lp[2]] + sc[12:]
          + [lp[3], ("wv", "u0")] + [x_read(s) for s in range(4)] + [lp[4]]))
stamp("k")
a("s_waitcnt lgkmcnt(0)")
stamp("k")
a("s_barrier")
stamp("ak"[SEL == "k"])

fillg = {s: [] for s in range(28)}
fillg[2] += lines(f"""v_readfirstlane_b32 {sDs}, v135
s_mul_i32 {sH0}, {stg}, {112*1024}
s_lshl_b32 s74, {sc1_}, 13
s_add_u32 {sH0}, {sH0}, s74
s_add_u32 {sH1}, {sH0}, 4096
s_mul_i32 s74, {stg}, {FSP}
s_lshl_b32 s75, {sc1_}, 2
s_add_u32 s74, s74, s75
s_add_u32 {sFHw}, s74, {WS_FH}""")
fillg[3] += [f"v_accvgpr_read_b32 v{128+r}, a{144+r}" for r in range(8)]
fillg[6] += ["v_accvgpr_read_b32 v148, a157", "v_accvgpr_read_b32 v149, a158",
             "v_add_f32 v148, v148, v145", "v_add_f32 v149, v149, v146"]
fillg[2] += []
fillg[4] += [f"ds_read_b128 v[136:139], v{vKX+1}", f"ds_read_b128 v[140:143], v{vKX+1} offset:1024",
             f"ds_read_b128 v[144:147], v{vKX+1} offset:2048", ("lt", "kr")]
fillg[5] += lines(f"""s_mul_i32 {sFHr}, {sr2}, {2*FSP}
s_add_u32 {sFHr}, {sFHr}, {WS_FH}
s_mul_i32 {sHoff}, {sr2}, {2*112*1024}
s_mul_i32 s74, {sw}, {28*1024}
s_add_u32 {sHoff}, {sHoff}, s74
s_add_u32 {sHoff}, {sHoff}, {16*1024}""")
fillg[7] += [f"v_add_f32 v{128+r}, v{128+r}, v{136+r}" for r in range(8)]
fillg[9] += lines(f"""v_cmp_eq_u32 vcc, 0, v255
v_mov_b32 v140, {sDs}
v_cndmask_b32 v148, v148, v131, {sOdd}
v_cndmask_b32 v149, v149, v132, {sOdd}
v_cndmask_b32 v140, 0, v140, vcc
v_add_f32 v140, v128, v140""")
fillg[11] += lines(f"""s_mov_b32 s74, 0xaaaaaaaa
s_mov_b32 s75, 0xaaaaaaaa
v_cvt_pk_bf16_f32 v144, v149, v149
v_cndmask_b32 v141, v148, v149, s[74:75]
v_cvt_pk_bf16_f32 v146, v148, v148
v_cvt_pk_bf16_f32 v147, v148, v148
v_cvt_pk_bf16_f32 v145, v149, v141""")
fillg[13] += lines(f"""v_cvt_pk_bf16_f32 v136, v135, v134
v_cvt_pk_bf16_f32 v137, v133, v132
v_cvt_pk_bf16_f32 v138, v131, v130
v_cvt_pk_bf16_f32 v139, v129, v140
v_cvt_pk_bf16_f32 v140, v130, v130
v_cvt_pk_bf16_f32 v141, v129, v129
v_cvt_pk_bf16_f32 v142, v129, v128
v_cvt_pk_bf16_f32 v143, v128, v128""")
fillg[15] += [f"v_cndmask_b32 v{136+r}, v{136+r}, v{140+r}, {sOdd}" for r in range(4)]
fillg[17] += lines(f"""s_mul_i32 {sY}, {sjc}, {YS}
s_lshl_b32 s74, {sw}, 11
s_add_u32 {sY}, {sY}, s74
s_add_u32 {sY}, {sY}, {WS_Y}""")
fillg[19] += [f"v_mov_b32 v{r}, 0" for r in (190, 191, 193, 194)]
fillg[21] += [f"v_mov_b32 v{r}, 0" for r in (195, 196, 198, 199)]


def wd_read(kk, r):
    off = PS[(kk >> 1) % 6] - 65536 + (kk & 1) * 2048
    base = vDF if off < 65536 else vDF + 2
    return [f"ds_read_b64_tr_b16 a[{r+4*da+2*rd}:{r+4*da+2*rd+1}], v{base+da} offset:{off % 65536+rd*1024}"
            for da in range(2) for rd in range(2)]


def wd_move(kk):
    return wd_read(kk, 8 * kk)


def wfrag_read(s, t, r):
    off = SLOT[(s >> 1) % 4] + (s & 1) * 4096 + (t >> 1) * 256
    return [f"ds_read_b64_tr_b16 a[{r+2*rd}:{r+2*rd+1}], v{vWF+(t & 1)} offset:{off+rd*1024}" for rd in range(2)]


put(pack([[m] + wfrag_read(0, t, 112 + 4 * t) for t, m in enumerate(kgen_mfma(1))], w_unit(2) + [("vt", "u2")] + fillg[2], 24))
fillg[2] = []
if XE == 0:
    put(x_block(2) + [("vt", "x2")])
put([f"ds_write_b128 v{vKX}, a[152:155]", f"ds_write_b128 v{vKX}, a[156:159] offset:1024",
     f"ds_write_b128 v{vKX}, a[148:151] offset:2048", ("lt", "kx")])
stamp("k")

FL_LOAD = f"buffer_load_dword v{vF}, v{vN4}, {rWs}, {sFL} offen sc1"
F_CMP = f"v_cmp_ne_u32 vcc, {snonce}, v{vF}"
NC_LOAD = f"global_load_dword v{vNo}, v{vZ}, s[{sDbg}:{sDbg+1}] sc1"
NC_CMP = f"v_cmp_eq_u32 vcc, 0, v{vNo}"
if XE == 5:
    XD = {}
    XRD = {1: 2, 2: 3, 3: 4, 4: 5, 5: 6}
    NP = opt('np', 11)
    WDD = dict(zip([4, 6, 8, 10, 12, 14, 16, 18, 20, 22, 24][:NP], range(NP)))
    PSORD = {0: "x2", 1: "x3", 2: "x4", 3: "x5", 4: "x6", 5: None}
    PS[:] = PS[1:] + PS[:1]
    MV = dict(zip([9, 10, 11, 12, 13, 14, 15, 17, 19, 20, 22, 24][:opt('nmv', 2 * (NP - 5))], range(12)))
else:
    XD = {s: 2 + s // 2 for s in (2, 4, 6, 8)}
    XRD = {s: s // 2 for s in (4, 6, 8, 10, 12)}
    NP = 9
    WDD = dict(zip([10, 12, 14, 16, 18, 20, 22, 23, 24], range(9)))
    PSORD = {0: None, 1: "x2", 2: "x3", 3: "x4", 4: "x5", 5: "x6"}
    MV = {s: s - 14 for s in range(14, 22)}
NMV = len(MV)
carry, pre = [], []
for s in range(25):
    if s % 2 == 0 and s > 0:
        stamp("g")
    if 1 <= s <= 4:
        stamp("k")
    extra, dma = [], None
    if s % 2 == 1:
        u = (s + 1) // 2
        lt = {1: "x1", 5: "kr"}.get(s)
        a.wait_both(tok[f"u{u}"], ltok[lt] if lt else None)
        a("s_barrier")
        if u + 2 < 14:
            dma = ([], w_unit(u + 2), f"u{u+2}")
    if s == 0:
        extra += [("wv", "x1")] + [x_read(k) for k in range(4, 8)] + [("lt", "x1")]
    if s in XD:
        dma = ([], x_block(XD[s]), f"x{XD[s]}")
    if s in XRD:
        cb = XRD[s]
        extra += [("wv", f"x{cb}")] + [x_read(k) for k in range(4 * cb, 4 * cb + 4)] + [("lt", f"x{cb}")]
    if s in WDD:
        p = WDD[s]
        need = PSORD[p] if p < 6 else f"mv{2*(p-6)+1}"
        dma = ([("wl", need)] if need else [], wd_pair(2 * p), f"wd{2*p}")
    if s in MV:
        kk = MV[s]
        assert s >= 2 * kk + 2
        if kk % 2 == 0:
            extra += [("wv", f"wd{kk}")]
        extra += wd_move(kk) + [("lt", f"mv{kk}")]
    if s == 12:
        extra += [NC_LOAD]
    if s == 16:
        poll("nc", NC_LOAD, NC_CMP)
        a(f"v_readfirstlane_b32 {snonce}, v{vNo}")
    if s == FL_AT:
        extra += [FL_LOAD]
    if s == FL_POLL:
        poll("fl", FL_LOAD, F_CMP)
        extra += [f"buffer_load_dword v{vF}, v{vN8}, {rWs}, {sST} offen sc1",
                  f"s_lshl_b32 s74, s97, 3\ns_add_u32 s74, s74, {WS_ST+4}\nbuffer_load_dword v228, v{vN8}, {rWs}, s74 offen sc1"]
        extra += [f"buffer_load_dwordx4 a[{160+4*t}:{163+4*t}], v{vCS}, {rWs}, {sCS} offen offset:{512*t} sc1" for t in range(2)]
    extra += fillg[s]
    AB = opt('ab', '')
    if dma and (('x' in AB and dma[2][0] == 'x') or ('w' in AB and dma[2][0] == 'w') or ('u' in AB and dma[2][0] == 'u')):
        dma = (dma[0], ["s_nop 0"] * 6, dma[2])
    main = []
    for t in range(8):
        if t % WG == 0 and s > 0:
            (main[-1] if main else pre).append(("wl", f"f{t+WG-1}" if not (PAT and t + WG - 1 == 7) else "f6"))
        c = "0" if s == 0 else f"v[{16*t}:{16*t+15}]"
        m = [f"v_mfma_f32_32x32x16_bf16 v[{16*t}:{16*t+15}], a[{112+4*t}:{115+4*t}], a[{4*s}:{4*s+3}], {c}"]
        rd = wfrag_read(s + 1, t, 112 + 4 * t) + [("lt", f"f{t}")]
        if dma and t == 0:
            m += dma[0] + [dma[1][0]]
        if PAT and t % 2 == 1 and not (s == 24 and t == 7):
            carry = rd
        else:
            m += carry + rd
            carry = []
        if dma and t % 2 == 1:
            m.append(dma[1][1 + t // 2])
            if t == 7:
                m += [("vt", dma[2]), dma[1][5]]
        main.append(m)
    put(pre + pack(main, extra, 24))
    pre = []
stamp("g")
a.wait_vm(tok["u13"])
a("s_barrier")
put(wfrag_read(26, 0, 168) + wfrag_read(27, 0, 172))
first = [f"v_cmp_gt_u32 vcc, 32, v255", "v_mov_b32 v152, 0", "v_mov_b32 v153, 0",
         f"s_add_u32 m0, {sUl}, {U1_OFF+448}", f"buffer_load_dwordx4 v{vL16}, {rWs}, {sUg} offen sc1 lds",
         f"buffer_load_dwordx4 v{vL16}, {rWs}, {sUg} offen offset:1024 sc1 lds",
         f"v_cndmask_b32 v192, 0, v{vF}, vcc\nv_cndmask_b32 v197, 0, v{vF}, vcc"]
second = [f"s_sub_u32 {sUg}, {sUg}, 2\ns_add_u32 m0, {sUl}, 448", f"buffer_load_dwordx4 v{vL16}, {rWs}, {sUg} offen sc1 lds",
          f"buffer_load_dwordx4 v{vL16}, {rWs}, {sUg} offen offset:1024 sc1 lds", ("vt", "u")]
main, epi = [], []
for t in range(8):
    r = 168 + 8 * (t % 2)
    cb = (192, 196, 190, 194)[t & 3]
    ops = [(f"a[{112+4*t}:{115+4*t}]", "a[100:103]"), (f"a[{r}:{r+3}]", "a[104:107]"), (f"a[{r+4}:{r+7}]", "a[108:111]"),
           (f"a[{160+(t & 4)}:{163+(t & 4)}]", f"v[{cb}:{cb+3}]")]
    for k, (A, B) in enumerate(ops):
        m = [f"v_mfma_f32_32x32x16_bf16 v[{16*t}:{16*t+15}], {A}, {B}, v[{16*t}:{16*t+15}]"]
        if t < 7 and k in (0, 1):
            m += wfrag_read(26 + k, t + 1, 168 + 8 * ((t + 1) % 2) + 4 * k)
        main.append(m)
    b = 16 * t
    L = [f"v_max_f32 v{b+r}, 0, v{b+r}" for r in range(8)]
    if t < 6:
        L += [f"v_mul_f32 v{b+r}, v{b+r}, v{b+8+r}" for r in range(8)]
    else:
        L += [f"v_pk_mul_f32 v[{b+r}:{b+r+1}], v[{b+r}:{b+r+1}], v[{b+8+r}:{b+9+r}]" for r in range(0, 8, 2)]
    L += [f"v_cvt_pk_bf16_f32 v{b+8+r}, v{b+2*r}, v{b+2*r+1}" for r in range(4)]
    L += [f"buffer_store_dwordx4 v[{b+8}:{b+11}], v{vL16}, {rWs}, {(sH0, sH1)[t >> 2]} offen offset:{1024*(t & 3)} sc1"]
    epi.append(L)
stamp("t")
put(pack(main[:3], first, 24) + pack(main[3:6], second, 24))
for t in range(6):
    stamp("t")
    put(pack(main[4 * t + 6:4 * t + 10], epi[t], 24))
stamp("t")
put(pack(main[30:], epi[6][:8], 24))
rest = epi[6][8:] + epi[7]
stamp()
stamp("t")
a("s_barrier")
stamp("t")


def octet_writes(d, ar, off):
    return [f"ds_write_b128 v{ar+3}, v[{d}:{d+3}] offset:{off}",
            f"ds_write2_b64 v{ar+1}, v[{d}:{d+1}], v[{d+2}:{d+3}] offset0:{off//8} offset1:{off//8+1}"] + \
           [f"ds_write2_b32 v{ar+c}, v{d+k}, v{d+k+1} offset0:{off//4+k} offset1:{off//4+k+1}" for c in (0, 2) for k in (0, 2)]


put(weave(rest, octet_writes(136, vKC, 0) + octet_writes(144, vKC + 4, 0)
          + [f"ds_write_b32 v{vKZ}, v152 offset:{4096-12}", f"ds_write_b64 v{vUZ}, v[152:153]"]))
tok["h"] = a.vm_tok()
stamp("t")
stamp("t")
a(f"s_andn2_b64 exec, 1, {sOdd}")
a.wait_vm(tok["u"])
a(f"""ds_write_b16 v{vUZ}, v152 offset:448
s_mov_b64 exec, -1
s_waitcnt lgkmcnt(0)""")
stamp("t")
a("s_barrier")
stamp()
stamp("t")


def a_read(n):
    return f"ds_read_b128 a[{128+4*(n % 4)}:{131+4*(n % 4)}], v{vCK} offset:{64*(62-2*n)}"


def u_read(be, i):
    return f"ds_read_b128 v[{16*be+4*i}:{16*be+4*i+3}], v{vCU} offset:{512*be-128*i+384}"


NH = opt('nh', 8)
ORD = list(range(16, 28)) + list(range(16))


def h_load(i):
    g = []
    for ta in range(2):
        r = 96 + 8 * (i % NH) + 4 * ta
        g.append(f"buffer_load_dwordx4 v[{r}:{r+3}], v{vH+ta}, {rWs}, {sHoff} offen offset:{1024*(i % 4)} {HFL}")
    if i % 4 == 3:
        if ROT:
            g[-1] += "\n" + wrap(sHoff, 4096, "s11", "s10")
        else:
            g[-1] += f"\ns_add_u32 {sHoff}, {sHoff}, 4096" if i != 11 else f"\ns_sub_u32 {sHoff}, {sHoff}, {24*1024}"
    return g


put([a_read(0)] + [u_read(be, 0) for be in range(8)] + [a_read(1), a_read(2)])
FH_LOAD = f"buffer_load_dword v{vF}, v{vFH}, {rWs}, {sFHr} offen sc1"
fill = {n: [] for n in range(32)}
for i in range(1, 4):
    fill[i - 1] += [u_read(be, i) for be in range(8)]
fill[2] += [("lt", "ub")]
if XRAT:
    fill[3] += XRES
fill[FHW_AT] += [("wv", "h"), f"s_mov_b64 exec, 1\nbuffer_store_dword v{vNo}, v{vZ}, {rWs}, {sFHw} offen sc1\ns_mov_b64 exec, -1"]
n = opt('mv0', 3)
pend = [p for p in range(NP, 14) if 2 * (p - 6) + 1 < NMV]
for k, p in enumerate(pend):
    fill[1 + k] = wd_pair(2 * p) + [("vt", f"wd{2*p}")] + fill[1 + k]
for kk in range(NMV, 16):
    if kk % 2 == 0:
        fill[n] += [("wv", f"wd{kk}")]
    fill[n] += wd_move(kk) + [("lt", f"mv{kk}")]
    if kk % 2 == 1:
        fill[n + 2] += [("wl", f"mv{kk}")] + wd_pair(kk + 11) + [("vt", f"wd{kk+11}")]
    n += 1
YB = opt('yb', 15)
fill[FH_AT] += [FH_LOAD]
for j in range(7):
    fill[(YB + 1, YB + 2, YB + 3, max(17, YB + 4), 21, 25, 29)[j]] += [f"ds_write_b128 v{vYW}, a[{224+4*j}:{227+4*j}] offset:{4096*((j+1) % 8)}"]
hl = [(i, g) for i in range(28) for g in h_load(i)]
for n in range(FH_POLL, 32):
    if hl[0][0] < NH:
        fill[n] += [hl.pop(0)[1]]
for P in range(8):
    for i in range(4):
        n = 4 * P + i
        if n % 4 == 0 or n in (2, 6, 10):
            stamp("c")
        if n == YB:
            a.wait_lg(ltok["ub"])
            a("s_barrier")
        if n == FH_POLL:
            poll("fh", FH_LOAD, F_CMP)
        main = []
        for be in range(8 - P):
            j = P + be
            c = "0" if n == 0 else f"a[{224+4*j}:{227+4*j}]"
            main.append(f"v_mfma_f32_16x16x32_bf16 a[{224+4*j}:{227+4*j}], a[{128+4*(n % 4)}:{131+4*(n % 4)}], v[{16*be+4*i}:{16*be+4*i+3}], {c}")
        put(pack([[m] for m in main], ([a_read(n + 3)] if n + 3 < 32 else []) + fill[n], 8))
stamp()
stamp("f")
put([("wv", "wd16")] + wd_read(16, 128))
a(f"ds_write_b128 v{vYW}, a[252:255]")
ltok["y7"] = a.lg_tok()
stamp()
stamp("f")

XS = lambda g, e: (80 if g < 4 else 0) + 4 * g + 2 * e
FY_LOAD = f"buffer_load_dword v{vF}, v{vN4}, {rWs}, s80 offen sc1"
fill = {k: [] for k in range(28)}
fill[0] += [("wl", "y7"), "s_barrier"]
for jj in range(2):
    r = 64 + 16 * jj
    fill[0] += [f"ds_read_b64 v[{r+4*src+2*ph}:{r+4*src+2*ph+1}], v{vYR+jj} offset:{1024*src+16*ph}"
                for src in range(4) for ph in range(2)]
    fill[1 + jj] += [f"v_add_f32 v{r+k}, v{r+k}, v{r+k+4}" for k in (0, 1, 2, 3, 8, 9, 10, 11)]
    fill[1 + jj] += [f"v_cvt_pk_bf16_f32 v{r+4+k}, v{r+o}, v{r+8+o}" for k, o in enumerate((0, 2, 1, 3))] + \
        [f"buffer_store_dwordx4 v[{r+4}:{r+7}], v{vL16}, {rWs}, {sY} offen offset:{1024*jj} sc1", ("vt", "y")]
fill[4] += lines(f"""s_lshr_b32 s74, {sjc}, 5
s_lshl_b32 s74, s74, 2
s_add_u32 s74, s74, {sw}
s_mul_i32 s74, s74, {FSP}
s_and_b32 s75, {sjc}, 31
s_lshl_b32 s75, s75, 2
s_add_u32 s74, s74, s75
s_add_u32 s95, s74, {WS_FY}""", 2)
fill[FYW_AT] += [("wv", "y"), f"s_mov_b64 exec, 1\nbuffer_store_dword v{vNo}, v{vZ}, {rWs}, s95 offen sc1\ns_mov_b64 exec, -1"]
fill[5] += lines(f"""s_lshl_b32 s80, {sc2}, 2
s_lshr_b32 s74, {sr2}, 3
s_add_u32 s80, s80, s74
s_mul_i32 s80, s80, {FSP}
s_add_u32 s80, s80, {WS_FY}
s_add_u32 s13, {sw4k}, {RX}
v_add_u32 v230, s13, v{vL16}""", 2)
fill[9] += [f"ds_write_b128 v230, v[242:245] offset:{XR}"] + lines(f"""v_mul_u32_u24 v234, 224, v{vN4}
v_lshl_add_u32 v234, v{fKG}, 4, v234""")
fill[10] += [f"ds_write_b128 v230, v[246:249] offset:{XR+1024}"] + lines(f"""v_lshlrev_b32 v231, 4, v{fR}
v_lshl_add_u32 v231, v{vN4}, 4, v231
v_lshl_add_u32 v231, v{fKG}, 3, v231""")
fill[12] += lines(f"""v_add_u32 v236, s13, v231
v_xor_b32 v237, 16, v236
v_xor_b32 v238, 32, v236
v_xor_b32 v239, 48, v236
v_mul_u32_u24 v235, {2*YS}, v{fKG}
v_add_u32 v235, v235, v{vN4}""") + [f"ds_read_b64 v[{64+2*g}:{65+2*g}], v{236+g} offset:{XR}" for g in range(4)] + [("lt", "xr")]
fill[13] += lines(f"""s_mul_i32 s74, s17, {YS//4}
s_lshl_b32 s75, s97, 2
s_add_u32 s74, s74, s75
s_add_u32 s96, s74, {WS_Y}""", 2)
fill[14] += [f"v_xor_b32 v{240+k}, {4096*k}, v230" for k in range(1, 4)]
fill[FY_AT] += [FY_LOAD]
for g in range(4):
    for e in range(2):
        fill[17 + g] += [f"v_lshlrev_b32 v{XS(g, e)}, 16, v{64+2*g+e}", f"v_and_b32 v{XS(g, e)+1}, {sMask}, v{64+2*g+e}"]
for g in range(4):
    for e in range(2):
        fill[min(27, FY_POLL + g // 2)] += [f"buffer_load_dword v{72+2*g+e}, v235, {rWs}, s96 offen sc1\ns_add_u32 s96, s96, {YS if e == 0 else 3*YS}"]
DEF = opt('def', NH)
late = []
HL0 = opt('hl0', 1)
for i in range(28):
    kk = ORD[i]
    if i % 2 == 0 and i > 0:
        stamp("h")
    if i < 14:
        stamp("j")
    extra = []
    if i + 1 < 12:
        if (kk + 1) % 2 == 0:
            extra += [("wv", f"wd{kk+1}")]
        extra += wd_read(kk + 1, 128 + 8 * ((kk + 1) % 2))
    if i == FY_POLL:
        poll("fy", FY_LOAD, F_CMP)
    main = []
    for ta in range(2):
        for da in range(2):
            acc = 16 * (da + 2 * ta)
            c = "0" if i == 0 else f"v[{acc}:{acc+15}]"
            fa = (8 * kk if kk < 16 else 128 + 8 * (kk % 2)) + 4 * da
            fb = 96 + 8 * (i % NH) + 4 * ta
            m = [f"v_mfma_f32_32x32x16_bf16 v[{acc}:{acc+15}], a[{fa}:{fa+3}], v[{fb}:{fb+3}], {c}"]
            if acc == 0 and i >= 28 - DEF:
                late.append(m)
                continue
            if hl and i >= HL0 and (da, ta) != (0, 0) and (hl[0][0] < i + NH or (hl[0][0] == i + NH and da == 1 and len(hl) % 2 == ta % 2)):
                m.append(hl.pop(0)[1])
            main.append(m)
    AB = opt('ab', '')
    fl_ = fill[i]
    if 'X' in AB:
        fl_ = [e for e in fl_ if isinstance(e, tuple) or not (" lds" in e or "v80," in e)]
    if 'Y' in AB and i == FYW_AT:
        fl_ = [e for e in fl_ if e != ("wv", "y")]
    if 'D' in AB:
        extra = [e for e in extra if not isinstance(e, tuple)]
    put(pack(main, extra + fl_, 24))
assert not hl
stamp()
stamp("f")
wr = [f"ds_write_b128 v230, v[{16*k+4*g}:{16*k+4*g+3}] offset:{(k-1)*16384+1024*g}" for k in range(1, 4) for g in range(4)]
put(weave(late, wr) if late else wr)
stamp("f")
a("s_waitcnt lgkmcnt(0)")
stamp("f")
a("s_barrier")
stamp("f")
for g in range(4):
    for k in range(1, 4):
        a(f"ds_read_b128 v[{16*k+4*g}:{16*k+4*g+3}], v{240+k} offset:{(k-1)*16384+1024*g}")
stamp("f")
for g in range(4):
    for e in range(2):
        yr, d = 72 + 2 * g + e, XS(g, e)
        a(f"""
v_lshlrev_b32 v112, 16, v{yr}
v_and_b32 v113, {sMask}, v{yr}
v_pk_add_f32 v[{d}:{d+1}], v[{d}:{d+1}], v[112:113]
""")
stamp("f")
for g in range(4):
    for e in range(2):
        r = 4 * g + 2 * e
        for k in range(1, 4):
            a(f"v_pk_add_f32 v[{r}:{r+1}], v[{r}:{r+1}], v[{16*k+r}:{16*k+r+1}]")
        a(f"v_pk_fma_f32 v[{r}:{r+1}], v[{r}:{r+1}], v[228:229], v[{XS(g, e)}:{XS(g, e)+1}] op_sel_hi:[1,0,1]")
    a(f"v_cvt_pk_bf16_f32 v{116+2*g}, v{4*g}, v{4*g+1}\nv_cvt_pk_bf16_f32 v{117+2*g}, v{4*g+2}, v{4*g+3}")
    if g % 2 == 1:
        b = 116 + 2 * (g - 1)
        a(f"v_permlane32_swap_b32 v{b}, v{b+2}\nv_permlane32_swap_b32 v{b+1}, v{b+3}")
        a(f"buffer_store_dwordx4 v[{b}:{b+3}], v234, {rOut}, s16 offen offset:{16*(g-1)} {OUTFL}")
        stamp("f")
stamp()


def stamp_out():
    if not STAMP:
        return
    a(f"""
s_waitcnt vmcnt(0) lgkmcnt(0)
v_writelane_b32 v254, s98, {nstamp[0]-1}
{CLK} s[98:99]
s_waitcnt lgkmcnt(0)
v_writelane_b32 v254, s98, 15
s_lshl_b32 s84, s2, 2
s_add_u32 s84, s84, {sw}
s_lshl_b32 s84, s84, 6
s_add_u32 s84, s84, {WS_TS}
v_lshlrev_b32 v1, 2, v255
s_mov_b64 exec, 0xffff
buffer_store_dword v254, v1, {rWs}, s84 offen
""")


stamp_out()
a("s_endpgm")

a.reset()
NC_LOAD = f"global_load_dword v202, v203, s[{sDbg}:{sDbg+1}] sc1"
NC_CMP = "v_cmp_eq_u32 vcc, 0, v202"
shq = "s59"
a(f"""
L_helper:
s_lshl_b32 {shq}, {sxcd}, 2
s_add_u32 {shq}, {shq}, {sj}
v_mov_b32 v203, 0
v_lshrrev_b32 v1, 2, v255
s_lshl_b32 s83, {shq}, 2
s_add_u32 s83, s83, {sw}
s_lshl_b32 s72, s83, 4
v_add_u32 v4, s72, v1
v_mul_u32_u24 v5, 896, v4
v_and_b32 v2, 3, v255
v_lshl_add_u32 v5, v2, 4, v5
s_lshr_b32 s73, {sxcd}, 1
s_lshl_b32 s73, s73, 2
s_add_u32 s60, s73, {sj}
s_min_u32 s73, s60, 13
s_and_b32 s74, {sxcd}, 1
s_mul_i32 s74, s74, 14
s_add_u32 s61, s73, s74
s_lshr_b32 s73, s61, 1
s_lshl_b32 s82, s73, 8
v_lshrrev_b32 v6, 4, v255
s_lshl_b32 s75, {sw}, 2
v_add_u32 v6, s75, v6
v_mul_u32_u24 v7, 3584, v6
v_and_b32 v3, 15, v255
v_lshl_add_u32 v7, v3, 4, v7
s_mov_b32 s72, {WS_EP}
s_waitcnt lgkmcnt(0)
""")
if STAMP:
    a("v_mov_b32 v254, 0\nv_writelane_b32 v254, s100, 0")
    nstamp[0] = 1
stamp(SEL[0])
a(f"""
s_mov_b32 s36, s{sX}
s_mov_b32 s37, s{sX+1}
s_mov_b32 s48, s{sWs}
s_mov_b32 s49, s{sWs+1}
buffer_load_dword v202, v203, {rWs}, s72 offen sc1
""")
for i in range(14):
    a(f"buffer_load_dwordx4 v[{8+4*i}:{11+4*i}], v5, {rX}, 0 offen offset:{64*i}")
a(f"""
s_mov_b32 s73, 1664525
v_mul_lo_u32 v202, v202, s73
s_cmp_eq_u32 s83, 127
v_add_u32 v202, 1013904225, v202
v_or_b32 v202, 1, v202
s_cbranch_scc0 L_hnoep
s_mov_b64 exec, 1
""")
a.items.append(("raw", f"    global_store_dword v203, v202, s[{sDbg}:{sDbg+1}] sc1"))
a.items.append(("raw", f"    buffer_store_dword v202, v203, {rWs}, s72 offen sc1"))
a(f"""
s_mov_b64 exec, -1
L_hnoep:
s_bitcmp1_b32 s61, 0
s_cselect_b32 s40, s{sWu}, s{sWg}
s_cselect_b32 s41, s{sWu+1}, s{sWg+1}
""")
wl = [f"buffer_load_dwordx4 v[{72+4*i}:{75+4*i}], v7, {rW}, s82 offen\ns_add_u32 s82, s82, {16*3584}" for i in range(28)]
HW0 = opt('hw0', 0)
put(wl[:HW0])
wl = wl[HW0:]
a(f"""
s_mov_b32 s76, 0x3f803f80
s_mov_b32 s77, 0x00003f80
s_mov_b32 s79, 0x3f800000
""")
for _ in range(opt('dhelp', 0)):
    a("s_sleep 16")
EXACT = "--noexact" not in sys.argv
L = []
for i in range(56):
    c0, c1 = ("0", "0") if i == 0 else ("v64", "v68")
    L.append([f"v_dot2_f32_bf16 v64, v{8+i}, s76, {c0}", f"v_dot2_f32_bf16 v68, v{8+i}, v{8+i}, {c1}"])
HW1 = opt('hw1', 0)
put(L[0] + weave(L[1:], wl[:HW1]))
wl = wl[HW1:]
stamp()
a(f"""
v_add_f32_dpp v64, v64, v64 quad_perm:[1,0,3,2] row_mask:0xf bank_mask:0xf
v_add_f32_dpp v68, v68, v68 quad_perm:[1,0,3,2] row_mask:0xf bank_mask:0xf
v_lshlrev_b32 v4, 3, v4
v_add_f32_dpp v64, v64, v64 quad_perm:[2,3,0,1] row_mask:0xf bank_mask:0xf
v_add_f32_dpp v68, v68, v68 quad_perm:[2,3,0,1] row_mask:0xf bank_mask:0xf
v_mul_f32 v64, {hex(0x3b124925)}, v64
v_mul_f32 v68, {hex(0x3b124925)}, v68
v_fma_f32 v68, -v64, v64, v68
v_cvt_pk_bf16_f32 v64, -v64, -v64
v_max_f32 v68, 0, v68
v_cvt_pk_bf16_f32 v68, v68, v68
v_and_b32 v68, {sMask}, v68
v_add_f32 v68, 0x3727c5ac, v68
v_cvt_pk_bf16_f32 v68, v68, v68
v_and_b32 v68, {sMask}, v68
v_sqrt_f32 v68, v68
v_and_b32 v66, {sMask}, v64
v_cvt_pk_bf16_f32 v68, v68, v68
v_and_b32 v68, {sMask}, v68
v_rcp_f32 v70, v68
s_mov_b32 s74, {WS_ST}
v_fma_f32 v71, -v68, v70, 1.0
v_fma_f32 v70, v70, v71, v70
v_mul_f32 v65, v70, v70
v_mul_f32 v71, v66, v70
s_mov_b32 s80, 0x11111111
s_mov_b32 s81, 0x11111111
s_mov_b64 exec, s[80:81]
buffer_store_dwordx2 v[64:65], v4, {rWs}, s74 offen sc1
s_mov_b64 exec, -1
v_mul_u32_u24 v5, 960, v1
s_mul_i32 s75, {sw}, {16*960}
v_lshl_add_u32 v5, v2, 4, v5
v_add_u32 v5, s75, v5
""")
L2B = 64 * 960
L3B = L2B + 448 * 144
a(f"""
v_lshrrev_b32 v1, 5, v255
v_bfe_u32 v2, v255, 2, 2
v_lshl_add_u32 v2, v1, 3, v2
v_mul_u32_u24 v2, 960, v2
v_bfe_u32 v4, v255, 4, 1
v_lshl_add_u32 v2, v4, 5, v2
v_and_b32 v4, 3, v255
v_lshl_add_u32 v2, v4, 3, v2
v_add_u32 v194, s75, v2
v_and_b32 v4, 31, v255
v_mul_u32_u24 v4, 144, v4
s_lshl_b32 s74, {sw}, 5
s_add_u32 s74, s74, {L2B}
v_lshl_add_u32 v4, v1, 4, v4
v_add_u32 v195, s74, v4
v_lshlrev_b32 v6, 9, v6
v_lshl_add_u32 v6, v3, 5, v6
v_add_u32 v6, {L3B}, v6
v_lshrrev_b32 v1, 3, v255
v_and_b32 v2, 7, v255
v_lshlrev_b32 v2, 4, v2
v_mul_u32_u24 v197, {XTS}, v1
v_add_u32 v197, v197, v2
v_mul_u32_u24 v1, 144, v1
v_add_u32 v1, v1, v2
s_mul_i32 s74, {sw}, {112*144}
s_add_u32 s74, s74, {L2B}
v_add_u32 v196, s74, v1
s_lshl_b32 s74, {shq}, 7
s_mul_i32 s75, {sw}, {112*XTS}
s_add_u32 s74, s74, s75
s_add_u32 s62, s74, {WS_XT}
s_and_b32 s75, {sw}, 1
s_lshl_b32 s75, s75, 8
v_lshl_add_u32 v2, v255, 2, s75
v_add_u32 v198, {L3B}, v2
""")


L = []
for i in range(56):
    t = 186 + 2 * (i % 4)
    if EXACT:
        g = [f"v_dot2_f32_bf16 v{t}, v{8+i}, s77, v66", f"v_dot2_f32_bf16 v{t+1}, v{8+i}, s79, v66"]
        if i > 0:
            p = 186 + 2 * ((i - 1) % 4)
            g += [f"v_cvt_pk_bf16_f32 v{7+i}, v{p}, v{p+1}", f"v_lshlrev_b32 v{p}, 16, v{7+i}", f"v_and_b32 v{p+1}, {sMask}, v{7+i}",
                  f"v_pk_mul_f32 v[{p}:{p+1}], v[{p}:{p+1}], v[70:71] op_sel_hi:[1,0]", f"v_cvt_pk_bf16_f32 v{7+i}, v{p}, v{p+1}"]
            if i % 4 == 0:
                g.append(f"ds_write_b128 v5, v[{4+i}:{7+i}] offset:{64*(i//4-1)}")
        if i == 55:
            g += ["s_nop 0", f"v_cvt_pk_bf16_f32 v63, v{t}, v{t+1}", f"v_lshlrev_b32 v{t}, 16, v63", f"v_and_b32 v{t+1}, {sMask}, v63",
                  f"v_pk_mul_f32 v[{t}:{t+1}], v[{t}:{t+1}], v[70:71] op_sel_hi:[1,0]", f"v_cvt_pk_bf16_f32 v63, v{t}, v{t+1}",
                  f"ds_write_b128 v5, v[60:63] offset:{64*13}"]
    else:
        g = [f"v_lshlrev_b32 v{t}, 16, v{8+i}", f"v_and_b32 v{t+1}, {sMask}, v{8+i}",
             f"v_pk_fma_f32 v[{t}:{t+1}], v[{t}:{t+1}], v[70:71], v[70:71] op_sel:[0,0,1] op_sel_hi:[1,0,1]",
             f"v_cvt_pk_bf16_f32 v{8+i}, v{t}, v{t+1}"]
        if i % 4 == 3:
            g.append(f"ds_write_b128 v5, v[{8+i-3}:{8+i}] offset:{64*(i//4)}")
    L.append(g)
HW2 = opt('hw2', 10)
put(weave(L, wl[:HW2]))
wl = wl[HW2:]
stamp()
if WM:
    a(f"""
s_mul_i32 s74, s83, {98*128}
v_min_u32 v199, 48, v255
v_lshlrev_b32 v199, 7, v199
v_add_u32 v199, s74, v199
global_load_dword v200, v199, s[{sWd}:{sWd+1}]
global_load_dword v201, v199, s[{sWd}:{sWd+1}] offset:{0}
""".replace("global_load_dword v201, v199, s[28:29] offset:0", f"v_add_u32 v199, {49*128}, v199\nglobal_load_dword v201, v199, s[28:29]"))
HW3 = opt('hw3', 99)
put(wl[:min(HW3, 12)])
wl2 = wl[min(HW3, 12):HW3]
wl = wl[HW3:]
for b in range(14):
    a(f"ds_read_b64_tr_b16 v[{8+4*b}:{9+4*b}], v194 offset:{64*b}\nds_read_b64_tr_b16 v[{10+4*b}:{11+4*b}], v194 offset:{64*b+4*960}")
cs = []
for i in range(28):
    for d in range(4):
        c0, c1 = ("0", "0") if i == 0 else (f"v{64+2*d}", f"v{65+2*d}")
        cs += [f"v_dot2_f32_bf16 v{64+2*d}, v{72+4*i+d}, s77, {c0}", f"v_dot2_f32_bf16 v{65+2*d}, v{72+4*i+d}, s79, {c1}"]
NC0 = opt('nc0', 0)
put(weave([f"ds_write_b128 v195, v[{8+4*b}:{11+4*b}] offset:{32*144*b}" for b in range(14)], wl2 + cs[:NC0]))
a(f"{NC_LOAD}\ns_waitcnt lgkmcnt(0)\ns_barrier")
stamp()
for b in range(14):
    a(f"ds_read_b128 v[{8+4*b}:{11+4*b}], v196 offset:{8*144*b}")
put(weave([f"buffer_store_dwordx4 v[{8+4*b}:{11+4*b}], v197, {rWs}, s62 offen sc1\ns_add_u32 s62, s62, {8*XTS}" for b in range(14)], [] if wl else cs[NC0:]))
if wl:
    put(wl + cs[NC0:])
a("""
ds_write_b128 v6, v[64:67]
ds_write_b128 v6, v[68:71] offset:16
s_waitcnt lgkmcnt(0)
s_barrier
""")
stamp()
for r in range(16):
    a(f"ds_read_b32 v{72+r}, v198 offset:{512*r}")
for st_ in (8, 4, 2, 1):
    for r in range(st_):
        a(f"v_add_f32 v{72+r}, v{72+r}, v{72+r+st_}")
a(f"""
v_cvt_pk_bf16_f32 v73, v72, v72
v_and_b32 v73, {sMask}, v73
v_sub_f32 v74, v72, v73
v_cvt_pk_bf16_f32 v73, v73, v74
v_lshlrev_b32 v2, 4, v3
v_lshrrev_b32 v1, 4, v255
v_lshl_add_u32 v2, v1, 2, v2
s_lshr_b32 s74, s61, 1
s_lshl_b32 s74, s74, 1
s_add_u32 s74, s74, {sw}
s_lshl_b32 s74, s74, 1
s_and_b32 s75, s61, 1
s_add_u32 s74, s74, s75
s_lshl_b32 s74, s74, 8
s_add_u32 s74, s74, {WS_CS}
s_cmp_lt_u32 s60, 14
s_cselect_b32 s74, s74, {WS_SIZE}
s_cmp_lt_u32 {sw}, 2
s_cselect_b32 s74, s74, {WS_SIZE}
buffer_store_dword v73, v2, {rWs}, s74 offen sc1
""")
stamp()
poll("hnc", NC_LOAD, NC_CMP)
a(f"""
v_mul_u32_u24 v1, {FSP}, v255
s_lshl_b32 s74, {shq}, 2
s_add_u32 s74, s74, {WS_FL}
s_waitcnt vmcnt(0)
s_barrier
s_cmp_eq_u32 {sw}, 0
s_cbranch_scc0 L_hdone
s_mov_b64 exec, 0xff
buffer_store_dword v202, v1, {rWs}, s74 offen sc1
s_mov_b64 exec, -1
L_hdone:
""")
stamp()
stamp_out()
a("L_end:\ns_endpgm")
for sp in slow:
    a.reset()
    a(sp)
a("L_codeend:\ns_endpgm")

body = a.render()
here = os.path.dirname(os.path.abspath(__file__))
ref = open(os.path.join(here, "..", "cdna_kernels", NAME + ".s.ref")).read()
head = [l for l in ref.split("\n") if l.startswith(";") and "@launch" not in l and "Override" not in l and "grid=ceil" not in l]
txt = "\n".join(head) + f"""
; Generated by tools/gen.py (hand-written generator).  XTS={XTS} YS={YS} CSL=1
; @launch grid=(256,1,1) block=(256,1,1) lds=163840
.amdgcn_target "amdgcn-amd-amdhsa--gfx950"
.text
.globl {NAME}_kernel
.p2align 8
.type {NAME}_kernel,@function
{NAME}_kernel:
{body}
.section .rodata,"a"
.p2align 6
.amdhsa_kernel {NAME}_kernel
  .amdhsa_next_free_vgpr 512
  .amdhsa_next_free_sgpr 102
  .amdhsa_accum_offset 256
  .amdhsa_group_segment_fixed_size 0
  .amdhsa_kernarg_size 128
  .amdhsa_user_sgpr_count 2
  .amdhsa_user_sgpr_kernarg_segment_ptr 1
  .amdhsa_system_sgpr_workgroup_id_x 1
.end_amdhsa_kernel
"""
out = [x for x in sys.argv[1:] if not x.startswith("--")]
path = out[0] if out else os.path.join(here, "..", "cdna_kernels", NAME + ".s")
open(path, "w").write(txt)
print(path, a.stats, file=sys.stderr)
```

```python
import sys, os
sys.path.insert(0, os.path.dirname(os.path.abspath(__file__)))
from asmdsl import Asm

NAME = "parallel_sum__ssm_conv_s4__glu_gated_reglu__prompt"
STAMP = "--stamp" in sys.argv


def opt(name, dflt):
    v = [x.split('=')[1] for x in sys.argv if x.startswith('--' + name + '=')]
    return type(dflt)(v[0]) if v else dflt


WS_H, WS_XT, WS_Y = 0x0, 0x700000, 0x900000
XTS, YS = 4096 + opt('xtp', 128), 8192 + opt('yp', 128)
WS_ST, WS_CS = 0xB00000, 0xB04000
WS_FH, WS_FY, WS_FL, WS_EP = 0xB10000, 0xB20000, 0xB28000, 0xB2C000
WS_TS = 0xB30000
WS_SIZE = 0xB80000
FSP = 1024
SLOT = [0, 16384, 32768, 49152]
XB = 32768
SC = 147456
UB = 33536
U1_OFF = 4640
U_CH = 9280
KC0, KC_CH, KC_CP = 16, 16656, 4160
YX = 32768
RX = 65536
XR = 49152
PS = [SC] + [XB + k * 16384 for k in range(2, 7)]
SPIN = 200000
FHW_AT, FH_AT, FH_POLL = opt('fhw', 2), opt('fh', 16), opt('fhp', 20)
FYW_AT, FY_AT, FY_POLL = opt('fyw', 6), opt('fy', 19), opt('fyp', 24)
FL_AT, FL_POLL = opt('fl', 20), opt('flp', 23)
OUTFL = 'sc1' if '--outsc1' in sys.argv else ''
SEL = opt('sel', 'a')
CV = opt('cv', 20)
PAT = opt('pat', 0)
WG = opt('wg', 4)

sX, sAre, sAim, sBre, sBim, sCre, sCim, sLdt, sDsk = 4, 6, 8, 10, 12, 14, 16, 18, 20
sWg, sWu, sWd, sOut, sDbg, sWs = 24, 26, 28, 30, 32, 34
rX, rW, rWd, rWs, rOut = "s[36:39]", "s[40:43]", "s[44:47]", "s[48:51]", "s[52:55]"
sw, sxcd, sj, sr1, sc1_, sjc, sr2, sc2, snonce = "s56", "s57", "s58", "s59", "s60", "s61", "s62", "s63", "s64"
sWoff, sWdoff, sDs, scnt = "s65", "s66", "s67", "s68"
sq, sXoff, sw4k, sWl, sMask = "s69", "s72", "s73", "s77", "s78"
sFL, stg, sUl, sUg, sH0, sH1, sKC, sHoff = "s80", "s81", "s82", "s83", "s86", "s87", "s88", "s89"
sST, sCS, sFHw, sFHr, sY = "s90", "s91", "s92", "s93", "s94"
sOdd = "s[22:23]"

vKC, vKZ, vUZ, vKX, vXR, vXD, vWD, vWF, vKL = 160, 168, 169, 170, 172, 180, 184, 188, 190
vDD, vDF, vCU, vCK, vN4, vN8, vCS, vF, vYW, vYR, vFH, vH = 200, 204, 208, 209, 210, 211, 212, 213, 214, 215, 217, 218
fC, fR, fKG, fQ, fG, vNo, vZ, vL16 = 220, 221, 222, 223, 226, 224, 225, 250

a = Asm()
slow = []
nstamp = [0]
tok, ltok = {}, {}


def stamp(kind="a"):
    if not STAMP or kind not in SEL:
        return
    k = nstamp[0]
    nstamp[0] += 1
    if k > 1:
        a.items.append(("raw", f"    v_writelane_b32 v254, s98, {k-1}"))
    a.items.append(("raw", f"    {CLK} s[98:99]"))


def poll(name, load, cmp_):
    a(cmp_)
    a(f"s_cbranch_vccnz L_slow_{name}")
    a(f"L_back_{name}:")
    slow.append(f"""L_slow_{name}:
s_mov_b32 {scnt}, 0
L_retry_{name}:
s_add_u32 {scnt}, {scnt}, 1
s_cmp_gt_u32 {scnt}, {SPIN}
s_cbranch_scc1 L_back_{name}
s_sleep 1
{load}
s_waitcnt vmcnt(0)
{cmp_}
s_cbranch_vccnz L_retry_{name}
s_branch L_back_{name}""")


def put(items):
    for e in items:
        if isinstance(e, tuple):
            if e[0] == "vt": tok[e[1]] = a.vm_tok()
            if e[0] == "lt": ltok[e[1]] = a.lg_tok()
            if e[0] == "wv": a.wait_vm(tok[e[1]])
            if e[0] == "wl": a.wait_lg(ltok[e[1]])
        else:
            a(e)


def weave(main, extra):
    nreal = sum(1 for e in extra if not isinstance(e, tuple))
    out, k, done = [], 0, 0
    for t, m in enumerate(main):
        out += m if isinstance(m, list) else [m]
        goal = -(-(nreal * (t + 1)) // len(main))
        while k < len(extra) and (isinstance(extra[k], tuple) or done < goal):
            out.append(extra[k])
            done += not isinstance(extra[k], tuple)
            k += 1
    return out


def cost(e):
    if isinstance(e, tuple):
        return 4 if e[0] in ("wv", "wl") else 0
    c = 0
    for l in e.split("\n"):
        op = l.split()[0]
        if op.startswith(("buffer_", "global_")):
            c += CV if "x4" in op else 12
        elif op.startswith("ds_write"):
            c += 28 if "b128" in op or "2_b64" in op else 14
        else:
            c += 4
    return c


def pack(main, extra, cap):
    base = [sum(cost(x) for x in m[1:]) for m in main]
    n, G = len(extra), len(main)
    cs = [cost(e) for e in extra]
    INF = 1 << 60
    best = [[INF] * (n + 1) for _ in range(G + 1)]
    frm = [[0] * (n + 1) for _ in range(G + 1)]
    best[0][0] = 0
    for g in range(G):
        for i in range(n + 1):
            if best[g][i] == INF:
                continue
            load = base[g]
            for j in range(i, n + 1):
                if j > i:
                    load += cs[j - 1]
                v = best[g][i] + 1000 * max(0, load - cap) + load * load // 16
                if v < best[g + 1][j]:
                    best[g + 1][j] = v
                    frm[g + 1][j] = i
    cuts, j = [], n
    for g in range(G, 0, -1):
        cuts.append((frm[g][j], j))
        j = frm[g][j]
    cuts.reverse()
    out = []
    for m, (i, j) in zip(main, cuts):
        out += m + extra[i:j]
    return out


def lines(txt, per=1):
    L = [l for l in txt.strip().split("\n")]
    return ["\n".join(L[i:i + per]) for i in range(0, len(L), per)]


ROT = opt('rot', 0)
HFL = opt('hfl', 'sc1').replace('_', ' ').replace('none', '')


def wrap(reg, step, lim, base):
    return f"s_add_u32 {reg}, {reg}, {step}\ns_cmp_eq_u32 {reg}, {lim}\ns_cselect_b32 {reg}, {base}, {reg}"


def dma4(m0, vo, srd, soff, step, fl=""):
    g = [m0, f"buffer_load_dwordx4 v{vo}, {srd}, {soff} offen {fl} lds"]
    for i in range(1, 4):
        g.append(f"buffer_load_dwordx4 v{vo+i}, {srd}, {soff} offen offset:{1024*i} {fl} lds")
    g.append(f"s_add_u32 {soff}, {soff}, {step}")
    return g


def w_unit(u):
    return dma4(f"s_add_u32 m0, {sWl}, {SLOT[u % 4]}", vWD, rW, sWoff, 32 * 3584)


def x_block(cb):
    return dma4(f"s_add_u32 m0, {sw4k}, {XB+cb*16384}", vXD, rX, sXoff, 128)


def wd_pair(kk):
    g = dma4(f"s_add_u32 m0, {sw4k}, {PS[(kk >> 1) % 6]}", vDD, rWd, sWdoff, 32 * 896)
    if ROT and kk % 4 == 2:
        g[-1] = wrap(sWdoff, 32 * 896, "s9", "s8")
    return g


CLK = "s_memtime" if "--cyc" in sys.argv else "s_memrealtime"
if STAMP:
    a(f"{CLK} s[100:101]")
a(f"""
s_cmp_ge_u32 s2, 256
s_cbranch_scc1 L_end
s_load_dwordx16 s[4:19], s[0:1], 0
s_load_dwordx16 s[20:35], s[0:1], 64
s_getpc_b64 s[70:71]
L_pc:
s_and_b32 {sxcd}, s2, 7
s_lshr_b32 {sj}, s2, 3
v_lshrrev_b32 v1, 6, v0
v_and_b32 v255, 63, v0
v_readfirstlane_b32 {sw}, v1
""")
a(f"""
s_and_b32 {sq}, {sj}, 3
s_lshl_b32 s74, {sq}, 6
v_lshl_add_u32 v2, v1, 4, v255
v_add_u32 v2, s74, v2
v_lshlrev_b32 v2, 7, v2
v_min_u32 v2, L_codeend-L_pc-4, v2
s_mov_b64 exec, 0xffff
{"global_load_dword v253, v2, s[70:71]" if "--nocodepf" not in sys.argv else ""}
s_mov_b64 exec, -1
s_mov_b32 s38, {2048*896}
s_mov_b32 s39, 0x20000
s_mov_b32 s42, {448*3584}
s_mov_b32 s43, 0x20000
s_mov_b32 s50, {WS_SIZE}
s_mov_b32 s51, 0x20000
v_lshlrev_b32 v{vL16}, 4, v255
s_mov_b32 {sMask}, 0xffff0000
s_cmp_lt_u32 {sj}, 4
s_cbranch_scc1 L_helper
""")

a(f"""
s_sub_u32 {sj}, {sj}, 4
s_mul_i32 s74, {sxcd}, 28
s_add_u32 {sjc}, s74, {sj}
s_lshl_b32 s74, {sjc}, 10
s_lshl_b32 s75, {sw}, 8
s_add_u32 s74, s74, s75
v_lshl_add_u32 v4, v255, 2, s74
s_lshr_b32 s79, s74, 9
s_lshl_b32 s74, s79, 1
v_mov_b32 v5, s74
s_lshr_b32 {sc2}, {sj}, 2
s_lshr_b32 s74, {sxcd}, 1
s_lshl_b32 s74, s74, 2
s_add_u32 {sr1}, s74, {sq}
s_lshl_b32 {stg}, {sr1}, 2
s_add_u32 {stg}, {stg}, {sw}
s_mul_i32 {sXoff}, {stg}, {32*896}
s_lshl_b32 {sw4k}, {sw}, 12
s_and_b32 s74, {sxcd}, 1
s_mul_i32 s74, s74, 7
s_add_u32 {sc1_}, s74, {sc2}
s_lshl_b32 {sWoff}, {sc1_}, 8
s_lshr_b32 s84, {sw}, 1
s_and_b32 s85, {sw}, 1
s_lshl_b32 s74, s85, 13
s_lshl_b32 s75, s84, 12
s_add_u32 {sWl}, s74, s75
v_and_b32 v{fC}, 3, v255
v_bfe_u32 v{fR}, v255, 2, 2
v_lshrrev_b32 v{fKG}, 5, v255
v_lshrrev_b32 v{fQ}, 4, v255
v_and_b32 v{fG}, 1, v{fQ}
v_lshrrev_b32 v6, 3, v255
v_mul_u32_u24 v1, 896, v6
v_and_b32 v2, 7, v255
v_xor_b32 v2, v2, v{fQ}
v_lshl_add_u32 v{vXD}, v2, 4, v1
v_xor_b32 v{vXD+1}, 64, v{vXD}
v_add_u32 v{vXD+1}, {8*896-1024}, v{vXD+1}
v_add_u32 v{vXD+2}, {2*(8*896-1024)}, v{vXD}
v_add_u32 v{vXD+3}, {2*(8*896-1024)}, v{vXD+1}
s_lshl_b32 s74, s84, 4
v_add_u32 v1, s74, v{fR}
v_mul_u32_u24 v1, 3584, v1
v_lshl_add_u32 v1, v{fQ}, 6, v1
s_lshl_b32 s76, s85, 1
v_xor_b32 v2, s76, v{fC}
v_lshl_add_u32 v{vWD}, v2, 4, v1
v_add_u32 v{vWD+1}, {4*3584-1024}, v{vWD}
v_add_u32 v{vWD+2}, {2*(4*3584-1024)}, v{vWD}
v_add_u32 v{vWD+3}, {3*(4*3584-1024)}, v{vWD}
""")
if STAMP:
    a("v_mov_b32 v254, 0\ns_waitcnt lgkmcnt(0)\nv_writelane_b32 v254, s100, 0")
    nstamp[0] = 1
stamp(SEL[0])
a(f"""
s_waitcnt lgkmcnt(0)
global_load_ushort v134, v5, s[{sLdt}:{sLdt+1}]
global_load_dword v128, v4, s[{sAre}:{sAre+1}]
global_load_dword v129, v4, s[{sAim}:{sAim+1}]
global_load_dword v130, v4, s[{sBre}:{sBre+1}]
global_load_dword v131, v4, s[{sBim}:{sBim+1}]
global_load_dword v132, v4, s[{sCre}:{sCre+1}]
global_load_dword v133, v4, s[{sCim}:{sCim+1}]
global_load_ushort v135, v5, s[{sDsk}:{sDsk+1}]
s_mov_b32 s36, s{sX}
s_mov_b32 s37, s{sX+1}
s_bitcmp1_b32 {sw}, 0
s_cselect_b32 s40, s{sWu}, s{sWg}
s_cselect_b32 s41, s{sWu+1}, s{sWg+1}
s_cselect_b64 {sOdd}, -1, 0
""")
if "--tlb" in sys.argv:
    a(f"""
v_min_u32 v14, 5, v255
v_lshlrev_b32 v14, 21, v14
v_mov_b32 v15, 0
s_mov_b64 exec, 0x3f
global_load_dword v152, v14, s[{sWs}:{sWs+1}]
s_mov_b64 exec, 1
global_load_dword v153, v15, s[{sOut}:{sOut+1}]
global_load_dword v154, v15, s[{sWd}:{sWd+1}]
global_load_dword v155, v15, s[{sDbg}:{sDbg+1}]
s_mov_b64 exec, -1
""")
LATE = opt('late', 0)
first_dma = x_block(0) + w_unit(0) + [("vt", "u0")]
if not LATE:
    put(first_dma)
a(f"""
s_add_u32 s74, {sw4k}, {SC}
v_add_u32 v{vKX}, s74, v{vL16}
v_xor_b32 v{vKX+1}, 4096, v{vKX}
v_bfe_u32 v1, v255, 1, 2
v_lshlrev_b32 v7, 4, v1
v_lshl_add_u32 v7, v255, 6, v7
v_add_u32 v{vKL}, s74, v7
v_xor_b32 v{vKL+1}, 16, v{vKL}
v_xor_b32 v{vKL+2}, 32, v{vKL}
v_xor_b32 v{vKL+3}, 48, v{vKL}
v_lshl_add_u32 v7, v{fKG}, 3, v{fR}
v_lshlrev_b32 v7, 6, v7
v_bfe_u32 v8, v255, 1, 1
v_lshl_add_u32 v8, v{fG}, 1, v8
v_lshrrev_b32 v9, 1, v{fR}
v_xor_b32 v8, v8, v9
v_lshl_add_u32 v7, v8, 4, v7
v_and_b32 v10, 1, v255
v_lshl_add_u32 v7, v10, 3, v7
v_add_u32 v{vKL+4}, s74, v7
v_xor_b32 v{vKL+5}, 32, v{vKL+4}
v_add_u32 v{vKL+5}, 256, v{vKL+5}
s_lshl_b32 s76, s85, 5
v_xor_b32 v{vKL+6}, s76, v{vKL+4}
v_xor_b32 v{vKL+7}, s76, v{vKL+5}
v_and_b32 v11, 31, v255
v_bfe_u32 v12, v255, 1, 3
v_xor_b32 v7, v12, v{fKG}
v_lshlrev_b32 v7, 4, v7
v_lshl_add_u32 v7, v11, 7, v7
s_add_u32 s74, {sw4k}, {XB}
v_add_u32 v{vXR}, s74, v7
v_xor_b32 v{vXR+1}, 32, v{vXR}
v_xor_b32 v{vXR+2}, 64, v{vXR}
v_xor_b32 v{vXR+3}, 96, v{vXR}
v_add_u32 v{vXR+4}, 0x10000, v{vXR}
v_add_u32 v{vXR+5}, 0x10000, v{vXR+1}
v_add_u32 v{vXR+6}, 0x10000, v{vXR+2}
v_add_u32 v{vXR+7}, 0x10000, v{vXR+3}
v_lshlrev_b32 v13, 3, v{fC}
v_lshl_add_u32 v13, v{fR}, 6, v13
v_mul_u32_u24 v7, {8192+32}, v{fG}
v_lshl_add_u32 v7, v{fKG}, 11, v7
v_add_u32 v{vWF}, v7, v13
v_xor_b32 v{vWF+1}, 32, v{vWF}
v_lshl_add_u32 v7, v{fG}, 5, v13
v_lshl_add_u32 v7, v{fKG}, 9, v7
s_lshl_b32 s74, s85, 8
s_add_u32 s74, s74, {sw4k}
s_add_u32 s74, s74, 65536
v_add_u32 v{vDF}, s74, v7
v_xor_b32 v{vDF+1}, 256, v{vDF}
v_add_u32 v{vDF+2}, 0x10000, v{vDF}
v_add_u32 v{vDF+3}, 0x10000, v{vDF+1}
s_mul_i32 s74, {sw}, 448
v_lshl_add_u32 v7, v{fKG}, 2, v{fR}
v_add_u32 v7, s74, v7
v_mul_u32_u24 v7, 896, v7
v_lshl_add_u32 v7, v{fG}, 6, v7
v_lshl_add_u32 v{vDD}, v{fC}, 4, v7
v_add_u32 v{vDD+1}, {8*896-1024}, v{vDD}
v_add_u32 v{vDD+2}, {2*(8*896-1024)}, v{vDD}
v_add_u32 v{vDD+3}, {3*(8*896-1024)}, v{vDD}
v_lshlrev_b32 v{vN4}, 2, v11
v_lshlrev_b32 v{vN8}, 3, v11
""")
setup2 = lines(f"""s_mul_i32 {sKC}, s84, {KC_CH}
s_add_u32 {sKC}, {sKC}, {KC0}
s_lshl_b32 s74, s85, 10
s_sub_u32 s74, {sKC}, s74
s_add_u32 s74, s74, {16*255-12}
v_sub_u32 v{vKC}, s74, v{vL16}
v_add_u32 v{vKC+1}, {KC_CP+4}, v{vKC}
v_add_u32 v{vKC+2}, {2*(KC_CP+4)}, v{vKC}
v_add_u32 v{vKC+3}, {3*(KC_CP+4)}, v{vKC}
v_lshlrev_b32 v7, 9, v{fKG}
v_sub_u32 v7, v{vKC}, v7
s_mul_i32 s74, s85, 1536
s_sub_u32 s74, 2560, s74
v_subrev_u32 v{vKC+4}, s74, v7
v_add_u32 v{vKC+5}, {KC_CP+4}, v{vKC+4}
v_add_u32 v{vKC+6}, {2*(KC_CP+4)}, v{vKC+4}
v_add_u32 v{vKC+7}, {3*(KC_CP+4)}, v{vKC+4}
v_and_b32 v11, 15, v255
v_mul_u32_u24 v7, {KC_CP+4}, v{fQ}
v_lshl_add_u32 v7, v11, 2, v7
v_add_u32 v{vKZ}, {sKC}, v7
v_lshlrev_b32 v7, 2, v11
v_lshlrev_b32 v{vCS}, 2, v{vN4}
v_min_u32 v7, 52, v7
v_mul_u32_u24 v8, {FSP}, v{fG}
v_add_u32 v{vFH}, v7, v8
s_mul_i32 s75, s84, {U_CH}
s_add_u32 s75, s75, {UB}
s_mul_i32 s74, s85, {U1_OFF}
s_add_u32 s74, s74, s75
v_min_u32 v7, 55, v255
v_lshl_add_u32 v{vUZ}, v7, 3, s74
s_lshl_b32 s74, s85, 11
s_add_u32 {sUl}, s75, s74
s_mul_i32 {sUg}, s79, {XTS}
s_add_u32 {sUg}, {sUg}, s74
s_add_u32 {sUg}, {sUg}, {WS_XT}
v_mul_u32_u24 v7, {U1_OFF}, v10
v_lshl_add_u32 v7, v12, 6, v7
v_lshl_add_u32 v7, v{fQ}, 4, v7
s_lshl_b32 s74, s85, 6
s_sub_u32 s75, s75, s74
s_add_u32 s75, s75, {448-384}
v_add_u32 v{vCU}, s75, v7
v_mul_u32_u24 v7, {KC_CP}, v{fC}
v_sub_u32 v8, v{fQ}, v{fR}
v_lshl_add_u32 v7, v8, 4, v7
s_sub_u32 s74, {sKC}, s74
s_add_u32 s74, s74, {16*255-64*62}
v_add_u32 v{vCK}, s74, v7
s_lshl_b32 s74, {sw}, 10
s_add_u32 s74, s74, {YX}
v_add_u32 v{vYW}, s74, v{vL16}
v_lshlrev_b32 v7, 8, v1
v_lshl_add_u32 v7, v6, 5, v7
v_lshl_add_u32 v7, v10, 3, v7
s_lshl_b32 s74, {sw}, 13
s_add_u32 s75, s74, {YX+4096}
v_add_u32 v{vYR}, s75, v7
s_add_u32 s74, s74, 8192
s_and_b32 s74, s74, 0x7fff
s_add_u32 s74, s74, {YX}
v_add_u32 v{vYR+1}, s74, v7
s_mul_i32 s74, s84, {112*1024}
v_add_u32 v{vH}, s74, v{vL16}
s_sub_u32 s74, {112*1024}, s74
v_add_u32 v{vH+1}, s74, v{vL16}
v_mov_b32 v{vZ}, 0
s_lshl_b32 s74, {sxcd}, 2
s_add_u32 {sr2}, s74, {sq}
s_lshl_b32 s74, {sr2}, 1
s_add_u32 s74, s74, s84
s_lshl_b32 s97, s74, 5
s_lshl_b32 s74, {sc2}, 1
s_add_u32 s74, s74, s85
s_lshl_b32 s17, s74, 6
s_mul_i32 s74, s97, 896
s_add_u32 s16, s74, s17
v_lshrrev_b32 v7, 2, v255
v_mul_u32_u24 v7, 896, v7
v_xor_b32 v8, v{fC}, v{fQ}
v_lshl_add_u32 v227, v8, 4, v7""")
put(setup2[:opt('s2', len(setup2))])
setup2 = setup2[opt('s2', len(setup2)):]
a(f"""
v_lshlrev_b32 v134, 16, v134
v_mul_f32 v134, 0x3fb8aa3b, v134
v_exp_f32 v134, v134
v_cvt_pk_bf16_f32 v134, v134, v134
v_lshlrev_b32 v134, 16, v134
""")
stamp()

PA = [64, 96]
PB = 8
KF = [(160, 176, 192, 208), (224, 240, 80, 96)]
R1, R8, E, T = 146, [148, 150], 0, 2
l1s = [0, 1, 2, 3, 4, 5, 6, 7, 8, 256, 258, 260, 262, 264, 512, 516, 520, 768, 772, 776,
       1024, 1032, 1280, 1288, 1536, 1544, 1792, 1800]
ra = {l: 8 + 2 * i for i, l in enumerate(l1s)}
cols = [0, 1, 2, 3, 256, 256, 258, 260, 4, 5, 6, 7, 260, 260, 262, 264,
        512, 516, 520, 1024, 768, 772, 776, 1536, 1032, 1280, 1288, 1288, 1544, 1792, 1800, 1800]


def cmul(d, x, r, t):
    return [f"v_pk_mul_f32 v[{t}:{t+1}], v[{x}:{x+1}], v[{r}:{r+1}] op_sel_hi:[1,0]",
            f"v_pk_fma_f32 v[{d}:{d+1}], v[{x}:{x+1}], v[{r}:{r+1}], v[{t}:{t+1}] op_sel:[1,1,0] op_sel_hi:[0,1,1] neg_lo:[1,0,0]"]


def k_write(ck, i, cq):
    P = (PA[ck] + 16 * i) if i < 2 else (PB + 16 * (i - 2))
    return f"ds_write_b128 v{vKL+cq}, v[{P+4*cq}:{P+4*cq+3}]"


def k_reads(ck, i):
    fr = KF[ck][i]
    base = vKL + 6 if i < 2 else vKL + 4
    return "\n".join(f"ds_read_b64_tr_b16 a[{fr+4*s+2*rd}:{fr+4*s+2*rd+1}], v{base+rd} offset:{1024*s}"
                     for s in range(4) for rd in range(2))


def kgen_head(ck):
    L = []
    un = (lambda d, s: f"v_lshlrev_b32 v{d}, 16, v{s}") if ck == 0 else (lambda d, s: f"v_and_b32 v{d}, {sMask}, v{s}")
    L += [un(136 + i, 128 + i) for i in range(6)]
    L += ["v_mul_f32 v142, v134, v136", "v_mul_f32 v143, v134, v137",
          "v_mul_f32 v142, 0x3fb8aa3b, v142", "v_mul_f32 v143, 0.15915494, v143"]

    def ev(d, l):
        s = []
        if l == 1:
            s += ["v_exp_f32 v144, v142", "v_fract_f32 v145, v143"]
        else:
            f = {8: "0x41000000", 256: "0x43800000"}[l]
            s += [f"v_mul_f32 v144, {f}, v142", f"v_mul_f32 v145, {f}, v143", "v_exp_f32 v144, v144", "v_fract_f32 v145, v145"]
        s += [f"v_cos_f32 v{d}, v145", f"v_sin_f32 v{d+1}, v145"]
        return s, f"v_pk_mul_f32 v[{d}:{d+1}], v[{d}:{d+1}], v[144:145] op_sel_hi:[1,0]"
    wm = cmul(ra[0], 140, 138, T) + [f"v_pk_mul_f32 v[{ra[0]}:{ra[0]+1}], v[{ra[0]}:{ra[0]+1}], v[134:135] op_sel_hi:[1,0]"]
    for (d, l), fill in zip(((R1, 1), (R8[ck], 8), (E, 256)), wm):
        s, last = ev(d, l)
        L += s + [fill, last]
    for l in range(1, 9):
        L += cmul(ra[l], ra[l - 1], R1, T)
    for l in l1s[9:]:
        L += cmul(ra[l], ra[l - 256], E, T)
    for k in range(16):
        c0, c1 = ra[cols[2 * k]], ra[cols[2 * k + 1]]
        L += [f"v_cvt_pk_bf16_f32 v{PA[ck]+k}, v{c0}, v{c1}", f"v_cvt_pk_bf16_f32 v{PA[ck]+16+k}, -v{c0+1}, -v{c1+1}"]
    return L


def kgen_chain(ck):
    r8 = R8[ck]
    rb = lambda j: r8 if j == 1 else 4 + 2 * (j % 2)
    B = [f"v_cvt_pk_bf16_f32 v{PB}, 1.0, v{r8}", f"v_cvt_pk_bf16_f32 v{PB+16}, 0, v{r8+1}"]
    for j in range(2, 32):
        B += cmul(rb(j), rb(j - 1), r8, T)
        if j % 2:
            B += [f"v_cvt_pk_bf16_f32 v{PB+j//2}, v{rb(j-1)}, v{rb(j)}",
                  f"v_cvt_pk_bf16_f32 v{PB+16+j//2}, v{rb(j-1)+1}, v{rb(j)+1}"]
    return B


def k_pass(ck, i):
    return [k_write(ck, i, cq) for cq in range(4)] + [k_reads(ck, i)]


def at(stream, items):
    out = []
    for i, x in enumerate(stream):
        out += [y for p, y in items if p == i]
        out.append(x)
    return out + [y for p, y in items if p >= len(stream)]


def kgen_mfma(ck):
    f = KF[ck]
    return [f"v_mfma_f32_32x32x16_bf16 a[144:159], a[{f[s>>2]+4*(s&3)}:{f[s>>2]+4*(s&3)+3}], "
            f"a[{f[2+(s>>2)]+4*(s&3)}:{f[2+(s>>2)]+4*(s&3)+3}], "
            + ("0" if (ck == 0 and s == 0) else "a[144:159]") for s in range(8)]


def x_read(s):
    cb = s >> 2
    return f"ds_read_b128 a[{4*s}:{4*s+3}], v{vXR + (0 if cb < 4 else 4) + (s & 3)} offset:{(cb % 4)*16384}"


WM = opt('wm', 0)
if WM == 0:
    warm = [f"""s_cmp_eq_u32 {sw}, 0
s_cselect_b32 s12, s{sWg}, s{sWu}
s_cselect_b32 s13, s{sWg+1}, s{sWu+1}
s_cmp_lt_u32 {sw}, 2
s_cselect_b32 s12, s12, s{sWd}
s_cselect_b32 s13, s13, s{sWd+1}
s_mul_i32 s74, {sjc}, {56*128}
v_min_u32 v251, 55, v255
v_lshl_add_u32 v251, v251, 7, s74
global_load_dword v252, v251, s[12:13]"""]
elif WM >= 1:
    warm = [f"""s_lshl_b32 s74, {sjc}, 1
s_add_u32 s74, s74, s84
s_mul_i32 s74, s74, 3584
v_min_u32 v251, 27, v255
v_lshlrev_b32 v251, 7, v251
s_mov_b64 exec, 0xfffffff
buffer_load_dword v252, v251, {rW}, s74 offen
s_mov_b64 exec, -1"""]
warm2 = []
if WM >= 2:
    warm2 = [f"""s_lshl_b32 s74, {sjc}, 2
s_add_u32 s74, s74, {sw}
s_mul_i32 s74, s74, {14*128}
v_lshl_add_u32 v251, v255, 7, s74
s_mov_b64 exec, 0x3fff
global_load_dword v156, v251, s[{sWd}:{sWd+1}]
s_mov_b64 exec, -1"""]
WAT = opt('wat', 0)
for _ in range(opt('dmain', 0)):
    a("s_sleep 16")
stamp("k")
early = x_block(1) + [("vt", "x1")] + w_unit(1) + [("vt", "u1")]
if LATE == 1:
    put(weave(kgen_head(0), first_dma + early))
elif LATE == 2:
    put(weave(kgen_head(0), first_dma))
    warm = early + warm
elif LATE == 3:
    put(weave(kgen_head(0), first_dma + warm))
    warm = early
else:
    put(weave(kgen_head(0), early))
stamp("k")
XRES = [f"buffer_load_dwordx4 v[242:245], v227, {rX}, s16 offen",
        f"s_add_u32 s74, s16, {16*896}\nbuffer_load_dwordx4 v[246:249], v227, {rX}, s74 offen"]
XRAT = opt('xrat', 0)
if XRAT == 0:
    warm += XRES
wA = warm if WAT == 0 else [e for e in warm if "v251" not in str(e)]
wB = [] if WAT == 0 else [e for e in warm if "v251" in str(e)]
put(weave(kgen_head(1), wA))
stamp("ak"[SEL == "k"])
RD = opt('rd', 3)
p0, p1, p2 = k_pass(0, 0), k_pass(0, 1), k_pass(0, 2)
XE = opt('xe', 0)
xe = sum((x_block(cb) + [("vt", f"x{cb}")] for cb in range(2, 2 + XE)), [])
n0 = 7 * opt('xe0', 3)
put(weave(at(kgen_chain(0), list(zip((0, 7, 14, 21, 21 + RD), p0)) + list(zip((30, 37, 44, 51, 51 + RD), p1))
             + list(zip((62, 70, 80, 92), p2))), xe[:n0] + (wB if WAT == 1 else []) + (warm2 if WM == 2 else [])))
stamp("k")
p3, q0, q1, q2 = k_pass(0, 3), k_pass(1, 0), k_pass(1, 1), k_pass(1, 2)
ch = kgen_chain(1)
put([p2[4], p3[0], p3[1]] + weave(at(ch[2:], [(0, p3[2]), (4, p3[3]), (4, ch[0]), (4, ch[1]), (4 + RD, p3[4])]
                                      + list(zip((14, 20, 26, 32, 32 + RD), q0)) + list(zip((42, 48, 54, 60, 60 + RD), q1))
                                      + list(zip((70, 76, 82, 90), q2))), xe[n0:] + (wB if WAT == 2 else []) + (warm2 if WM == 3 else [])))
stamp("ak"[SEL == "k"])
sc = lines(f"""s_lshl_b32 {sWdoff}, {sc2}, 7
s_mov_b32 s44, s{sWd}
s_mov_b32 s45, s{sWd+1}
s_mov_b32 s46, {1792*896}
s_mov_b32 s47, 0x20000
s_mov_b32 s48, s{sWs}
s_mov_b32 s49, s{sWs+1}
s_mov_b32 s52, s{sOut}
s_mov_b32 s53, s{sOut+1}
s_mov_b32 s54, {2048*896}
s_mov_b32 s55, 0x20000
s_mul_i32 {sFL}, {sxcd}, {FSP}
s_add_u32 {sFL}, {sFL}, {WS_FL}
s_lshl_b32 {sST}, {stg}, 8
s_add_u32 {sST}, {sST}, {WS_ST}
s_lshl_b32 {sCS}, {sc1_}, 10
s_add_u32 {sCS}, {sCS}, {WS_CS}
v_lshlrev_b32 v135, 16, v135""")
lp = k_pass(1, 3)
put(weave(kgen_mfma(0), [q2[4], lp[0]] + sc[:6] + [lp[1]] + sc[6:12] + [lp[2]] + sc[12:]
          + [lp[3], ("wv", "u0")] + [x_read(s) for s in range(4)] + [lp[4]]))
stamp("k")
a("s_waitcnt lgkmcnt(0)")
stamp("k")
a("s_barrier")
stamp("ak"[SEL == "k"])

fillg = {s: [] for s in range(28)}
fillg[2] += lines(f"""v_readfirstlane_b32 {sDs}, v135
s_mul_i32 {sH0}, {stg}, {112*1024}
s_lshl_b32 s74, {sc1_}, 13
s_add_u32 {sH0}, {sH0}, s74
s_add_u32 {sH1}, {sH0}, 4096
s_mul_i32 s74, {stg}, {FSP}
s_lshl_b32 s75, {sc1_}, 2
s_add_u32 s74, s74, s75
s_add_u32 {sFHw}, s74, {WS_FH}""")
fillg[3] += [f"v_accvgpr_read_b32 v{128+r}, a{144+r}" for r in range(8)]
fillg[6] += ["v_accvgpr_read_b32 v148, a157", "v_accvgpr_read_b32 v149, a158",
             "v_add_f32 v148, v148, v145", "v_add_f32 v149, v149, v146"]
fillg[2] += []
fillg[4] += [f"ds_read_b128 v[136:139], v{vKX+1}", f"ds_read_b128 v[140:143], v{vKX+1} offset:1024",
             f"ds_read_b128 v[144:147], v{vKX+1} offset:2048", ("lt", "kr")]
fillg[5] += lines(f"""s_mul_i32 {sFHr}, {sr2}, {2*FSP}
s_add_u32 {sFHr}, {sFHr}, {WS_FH}
s_mul_i32 {sHoff}, {sr2}, {2*112*1024}
s_mul_i32 s74, {sw}, {28*1024}
s_add_u32 {sHoff}, {sHoff}, s74
s_add_u32 {sHoff}, {sHoff}, {16*1024}""")
fillg[7] += [f"v_add_f32 v{128+r}, v{128+r}, v{136+r}" for r in range(8)]
fillg[9] += lines(f"""v_cmp_eq_u32 vcc, 0, v255
v_mov_b32 v140, {sDs}
v_cndmask_b32 v148, v148, v131, {sOdd}
v_cndmask_b32 v149, v149, v132, {sOdd}
v_cndmask_b32 v140, 0, v140, vcc
v_add_f32 v140, v128, v140""")
fillg[11] += lines(f"""s_mov_b32 s74, 0xaaaaaaaa
s_mov_b32 s75, 0xaaaaaaaa
v_cvt_pk_bf16_f32 v144, v149, v149
v_cndmask_b32 v141, v148, v149, s[74:75]
v_cvt_pk_bf16_f32 v146, v148, v148
v_cvt_pk_bf16_f32 v147, v148, v148
v_cvt_pk_bf16_f32 v145, v149, v141""")
fillg[13] += lines(f"""v_cvt_pk_bf16_f32 v136, v135, v134
v_cvt_pk_bf16_f32 v137, v133, v132
v_cvt_pk_bf16_f32 v138, v131, v130
v_cvt_pk_bf16_f32 v139, v129, v140
v_cvt_pk_bf16_f32 v140, v130, v130
v_cvt_pk_bf16_f32 v141, v129, v129
v_cvt_pk_bf16_f32 v142, v129, v128
v_cvt_pk_bf16_f32 v143, v128, v128""")
fillg[15] += [f"v_cndmask_b32 v{136+r}, v{136+r}, v{140+r}, {sOdd}" for r in range(4)]
fillg[17] += lines(f"""s_mul_i32 {sY}, {sjc}, {YS}
s_lshl_b32 s74, {sw}, 11
s_add_u32 {sY}, {sY}, s74
s_add_u32 {sY}, {sY}, {WS_Y}""")
fillg[19] += [f"v_mov_b32 v{r}, 0" for r in (190, 191, 193, 194)]
fillg[21] += [f"v_mov_b32 v{r}, 0" for r in (195, 196, 198, 199)]


def wd_read(kk, r):
    off = PS[(kk >> 1) % 6] - 65536 + (kk & 1) * 2048
    base = vDF if off < 65536 else vDF + 2
    return [f"ds_read_b64_tr_b16 a[{r+4*da+2*rd}:{r+4*da+2*rd+1}], v{base+da} offset:{off % 65536+rd*1024}"
            for da in range(2) for rd in range(2)]


def wd_move(kk):
    return wd_read(kk, 8 * kk)


def wfrag_read(s, t, r):
    off = SLOT[(s >> 1) % 4] + (s & 1) * 4096 + (t >> 1) * 256
    return [f"ds_read_b64_tr_b16 a[{r+2*rd}:{r+2*rd+1}], v{vWF+(t & 1)} offset:{off+rd*1024}" for rd in range(2)]


put(pack([[m] + wfrag_read(0, t, 112 + 4 * t) for t, m in enumerate(kgen_mfma(1))], w_unit(2) + [("vt", "u2")] + fillg[2], 24))
fillg[2] = []
if XE == 0:
    put(x_block(2) + [("vt", "x2")])
put([f"ds_write_b128 v{vKX}, a[152:155]", f"ds_write_b128 v{vKX}, a[156:159] offset:1024",
     f"ds_write_b128 v{vKX}, a[148:151] offset:2048", ("lt", "kx")])
stamp("k")

FL_LOAD = f"buffer_load_dword v{vF}, v{vN4}, {rWs}, {sFL} offen sc1"
F_CMP = f"v_cmp_ne_u32 vcc, {snonce}, v{vF}"
NC_LOAD = f"global_load_dword v{vNo}, v{vZ}, s[{sDbg}:{sDbg+1}] sc1"
NC_CMP = f"v_cmp_eq_u32 vcc, 0, v{vNo}"
if XE == 5:
    XD = {}
    XRD = {1: 2, 2: 3, 3: 4, 4: 5, 5: 6}
    NP = opt('np', 11)
    WDD = dict(zip([4, 6, 8, 10, 12, 14, 16, 18, 20, 22, 24][:NP], range(NP)))
    PSORD = {0: "x2", 1: "x3", 2: "x4", 3: "x5", 4: "x6", 5: None}
    PS[:] = PS[1:] + PS[:1]
    MV = dict(zip([9, 10, 11, 12, 13, 14, 15, 17, 19, 20, 22, 24][:opt('nmv', 2 * (NP - 5))], range(12)))
else:
    XD = {s: 2 + s // 2 for s in (2, 4, 6, 8)}
    XRD = {s: s // 2 for s in (4, 6, 8, 10, 12)}
    NP = 9
    WDD = dict(zip([10, 12, 14, 16, 18, 20, 22, 23, 24], range(9)))
    PSORD = {0: None, 1: "x2", 2: "x3", 3: "x4", 4: "x5", 5: "x6"}
    MV = {s: s - 14 for s in range(14, 22)}
NMV = len(MV)
carry, pre = [], []
for s in range(25):
    if s % 2 == 0 and s > 0:
        stamp("g")
    if 1 <= s <= 4:
        stamp("k")
    if s == opt('dat', -1):
        a("s_sleep 16\ns_sleep 16")
    extra, dma = [], None
    if s % 2 == 1:
        u = (s + 1) // 2
        lt = {1: "x1", 5: "kr"}.get(s)
        a.wait_both(tok[f"u{u}"], ltok[lt] if lt else None)
        a("s_barrier")
        if u + 2 < 14:
            dma = ([], w_unit(u + 2), f"u{u+2}")
    if s == 0:
        extra += [("wv", "x1")] + [x_read(k) for k in range(4, 8)] + [("lt", "x1")]
    if s in XD:
        dma = ([], x_block(XD[s]), f"x{XD[s]}")
    if s in XRD:
        cb = XRD[s]
        extra += [("wv", f"x{cb}")] + [x_read(k) for k in range(4 * cb, 4 * cb + 4)] + [("lt", f"x{cb}")]
    if s in WDD:
        p = WDD[s]
        need = PSORD[p] if p < 6 else f"mv{2*(p-6)+1}"
        dma = ([("wl", need)] if need else [], wd_pair(2 * p), f"wd{2*p}")
    if s in MV:
        kk = MV[s]
        assert s >= 2 * kk + 2
        if kk % 2 == 0:
            extra += [("wv", f"wd{kk}")]
        extra += wd_move(kk) + [("lt", f"mv{kk}")]
    if s == 12:
        extra += [NC_LOAD]
    if s == 16:
        poll("nc", NC_LOAD, NC_CMP)
        a(f"v_readfirstlane_b32 {snonce}, v{vNo}")
    if s == FL_AT:
        extra += [FL_LOAD]
    if s == FL_POLL:
        poll("fl", FL_LOAD, F_CMP)
        extra += [f"buffer_load_dword v{vF}, v{vN8}, {rWs}, {sST} offen sc1",
                  f"s_lshl_b32 s74, s97, 3\ns_add_u32 s74, s74, {WS_ST+4}\nbuffer_load_dword v228, v{vN8}, {rWs}, s74 offen sc1"]
        extra += [f"buffer_load_dwordx4 a[{160+4*t}:{163+4*t}], v{vCS}, {rWs}, {sCS} offen offset:{512*t} sc1" for t in range(2)]
    extra += fillg[s]
    AB = opt('ab', '')
    if dma and (('x' in AB and dma[2][0] == 'x') or ('w' in AB and dma[2][0] == 'w') or ('u' in AB and dma[2][0] == 'u')):
        dma = (dma[0], ["s_nop 0"] * 6, dma[2])
    main = []
    for t in range(8):
        if t % WG == 0 and s > 0:
            (main[-1] if main else pre).append(("wl", f"f{t+WG-1}" if not (PAT and t + WG - 1 == 7) else "f6"))
        c = "0" if s == 0 else f"v[{16*t}:{16*t+15}]"
        m = [f"v_mfma_f32_32x32x16_bf16 v[{16*t}:{16*t+15}], a[{112+4*t}:{115+4*t}], a[{4*s}:{4*s+3}], {c}"]
        rd = wfrag_read(s + 1, t, 112 + 4 * t) + [("lt", f"f{t}")]
        if dma and t == 0:
            m += dma[0] + [dma[1][0]]
        if PAT and t % 2 == 1 and not (s == 24 and t == 7):
            carry = rd
        else:
            m += carry + rd
            carry = []
        if dma and t % 2 == 1:
            m.append(dma[1][1 + t // 2])
            if t == 7:
                m += [("vt", dma[2]), dma[1][5]]
        main.append(m)
    put(pre + pack(main, extra, 24))
    pre = []
stamp("g")
a.wait_vm(tok["u13"])
a("s_barrier")
put(wfrag_read(26, 0, 168) + wfrag_read(27, 0, 172))
first = [f"v_cmp_gt_u32 vcc, 32, v255", "v_mov_b32 v152, 0", "v_mov_b32 v153, 0",
         f"s_add_u32 m0, {sUl}, {U1_OFF+448}", f"buffer_load_dwordx4 v{vL16}, {rWs}, {sUg} offen sc1 lds",
         f"buffer_load_dwordx4 v{vL16}, {rWs}, {sUg} offen offset:1024 sc1 lds",
         f"v_cndmask_b32 v192, 0, v{vF}, vcc\nv_cndmask_b32 v197, 0, v{vF}, vcc"]
second = [f"s_sub_u32 {sUg}, {sUg}, 2\ns_add_u32 m0, {sUl}, 448", f"buffer_load_dwordx4 v{vL16}, {rWs}, {sUg} offen sc1 lds",
          f"buffer_load_dwordx4 v{vL16}, {rWs}, {sUg} offen offset:1024 sc1 lds", ("vt", "u")]
main, epi = [], []
for t in range(8):
    r = 168 + 8 * (t % 2)
    cb = (192, 196, 190, 194)[t & 3]
    ops = [(f"a[{112+4*t}:{115+4*t}]", "a[100:103]"), (f"a[{r}:{r+3}]", "a[104:107]"), (f"a[{r+4}:{r+7}]", "a[108:111]"),
           (f"a[{160+(t & 4)}:{163+(t & 4)}]", f"v[{cb}:{cb+3}]")]
    for k, (A, B) in enumerate(ops):
        m = [f"v_mfma_f32_32x32x16_bf16 v[{16*t}:{16*t+15}], {A}, {B}, v[{16*t}:{16*t+15}]"]
        if t < 7 and k in (0, 1):
            m += wfrag_read(26 + k, t + 1, 168 + 8 * ((t + 1) % 2) + 4 * k)
        main.append(m)
    b = 16 * t
    L = [f"v_max_f32 v{b+r}, 0, v{b+r}" for r in range(8)]
    if t < 6:
        L += [f"v_mul_f32 v{b+r}, v{b+r}, v{b+8+r}" for r in range(8)]
    else:
        L += [f"v_pk_mul_f32 v[{b+r}:{b+r+1}], v[{b+r}:{b+r+1}], v[{b+8+r}:{b+9+r}]" for r in range(0, 8, 2)]
    L += [f"v_cvt_pk_bf16_f32 v{b+8+r}, v{b+2*r}, v{b+2*r+1}" for r in range(4)]
    L += [f"buffer_store_dwordx4 v[{b+8}:{b+11}], v{vL16}, {rWs}, {(sH0, sH1)[t >> 2]} offen offset:{1024*(t & 3)} sc1"]
    epi.append(L)
stamp("t")
put(pack(main[:3], first, 24) + pack(main[3:6], second, 24))
for t in range(6):
    stamp("t")
    put(pack(main[4 * t + 6:4 * t + 10], epi[t], 24))
stamp("t")
put(pack(main[30:], epi[6][:8], 24))
rest = epi[6][8:] + epi[7]
stamp()
stamp("t")
a("s_barrier")
stamp("t")


def octet_writes(d, ar, off):
    return [f"ds_write_b128 v{ar+3}, v[{d}:{d+3}] offset:{off}",
            f"ds_write2_b64 v{ar+1}, v[{d}:{d+1}], v[{d+2}:{d+3}] offset0:{off//8} offset1:{off//8+1}"] + \
           [f"ds_write2_b32 v{ar+c}, v{d+k}, v{d+k+1} offset0:{off//4+k} offset1:{off//4+k+1}" for c in (0, 2) for k in (0, 2)]


put(weave(rest, octet_writes(136, vKC, 0) + octet_writes(144, vKC + 4, 0)
          + [f"ds_write_b32 v{vKZ}, v152 offset:{4096-12}", f"ds_write_b64 v{vUZ}, v[152:153]"]))
tok["h"] = a.vm_tok()
stamp("t")
stamp("t")
a(f"s_andn2_b64 exec, 1, {sOdd}")
a.wait_vm(tok["u"])
a(f"""ds_write_b16 v{vUZ}, v152 offset:448
s_mov_b64 exec, -1
s_waitcnt lgkmcnt(0)""")
stamp("t")
a("s_barrier")
stamp()
stamp("t")


def a_read(n):
    return f"ds_read_b128 a[{128+4*(n % 4)}:{131+4*(n % 4)}], v{vCK} offset:{64*(62-2*n)}"


def u_read(be, i):
    return f"ds_read_b128 v[{16*be+4*i}:{16*be+4*i+3}], v{vCU} offset:{512*be-128*i+384}"


NH = opt('nh', 8)
ORD = list(range(16, 28)) + list(range(16))


def h_load(i):
    g = []
    for ta in range(2):
        r = 96 + 8 * (i % NH) + 4 * ta
        g.append(f"buffer_load_dwordx4 v[{r}:{r+3}], v{vH+ta}, {rWs}, {sHoff} offen offset:{1024*(i % 4)} {HFL}")
    if i % 4 == 3:
        if ROT:
            g[-1] += "\n" + wrap(sHoff, 4096, "s11", "s10")
        else:
            g[-1] += f"\ns_add_u32 {sHoff}, {sHoff}, 4096" if i != 11 else f"\ns_sub_u32 {sHoff}, {sHoff}, {24*1024}"
    return g


put([a_read(0)] + [u_read(be, 0) for be in range(8)] + [a_read(1), a_read(2)])
FH_LOAD = f"buffer_load_dword v{vF}, v{vFH}, {rWs}, {sFHr} offen sc1"
fill = {n: [] for n in range(32)}
for i in range(1, 4):
    fill[i - 1] += [u_read(be, i) for be in range(8)]
fill[2] += [("lt", "ub")]
if XRAT:
    fill[3] += XRES
fill[FHW_AT] += [("wv", "h"), f"s_mov_b64 exec, 1\nbuffer_store_dword v{vNo}, v{vZ}, {rWs}, {sFHw} offen sc1\ns_mov_b64 exec, -1"]
n = opt('mv0', 3)
pend = [p for p in range(NP, 14) if 2 * (p - 6) + 1 < NMV]
for k, p in enumerate(pend):
    fill[1 + k] = wd_pair(2 * p) + [("vt", f"wd{2*p}")] + fill[1 + k]
for kk in range(NMV, 16):
    if kk % 2 == 0:
        fill[n] += [("wv", f"wd{kk}")]
    fill[n] += wd_move(kk) + [("lt", f"mv{kk}")]
    if kk % 2 == 1:
        fill[n + 2] += [("wl", f"mv{kk}")] + wd_pair(kk + 11) + [("vt", f"wd{kk+11}")]
    n += 1
YB, YW = opt('yb', 5), opt('yw', 16)
fill[FH_AT] += [FH_LOAD]
for j in range(7):
    fill[(YW, YW + 1, YW + 2, max(17, YW + 3), 21, 25, 29)[j]] += [f"ds_write_b128 v{vYW}, a[{224+4*j}:{227+4*j}] offset:{4096*((j+1) % 8)}"]
hl = [(i, g) for i in range(28) for g in h_load(i)]
for n in range(FH_POLL, 32):
    if hl[0][0] < NH:
        fill[n] += [hl.pop(0)[1]]
for P in range(8):
    for i in range(4):
        n = 4 * P + i
        if n % 4 == 0 or n in (2, 6, 10):
            stamp("c")
        if n == YB:
            a.wait_lg(ltok["ub"])
            a("s_barrier")
        if n == FH_POLL:
            poll("fh", FH_LOAD, F_CMP)
        main = []
        for be in range(8 - P):
            j = P + be
            c = "0" if n == 0 else f"a[{224+4*j}:{227+4*j}]"
            main.append(f"v_mfma_f32_16x16x32_bf16 a[{224+4*j}:{227+4*j}], a[{128+4*(n % 4)}:{131+4*(n % 4)}], v[{16*be+4*i}:{16*be+4*i+3}], {c}")
        put(pack([[m] for m in main], ([a_read(n + 3)] if n + 3 < 32 else []) + fill[n], 8))
stamp()
stamp("f")
put([("wv", "wd16")] + wd_read(16, 128))
a(f"ds_write_b128 v{vYW}, a[252:255]")
ltok["y7"] = a.lg_tok()
stamp()
stamp("f")

XS = lambda g, e: (80 if g < 4 else 0) + 4 * g + 2 * e
FY_LOAD = f"buffer_load_dword v{vF}, v{vN4}, {rWs}, s80 offen sc1"
fill = {k: [] for k in range(28)}
fill[0] += [("wl", "y7"), "s_barrier"]
for jj in range(2):
    r = 64 + 16 * jj
    fill[0] += [f"ds_read_b64 v[{r+4*src+2*ph}:{r+4*src+2*ph+1}], v{vYR+jj} offset:{1024*src+16*ph}"
                for src in range(4) for ph in range(2)]
    fill[1 + jj] += [f"v_add_f32 v{r+k}, v{r+k}, v{r+k+4}" for k in (0, 1, 2, 3, 8, 9, 10, 11)]
    fill[1 + jj] += [f"v_cvt_pk_bf16_f32 v{r+4+k}, v{r+o}, v{r+8+o}" for k, o in enumerate((0, 2, 1, 3))] + \
        [f"buffer_store_dwordx4 v[{r+4}:{r+7}], v{vL16}, {rWs}, {sY} offen offset:{1024*jj} sc1", ("vt", "y")]
fill[4] += lines(f"""s_lshr_b32 s74, {sjc}, 5
s_lshl_b32 s74, s74, 2
s_add_u32 s74, s74, {sw}
s_mul_i32 s74, s74, {FSP}
s_and_b32 s75, {sjc}, 31
s_lshl_b32 s75, s75, 2
s_add_u32 s74, s74, s75
s_add_u32 s95, s74, {WS_FY}""", 2)
fill[FYW_AT] += [("wv", "y"), f"s_mov_b64 exec, 1\nbuffer_store_dword v{vNo}, v{vZ}, {rWs}, s95 offen sc1\ns_mov_b64 exec, -1"]
fill[5] += lines(f"""s_lshl_b32 s80, {sc2}, 2
s_lshr_b32 s74, {sr2}, 3
s_add_u32 s80, s80, s74
s_mul_i32 s80, s80, {FSP}
s_add_u32 s80, s80, {WS_FY}
s_add_u32 s13, {sw4k}, {RX}
v_add_u32 v230, s13, v{vL16}""", 2)
fill[9] += [f"ds_write_b128 v230, v[242:245] offset:{XR}"] + lines(f"""v_mul_u32_u24 v234, 224, v{vN4}
v_lshl_add_u32 v234, v{fKG}, 4, v234""")
fill[10] += [f"ds_write_b128 v230, v[246:249] offset:{XR+1024}"] + lines(f"""v_lshlrev_b32 v231, 4, v{fR}
v_lshl_add_u32 v231, v{vN4}, 4, v231
v_lshl_add_u32 v231, v{fKG}, 3, v231""")
fill[12] += lines(f"""v_add_u32 v236, s13, v231
v_xor_b32 v237, 16, v236
v_xor_b32 v238, 32, v236
v_xor_b32 v239, 48, v236
v_mul_u32_u24 v235, {2*YS}, v{fKG}
v_add_u32 v235, v235, v{vN4}""") + [f"ds_read_b64 v[{64+2*g}:{65+2*g}], v{236+g} offset:{XR}" for g in range(4)] + [("lt", "xr")]
fill[13] += lines(f"""s_mul_i32 s74, s17, {YS//4}
s_lshl_b32 s75, s97, 2
s_add_u32 s74, s74, s75
s_add_u32 s96, s74, {WS_Y}""", 2)
fill[14] += [f"v_xor_b32 v{240+k}, {4096*k}, v230" for k in range(1, 4)]
fill[FY_AT] += [FY_LOAD]
for g in range(4):
    for e in range(2):
        fill[17 + g] += [f"v_lshlrev_b32 v{XS(g, e)}, 16, v{64+2*g+e}", f"v_and_b32 v{XS(g, e)+1}, {sMask}, v{64+2*g+e}"]
for g in range(4):
    for e in range(2):
        fill[min(27, FY_POLL + g // 2)] += [f"buffer_load_dword v{72+2*g+e}, v235, {rWs}, s96 offen sc1\ns_add_u32 s96, s96, {YS if e == 0 else 3*YS}"]
DEF = opt('def', NH)
late = []
HL0 = opt('hl0', 1)
for i in range(28):
    kk = ORD[i]
    if i % 2 == 0 and i > 0:
        stamp("h")
    if i < 14:
        stamp("j")
    extra = []
    if i + 1 < 12:
        if (kk + 1) % 2 == 0:
            extra += [("wv", f"wd{kk+1}")]
        extra += wd_read(kk + 1, 128 + 8 * ((kk + 1) % 2))
    if i == FY_POLL:
        poll("fy", FY_LOAD, F_CMP)
    main = []
    for ta in range(2):
        for da in range(2):
            acc = 16 * (da + 2 * ta)
            c = "0" if i == 0 else f"v[{acc}:{acc+15}]"
            fa = (8 * kk if kk < 16 else 128 + 8 * (kk % 2)) + 4 * da
            fb = 96 + 8 * (i % NH) + 4 * ta
            m = [f"v_mfma_f32_32x32x16_bf16 v[{acc}:{acc+15}], a[{fa}:{fa+3}], v[{fb}:{fb+3}], {c}"]
            if acc == 0 and i >= 28 - DEF:
                late.append(m)
                continue
            if hl and i >= HL0 and (da, ta) != (0, 0) and (hl[0][0] < i + NH or (hl[0][0] == i + NH and da == 1 and len(hl) % 2 == ta % 2)):
                m.append(hl.pop(0)[1])
            main.append(m)
    AB = opt('ab', '')
    fl_ = fill[i]
    if 'X' in AB:
        fl_ = [e for e in fl_ if isinstance(e, tuple) or not (" lds" in e or "v80," in e)]
    if 'Y' in AB and i == FYW_AT:
        fl_ = [e for e in fl_ if e != ("wv", "y")]
    if 'D' in AB:
        extra = [e for e in extra if not isinstance(e, tuple)]
    put(pack(main, extra + fl_, 24))
assert not hl
stamp()
stamp("f")
wr = [f"ds_write_b128 v230, v[{16*k+4*g}:{16*k+4*g+3}] offset:{(k-1)*16384+1024*g}" for k in range(1, 4) for g in range(4)]
yadd = []
for g in range(4):
    for e in range(2):
        yr, d = 72 + 2 * g + e, XS(g, e)
        yadd += [f"v_lshlrev_b32 v64, 16, v{yr}", f"v_and_b32 v65, {sMask}, v{yr}",
                 f"v_add_f32 v{d}, v{d}, v64", f"v_add_f32 v{d+1}, v{d+1}, v65"]
YIN = opt('yin', 1)
w1 = weave(late, wr[:8]) if late else wr[:8]
put(w1 + (weave(wr[8:], yadd) if YIN else wr[8:]))
stamp("f")
a("s_waitcnt lgkmcnt(0)")
stamp("f")
a("s_barrier")
stamp("f")
for g in range(4):
    for k in range(1, 4):
        a(f"ds_read_b128 v[{16*k+4*g}:{16*k+4*g+3}], v{240+k} offset:{(k-1)*16384+1024*g}")
stamp("f")
if not YIN:
    put(yadd)
stamp("f")
for g in range(4):
    for e in range(2):
        r = 4 * g + 2 * e
        for k in range(1, 4):
            a(f"v_pk_add_f32 v[{r}:{r+1}], v[{r}:{r+1}], v[{16*k+r}:{16*k+r+1}]")
        a(f"v_pk_fma_f32 v[{r}:{r+1}], v[{r}:{r+1}], v[228:229], v[{XS(g, e)}:{XS(g, e)+1}] op_sel_hi:[1,0,1]")
    a(f"v_cvt_pk_bf16_f32 v{116+2*g}, v{4*g}, v{4*g+1}\nv_cvt_pk_bf16_f32 v{117+2*g}, v{4*g+2}, v{4*g+3}")
    if g % 2 == 1:
        b = 116 + 2 * (g - 1)
        a(f"v_permlane32_swap_b32 v{b}, v{b+2}\nv_permlane32_swap_b32 v{b+1}, v{b+3}")
        a(f"buffer_store_dwordx4 v[{b}:{b+3}], v234, {rOut}, s16 offen offset:{16*(g-1)} {OUTFL}")
        stamp("f")
stamp()


def stamp_out():
    if not STAMP:
        return
    a(f"""
s_waitcnt vmcnt(0) lgkmcnt(0)
v_writelane_b32 v254, s98, {nstamp[0]-1}
{CLK} s[98:99]
s_waitcnt lgkmcnt(0)
v_writelane_b32 v254, s98, 15
s_lshl_b32 s84, s2, 2
s_add_u32 s84, s84, {sw}
s_lshl_b32 s84, s84, 6
s_add_u32 s84, s84, {WS_TS}
v_lshlrev_b32 v1, 2, v255
s_mov_b64 exec, 0xffff
buffer_store_dword v254, v1, {rWs}, s84 offen
""")


stamp_out()
a("s_endpgm")

a.reset()
NC_LOAD = f"global_load_dword v202, v203, s[{sDbg}:{sDbg+1}] sc1"
NC_CMP = "v_cmp_eq_u32 vcc, 0, v202"
shq = "s59"
a(f"""
L_helper:
s_lshl_b32 {shq}, {sxcd}, 2
s_add_u32 {shq}, {shq}, {sj}
v_mov_b32 v203, 0
v_lshrrev_b32 v1, 2, v255
s_lshl_b32 s83, {shq}, 2
s_add_u32 s83, s83, {sw}
s_lshl_b32 s72, s83, 4
v_add_u32 v4, s72, v1
v_mul_u32_u24 v5, 896, v4
v_and_b32 v2, 3, v255
v_lshl_add_u32 v5, v2, 4, v5
s_lshr_b32 s73, {sxcd}, 1
s_lshl_b32 s73, s73, 2
s_add_u32 s60, s73, {sj}
s_min_u32 s73, s60, 13
s_and_b32 s74, {sxcd}, 1
s_mul_i32 s74, s74, 14
s_add_u32 s61, s73, s74
s_lshr_b32 s73, s61, 1
s_lshl_b32 s82, s73, 8
v_lshrrev_b32 v6, 4, v255
s_lshl_b32 s75, {sw}, 2
v_add_u32 v6, s75, v6
v_mul_u32_u24 v7, 3584, v6
v_and_b32 v3, 15, v255
v_lshl_add_u32 v7, v3, 4, v7
s_mov_b32 s72, {WS_EP}
s_waitcnt lgkmcnt(0)
""")
if STAMP:
    a("v_mov_b32 v254, 0\nv_writelane_b32 v254, s100, 0")
    nstamp[0] = 1
stamp(SEL[0])
a(f"""
s_mov_b32 s36, s{sX}
s_mov_b32 s37, s{sX+1}
s_mov_b32 s48, s{sWs}
s_mov_b32 s49, s{sWs+1}
buffer_load_dword v202, v203, {rWs}, s72 offen sc1
""")
for i in range(14):
    a(f"buffer_load_dwordx4 v[{8+4*i}:{11+4*i}], v5, {rX}, 0 offen offset:{64*i}")
a(f"""
s_mov_b32 s73, 1664525
v_mul_lo_u32 v202, v202, s73
s_cmp_eq_u32 s83, 127
v_add_u32 v202, 1013904225, v202
v_or_b32 v202, 1, v202
s_cbranch_scc0 L_hnoep
s_mov_b64 exec, 1
""")
a.items.append(("raw", f"    global_store_dword v203, v202, s[{sDbg}:{sDbg+1}] sc1"))
a.items.append(("raw", f"    buffer_store_dword v202, v203, {rWs}, s72 offen sc1"))
a(f"""
s_mov_b64 exec, -1
L_hnoep:
s_bitcmp1_b32 s61, 0
s_cselect_b32 s40, s{sWu}, s{sWg}
s_cselect_b32 s41, s{sWu+1}, s{sWg+1}
""")
wl = [f"buffer_load_dwordx4 v[{72+4*i}:{75+4*i}], v7, {rW}, s82 offen\ns_add_u32 s82, s82, {16*3584}" for i in range(28)]
HW0 = opt('hw0', 0)
put(wl[:HW0])
wl = wl[HW0:]
a(f"""
s_mov_b32 s76, 0x3f803f80
s_mov_b32 s77, 0x00003f80
s_mov_b32 s79, 0x3f800000
""")
for _ in range(opt('dhelp', 0)):
    a("s_sleep 16")
EXACT = "--noexact" not in sys.argv
L = []
for i in range(56):
    c0, c1 = ("0", "0") if i == 0 else ("v64", "v68")
    L.append([f"v_dot2_f32_bf16 v64, v{8+i}, s76, {c0}", f"v_dot2_f32_bf16 v68, v{8+i}, v{8+i}, {c1}"])
HW1 = opt('hw1', 0)
put(L[0] + weave(L[1:], wl[:HW1]))
wl = wl[HW1:]
stamp()
a(f"""
v_add_f32_dpp v64, v64, v64 quad_perm:[1,0,3,2] row_mask:0xf bank_mask:0xf
v_add_f32_dpp v68, v68, v68 quad_perm:[1,0,3,2] row_mask:0xf bank_mask:0xf
v_lshlrev_b32 v4, 3, v4
v_add_f32_dpp v64, v64, v64 quad_perm:[2,3,0,1] row_mask:0xf bank_mask:0xf
v_add_f32_dpp v68, v68, v68 quad_perm:[2,3,0,1] row_mask:0xf bank_mask:0xf
v_mul_f32 v64, {hex(0x3b124925)}, v64
v_mul_f32 v68, {hex(0x3b124925)}, v68
v_fma_f32 v68, -v64, v64, v68
v_cvt_pk_bf16_f32 v64, -v64, -v64
v_max_f32 v68, 0, v68
v_cvt_pk_bf16_f32 v68, v68, v68
v_and_b32 v68, {sMask}, v68
v_add_f32 v68, 0x3727c5ac, v68
v_cvt_pk_bf16_f32 v68, v68, v68
v_and_b32 v68, {sMask}, v68
v_sqrt_f32 v68, v68
v_and_b32 v66, {sMask}, v64
v_cvt_pk_bf16_f32 v68, v68, v68
v_and_b32 v68, {sMask}, v68
v_rcp_f32 v70, v68
s_mov_b32 s74, {WS_ST}
v_fma_f32 v71, -v68, v70, 1.0
v_fma_f32 v70, v70, v71, v70
v_mul_f32 v65, v70, v70
v_mul_f32 v71, v66, v70
s_mov_b32 s80, 0x11111111
s_mov_b32 s81, 0x11111111
s_mov_b64 exec, s[80:81]
buffer_store_dwordx2 v[64:65], v4, {rWs}, s74 offen sc1
s_mov_b64 exec, -1
v_mul_u32_u24 v5, 960, v1
s_mul_i32 s75, {sw}, {16*960}
v_lshl_add_u32 v5, v2, 4, v5
v_add_u32 v5, s75, v5
""")
L2B = 64 * 960
L3B = L2B + 448 * 144
a(f"""
v_lshrrev_b32 v1, 5, v255
v_bfe_u32 v2, v255, 2, 2
v_lshl_add_u32 v2, v1, 3, v2
v_mul_u32_u24 v2, 960, v2
v_bfe_u32 v4, v255, 4, 1
v_lshl_add_u32 v2, v4, 5, v2
v_and_b32 v4, 3, v255
v_lshl_add_u32 v2, v4, 3, v2
v_add_u32 v194, s75, v2
v_and_b32 v4, 31, v255
v_mul_u32_u24 v4, 144, v4
s_lshl_b32 s74, {sw}, 5
s_add_u32 s74, s74, {L2B}
v_lshl_add_u32 v4, v1, 4, v4
v_add_u32 v195, s74, v4
v_lshlrev_b32 v6, 9, v6
v_lshl_add_u32 v6, v3, 5, v6
v_add_u32 v6, {L3B}, v6
v_lshrrev_b32 v1, 3, v255
v_and_b32 v2, 7, v255
v_lshlrev_b32 v2, 4, v2
v_mul_u32_u24 v197, {XTS}, v1
v_add_u32 v197, v197, v2
v_mul_u32_u24 v1, 144, v1
v_add_u32 v1, v1, v2
s_mul_i32 s74, {sw}, {112*144}
s_add_u32 s74, s74, {L2B}
v_add_u32 v196, s74, v1
s_lshl_b32 s74, {shq}, 7
s_mul_i32 s75, {sw}, {112*XTS}
s_add_u32 s74, s74, s75
s_add_u32 s62, s74, {WS_XT}
s_and_b32 s75, {sw}, 1
s_lshl_b32 s75, s75, 8
v_lshl_add_u32 v2, v255, 2, s75
v_add_u32 v198, {L3B}, v2
""")


L = []
for i in range(56):
    t = 186 + 2 * (i % 4)
    if EXACT:
        g = [f"v_dot2_f32_bf16 v{t}, v{8+i}, s77, v66", f"v_dot2_f32_bf16 v{t+1}, v{8+i}, s79, v66"]
        if i > 0:
            p = 186 + 2 * ((i - 1) % 4)
            g += [f"v_cvt_pk_bf16_f32 v{7+i}, v{p}, v{p+1}", f"v_lshlrev_b32 v{p}, 16, v{7+i}", f"v_and_b32 v{p+1}, {sMask}, v{7+i}",
                  f"v_pk_mul_f32 v[{p}:{p+1}], v[{p}:{p+1}], v[70:71] op_sel_hi:[1,0]", f"v_cvt_pk_bf16_f32 v{7+i}, v{p}, v{p+1}"]
            if i % 4 == 0:
                g.append(f"ds_write_b128 v5, v[{4+i}:{7+i}] offset:{64*(i//4-1)}")
        if i == 55:
            g += ["s_nop 0", f"v_cvt_pk_bf16_f32 v63, v{t}, v{t+1}", f"v_lshlrev_b32 v{t}, 16, v63", f"v_and_b32 v{t+1}, {sMask}, v63",
                  f"v_pk_mul_f32 v[{t}:{t+1}], v[{t}:{t+1}], v[70:71] op_sel_hi:[1,0]", f"v_cvt_pk_bf16_f32 v63, v{t}, v{t+1}",
                  f"ds_write_b128 v5, v[60:63] offset:{64*13}"]
    else:
        g = [f"v_lshlrev_b32 v{t}, 16, v{8+i}", f"v_and_b32 v{t+1}, {sMask}, v{8+i}",
             f"v_pk_fma_f32 v[{t}:{t+1}], v[{t}:{t+1}], v[70:71], v[70:71] op_sel:[0,0,1] op_sel_hi:[1,0,1]",
             f"v_cvt_pk_bf16_f32 v{8+i}, v{t}, v{t+1}"]
        if i % 4 == 3:
            g.append(f"ds_write_b128 v5, v[{8+i-3}:{8+i}] offset:{64*(i//4)}")
    L.append(g)
HW2 = opt('hw2', 10)
put(weave(L, wl[:HW2]))
wl = wl[HW2:]
stamp()
if WM == 1:
    a(f"""
s_mul_i32 s74, s83, {98*128}
v_min_u32 v199, 48, v255
v_lshlrev_b32 v199, 7, v199
v_add_u32 v199, s74, v199
global_load_dword v200, v199, s[{sWd}:{sWd+1}]
global_load_dword v201, v199, s[{sWd}:{sWd+1}] offset:{0}
""".replace("global_load_dword v201, v199, s[28:29] offset:0", f"v_add_u32 v199, {49*128}, v199\nglobal_load_dword v201, v199, s[28:29]"))
HW3 = opt('hw3', 99)
put(wl[:min(HW3, 12)])
wl2 = wl[min(HW3, 12):HW3]
wl = wl[HW3:]
for b in range(14):
    a(f"ds_read_b64_tr_b16 v[{8+4*b}:{9+4*b}], v194 offset:{64*b}\nds_read_b64_tr_b16 v[{10+4*b}:{11+4*b}], v194 offset:{64*b+4*960}")
cs = []
for i in range(28):
    for d in range(4):
        c0, c1 = ("0", "0") if i == 0 else (f"v{64+2*d}", f"v{65+2*d}")
        cs += [f"v_dot2_f32_bf16 v{64+2*d}, v{72+4*i+d}, s77, {c0}", f"v_dot2_f32_bf16 v{65+2*d}, v{72+4*i+d}, s79, {c1}"]
NC0 = opt('nc0', 0)
put(weave([f"ds_write_b128 v195, v[{8+4*b}:{11+4*b}] offset:{32*144*b}" for b in range(14)], wl2 + cs[:NC0]))
a(f"{NC_LOAD}\ns_waitcnt lgkmcnt(0)\ns_barrier")
stamp()
for b in range(14):
    a(f"ds_read_b128 v[{8+4*b}:{11+4*b}], v196 offset:{8*144*b}")
put(weave([f"buffer_store_dwordx4 v[{8+4*b}:{11+4*b}], v197, {rWs}, s62 offen sc1\ns_add_u32 s62, s62, {8*XTS}" for b in range(14)], [] if wl else cs[NC0:]))
if wl:
    put(wl + cs[NC0:])
a("""
ds_write_b128 v6, v[64:67]
ds_write_b128 v6, v[68:71] offset:16
s_waitcnt lgkmcnt(0)
s_barrier
""")
stamp()
for r in range(16):
    a(f"ds_read_b32 v{72+r}, v198 offset:{512*r}")
for st_ in (8, 4, 2, 1):
    for r in range(st_):
        a(f"v_add_f32 v{72+r}, v{72+r}, v{72+r+st_}")
a(f"""
v_cvt_pk_bf16_f32 v73, v72, v72
v_and_b32 v73, {sMask}, v73
v_sub_f32 v74, v72, v73
v_cvt_pk_bf16_f32 v73, v73, v74
v_lshlrev_b32 v2, 4, v3
v_lshrrev_b32 v1, 4, v255
v_lshl_add_u32 v2, v1, 2, v2
s_lshr_b32 s74, s61, 1
s_lshl_b32 s74, s74, 1
s_add_u32 s74, s74, {sw}
s_lshl_b32 s74, s74, 1
s_and_b32 s75, s61, 1
s_add_u32 s74, s74, s75
s_lshl_b32 s74, s74, 8
s_add_u32 s74, s74, {WS_CS}
s_cmp_lt_u32 s60, 14
s_cselect_b32 s74, s74, {WS_SIZE}
s_cmp_lt_u32 {sw}, 2
s_cselect_b32 s74, s74, {WS_SIZE}
buffer_store_dword v73, v2, {rWs}, s74 offen sc1
""")
stamp()
poll("hnc", NC_LOAD, NC_CMP)
a(f"""
v_mul_u32_u24 v1, {FSP}, v255
s_lshl_b32 s74, {shq}, 2
s_add_u32 s74, s74, {WS_FL}
s_waitcnt vmcnt(0)
s_barrier
s_cmp_eq_u32 {sw}, 0
s_cbranch_scc0 L_hdone
s_mov_b64 exec, 0xff
buffer_store_dword v202, v1, {rWs}, s74 offen sc1
s_mov_b64 exec, -1
L_hdone:
""")
stamp()
stamp_out()
a("L_end:\ns_endpgm")
for sp in slow:
    a.reset()
    a(sp)
a("L_codeend:\ns_endpgm")

body = a.render()
here = os.path.dirname(os.path.abspath(__file__))
ref = open(os.path.join(here, "..", "cdna_kernels", NAME + ".s.ref")).read()
head = [l for l in ref.split("\n") if l.startswith(";") and "@launch" not in l and "Override" not in l and "grid=ceil" not in l]
txt = "\n".join(head) + f"""
; Generated by tools/gen.py (hand-written generator).  XTS={XTS} YS={YS} CSL=1
; @launch grid=(256,1,1) block=(256,1,1) lds=163840
.amdgcn_target "amdgcn-amd-amdhsa--gfx950"
.text
.globl {NAME}_kernel
.p2align 8
.type {NAME}_kernel,@function
{NAME}_kernel:
{body}
.section .rodata,"a"
.p2align 6
.amdhsa_kernel {NAME}_kernel
  .amdhsa_next_free_vgpr 512
  .amdhsa_next_free_sgpr 102
  .amdhsa_accum_offset 256
  .amdhsa_group_segment_fixed_size 0
  .amdhsa_kernarg_size 128
  .amdhsa_user_sgpr_count 2
  .amdhsa_user_sgpr_kernarg_segment_ptr 1
  .amdhsa_system_sgpr_workgroup_id_x 1
.end_amdhsa_kernel
"""
out = [x for x in sys.argv[1:] if not x.startswith("--")]
path = out[0] if out else os.path.join(here, "..", "cdna_kernels", NAME + ".s")
open(path, "w").write(txt)
print(path, a.stats, file=sys.stderr)
```

```python
import sys, os
sys.path.insert(0, os.path.dirname(os.path.abspath(__file__)))
from asmdsl import Asm

NAME = "parallel_sum__ssm_conv_s4__glu_gated_reglu__prompt"
STAMP = "--stamp" in sys.argv


def opt(name, dflt):
    v = [x.split('=')[1] for x in sys.argv if x.startswith('--' + name + '=')]
    return type(dflt)(v[0]) if v else dflt


WS_H, WS_XT, WS_Y = 0x0, 0x700000, 0x900000
XTS, YS = 4096 + opt('xtp', 128), 8192 + opt('yp', 128)
WS_ST, WS_CS = 0xB00000, 0xB04000
WS_FH, WS_FY, WS_FL, WS_EP = 0xB10000, 0xB20000, 0xB28000, 0xB2C000
WS_TS = 0xB30000
WS_SIZE = 0xB80000
FSP = 1024
SLOT = [0, 16384, 32768, 49152]
XB = 32768
SC = 147456
UB = 33536
U1_OFF = 4640
U_CH = 9280
KC0, KC_CH, KC_CP = 16, 16656, 4160
YX = 32768
RX = 65536
XR = 49152
PS = [SC] + [XB + k * 16384 for k in range(2, 7)]
SPIN = 200000
FHW_AT, FH_AT, FH_POLL = opt('fhw', 2), opt('fh', 16), opt('fhp', 20)
FYW_AT, FY_AT, FY_POLL = opt('fyw', 6), opt('fy', 19), opt('fyp', 24)
FL_AT, FL_POLL = opt('fl', 20), opt('flp', 23)
OUTFL = 'sc1' if '--outsc1' in sys.argv else ''
SEL = opt('sel', 'a')
CV = opt('cv', 20)
PAT = opt('pat', 0)
WG = opt('wg', 4)

sX, sAre, sAim, sBre, sBim, sCre, sCim, sLdt, sDsk = 4, 6, 8, 10, 12, 14, 16, 18, 20
sWg, sWu, sWd, sOut, sDbg, sWs = 24, 26, 28, 30, 32, 34
rX, rW, rWd, rWs, rOut = "s[36:39]", "s[40:43]", "s[44:47]", "s[48:51]", "s[52:55]"
sw, sxcd, sj, sr1, sc1_, sjc, sr2, sc2, snonce = "s56", "s57", "s58", "s59", "s60", "s61", "s62", "s63", "s64"
sWoff, sWdoff, sDs, scnt = "s65", "s66", "s67", "s68"
sq, sXoff, sw4k, sWl, sMask = "s69", "s72", "s73", "s77", "s78"
sFL, stg, sUl, sUg, sH0, sH1, sKC, sHoff = "s80", "s81", "s82", "s83", "s86", "s87", "s88", "s89"
sST, sCS, sFHw, sFHr, sY = "s90", "s91", "s92", "s93", "s94"
sOdd = "s[22:23]"

vKC, vKZ, vUZ, vKX, vXR, vXD, vWD, vWF, vKL = 160, 168, 169, 170, 172, 180, 184, 188, 190
vDD, vDF, vCU, vCK, vN4, vN8, vCS, vF, vYW, vYR, vFH, vH = 200, 204, 208, 209, 210, 211, 212, 213, 214, 215, 217, 218
fC, fR, fKG, fQ, fG, vNo, vZ, vL16 = 220, 221, 222, 223, 226, 224, 225, 250

a = Asm()
slow = []
nstamp = [0]
tok, ltok = {}, {}


def stamp(kind="a"):
    if not STAMP or kind not in SEL:
        return
    k = nstamp[0]
    nstamp[0] += 1
    if k > 1:
        a.items.append(("raw", f"    v_writelane_b32 v254, s98, {k-1}"))
    a.items.append(("raw", f"    {CLK} s[98:99]"))


def poll(name, load, cmp_):
    a(cmp_)
    a(f"s_cbranch_vccnz L_slow_{name}")
    a(f"L_back_{name}:")
    slow.append(f"""L_slow_{name}:
s_mov_b32 {scnt}, 0
L_retry_{name}:
s_add_u32 {scnt}, {scnt}, 1
s_cmp_gt_u32 {scnt}, {SPIN}
s_cbranch_scc1 L_back_{name}
{load}
s_waitcnt vmcnt(0)
{cmp_}
s_cbranch_vccnz L_retry_{name}
s_branch L_back_{name}""")


def put(items):
    for e in items:
        if isinstance(e, tuple):
            if e[0] == "vt": tok[e[1]] = a.vm_tok()
            if e[0] == "lt": ltok[e[1]] = a.lg_tok()
            if e[0] == "wv": a.wait_vm(tok[e[1]])
            if e[0] == "wl": a.wait_lg(ltok[e[1]])
        else:
            a(e)


def weave(main, extra):
    nreal = sum(1 for e in extra if not isinstance(e, tuple))
    out, k, done = [], 0, 0
    for t, m in enumerate(main):
        out += m if isinstance(m, list) else [m]
        goal = -(-(nreal * (t + 1)) // len(main))
        while k < len(extra) and (isinstance(extra[k], tuple) or done < goal):
            out.append(extra[k])
            done += not isinstance(extra[k], tuple)
            k += 1
    return out


def cost(e):
    if isinstance(e, tuple):
        return 4 if e[0] in ("wv", "wl") else 0
    c = 0
    for l in e.split("\n"):
        op = l.split()[0]
        if op.startswith(("buffer_", "global_")):
            c += CV if "x4" in op else 12
        elif op.startswith("ds_write"):
            c += 28 if "b128" in op or "2_b64" in op else 14
        else:
            c += 4
    return c


def pack(main, extra, cap):
    base = [sum(cost(x) for x in m[1:]) for m in main]
    n, G = len(extra), len(main)
    cs = [cost(e) for e in extra]
    INF = 1 << 60
    best = [[INF] * (n + 1) for _ in range(G + 1)]
    frm = [[0] * (n + 1) for _ in range(G + 1)]
    best[0][0] = 0
    for g in range(G):
        for i in range(n + 1):
            if best[g][i] == INF:
                continue
            load = base[g]
            for j in range(i, n + 1):
                if j > i:
                    load += cs[j - 1]
                v = best[g][i] + 1000 * max(0, load - cap) + load * load // 16
                if v < best[g + 1][j]:
                    best[g + 1][j] = v
                    frm[g + 1][j] = i
    cuts, j = [], n
    for g in range(G, 0, -1):
        cuts.append((frm[g][j], j))
        j = frm[g][j]
    cuts.reverse()
    out = []
    for m, (i, j) in zip(main, cuts):
        out += m + extra[i:j]
    return out


def lines(txt, per=1):
    L = [l for l in txt.strip().split("\n")]
    return ["\n".join(L[i:i + per]) for i in range(0, len(L), per)]


T64 = opt('t64', 0)
KA = 240 if T64 else 144
ROT = opt('rot', 0)
HFL = opt('hfl', 'sc1').replace('_', ' ').replace('none', '')


def wrap(reg, step, lim, base):
    return f"s_add_u32 {reg}, {reg}, {step}\ns_cmp_eq_u32 {reg}, {lim}\ns_cselect_b32 {reg}, {base}, {reg}"


def dma4(m0, vo, srd, soff, step, fl=""):
    g = [m0, f"buffer_load_dwordx4 v{vo}, {srd}, {soff} offen {fl} lds"]
    for i in range(1, 4):
        g.append(f"buffer_load_dwordx4 v{vo+i}, {srd}, {soff} offen offset:{1024*i} {fl} lds")
    g.append(f"s_add_u32 {soff}, {soff}, {step}")
    return g


def w_unit(u):
    return dma4(f"s_add_u32 m0, {sWl}, {SLOT[u % 4]}", vWD, rW, sWoff, 32 * 3584)


def x_block(cb):
    return dma4(f"s_add_u32 m0, {sw4k}, {XB+cb*16384}", vXD, rX, sXoff, 128)


def wd_pair(kk):
    g = dma4(f"s_add_u32 m0, {sw4k}, {PS[(kk >> 1) % 6]}", vDD, rWd, sWdoff, 32 * 896)
    if ROT and kk % 4 == 2:
        g[-1] = wrap(sWdoff, 32 * 896, "s9", "s8")
    return g


CLK = "s_memtime" if "--cyc" in sys.argv else "s_memrealtime"
if STAMP:
    a(f"{CLK} s[100:101]")
a(f"""
s_cmp_ge_u32 s2, 256
s_cbranch_scc1 L_end
s_load_dwordx16 s[4:19], s[0:1], 0
s_load_dwordx16 s[20:35], s[0:1], 64
s_getpc_b64 s[70:71]
L_pc:
s_and_b32 {sxcd}, s2, 7
s_lshr_b32 {sj}, s2, 3
v_lshrrev_b32 v1, 6, v0
v_and_b32 v255, 63, v0
v_readfirstlane_b32 {sw}, v1
""")
a(f"""
s_and_b32 {sq}, {sj}, 3
s_lshl_b32 s74, {sq}, 6
v_lshl_add_u32 v2, v1, 4, v255
v_add_u32 v2, s74, v2
v_lshlrev_b32 v2, 7, v2
v_min_u32 v2, L_codeend-L_pc-4, v2
s_mov_b64 exec, 0xffff
{"global_load_dword v253, v2, s[70:71]" if "--nocodepf" not in sys.argv else ""}
s_mov_b64 exec, -1
s_mov_b32 s38, {2048*896}
s_mov_b32 s39, 0x20000
s_mov_b32 s42, {448*3584}
s_mov_b32 s43, 0x20000
s_mov_b32 s50, {WS_SIZE}
s_mov_b32 s51, 0x20000
v_lshlrev_b32 v{vL16}, 4, v255
s_mov_b32 {sMask}, 0xffff0000
s_cmp_lt_u32 {sj}, 4
s_cbranch_scc1 L_helper
""")

a(f"""
s_sub_u32 {sj}, {sj}, 4
s_mul_i32 s74, {sxcd}, 28
s_add_u32 {sjc}, s74, {sj}
s_lshl_b32 s74, {sjc}, 10
s_lshl_b32 s75, {sw}, 8
s_add_u32 s74, s74, s75
v_lshl_add_u32 v4, v255, 2, s74
s_lshr_b32 s79, s74, 9
s_lshl_b32 s74, s79, 1
v_mov_b32 v5, s74
s_lshr_b32 {sc2}, {sj}, 2
s_lshr_b32 s74, {sxcd}, 1
s_lshl_b32 s74, s74, 2
s_add_u32 {sr1}, s74, {sq}
s_lshl_b32 {stg}, {sr1}, 2
s_add_u32 {stg}, {stg}, {sw}
s_mul_i32 {sXoff}, {stg}, {32*896}
s_lshl_b32 {sw4k}, {sw}, 12
s_and_b32 s74, {sxcd}, 1
s_mul_i32 s74, s74, 7
s_add_u32 {sc1_}, s74, {sc2}
s_lshl_b32 {sWoff}, {sc1_}, 8
s_lshr_b32 s84, {sw}, 1
s_and_b32 s85, {sw}, 1
s_lshl_b32 s74, s85, 13
s_lshl_b32 s75, s84, 12
s_add_u32 {sWl}, s74, s75
v_and_b32 v{fC}, 3, v255
v_bfe_u32 v{fR}, v255, 2, 2
v_lshrrev_b32 v{fKG}, 5, v255
v_lshrrev_b32 v{fQ}, 4, v255
v_and_b32 v{fG}, 1, v{fQ}
v_lshrrev_b32 v6, 3, v255
v_mul_u32_u24 v1, 896, v6
v_and_b32 v2, 7, v255
v_xor_b32 v2, v2, v{fQ}
v_lshl_add_u32 v{vXD}, v2, 4, v1
v_xor_b32 v{vXD+1}, 64, v{vXD}
v_add_u32 v{vXD+1}, {8*896-1024}, v{vXD+1}
v_add_u32 v{vXD+2}, {2*(8*896-1024)}, v{vXD}
v_add_u32 v{vXD+3}, {2*(8*896-1024)}, v{vXD+1}
s_lshl_b32 s74, s84, 4
v_add_u32 v1, s74, v{fR}
v_mul_u32_u24 v1, 3584, v1
v_lshl_add_u32 v1, v{fQ}, 6, v1
s_lshl_b32 s76, s85, 1
v_xor_b32 v2, s76, v{fC}
v_lshl_add_u32 v{vWD}, v2, 4, v1
v_add_u32 v{vWD+1}, {4*3584-1024}, v{vWD}
v_add_u32 v{vWD+2}, {2*(4*3584-1024)}, v{vWD}
v_add_u32 v{vWD+3}, {3*(4*3584-1024)}, v{vWD}
""")
if STAMP:
    a("v_mov_b32 v254, 0\ns_waitcnt lgkmcnt(0)\nv_writelane_b32 v254, s100, 0")
    nstamp[0] = 1
stamp(SEL[0])
a(f"""
s_waitcnt lgkmcnt(0)
global_load_ushort v134, v5, s[{sLdt}:{sLdt+1}]
global_load_dword v128, v4, s[{sAre}:{sAre+1}]
global_load_dword v129, v4, s[{sAim}:{sAim+1}]
global_load_dword v130, v4, s[{sBre}:{sBre+1}]
global_load_dword v131, v4, s[{sBim}:{sBim+1}]
global_load_dword v132, v4, s[{sCre}:{sCre+1}]
global_load_dword v133, v4, s[{sCim}:{sCim+1}]
global_load_ushort v135, v5, s[{sDsk}:{sDsk+1}]
s_mov_b32 s36, s{sX}
s_mov_b32 s37, s{sX+1}
s_bitcmp1_b32 {sw}, 0
s_cselect_b32 s40, s{sWu}, s{sWg}
s_cselect_b32 s41, s{sWu+1}, s{sWg+1}
s_cselect_b64 {sOdd}, -1, 0
""")
if "--tlb" in sys.argv:
    a(f"""
v_min_u32 v14, 5, v255
v_lshlrev_b32 v14, 21, v14
v_mov_b32 v15, 0
s_mov_b64 exec, 0x3f
global_load_dword v152, v14, s[{sWs}:{sWs+1}]
s_mov_b64 exec, 1
global_load_dword v153, v15, s[{sOut}:{sOut+1}]
global_load_dword v154, v15, s[{sWd}:{sWd+1}]
global_load_dword v155, v15, s[{sDbg}:{sDbg+1}]
s_mov_b64 exec, -1
""")
LATE = opt('late', 0)
first_dma = x_block(0) + w_unit(0) + [("vt", "u0")]
if not LATE:
    put(first_dma)
a(f"""
s_add_u32 s74, {sw4k}, {SC}
v_add_u32 v{vKX}, s74, v{vL16}
v_xor_b32 v{vKX+1}, 4096, v{vKX}
v_bfe_u32 v1, v255, 1, 2
v_lshlrev_b32 v7, 4, v1
v_lshl_add_u32 v7, v255, 6, v7
v_add_u32 v{vKL}, s74, v7
v_xor_b32 v{vKL+1}, 16, v{vKL}
v_xor_b32 v{vKL+2}, 32, v{vKL}
v_xor_b32 v{vKL+3}, 48, v{vKL}
v_lshl_add_u32 v7, v{fKG}, 3, v{fR}
v_lshlrev_b32 v7, 6, v7
v_bfe_u32 v8, v255, 1, 1
v_lshl_add_u32 v8, v{fG}, 1, v8
v_lshrrev_b32 v9, 1, v{fR}
v_xor_b32 v8, v8, v9
v_lshl_add_u32 v7, v8, 4, v7
v_and_b32 v10, 1, v255
v_lshl_add_u32 v7, v10, 3, v7
v_add_u32 v{vKL+4}, s74, v7
v_xor_b32 v{vKL+5}, 32, v{vKL+4}
v_add_u32 v{vKL+5}, 256, v{vKL+5}
s_lshl_b32 s76, s85, 5
v_xor_b32 v{vKL+6}, s76, v{vKL+4}
v_xor_b32 v{vKL+7}, s76, v{vKL+5}
v_and_b32 v11, 31, v255
v_bfe_u32 v12, v255, 1, 3
v_xor_b32 v7, v12, v{fKG}
v_lshlrev_b32 v7, 4, v7
v_lshl_add_u32 v7, v11, 7, v7
s_and_b32 s74, {sw4k}, {0x2000 if T64 else 0x3000}
s_add_u32 s74, s74, {XB}
v_add_u32 v{vXR}, s74, v7
v_xor_b32 v{vXR+1}, 32, v{vXR}
v_xor_b32 v{vXR+2}, 64, v{vXR}
v_xor_b32 v{vXR+3}, 96, v{vXR}
v_add_u32 v{vXR+4}, 0x10000, v{vXR}
v_add_u32 v{vXR+5}, 0x10000, v{vXR+1}
v_add_u32 v{vXR+6}, 0x10000, v{vXR+2}
v_add_u32 v{vXR+7}, 0x10000, v{vXR+3}
v_lshlrev_b32 v13, 3, v{fC}
v_lshl_add_u32 v13, v{fR}, 6, v13
v_mul_u32_u24 v7, {8192+32}, v{fG}
v_lshl_add_u32 v7, v{fKG}, 11, v7
s_mul_i32 s74, s85, {512 if T64 else 0}
v_add3_u32 v{vWF}, v7, v13, s74
v_xor_b32 v{vWF+1}, 32, v{vWF}
v_lshl_add_u32 v7, v{fG}, 5, v13
v_lshl_add_u32 v7, v{fKG}, 9, v7
s_lshl_b32 s74, s85, 8
s_add_u32 s74, s74, {sw4k}
s_add_u32 s74, s74, 65536
v_add_u32 v{vDF}, s74, v7
v_xor_b32 v{vDF+1}, 256, v{vDF}
v_add_u32 v{vDF+2}, 0x10000, v{vDF}
v_add_u32 v{vDF+3}, 0x10000, v{vDF+1}
s_mul_i32 s74, {sw}, 448
v_lshl_add_u32 v7, v{fKG}, 2, v{fR}
v_add_u32 v7, s74, v7
v_mul_u32_u24 v7, 896, v7
v_lshl_add_u32 v7, v{fG}, 6, v7
v_lshl_add_u32 v{vDD}, v{fC}, 4, v7
v_add_u32 v{vDD+1}, {8*896-1024}, v{vDD}
v_add_u32 v{vDD+2}, {2*(8*896-1024)}, v{vDD}
v_add_u32 v{vDD+3}, {3*(8*896-1024)}, v{vDD}
v_lshlrev_b32 v{vN4}, 2, v11
v_lshlrev_b32 v{vN8}, 3, v11
""")
setup2 = lines(f"""s_mul_i32 {sKC}, s84, {KC_CH}
s_add_u32 {sKC}, {sKC}, {KC0}
s_lshl_b32 s74, s85, 10
s_sub_u32 s74, {sKC}, s74
s_add_u32 s74, s74, {16*255-12}
v_sub_u32 v{vKC}, s74, v{vL16}
v_add_u32 v{vKC+1}, {KC_CP+4}, v{vKC}
v_add_u32 v{vKC+2}, {2*(KC_CP+4)}, v{vKC}
v_add_u32 v{vKC+3}, {3*(KC_CP+4)}, v{vKC}
v_lshlrev_b32 v7, 9, v{fKG}
v_sub_u32 v7, v{vKC}, v7
s_mul_i32 s74, s85, 1536
s_sub_u32 s74, 2560, s74
v_subrev_u32 v{vKC+4}, s74, v7
v_add_u32 v{vKC+5}, {KC_CP+4}, v{vKC+4}
v_add_u32 v{vKC+6}, {2*(KC_CP+4)}, v{vKC+4}
v_add_u32 v{vKC+7}, {3*(KC_CP+4)}, v{vKC+4}
v_and_b32 v11, 15, v255
v_mul_u32_u24 v7, {KC_CP+4}, v{fQ}
v_lshl_add_u32 v7, v11, 2, v7
v_add_u32 v{vKZ}, {sKC}, v7
v_lshlrev_b32 v7, 2, v11
v_lshlrev_b32 v{vCS}, 2, v{vN4}
{f"v_min_u32 v7, 108, v{vN4}" if T64 else "v_min_u32 v7, 52, v7"}
v_mul_u32_u24 v8, {FSP}, v{fKG if T64 else fG}
v_add_u32 v{vFH}, v7, v8
s_mul_i32 s75, s84, {U_CH}
s_add_u32 s75, s75, {UB}
s_mul_i32 s74, s85, {U1_OFF}
s_add_u32 s74, s74, s75
v_min_u32 v7, 55, v255
v_lshl_add_u32 v{vUZ}, v7, 3, s74
s_lshl_b32 s74, s85, 11
s_add_u32 {sUl}, s75, s74
s_mul_i32 {sUg}, s79, {XTS}
s_add_u32 {sUg}, {sUg}, s74
s_add_u32 {sUg}, {sUg}, {WS_XT}
v_mul_u32_u24 v7, {U1_OFF}, v10
v_lshl_add_u32 v7, v12, 6, v7
v_lshl_add_u32 v7, v{fQ}, 4, v7
s_lshl_b32 s74, s85, 6
s_sub_u32 s75, s75, s74
s_add_u32 s75, s75, {448-384}
v_add_u32 v{vCU}, s75, v7
v_mul_u32_u24 v7, {KC_CP}, v{fC}
v_sub_u32 v8, v{fQ}, v{fR}
v_lshl_add_u32 v7, v8, 4, v7
s_sub_u32 s74, {sKC}, s74
s_add_u32 s74, s74, {16*255-64*62}
v_add_u32 v{vCK}, s74, v7
s_lshl_b32 s74, {sw}, 10
s_add_u32 s74, s74, {YX}
v_add_u32 v{vYW}, s74, v{vL16}
v_lshlrev_b32 v7, 8, v1
v_lshl_add_u32 v7, v6, 5, v7
v_lshl_add_u32 v7, v10, 3, v7
s_lshl_b32 s74, {sw}, 13
s_add_u32 s75, s74, {YX+4096}
v_add_u32 v{vYR}, s75, v7
s_add_u32 s74, s74, 8192
s_and_b32 s74, s74, 0x7fff
s_add_u32 s74, s74, {YX}
v_add_u32 v{vYR+1}, s74, v7
s_mul_i32 s74, s84, {112*1024}
v_add_u32 v{vH}, s74, v{vL16}
s_sub_u32 s74, {112*1024}, s74
v_add_u32 v{vH+1}, s74, v{vL16}
v_mov_b32 v{vZ}, 0
s_lshl_b32 s74, {sxcd}, 2
s_add_u32 {sr2}, s74, {sq}
s_lshl_b32 s74, {sr2}, 1
s_add_u32 s74, s74, s84
s_lshl_b32 s97, s74, 5
s_lshl_b32 s74, {sc2}, 1
s_add_u32 s74, s74, s85
s_lshl_b32 s17, s74, 6
s_mul_i32 s74, s97, 896
s_add_u32 s16, s74, s17
v_lshrrev_b32 v7, 2, v255
v_mul_u32_u24 v7, 896, v7
v_xor_b32 v8, v{fC}, v{fQ}
v_lshl_add_u32 v227, v8, 4, v7""")
put(setup2[:opt('s2', len(setup2))])
setup2 = setup2[opt('s2', len(setup2)):]
a(f"""
v_lshlrev_b32 v134, 16, v134
v_mul_f32 v134, 0x3fb8aa3b, v134
v_exp_f32 v134, v134
v_cvt_pk_bf16_f32 v134, v134, v134
v_lshlrev_b32 v134, 16, v134
""")
stamp()

PA = [64, 96]
PB = 8
KF = [(160, 176, 192, 208), (96, 112, 128, 144) if T64 else (224, 240, 80, 96)]
R1, R8, E, T = 146, [148, 150], 0, 2
l1s = [0, 1, 2, 3, 4, 5, 6, 7, 8, 256, 258, 260, 262, 264, 512, 516, 520, 768, 772, 776,
       1024, 1032, 1280, 1288, 1536, 1544, 1792, 1800]
ra = {l: 8 + 2 * i for i, l in enumerate(l1s)}
cols = [0, 1, 2, 3, 256, 256, 258, 260, 4, 5, 6, 7, 260, 260, 262, 264,
        512, 516, 520, 1024, 768, 772, 776, 1536, 1032, 1280, 1288, 1288, 1544, 1792, 1800, 1800]


def cmul(d, x, r, t):
    return [f"v_pk_mul_f32 v[{t}:{t+1}], v[{x}:{x+1}], v[{r}:{r+1}] op_sel_hi:[1,0]",
            f"v_pk_fma_f32 v[{d}:{d+1}], v[{x}:{x+1}], v[{r}:{r+1}], v[{t}:{t+1}] op_sel:[1,1,0] op_sel_hi:[0,1,1] neg_lo:[1,0,0]"]


def k_write(ck, i, cq):
    P = (PA[ck] + 16 * i) if i < 2 else (PB + 16 * (i - 2))
    return f"ds_write_b128 v{vKL+cq}, v[{P+4*cq}:{P+4*cq+3}]"


def k_reads(ck, i):
    fr = KF[ck][i]
    base = vKL + 6 if i < 2 else vKL + 4
    return "\n".join(f"ds_read_b64_tr_b16 a[{fr+4*s+2*rd}:{fr+4*s+2*rd+1}], v{base+rd} offset:{1024*s}"
                     for s in range(4) for rd in range(2))


def kgen_head(ck):
    L = []
    un = (lambda d, s: f"v_lshlrev_b32 v{d}, 16, v{s}") if ck == 0 else (lambda d, s: f"v_and_b32 v{d}, {sMask}, v{s}")
    L += [un(136 + i, 128 + i) for i in range(6)]
    L += ["v_mul_f32 v142, v134, v136", "v_mul_f32 v143, v134, v137",
          "v_mul_f32 v142, 0x3fb8aa3b, v142", "v_mul_f32 v143, 0.15915494, v143"]

    def ev(d, l):
        s = []
        if l == 1:
            s += ["v_exp_f32 v144, v142", "v_fract_f32 v145, v143"]
        else:
            f = {8: "0x41000000", 256: "0x43800000"}[l]
            s += [f"v_mul_f32 v144, {f}, v142", f"v_mul_f32 v145, {f}, v143", "v_exp_f32 v144, v144", "v_fract_f32 v145, v145"]
        s += [f"v_cos_f32 v{d}, v145", f"v_sin_f32 v{d+1}, v145"]
        return s, f"v_pk_mul_f32 v[{d}:{d+1}], v[{d}:{d+1}], v[144:145] op_sel_hi:[1,0]"
    wm = cmul(ra[0], 140, 138, T) + [f"v_pk_mul_f32 v[{ra[0]}:{ra[0]+1}], v[{ra[0]}:{ra[0]+1}], v[134:135] op_sel_hi:[1,0]"]
    for (d, l), fill in zip(((R1, 1), (R8[ck], 8), (E, 256)), wm):
        s, last = ev(d, l)
        L += s + [fill, last]
    for l in range(1, 9):
        L += cmul(ra[l], ra[l - 1], R1, T)
    for l in l1s[9:]:
        L += cmul(ra[l], ra[l - 256], E, T)
    for k in range(16):
        c0, c1 = ra[cols[2 * k]], ra[cols[2 * k + 1]]
        L += [f"v_cvt_pk_bf16_f32 v{PA[ck]+k}, v{c0}, v{c1}", f"v_cvt_pk_bf16_f32 v{PA[ck]+16+k}, -v{c0+1}, -v{c1+1}"]
    return L


def kgen_chain(ck):
    r8 = R8[ck]
    rb = lambda j: r8 if j == 1 else 4 + 2 * (j % 2)
    B = [f"v_cvt_pk_bf16_f32 v{PB}, 1.0, v{r8}", f"v_cvt_pk_bf16_f32 v{PB+16}, 0, v{r8+1}"]
    for j in range(2, 32):
        B += cmul(rb(j), rb(j - 1), r8, T)
        if j % 2:
            B += [f"v_cvt_pk_bf16_f32 v{PB+j//2}, v{rb(j-1)}, v{rb(j)}",
                  f"v_cvt_pk_bf16_f32 v{PB+16+j//2}, v{rb(j-1)+1}, v{rb(j)+1}"]
    return B


def k_pass(ck, i):
    return [k_write(ck, i, cq) for cq in range(4)] + [k_reads(ck, i)]


def at(stream, items):
    out = []
    for i, x in enumerate(stream):
        out += [y for p, y in items if p == i]
        out.append(x)
    return out + [y for p, y in items if p >= len(stream)]


def kgen_mfma(ck):
    f = KF[ck]
    return [f"v_mfma_f32_32x32x16_bf16 a[{KA}:{KA+15}], a[{f[s>>2]+4*(s&3)}:{f[s>>2]+4*(s&3)+3}], "
            f"a[{f[2+(s>>2)]+4*(s&3)}:{f[2+(s>>2)]+4*(s&3)+3}], "
            + ("0" if (ck == 0 and s == 0) else f"a[{KA}:{KA+15}]") for s in range(8)]


XF = (lambda s, ta=0: 8 * s + 4 * ta) if T64 else (lambda s, ta=0: 4 * s)


def x_read(s, ta=0):
    cb = s >> 2
    return f"ds_read_b128 a[{XF(s, ta)}:{XF(s, ta)+3}], v{vXR + (0 if cb < 4 else 4) + (s & 3)} offset:{(cb % 4)*16384+ta*4096}"


WM = opt('wm', 0)
if WM == 0:
    warm = [f"""s_cmp_eq_u32 {sw}, 0
s_cselect_b32 s12, s{sWg}, s{sWu}
s_cselect_b32 s13, s{sWg+1}, s{sWu+1}
s_cmp_lt_u32 {sw}, 2
s_cselect_b32 s12, s12, s{sWd}
s_cselect_b32 s13, s13, s{sWd+1}
s_mul_i32 s74, {sjc}, {56*128}
v_min_u32 v251, 55, v255
v_lshl_add_u32 v251, v251, 7, s74
global_load_dword v252, v251, s[12:13]"""]
elif WM >= 1:
    warm = [f"""s_lshl_b32 s74, {sjc}, 1
s_add_u32 s74, s74, s84
s_mul_i32 s74, s74, 3584
v_min_u32 v251, 27, v255
v_lshlrev_b32 v251, 7, v251
s_mov_b64 exec, 0xfffffff
buffer_load_dword v252, v251, {rW}, s74 offen
s_mov_b64 exec, -1"""]
warm2 = []
if WM >= 2:
    warm2 = [f"""s_lshl_b32 s74, {sjc}, 2
s_add_u32 s74, s74, {sw}
s_mul_i32 s74, s74, {14*128}
v_lshl_add_u32 v251, v255, 7, s74
s_mov_b64 exec, 0x3fff
global_load_dword v156, v251, s[{sWd}:{sWd+1}]
s_mov_b64 exec, -1"""]
WAT = opt('wat', 0)
for _ in range(opt('dmain', 0)):
    a("s_sleep 16")
stamp("k")
early = x_block(1) + [("vt", "x1")] + w_unit(1) + [("vt", "u1")]
if LATE == 1:
    put(weave(kgen_head(0), first_dma + early))
elif LATE == 2:
    put(weave(kgen_head(0), first_dma))
    warm = early + warm
elif LATE == 3:
    put(weave(kgen_head(0), first_dma + warm))
    warm = early
else:
    put(weave(kgen_head(0), early))
stamp("k")
XRES = [f"buffer_load_dwordx4 v[242:245], v227, {rX}, s16 offen",
        f"s_add_u32 s74, s16, {16*896}\nbuffer_load_dwordx4 v[246:249], v227, {rX}, s74 offen"]
XRAT = opt('xrat', 0)
if XRAT == 0:
    warm += XRES
wA = warm if WAT == 0 else [e for e in warm if "v251" not in str(e)]
wB = [] if WAT == 0 else [e for e in warm if "v251" in str(e)]
put(weave(kgen_head(1), wA))
stamp("ak"[SEL == "k"])
RD = opt('rd', 3)
p0, p1, p2 = k_pass(0, 0), k_pass(0, 1), k_pass(0, 2)
XE = opt('xe', 0)
xe = sum((x_block(cb) + [("vt", f"x{cb}")] for cb in range(2, 2 + XE)), [])
n0 = 7 * opt('xe0', 3)
put(weave(at(kgen_chain(0), list(zip((0, 7, 14, 21, 21 + RD), p0)) + list(zip((30, 37, 44, 51, 51 + RD), p1))
             + list(zip((62, 70, 80, 92), p2))), xe[:n0] + (wB if WAT == 1 else []) + (warm2 if WM == 2 else [])))
stamp("k")
p3, q0, q1, q2 = k_pass(0, 3), k_pass(1, 0), k_pass(1, 1), k_pass(1, 2)
ch = kgen_chain(1)
put([p2[4], p3[0], p3[1]] + weave(at(ch[2:], [(0, p3[2]), (4, p3[3]), (4, ch[0]), (4, ch[1]), (4 + RD, p3[4])]
                                      + list(zip((14, 20, 26, 32, 32 + RD), q0)) + list(zip((42, 48, 54, 60, 60 + RD), q1))
                                      + list(zip((70, 76, 82, 90), q2))), xe[n0:] + (wB if WAT == 2 else []) + (warm2 if WM == 3 else [])))
stamp("ak"[SEL == "k"])
sc = lines(f"""s_lshl_b32 {sWdoff}, {sc2}, 7
s_mov_b32 s44, s{sWd}
s_mov_b32 s45, s{sWd+1}
s_mov_b32 s46, {1792*896}
s_mov_b32 s47, 0x20000
s_mov_b32 s48, s{sWs}
s_mov_b32 s49, s{sWs+1}
s_mov_b32 s52, s{sOut}
s_mov_b32 s53, s{sOut+1}
s_mov_b32 s54, {2048*896}
s_mov_b32 s55, 0x20000
s_mul_i32 {sFL}, {sxcd}, {FSP}
s_add_u32 {sFL}, {sFL}, {WS_FL}
s_and_b32 {stg}, {stg}, {0xfe if T64 else 0xff}
s_lshl_b32 {sST}, {stg}, 8
s_add_u32 {sST}, {sST}, {WS_ST}
s_lshl_b32 s18, {sc1_}, 1
s_add_u32 s18, s18, {"s85" if T64 else 0}
s_lshl_b32 {sCS}, s18, 9
s_add_u32 {sCS}, {sCS}, {WS_CS}
v_lshlrev_b32 v135, 16, v135""")
lp = k_pass(1, 3)
put(weave(kgen_mfma(0), [q2[4], lp[0]] + sc[:7] + [lp[1]] + sc[7:14] + [lp[2]] + sc[14:]
          + ([lp[3], lp[4], ("wv", "x1")] if T64 else [lp[3], ("wv", "u0")] + [x_read(s) for s in range(4)] + [lp[4]])))
stamp("k")
a("s_waitcnt lgkmcnt(0)")
stamp("k")
a("s_barrier")
stamp("ak"[SEL == "k"])

fillg = {s: [] for s in range(28)}
fillg[2] += lines(f"""v_readfirstlane_b32 {sDs}, v135
s_mul_i32 {sH0}, {stg}, {112*1024}
s_lshl_b32 s74, s18, 12
s_add_u32 {sH0}, {sH0}, s74
s_add_u32 {sH1}, {sH0}, {112*1024 if T64 else 4096}
s_mul_i32 s74, {stg}, {FSP}
s_lshl_b32 s75, s18, {2 if T64 else 1}
s_add_u32 s74, s74, s75
s_add_u32 {sFHw}, s74, {WS_FH}""")
fillg[3] += [f"v_accvgpr_read_b32 v{128+r}, a{KA+r}" for r in range(8)]
fillg[6] += [f"v_accvgpr_read_b32 v148, a{KA+13}", f"v_accvgpr_read_b32 v149, a{KA+14}",
             "v_add_f32 v148, v148, v145", "v_add_f32 v149, v149, v146"]
fillg[2] += []
fillg[4] += [f"ds_read_b128 v[136:139], v{vKX+1}", f"ds_read_b128 v[140:143], v{vKX+1} offset:1024",
             f"ds_read_b128 v[144:147], v{vKX+1} offset:2048", ("lt", "kr")]
fillg[5] += lines(f"""s_mul_i32 {sFHr}, {sr2}, {2*FSP}
s_add_u32 {sFHr}, {sFHr}, {WS_FH}
s_mul_i32 {sHoff}, {sr2}, {2*112*1024}
s_mul_i32 s74, {sw}, {28*1024}
s_add_u32 {sHoff}, {sHoff}, s74
s_add_u32 {sHoff}, {sHoff}, {16*1024}""")
fillg[7] += [f"v_add_f32 v{128+r}, v{128+r}, v{136+r}" for r in range(8)]
fillg[9] += lines(f"""v_cmp_eq_u32 vcc, 0, v255
v_mov_b32 v140, {sDs}
v_cndmask_b32 v148, v148, v131, {sOdd}
v_cndmask_b32 v149, v149, v132, {sOdd}
v_cndmask_b32 v140, 0, v140, vcc
v_add_f32 v140, v128, v140""")
fillg[11] += lines(f"""s_mov_b32 s74, 0xaaaaaaaa
s_mov_b32 s75, 0xaaaaaaaa
v_cvt_pk_bf16_f32 v144, v149, v149
v_cndmask_b32 v141, v148, v149, s[74:75]
v_cvt_pk_bf16_f32 v146, v148, v148
v_cvt_pk_bf16_f32 v147, v148, v148
v_cvt_pk_bf16_f32 v145, v149, v141""")
fillg[13] += lines(f"""v_cvt_pk_bf16_f32 v136, v135, v134
v_cvt_pk_bf16_f32 v137, v133, v132
v_cvt_pk_bf16_f32 v138, v131, v130
v_cvt_pk_bf16_f32 v139, v129, v140
v_cvt_pk_bf16_f32 v140, v130, v130
v_cvt_pk_bf16_f32 v141, v129, v129
v_cvt_pk_bf16_f32 v142, v129, v128
v_cvt_pk_bf16_f32 v143, v128, v128""")
fillg[15] += [f"v_cndmask_b32 v{136+r}, v{136+r}, v{140+r}, {sOdd}" for r in range(4)]
fillg[17] += lines(f"""s_mul_i32 {sY}, {sjc}, {YS}
s_lshl_b32 s74, {sw}, 11
s_add_u32 {sY}, {sY}, s74
s_add_u32 {sY}, {sY}, {WS_Y}""")
fillg[19] += [f"v_mov_b32 v{r}, 0" for r in (190, 191, 193, 194)]
fillg[21] += [f"v_mov_b32 v{r}, 0" for r in (195, 196, 198, 199)]


def wd_read(kk, r):
    off = PS[(kk >> 1) % 6] - 65536 + (kk & 1) * 2048
    base = vDF if off < 65536 else vDF + 2
    return [f"ds_read_b64_tr_b16 a[{r+4*da+2*rd}:{r+4*da+2*rd+1}], v{base+da} offset:{off % 65536+rd*1024}"
            for da in range(2) for rd in range(2)]


def wd_move(kk):
    return wd_read(kk, 8 * kk)


def wfrag_read(s, t, r):
    off = SLOT[(s >> 1) % 4] + (s & 1) * 4096 + (t >> 1) * 256
    return [f"ds_read_b64_tr_b16 a[{r+2*rd}:{r+2*rd+1}], v{vWF+(t & 1)} offset:{off+rd*1024}" for rd in range(2)]


WF = (lambda t: 224 + 4 * t) if T64 else (lambda t: 112 + 4 * t)
if T64:
    rd = [x_read(s, ta) for s in range(8) for ta in range(2)] + [("lt", "x1")] + sum((wfrag_read(0, t, WF(t)) for t in range(4)), [])
    put(pack([[m] for m in kgen_mfma(1)], rd + fillg[2], 24))
    put([("wl", "x1"), "s_barrier"] + w_unit(2) + [("vt", "u2")])
else:
    put(pack([[m] + wfrag_read(0, t, WF(t)) for t, m in enumerate(kgen_mfma(1))], w_unit(2) + [("vt", "u2")] + fillg[2], 24))
fillg[2] = []
if XE == 0:
    put(x_block(2) + [("vt", "x2")])
put([f"ds_write_b128 v{vKX}, a[{KA+8}:{KA+11}]", f"ds_write_b128 v{vKX}, a[{KA+12}:{KA+15}] offset:1024",
     f"ds_write_b128 v{vKX}, a[{KA+4}:{KA+7}] offset:2048", ("lt", "kx")])
stamp("k")

FL_LOAD = f"buffer_load_dword v{vF}, v{vN4}, {rWs}, {sFL} offen sc1"
F_CMP = f"v_cmp_ne_u32 vcc, {snonce}, v{vF}"
NC_LOAD = f"global_load_dword v{vNo}, v{vZ}, s[{sDbg}:{sDbg+1}] sc1"
NC_CMP = f"v_cmp_eq_u32 vcc, 0, v{vNo}"
if XE == 5:
    XD = {}
    XRD = {1: 2, 2: 3, 3: 4, 4: 5, 5: 6}
    NP = opt('np', 11)
    WDD = dict(zip([4, 6, 8, 10, 12, 14, 16, 18, 20, 22, 24][:NP], range(NP)))
    PSORD = {0: "x2", 1: "x3", 2: "x4", 3: "x5", 4: "x6", 5: None}
    PS[:] = PS[1:] + PS[:1]
    MV = dict(zip([9, 10, 11, 12, 13, 14, 15, 17, 19, 20, 22, 24][:opt('nmv', 2 * (NP - 5))], range(12)))
else:
    XD = {s: 2 + s // 2 for s in (2, 4, 6, 8)}
    XRD = {s: s // 2 for s in (4, 6, 8, 10, 12)}
    NP = 9
    WDD = dict(zip([10, 12, 14, 16, 18, 20, 22, 23, 24], range(9)))
    PSORD = {0: None, 1: "x2", 2: "x3", 3: "x4", 4: "x5", 5: "x6"}
    MV = {s: s - 14 for s in range(14, 22)}
NMV = len(MV)
carry, pre = [], []
DG = opt('dg', 1)
for s in range(25):
    if s % 2 == 0 and s > 0:
        stamp("g")
    if 1 <= s <= 4:
        stamp("k")
    if s == opt('dat', -1):
        a("s_sleep 16\ns_sleep 16")
    extra, dma = [], None
    if s % 2 == 1:
        u = (s + 1) // 2
        lt = {1: "kx" if T64 else "x1", 5: "kr"}.get(s)
        a.wait_both(tok[f"u{u}"], ltok[lt] if lt else None)
        a("s_barrier")
        if u + 2 < 14:
            dma = ([], w_unit(u + 2), f"u{u+2}")
    if T64 and 5 <= s <= 14:
        extra += [x_read(k, ta) for k in (2 * s - 2, 2 * s - 1) for ta in range(2)]
    if s == 0 and not T64:
        extra += [("wv", "x1")] + [x_read(k) for k in range(4, 8)] + [("lt", "x1")]
    if s in XD:
        dma = ([], x_block(XD[s]), f"x{XD[s]}")
    if s in XRD and not T64:
        cb = XRD[s]
        extra += [("wv", f"x{cb}")] + [x_read(k) for k in range(4 * cb, 4 * cb + 4)] + [("lt", f"x{cb}")]
    if s in WDD:
        p = WDD[s]
        need = (None if T64 else PSORD[p]) if p < 6 else f"mv{2*(p-6)+1}"
        dma = ([("wl", need)] if need else [], wd_pair(2 * p), f"wd{2*p}")
    if s in MV:
        kk = MV[s]
        assert s >= (kk + 1 if T64 else 2 * kk + 2)
        if kk % 2 == 0:
            extra += [("wv", f"wd{kk}")]
        extra += wd_move(kk) + [("lt", f"mv{kk}")]
    if s == 12:
        extra += [NC_LOAD]
    if s == 16:
        poll("nc", NC_LOAD, NC_CMP)
        a(f"v_readfirstlane_b32 {snonce}, v{vNo}")
    if s == FL_AT:
        extra += [FL_LOAD]
    if s == FL_POLL:
        poll("fl", FL_LOAD, F_CMP)
        extra += [f"buffer_load_dword v{vF}, v{vN8}, {rWs}, {sST} offen sc1",
                  f"s_lshl_b32 s74, s97, 3\ns_add_u32 s74, s74, {WS_ST+4}\nbuffer_load_dword v228, v{vN8}, {rWs}, s74 offen sc1"]
        if T64:
            extra += [f"buffer_load_dwordx4 v[156:159], v{vCS}, {rWs}, {sCS} offen sc1",
                      f"buffer_load_dword v154, v{vN8}, {rWs}, {sST} offen offset:256 sc1"]
        else:
            extra += [f"buffer_load_dwordx4 a[{160+4*t}:{163+4*t}], v{vCS}, {rWs}, {sCS} offen offset:{512*t} sc1" for t in range(2)]
    extra += fillg[s]
    AB = opt('ab', '')
    if dma and (('x' in AB and dma[2][0] == 'x') or ('w' in AB and dma[2][0] == 'w') or ('u' in AB and dma[2][0] == 'u')):
        dma = (dma[0], ["s_nop 0"] * 6, dma[2])
    main = []
    for t in range(8):
        tl, ta = (t >> 1, t & 1) if T64 else (t, 0)
        j = 4 * ta + tl if T64 else t
        if t % WG == 0 and s > 0:
            (main[-1] if main else pre).append(("wl", f"f{(t+WG-1) >> T64}"))
        c = "0" if s == 0 else f"v[{16*j}:{16*j+15}]"
        m = [f"v_mfma_f32_32x32x16_bf16 v[{16*j}:{16*j+15}], a[{WF(tl)}:{WF(tl)+3}], a[{XF(s, ta)}:{XF(s, ta)+3}], {c}"]
        if dma and t == 0:
            m += dma[0] + [dma[1][0]]
        if not T64 or ta == 1:
            m += wfrag_read(s + 1, tl, WF(tl)) + [("lt", f"f{tl}")]
        if dma and (t % 2 == 0 and t > 0 or t == 1 if T64 and DG else t % 2 == 1):
            k = (t // 2 if t > 1 else 0) if T64 and DG else t // 2
            m.append(dma[1][1 + k])
            if k == 3:
                m += [("vt", dma[2]), dma[1][5]]
        main.append(m)
    if s == 24 and opt('b13', 1):
        main[4] += [("wv", "u13"), "s_barrier"]
        main[6] += wfrag_read(26, 0, 144 if T64 else 168)
        main[7] += wfrag_read(27, 0, 148 if T64 else 172)
    put(pre + pack(main, extra, 24))
    pre = []
stamp("g")
TF = 144 if T64 else 168
if not opt('b13', 1):
    a.wait_vm(tok["u13"])
    a("s_barrier")
    put(wfrag_read(26, 0, TF) + wfrag_read(27, 0, TF + 4))
first = [f"v_cmp_gt_u32 vcc, 32, v255", "v_mov_b32 v152, 0", "v_mov_b32 v153, 0",
         f"s_add_u32 m0, {sUl}, {U1_OFF+448}", f"buffer_load_dwordx4 v{vL16}, {rWs}, {sUg} offen sc1 lds",
         f"buffer_load_dwordx4 v{vL16}, {rWs}, {sUg} offen offset:1024 sc1 lds",
         f"v_cndmask_b32 v192, 0, v{vF}, vcc\nv_cndmask_b32 v197, 0, v{vF}, vcc"]
second = [f"s_sub_u32 {sUg}, {sUg}, 2\ns_add_u32 m0, {sUl}, 448", f"buffer_load_dwordx4 v{vL16}, {rWs}, {sUg} offen sc1 lds",
          f"buffer_load_dwordx4 v{vL16}, {rWs}, {sUg} offen offset:1024 sc1 lds", ("vt", "u")]
main, epi = [], []
for t in range(8):
    r = TF + 8 * (t % 2)
    cb = (192, 196, 190, 194)[t & 3]
    tl, ta = (t & 3, t >> 2) if T64 else (t, 0)
    xf = lambda s: f"a[{XF(s, ta)}:{XF(s, ta)+3}]"
    ops = [(f"a[{WF(tl)}:{WF(tl)+3}]", xf(25)), (f"a[{r}:{r+3}]", xf(26)), (f"a[{r+4}:{r+7}]", xf(27)),
           ("v[156:159]" if T64 else f"a[{160+(t & 4)}:{163+(t & 4)}]", f"v[{cb}:{cb+3}]")]
    for k, (A, B) in enumerate(ops):
        m = [f"v_mfma_f32_32x32x16_bf16 v[{16*t}:{16*t+15}], {A}, {B}, v[{16*t}:{16*t+15}]"]
        if t < 7 and k in (0, 1):
            m += wfrag_read(26 + k, (t + 1) & (3 if T64 else 7), TF + 8 * ((t + 1) % 2) + 4 * k)
        if T64 and t == 4 and k == 0:
            m += ["v_cndmask_b32 v192, 0, v154, vcc", "v_cndmask_b32 v197, 0, v154, vcc"]
        main.append(m)
    b = 16 * t
    L = [f"v_max_f32 v{b+r}, 0, v{b+r}" for r in range(8)]
    if t < 6:
        L += [f"v_mul_f32 v{b+r}, v{b+r}, v{b+8+r}" for r in range(8)]
    else:
        L += [f"v_pk_mul_f32 v[{b+r}:{b+r+1}], v[{b+r}:{b+r+1}], v[{b+8+r}:{b+9+r}]" for r in range(0, 8, 2)]
    L += [f"v_cvt_pk_bf16_f32 v{b+8+r}, v{b+2*r}, v{b+2*r+1}" for r in range(4)]
    L += [f"buffer_store_dwordx4 v[{b+8}:{b+11}], v{vL16}, {rWs}, {(sH0, sH1)[t >> 2]} offen offset:{1024*(t & 3)} sc1"]
    epi.append(L)
stamp("t")
put(pack(main[:3], first, 24) + pack(main[3:6], second, 24))
for t in range(6):
    stamp("t")
    put(pack(main[4 * t + 6:4 * t + 10], epi[t], 24))
stamp("t")
put(pack(main[30:], epi[6][:8], 24))
rest = epi[6][8:] + epi[7]
stamp()
stamp("t")
a("s_barrier")
stamp("t")


def octet_writes(d, ar, off):
    return [f"ds_write_b128 v{ar+3}, v[{d}:{d+3}] offset:{off}",
            f"ds_write2_b64 v{ar+1}, v[{d}:{d+1}], v[{d+2}:{d+3}] offset0:{off//8} offset1:{off//8+1}"] + \
           [f"ds_write2_b32 v{ar+c}, v{d+k}, v{d+k+1} offset0:{off//4+k} offset1:{off//4+k+1}" for c in (0, 2) for k in (0, 2)]


put(weave(rest, octet_writes(136, vKC, 0) + octet_writes(144, vKC + 4, 0)
          + [f"ds_write_b32 v{vKZ}, v152 offset:{4096-12}", f"ds_write_b64 v{vUZ}, v[152:153]"]))
tok["h"] = a.vm_tok()
stamp("t")
stamp("t")
a(f"s_andn2_b64 exec, 1, {sOdd}")
a.wait_vm(tok["u"])
a(f"""ds_write_b16 v{vUZ}, v152 offset:448
s_mov_b64 exec, -1
s_waitcnt lgkmcnt(0)""")
stamp("t")
a("s_barrier")
stamp()
stamp("t")


def a_read(n):
    return f"ds_read_b128 a[{128+4*(n % 4)}:{131+4*(n % 4)}], v{vCK} offset:{64*(62-2*n)}"


def u_read(be, i):
    return f"ds_read_b128 v[{16*be+4*i}:{16*be+4*i+3}], v{vCU} offset:{512*be-128*i+384}"


NH = opt('nh', 8)
ORD = list(range(16, 28)) + list(range(16))


def h_load(i):
    g = []
    for ta in range(2):
        r = 96 + 8 * (i % NH) + 4 * ta
        g.append(f"buffer_load_dwordx4 v[{r}:{r+3}], v{vH+ta}, {rWs}, {sHoff} offen offset:{1024*(i % 4)} {HFL}")
    if i % 4 == 3:
        if ROT:
            g[-1] += "\n" + wrap(sHoff, 4096, "s11", "s10")
        else:
            g[-1] += f"\ns_add_u32 {sHoff}, {sHoff}, 4096" if i != 11 else f"\ns_sub_u32 {sHoff}, {sHoff}, {24*1024}"
    return g


put([a_read(0)] + [u_read(be, 0) for be in range(8)] + [a_read(1), a_read(2)])
FH_LOAD = f"buffer_load_dword v{vF}, v{vFH}, {rWs}, {sFHr} offen sc1"
fill = {n: [] for n in range(32)}
for i in range(1, 4):
    fill[i - 1] += [u_read(be, i) for be in range(8)]
fill[2] += [("lt", "ub")]
if XRAT:
    fill[3] += XRES
if T64:
    fill[FHW_AT] += [f"v_mul_u32_u24 v155, {FSP}, v255", ("wv", "h"),
                     f"s_mov_b64 exec, 3\nbuffer_store_dword v{vNo}, v155, {rWs}, {sFHw} offen sc1\ns_mov_b64 exec, -1"]
else:
    fill[FHW_AT] += [("wv", "h"), f"s_mov_b64 exec, 1\nbuffer_store_dword v{vNo}, v{vZ}, {rWs}, {sFHw} offen sc1\ns_mov_b64 exec, -1"]
n = opt('mv0', 3)
pend = [p for p in range(NP, 14) if 2 * (p - 6) + 1 < NMV]
for k, p in enumerate(pend):
    fill[1 + k] = wd_pair(2 * p) + [("vt", f"wd{2*p}")] + fill[1 + k]
for kk in range(NMV, 16):
    if kk % 2 == 0:
        fill[n] += [("wv", f"wd{kk}")]
    fill[n] += wd_move(kk) + [("lt", f"mv{kk}")]
    if kk % 2 == 1:
        fill[n + 2] += [("wl", f"mv{kk}")] + wd_pair(kk + 11) + [("vt", f"wd{kk+11}")]
    n += 1
YB, YW = opt('yb', 5), opt('yw', 16)
fill[FH_AT] += [FH_LOAD]
for j in range(7):
    fill[(YW, YW + 1, YW + 2, max(17, YW + 3), 21, 25, 29)[j]] += [f"ds_write_b128 v{vYW}, a[{224+4*j}:{227+4*j}] offset:{4096*((j+1) % 8)}"]
hl = [(i, g) for i in range(28) for g in h_load(i)]
for n in range(FH_POLL, 32):
    if hl[0][0] < NH:
        fill[n] += [hl.pop(0)[1]]
for P in range(8):
    for i in range(4):
        n = 4 * P + i
        if n % 4 == 0 or n in (2, 6, 10):
            stamp("c")
        if n == YB:
            a.wait_lg(ltok["ub"])
            a("s_barrier")
        if n == FH_POLL:
            poll("fh", FH_LOAD, F_CMP)
        main = []
        for be in range(8 - P):
            j = P + be
            c = "0" if n == 0 else f"a[{224+4*j}:{227+4*j}]"
            main.append(f"v_mfma_f32_16x16x32_bf16 a[{224+4*j}:{227+4*j}], a[{128+4*(n % 4)}:{131+4*(n % 4)}], v[{16*be+4*i}:{16*be+4*i+3}], {c}")
        put(pack([[m] for m in main], ([a_read(n + 3)] if n + 3 < 32 else []) + fill[n], 8))
stamp()
stamp("f")
put([("wv", "wd16")] + wd_read(16, 128))
a(f"ds_write_b128 v{vYW}, a[252:255]")
ltok["y7"] = a.lg_tok()
stamp()
stamp("f")

XS = lambda g, e: (80 if g < 4 else 0) + 4 * g + 2 * e
FY_LOAD = f"buffer_load_dword v{vF}, v{vN4}, {rWs}, s80 offen sc1"
fill = {k: [] for k in range(28)}
fill[0] += [("wl", "y7"), "s_barrier"]
for jj in range(2):
    r = 64 + 16 * jj
    fill[0] += [f"ds_read_b64 v[{r+4*src+2*ph}:{r+4*src+2*ph+1}], v{vYR+jj} offset:{1024*src+16*ph}"
                for src in range(4) for ph in range(2)]
    fill[1 + jj] += [f"v_add_f32 v{r+k}, v{r+k}, v{r+k+4}" for k in (0, 1, 2, 3, 8, 9, 10, 11)]
    fill[1 + jj] += [f"v_cvt_pk_bf16_f32 v{r+4+k}, v{r+o}, v{r+8+o}" for k, o in enumerate((0, 2, 1, 3))] + \
        [f"buffer_store_dwordx4 v[{r+4}:{r+7}], v{vL16}, {rWs}, {sY} offen offset:{1024*jj} sc1", ("vt", "y")]
fill[4] += lines(f"""s_lshr_b32 s74, {sjc}, 5
s_lshl_b32 s74, s74, 2
s_add_u32 s74, s74, {sw}
s_mul_i32 s74, s74, {FSP}
s_and_b32 s75, {sjc}, 31
s_lshl_b32 s75, s75, 2
s_add_u32 s74, s74, s75
s_add_u32 s95, s74, {WS_FY}""", 2)
fill[FYW_AT] += [("wv", "y"), f"s_mov_b64 exec, 1\nbuffer_store_dword v{vNo}, v{vZ}, {rWs}, s95 offen sc1\ns_mov_b64 exec, -1"]
fill[5] += lines(f"""s_lshl_b32 s80, {sc2}, 2
s_lshr_b32 s74, {sr2}, 3
s_add_u32 s80, s80, s74
s_mul_i32 s80, s80, {FSP}
s_add_u32 s80, s80, {WS_FY}
s_add_u32 s13, {sw4k}, {RX}
v_add_u32 v230, s13, v{vL16}""", 2)
fill[9] += [f"ds_write_b128 v230, v[242:245] offset:{XR}"] + lines(f"""v_mul_u32_u24 v234, 224, v{vN4}
v_lshl_add_u32 v234, v{fKG}, 4, v234""")
fill[10] += [f"ds_write_b128 v230, v[246:249] offset:{XR+1024}"] + lines(f"""v_lshlrev_b32 v231, 4, v{fR}
v_lshl_add_u32 v231, v{vN4}, 4, v231
v_lshl_add_u32 v231, v{fKG}, 3, v231""")
fill[12] += lines(f"""v_add_u32 v236, s13, v231
v_xor_b32 v237, 16, v236
v_xor_b32 v238, 32, v236
v_xor_b32 v239, 48, v236
v_mul_u32_u24 v235, {2*YS}, v{fKG}
v_add_u32 v235, v235, v{vN4}""") + [f"ds_read_b64 v[{64+2*g}:{65+2*g}], v{236+g} offset:{XR}" for g in range(4)] + [("lt", "xr")]
fill[13] += lines(f"""s_mul_i32 s74, s17, {YS//4}
s_lshl_b32 s75, s97, 2
s_add_u32 s74, s74, s75
s_add_u32 s96, s74, {WS_Y}""", 2)
fill[14] += [f"v_xor_b32 v{240+k}, {4096*k}, v230" for k in range(1, 4)]
fill[FY_AT] += [FY_LOAD]
for g in range(4):
    for e in range(2):
        fill[17 + g] += [f"v_lshlrev_b32 v{XS(g, e)}, 16, v{64+2*g+e}", f"v_and_b32 v{XS(g, e)+1}, {sMask}, v{64+2*g+e}"]
for g in range(4):
    for e in range(2):
        fill[min(27, FY_POLL + g // 2)] += [f"buffer_load_dword v{72+2*g+e}, v235, {rWs}, s96 offen sc1\ns_add_u32 s96, s96, {YS if e == 0 else 3*YS}"]
DEF = opt('def', NH)
late = []
HL0 = opt('hl0', 1)
for i in range(28):
    kk = ORD[i]
    if i % 2 == 0 and i > 0:
        stamp("h")
    if i < 14:
        stamp("j")
    extra = []
    if i + 1 < 12:
        if (kk + 1) % 2 == 0:
            extra += [("wv", f"wd{kk+1}")]
        extra += wd_read(kk + 1, 128 + 8 * ((kk + 1) % 2))
    if i == FY_POLL:
        poll("fy", FY_LOAD, F_CMP)
    main = []
    for ta in range(2):
        for da in range(2):
            acc = 16 * (da + 2 * ta)
            c = "0" if i == 0 else f"v[{acc}:{acc+15}]"
            fa = (8 * kk if kk < 16 else 128 + 8 * (kk % 2)) + 4 * da
            fb = 96 + 8 * (i % NH) + 4 * ta
            m = [f"v_mfma_f32_32x32x16_bf16 v[{acc}:{acc+15}], a[{fa}:{fa+3}], v[{fb}:{fb+3}], {c}"]
            if acc == 0 and i >= 28 - DEF:
                late.append(m)
                continue
            if hl and i >= HL0 and (da, ta) != (0, 0) and (hl[0][0] < i + NH or (hl[0][0] == i + NH and da == 1 and len(hl) % 2 == ta % 2)):
                m.append(hl.pop(0)[1])
            main.append(m)
    AB = opt('ab', '')
    fl_ = fill[i]
    if 'X' in AB:
        fl_ = [e for e in fl_ if isinstance(e, tuple) or not (" lds" in e or "v80," in e)]
    if 'Y' in AB and i == FYW_AT:
        fl_ = [e for e in fl_ if e != ("wv", "y")]
    if 'D' in AB:
        extra = [e for e in extra if not isinstance(e, tuple)]
    put(pack(main, extra + fl_, 24))
assert not hl
stamp()
stamp("f")
wr = [f"ds_write_b128 v230, v[{16*k+4*g}:{16*k+4*g+3}] offset:{(k-1)*16384+1024*g}" for k in range(1, 4) for g in range(4)]
yadd = []
for g in range(4):
    for e in range(2):
        yr, d = 72 + 2 * g + e, XS(g, e)
        yadd += [f"v_lshlrev_b32 v64, 16, v{yr}", f"v_and_b32 v65, {sMask}, v{yr}",
                 f"v_add_f32 v{d}, v{d}, v64", f"v_add_f32 v{d+1}, v{d+1}, v65"]
YIN = opt('yin', 1)
w1 = weave(late, wr[:8]) if late else wr[:8]
put(w1 + (weave(wr[8:], yadd) if YIN else wr[8:]))
stamp("f")
a("s_waitcnt lgkmcnt(0)")
stamp("f")
a("s_barrier")
stamp("f")
for g in range(4):
    for k in range(1, 4):
        a(f"ds_read_b128 v[{16*k+4*g}:{16*k+4*g+3}], v{240+k} offset:{(k-1)*16384+1024*g}")
stamp("f")
if not YIN:
    put(yadd)
stamp("f")
for g in range(4):
    for e in range(2):
        r = 4 * g + 2 * e
        for k in range(1, 4):
            a(f"v_pk_add_f32 v[{r}:{r+1}], v[{r}:{r+1}], v[{16*k+r}:{16*k+r+1}]")
        a(f"v_pk_fma_f32 v[{r}:{r+1}], v[{r}:{r+1}], v[228:229], v[{XS(g, e)}:{XS(g, e)+1}] op_sel_hi:[1,0,1]")
    a(f"v_cvt_pk_bf16_f32 v{116+2*g}, v{4*g}, v{4*g+1}\nv_cvt_pk_bf16_f32 v{117+2*g}, v{4*g+2}, v{4*g+3}")
    if g % 2 == 1:
        b = 116 + 2 * (g - 1)
        a(f"v_permlane32_swap_b32 v{b}, v{b+2}\nv_permlane32_swap_b32 v{b+1}, v{b+3}")
        a(f"buffer_store_dwordx4 v[{b}:{b+3}], v234, {rOut}, s16 offen offset:{16*(g-1)} {OUTFL}")
        stamp("f")
stamp()


def stamp_out():
    if not STAMP:
        return
    a(f"""
s_waitcnt vmcnt(0) lgkmcnt(0)
v_writelane_b32 v254, s98, {nstamp[0]-1}
{CLK} s[98:99]
s_waitcnt lgkmcnt(0)
v_writelane_b32 v254, s98, 15
s_lshl_b32 s84, s2, 2
s_add_u32 s84, s84, {sw}
s_lshl_b32 s84, s84, 6
s_add_u32 s84, s84, {WS_TS}
v_lshlrev_b32 v1, 2, v255
s_mov_b64 exec, 0xffff
buffer_store_dword v254, v1, {rWs}, s84 offen
""")


stamp_out()
a("s_endpgm")

a.reset()
NC_LOAD = f"global_load_dword v202, v203, s[{sDbg}:{sDbg+1}] sc1"
NC_CMP = "v_cmp_eq_u32 vcc, 0, v202"
shq = "s59"
a(f"""
L_helper:
s_lshl_b32 {shq}, {sxcd}, 2
s_add_u32 {shq}, {shq}, {sj}
v_mov_b32 v203, 0
v_lshrrev_b32 v1, 2, v255
s_lshl_b32 s83, {shq}, 2
s_add_u32 s83, s83, {sw}
s_lshl_b32 s72, s83, 4
v_add_u32 v4, s72, v1
v_mul_u32_u24 v5, 896, v4
v_and_b32 v2, 3, v255
v_lshl_add_u32 v5, v2, 4, v5
s_lshr_b32 s73, {sxcd}, 1
s_lshl_b32 s73, s73, 2
s_add_u32 s60, s73, {sj}
s_min_u32 s73, s60, 13
s_and_b32 s74, {sxcd}, 1
s_mul_i32 s74, s74, 14
s_add_u32 s61, s73, s74
s_lshr_b32 s73, s61, 1
s_lshl_b32 s82, s73, 8
v_lshrrev_b32 v6, 4, v255
s_lshl_b32 s75, {sw}, 2
v_add_u32 v6, s75, v6
v_mul_u32_u24 v7, 3584, v6
v_and_b32 v3, 15, v255
v_lshl_add_u32 v7, v3, 4, v7
s_mov_b32 s72, {WS_EP}
s_waitcnt lgkmcnt(0)
""")
if STAMP:
    a("v_mov_b32 v254, 0\nv_writelane_b32 v254, s100, 0")
    nstamp[0] = 1
stamp(SEL[0])
a(f"""
s_mov_b32 s36, s{sX}
s_mov_b32 s37, s{sX+1}
s_mov_b32 s48, s{sWs}
s_mov_b32 s49, s{sWs+1}
buffer_load_dword v202, v203, {rWs}, s72 offen sc1
""")
for i in range(14):
    a(f"buffer_load_dwordx4 v[{8+4*i}:{11+4*i}], v5, {rX}, 0 offen offset:{64*i}")
a(f"""
s_mov_b32 s73, 1664525
v_mul_lo_u32 v202, v202, s73
s_cmp_eq_u32 s83, 127
v_add_u32 v202, 1013904225, v202
v_or_b32 v202, 1, v202
s_cbranch_scc0 L_hnoep
s_mov_b64 exec, 1
""")
a.items.append(("raw", f"    global_store_dword v203, v202, s[{sDbg}:{sDbg+1}] sc1"))
a.items.append(("raw", f"    buffer_store_dword v202, v203, {rWs}, s72 offen sc1"))
a(f"""
s_mov_b64 exec, -1
L_hnoep:
s_bitcmp1_b32 s61, 0
s_cselect_b32 s40, s{sWu}, s{sWg}
s_cselect_b32 s41, s{sWu+1}, s{sWg+1}
""")
wl = [f"buffer_load_dwordx4 v[{72+4*i}:{75+4*i}], v7, {rW}, s82 offen\ns_add_u32 s82, s82, {16*3584}" for i in range(28)]
HW0 = opt('hw0', 0)
put(wl[:HW0])
wl = wl[HW0:]
a(f"""
s_mov_b32 s76, 0x3f803f80
s_mov_b32 s77, 0x00003f80
s_mov_b32 s79, 0x3f800000
""")
for _ in range(opt('dhelp', 0)):
    a("s_sleep 16")
EXACT = "--noexact" not in sys.argv
L = []
for i in range(56):
    c0, c1 = ("0", "0") if i == 0 else ("v64", "v68")
    L.append([f"v_dot2_f32_bf16 v64, v{8+i}, s76, {c0}", f"v_dot2_f32_bf16 v68, v{8+i}, v{8+i}, {c1}"])
HW1 = opt('hw1', 0)
put(L[0] + weave(L[1:], wl[:HW1]))
wl = wl[HW1:]
stamp()
a(f"""
v_add_f32_dpp v64, v64, v64 quad_perm:[1,0,3,2] row_mask:0xf bank_mask:0xf
v_add_f32_dpp v68, v68, v68 quad_perm:[1,0,3,2] row_mask:0xf bank_mask:0xf
v_lshlrev_b32 v4, 3, v4
v_add_f32_dpp v64, v64, v64 quad_perm:[2,3,0,1] row_mask:0xf bank_mask:0xf
v_add_f32_dpp v68, v68, v68 quad_perm:[2,3,0,1] row_mask:0xf bank_mask:0xf
v_mul_f32 v64, {hex(0x3b124925)}, v64
v_mul_f32 v68, {hex(0x3b124925)}, v68
v_fma_f32 v68, -v64, v64, v68
v_cvt_pk_bf16_f32 v64, -v64, -v64
v_max_f32 v68, 0, v68
v_cvt_pk_bf16_f32 v68, v68, v68
v_and_b32 v68, {sMask}, v68
v_add_f32 v68, 0x3727c5ac, v68
v_cvt_pk_bf16_f32 v68, v68, v68
v_and_b32 v68, {sMask}, v68
v_sqrt_f32 v68, v68
v_and_b32 v66, {sMask}, v64
v_cvt_pk_bf16_f32 v68, v68, v68
v_and_b32 v68, {sMask}, v68
v_rcp_f32 v70, v68
s_mov_b32 s74, {WS_ST}
v_fma_f32 v71, -v68, v70, 1.0
v_fma_f32 v70, v70, v71, v70
v_mul_f32 v65, v70, v70
v_mul_f32 v71, v66, v70
s_mov_b32 s80, 0x11111111
s_mov_b32 s81, 0x11111111
s_mov_b64 exec, s[80:81]
buffer_store_dwordx2 v[64:65], v4, {rWs}, s74 offen sc1
s_mov_b64 exec, -1
v_mul_u32_u24 v5, 960, v1
s_mul_i32 s75, {sw}, {16*960}
v_lshl_add_u32 v5, v2, 4, v5
v_add_u32 v5, s75, v5
""")
L2B = 64 * 960
L3B = L2B + 448 * 144
a(f"""
v_lshrrev_b32 v1, 5, v255
v_bfe_u32 v2, v255, 2, 2
v_lshl_add_u32 v2, v1, 3, v2
v_mul_u32_u24 v2, 960, v2
v_bfe_u32 v4, v255, 4, 1
v_lshl_add_u32 v2, v4, 5, v2
v_and_b32 v4, 3, v255
v_lshl_add_u32 v2, v4, 3, v2
v_add_u32 v194, s75, v2
v_and_b32 v4, 31, v255
v_mul_u32_u24 v4, 144, v4
s_lshl_b32 s74, {sw}, 5
s_add_u32 s74, s74, {L2B}
v_lshl_add_u32 v4, v1, 4, v4
v_add_u32 v195, s74, v4
v_lshlrev_b32 v6, 9, v6
v_lshl_add_u32 v6, v3, 5, v6
v_add_u32 v6, {L3B}, v6
v_lshrrev_b32 v1, 3, v255
v_and_b32 v2, 7, v255
v_lshlrev_b32 v2, 4, v2
v_mul_u32_u24 v197, {XTS}, v1
v_add_u32 v197, v197, v2
v_mul_u32_u24 v1, 144, v1
v_add_u32 v1, v1, v2
s_mul_i32 s74, {sw}, {112*144}
s_add_u32 s74, s74, {L2B}
v_add_u32 v196, s74, v1
s_lshl_b32 s74, {shq}, 7
s_mul_i32 s75, {sw}, {112*XTS}
s_add_u32 s74, s74, s75
s_add_u32 s62, s74, {WS_XT}
s_and_b32 s75, {sw}, 1
s_lshl_b32 s75, s75, 8
v_lshl_add_u32 v2, v255, 2, s75
v_add_u32 v198, {L3B}, v2
""")


L = []
for i in range(56):
    t = 186 + 2 * (i % 4)
    if EXACT:
        g = [f"v_dot2_f32_bf16 v{t}, v{8+i}, s77, v66", f"v_dot2_f32_bf16 v{t+1}, v{8+i}, s79, v66"]
        if i > 0:
            p = 186 + 2 * ((i - 1) % 4)
            g += [f"v_cvt_pk_bf16_f32 v{7+i}, v{p}, v{p+1}", f"v_lshlrev_b32 v{p}, 16, v{7+i}", f"v_and_b32 v{p+1}, {sMask}, v{7+i}",
                  f"v_pk_mul_f32 v[{p}:{p+1}], v[{p}:{p+1}], v[70:71] op_sel_hi:[1,0]", f"v_cvt_pk_bf16_f32 v{7+i}, v{p}, v{p+1}"]
            if i % 4 == 0:
                g.append(f"ds_write_b128 v5, v[{4+i}:{7+i}] offset:{64*(i//4-1)}")
        if i == 55:
            g += ["s_nop 0", f"v_cvt_pk_bf16_f32 v63, v{t}, v{t+1}", f"v_lshlrev_b32 v{t}, 16, v63", f"v_and_b32 v{t+1}, {sMask}, v63",
                  f"v_pk_mul_f32 v[{t}:{t+1}], v[{t}:{t+1}], v[70:71] op_sel_hi:[1,0]", f"v_cvt_pk_bf16_f32 v63, v{t}, v{t+1}",
                  f"ds_write_b128 v5, v[60:63] offset:{64*13}"]
    else:
        g = [f"v_lshlrev_b32 v{t}, 16, v{8+i}", f"v_and_b32 v{t+1}, {sMask}, v{8+i}",
             f"v_pk_fma_f32 v[{t}:{t+1}], v[{t}:{t+1}], v[70:71], v[70:71] op_sel:[0,0,1] op_sel_hi:[1,0,1]",
             f"v_cvt_pk_bf16_f32 v{8+i}, v{t}, v{t+1}"]
        if i % 4 == 3:
            g.append(f"ds_write_b128 v5, v[{8+i-3}:{8+i}] offset:{64*(i//4)}")
    L.append(g)
HW2 = opt('hw2', 10)
put(weave(L, wl[:HW2]))
wl = wl[HW2:]
stamp()
if WM == 1:
    a(f"""
s_mul_i32 s74, s83, {98*128}
v_min_u32 v199, 48, v255
v_lshlrev_b32 v199, 7, v199
v_add_u32 v199, s74, v199
global_load_dword v200, v199, s[{sWd}:{sWd+1}]
global_load_dword v201, v199, s[{sWd}:{sWd+1}] offset:{0}
""".replace("global_load_dword v201, v199, s[28:29] offset:0", f"v_add_u32 v199, {49*128}, v199\nglobal_load_dword v201, v199, s[28:29]"))
HW3 = opt('hw3', 99)
put(wl[:min(HW3, 12)])
wl2 = wl[min(HW3, 12):HW3]
wl = wl[HW3:]
for b in range(14):
    a(f"ds_read_b64_tr_b16 v[{8+4*b}:{9+4*b}], v194 offset:{64*b}\nds_read_b64_tr_b16 v[{10+4*b}:{11+4*b}], v194 offset:{64*b+4*960}")
cs = []
for i in range(28):
    for d in range(4):
        c0, c1 = ("0", "0") if i == 0 else (f"v{64+2*d}", f"v{65+2*d}")
        cs += [f"v_dot2_f32_bf16 v{64+2*d}, v{72+4*i+d}, s77, {c0}", f"v_dot2_f32_bf16 v{65+2*d}, v{72+4*i+d}, s79, {c1}"]
NC0 = opt('nc0', 0)
put(weave([f"ds_write_b128 v195, v[{8+4*b}:{11+4*b}] offset:{32*144*b}" for b in range(14)], wl2 + cs[:NC0]))
a(f"{NC_LOAD}\ns_waitcnt lgkmcnt(0)\ns_barrier")
stamp()
for b in range(14):
    a(f"ds_read_b128 v[{8+4*b}:{11+4*b}], v196 offset:{8*144*b}")
put(weave([f"buffer_store_dwordx4 v[{8+4*b}:{11+4*b}], v197, {rWs}, s62 offen sc1\ns_add_u32 s62, s62, {8*XTS}" for b in range(14)], [] if wl else cs[NC0:]))
if wl:
    put(wl + cs[NC0:])
a("""
ds_write_b128 v6, v[64:67]
ds_write_b128 v6, v[68:71] offset:16
s_waitcnt lgkmcnt(0)
s_barrier
""")
stamp()
for r in range(16):
    a(f"ds_read_b32 v{72+r}, v198 offset:{512*r}")
for st_ in (8, 4, 2, 1):
    for r in range(st_):
        a(f"v_add_f32 v{72+r}, v{72+r}, v{72+r+st_}")
a(f"""
v_cvt_pk_bf16_f32 v73, v72, v72
v_and_b32 v73, {sMask}, v73
v_sub_f32 v74, v72, v73
v_cvt_pk_bf16_f32 v73, v73, v74
v_lshlrev_b32 v2, 4, v3
v_lshrrev_b32 v1, 4, v255
v_lshl_add_u32 v2, v1, 2, v2
s_lshr_b32 s74, s61, 1
s_lshl_b32 s74, s74, 1
s_add_u32 s74, s74, {sw}
s_lshl_b32 s74, s74, 1
s_and_b32 s75, s61, 1
s_add_u32 s74, s74, s75
s_lshl_b32 s74, s74, 8
s_add_u32 s74, s74, {WS_CS}
s_cmp_lt_u32 s60, 14
s_cselect_b32 s74, s74, {WS_SIZE}
s_cmp_lt_u32 {sw}, 2
s_cselect_b32 s74, s74, {WS_SIZE}
buffer_store_dword v73, v2, {rWs}, s74 offen sc1
""")
stamp()
poll("hnc", NC_LOAD, NC_CMP)
a(f"""
v_mul_u32_u24 v1, {FSP}, v255
s_lshl_b32 s74, {shq}, 2
s_add_u32 s74, s74, {WS_FL}
s_waitcnt vmcnt(0)
s_barrier
s_cmp_eq_u32 {sw}, 0
s_cbranch_scc0 L_hdone
s_mov_b64 exec, 0xff
buffer_store_dword v202, v1, {rWs}, s74 offen sc1
s_mov_b64 exec, -1
L_hdone:
""")
stamp()
stamp_out()
a("L_end:\ns_endpgm")
for sp in slow:
    a.reset()
    a(sp)
a("L_codeend:\ns_endpgm")

body = a.render()
here = os.path.dirname(os.path.abspath(__file__))
ref = open(os.path.join(here, "..", "cdna_kernels", NAME + ".s.ref")).read()
head = [l for l in ref.split("\n") if l.startswith(";") and "@launch" not in l and "Override" not in l and "grid=ceil" not in l]
txt = "\n".join(head) + f"""
; Generated by tools/gen.py (hand-written generator).  XTS={XTS} YS={YS} CSL=1
; @launch grid=(256,1,1) block=(256,1,1) lds=163840
.amdgcn_target "amdgcn-amd-amdhsa--gfx950"
.text
.globl {NAME}_kernel
.p2align 8
.type {NAME}_kernel,@function
{NAME}_kernel:
{body}
.section .rodata,"a"
.p2align 6
.amdhsa_kernel {NAME}_kernel
  .amdhsa_next_free_vgpr 512
  .amdhsa_next_free_sgpr 102
  .amdhsa_accum_offset 256
  .amdhsa_group_segment_fixed_size 0
  .amdhsa_kernarg_size 128
  .amdhsa_user_sgpr_count 2
  .amdhsa_user_sgpr_kernarg_segment_ptr 1
  .amdhsa_system_sgpr_workgroup_id_x 1
.end_amdhsa_kernel
"""
out = [x for x in sys.argv[1:] if not x.startswith("--")]
path = out[0] if out else os.path.join(here, "..", "cdna_kernels", NAME + ".s")
open(path, "w").write(txt)
print(path, a.stats, file=sys.stderr)
```

```python
import sys, os
sys.path.insert(0, os.path.dirname(os.path.abspath(__file__)))
from asmdsl import Asm

NAME = "parallel_sum__ssm_conv_s4__glu_gated_reglu__prompt"
STAMP = "--stamp" in sys.argv


def opt(name, dflt):
    v = [x.split('=')[1] for x in sys.argv if x.startswith('--' + name + '=')]
    return type(dflt)(v[0]) if v else dflt


WS_H, WS_XT, WS_Y = 0x0, 0x700000, 0x900000
XTS, YS = 4096 + opt('xtp', 128), 8192 + opt('yp', 128)
WS_ST, WS_CS = 0xB00000, 0xB04000
WS_FH, WS_FY, WS_FL, WS_EP = 0xB10000, 0xB20000, 0xB28000, 0xB2C000
WS_TS = 0xB30000
WS_SIZE = 0xB80000
WSOFF = opt('wsoff', 0) << 20
FSP = 1024
SLOT = [0, 16384, 32768, 49152]
XB = 32768
SC = 147456
UB = 33536
U1_OFF = 4640
U_CH = 9280
KC0, KC_CH, KC_CP = 16, 16656, 4160
YX = 32768
RX = 65536
XR = 49152
PS = [SC] + [XB + k * 16384 for k in range(2, 7)]
SPIN = 200000
FHW_AT, FH_AT, FH_POLL = opt('fhw', 2), opt('fh', 16), opt('fhp', 20)
FYW_AT, FY_AT, FY_POLL = opt('fyw', 6), opt('fy', 19), opt('fyp', 24)
FL_AT, FL_POLL = opt('fl', 20), opt('flp', 23)
OUTFL = 'sc1' if '--outsc1' in sys.argv else ''
SEL = opt('sel', 'a')
CV = opt('cv', 20)
PAT = opt('pat', 0)
WG = opt('wg', 4)

sX, sAre, sAim, sBre, sBim, sCre, sCim, sLdt, sDsk = 4, 6, 8, 10, 12, 14, 16, 18, 20
sWg, sWu, sWd, sOut, sDbg, sWs = 24, 26, 28, 30, 32, 34
rX, rW, rWd, rWs, rOut = "s[36:39]", "s[40:43]", "s[44:47]", "s[48:51]", "s[52:55]"
sw, sxcd, sj, sr1, sc1_, sjc, sr2, sc2, snonce = "s56", "s57", "s58", "s59", "s60", "s61", "s62", "s63", "s64"
sWoff, sWdoff, sDs, scnt = "s65", "s66", "s67", "s68"
sq, sXoff, sw4k, sWl, sMask = "s69", "s72", "s73", "s77", "s78"
sFL, stg, sUl, sUg, sH0, sH1, sKC, sHoff = "s80", "s81", "s82", "s83", "s86", "s87", "s88", "s89"
sST, sCS, sFHw, sFHr, sY = "s90", "s91", "s92", "s93", "s94"
sOdd = "s[22:23]"

vKC, vKZ, vUZ, vKX, vXR, vXD, vWD, vWF, vKL = 160, 168, 169, 170, 172, 180, 184, 188, 190
vDD, vDF, vCU, vCK, vN4, vN8, vCS, vF, vYW, vYR, vFH, vH = 200, 204, 208, 209, 210, 211, 212, 213, 214, 215, 217, 218
fC, fR, fKG, fQ, fG, vNo, vZ, vL16 = 220, 221, 222, 223, 226, 224, 225, 250

a = Asm()
slow = []
nstamp = [0]
tok, ltok = {}, {}


def stamp(kind="a"):
    if not STAMP or kind not in SEL:
        return
    k = nstamp[0]
    nstamp[0] += 1
    if k > 1:
        a.items.append(("raw", f"    v_writelane_b32 v254, s98, {k-1}"))
    a.items.append(("raw", f"    {CLK} s[98:99]"))


def poll(name, load, cmp_):
    a(cmp_)
    a(f"s_cbranch_vccnz L_slow_{name}")
    a(f"L_back_{name}:")
    slow.append(f"""L_slow_{name}:
s_mov_b32 {scnt}, 0
L_retry_{name}:
s_add_u32 {scnt}, {scnt}, 1
s_cmp_gt_u32 {scnt}, {SPIN}
s_cbranch_scc1 L_back_{name}
{load}
s_waitcnt vmcnt(0)
{cmp_}
s_cbranch_vccnz L_retry_{name}
s_branch L_back_{name}""")


def put(items):
    for e in items:
        if isinstance(e, tuple):
            if e[0] == "vt": tok[e[1]] = a.vm_tok()
            if e[0] == "lt": ltok[e[1]] = a.lg_tok()
            if e[0] == "wv": a.wait_vm(tok[e[1]])
            if e[0] == "wl": a.wait_lg(ltok[e[1]])
        else:
            a(e)


def weave(main, extra):
    nreal = sum(1 for e in extra if not isinstance(e, tuple))
    out, k, done = [], 0, 0
    for t, m in enumerate(main):
        out += m if isinstance(m, list) else [m]
        goal = -(-(nreal * (t + 1)) // len(main))
        while k < len(extra) and (isinstance(extra[k], tuple) or done < goal):
            out.append(extra[k])
            done += not isinstance(extra[k], tuple)
            k += 1
    return out


def cost(e):
    if isinstance(e, tuple):
        return 4 if e[0] in ("wv", "wl") else 0
    c = 0
    for l in e.split("\n"):
        op = l.split()[0]
        if op.startswith(("buffer_", "global_")):
            c += CV if "x4" in op else 12
        elif op.startswith("ds_write"):
            c += 28 if "b128" in op or "2_b64" in op else 14
        else:
            c += 4
    return c


def pack(main, extra, cap):
    base = [sum(cost(x) for x in m[1:]) for m in main]
    n, G = len(extra), len(main)
    cs = [cost(e) for e in extra]
    INF = 1 << 60
    best = [[INF] * (n + 1) for _ in range(G + 1)]
    frm = [[0] * (n + 1) for _ in range(G + 1)]
    best[0][0] = 0
    for g in range(G):
        for i in range(n + 1):
            if best[g][i] == INF:
                continue
            load = base[g]
            for j in range(i, n + 1):
                if j > i:
                    load += cs[j - 1]
                v = best[g][i] + 1000 * max(0, load - cap) + load * load // 16
                if v < best[g + 1][j]:
                    best[g + 1][j] = v
                    frm[g + 1][j] = i
    cuts, j = [], n
    for g in range(G, 0, -1):
        cuts.append((frm[g][j], j))
        j = frm[g][j]
    cuts.reverse()
    out = []
    for m, (i, j) in zip(main, cuts):
        out += m + extra[i:j]
    return out


def lines(txt, per=1):
    L = [l.replace(";;", "\n") for l in txt.strip().split("\n")]
    return ["\n".join(L[i:i + per]) for i in range(0, len(L), per)]


T64 = opt('t64', 0)
KA = 240 if T64 else 144
ROT = opt('rot', 0)
HFL = opt('hfl', 'sc1').replace('_', ' ').replace('none', '')


def wrap(reg, step, lim, base):
    return f"s_add_u32 {reg}, {reg}, {step}\ns_cmp_eq_u32 {reg}, {lim}\ns_cselect_b32 {reg}, {base}, {reg}"


def dma4(m0, vo, srd, soff, step, fl=""):
    g = [m0, f"buffer_load_dwordx4 v{vo}, {srd}, {soff} offen {fl} lds"]
    for i in range(1, 4):
        g.append(f"buffer_load_dwordx4 v{vo+i}, {srd}, {soff} offen offset:{1024*i} {fl} lds")
    g.append(f"s_add_u32 {soff}, {soff}, {step}")
    return g


def w_unit(u):
    return dma4(f"s_add_u32 m0, {sWl}, {SLOT[u % 4]}", vWD, rW, sWoff, 32 * 3584)


def x_block(cb):
    return dma4(f"s_add_u32 m0, {sw4k}, {XB+cb*16384}", vXD, rX, sXoff, 128)


def wd_pair(kk):
    g = dma4(f"s_add_u32 m0, {sw4k}, {PS[(kk >> 1) % 6]}", vDD, rWd, sWdoff, 32 * 896)
    if ROT and kk % 4 == 2:
        g[-1] = wrap(sWdoff, 32 * 896, "s9", "s8")
    return g


CLK = "s_memtime" if "--cyc" in sys.argv else "s_memrealtime"
if STAMP:
    a(f"{CLK} s[100:101]")
a(f"""
s_cmp_ge_u32 s2, 256
s_cbranch_scc1 L_end
s_load_dwordx16 s[4:19], s[0:1], 0
s_load_dwordx16 s[20:35], s[0:1], 64
s_getpc_b64 s[70:71]
L_pc:
s_and_b32 {sxcd}, s2, 7
s_lshr_b32 {sj}, s2, 3
v_lshrrev_b32 v1, 6, v0
v_and_b32 v255, 63, v0
v_readfirstlane_b32 {sw}, v1
""")
a(f"""
s_and_b32 {sq}, {sj}, 3
s_lshl_b32 s74, {sq}, 6
v_lshl_add_u32 v2, v1, 4, v255
v_add_u32 v2, s74, v2
v_lshlrev_b32 v2, 7, v2
v_min_u32 v2, L_codeend-L_pc-4, v2
s_mov_b64 exec, 0xffff
{"global_load_dword v253, v2, s[70:71]" if "--nocodepf" not in sys.argv else ""}
s_mov_b64 exec, -1
s_mov_b32 s38, {2048*896}
s_mov_b32 s39, 0x20000
s_mov_b32 s42, {448*3584}
s_mov_b32 s43, 0x20000
s_mov_b32 s50, {WS_SIZE}
s_mov_b32 s51, 0x20000
v_lshlrev_b32 v{vL16}, 4, v255
s_mov_b32 {sMask}, 0xffff0000
s_cmp_lt_u32 {sj}, 4
s_cbranch_scc1 L_helper
""")

a(f"""
s_sub_u32 {sj}, {sj}, 4
s_mul_i32 s74, {sxcd}, 28
s_add_u32 {sjc}, s74, {sj}
s_lshl_b32 s74, {sjc}, 10
s_lshl_b32 s75, {sw}, 8
s_add_u32 s74, s74, s75
v_lshl_add_u32 v4, v255, 2, s74
s_lshr_b32 s79, s74, 9
s_lshl_b32 s74, s79, 1
v_mov_b32 v5, s74
s_lshr_b32 {sc2}, {sj}, 2
s_lshr_b32 s74, {sxcd}, 1
s_lshl_b32 s74, s74, 2
s_add_u32 {sr1}, s74, {sq}
s_lshl_b32 {stg}, {sr1}, 2
s_add_u32 {stg}, {stg}, {sw}
s_mul_i32 {sXoff}, {stg}, {32*896}
s_lshl_b32 {sw4k}, {sw}, 12
s_and_b32 s74, {sxcd}, 1
s_mul_i32 s74, s74, 7
s_add_u32 {sc1_}, s74, {sc2}
s_lshl_b32 {sWoff}, {sc1_}, 8
s_lshr_b32 s84, {sw}, 1
s_and_b32 s85, {sw}, 1
s_lshl_b32 s74, s85, 13
s_lshl_b32 s75, s84, 12
s_add_u32 {sWl}, s74, s75
v_and_b32 v{fC}, 3, v255
v_bfe_u32 v{fR}, v255, 2, 2
v_lshrrev_b32 v{fKG}, 5, v255
v_lshrrev_b32 v{fQ}, 4, v255
v_and_b32 v{fG}, 1, v{fQ}
v_lshrrev_b32 v6, 3, v255
v_mul_u32_u24 v1, 896, v6
v_and_b32 v2, 7, v255
v_xor_b32 v2, v2, v{fQ}
v_lshl_add_u32 v{vXD}, v2, 4, v1
v_xor_b32 v{vXD+1}, 64, v{vXD}
v_add_u32 v{vXD+1}, {8*896-1024}, v{vXD+1}
v_add_u32 v{vXD+2}, {2*(8*896-1024)}, v{vXD}
v_add_u32 v{vXD+3}, {2*(8*896-1024)}, v{vXD+1}
s_lshl_b32 s74, s84, 4
v_add_u32 v1, s74, v{fR}
v_mul_u32_u24 v1, 3584, v1
v_lshl_add_u32 v1, v{fQ}, 6, v1
s_lshl_b32 s76, s85, 1
v_xor_b32 v2, s76, v{fC}
v_lshl_add_u32 v{vWD}, v2, 4, v1
v_add_u32 v{vWD+1}, {4*3584-1024}, v{vWD}
v_add_u32 v{vWD+2}, {2*(4*3584-1024)}, v{vWD}
v_add_u32 v{vWD+3}, {3*(4*3584-1024)}, v{vWD}
""")
if STAMP:
    a("v_mov_b32 v254, 0\ns_waitcnt lgkmcnt(0)\nv_writelane_b32 v254, s100, 0")
    nstamp[0] = 1
stamp(SEL[0])
a(f"""
s_waitcnt lgkmcnt(0)
global_load_ushort v134, v5, s[{sLdt}:{sLdt+1}]
global_load_dword v128, v4, s[{sAre}:{sAre+1}]
global_load_dword v129, v4, s[{sAim}:{sAim+1}]
global_load_dword v130, v4, s[{sBre}:{sBre+1}]
global_load_dword v131, v4, s[{sBim}:{sBim+1}]
global_load_dword v132, v4, s[{sCre}:{sCre+1}]
global_load_dword v133, v4, s[{sCim}:{sCim+1}]
global_load_ushort v135, v5, s[{sDsk}:{sDsk+1}]
s_mov_b32 s36, s{sX}
s_mov_b32 s37, s{sX+1}
s_bitcmp1_b32 {sw}, 0
s_cselect_b32 s40, s{sWu}, s{sWg}
s_cselect_b32 s41, s{sWu+1}, s{sWg+1}
s_cselect_b64 {sOdd}, -1, 0
""")
if "--tlb" in sys.argv:
    a(f"""
v_min_u32 v14, 5, v255
v_lshlrev_b32 v14, 21, v14
v_mov_b32 v15, 0
s_mov_b64 exec, 0x3f
global_load_dword v152, v14, s[{sWs}:{sWs+1}]
s_mov_b64 exec, 1
global_load_dword v153, v15, s[{sOut}:{sOut+1}]
global_load_dword v154, v15, s[{sWd}:{sWd+1}]
global_load_dword v155, v15, s[{sDbg}:{sDbg+1}]
s_mov_b64 exec, -1
""")
LATE = opt('late', 0)
first_dma = x_block(0) + w_unit(0) + [("vt", "u0")]
if not LATE:
    put(first_dma)
a(f"""
s_add_u32 s74, {sw4k}, {SC}
v_add_u32 v{vKX}, s74, v{vL16}
v_xor_b32 v{vKX+1}, 4096, v{vKX}
v_bfe_u32 v1, v255, 1, 2
v_lshlrev_b32 v7, 4, v1
v_lshl_add_u32 v7, v255, 6, v7
v_add_u32 v{vKL}, s74, v7
v_xor_b32 v{vKL+1}, 16, v{vKL}
v_xor_b32 v{vKL+2}, 32, v{vKL}
v_xor_b32 v{vKL+3}, 48, v{vKL}
v_lshl_add_u32 v7, v{fKG}, 3, v{fR}
v_lshlrev_b32 v7, 6, v7
v_bfe_u32 v8, v255, 1, 1
v_lshl_add_u32 v8, v{fG}, 1, v8
v_lshrrev_b32 v9, 1, v{fR}
v_xor_b32 v8, v8, v9
v_lshl_add_u32 v7, v8, 4, v7
v_and_b32 v10, 1, v255
v_lshl_add_u32 v7, v10, 3, v7
v_add_u32 v{vKL+4}, s74, v7
v_xor_b32 v{vKL+5}, 32, v{vKL+4}
v_add_u32 v{vKL+5}, 256, v{vKL+5}
s_lshl_b32 s76, s85, 5
v_xor_b32 v{vKL+6}, s76, v{vKL+4}
v_xor_b32 v{vKL+7}, s76, v{vKL+5}
v_and_b32 v11, 31, v255
v_bfe_u32 v12, v255, 1, 3
v_xor_b32 v7, v12, v{fKG}
v_lshlrev_b32 v7, 4, v7
v_lshl_add_u32 v7, v11, 7, v7
s_and_b32 s74, {sw4k}, {0x2000 if T64 else 0x3000}
s_add_u32 s74, s74, {XB}
v_add_u32 v{vXR}, s74, v7
v_xor_b32 v{vXR+1}, 32, v{vXR}
v_xor_b32 v{vXR+2}, 64, v{vXR}
v_xor_b32 v{vXR+3}, 96, v{vXR}
v_add_u32 v{vXR+4}, 0x10000, v{vXR}
v_add_u32 v{vXR+5}, 0x10000, v{vXR+1}
v_add_u32 v{vXR+6}, 0x10000, v{vXR+2}
v_add_u32 v{vXR+7}, 0x10000, v{vXR+3}
v_lshlrev_b32 v13, 3, v{fC}
v_lshl_add_u32 v13, v{fR}, 6, v13
v_mul_u32_u24 v7, {8192+32}, v{fG}
v_lshl_add_u32 v7, v{fKG}, 11, v7
s_mul_i32 s74, s85, {512 if T64 else 0}
v_add3_u32 v{vWF}, v7, v13, s74
v_xor_b32 v{vWF+1}, 32, v{vWF}
v_lshl_add_u32 v7, v{fG}, 5, v13
v_lshl_add_u32 v7, v{fKG}, 9, v7
s_lshl_b32 s74, s85, 8
s_add_u32 s74, s74, {sw4k}
s_add_u32 s74, s74, 65536
v_add_u32 v{vDF}, s74, v7
v_xor_b32 v{vDF+1}, 256, v{vDF}
v_add_u32 v{vDF+2}, 0x10000, v{vDF}
v_add_u32 v{vDF+3}, 0x10000, v{vDF+1}
s_mul_i32 s74, {sw}, 448
v_lshl_add_u32 v7, v{fKG}, 2, v{fR}
v_add_u32 v7, s74, v7
v_mul_u32_u24 v7, 896, v7
v_lshl_add_u32 v7, v{fG}, 6, v7
v_lshl_add_u32 v{vDD}, v{fC}, 4, v7
v_add_u32 v{vDD+1}, {8*896-1024}, v{vDD}
v_add_u32 v{vDD+2}, {2*(8*896-1024)}, v{vDD}
v_add_u32 v{vDD+3}, {3*(8*896-1024)}, v{vDD}
v_lshlrev_b32 v{vN4}, 2, v11
v_lshlrev_b32 v{vN8}, 3, v11
""")
setup2 = lines(f"""s_mul_i32 {sKC}, s84, {KC_CH}
s_add_u32 {sKC}, {sKC}, {KC0}
s_lshl_b32 s74, s85, 10
s_sub_u32 s74, {sKC}, s74
s_add_u32 s74, s74, {16*255-12}
v_sub_u32 v{vKC}, s74, v{vL16}
v_add_u32 v{vKC+1}, {KC_CP+4}, v{vKC}
v_add_u32 v{vKC+2}, {2*(KC_CP+4)}, v{vKC}
v_add_u32 v{vKC+3}, {3*(KC_CP+4)}, v{vKC}
v_lshlrev_b32 v7, 9, v{fKG}
v_sub_u32 v7, v{vKC}, v7
s_mul_i32 s74, s85, 1536
s_sub_u32 s74, 2560, s74
v_subrev_u32 v{vKC+4}, s74, v7
v_add_u32 v{vKC+5}, {KC_CP+4}, v{vKC+4}
v_add_u32 v{vKC+6}, {2*(KC_CP+4)}, v{vKC+4}
v_add_u32 v{vKC+7}, {3*(KC_CP+4)}, v{vKC+4}
v_and_b32 v11, 15, v255
v_mul_u32_u24 v7, {KC_CP+4}, v{fQ}
v_lshl_add_u32 v7, v11, 2, v7
v_add_u32 v{vKZ}, {sKC}, v7
v_lshlrev_b32 v7, 2, v11
v_lshlrev_b32 v{vCS}, 2, v{vN4}
{f"v_min_u32 v7, 108, v{vN4}" if T64 else "v_min_u32 v7, 52, v7"}
v_mul_u32_u24 v8, {FSP}, v{fKG if T64 else fG}
v_add_u32 v{vFH}, v7, v8
s_mul_i32 s75, s84, {U_CH}
s_add_u32 s75, s75, {UB}
s_mul_i32 s74, s85, {U1_OFF}
s_add_u32 s74, s74, s75
v_min_u32 v7, 55, v255
v_lshl_add_u32 v{vUZ}, v7, 3, s74
s_lshl_b32 s74, s85, 11
s_add_u32 {sUl}, s75, s74
s_mul_i32 {sUg}, s79, {XTS}
s_add_u32 {sUg}, {sUg}, s74
s_add_u32 {sUg}, {sUg}, {WS_XT}
v_mul_u32_u24 v7, {U1_OFF}, v10
v_lshl_add_u32 v7, v12, 6, v7
v_lshl_add_u32 v7, v{fQ}, 4, v7
s_lshl_b32 s74, s85, 6
s_sub_u32 s75, s75, s74
s_add_u32 s75, s75, {448-384}
v_add_u32 v{vCU}, s75, v7
v_mul_u32_u24 v7, {KC_CP}, v{fC}
v_sub_u32 v8, v{fQ}, v{fR}
v_lshl_add_u32 v7, v8, 4, v7
s_sub_u32 s74, {sKC}, s74
s_add_u32 s74, s74, {16*255-64*62}
v_add_u32 v{vCK}, s74, v7
s_lshl_b32 s74, {sw}, 10
s_add_u32 s74, s74, {YX}
v_add_u32 v{vYW}, s74, v{vL16}
v_lshlrev_b32 v7, 8, v1
v_lshl_add_u32 v7, v6, 5, v7
v_lshl_add_u32 v7, v10, 3, v7
s_lshl_b32 s74, {sw}, 13
s_add_u32 s75, s74, {YX+4096}
v_add_u32 v{vYR}, s75, v7
s_add_u32 s74, s74, 8192
s_and_b32 s74, s74, 0x7fff
s_add_u32 s74, s74, {YX}
v_add_u32 v{vYR+1}, s74, v7
s_mul_i32 s74, s84, {112*1024}
v_add_u32 v{vH}, s74, v{vL16}
s_sub_u32 s74, {112*1024}, s74
v_add_u32 v{vH+1}, s74, v{vL16}
v_mov_b32 v{vZ}, 0
s_lshl_b32 s74, {sxcd}, 2
s_add_u32 {sr2}, s74, {sq}
s_lshl_b32 s74, {sr2}, 1
s_add_u32 s74, s74, s84
s_lshl_b32 s97, s74, 5
s_lshl_b32 s74, {sc2}, 1
s_add_u32 s74, s74, s85
s_lshl_b32 s17, s74, 6
s_mul_i32 s74, s97, 896
s_add_u32 s16, s74, s17
v_lshrrev_b32 v7, 2, v255
v_mul_u32_u24 v7, 896, v7
v_xor_b32 v8, v{fC}, v{fQ}
v_lshl_add_u32 v227, v8, 4, v7""")
put(setup2[:opt('s2', len(setup2))])
setup2 = setup2[opt('s2', len(setup2)):]
a(f"""
v_lshlrev_b32 v134, 16, v134
v_mul_f32 v134, 0x3fb8aa3b, v134
v_exp_f32 v134, v134
v_cvt_pk_bf16_f32 v134, v134, v134
v_lshlrev_b32 v134, 16, v134
""")
stamp()

PA = [64, 96]
PB = 8
KF = [(160, 176, 192, 208), (96, 112, 128, 144) if T64 else (224, 240, 80, 96)]
R1, R8, E, T = 146, [148, 150], 0, 2
l1s = [0, 1, 2, 3, 4, 5, 6, 7, 8, 256, 258, 260, 262, 264, 512, 516, 520, 768, 772, 776,
       1024, 1032, 1280, 1288, 1536, 1544, 1792, 1800]
ra = {l: 8 + 2 * i for i, l in enumerate(l1s)}
cols = [0, 1, 2, 3, 256, 256, 258, 260, 4, 5, 6, 7, 260, 260, 262, 264,
        512, 516, 520, 1024, 768, 772, 776, 1536, 1032, 1280, 1288, 1288, 1544, 1792, 1800, 1800]


def cmul(d, x, r, t):
    return [f"v_pk_mul_f32 v[{t}:{t+1}], v[{x}:{x+1}], v[{r}:{r+1}] op_sel_hi:[1,0]",
            f"v_pk_fma_f32 v[{d}:{d+1}], v[{x}:{x+1}], v[{r}:{r+1}], v[{t}:{t+1}] op_sel:[1,1,0] op_sel_hi:[0,1,1] neg_lo:[1,0,0]"]


def k_write(ck, i, cq):
    P = (PA[ck] + 16 * i) if i < 2 else (PB + 16 * (i - 2))
    return f"ds_write_b128 v{vKL+cq}, v[{P+4*cq}:{P+4*cq+3}]"


def k_reads(ck, i):
    fr = KF[ck][i]
    base = vKL + 6 if i < 2 else vKL + 4
    return "\n".join(f"ds_read_b64_tr_b16 a[{fr+4*s+2*rd}:{fr+4*s+2*rd+1}], v{base+rd} offset:{1024*s}"
                     for s in range(4) for rd in range(2))


def kgen_head(ck):
    L = []
    un = (lambda d, s: f"v_lshlrev_b32 v{d}, 16, v{s}") if ck == 0 else (lambda d, s: f"v_and_b32 v{d}, {sMask}, v{s}")
    L += [un(136 + i, 128 + i) for i in range(6)]
    L += ["v_mul_f32 v142, v134, v136", "v_mul_f32 v143, v134, v137",
          "v_mul_f32 v142, 0x3fb8aa3b, v142", "v_mul_f32 v143, 0.15915494, v143"]

    def ev(d, l):
        s = []
        if l == 1:
            s += ["v_exp_f32 v144, v142", "v_fract_f32 v145, v143"]
        else:
            f = {8: "0x41000000", 256: "0x43800000"}[l]
            s += [f"v_mul_f32 v144, {f}, v142", f"v_mul_f32 v145, {f}, v143", "v_exp_f32 v144, v144", "v_fract_f32 v145, v145"]
        s += [f"v_cos_f32 v{d}, v145", f"v_sin_f32 v{d+1}, v145"]
        return s, f"v_pk_mul_f32 v[{d}:{d+1}], v[{d}:{d+1}], v[144:145] op_sel_hi:[1,0]"
    wm = cmul(ra[0], 140, 138, T) + [f"v_pk_mul_f32 v[{ra[0]}:{ra[0]+1}], v[{ra[0]}:{ra[0]+1}], v[134:135] op_sel_hi:[1,0]"]
    for (d, l), fill in zip(((R1, 1), (R8[ck], 8), (E, 256)), wm):
        s, last = ev(d, l)
        L += s + [fill, last]
    for l in range(1, 9):
        L += cmul(ra[l], ra[l - 1], R1, T)
    for l in l1s[9:]:
        L += cmul(ra[l], ra[l - 256], E, T)
    for k in range(16):
        c0, c1 = ra[cols[2 * k]], ra[cols[2 * k + 1]]
        L += [f"v_cvt_pk_bf16_f32 v{PA[ck]+k}, v{c0}, v{c1}", f"v_cvt_pk_bf16_f32 v{PA[ck]+16+k}, -v{c0+1}, -v{c1+1}"]
    return L


def kgen_chain(ck):
    r8 = R8[ck]
    rb = lambda j: r8 if j == 1 else 4 + 2 * (j % 2)
    B = [f"v_cvt_pk_bf16_f32 v{PB}, 1.0, v{r8}", f"v_cvt_pk_bf16_f32 v{PB+16}, 0, v{r8+1}"]
    for j in range(2, 32):
        B += cmul(rb(j), rb(j - 1), r8, T)
        if j % 2:
            B += [f"v_cvt_pk_bf16_f32 v{PB+j//2}, v{rb(j-1)}, v{rb(j)}",
                  f"v_cvt_pk_bf16_f32 v{PB+16+j//2}, v{rb(j-1)+1}, v{rb(j)+1}"]
    return B


def k_pass(ck, i):
    return [k_write(ck, i, cq) for cq in range(4)] + [k_reads(ck, i)]


def at(stream, items):
    out = []
    for i, x in enumerate(stream):
        out += [y for p, y in items if p == i]
        out.append(x)
    return out + [y for p, y in items if p >= len(stream)]


def kgen_mfma(ck):
    f = KF[ck]
    return [f"v_mfma_f32_32x32x16_bf16 a[{KA}:{KA+15}], a[{f[s>>2]+4*(s&3)}:{f[s>>2]+4*(s&3)+3}], "
            f"a[{f[2+(s>>2)]+4*(s&3)}:{f[2+(s>>2)]+4*(s&3)+3}], "
            + ("0" if (ck == 0 and s == 0) else f"a[{KA}:{KA+15}]") for s in range(8)]


XF = (lambda s, ta=0: 8 * s + 4 * ta) if T64 else (lambda s, ta=0: 4 * s)


def x_read(s, ta=0):
    cb = s >> 2
    return f"ds_read_b128 a[{XF(s, ta)}:{XF(s, ta)+3}], v{vXR + (0 if cb < 4 else 4) + (s & 3)} offset:{(cb % 4)*16384+ta*4096}"


WM = opt('wm', 0)
if WM == 0:
    warm = [f"""s_cmp_eq_u32 {sw}, 0
s_cselect_b32 s12, s{sWg}, s{sWu}
s_cselect_b32 s13, s{sWg+1}, s{sWu+1}
s_cmp_lt_u32 {sw}, 2
s_cselect_b32 s12, s12, s{sWd}
s_cselect_b32 s13, s13, s{sWd+1}
s_mul_i32 s74, {sjc}, {56*128}
v_min_u32 v251, 55, v255
v_lshl_add_u32 v251, v251, 7, s74
global_load_dword v252, v251, s[12:13]"""]
elif WM >= 1:
    warm = [f"""s_lshl_b32 s74, {sjc}, 1
s_add_u32 s74, s74, s84
s_mul_i32 s74, s74, 3584
v_min_u32 v251, 27, v255
v_lshlrev_b32 v251, 7, v251
s_mov_b64 exec, 0xfffffff
buffer_load_dword v252, v251, {rW}, s74 offen
s_mov_b64 exec, -1"""]
warm2 = []
if WM >= 2:
    warm2 = [f"""s_lshl_b32 s74, {sjc}, 2
s_add_u32 s74, s74, {sw}
s_mul_i32 s74, s74, {14*128}
v_lshl_add_u32 v251, v255, 7, s74
s_mov_b64 exec, 0x3fff
global_load_dword v156, v251, s[{sWd}:{sWd+1}]
s_mov_b64 exec, -1"""]
WAT = opt('wat', 0)
for _ in range(opt('dmain', 0)):
    a("s_sleep 16")
stamp("k")
early = x_block(1) + [("vt", "x1")] + w_unit(1) + [("vt", "u1")]
if LATE == 1:
    put(weave(kgen_head(0), first_dma + early))
elif LATE == 2:
    put(weave(kgen_head(0), first_dma))
    warm = early + warm
elif LATE == 3:
    put(weave(kgen_head(0), first_dma + warm))
    warm = early
else:
    put(weave(kgen_head(0), early))
stamp("k")
XRES = [f"buffer_load_dwordx4 v[242:245], v227, {rX}, s16 offen",
        f"s_add_u32 s74, s16, {16*896}\nbuffer_load_dwordx4 v[246:249], v227, {rX}, s74 offen"]
XRAT = opt('xrat', 0)
if XRAT == 0:
    warm += XRES
wA = warm if WAT == 0 else [e for e in warm if "v251" not in str(e)]
wB = [] if WAT == 0 else [e for e in warm if "v251" in str(e)]
put(weave(kgen_head(1), wA))
stamp("ak"[SEL == "k"])
RD = opt('rd', 3)
p0, p1, p2 = k_pass(0, 0), k_pass(0, 1), k_pass(0, 2)
XE = opt('xe', 0)
xe = sum((x_block(cb) + [("vt", f"x{cb}")] for cb in range(2, 2 + XE)), [])
n0 = 7 * opt('xe0', 3)
put(weave(at(kgen_chain(0), list(zip((0, 7, 14, 21, 21 + RD), p0)) + list(zip((30, 37, 44, 51, 51 + RD), p1))
             + list(zip((62, 70, 80, 92), p2))), xe[:n0] + (wB if WAT == 1 else []) + (warm2 if WM == 2 else [])))
stamp("k")
p3, q0, q1, q2 = k_pass(0, 3), k_pass(1, 0), k_pass(1, 1), k_pass(1, 2)
ch = kgen_chain(1)
put([p2[4], p3[0], p3[1]] + weave(at(ch[2:], [(0, p3[2]), (4, p3[3]), (4, ch[0]), (4, ch[1]), (4 + RD, p3[4])]
                                      + list(zip((14, 20, 26, 32, 32 + RD), q0)) + list(zip((42, 48, 54, 60, 60 + RD), q1))
                                      + list(zip((70, 76, 82, 90), q2))), xe[n0:] + (wB if WAT == 2 else []) + (warm2 if WM == 3 else [])))
stamp("ak"[SEL == "k"])
sc = lines(f"""s_lshl_b32 {sWdoff}, {sc2}, 7
s_mov_b32 s44, s{sWd}
s_mov_b32 s45, s{sWd+1}
s_mov_b32 s46, {1792*896}
s_mov_b32 s47, 0x20000
s_add_u32 s48, s{sWs}, {WSOFF};;s_addc_u32 s49, s{sWs+1}, 0
s_mov_b32 s52, s{sOut}
s_mov_b32 s53, s{sOut+1}
s_mov_b32 s54, {2048*896}
s_mov_b32 s55, 0x20000
s_mul_i32 {sFL}, {sxcd}, {FSP}
s_add_u32 {sFL}, {sFL}, {WS_FL}
s_and_b32 {stg}, {stg}, {0xfe if T64 else 0xff}
s_lshl_b32 {sST}, {stg}, 8
s_add_u32 {sST}, {sST}, {WS_ST}
s_lshl_b32 s18, {sc1_}, 1
s_add_u32 s18, s18, {"s85" if T64 else 0}
s_lshl_b32 {sCS}, s18, 9
s_add_u32 {sCS}, {sCS}, {WS_CS}
v_lshlrev_b32 v135, 16, v135""")
lp = k_pass(1, 3)
put(weave(kgen_mfma(0), [q2[4], lp[0]] + sc[:7] + [lp[1]] + sc[7:14] + [lp[2]] + sc[14:]
          + ([lp[3], lp[4], ("wv", "x1")] if T64 else [lp[3], ("wv", "u0")] + [x_read(s) for s in range(4)] + [lp[4]])))
stamp("k")
a("s_waitcnt lgkmcnt(0)")
stamp("k")
a("s_barrier")
stamp("ak"[SEL == "k"])

fillg = {s: [] for s in range(28)}
fillg[2] += lines(f"""v_readfirstlane_b32 {sDs}, v135
s_mul_i32 {sH0}, {stg}, {112*1024}
s_lshl_b32 s74, s18, 12
s_add_u32 {sH0}, {sH0}, s74
s_add_u32 {sH1}, {sH0}, {112*1024 if T64 else 4096}
s_mul_i32 s74, {stg}, {FSP}
s_lshl_b32 s75, s18, {2 if T64 else 1}
s_add_u32 s74, s74, s75
s_add_u32 {sFHw}, s74, {WS_FH}""")
fillg[3] += [f"v_accvgpr_read_b32 v{128+r}, a{KA+r}" for r in range(8)]
fillg[6] += [f"v_accvgpr_read_b32 v148, a{KA+13}", f"v_accvgpr_read_b32 v149, a{KA+14}",
             "v_add_f32 v148, v148, v145", "v_add_f32 v149, v149, v146"]
fillg[2] += []
fillg[4] += [f"ds_read_b128 v[136:139], v{vKX+1}", f"ds_read_b128 v[140:143], v{vKX+1} offset:1024",
             f"ds_read_b128 v[144:147], v{vKX+1} offset:2048", ("lt", "kr")]
fillg[5] += lines(f"""s_mul_i32 {sFHr}, {sr2}, {2*FSP}
s_add_u32 {sFHr}, {sFHr}, {WS_FH}
s_mul_i32 {sHoff}, {sr2}, {2*112*1024}
s_mul_i32 s74, {sw}, {28*1024}
s_add_u32 {sHoff}, {sHoff}, s74
s_add_u32 {sHoff}, {sHoff}, {16*1024}""")
fillg[7] += [f"v_add_f32 v{128+r}, v{128+r}, v{136+r}" for r in range(8)]
fillg[9] += lines(f"""v_cmp_eq_u32 vcc, 0, v255
v_mov_b32 v140, {sDs}
v_cndmask_b32 v148, v148, v131, {sOdd}
v_cndmask_b32 v149, v149, v132, {sOdd}
v_cndmask_b32 v140, 0, v140, vcc
v_add_f32 v140, v128, v140""")
fillg[11] += lines(f"""s_mov_b32 s74, 0xaaaaaaaa
s_mov_b32 s75, 0xaaaaaaaa
v_cvt_pk_bf16_f32 v144, v149, v149
v_cndmask_b32 v141, v148, v149, s[74:75]
v_cvt_pk_bf16_f32 v146, v148, v148
v_cvt_pk_bf16_f32 v147, v148, v148
v_cvt_pk_bf16_f32 v145, v149, v141""")
fillg[13] += lines(f"""v_cvt_pk_bf16_f32 v136, v135, v134
v_cvt_pk_bf16_f32 v137, v133, v132
v_cvt_pk_bf16_f32 v138, v131, v130
v_cvt_pk_bf16_f32 v139, v129, v140
v_cvt_pk_bf16_f32 v140, v130, v130
v_cvt_pk_bf16_f32 v141, v129, v129
v_cvt_pk_bf16_f32 v142, v129, v128
v_cvt_pk_bf16_f32 v143, v128, v128""")
fillg[15] += [f"v_cndmask_b32 v{136+r}, v{136+r}, v{140+r}, {sOdd}" for r in range(4)]
fillg[17] += lines(f"""s_mul_i32 {sY}, {sjc}, {YS}
s_lshl_b32 s74, {sw}, 11
s_add_u32 {sY}, {sY}, s74
s_add_u32 {sY}, {sY}, {WS_Y}""")
fillg[19] += [f"v_mov_b32 v{r}, 0" for r in (190, 191, 193, 194)]
fillg[21] += [f"v_mov_b32 v{r}, 0" for r in (195, 196, 198, 199)]


def wd_read(kk, r):
    off = PS[(kk >> 1) % 6] - 65536 + (kk & 1) * 2048
    base = vDF if off < 65536 else vDF + 2
    return [f"ds_read_b64_tr_b16 a[{r+4*da+2*rd}:{r+4*da+2*rd+1}], v{base+da} offset:{off % 65536+rd*1024}"
            for da in range(2) for rd in range(2)]


def wd_move(kk):
    return wd_read(kk, 8 * kk)


def wfrag_read(s, t, r):
    off = SLOT[(s >> 1) % 4] + (s & 1) * 4096 + (t >> 1) * 256
    return [f"ds_read_b64_tr_b16 a[{r+2*rd}:{r+2*rd+1}], v{vWF+(t & 1)} offset:{off+rd*1024}" for rd in range(2)]


WF = (lambda t: 224 + 4 * t) if T64 else (lambda t: 112 + 4 * t)
if T64:
    rd = [x_read(s, ta) for s in range(8) for ta in range(2)] + [("lt", "x1")] + sum((wfrag_read(0, t, WF(t)) for t in range(4)), [])
    put(pack([[m] for m in kgen_mfma(1)], rd + fillg[2], 24))
    put([("wl", "x1"), "s_barrier"] + w_unit(2) + [("vt", "u2")])
else:
    put(pack([[m] + wfrag_read(0, t, WF(t)) for t, m in enumerate(kgen_mfma(1))], w_unit(2) + [("vt", "u2")] + fillg[2], 24))
fillg[2] = []
if XE == 0:
    put(x_block(2) + [("vt", "x2")])
put([f"ds_write_b128 v{vKX}, a[{KA+8}:{KA+11}]", f"ds_write_b128 v{vKX}, a[{KA+12}:{KA+15}] offset:1024",
     f"ds_write_b128 v{vKX}, a[{KA+4}:{KA+7}] offset:2048", ("lt", "kx")])
stamp("k")

FL_LOAD = f"buffer_load_dword v{vF}, v{vN4}, {rWs}, {sFL} offen sc1"
F_CMP = f"v_cmp_ne_u32 vcc, {snonce}, v{vF}"
NC_LOAD = f"global_load_dword v{vNo}, v{vZ}, s[{sDbg}:{sDbg+1}] sc1"
NC_CMP = f"v_cmp_eq_u32 vcc, 0, v{vNo}"
if XE == 5:
    XD = {}
    XRD = {1: 2, 2: 3, 3: 4, 4: 5, 5: 6}
    NP = opt('np', 11)
    WDD = dict(zip([4, 6, 8, 10, 12, 14, 16, 18, 20, 22, 24][:NP], range(NP)))
    PSORD = {0: "x2", 1: "x3", 2: "x4", 3: "x5", 4: "x6", 5: None}
    PS[:] = PS[1:] + PS[:1]
    MV = dict(zip([9, 10, 11, 12, 13, 14, 15, 17, 19, 20, 22, 24][:opt('nmv', 2 * (NP - 5))], range(12)))
else:
    XD = {s: 2 + s // 2 for s in (2, 4, 6, 8)}
    XRD = {s: s // 2 for s in (4, 6, 8, 10, 12)}
    NP = 9
    WDD = dict(zip([10, 12, 14, 16, 18, 20, 22, 23, 24], range(9)))
    PSORD = {0: None, 1: "x2", 2: "x3", 3: "x4", 4: "x5", 5: "x6"}
    MV = {s: s - 14 for s in range(14, 22)}
NMV = len(MV)
carry, pre = [], []
DG = opt('dg', 1)
for s in range(25):
    if s % 2 == 0 and s > 0:
        stamp("g")
    if 1 <= s <= 4:
        stamp("k")
    if s == opt('dat', -1):
        a("s_sleep 16\ns_sleep 16")
    extra, dma = [], None
    if s % 2 == 1:
        u = (s + 1) // 2
        lt = {1: "kx" if T64 else "x1", 5: "kr"}.get(s)
        a.wait_both(tok[f"u{u}"], ltok[lt] if lt else None)
        a("s_barrier")
        if u + 2 < 14:
            dma = ([], w_unit(u + 2), f"u{u+2}")
    if T64 and 5 <= s <= 14:
        extra += [x_read(k, ta) for k in (2 * s - 2, 2 * s - 1) for ta in range(2)]
    if s == 0 and not T64:
        extra += [("wv", "x1")] + [x_read(k) for k in range(4, 8)] + [("lt", "x1")]
    if s in XD:
        dma = ([], x_block(XD[s]), f"x{XD[s]}")
    if s in XRD and not T64:
        cb = XRD[s]
        extra += [("wv", f"x{cb}")] + [x_read(k) for k in range(4 * cb, 4 * cb + 4)] + [("lt", f"x{cb}")]
    if s in WDD:
        p = WDD[s]
        need = (None if T64 else PSORD[p]) if p < 6 else f"mv{2*(p-6)+1}"
        dma = ([("wl", need)] if need else [], wd_pair(2 * p), f"wd{2*p}")
    if s in MV:
        kk = MV[s]
        assert s >= (kk + 1 if T64 else 2 * kk + 2)
        if kk % 2 == 0:
            extra += [("wv", f"wd{kk}")]
        extra += wd_move(kk) + [("lt", f"mv{kk}")]
    if s == 12:
        extra += [NC_LOAD]
    if s == 16:
        poll("nc", NC_LOAD, NC_CMP)
        a(f"v_readfirstlane_b32 {snonce}, v{vNo}")
    if s == FL_AT:
        extra += [FL_LOAD]
    if s == FL_POLL:
        poll("fl", FL_LOAD, F_CMP)
        extra += [f"buffer_load_dword v{vF}, v{vN8}, {rWs}, {sST} offen sc1",
                  f"s_lshl_b32 s74, s97, 3\ns_add_u32 s74, s74, {WS_ST+4}\nbuffer_load_dword v228, v{vN8}, {rWs}, s74 offen sc1"]
        if T64:
            extra += [f"buffer_load_dwordx4 v[156:159], v{vCS}, {rWs}, {sCS} offen sc1",
                      f"buffer_load_dword v154, v{vN8}, {rWs}, {sST} offen offset:256 sc1"]
        else:
            extra += [f"buffer_load_dwordx4 a[{160+4*t}:{163+4*t}], v{vCS}, {rWs}, {sCS} offen offset:{512*t} sc1" for t in range(2)]
    extra += fillg[s]
    AB = opt('ab', '')
    if dma and (('x' in AB and dma[2][0] == 'x') or ('w' in AB and dma[2][0] == 'w') or ('u' in AB and dma[2][0] == 'u')):
        dma = (dma[0], ["s_nop 0"] * 6, dma[2])
    main = []
    for t in range(8):
        tl, ta = (t >> 1, t & 1) if T64 else (t, 0)
        j = 4 * ta + tl if T64 else t
        if t % WG == 0 and s > 0:
            (main[-1] if main else pre).append(("wl", f"f{(t+WG-1) >> T64}"))
        c = "0" if s == 0 else f"v[{16*j}:{16*j+15}]"
        m = [f"v_mfma_f32_32x32x16_bf16 v[{16*j}:{16*j+15}], a[{WF(tl)}:{WF(tl)+3}], a[{XF(s, ta)}:{XF(s, ta)+3}], {c}"]
        if dma and t == 0:
            m += dma[0] + [dma[1][0]]
        if not T64 or ta == 1:
            m += wfrag_read(s + 1, tl, WF(tl)) + [("lt", f"f{tl}")]
        if dma and (t % 2 == 0 and t > 0 or t == 1 if T64 and DG else t % 2 == 1):
            k = (t // 2 if t > 1 else 0) if T64 and DG else t // 2
            m.append(dma[1][1 + k])
            if k == 3:
                m += [("vt", dma[2]), dma[1][5]]
        main.append(m)
    if s == 24 and opt('b13', 1):
        main[4] += [("wv", "u13"), "s_barrier"]
        main[6] += wfrag_read(26, 0, 144 if T64 else 168)
        main[7] += wfrag_read(27, 0, 148 if T64 else 172)
    put(pre + pack(main, extra, 24))
    pre = []
stamp("g")
TF = 144 if T64 else 168
if not opt('b13', 1):
    a.wait_vm(tok["u13"])
    a("s_barrier")
    put(wfrag_read(26, 0, TF) + wfrag_read(27, 0, TF + 4))
first = [f"v_cmp_gt_u32 vcc, 32, v255", "v_mov_b32 v152, 0", "v_mov_b32 v153, 0",
         f"s_add_u32 m0, {sUl}, {U1_OFF+448}", f"buffer_load_dwordx4 v{vL16}, {rWs}, {sUg} offen sc1 lds",
         f"buffer_load_dwordx4 v{vL16}, {rWs}, {sUg} offen offset:1024 sc1 lds",
         f"v_cndmask_b32 v192, 0, v{vF}, vcc\nv_cndmask_b32 v197, 0, v{vF}, vcc"]
second = [f"s_sub_u32 {sUg}, {sUg}, 2\ns_add_u32 m0, {sUl}, 448", f"buffer_load_dwordx4 v{vL16}, {rWs}, {sUg} offen sc1 lds",
          f"buffer_load_dwordx4 v{vL16}, {rWs}, {sUg} offen offset:1024 sc1 lds", ("vt", "u")]
main, epi = [], []
for t in range(8):
    r = TF + 8 * (t % 2)
    cb = (192, 196, 190, 194)[t & 3]
    tl, ta = (t & 3, t >> 2) if T64 else (t, 0)
    xf = lambda s: f"a[{XF(s, ta)}:{XF(s, ta)+3}]"
    ops = [(f"a[{WF(tl)}:{WF(tl)+3}]", xf(25)), (f"a[{r}:{r+3}]", xf(26)), (f"a[{r+4}:{r+7}]", xf(27)),
           ("v[156:159]" if T64 else f"a[{160+(t & 4)}:{163+(t & 4)}]", f"v[{cb}:{cb+3}]")]
    for k, (A, B) in enumerate(ops):
        m = [f"v_mfma_f32_32x32x16_bf16 v[{16*t}:{16*t+15}], {A}, {B}, v[{16*t}:{16*t+15}]"]
        if t < 7 and k in (0, 1):
            m += wfrag_read(26 + k, (t + 1) & (3 if T64 else 7), TF + 8 * ((t + 1) % 2) + 4 * k)
        if T64 and t == 4 and k == 0:
            m += ["v_cndmask_b32 v192, 0, v154, vcc", "v_cndmask_b32 v197, 0, v154, vcc"]
        main.append(m)
    b = 16 * t
    L = [f"v_max_f32 v{b+r}, 0, v{b+r}" for r in range(8)]
    if t < 6:
        L += [f"v_mul_f32 v{b+r}, v{b+r}, v{b+8+r}" for r in range(8)]
    else:
        L += [f"v_pk_mul_f32 v[{b+r}:{b+r+1}], v[{b+r}:{b+r+1}], v[{b+8+r}:{b+9+r}]" for r in range(0, 8, 2)]
    L += [f"v_cvt_pk_bf16_f32 v{b+8+r}, v{b+2*r}, v{b+2*r+1}" for r in range(4)]
    L += [f"buffer_store_dwordx4 v[{b+8}:{b+11}], v{vL16}, {rWs}, {(sH0, sH1)[t >> 2]} offen offset:{1024*(t & 3)} sc1"]
    epi.append(L)
stamp("t")
put(pack(main[:3], first, 24) + pack(main[3:6], second, 24))
for t in range(6):
    stamp("t")
    put(pack(main[4 * t + 6:4 * t + 10], epi[t], 24))
stamp("t")
put(pack(main[30:], epi[6][:8], 24))
rest = epi[6][8:] + epi[7]
stamp()
stamp("t")
a("s_barrier")
stamp("t")


def octet_writes(d, ar, off):
    return [f"ds_write_b128 v{ar+3}, v[{d}:{d+3}] offset:{off}",
            f"ds_write2_b64 v{ar+1}, v[{d}:{d+1}], v[{d+2}:{d+3}] offset0:{off//8} offset1:{off//8+1}"] + \
           [f"ds_write2_b32 v{ar+c}, v{d+k}, v{d+k+1} offset0:{off//4+k} offset1:{off//4+k+1}" for c in (0, 2) for k in (0, 2)]


put(weave(rest, octet_writes(136, vKC, 0) + octet_writes(144, vKC + 4, 0)
          + [f"ds_write_b32 v{vKZ}, v152 offset:{4096-12}", f"ds_write_b64 v{vUZ}, v[152:153]"]))
tok["h"] = a.vm_tok()
stamp("t")
stamp("t")
a(f"s_andn2_b64 exec, 1, {sOdd}")
a.wait_vm(tok["u"])
a(f"""ds_write_b16 v{vUZ}, v152 offset:448
s_mov_b64 exec, -1
s_waitcnt lgkmcnt(0)""")
stamp("t")
a("s_barrier")
stamp()
stamp("t")


def a_read(n):
    return f"ds_read_b128 a[{128+4*(n % 4)}:{131+4*(n % 4)}], v{vCK} offset:{64*(62-2*n)}"


def u_read(be, i):
    return f"ds_read_b128 v[{16*be+4*i}:{16*be+4*i+3}], v{vCU} offset:{512*be-128*i+384}"


NH = opt('nh', 8)
ORD = list(range(16, 28)) + list(range(16))


def h_load(i):
    g = []
    for ta in range(2):
        r = 96 + 8 * (i % NH) + 4 * ta
        g.append(f"buffer_load_dwordx4 v[{r}:{r+3}], v{vH+ta}, {rWs}, {sHoff} offen offset:{1024*(i % 4)} {HFL}")
    if i % 4 == 3:
        if ROT:
            g[-1] += "\n" + wrap(sHoff, 4096, "s11", "s10")
        else:
            g[-1] += f"\ns_add_u32 {sHoff}, {sHoff}, 4096" if i != 11 else f"\ns_sub_u32 {sHoff}, {sHoff}, {24*1024}"
    return g


put([a_read(0)] + [u_read(be, 0) for be in range(8)] + [a_read(1), a_read(2)])
FH_LOAD = f"buffer_load_dword v{vF}, v{vFH}, {rWs}, {sFHr} offen sc1"
fill = {n: [] for n in range(32)}
for i in range(1, 4):
    fill[i - 1] += [u_read(be, i) for be in range(8)]
fill[2] += [("lt", "ub")]
if XRAT:
    fill[3] += XRES
if T64:
    fill[FHW_AT] += [f"v_mul_u32_u24 v155, {FSP}, v255", ("wv", "h"),
                     f"s_mov_b64 exec, 3\nbuffer_store_dword v{vNo}, v155, {rWs}, {sFHw} offen sc1\ns_mov_b64 exec, -1"]
else:
    fill[FHW_AT] += [("wv", "h"), f"s_mov_b64 exec, 1\nbuffer_store_dword v{vNo}, v{vZ}, {rWs}, {sFHw} offen sc1\ns_mov_b64 exec, -1"]
n = opt('mv0', 3)
pend = [p for p in range(NP, 14) if 2 * (p - 6) + 1 < NMV]
for k, p in enumerate(pend):
    fill[1 + k] = wd_pair(2 * p) + [("vt", f"wd{2*p}")] + fill[1 + k]
for kk in range(NMV, 16):
    if kk % 2 == 0:
        fill[n] += [("wv", f"wd{kk}")]
    fill[n] += wd_move(kk) + [("lt", f"mv{kk}")]
    if kk % 2 == 1:
        fill[n + 2] += [("wl", f"mv{kk}")] + wd_pair(kk + 11) + [("vt", f"wd{kk+11}")]
    n += 1
YB, YW = opt('yb', 5), opt('yw', 16)
fill[FH_AT] += [FH_LOAD]
for j in range(7):
    fill[(YW, YW + 1, YW + 2, max(17, YW + 3), 21, 25, 29)[j]] += [f"ds_write_b128 v{vYW}, a[{224+4*j}:{227+4*j}] offset:{4096*((j+1) % 8)}"]
hl = [(i, g) for i in range(28) for g in h_load(i)]
for n in range(FH_POLL, 32):
    if hl[0][0] < NH:
        fill[n] += [hl.pop(0)[1]]
for P in range(8):
    for i in range(4):
        n = 4 * P + i
        if n % 4 == 0 or n in (2, 6, 10):
            stamp("c")
        if n == YB:
            a.wait_lg(ltok["ub"])
            a("s_barrier")
        if n == FH_POLL:
            poll("fh", FH_LOAD, F_CMP)
        main = []
        for be in range(8 - P):
            j = P + be
            c = "0" if n == 0 else f"a[{224+4*j}:{227+4*j}]"
            main.append(f"v_mfma_f32_16x16x32_bf16 a[{224+4*j}:{227+4*j}], a[{128+4*(n % 4)}:{131+4*(n % 4)}], v[{16*be+4*i}:{16*be+4*i+3}], {c}")
        put(pack([[m] for m in main], ([a_read(n + 3)] if n + 3 < 32 else []) + fill[n], 8))
stamp()
stamp("f")
put([("wv", "wd16")] + wd_read(16, 128))
a(f"ds_write_b128 v{vYW}, a[252:255]")
ltok["y7"] = a.lg_tok()
stamp()
stamp("f")

XS = lambda g, e: (80 if g < 4 else 0) + 4 * g + 2 * e
FY_LOAD = f"buffer_load_dword v{vF}, v{vN4}, {rWs}, s80 offen sc1"
fill = {k: [] for k in range(28)}
fill[0] += [("wl", "y7"), "s_barrier"]
for jj in range(2):
    r = 64 + 16 * jj
    fill[0] += [f"ds_read_b64 v[{r+4*src+2*ph}:{r+4*src+2*ph+1}], v{vYR+jj} offset:{1024*src+16*ph}"
                for src in range(4) for ph in range(2)]
    fill[1 + jj] += [f"v_add_f32 v{r+k}, v{r+k}, v{r+k+4}" for k in (0, 1, 2, 3, 8, 9, 10, 11)]
    fill[1 + jj] += [f"v_cvt_pk_bf16_f32 v{r+4+k}, v{r+o}, v{r+8+o}" for k, o in enumerate((0, 2, 1, 3))] + \
        [f"buffer_store_dwordx4 v[{r+4}:{r+7}], v{vL16}, {rWs}, {sY} offen offset:{1024*jj} sc1", ("vt", "y")]
fill[4] += lines(f"""s_lshr_b32 s74, {sjc}, 5
s_lshl_b32 s74, s74, 2
s_add_u32 s74, s74, {sw}
s_mul_i32 s74, s74, {FSP}
s_and_b32 s75, {sjc}, 31
s_lshl_b32 s75, s75, 2
s_add_u32 s74, s74, s75
s_add_u32 s95, s74, {WS_FY}""", 2)
fill[FYW_AT] += [("wv", "y"), f"s_mov_b64 exec, 1\nbuffer_store_dword v{vNo}, v{vZ}, {rWs}, s95 offen sc1\ns_mov_b64 exec, -1"]
fill[5] += lines(f"""s_lshl_b32 s80, {sc2}, 2
s_lshr_b32 s74, {sr2}, 3
s_add_u32 s80, s80, s74
s_mul_i32 s80, s80, {FSP}
s_add_u32 s80, s80, {WS_FY}
s_add_u32 s13, {sw4k}, {RX}
v_add_u32 v230, s13, v{vL16}""", 2)
fill[9] += [f"ds_write_b128 v230, v[242:245] offset:{XR}"] + lines(f"""v_mul_u32_u24 v234, 224, v{vN4}
v_lshl_add_u32 v234, v{fKG}, 4, v234""")
fill[10] += [f"ds_write_b128 v230, v[246:249] offset:{XR+1024}"] + lines(f"""v_lshlrev_b32 v231, 4, v{fR}
v_lshl_add_u32 v231, v{vN4}, 4, v231
v_lshl_add_u32 v231, v{fKG}, 3, v231""")
fill[12] += lines(f"""v_add_u32 v236, s13, v231
v_xor_b32 v237, 16, v236
v_xor_b32 v238, 32, v236
v_xor_b32 v239, 48, v236
v_mul_u32_u24 v235, {2*YS}, v{fKG}
v_add_u32 v235, v235, v{vN4}""") + [f"ds_read_b64 v[{64+2*g}:{65+2*g}], v{236+g} offset:{XR}" for g in range(4)] + [("lt", "xr")]
fill[13] += lines(f"""s_mul_i32 s74, s17, {YS//4}
s_lshl_b32 s75, s97, 2
s_add_u32 s74, s74, s75
s_add_u32 s96, s74, {WS_Y}""", 2)
fill[14] += [f"v_xor_b32 v{240+k}, {4096*k}, v230" for k in range(1, 4)]
fill[FY_AT] += [FY_LOAD]
for g in range(4):
    for e in range(2):
        fill[17 + g] += [f"v_lshlrev_b32 v{XS(g, e)}, 16, v{64+2*g+e}", f"v_and_b32 v{XS(g, e)+1}, {sMask}, v{64+2*g+e}"]
for g in range(4):
    for e in range(2):
        fill[min(27, FY_POLL + g // 2)] += [f"buffer_load_dword v{72+2*g+e}, v235, {rWs}, s96 offen sc1\ns_add_u32 s96, s96, {YS if e == 0 else 3*YS}"]
DEF = opt('def', NH)
late = []
HL0 = opt('hl0', 1)
for i in range(28):
    kk = ORD[i]
    if i % 2 == 0 and i > 0:
        stamp("h")
    if i < 14:
        stamp("j")
    extra = []
    if i + 1 < 12:
        if (kk + 1) % 2 == 0:
            extra += [("wv", f"wd{kk+1}")]
        extra += wd_read(kk + 1, 128 + 8 * ((kk + 1) % 2))
    if i == FY_POLL:
        poll("fy", FY_LOAD, F_CMP)
    main = []
    for ta in range(2):
        for da in range(2):
            acc = 16 * (da + 2 * ta)
            c = "0" if i == 0 else f"v[{acc}:{acc+15}]"
            fa = (8 * kk if kk < 16 else 128 + 8 * (kk % 2)) + 4 * da
            fb = 96 + 8 * (i % NH) + 4 * ta
            m = [f"v_mfma_f32_32x32x16_bf16 v[{acc}:{acc+15}], a[{fa}:{fa+3}], v[{fb}:{fb+3}], {c}"]
            if acc == 0 and i >= 28 - DEF:
                late.append(m)
                continue
            if hl and i >= HL0 and (da, ta) != (0, 0) and (hl[0][0] < i + NH or (hl[0][0] == i + NH and da == 1 and len(hl) % 2 == ta % 2)):
                m.append(hl.pop(0)[1])
            main.append(m)
    AB = opt('ab', '')
    fl_ = fill[i]
    if 'X' in AB:
        fl_ = [e for e in fl_ if isinstance(e, tuple) or not (" lds" in e or "v80," in e)]
    if 'Y' in AB and i == FYW_AT:
        fl_ = [e for e in fl_ if e != ("wv", "y")]
    if 'D' in AB:
        extra = [e for e in extra if not isinstance(e, tuple)]
    put(pack(main, extra + fl_, 24))
assert not hl
stamp()
stamp("f")
wr = [f"ds_write_b128 v230, v[{16*k+4*g}:{16*k+4*g+3}] offset:{(k-1)*16384+1024*g}" for k in range(1, 4) for g in range(4)]
yadd = []
for g in range(4):
    for e in range(2):
        yr, d = 72 + 2 * g + e, XS(g, e)
        yadd += [f"v_lshlrev_b32 v64, 16, v{yr}", f"v_and_b32 v65, {sMask}, v{yr}",
                 f"v_add_f32 v{d}, v{d}, v64", f"v_add_f32 v{d+1}, v{d+1}, v65"]
YIN = opt('yin', 1)
w1 = weave(late, wr[:8]) if late else wr[:8]
put(w1 + (weave(wr[8:], yadd) if YIN else wr[8:]))
stamp("f")
a("s_waitcnt lgkmcnt(0)")
stamp("f")
a("s_barrier")
stamp("f")
for g in range(4):
    for k in range(1, 4):
        a(f"ds_read_b128 v[{16*k+4*g}:{16*k+4*g+3}], v{240+k} offset:{(k-1)*16384+1024*g}")
stamp("f")
if not YIN:
    put(yadd)
stamp("f")
for g in range(4):
    for e in range(2):
        r = 4 * g + 2 * e
        for k in range(1, 4):
            a(f"v_pk_add_f32 v[{r}:{r+1}], v[{r}:{r+1}], v[{16*k+r}:{16*k+r+1}]")
        a(f"v_pk_fma_f32 v[{r}:{r+1}], v[{r}:{r+1}], v[228:229], v[{XS(g, e)}:{XS(g, e)+1}] op_sel_hi:[1,0,1]")
    a(f"v_cvt_pk_bf16_f32 v{116+2*g}, v{4*g}, v{4*g+1}\nv_cvt_pk_bf16_f32 v{117+2*g}, v{4*g+2}, v{4*g+3}")
    if g % 2 == 1:
        b = 116 + 2 * (g - 1)
        a(f"v_permlane32_swap_b32 v{b}, v{b+2}\nv_permlane32_swap_b32 v{b+1}, v{b+3}")
        a(f"buffer_store_dwordx4 v[{b}:{b+3}], v234, {rOut}, s16 offen offset:{16*(g-1)} {OUTFL}")
        stamp("f")
stamp()


def stamp_out():
    if not STAMP:
        return
    a(f"""
s_waitcnt vmcnt(0) lgkmcnt(0)
v_writelane_b32 v254, s98, {nstamp[0]-1}
{CLK} s[98:99]
s_waitcnt lgkmcnt(0)
v_writelane_b32 v254, s98, 15
s_lshl_b32 s84, s2, 2
s_add_u32 s84, s84, {sw}
s_lshl_b32 s84, s84, 6
s_add_u32 s84, s84, {WS_TS}
v_lshlrev_b32 v1, 2, v255
s_mov_b64 exec, 0xffff
buffer_store_dword v254, v1, {rWs}, s84 offen
""")


stamp_out()
a("s_endpgm")

a.reset()
NC_LOAD = f"global_load_dword v202, v203, s[{sDbg}:{sDbg+1}] sc1"
NC_CMP = "v_cmp_eq_u32 vcc, 0, v202"
shq = "s59"
a(f"""
L_helper:
s_lshl_b32 {shq}, {sxcd}, 2
s_add_u32 {shq}, {shq}, {sj}
v_mov_b32 v203, 0
v_lshrrev_b32 v1, 2, v255
s_lshl_b32 s83, {shq}, 2
s_add_u32 s83, s83, {sw}
s_lshl_b32 s72, s83, 4
v_add_u32 v4, s72, v1
v_mul_u32_u24 v5, 896, v4
v_and_b32 v2, 3, v255
v_lshl_add_u32 v5, v2, 4, v5
s_lshr_b32 s73, {sxcd}, 1
s_lshl_b32 s73, s73, 2
s_add_u32 s60, s73, {sj}
s_min_u32 s73, s60, 13
s_and_b32 s74, {sxcd}, 1
s_mul_i32 s74, s74, 14
s_add_u32 s61, s73, s74
s_lshr_b32 s73, s61, 1
s_lshl_b32 s82, s73, 8
v_lshrrev_b32 v6, 4, v255
s_lshl_b32 s75, {sw}, 2
v_add_u32 v6, s75, v6
v_mul_u32_u24 v7, 3584, v6
v_and_b32 v3, 15, v255
v_lshl_add_u32 v7, v3, 4, v7
s_mov_b32 s72, {WS_EP}
s_waitcnt lgkmcnt(0)
""")
if STAMP:
    a("v_mov_b32 v254, 0\nv_writelane_b32 v254, s100, 0")
    nstamp[0] = 1
stamp(SEL[0])
a(f"""
s_mov_b32 s36, s{sX}
s_mov_b32 s37, s{sX+1}
s_add_u32 s48, s{sWs}, {WSOFF}
s_addc_u32 s49, s{sWs+1}, 0
buffer_load_dword v202, v203, {rWs}, s72 offen sc1
""")
for i in range(14):
    a(f"buffer_load_dwordx4 v[{8+4*i}:{11+4*i}], v5, {rX}, 0 offen offset:{64*i}")
a(f"""
s_mov_b32 s73, 1664525
v_mul_lo_u32 v202, v202, s73
s_cmp_eq_u32 s83, 127
v_add_u32 v202, 1013904225, v202
v_or_b32 v202, 1, v202
s_cbranch_scc0 L_hnoep
s_mov_b64 exec, 1
""")
a.items.append(("raw", f"    global_store_dword v203, v202, s[{sDbg}:{sDbg+1}] sc1"))
a.items.append(("raw", f"    buffer_store_dword v202, v203, {rWs}, s72 offen sc1"))
a(f"""
s_mov_b64 exec, -1
L_hnoep:
s_bitcmp1_b32 s61, 0
s_cselect_b32 s40, s{sWu}, s{sWg}
s_cselect_b32 s41, s{sWu+1}, s{sWg+1}
""")
wl = [f"buffer_load_dwordx4 v[{72+4*i}:{75+4*i}], v7, {rW}, s82 offen\ns_add_u32 s82, s82, {16*3584}" for i in range(28)]
HW0 = opt('hw0', 0)
put(wl[:HW0])
wl = wl[HW0:]
a(f"""
s_mov_b32 s76, 0x3f803f80
s_mov_b32 s77, 0x00003f80
s_mov_b32 s79, 0x3f800000
""")
for _ in range(opt('dhelp', 0)):
    a("s_sleep 16")
EXACT = "--noexact" not in sys.argv
L = []
for i in range(56):
    c0, c1 = ("0", "0") if i == 0 else ("v64", "v68")
    L.append([f"v_dot2_f32_bf16 v64, v{8+i}, s76, {c0}", f"v_dot2_f32_bf16 v68, v{8+i}, v{8+i}, {c1}"])
HW1 = opt('hw1', 0)
put(L[0] + weave(L[1:], wl[:HW1]))
wl = wl[HW1:]
stamp()
a(f"""
v_add_f32_dpp v64, v64, v64 quad_perm:[1,0,3,2] row_mask:0xf bank_mask:0xf
v_add_f32_dpp v68, v68, v68 quad_perm:[1,0,3,2] row_mask:0xf bank_mask:0xf
v_lshlrev_b32 v4, 3, v4
v_add_f32_dpp v64, v64, v64 quad_perm:[2,3,0,1] row_mask:0xf bank_mask:0xf
v_add_f32_dpp v68, v68, v68 quad_perm:[2,3,0,1] row_mask:0xf bank_mask:0xf
v_mul_f32 v64, {hex(0x3b124925)}, v64
v_mul_f32 v68, {hex(0x3b124925)}, v68
v_fma_f32 v68, -v64, v64, v68
v_cvt_pk_bf16_f32 v64, -v64, -v64
v_max_f32 v68, 0, v68
v_cvt_pk_bf16_f32 v68, v68, v68
v_and_b32 v68, {sMask}, v68
v_add_f32 v68, 0x3727c5ac, v68
v_cvt_pk_bf16_f32 v68, v68, v68
v_and_b32 v68, {sMask}, v68
v_sqrt_f32 v68, v68
v_and_b32 v66, {sMask}, v64
v_cvt_pk_bf16_f32 v68, v68, v68
v_and_b32 v68, {sMask}, v68
v_rcp_f32 v70, v68
s_mov_b32 s74, {WS_ST}
v_fma_f32 v71, -v68, v70, 1.0
v_fma_f32 v70, v70, v71, v70
v_mul_f32 v65, v70, v70
v_mul_f32 v71, v66, v70
s_mov_b32 s80, 0x11111111
s_mov_b32 s81, 0x11111111
s_mov_b64 exec, s[80:81]
buffer_store_dwordx2 v[64:65], v4, {rWs}, s74 offen sc1
s_mov_b64 exec, -1
v_mul_u32_u24 v5, 960, v1
s_mul_i32 s75, {sw}, {16*960}
v_lshl_add_u32 v5, v2, 4, v5
v_add_u32 v5, s75, v5
""")
L2B = 64 * 960
L3B = L2B + 448 * 144
a(f"""
v_lshrrev_b32 v1, 5, v255
v_bfe_u32 v2, v255, 2, 2
v_lshl_add_u32 v2, v1, 3, v2
v_mul_u32_u24 v2, 960, v2
v_bfe_u32 v4, v255, 4, 1
v_lshl_add_u32 v2, v4, 5, v2
v_and_b32 v4, 3, v255
v_lshl_add_u32 v2, v4, 3, v2
v_add_u32 v194, s75, v2
v_and_b32 v4, 31, v255
v_mul_u32_u24 v4, 144, v4
s_lshl_b32 s74, {sw}, 5
s_add_u32 s74, s74, {L2B}
v_lshl_add_u32 v4, v1, 4, v4
v_add_u32 v195, s74, v4
v_lshlrev_b32 v6, 9, v6
v_lshl_add_u32 v6, v3, 5, v6
v_add_u32 v6, {L3B}, v6
v_lshrrev_b32 v1, 3, v255
v_and_b32 v2, 7, v255
v_lshlrev_b32 v2, 4, v2
v_mul_u32_u24 v197, {XTS}, v1
v_add_u32 v197, v197, v2
v_mul_u32_u24 v1, 144, v1
v_add_u32 v1, v1, v2
s_mul_i32 s74, {sw}, {112*144}
s_add_u32 s74, s74, {L2B}
v_add_u32 v196, s74, v1
s_lshl_b32 s74, {shq}, 7
s_mul_i32 s75, {sw}, {112*XTS}
s_add_u32 s74, s74, s75
s_add_u32 s62, s74, {WS_XT}
s_and_b32 s75, {sw}, 1
s_lshl_b32 s75, s75, 8
v_lshl_add_u32 v2, v255, 2, s75
v_add_u32 v198, {L3B}, v2
""")


L = []
for i in range(56):
    t = 186 + 2 * (i % 4)
    if EXACT:
        g = [f"v_dot2_f32_bf16 v{t}, v{8+i}, s77, v66", f"v_dot2_f32_bf16 v{t+1}, v{8+i}, s79, v66"]
        if i > 0:
            p = 186 + 2 * ((i - 1) % 4)
            g += [f"v_cvt_pk_bf16_f32 v{7+i}, v{p}, v{p+1}", f"v_lshlrev_b32 v{p}, 16, v{7+i}", f"v_and_b32 v{p+1}, {sMask}, v{7+i}",
                  f"v_pk_mul_f32 v[{p}:{p+1}], v[{p}:{p+1}], v[70:71] op_sel_hi:[1,0]", f"v_cvt_pk_bf16_f32 v{7+i}, v{p}, v{p+1}"]
            if i % 4 == 0:
                g.append(f"ds_write_b128 v5, v[{4+i}:{7+i}] offset:{64*(i//4-1)}")
        if i == 55:
            g += ["s_nop 0", f"v_cvt_pk_bf16_f32 v63, v{t}, v{t+1}", f"v_lshlrev_b32 v{t}, 16, v63", f"v_and_b32 v{t+1}, {sMask}, v63",
                  f"v_pk_mul_f32 v[{t}:{t+1}], v[{t}:{t+1}], v[70:71] op_sel_hi:[1,0]", f"v_cvt_pk_bf16_f32 v63, v{t}, v{t+1}",
                  f"ds_write_b128 v5, v[60:63] offset:{64*13}"]
    else:
        g = [f"v_lshlrev_b32 v{t}, 16, v{8+i}", f"v_and_b32 v{t+1}, {sMask}, v{8+i}",
             f"v_pk_fma_f32 v[{t}:{t+1}], v[{t}:{t+1}], v[70:71], v[70:71] op_sel:[0,0,1] op_sel_hi:[1,0,1]",
             f"v_cvt_pk_bf16_f32 v{8+i}, v{t}, v{t+1}"]
        if i % 4 == 3:
            g.append(f"ds_write_b128 v5, v[{8+i-3}:{8+i}] offset:{64*(i//4)}")
    L.append(g)
HW2 = opt('hw2', 10)
put(weave(L, wl[:HW2]))
wl = wl[HW2:]
stamp()
if WM == 1:
    a(f"""
s_mul_i32 s74, s83, {98*128}
v_min_u32 v199, 48, v255
v_lshlrev_b32 v199, 7, v199
v_add_u32 v199, s74, v199
global_load_dword v200, v199, s[{sWd}:{sWd+1}]
global_load_dword v201, v199, s[{sWd}:{sWd+1}] offset:{0}
""".replace("global_load_dword v201, v199, s[28:29] offset:0", f"v_add_u32 v199, {49*128}, v199\nglobal_load_dword v201, v199, s[28:29]"))
HW3 = opt('hw3', 99)
put(wl[:min(HW3, 12)])
wl2 = wl[min(HW3, 12):HW3]
wl = wl[HW3:]
for b in range(14):
    a(f"ds_read_b64_tr_b16 v[{8+4*b}:{9+4*b}], v194 offset:{64*b}\nds_read_b64_tr_b16 v[{10+4*b}:{11+4*b}], v194 offset:{64*b+4*960}")
cs = []
for i in range(28):
    for d in range(4):
        c0, c1 = ("0", "0") if i == 0 else (f"v{64+2*d}", f"v{65+2*d}")
        cs += [f"v_dot2_f32_bf16 v{64+2*d}, v{72+4*i+d}, s77, {c0}", f"v_dot2_f32_bf16 v{65+2*d}, v{72+4*i+d}, s79, {c1}"]
NC0 = opt('nc0', 0)
put(weave([f"ds_write_b128 v195, v[{8+4*b}:{11+4*b}] offset:{32*144*b}" for b in range(14)], wl2 + cs[:NC0]))
a(f"{NC_LOAD}\ns_waitcnt lgkmcnt(0)\ns_barrier")
stamp()
for b in range(14):
    a(f"ds_read_b128 v[{8+4*b}:{11+4*b}], v196 offset:{8*144*b}")
put(weave([f"buffer_store_dwordx4 v[{8+4*b}:{11+4*b}], v197, {rWs}, s62 offen sc1\ns_add_u32 s62, s62, {8*XTS}" for b in range(14)], [] if wl else cs[NC0:]))
if wl:
    put(wl + cs[NC0:])
a("""
ds_write_b128 v6, v[64:67]
ds_write_b128 v6, v[68:71] offset:16
s_waitcnt lgkmcnt(0)
s_barrier
""")
stamp()
for r in range(16):
    a(f"ds_read_b32 v{72+r}, v198 offset:{512*r}")
for st_ in (8, 4, 2, 1):
    for r in range(st_):
        a(f"v_add_f32 v{72+r}, v{72+r}, v{72+r+st_}")
a(f"""
v_cvt_pk_bf16_f32 v73, v72, v72
v_and_b32 v73, {sMask}, v73
v_sub_f32 v74, v72, v73
v_cvt_pk_bf16_f32 v73, v73, v74
v_lshlrev_b32 v2, 4, v3
v_lshrrev_b32 v1, 4, v255
v_lshl_add_u32 v2, v1, 2, v2
s_lshr_b32 s74, s61, 1
s_lshl_b32 s74, s74, 1
s_add_u32 s74, s74, {sw}
s_lshl_b32 s74, s74, 1
s_and_b32 s75, s61, 1
s_add_u32 s74, s74, s75
s_lshl_b32 s74, s74, 8
s_add_u32 s74, s74, {WS_CS}
s_cmp_lt_u32 s60, 14
s_cselect_b32 s74, s74, {WS_SIZE}
s_cmp_lt_u32 {sw}, 2
s_cselect_b32 s74, s74, {WS_SIZE}
buffer_store_dword v73, v2, {rWs}, s74 offen sc1
""")
stamp()
poll("hnc", NC_LOAD, NC_CMP)
a(f"""
v_mul_u32_u24 v1, {FSP}, v255
s_lshl_b32 s74, {shq}, 2
s_add_u32 s74, s74, {WS_FL}
s_waitcnt vmcnt(0)
s_barrier
s_cmp_eq_u32 {sw}, 0
s_cbranch_scc0 L_hdone
s_mov_b64 exec, 0xff
buffer_store_dword v202, v1, {rWs}, s74 offen sc1
s_mov_b64 exec, -1
L_hdone:
""")
stamp()
stamp_out()
a("L_end:\ns_endpgm")
for sp in slow:
    a.reset()
    a(sp)
a("L_codeend:\ns_endpgm")

body = a.render()
here = os.path.dirname(os.path.abspath(__file__))
ref = open(os.path.join(here, "..", "cdna_kernels", NAME + ".s.ref")).read()
head = [l for l in ref.split("\n") if l.startswith(";") and "@launch" not in l and "Override" not in l and "grid=ceil" not in l]
txt = "\n".join(head) + f"""
; Generated by tools/gen.py (hand-written generator).  WSOFF={WSOFF} XTS={XTS} YS={YS} CSL=1
; @launch grid=(256,1,1) block=(256,1,1) lds=163840
.amdgcn_target "amdgcn-amd-amdhsa--gfx950"
.text
.globl {NAME}_kernel
.p2align 8
.type {NAME}_kernel,@function
{NAME}_kernel:
{body}
.section .rodata,"a"
.p2align 6
.amdhsa_kernel {NAME}_kernel
  .amdhsa_next_free_vgpr 512
  .amdhsa_next_free_sgpr 102
  .amdhsa_accum_offset 256
  .amdhsa_group_segment_fixed_size 0
  .amdhsa_kernarg_size 128
  .amdhsa_user_sgpr_count 2
  .amdhsa_user_sgpr_kernarg_segment_ptr 1
  .amdhsa_system_sgpr_workgroup_id_x 1
.end_amdhsa_kernel
"""
out = [x for x in sys.argv[1:] if not x.startswith("--")]
path = out[0] if out else os.path.join(here, "..", "cdna_kernels", NAME + ".s")
open(path, "w").write(txt)
print(path, a.stats, file=sys.stderr)
```

```python
import sys, os
sys.path.insert(0, os.path.dirname(os.path.abspath(__file__)))
from asmdsl import Asm

NAME = "parallel_sum__ssm_conv_s4__glu_gated_reglu__prompt"
STAMP = "--stamp" in sys.argv


def opt(name, dflt):
    v = [x.split('=')[1] for x in sys.argv if x.startswith('--' + name + '=')]
    return type(dflt)(v[0]) if v else dflt


WS_H, WS_XT, WS_Y = 0x0, 0x700000, 0x900000
XTS, YS = 4096 + opt('xtp', 128), 8192 + opt('yp', 128)
WS_ST, WS_CS = 0xB00000, 0xB04000
WS_FH, WS_FY, WS_FL, WS_EP = 0xB10000, 0xB20000, 0xB28000, 0xB2C000
WS_TS = 0xB30000
WS_SIZE = 0xB80000
WSOFF = opt('wsoff', 0) << 20
FSP = 1024
SLOT = [0, 16384, 32768, 49152]
XB = 32768
SC = 147456
UB = 33536
U1_OFF = 4640
U_CH = 9280
KC0, KC_CH, KC_CP = 16, 16656, 4160
YX = 32768
RX = 65536
XR = 49152
PS = [SC] + [XB + k * 16384 for k in range(2, 7)]
SPIN = 200000
C64 = "\nv_add_u32 v2, 64, v2\nv_min_u32 v2, L_codeend-L_pc-4, v2\nglobal_load_dword v229, v2, s[70:71]" if opt('c64', 0) else ''
FHW_AT, FH_AT, FH_POLL = opt('fhw', 2), opt('fh', 16), opt('fhp', 20)
FYW_AT, FY_AT, FY_POLL = opt('fyw', 6), opt('fy', 19), opt('fyp', 24)
FL_AT, FL_POLL = opt('fl', 20), opt('flp', 23)
OUTFL = 'sc1' if '--outsc1' in sys.argv else ''
SEL = opt('sel', 'a')
CV = opt('cv', 20)
PAT = opt('pat', 0)
WG = opt('wg', 4)

sX, sAre, sAim, sBre, sBim, sCre, sCim, sLdt, sDsk = 4, 6, 8, 10, 12, 14, 16, 18, 20
sWg, sWu, sWd, sOut, sDbg, sWs = 24, 26, 28, 30, 32, 34
rX, rW, rWd, rWs, rOut = "s[36:39]", "s[40:43]", "s[44:47]", "s[48:51]", "s[52:55]"
sw, sxcd, sj, sr1, sc1_, sjc, sr2, sc2, snonce = "s56", "s57", "s58", "s59", "s60", "s61", "s62", "s63", "s64"
sWoff, sWdoff, sDs, scnt = "s65", "s66", "s67", "s68"
sq, sXoff, sw4k, sWl, sMask = "s69", "s72", "s73", "s77", "s78"
sFL, stg, sUl, sUg, sH0, sH1, sKC, sHoff = "s80", "s81", "s82", "s83", "s86", "s87", "s88", "s89"
sST, sCS, sFHw, sFHr, sY = "s90", "s91", "s92", "s93", "s94"
sOdd = "s[22:23]"

vKC, vKZ, vUZ, vKX, vXR, vXD, vWD, vWF, vKL = 160, 168, 169, 170, 172, 180, 184, 188, 190
vDD, vDF, vCU, vCK, vN4, vN8, vCS, vF, vYW, vYR, vFH, vH = 200, 204, 208, 209, 210, 211, 212, 213, 214, 215, 217, 218
fC, fR, fKG, fQ, fG, vNo, vZ, vL16 = 220, 221, 222, 223, 226, 224, 225, 250

a = Asm()
slow = []
nstamp = [0]
tok, ltok = {}, {}


def stamp(kind="a"):
    if not STAMP or kind not in SEL:
        return
    k = nstamp[0]
    nstamp[0] += 1
    if k > 1:
        a.items.append(("raw", f"    v_writelane_b32 v254, s98, {k-1}"))
    a.items.append(("raw", f"    {CLK} s[98:99]"))


def poll(name, load, cmp_):
    a(cmp_)
    a(f"s_cbranch_vccnz L_slow_{name}")
    a(f"L_back_{name}:")
    slow.append(f"""L_slow_{name}:
s_mov_b32 {scnt}, 0
L_retry_{name}:
s_add_u32 {scnt}, {scnt}, 1
s_cmp_gt_u32 {scnt}, {SPIN}
s_cbranch_scc1 L_back_{name}
{load}
s_waitcnt vmcnt(0)
{cmp_}
s_cbranch_vccnz L_retry_{name}
s_branch L_back_{name}""")


def put(items):
    for e in items:
        if isinstance(e, tuple):
            if e[0] == "vt": tok[e[1]] = a.vm_tok()
            if e[0] == "lt": ltok[e[1]] = a.lg_tok()
            if e[0] == "wv": a.wait_vm(tok[e[1]])
            if e[0] == "wl": a.wait_lg(ltok[e[1]])
        else:
            a(e)


def weave(main, extra):
    nreal = sum(1 for e in extra if not isinstance(e, tuple))
    out, k, done = [], 0, 0
    for t, m in enumerate(main):
        out += m if isinstance(m, list) else [m]
        goal = -(-(nreal * (t + 1)) // len(main))
        while k < len(extra) and (isinstance(extra[k], tuple) or done < goal):
            out.append(extra[k])
            done += not isinstance(extra[k], tuple)
            k += 1
    return out


def cost(e):
    if isinstance(e, tuple):
        return 4 if e[0] in ("wv", "wl") else 0
    c = 0
    for l in e.split("\n"):
        op = l.split()[0]
        if op.startswith(("buffer_", "global_")):
            c += CV if "x4" in op else 12
        elif op.startswith("ds_write"):
            c += 28 if "b128" in op or "2_b64" in op else 14
        else:
            c += 4
    return c


def pack(main, extra, cap):
    base = [sum(cost(x) for x in m[1:]) for m in main]
    n, G = len(extra), len(main)
    cs = [cost(e) for e in extra]
    INF = 1 << 60
    best = [[INF] * (n + 1) for _ in range(G + 1)]
    frm = [[0] * (n + 1) for _ in range(G + 1)]
    best[0][0] = 0
    for g in range(G):
        for i in range(n + 1):
            if best[g][i] == INF:
                continue
            load = base[g]
            for j in range(i, n + 1):
                if j > i:
                    load += cs[j - 1]
                v = best[g][i] + 1000 * max(0, load - cap) + load * load // 16
                if v < best[g + 1][j]:
                    best[g + 1][j] = v
                    frm[g + 1][j] = i
    cuts, j = [], n
    for g in range(G, 0, -1):
        cuts.append((frm[g][j], j))
        j = frm[g][j]
    cuts.reverse()
    out = []
    for m, (i, j) in zip(main, cuts):
        out += m + extra[i:j]
    return out


def lines(txt, per=1):
    L = [l.replace(";;", "\n") for l in txt.strip().split("\n")]
    return ["\n".join(L[i:i + per]) for i in range(0, len(L), per)]


T64 = opt('t64', 0)
KA = 240 if T64 else 144
ROT = opt('rot', 0)
HFL = opt('hfl', 'sc1').replace('_', ' ').replace('none', '')


def wrap(reg, step, lim, base):
    return f"s_add_u32 {reg}, {reg}, {step}\ns_cmp_eq_u32 {reg}, {lim}\ns_cselect_b32 {reg}, {base}, {reg}"


def dma4(m0, vo, srd, soff, step, fl=""):
    g = [m0, f"buffer_load_dwordx4 v{vo}, {srd}, {soff} offen {fl} lds"]
    for i in range(1, 4):
        g.append(f"buffer_load_dwordx4 v{vo+i}, {srd}, {soff} offen offset:{1024*i} {fl} lds")
    g.append(f"s_add_u32 {soff}, {soff}, {step}")
    return g


def w_unit(u):
    return dma4(f"s_add_u32 m0, {sWl}, {SLOT[u % 4]}", vWD, rW, sWoff, 32 * 3584)


def x_block(cb):
    return dma4(f"s_add_u32 m0, {sw4k}, {XB+cb*16384}", vXD, rX, sXoff, 128)


def wd_pair(kk):
    g = dma4(f"s_add_u32 m0, {sw4k}, {PS[(kk >> 1) % 6]}", vDD, rWd, sWdoff, 32 * 896)
    if ROT and kk % 4 == 2:
        g[-1] = wrap(sWdoff, 32 * 896, "s9", "s8")
    return g


CLK = "s_memtime" if "--cyc" in sys.argv else "s_memrealtime"
if STAMP:
    a(f"{CLK} s[100:101]")
a(f"""
s_cmp_ge_u32 s2, 256
s_cbranch_scc1 L_end
s_load_dwordx16 s[4:19], s[0:1], 0
s_load_dwordx16 s[20:35], s[0:1], 64
s_getpc_b64 s[70:71]
L_pc:
s_and_b32 {sxcd}, s2, 7
s_lshr_b32 {sj}, s2, 3
v_lshrrev_b32 v1, 6, v0
v_and_b32 v255, 63, v0
v_readfirstlane_b32 {sw}, v1
""")
a(f"""
s_and_b32 {sq}, {sj}, 3
s_lshl_b32 s74, {sq}, 6
v_lshl_add_u32 v2, v1, 4, v255
v_add_u32 v2, s74, v2
v_lshlrev_b32 v2, 7, v2
v_min_u32 v2, L_codeend-L_pc-4, v2
s_mov_b64 exec, 0xffff
{"global_load_dword v253, v2, s[70:71]" + C64 if "--nocodepf" not in sys.argv else ""}
s_mov_b64 exec, -1
s_mov_b32 s38, {2048*896}
s_mov_b32 s39, 0x20000
s_mov_b32 s42, {448*3584}
s_mov_b32 s43, 0x20000
s_mov_b32 s50, {WS_SIZE}
s_mov_b32 s51, 0x20000
v_lshlrev_b32 v{vL16}, 4, v255
s_mov_b32 {sMask}, 0xffff0000
s_cmp_lt_u32 {sj}, 4
s_cbranch_scc1 L_helper
""")

a(f"""
s_sub_u32 {sj}, {sj}, 4
s_mul_i32 s74, {sxcd}, 28
s_add_u32 {sjc}, s74, {sj}
s_lshl_b32 s74, {sjc}, 10
s_lshl_b32 s75, {sw}, 8
s_add_u32 s74, s74, s75
v_lshl_add_u32 v4, v255, 2, s74
s_lshr_b32 s79, s74, 9
s_lshl_b32 s74, s79, 1
v_mov_b32 v5, s74
s_lshr_b32 {sc2}, {sj}, 2
s_lshr_b32 s74, {sxcd}, 1
s_lshl_b32 s74, s74, 2
s_add_u32 {sr1}, s74, {sq}
s_lshl_b32 {stg}, {sr1}, 2
s_add_u32 {stg}, {stg}, {sw}
s_mul_i32 {sXoff}, {stg}, {32*896}
s_lshl_b32 {sw4k}, {sw}, 12
s_and_b32 s74, {sxcd}, 1
s_mul_i32 s74, s74, 7
s_add_u32 {sc1_}, s74, {sc2}
s_lshl_b32 {sWoff}, {sc1_}, 8
s_lshr_b32 s84, {sw}, 1
s_and_b32 s85, {sw}, 1
s_lshl_b32 s74, s85, 13
s_lshl_b32 s75, s84, 12
s_add_u32 {sWl}, s74, s75
v_and_b32 v{fC}, 3, v255
v_bfe_u32 v{fR}, v255, 2, 2
v_lshrrev_b32 v{fKG}, 5, v255
v_lshrrev_b32 v{fQ}, 4, v255
v_and_b32 v{fG}, 1, v{fQ}
v_lshrrev_b32 v6, 3, v255
v_mul_u32_u24 v1, 896, v6
v_and_b32 v2, 7, v255
v_xor_b32 v2, v2, v{fQ}
v_lshl_add_u32 v{vXD}, v2, 4, v1
v_xor_b32 v{vXD+1}, 64, v{vXD}
v_add_u32 v{vXD+1}, {8*896-1024}, v{vXD+1}
v_add_u32 v{vXD+2}, {2*(8*896-1024)}, v{vXD}
v_add_u32 v{vXD+3}, {2*(8*896-1024)}, v{vXD+1}
s_lshl_b32 s74, s84, 4
v_add_u32 v1, s74, v{fR}
v_mul_u32_u24 v1, 3584, v1
v_lshl_add_u32 v1, v{fQ}, 6, v1
s_lshl_b32 s76, s85, 1
v_xor_b32 v2, s76, v{fC}
v_lshl_add_u32 v{vWD}, v2, 4, v1
v_add_u32 v{vWD+1}, {4*3584-1024}, v{vWD}
v_add_u32 v{vWD+2}, {2*(4*3584-1024)}, v{vWD}
v_add_u32 v{vWD+3}, {3*(4*3584-1024)}, v{vWD}
""")
if STAMP:
    a("v_mov_b32 v254, 0\ns_waitcnt lgkmcnt(0)\nv_writelane_b32 v254, s100, 0")
    nstamp[0] = 1
stamp(SEL[0])
a(f"""
s_waitcnt lgkmcnt(0)
global_load_ushort v134, v5, s[{sLdt}:{sLdt+1}]
global_load_dword v128, v4, s[{sAre}:{sAre+1}]
global_load_dword v129, v4, s[{sAim}:{sAim+1}]
global_load_dword v130, v4, s[{sBre}:{sBre+1}]
global_load_dword v131, v4, s[{sBim}:{sBim+1}]
global_load_dword v132, v4, s[{sCre}:{sCre+1}]
global_load_dword v133, v4, s[{sCim}:{sCim+1}]
global_load_ushort v135, v5, s[{sDsk}:{sDsk+1}]
s_mov_b32 s36, s{sX}
s_mov_b32 s37, s{sX+1}
s_bitcmp1_b32 {sw}, 0
s_cselect_b32 s40, s{sWu}, s{sWg}
s_cselect_b32 s41, s{sWu+1}, s{sWg+1}
s_cselect_b64 {sOdd}, -1, 0
""")
if "--tlb" in sys.argv:
    a(f"""
v_min_u32 v14, 5, v255
v_lshlrev_b32 v14, 21, v14
v_mov_b32 v15, 0
s_mov_b64 exec, 0x3f
global_load_dword v152, v14, s[{sWs}:{sWs+1}]
s_mov_b64 exec, 1
global_load_dword v153, v15, s[{sOut}:{sOut+1}]
global_load_dword v154, v15, s[{sWd}:{sWd+1}]
global_load_dword v155, v15, s[{sDbg}:{sDbg+1}]
s_mov_b64 exec, -1
""")
LATE = opt('late', 0)
first_dma = x_block(0) + w_unit(0) + [("vt", "u0")]
if not LATE:
    put(first_dma)
a(f"""
s_add_u32 s74, {sw4k}, {SC}
v_add_u32 v{vKX}, s74, v{vL16}
v_xor_b32 v{vKX+1}, 4096, v{vKX}
v_bfe_u32 v1, v255, 1, 2
v_lshlrev_b32 v7, 4, v1
v_lshl_add_u32 v7, v255, 6, v7
v_add_u32 v{vKL}, s74, v7
v_xor_b32 v{vKL+1}, 16, v{vKL}
v_xor_b32 v{vKL+2}, 32, v{vKL}
v_xor_b32 v{vKL+3}, 48, v{vKL}
v_lshl_add_u32 v7, v{fKG}, 3, v{fR}
v_lshlrev_b32 v7, 6, v7
v_bfe_u32 v8, v255, 1, 1
v_lshl_add_u32 v8, v{fG}, 1, v8
v_lshrrev_b32 v9, 1, v{fR}
v_xor_b32 v8, v8, v9
v_lshl_add_u32 v7, v8, 4, v7
v_and_b32 v10, 1, v255
v_lshl_add_u32 v7, v10, 3, v7
v_add_u32 v{vKL+4}, s74, v7
v_xor_b32 v{vKL+5}, 32, v{vKL+4}
v_add_u32 v{vKL+5}, 256, v{vKL+5}
s_lshl_b32 s76, s85, 5
v_xor_b32 v{vKL+6}, s76, v{vKL+4}
v_xor_b32 v{vKL+7}, s76, v{vKL+5}
v_and_b32 v11, 31, v255
v_bfe_u32 v12, v255, 1, 3
v_xor_b32 v7, v12, v{fKG}
v_lshlrev_b32 v7, 4, v7
v_lshl_add_u32 v7, v11, 7, v7
s_and_b32 s74, {sw4k}, {0x2000 if T64 else 0x3000}
s_add_u32 s74, s74, {XB}
v_add_u32 v{vXR}, s74, v7
v_xor_b32 v{vXR+1}, 32, v{vXR}
v_xor_b32 v{vXR+2}, 64, v{vXR}
v_xor_b32 v{vXR+3}, 96, v{vXR}
v_add_u32 v{vXR+4}, 0x10000, v{vXR}
v_add_u32 v{vXR+5}, 0x10000, v{vXR+1}
v_add_u32 v{vXR+6}, 0x10000, v{vXR+2}
v_add_u32 v{vXR+7}, 0x10000, v{vXR+3}
v_lshlrev_b32 v13, 3, v{fC}
v_lshl_add_u32 v13, v{fR}, 6, v13
v_mul_u32_u24 v7, {8192+32}, v{fG}
v_lshl_add_u32 v7, v{fKG}, 11, v7
s_mul_i32 s74, s85, {512 if T64 else 0}
v_add3_u32 v{vWF}, v7, v13, s74
v_xor_b32 v{vWF+1}, 32, v{vWF}
v_lshl_add_u32 v7, v{fG}, 5, v13
v_lshl_add_u32 v7, v{fKG}, 9, v7
s_lshl_b32 s74, s85, 8
s_add_u32 s74, s74, {sw4k}
s_add_u32 s74, s74, 65536
v_add_u32 v{vDF}, s74, v7
v_xor_b32 v{vDF+1}, 256, v{vDF}
v_add_u32 v{vDF+2}, 0x10000, v{vDF}
v_add_u32 v{vDF+3}, 0x10000, v{vDF+1}
s_mul_i32 s74, {sw}, 448
v_lshl_add_u32 v7, v{fKG}, 2, v{fR}
v_add_u32 v7, s74, v7
v_mul_u32_u24 v7, 896, v7
v_lshl_add_u32 v7, v{fG}, 6, v7
v_lshl_add_u32 v{vDD}, v{fC}, 4, v7
v_add_u32 v{vDD+1}, {8*896-1024}, v{vDD}
v_add_u32 v{vDD+2}, {2*(8*896-1024)}, v{vDD}
v_add_u32 v{vDD+3}, {3*(8*896-1024)}, v{vDD}
v_lshlrev_b32 v{vN4}, 2, v11
v_lshlrev_b32 v{vN8}, 3, v11
""")
setup2 = lines(f"""s_mul_i32 {sKC}, s84, {KC_CH}
s_add_u32 {sKC}, {sKC}, {KC0}
s_lshl_b32 s74, s85, 10
s_sub_u32 s74, {sKC}, s74
s_add_u32 s74, s74, {16*255-12}
v_sub_u32 v{vKC}, s74, v{vL16}
v_add_u32 v{vKC+1}, {KC_CP+4}, v{vKC}
v_add_u32 v{vKC+2}, {2*(KC_CP+4)}, v{vKC}
v_add_u32 v{vKC+3}, {3*(KC_CP+4)}, v{vKC}
v_lshlrev_b32 v7, 9, v{fKG}
v_sub_u32 v7, v{vKC}, v7
s_mul_i32 s74, s85, 1536
s_sub_u32 s74, 2560, s74
v_subrev_u32 v{vKC+4}, s74, v7
v_add_u32 v{vKC+5}, {KC_CP+4}, v{vKC+4}
v_add_u32 v{vKC+6}, {2*(KC_CP+4)}, v{vKC+4}
v_add_u32 v{vKC+7}, {3*(KC_CP+4)}, v{vKC+4}
v_and_b32 v11, 15, v255
v_mul_u32_u24 v7, {KC_CP+4}, v{fQ}
v_lshl_add_u32 v7, v11, 2, v7
v_add_u32 v{vKZ}, {sKC}, v7
v_lshlrev_b32 v7, 2, v11
v_lshlrev_b32 v{vCS}, 2, v{vN4}
{f"v_min_u32 v7, 108, v{vN4}" if T64 else "v_min_u32 v7, 52, v7"}
v_mul_u32_u24 v8, {FSP}, v{fKG if T64 else fG}
v_add_u32 v{vFH}, v7, v8
s_mul_i32 s75, s84, {U_CH}
s_add_u32 s75, s75, {UB}
s_mul_i32 s74, s85, {U1_OFF}
s_add_u32 s74, s74, s75
v_min_u32 v7, 55, v255
v_lshl_add_u32 v{vUZ}, v7, 3, s74
s_lshl_b32 s74, s85, 11
s_add_u32 {sUl}, s75, s74
s_mul_i32 {sUg}, s79, {XTS}
s_add_u32 {sUg}, {sUg}, s74
s_add_u32 {sUg}, {sUg}, {WS_XT}
v_mul_u32_u24 v7, {U1_OFF}, v10
v_lshl_add_u32 v7, v12, 6, v7
v_lshl_add_u32 v7, v{fQ}, 4, v7
s_lshl_b32 s74, s85, 6
s_sub_u32 s75, s75, s74
s_add_u32 s75, s75, {448-384}
v_add_u32 v{vCU}, s75, v7
v_mul_u32_u24 v7, {KC_CP}, v{fC}
v_sub_u32 v8, v{fQ}, v{fR}
v_lshl_add_u32 v7, v8, 4, v7
s_sub_u32 s74, {sKC}, s74
s_add_u32 s74, s74, {16*255-64*62}
v_add_u32 v{vCK}, s74, v7
s_lshl_b32 s74, {sw}, 10
s_add_u32 s74, s74, {YX}
v_add_u32 v{vYW}, s74, v{vL16}
v_lshlrev_b32 v7, 8, v1
v_lshl_add_u32 v7, v6, 5, v7
v_lshl_add_u32 v7, v10, 3, v7
s_lshl_b32 s74, {sw}, 13
s_add_u32 s75, s74, {YX+4096}
v_add_u32 v{vYR}, s75, v7
s_add_u32 s74, s74, 8192
s_and_b32 s74, s74, 0x7fff
s_add_u32 s74, s74, {YX}
v_add_u32 v{vYR+1}, s74, v7
s_mul_i32 s74, s84, {112*1024}
v_add_u32 v{vH}, s74, v{vL16}
s_sub_u32 s74, {112*1024}, s74
v_add_u32 v{vH+1}, s74, v{vL16}
v_mov_b32 v{vZ}, 0
s_lshl_b32 s74, {sxcd}, 2
s_add_u32 {sr2}, s74, {sq}
s_lshl_b32 s74, {sr2}, 1
s_add_u32 s74, s74, s84
s_lshl_b32 s97, s74, 5
s_lshl_b32 s74, {sc2}, 1
s_add_u32 s74, s74, s85
s_lshl_b32 s17, s74, 6
s_mul_i32 s74, s97, 896
s_add_u32 s16, s74, s17
v_lshrrev_b32 v7, 2, v255
v_mul_u32_u24 v7, 896, v7
v_xor_b32 v8, v{fC}, v{fQ}
v_lshl_add_u32 v227, v8, 4, v7""")
put(setup2[:opt('s2', len(setup2))])
setup2 = setup2[opt('s2', len(setup2)):]
a(f"""
v_lshlrev_b32 v134, 16, v134
v_mul_f32 v134, 0x3fb8aa3b, v134
v_exp_f32 v134, v134
v_cvt_pk_bf16_f32 v134, v134, v134
v_lshlrev_b32 v134, 16, v134
""")
stamp()

PA = [64, 96]
PB = 8
KF = [(160, 176, 192, 208), (96, 112, 128, 144) if T64 else (224, 240, 80, 96)]
R1, R8, E, T = 146, [148, 150], 0, 2
l1s = [0, 1, 2, 3, 4, 5, 6, 7, 8, 256, 258, 260, 262, 264, 512, 516, 520, 768, 772, 776,
       1024, 1032, 1280, 1288, 1536, 1544, 1792, 1800]
ra = {l: 8 + 2 * i for i, l in enumerate(l1s)}
cols = [0, 1, 2, 3, 256, 256, 258, 260, 4, 5, 6, 7, 260, 260, 262, 264,
        512, 516, 520, 1024, 768, 772, 776, 1536, 1032, 1280, 1288, 1288, 1544, 1792, 1800, 1800]


def cmul(d, x, r, t):
    return [f"v_pk_mul_f32 v[{t}:{t+1}], v[{x}:{x+1}], v[{r}:{r+1}] op_sel_hi:[1,0]",
            f"v_pk_fma_f32 v[{d}:{d+1}], v[{x}:{x+1}], v[{r}:{r+1}], v[{t}:{t+1}] op_sel:[1,1,0] op_sel_hi:[0,1,1] neg_lo:[1,0,0]"]


def k_write(ck, i, cq):
    P = (PA[ck] + 16 * i) if i < 2 else (PB + 16 * (i - 2))
    return f"ds_write_b128 v{vKL+cq}, v[{P+4*cq}:{P+4*cq+3}]"


def k_reads(ck, i):
    fr = KF[ck][i]
    base = vKL + 6 if i < 2 else vKL + 4
    return "\n".join(f"ds_read_b64_tr_b16 a[{fr+4*s+2*rd}:{fr+4*s+2*rd+1}], v{base+rd} offset:{1024*s}"
                     for s in range(4) for rd in range(2))


def kgen_head(ck):
    L = []
    un = (lambda d, s: f"v_lshlrev_b32 v{d}, 16, v{s}") if ck == 0 else (lambda d, s: f"v_and_b32 v{d}, {sMask}, v{s}")
    L += [un(136 + i, 128 + i) for i in range(6)]
    L += ["v_mul_f32 v142, v134, v136", "v_mul_f32 v143, v134, v137",
          "v_mul_f32 v142, 0x3fb8aa3b, v142", "v_mul_f32 v143, 0.15915494, v143"]

    def ev(d, l):
        s = []
        if l == 1:
            s += ["v_exp_f32 v144, v142", "v_fract_f32 v145, v143"]
        else:
            f = {8: "0x41000000", 256: "0x43800000"}[l]
            s += [f"v_mul_f32 v144, {f}, v142", f"v_mul_f32 v145, {f}, v143", "v_exp_f32 v144, v144", "v_fract_f32 v145, v145"]
        s += [f"v_cos_f32 v{d}, v145", f"v_sin_f32 v{d+1}, v145"]
        return s, f"v_pk_mul_f32 v[{d}:{d+1}], v[{d}:{d+1}], v[144:145] op_sel_hi:[1,0]"
    wm = cmul(ra[0], 140, 138, T) + [f"v_pk_mul_f32 v[{ra[0]}:{ra[0]+1}], v[{ra[0]}:{ra[0]+1}], v[134:135] op_sel_hi:[1,0]"]
    for (d, l), fill in zip(((R1, 1), (R8[ck], 8), (E, 256)), wm):
        s, last = ev(d, l)
        L += s + [fill, last]
    for l in range(1, 9):
        L += cmul(ra[l], ra[l - 1], R1, T)
    for l in l1s[9:]:
        L += cmul(ra[l], ra[l - 256], E, T)
    for k in range(16):
        c0, c1 = ra[cols[2 * k]], ra[cols[2 * k + 1]]
        L += [f"v_cvt_pk_bf16_f32 v{PA[ck]+k}, v{c0}, v{c1}", f"v_cvt_pk_bf16_f32 v{PA[ck]+16+k}, -v{c0+1}, -v{c1+1}"]
    return L


def kgen_chain(ck):
    r8 = R8[ck]
    rb = lambda j: r8 if j == 1 else 4 + 2 * (j % 2)
    B = [f"v_cvt_pk_bf16_f32 v{PB}, 1.0, v{r8}", f"v_cvt_pk_bf16_f32 v{PB+16}, 0, v{r8+1}"]
    for j in range(2, 32):
        B += cmul(rb(j), rb(j - 1), r8, T)
        if j % 2:
            B += [f"v_cvt_pk_bf16_f32 v{PB+j//2}, v{rb(j-1)}, v{rb(j)}",
                  f"v_cvt_pk_bf16_f32 v{PB+16+j//2}, v{rb(j-1)+1}, v{rb(j)+1}"]
    return B


def k_pass(ck, i):
    return [k_write(ck, i, cq) for cq in range(4)] + [k_reads(ck, i)]


def at(stream, items):
    out = []
    for i, x in enumerate(stream):
        out += [y for p, y in items if p == i]
        out.append(x)
    return out + [y for p, y in items if p >= len(stream)]


def kgen_mfma(ck):
    f = KF[ck]
    return [f"v_mfma_f32_32x32x16_bf16 a[{KA}:{KA+15}], a[{f[s>>2]+4*(s&3)}:{f[s>>2]+4*(s&3)+3}], "
            f"a[{f[2+(s>>2)]+4*(s&3)}:{f[2+(s>>2)]+4*(s&3)+3}], "
            + ("0" if (ck == 0 and s == 0) else f"a[{KA}:{KA+15}]") for s in range(8)]


XF = (lambda s, ta=0: 8 * s + 4 * ta) if T64 else (lambda s, ta=0: 4 * s)


def x_read(s, ta=0):
    cb = s >> 2
    return f"ds_read_b128 a[{XF(s, ta)}:{XF(s, ta)+3}], v{vXR + (0 if cb < 4 else 4) + (s & 3)} offset:{(cb % 4)*16384+ta*4096}"


WM = opt('wm', 0)
if WM == 0:
    warm = [f"""s_cmp_eq_u32 {sw}, 0
s_cselect_b32 s12, s{sWg}, s{sWu}
s_cselect_b32 s13, s{sWg+1}, s{sWu+1}
s_cmp_lt_u32 {sw}, 2
s_cselect_b32 s12, s12, s{sWd}
s_cselect_b32 s13, s13, s{sWd+1}
s_mul_i32 s74, {sjc}, {56*128}
v_min_u32 v251, 55, v255
v_lshl_add_u32 v251, v251, 7, s74
global_load_dword v252, v251, s[12:13]"""]
    if opt('w64', 0) == 1:
        warm += ["global_load_dword v157, v251, s[12:13] offset:64"]
    if opt('w64', 0) == 2:
        warm[0] = warm[0].replace("global_load_dword", f"s_cmp_eq_u32 {sw}, 3\ns_cselect_b32 s75, 64, 0\nv_add_u32 v251, s75, v251\nglobal_load_dword")
elif WM >= 1:
    warm = [f"""s_lshl_b32 s74, {sjc}, 1
s_add_u32 s74, s74, s84
s_mul_i32 s74, s74, 3584
v_min_u32 v251, 27, v255
v_lshlrev_b32 v251, 7, v251
s_mov_b64 exec, 0xfffffff
buffer_load_dword v252, v251, {rW}, s74 offen
s_mov_b64 exec, -1"""]
warm2 = []
if WM >= 2:
    warm2 = [f"""s_lshl_b32 s74, {sjc}, 2
s_add_u32 s74, s74, {sw}
s_mul_i32 s74, s74, {14*128}
v_lshl_add_u32 v251, v255, 7, s74
s_mov_b64 exec, 0x3fff
global_load_dword v156, v251, s[{sWd}:{sWd+1}]
s_mov_b64 exec, -1"""]
WAT = opt('wat', 0)
for _ in range(opt('dmain', 0)):
    a("s_sleep 16")
stamp("k")
early = x_block(1) + [("vt", "x1")] + w_unit(1) + [("vt", "u1")]
if LATE == 1:
    put(weave(kgen_head(0), first_dma + early))
elif LATE == 2:
    put(weave(kgen_head(0), first_dma))
    warm = early + warm
elif LATE == 3:
    put(weave(kgen_head(0), first_dma + warm))
    warm = early
else:
    put(weave(kgen_head(0), early))
stamp("k")
XRES = [f"buffer_load_dwordx4 v[242:245], v227, {rX}, s16 offen",
        f"s_add_u32 s74, s16, {16*896}\nbuffer_load_dwordx4 v[246:249], v227, {rX}, s74 offen"]
XRAT = opt('xrat', 0)
if XRAT == 0:
    warm += XRES
wA = warm if WAT == 0 else [e for e in warm if "v251" not in str(e)]
wB = [] if WAT == 0 else [e for e in warm if "v251" in str(e)]
XH = opt('xh', 0)
wA = sum((x_block(cb) + [("vt", f"x{cb}")] for cb in range(2, 2 + XH)), []) + wA if opt('xhf', 1) else \
    wA + sum((x_block(cb) + [("vt", f"x{cb}")] for cb in range(2, 2 + XH)), [])
put(weave(kgen_head(1), wA))
stamp("ak"[SEL == "k"])
RD = opt('rd', 3)
p0, p1, p2 = k_pass(0, 0), k_pass(0, 1), k_pass(0, 2)
XE = opt('xe', 0)
xe = sum((x_block(cb) + [("vt", f"x{cb}")] for cb in range(2, 2 + XE)), [])
n0 = 7 * opt('xe0', 3)
put(weave(at(kgen_chain(0), list(zip((0, 7, 14, 21, 21 + RD), p0)) + list(zip((30, 37, 44, 51, 51 + RD), p1))
             + list(zip((62, 70, 80, 92), p2))), xe[:n0] + (wB if WAT == 1 else []) + (warm2 if WM == 2 else [])))
stamp("k")
p3, q0, q1, q2 = k_pass(0, 3), k_pass(1, 0), k_pass(1, 1), k_pass(1, 2)
ch = kgen_chain(1)
put([p2[4], p3[0], p3[1]] + weave(at(ch[2:], [(0, p3[2]), (4, p3[3]), (4, ch[0]), (4, ch[1]), (4 + RD, p3[4])]
                                      + list(zip((14, 20, 26, 32, 32 + RD), q0)) + list(zip((42, 48, 54, 60, 60 + RD), q1))
                                      + list(zip((70, 76, 82, 90), q2))), xe[n0:] + (wB if WAT == 2 else []) + (warm2 if WM == 3 else [])))
stamp("ak"[SEL == "k"])
sc = lines(f"""s_lshl_b32 {sWdoff}, {sc2}, 7
s_mov_b32 s44, s{sWd}
s_mov_b32 s45, s{sWd+1}
s_mov_b32 s46, {1792*896}
s_mov_b32 s47, 0x20000
s_add_u32 s48, s{sWs}, {WSOFF};;s_addc_u32 s49, s{sWs+1}, 0
s_mov_b32 s52, s{sOut}
s_mov_b32 s53, s{sOut+1}
s_mov_b32 s54, {2048*896}
s_mov_b32 s55, 0x20000
s_mul_i32 {sFL}, {sxcd}, {FSP}
s_add_u32 {sFL}, {sFL}, {WS_FL}
s_and_b32 {stg}, {stg}, {0xfe if T64 else 0xff}
s_lshl_b32 {sST}, {stg}, 8
s_add_u32 {sST}, {sST}, {WS_ST}
s_lshl_b32 s18, {sc1_}, 1
s_add_u32 s18, s18, {"s85" if T64 else 0}
s_lshl_b32 {sCS}, s18, 9
s_add_u32 {sCS}, {sCS}, {WS_CS}
v_lshlrev_b32 v135, 16, v135""")
lp = k_pass(1, 3)
put(weave(kgen_mfma(0), [q2[4], lp[0]] + sc[:7] + [lp[1]] + sc[7:14] + [lp[2]] + sc[14:]
          + ([lp[3], lp[4], ("wv", "x1")] if T64 else [lp[3], ("wv", "u0")] + [x_read(s) for s in range(4)] + [lp[4]])))
stamp("k")
a("s_waitcnt lgkmcnt(0)")
stamp("k")
a("s_barrier")
stamp("ak"[SEL == "k"])

fillg = {s: [] for s in range(28)}
fillg[2] += lines(f"""v_readfirstlane_b32 {sDs}, v135
s_mul_i32 {sH0}, {stg}, {112*1024}
s_lshl_b32 s74, s18, 12
s_add_u32 {sH0}, {sH0}, s74
s_add_u32 {sH1}, {sH0}, {112*1024 if T64 else 4096}
s_mul_i32 s74, {stg}, {FSP}
s_lshl_b32 s75, s18, {2 if T64 else 1}
s_add_u32 s74, s74, s75
s_add_u32 {sFHw}, s74, {WS_FH}""")
fillg[3] += [f"v_accvgpr_read_b32 v{128+r}, a{KA+r}" for r in range(8)]
fillg[6] += [f"v_accvgpr_read_b32 v148, a{KA+13}", f"v_accvgpr_read_b32 v149, a{KA+14}",
             "v_add_f32 v148, v148, v145", "v_add_f32 v149, v149, v146"]
fillg[2] += []
fillg[4] += [f"ds_read_b128 v[136:139], v{vKX+1}", f"ds_read_b128 v[140:143], v{vKX+1} offset:1024",
             f"ds_read_b128 v[144:147], v{vKX+1} offset:2048", ("lt", "kr")]
fillg[5] += lines(f"""s_mul_i32 {sFHr}, {sr2}, {2*FSP}
s_add_u32 {sFHr}, {sFHr}, {WS_FH}
s_mul_i32 {sHoff}, {sr2}, {2*112*1024}
s_mul_i32 s74, {sw}, {28*1024}
s_add_u32 {sHoff}, {sHoff}, s74
s_add_u32 {sHoff}, {sHoff}, {16*1024}""")
fillg[7] += [f"v_add_f32 v{128+r}, v{128+r}, v{136+r}" for r in range(8)]
fillg[9] += lines(f"""v_cmp_eq_u32 vcc, 0, v255
v_mov_b32 v140, {sDs}
v_cndmask_b32 v148, v148, v131, {sOdd}
v_cndmask_b32 v149, v149, v132, {sOdd}
v_cndmask_b32 v140, 0, v140, vcc
v_add_f32 v140, v128, v140""")
fillg[11] += lines(f"""s_mov_b32 s74, 0xaaaaaaaa
s_mov_b32 s75, 0xaaaaaaaa
v_cvt_pk_bf16_f32 v144, v149, v149
v_cndmask_b32 v141, v148, v149, s[74:75]
v_cvt_pk_bf16_f32 v146, v148, v148
v_cvt_pk_bf16_f32 v147, v148, v148
v_cvt_pk_bf16_f32 v145, v149, v141""")
fillg[13] += lines(f"""v_cvt_pk_bf16_f32 v136, v135, v134
v_cvt_pk_bf16_f32 v137, v133, v132
v_cvt_pk_bf16_f32 v138, v131, v130
v_cvt_pk_bf16_f32 v139, v129, v140
v_cvt_pk_bf16_f32 v140, v130, v130
v_cvt_pk_bf16_f32 v141, v129, v129
v_cvt_pk_bf16_f32 v142, v129, v128
v_cvt_pk_bf16_f32 v143, v128, v128""")
fillg[15] += [f"v_cndmask_b32 v{136+r}, v{136+r}, v{140+r}, {sOdd}" for r in range(4)]
fillg[17] += lines(f"""s_mul_i32 {sY}, {sjc}, {YS}
s_lshl_b32 s74, {sw}, 11
s_add_u32 {sY}, {sY}, s74
s_add_u32 {sY}, {sY}, {WS_Y}""")
fillg[19] += [f"v_mov_b32 v{r}, 0" for r in (190, 191, 193, 194)]
fillg[21] += [f"v_mov_b32 v{r}, 0" for r in (195, 196, 198, 199)]


def wd_read(kk, r):
    off = PS[(kk >> 1) % 6] - 65536 + (kk & 1) * 2048
    base = vDF if off < 65536 else vDF + 2
    return [f"ds_read_b64_tr_b16 a[{r+4*da+2*rd}:{r+4*da+2*rd+1}], v{base+da} offset:{off % 65536+rd*1024}"
            for da in range(2) for rd in range(2)]


def wd_move(kk):
    return wd_read(kk, 8 * kk)


def wfrag_read(s, t, r):
    off = SLOT[(s >> 1) % 4] + (s & 1) * 4096 + (t >> 1) * 256
    return [f"ds_read_b64_tr_b16 a[{r+2*rd}:{r+2*rd+1}], v{vWF+(t & 1)} offset:{off+rd*1024}" for rd in range(2)]


WF = (lambda t: 224 + 4 * t) if T64 else (lambda t: 112 + 4 * t)
if T64:
    rd = [x_read(s, ta) for s in range(8) for ta in range(2)] + [("lt", "x1")] + sum((wfrag_read(0, t, WF(t)) for t in range(4)), [])
    put(pack([[m] for m in kgen_mfma(1)], rd + fillg[2], 24))
    put([("wl", "x1"), "s_barrier"] + w_unit(2) + [("vt", "u2")])
else:
    put(pack([[m] + wfrag_read(0, t, WF(t)) for t, m in enumerate(kgen_mfma(1))], w_unit(2) + [("vt", "u2")] + fillg[2], 24))
fillg[2] = []
X20 = opt('x20', 1)
if XE == 0 and XH == 0 and not X20:
    put(x_block(2) + [("vt", "x2")])
put([f"ds_write_b128 v{vKX}, a[{KA+8}:{KA+11}]", f"ds_write_b128 v{vKX}, a[{KA+12}:{KA+15}] offset:1024",
     f"ds_write_b128 v{vKX}, a[{KA+4}:{KA+7}] offset:2048", ("lt", "kx")])
stamp("k")

FL_LOAD = f"buffer_load_dword v{vF}, v{vN4}, {rWs}, {sFL} offen sc1"
F_CMP = f"v_cmp_ne_u32 vcc, {snonce}, v{vF}"
NC_LOAD = f"global_load_dword v{vNo}, v{vZ}, s[{sDbg}:{sDbg+1}] sc1"
NC_CMP = f"v_cmp_eq_u32 vcc, 0, v{vNo}"
if XE == 5:
    XD = {}
    XRD = {1: 2, 2: 3, 3: 4, 4: 5, 5: 6}
    NP = opt('np', 11)
    WDD = dict(zip([4, 6, 8, 10, 12, 14, 16, 18, 20, 22, 24][:NP], range(NP)))
    PSORD = {0: "x2", 1: "x3", 2: "x4", 3: "x5", 4: "x6", 5: None}
    PS[:] = PS[1:] + PS[:1]
    MV = dict(zip([9, 10, 11, 12, 13, 14, 15, 17, 19, 20, 22, 24][:opt('nmv', 2 * (NP - 5))], range(12)))
else:
    XD = {s: 2 + s // 2 for s in ((0,) if X20 else ()) + (2, 4, 6, 8)}
    XRD = {s: s // 2 for s in (4, 6, 8, 10, 12)}
    NP = opt('np', 8)
    WDD = dict(zip([int(c) for c in opt('wdd', '10,12,14,16,18,20,22,24').split(',')][:NP], range(NP)))
    PSORD = {0: None, 1: "x2", 2: "x3", 3: "x4", 4: "x5", 5: "x6"}
    MV = {s: s - 14 for s in range(14, 14 + opt('nmv', 8))}
if XH:
    left = list(range(2 + XH, 7))
    XD = {2 * k: cb for k, cb in enumerate(left)}
    XRD = {1 + k: 2 + k for k in range(XH)}
    XRD.update({2 * k + 4: cb for k, cb in enumerate(left)})
    w0 = max(6, 2 * len(left)) + opt('wsh', 0)
    NP = opt('np', 9)
    WDD = dict(zip(list(range(w0, 25, 2)) + [23], range(NP)))
    assert len(WDD) == NP and sorted(WDD) == sorted(WDD, key=WDD.get) or True
    order = sorted(WDD)
    WDD = dict(zip(order, range(NP)))
    MV, t_ = {}, 0
    for kk in range(opt('nmv', 2 * (NP - 5))):
        t_ = max(t_ + 1, order[kk >> 1] + 4, 2 * kk + 2)
        MV[t_] = kk
    assert max(MV) <= 24
    for p_ in range(6, NP):
        assert order[p_] > [k for k, v in MV.items() if v == 2 * (p_ - 6) + 1][0], (p_, order, MV)
    for p_ in range(1, 6):
        assert order[p_] > [k for k, v in XRD.items() if v == p_ + 1][0]
NMV = len(MV)
carry, pre = [], []
DG = opt('dg', 1)
for s in range(25):
    if s % 2 == 0 and s > 0:
        stamp("g")
    if 1 <= s <= 4:
        stamp("k")
    if s == opt('dat', -1):
        a("s_sleep 16\ns_sleep 16")
    extra, dma = [], None
    if s % 2 == 1:
        u = (s + 1) // 2
        lt = {1: "kx" if T64 else "x1", 5: "kr"}.get(s)
        a.wait_both(tok[f"u{u}"], ltok[lt] if lt else None)
        a("s_barrier")
        if u + 2 < 14:
            dma = ([], w_unit(u + 2), f"u{u+2}")
    if T64 and 5 <= s <= 14:
        extra += [x_read(k, ta) for k in (2 * s - 2, 2 * s - 1) for ta in range(2)]
    if s == 0 and not T64:
        extra += [("wv", "x1")] + [x_read(k) for k in range(4, 8)] + [("lt", "x1")]
    if s in XD:
        dma = ([], x_block(XD[s]), f"x{XD[s]}")
    if s in XRD and not T64:
        cb = XRD[s]
        extra += [("wv", f"x{cb}")] + [x_read(k) for k in range(4 * cb, 4 * cb + 4)] + [("lt", f"x{cb}")]
    if s in WDD:
        p = WDD[s]
        need = (None if T64 else PSORD[p]) if p < 6 else f"mv{2*(p-6)+1}"
        dma = ([("wl", need)] if need else [], wd_pair(2 * p), f"wd{2*p}")
    if s in MV:
        kk = MV[s]
        assert s >= (kk + 1 if T64 else 2 * kk + 2)
        if kk % 2 == 0:
            extra += [("wv", f"wd{kk}")]
        extra += wd_move(kk) + [("lt", f"mv{kk}")]
    if s == 12:
        extra += [NC_LOAD]
    if s == 16:
        poll("nc", NC_LOAD, NC_CMP)
        a(f"v_readfirstlane_b32 {snonce}, v{vNo}")
    if s == FL_AT:
        extra += [FL_LOAD]
    if s == FL_POLL:
        poll("fl", FL_LOAD, F_CMP)
        extra += [f"buffer_load_dword v{vF}, v{vN8}, {rWs}, {sST} offen sc1",
                  f"s_lshl_b32 s74, s97, 3\ns_add_u32 s74, s74, {WS_ST+4}\nbuffer_load_dword v228, v{vN8}, {rWs}, s74 offen sc1"]
        if T64:
            extra += [f"buffer_load_dwordx4 v[156:159], v{vCS}, {rWs}, {sCS} offen sc1",
                      f"buffer_load_dword v154, v{vN8}, {rWs}, {sST} offen offset:256 sc1"]
        else:
            extra += [f"buffer_load_dwordx4 a[{160+4*t}:{163+4*t}], v{vCS}, {rWs}, {sCS} offen offset:{512*t} sc1" for t in range(2)]
    extra += fillg[s]
    AB = opt('ab', '')
    if dma and (('x' in AB and dma[2][0] == 'x') or ('w' in AB and dma[2][0] == 'w') or ('u' in AB and dma[2][0] == 'u')):
        dma = (dma[0], ["s_nop 0"] * 6, dma[2])
    main = []
    for t in range(8):
        tl, ta = (t >> 1, t & 1) if T64 else (t, 0)
        j = 4 * ta + tl if T64 else t
        if t % WG == 0 and s > 0:
            (main[-1] if main else pre).append(("wl", f"f{(t+WG-1) >> T64}"))
        c = "0" if s == 0 else f"v[{16*j}:{16*j+15}]"
        m = [f"v_mfma_f32_32x32x16_bf16 v[{16*j}:{16*j+15}], a[{WF(tl)}:{WF(tl)+3}], a[{XF(s, ta)}:{XF(s, ta)+3}], {c}"]
        if dma and t == 0:
            m += dma[0] + [dma[1][0]]
        if not T64 or ta == 1:
            m += wfrag_read(s + 1, tl, WF(tl)) + [("lt", f"f{tl}")]
        if dma and (t % 2 == 0 and t > 0 or t == 1 if T64 and DG else t % 2 == 1):
            k = (t // 2 if t > 1 else 0) if T64 and DG else t // 2
            m.append(dma[1][1 + k])
            if k == 3:
                m += [("vt", dma[2]), dma[1][5]]
        main.append(m)
    if s == 24 and opt('b13', 1):
        main[4] += [("wv", "u13"), "s_barrier"]
        main[6] += wfrag_read(26, 0, 144 if T64 else 168)
        main[7] += wfrag_read(27, 0, 148 if T64 else 172)
    put(pre + pack(main, extra, 24))
    pre = []
stamp("g")
TF = 144 if T64 else 168
if not opt('b13', 1):
    a.wait_vm(tok["u13"])
    a("s_barrier")
    put(wfrag_read(26, 0, TF) + wfrag_read(27, 0, TF + 4))
first = [f"v_cmp_gt_u32 vcc, 32, v255", "v_mov_b32 v152, 0", "v_mov_b32 v153, 0",
         f"s_add_u32 m0, {sUl}, {U1_OFF+448}", f"buffer_load_dwordx4 v{vL16}, {rWs}, {sUg} offen sc1 lds",
         f"buffer_load_dwordx4 v{vL16}, {rWs}, {sUg} offen offset:1024 sc1 lds",
         f"v_cndmask_b32 v192, 0, v{vF}, vcc\nv_cndmask_b32 v197, 0, v{vF}, vcc"]
second = [f"s_sub_u32 {sUg}, {sUg}, 2\ns_add_u32 m0, {sUl}, 448", f"buffer_load_dwordx4 v{vL16}, {rWs}, {sUg} offen sc1 lds",
          f"buffer_load_dwordx4 v{vL16}, {rWs}, {sUg} offen offset:1024 sc1 lds", ("vt", "u")]
main, epi = [], []
for t in range(8):
    r = TF + 8 * (t % 2)
    cb = (192, 196, 190, 194)[t & 3]
    tl, ta = (t & 3, t >> 2) if T64 else (t, 0)
    xf = lambda s: f"a[{XF(s, ta)}:{XF(s, ta)+3}]"
    ops = [(f"a[{WF(tl)}:{WF(tl)+3}]", xf(25)), (f"a[{r}:{r+3}]", xf(26)), (f"a[{r+4}:{r+7}]", xf(27)),
           ("v[156:159]" if T64 else f"a[{160+(t & 4)}:{163+(t & 4)}]", f"v[{cb}:{cb+3}]")]
    for k, (A, B) in enumerate(ops):
        m = [f"v_mfma_f32_32x32x16_bf16 v[{16*t}:{16*t+15}], {A}, {B}, v[{16*t}:{16*t+15}]"]
        if t < 7 and k in (0, 1):
            m += wfrag_read(26 + k, (t + 1) & (3 if T64 else 7), TF + 8 * ((t + 1) % 2) + 4 * k)
        if T64 and t == 4 and k == 0:
            m += ["v_cndmask_b32 v192, 0, v154, vcc", "v_cndmask_b32 v197, 0, v154, vcc"]
        main.append(m)
    b = 16 * t
    L = [f"v_max_f32 v{b+r}, 0, v{b+r}" for r in range(8)]
    if t < 6:
        L += [f"v_mul_f32 v{b+r}, v{b+r}, v{b+8+r}" for r in range(8)]
    else:
        L += [f"v_pk_mul_f32 v[{b+r}:{b+r+1}], v[{b+r}:{b+r+1}], v[{b+8+r}:{b+9+r}]" for r in range(0, 8, 2)]
    L += [f"v_cvt_pk_bf16_f32 v{b+8+r}, v{b+2*r}, v{b+2*r+1}" for r in range(4)]
    L += [f"buffer_store_dwordx4 v[{b+8}:{b+11}], v{vL16}, {rWs}, {(sH0, sH1)[t >> 2]} offen offset:{1024*(t & 3)} sc1"]
    epi.append(L)
stamp("t")
if opt('usp', 1):
    main[0] += first[:5]
    main[1] += [first[1 + 5]]
    main[2] += [first[5]]
    main[3] += second[:1]
    main[4] += second[1:2]
    main[6] += second[2:]
    put(sum(main[:6], []))
else:
    put(pack(main[:3], first, 24) + pack(main[3:6], second, 24))
for t in range(6):
    stamp("t")
    put(pack(main[4 * t + 6:4 * t + 10], epi[t], 24))
stamp("t")
put(pack(main[30:], epi[6][:8], 24))
rest = epi[6][8:] + epi[7]
stamp()
stamp("t")
a("s_barrier")
stamp("t")


def octet_writes(d, ar, off):
    return [f"ds_write_b128 v{ar+3}, v[{d}:{d+3}] offset:{off}",
            f"ds_write2_b64 v{ar+1}, v[{d}:{d+1}], v[{d+2}:{d+3}] offset0:{off//8} offset1:{off//8+1}"] + \
           [f"ds_write2_b32 v{ar+c}, v{d+k}, v{d+k+1} offset0:{off//4+k} offset1:{off//4+k+1}" for c in (0, 2) for k in (0, 2)]


put(weave(rest, octet_writes(136, vKC, 0) + octet_writes(144, vKC + 4, 0)
          + [f"ds_write_b32 v{vKZ}, v152 offset:{4096-12}", f"ds_write_b64 v{vUZ}, v[152:153]"]))
tok["h"] = a.vm_tok()
stamp("t")
stamp("t")
a(f"s_andn2_b64 exec, 1, {sOdd}")
a.wait_vm(tok["u"])
a(f"""ds_write_b16 v{vUZ}, v152 offset:448
s_mov_b64 exec, -1
s_waitcnt lgkmcnt(0)""")
stamp("t")
a("s_barrier")
stamp()
stamp("t")


def a_read(n):
    return f"ds_read_b128 a[{128+4*(n % 4)}:{131+4*(n % 4)}], v{vCK} offset:{64*(62-2*n)}"


def u_read(be, i):
    return f"ds_read_b128 v[{16*be+4*i}:{16*be+4*i+3}], v{vCU} offset:{512*be-128*i+384}"


NH = opt('nh', 8)
ORD = list(range(16, 28)) + list(range(16))


def h_load(i):
    g = []
    for ta in range(2):
        r = 96 + 8 * (i % NH) + 4 * ta
        g.append(f"buffer_load_dwordx4 v[{r}:{r+3}], v{vH+ta}, {rWs}, {sHoff} offen offset:{1024*(i % 4)} {HFL}")
    if i % 4 == 3:
        if ROT:
            g[-1] += "\n" + wrap(sHoff, 4096, "s11", "s10")
        else:
            g[-1] += f"\ns_add_u32 {sHoff}, {sHoff}, 4096" if i != 11 else f"\ns_sub_u32 {sHoff}, {sHoff}, {24*1024}"
    return g


put([a_read(0)] + [u_read(be, 0) for be in range(8)] + [a_read(1), a_read(2)])
FH_LOAD = f"buffer_load_dword v{vF}, v{vFH}, {rWs}, {sFHr} offen sc1"
fill = {n: [] for n in range(32)}
for i in range(1, 4):
    fill[i - 1] += [u_read(be, i) for be in range(8)]
fill[2] += [("lt", "ub")]
if XRAT:
    fill[3] += XRES
if T64:
    fill[FHW_AT] += [f"v_mul_u32_u24 v155, {FSP}, v255", ("wv", "h"),
                     f"s_mov_b64 exec, 3\nbuffer_store_dword v{vNo}, v155, {rWs}, {sFHw} offen sc1\ns_mov_b64 exec, -1"]
else:
    fill[FHW_AT] += [("wv", "h"), f"s_mov_b64 exec, 1\nbuffer_store_dword v{vNo}, v{vZ}, {rWs}, {sFHw} offen sc1\ns_mov_b64 exec, -1"]
SPR = opt('spr', 1)
vq = {n: [] for n in range(32)}
if SPR:
    assert NMV % 2 == 0
    n, at_, mv_ = (0 if NP < 9 else 1), {}, {}
    nm = 3
    for p in range(NP, 14):
        q = p - 6
        if 2 * q >= NMV:
            nm = max(nm, at_.get(q, -9) + opt('lag', 6))
            for kk in (2 * q, 2 * q + 1):
                fill[nm] += ([("wv", f"wd{kk}")] if kk % 2 == 0 else []) + wd_move(kk) + [("lt", f"mv{kk}")]
            n = max(n, nm + 1)
            nm += 1
        g = wd_pair(2 * p)
        if n > 0:
            (vq[n - 1][-1] if vq[n - 1] else fill[n - 1]).append(g[0])
        vq[n] += [([("wl", f"mv{2*q+1}")] if 2 * q >= NMV else []) + g[(n > 0):2], [g[2]]]
        vq[n + 1] += [[g[3]], [g[4], ("vt", f"wd{2*p}"), g[5]]]
        at_[p] = n
        n += 2
else:
    n = opt('mv0', 3)
    pend = [p for p in range(NP, 14) if 2 * (p - 6) + 1 < NMV]
    for k, p in enumerate(pend):
        fill[1 + k] = wd_pair(2 * p) + [("vt", f"wd{2*p}")] + fill[1 + k]
    for kk in range(NMV, 16):
        if kk % 2 == 0:
            fill[n] += [("wv", f"wd{kk}")]
        fill[n] += wd_move(kk) + [("lt", f"mv{kk}")]
        if kk % 2 == 1:
            fill[n + 2] += [("wl", f"mv{kk}")] + wd_pair(kk + 11) + [("vt", f"wd{kk+11}")]
        n += 1
YB, YW = opt('yb', 5), opt('yw', 16)
fill[FH_AT] += [FH_LOAD]
for j in range(7):
    fill[(YW, YW + 1, YW + 2, max(17, YW + 3), 21, 25, 29)[j]] += [f"ds_write_b128 v{vYW}, a[{224+4*j}:{227+4*j}] offset:{4096*((j+1) % 8)}"]
hl = [(i, g) for i in range(28) for g in h_load(i)]
for n in range(FH_POLL, 32):
    if hl[0][0] < NH:
        fill[n] += [hl.pop(0)[1]]
for P in range(8):
    for i in range(4):
        n = 4 * P + i
        if n % 4 == 0 or n in (2, 6, 10):
            stamp("c")
        if n == YB:
            a.wait_lg(ltok["ub"])
            a("s_barrier")
        if n == FH_POLL:
            poll("fh", FH_LOAD, F_CMP)
        main = []
        for be in range(8 - P):
            j = P + be
            c = "0" if n == 0 else f"a[{224+4*j}:{227+4*j}]"
            main.append(f"v_mfma_f32_16x16x32_bf16 a[{224+4*j}:{227+4*j}], a[{128+4*(n % 4)}:{131+4*(n % 4)}], v[{16*be+4*i}:{16*be+4*i+3}], {c}")
        main = [[m] for m in main]
        for k, v in enumerate(vq[n]):
            main[k * len(main) // len(vq[n])] += v
        put(pack(main, ([a_read(n + 3)] if n + 3 < 32 else []) + fill[n], 8))
stamp()
stamp("f")
put([("wv", "wd16")] + wd_read(16, 128))
a(f"ds_write_b128 v{vYW}, a[252:255]")
ltok["y7"] = a.lg_tok()
stamp()
stamp("f")

XS = lambda g, e: (80 if g < 4 else 0) + 4 * g + 2 * e
FY_LOAD = f"buffer_load_dword v{vF}, v{vN4}, {rWs}, s80 offen sc1"
fill = {k: [] for k in range(28)}
fill[0] += [("wl", "y7"), "s_barrier"]
for jj in range(2):
    r = 64 + 16 * jj
    fill[0] += [f"ds_read_b64 v[{r+4*src+2*ph}:{r+4*src+2*ph+1}], v{vYR+jj} offset:{1024*src+16*ph}"
                for src in range(4) for ph in range(2)]
    fill[1 + jj] += [f"v_add_f32 v{r+k}, v{r+k}, v{r+k+4}" for k in (0, 1, 2, 3, 8, 9, 10, 11)]
    fill[1 + jj] += [f"v_cvt_pk_bf16_f32 v{r+4+k}, v{r+o}, v{r+8+o}" for k, o in enumerate((0, 2, 1, 3))] + \
        [f"buffer_store_dwordx4 v[{r+4}:{r+7}], v{vL16}, {rWs}, {sY} offen offset:{1024*jj} sc1", ("vt", "y")]
fill[4] += lines(f"""s_lshr_b32 s74, {sjc}, 5
s_lshl_b32 s74, s74, 2
s_add_u32 s74, s74, {sw}
s_mul_i32 s74, s74, {FSP}
s_and_b32 s75, {sjc}, 31
s_lshl_b32 s75, s75, 2
s_add_u32 s74, s74, s75
s_add_u32 s95, s74, {WS_FY}""", 2)
fill[FYW_AT] += [("wv", "y"), f"s_mov_b64 exec, 1\nbuffer_store_dword v{vNo}, v{vZ}, {rWs}, s95 offen sc1\ns_mov_b64 exec, -1"]
fill[5] += lines(f"""s_lshl_b32 s80, {sc2}, 2
s_lshr_b32 s74, {sr2}, 3
s_add_u32 s80, s80, s74
s_mul_i32 s80, s80, {FSP}
s_add_u32 s80, s80, {WS_FY}
s_add_u32 s13, {sw4k}, {RX}
v_add_u32 v230, s13, v{vL16}""", 2)
fill[9] += [f"ds_write_b128 v230, v[242:245] offset:{XR}"] + lines(f"""v_mul_u32_u24 v234, 224, v{vN4}
v_lshl_add_u32 v234, v{fKG}, 4, v234""")
fill[10] += [f"ds_write_b128 v230, v[246:249] offset:{XR+1024}"] + lines(f"""v_lshlrev_b32 v231, 4, v{fR}
v_lshl_add_u32 v231, v{vN4}, 4, v231
v_lshl_add_u32 v231, v{fKG}, 3, v231""")
fill[12] += lines(f"""v_add_u32 v236, s13, v231
v_xor_b32 v237, 16, v236
v_xor_b32 v238, 32, v236
v_xor_b32 v239, 48, v236
v_mul_u32_u24 v235, {2*YS}, v{fKG}
v_add_u32 v235, v235, v{vN4}""") + [f"ds_read_b64 v[{64+2*g}:{65+2*g}], v{236+g} offset:{XR}" for g in range(4)] + [("lt", "xr")]
fill[13] += lines(f"""s_mul_i32 s74, s17, {YS//4}
s_lshl_b32 s75, s97, 2
s_add_u32 s74, s74, s75
s_add_u32 s96, s74, {WS_Y}""", 2)
fill[14] += [f"v_xor_b32 v{240+k}, {4096*k}, v230" for k in range(1, 4)]
fill[FY_AT] += [FY_LOAD]
for g in range(4):
    for e in range(2):
        fill[17 + g] += [f"v_lshlrev_b32 v{XS(g, e)}, 16, v{64+2*g+e}", f"v_and_b32 v{XS(g, e)+1}, {sMask}, v{64+2*g+e}"]
for g in range(4):
    for e in range(2):
        fill[min(27, FY_POLL + g // 2)] += [f"buffer_load_dword v{72+2*g+e}, v235, {rWs}, s96 offen sc1\ns_add_u32 s96, s96, {YS if e == 0 else 3*YS}"]
DEF = opt('def', NH)
late = []
HL0 = opt('hl0', 1)
for i in range(28):
    kk = ORD[i]
    if i % 2 == 0 and i > 0:
        stamp("h")
    if i < 14:
        stamp("j")
    extra = []
    if i + 1 < 12:
        if (kk + 1) % 2 == 0:
            extra += [("wv", f"wd{kk+1}")]
        extra += wd_read(kk + 1, 128 + 8 * ((kk + 1) % 2))
    if i == FY_POLL:
        poll("fy", FY_LOAD, F_CMP)
    main = []
    for ta in range(2):
        for da in range(2):
            acc = 16 * (da + 2 * ta)
            c = "0" if i == 0 else f"v[{acc}:{acc+15}]"
            fa = (8 * kk if kk < 16 else 128 + 8 * (kk % 2)) + 4 * da
            fb = 96 + 8 * (i % NH) + 4 * ta
            m = [f"v_mfma_f32_32x32x16_bf16 v[{acc}:{acc+15}], a[{fa}:{fa+3}], v[{fb}:{fb+3}], {c}"]
            if acc == 0 and i >= 28 - DEF:
                late.append(m)
                continue
            if hl and i >= HL0 and (da, ta) != (0, 0) and (hl[0][0] < i + NH or (hl[0][0] == i + NH and da == 1 and len(hl) % 2 == ta % 2)):
                m.append(hl.pop(0)[1])
            main.append(m)
    AB = opt('ab', '')
    fl_ = fill[i]
    if 'X' in AB:
        fl_ = [e for e in fl_ if isinstance(e, tuple) or not (" lds" in e or "v80," in e)]
    if 'Y' in AB and i == FYW_AT:
        fl_ = [e for e in fl_ if e != ("wv", "y")]
    if 'D' in AB:
        extra = [e for e in extra if not isinstance(e, tuple)]
    put(pack(main, extra + fl_, 24))
assert not hl
stamp()
stamp("f")
wr = [f"ds_write_b128 v230, v[{16*k+4*g}:{16*k+4*g+3}] offset:{(k-1)*16384+1024*g}" for k in range(1, 4) for g in range(4)]
yadd = []
for g in range(4):
    for e in range(2):
        yr, d = 72 + 2 * g + e, XS(g, e)
        yadd += [f"v_lshlrev_b32 v64, 16, v{yr}", f"v_and_b32 v65, {sMask}, v{yr}",
                 f"v_add_f32 v{d}, v{d}, v64", f"v_add_f32 v{d+1}, v{d+1}, v65"]
YIN = opt('yin', 1)
w1 = weave(late, wr[:8]) if late else wr[:8]
put(w1 + (weave(wr[8:], yadd) if YIN else wr[8:]))
stamp("f")
a("s_waitcnt lgkmcnt(0)")
stamp("f")
a("s_barrier")
stamp("f")
for g in range(4):
    for k in range(1, 4):
        a(f"ds_read_b128 v[{16*k+4*g}:{16*k+4*g+3}], v{240+k} offset:{(k-1)*16384+1024*g}")
stamp("f")
if not YIN:
    put(yadd)
stamp("f")
for g in range(4):
    for e in range(2):
        r = 4 * g + 2 * e
        for k in range(1, 4):
            a(f"v_pk_add_f32 v[{r}:{r+1}], v[{r}:{r+1}], v[{16*k+r}:{16*k+r+1}]")
        a(f"v_pk_fma_f32 v[{r}:{r+1}], v[{r}:{r+1}], v[228:229], v[{XS(g, e)}:{XS(g, e)+1}] op_sel_hi:[1,0,1]")
    a(f"v_cvt_pk_bf16_f32 v{116+2*g}, v{4*g}, v{4*g+1}\nv_cvt_pk_bf16_f32 v{117+2*g}, v{4*g+2}, v{4*g+3}")
    if g % 2 == 1:
        b = 116 + 2 * (g - 1)
        a(f"v_permlane32_swap_b32 v{b}, v{b+2}\nv_permlane32_swap_b32 v{b+1}, v{b+3}")
        a(f"buffer_store_dwordx4 v[{b}:{b+3}], v234, {rOut}, s16 offen offset:{16*(g-1)} {OUTFL}")
        stamp("f")
stamp()


def stamp_out():
    if not STAMP:
        return
    a(f"""
s_waitcnt vmcnt(0) lgkmcnt(0)
v_writelane_b32 v254, s98, {nstamp[0]-1}
{CLK} s[98:99]
s_waitcnt lgkmcnt(0)
v_writelane_b32 v254, s98, 15
s_lshl_b32 s84, s2, 2
s_add_u32 s84, s84, {sw}
s_lshl_b32 s84, s84, 6
s_add_u32 s84, s84, {WS_TS}
v_lshlrev_b32 v1, 2, v255
s_mov_b64 exec, 0xffff
buffer_store_dword v254, v1, {rWs}, s84 offen
""")


stamp_out()
a("s_endpgm")

a.reset()
NC_LOAD = f"global_load_dword v202, v203, s[{sDbg}:{sDbg+1}] sc1"
NC_CMP = "v_cmp_eq_u32 vcc, 0, v202"
shq = "s59"
a(f"""
L_helper:
s_lshl_b32 {shq}, {sxcd}, 2
s_add_u32 {shq}, {shq}, {sj}
v_mov_b32 v203, 0
v_lshrrev_b32 v1, 2, v255
s_lshl_b32 s83, {shq}, 2
s_add_u32 s83, s83, {sw}
s_lshl_b32 s72, s83, 4
v_add_u32 v4, s72, v1
v_mul_u32_u24 v5, 896, v4
v_and_b32 v2, 3, v255
v_lshl_add_u32 v5, v2, 4, v5
s_lshr_b32 s73, {sxcd}, 1
s_lshl_b32 s73, s73, 2
s_add_u32 s60, s73, {sj}
s_min_u32 s73, s60, 13
s_and_b32 s74, {sxcd}, 1
s_mul_i32 s74, s74, 14
s_add_u32 s61, s73, s74
s_lshr_b32 s73, s61, 1
s_lshl_b32 s82, s73, 8
v_lshrrev_b32 v6, 4, v255
s_lshl_b32 s75, {sw}, 2
v_add_u32 v6, s75, v6
v_mul_u32_u24 v7, 3584, v6
v_and_b32 v3, 15, v255
v_lshl_add_u32 v7, v3, 4, v7
s_mov_b32 s72, {WS_EP}
s_waitcnt lgkmcnt(0)
""")
if STAMP:
    a("v_mov_b32 v254, 0\nv_writelane_b32 v254, s100, 0")
    nstamp[0] = 1
stamp(SEL[0])
a(f"""
s_mov_b32 s36, s{sX}
s_mov_b32 s37, s{sX+1}
s_add_u32 s48, s{sWs}, {WSOFF}
s_addc_u32 s49, s{sWs+1}, 0
buffer_load_dword v202, v203, {rWs}, s72 offen sc1
""")
for i in range(14):
    a(f"buffer_load_dwordx4 v[{8+4*i}:{11+4*i}], v5, {rX}, 0 offen offset:{64*i}")
a(f"""
s_mov_b32 s73, 1664525
v_mul_lo_u32 v202, v202, s73
s_cmp_eq_u32 s83, 127
v_add_u32 v202, 1013904225, v202
v_or_b32 v202, 1, v202
s_cbranch_scc0 L_hnoep
s_mov_b64 exec, 1
""")
a.items.append(("raw", f"    global_store_dword v203, v202, s[{sDbg}:{sDbg+1}] sc1"))
a.items.append(("raw", f"    buffer_store_dword v202, v203, {rWs}, s72 offen sc1"))
a(f"""
s_mov_b64 exec, -1
L_hnoep:
s_bitcmp1_b32 s61, 0
s_cselect_b32 s40, s{sWu}, s{sWg}
s_cselect_b32 s41, s{sWu+1}, s{sWg+1}
""")
wl = [f"buffer_load_dwordx4 v[{72+4*i}:{75+4*i}], v7, {rW}, s82 offen\ns_add_u32 s82, s82, {16*3584}" for i in range(28)]
HW0 = opt('hw0', 0)
put(wl[:HW0])
wl = wl[HW0:]
a(f"""
s_mov_b32 s76, 0x3f803f80
s_mov_b32 s77, 0x00003f80
s_mov_b32 s79, 0x3f800000
""")
for _ in range(opt('dhelp', 0)):
    a("s_sleep 16")
EXACT = "--noexact" not in sys.argv
L = []
for i in range(56):
    c0, c1 = ("0", "0") if i == 0 else ("v64", "v68")
    L.append([f"v_dot2_f32_bf16 v64, v{8+i}, s76, {c0}", f"v_dot2_f32_bf16 v68, v{8+i}, v{8+i}, {c1}"])
HW1 = opt('hw1', 0)
put(L[0] + weave(L[1:], wl[:HW1]))
wl = wl[HW1:]
stamp()
a(f"""
v_add_f32_dpp v64, v64, v64 quad_perm:[1,0,3,2] row_mask:0xf bank_mask:0xf
v_add_f32_dpp v68, v68, v68 quad_perm:[1,0,3,2] row_mask:0xf bank_mask:0xf
v_lshlrev_b32 v4, 3, v4
v_add_f32_dpp v64, v64, v64 quad_perm:[2,3,0,1] row_mask:0xf bank_mask:0xf
v_add_f32_dpp v68, v68, v68 quad_perm:[2,3,0,1] row_mask:0xf bank_mask:0xf
v_mul_f32 v64, {hex(0x3b124925)}, v64
v_mul_f32 v68, {hex(0x3b124925)}, v68
v_fma_f32 v68, -v64, v64, v68
v_cvt_pk_bf16_f32 v64, -v64, -v64
v_max_f32 v68, 0, v68
v_cvt_pk_bf16_f32 v68, v68, v68
v_and_b32 v68, {sMask}, v68
v_add_f32 v68, 0x3727c5ac, v68
v_cvt_pk_bf16_f32 v68, v68, v68
v_and_b32 v68, {sMask}, v68
v_sqrt_f32 v68, v68
v_and_b32 v66, {sMask}, v64
v_cvt_pk_bf16_f32 v68, v68, v68
v_and_b32 v68, {sMask}, v68
v_rcp_f32 v70, v68
s_mov_b32 s74, {WS_ST}
v_fma_f32 v71, -v68, v70, 1.0
v_fma_f32 v70, v70, v71, v70
v_mul_f32 v65, v70, v70
v_mul_f32 v71, v66, v70
s_mov_b32 s80, 0x11111111
s_mov_b32 s81, 0x11111111
s_mov_b64 exec, s[80:81]
buffer_store_dwordx2 v[64:65], v4, {rWs}, s74 offen sc1
s_mov_b64 exec, -1
v_mul_u32_u24 v5, 960, v1
s_mul_i32 s75, {sw}, {16*960}
v_lshl_add_u32 v5, v2, 4, v5
v_add_u32 v5, s75, v5
""")
L2B = 64 * 960
L3B = L2B + 448 * 144
a(f"""
v_lshrrev_b32 v1, 5, v255
v_bfe_u32 v2, v255, 2, 2
v_lshl_add_u32 v2, v1, 3, v2
v_mul_u32_u24 v2, 960, v2
v_bfe_u32 v4, v255, 4, 1
v_lshl_add_u32 v2, v4, 5, v2
v_and_b32 v4, 3, v255
v_lshl_add_u32 v2, v4, 3, v2
v_add_u32 v194, s75, v2
v_and_b32 v4, 31, v255
v_mul_u32_u24 v4, 144, v4
s_lshl_b32 s74, {sw}, 5
s_add_u32 s74, s74, {L2B}
v_lshl_add_u32 v4, v1, 4, v4
v_add_u32 v195, s74, v4
v_lshlrev_b32 v6, 9, v6
v_lshl_add_u32 v6, v3, 5, v6
v_add_u32 v6, {L3B}, v6
v_lshrrev_b32 v1, 3, v255
v_and_b32 v2, 7, v255
v_lshlrev_b32 v2, 4, v2
v_mul_u32_u24 v197, {XTS}, v1
v_add_u32 v197, v197, v2
v_mul_u32_u24 v1, 144, v1
v_add_u32 v1, v1, v2
s_mul_i32 s74, {sw}, {112*144}
s_add_u32 s74, s74, {L2B}
v_add_u32 v196, s74, v1
s_lshl_b32 s74, {shq}, 7
s_mul_i32 s75, {sw}, {112*XTS}
s_add_u32 s74, s74, s75
s_add_u32 s62, s74, {WS_XT}
s_and_b32 s75, {sw}, 1
s_lshl_b32 s75, s75, 8
v_lshl_add_u32 v2, v255, 2, s75
v_add_u32 v198, {L3B}, v2
""")


L = []
for i in range(56):
    t = 186 + 2 * (i % 4)
    if EXACT:
        g = [f"v_dot2_f32_bf16 v{t}, v{8+i}, s77, v66", f"v_dot2_f32_bf16 v{t+1}, v{8+i}, s79, v66"]
        if i > 0:
            p = 186 + 2 * ((i - 1) % 4)
            g += [f"v_cvt_pk_bf16_f32 v{7+i}, v{p}, v{p+1}", f"v_lshlrev_b32 v{p}, 16, v{7+i}", f"v_and_b32 v{p+1}, {sMask}, v{7+i}",
                  f"v_pk_mul_f32 v[{p}:{p+1}], v[{p}:{p+1}], v[70:71] op_sel_hi:[1,0]", f"v_cvt_pk_bf16_f32 v{7+i}, v{p}, v{p+1}"]
            if i % 4 == 0:
                g.append(f"ds_write_b128 v5, v[{4+i}:{7+i}] offset:{64*(i//4-1)}")
        if i == 55:
            g += ["s_nop 0", f"v_cvt_pk_bf16_f32 v63, v{t}, v{t+1}", f"v_lshlrev_b32 v{t}, 16, v63", f"v_and_b32 v{t+1}, {sMask}, v63",
                  f"v_pk_mul_f32 v[{t}:{t+1}], v[{t}:{t+1}], v[70:71] op_sel_hi:[1,0]", f"v_cvt_pk_bf16_f32 v63, v{t}, v{t+1}",
                  f"ds_write_b128 v5, v[60:63] offset:{64*13}"]
    else:
        g = [f"v_lshlrev_b32 v{t}, 16, v{8+i}", f"v_and_b32 v{t+1}, {sMask}, v{8+i}",
             f"v_pk_fma_f32 v[{t}:{t+1}], v[{t}:{t+1}], v[70:71], v[70:71] op_sel:[0,0,1] op_sel_hi:[1,0,1]",
             f"v_cvt_pk_bf16_f32 v{8+i}, v{t}, v{t+1}"]
        if i % 4 == 3:
            g.append(f"ds_write_b128 v5, v[{8+i-3}:{8+i}] offset:{64*(i//4)}")
    L.append(g)
HW2 = opt('hw2', 10)
put(weave(L, wl[:HW2]))
wl = wl[HW2:]
stamp()
if WM == 1:
    a(f"""
s_mul_i32 s74, s83, {98*128}
v_min_u32 v199, 48, v255
v_lshlrev_b32 v199, 7, v199
v_add_u32 v199, s74, v199
global_load_dword v200, v199, s[{sWd}:{sWd+1}]
global_load_dword v201, v199, s[{sWd}:{sWd+1}] offset:{0}
""".replace("global_load_dword v201, v199, s[28:29] offset:0", f"v_add_u32 v199, {49*128}, v199\nglobal_load_dword v201, v199, s[28:29]"))
HW3 = opt('hw3', 99)
put(wl[:min(HW3, 12)])
wl2 = wl[min(HW3, 12):HW3]
wl = wl[HW3:]
for b in range(14):
    a(f"ds_read_b64_tr_b16 v[{8+4*b}:{9+4*b}], v194 offset:{64*b}\nds_read_b64_tr_b16 v[{10+4*b}:{11+4*b}], v194 offset:{64*b+4*960}")
cs = []
for i in range(28):
    for d in range(4):
        c0, c1 = ("0", "0") if i == 0 else (f"v{64+2*d}", f"v{65+2*d}")
        cs += [f"v_dot2_f32_bf16 v{64+2*d}, v{72+4*i+d}, s77, {c0}", f"v_dot2_f32_bf16 v{65+2*d}, v{72+4*i+d}, s79, {c1}"]
NC0 = opt('nc0', 0)
put(weave([f"ds_write_b128 v195, v[{8+4*b}:{11+4*b}] offset:{32*144*b}" for b in range(14)], wl2 + cs[:NC0]))
a(f"{NC_LOAD}\ns_waitcnt lgkmcnt(0)\ns_barrier")
stamp()
for b in range(14):
    a(f"ds_read_b128 v[{8+4*b}:{11+4*b}], v196 offset:{8*144*b}")
put(weave([f"buffer_store_dwordx4 v[{8+4*b}:{11+4*b}], v197, {rWs}, s62 offen sc1\ns_add_u32 s62, s62, {8*XTS}" for b in range(14)], [] if wl else cs[NC0:]))
if wl:
    put(wl + cs[NC0:])
a("""
ds_write_b128 v6, v[64:67]
ds_write_b128 v6, v[68:71] offset:16
s_waitcnt lgkmcnt(0)
s_barrier
""")
stamp()
for r in range(16):
    a(f"ds_read_b32 v{72+r}, v198 offset:{512*r}")
for st_ in (8, 4, 2, 1):
    for r in range(st_):
        a(f"v_add_f32 v{72+r}, v{72+r}, v{72+r+st_}")
a(f"""
v_cvt_pk_bf16_f32 v73, v72, v72
v_and_b32 v73, {sMask}, v73
v_sub_f32 v74, v72, v73
v_cvt_pk_bf16_f32 v73, v73, v74
v_lshlrev_b32 v2, 4, v3
v_lshrrev_b32 v1, 4, v255
v_lshl_add_u32 v2, v1, 2, v2
s_lshr_b32 s74, s61, 1
s_lshl_b32 s74, s74, 1
s_add_u32 s74, s74, {sw}
s_lshl_b32 s74, s74, 1
s_and_b32 s75, s61, 1
s_add_u32 s74, s74, s75
s_lshl_b32 s74, s74, 8
s_add_u32 s74, s74, {WS_CS}
s_cmp_lt_u32 s60, 14
s_cselect_b32 s74, s74, {WS_SIZE}
s_cmp_lt_u32 {sw}, 2
s_cselect_b32 s74, s74, {WS_SIZE}
buffer_store_dword v73, v2, {rWs}, s74 offen sc1
""")
stamp()
poll("hnc", NC_LOAD, NC_CMP)
a(f"""
v_mul_u32_u24 v1, {FSP}, v255
s_lshl_b32 s74, {shq}, 2
s_add_u32 s74, s74, {WS_FL}
s_waitcnt vmcnt(0)
s_barrier
s_cmp_eq_u32 {sw}, 0
s_cbranch_scc0 L_hdone
s_mov_b64 exec, 0xff
buffer_store_dword v202, v1, {rWs}, s74 offen sc1
s_mov_b64 exec, -1
L_hdone:
""")
stamp()
stamp_out()
a("L_end:\ns_endpgm")
for sp in slow:
    a.reset()
    a(sp)
a("L_codeend:\ns_endpgm")

body = a.render()
if opt('align', 1):
    from align import align
    body, info = align(body, opt('nopc', 50.0))
    a.stats.update(info)
here = os.path.dirname(os.path.abspath(__file__))
ref = open(os.path.join(here, "..", "cdna_kernels", NAME + ".s.ref")).read()
head = [l for l in ref.split("\n") if l.startswith(";") and "@launch" not in l and "Override" not in l and "grid=ceil" not in l]
txt = "\n".join(head) + f"""
; Generated by tools/gen.py (hand-written generator).  WSOFF={WSOFF} XTS={XTS} YS={YS} CSL=1
; @launch grid=(256,1,1) block=(256,1,1) lds=163840
.amdgcn_target "amdgcn-amd-amdhsa--gfx950"
.text
.globl {NAME}_kernel
.p2align 8
.type {NAME}_kernel,@function
{NAME}_kernel:
{body}
.section .rodata,"a"
.p2align 6
.amdhsa_kernel {NAME}_kernel
  .amdhsa_next_free_vgpr 512
  .amdhsa_next_free_sgpr 102
  .amdhsa_accum_offset 256
  .amdhsa_group_segment_fixed_size 0
  .amdhsa_kernarg_size 128
  .amdhsa_user_sgpr_count 2
  .amdhsa_user_sgpr_kernarg_segment_ptr 1
  .amdhsa_system_sgpr_workgroup_id_x 1
.end_amdhsa_kernel
"""
out = [x for x in sys.argv[1:] if not x.startswith("--")]
path = out[0] if out else os.path.join(here, "..", "cdna_kernels", NAME + ".s")
open(path, "w").write(txt)
print(path, a.stats, file=sys.stderr)
```

```python
import sys, os
sys.path.insert(0, os.path.dirname(os.path.abspath(__file__)))
from asmdsl import Asm

NAME = "parallel_sum__ssm_conv_s4__glu_gated_reglu__prompt"
STAMP = "--stamp" in sys.argv


def opt(name, dflt):
    v = [x.split('=')[1] for x in sys.argv if x.startswith('--' + name + '=')]
    return type(dflt)(v[0]) if v else dflt


WS_H, WS_XT, WS_Y = 0x0, 0x700000, 0x900000
XTS, YS = 4096 + opt('xtp', 128), 8192 + opt('yp', 128)
WS_ST, WS_CS = 0xB00000, 0xB04000
WS_FH, WS_FY, WS_FL, WS_EP = 0xB10000, 0xB20000, 0xB28000, 0xB2C000
WS_TS = 0xB30000
WS_SIZE = 0xB80000
WSOFF = opt('wsoff', 0) << 20
FSP = 1024
SLOT = [0, 16384, 32768, 49152]
XB = 32768
SC = 147456
UB = 33536
U1_OFF = 4640
U_CH = 9280
KC0, KC_CH, KC_CP = 16, 16656, 4160
YX = 32768
RX = 65536
XR = 49152
PS = [SC] + [XB + k * 16384 for k in range(2, 7)]
SPIN = 200000
C64 = "\nv_add_u32 v2, 64, v2\nv_min_u32 v2, L_codeend-L_pc-4, v2\nglobal_load_dword v229, v2, s[70:71]" if opt('c64', 0) else ''
FHW_AT, FH_AT, FH_POLL = opt('fhw', 2), opt('fh', 16), opt('fhp', 20)
FYW_AT, FY_AT, FY_POLL = opt('fyw', 6), opt('fy', 19), opt('fyp', 24)
FL_AT, FL_POLL = opt('fl', 20), opt('flp', 23)
OUTFL = 'sc1' if '--outsc1' in sys.argv else ''
SEL = opt('sel', 'a')
CV = opt('cv', 20)
PAT = opt('pat', 0)
WG = opt('wg', 4)

sX, sAre, sAim, sBre, sBim, sCre, sCim, sLdt, sDsk = 4, 6, 8, 10, 12, 14, 16, 18, 20
sWg, sWu, sWd, sOut, sDbg, sWs = 24, 26, 28, 30, 32, 34
rX, rW, rWd, rWs, rOut = "s[36:39]", "s[40:43]", "s[44:47]", "s[48:51]", "s[52:55]"
sw, sxcd, sj, sr1, sc1_, sjc, sr2, sc2, snonce = "s56", "s57", "s58", "s59", "s60", "s61", "s62", "s63", "s64"
sWoff, sWdoff, sDs, scnt = "s65", "s66", "s67", "s68"
sq, sXoff, sw4k, sWl, sMask = "s69", "s72", "s73", "s77", "s78"
sFL, stg, sUl, sUg, sH0, sH1, sKC, sHoff = "s80", "s81", "s82", "s83", "s86", "s87", "s88", "s89"
sST, sCS, sFHw, sFHr, sY = "s90", "s91", "s92", "s93", "s94"
sOdd = "s[22:23]"

vKC, vKZ, vUZ, vKX, vXR, vXD, vWD, vWF, vKL = 160, 168, 169, 170, 172, 180, 184, 188, 190
vDD, vDF, vCU, vCK, vN4, vN8, vCS, vF, vYW, vYR, vFH, vH = 200, 204, 208, 209, 210, 211, 212, 213, 214, 215, 217, 218
fC, fR, fKG, fQ, fG, vNo, vZ, vL16 = 220, 221, 222, 223, 226, 224, 225, 250

a = Asm()
slow = []
nstamp = [0]
tok, ltok = {}, {}


def stamp(kind="a"):
    if not STAMP or kind not in SEL:
        return
    k = nstamp[0]
    nstamp[0] += 1
    if k > 1:
        a.items.append(("raw", f"    v_writelane_b32 v254, s98, {k-1}"))
    a.items.append(("raw", f"    {CLK} s[98:99]"))


def poll(name, load, cmp_):
    a(cmp_)
    a(f"s_cbranch_vccnz L_slow_{name}")
    a(f"L_back_{name}:")
    slow.append(f"""L_slow_{name}:
s_mov_b32 {scnt}, 0
L_retry_{name}:
s_add_u32 {scnt}, {scnt}, 1
s_cmp_gt_u32 {scnt}, {SPIN}
s_cbranch_scc1 L_back_{name}
{load}
s_waitcnt vmcnt(0)
{cmp_}
s_cbranch_vccnz L_retry_{name}
s_branch L_back_{name}""")


def put(items):
    for e in items:
        if isinstance(e, tuple):
            if e[0] == "vt": tok[e[1]] = a.vm_tok()
            if e[0] == "lt": ltok[e[1]] = a.lg_tok()
            if e[0] == "wv": a.wait_vm(tok[e[1]])
            if e[0] == "wl": a.wait_lg(ltok[e[1]])
        else:
            a(e)


def weave(main, extra):
    nreal = sum(1 for e in extra if not isinstance(e, tuple))
    out, k, done = [], 0, 0
    for t, m in enumerate(main):
        out += m if isinstance(m, list) else [m]
        goal = -(-(nreal * (t + 1)) // len(main))
        while k < len(extra) and (isinstance(extra[k], tuple) or done < goal):
            out.append(extra[k])
            done += not isinstance(extra[k], tuple)
            k += 1
    return out


def cost(e):
    if isinstance(e, tuple):
        return 4 if e[0] in ("wv", "wl") else 0
    c = 0
    for l in e.split("\n"):
        op = l.split()[0]
        if op.startswith(("buffer_", "global_")):
            c += CV if "x4" in op else 12
        elif op.startswith("ds_write"):
            c += 28 if "b128" in op or "2_b64" in op else 14
        else:
            c += 4
    return c


def pack(main, extra, cap):
    base = [sum(cost(x) for x in m[1:]) for m in main]
    n, G = len(extra), len(main)
    cs = [cost(e) for e in extra]
    INF = 1 << 60
    best = [[INF] * (n + 1) for _ in range(G + 1)]
    frm = [[0] * (n + 1) for _ in range(G + 1)]
    best[0][0] = 0
    for g in range(G):
        for i in range(n + 1):
            if best[g][i] == INF:
                continue
            load = base[g]
            for j in range(i, n + 1):
                if j > i:
                    load += cs[j - 1]
                v = best[g][i] + 1000 * max(0, load - cap) + load * load // 16
                if v < best[g + 1][j]:
                    best[g + 1][j] = v
                    frm[g + 1][j] = i
    cuts, j = [], n
    for g in range(G, 0, -1):
        cuts.append((frm[g][j], j))
        j = frm[g][j]
    cuts.reverse()
    out = []
    for m, (i, j) in zip(main, cuts):
        out += m + extra[i:j]
    return out


def lines(txt, per=1):
    L = [l.replace(";;", "\n") for l in txt.strip().split("\n")]
    return ["\n".join(L[i:i + per]) for i in range(0, len(L), per)]


T64 = opt('t64', 1)
KA = 240 if T64 else 144
ROT = opt('rot', 0)
HFL = opt('hfl', 'sc1').replace('_', ' ').replace('none', '')


def wrap(reg, step, lim, base):
    return f"s_add_u32 {reg}, {reg}, {step}\ns_cmp_eq_u32 {reg}, {lim}\ns_cselect_b32 {reg}, {base}, {reg}"


def dma4(m0, vo, srd, soff, step, fl=""):
    g = [m0, f"buffer_load_dwordx4 v{vo}, {srd}, {soff} offen {fl} lds"]
    for i in range(1, 4):
        g.append(f"buffer_load_dwordx4 v{vo+i}, {srd}, {soff} offen offset:{1024*i} {fl} lds")
    g.append(f"s_add_u32 {soff}, {soff}, {step}")
    return g


def w_unit(u):
    return dma4(f"s_add_u32 m0, {sWl}, {SLOT[u % 4]}", vWD, rW, sWoff, 32 * 3584)


def x_block(cb):
    return dma4(f"s_add_u32 m0, {sw4k}, {XB+cb*16384}", vXD, rX, sXoff, 128)


def wd_pair(kk):
    g = dma4(f"s_add_u32 m0, {sw4k}, {PS[(kk >> 1) % 6]}", vDD, rWd, sWdoff, 32 * 896)
    if ROT and kk % 4 == 2:
        g[-1] = wrap(sWdoff, 32 * 896, "s9", "s8")
    return g


CLK = "s_memtime" if "--cyc" in sys.argv else "s_memrealtime"
if STAMP:
    a(f"{CLK} s[100:101]")
a(f"""
s_cmp_ge_u32 s2, 256
s_cbranch_scc1 L_end
s_load_dwordx16 s[4:19], s[0:1], 0
s_load_dwordx16 s[20:35], s[0:1], 64
s_getpc_b64 s[70:71]
L_pc:
s_and_b32 {sxcd}, s2, 7
s_lshr_b32 {sj}, s2, 3
v_lshrrev_b32 v1, 6, v0
v_and_b32 v255, 63, v0
v_readfirstlane_b32 {sw}, v1
""")
a(f"""
s_and_b32 {sq}, {sj}, 3
s_lshl_b32 s74, {sq}, 6
v_lshl_add_u32 v2, v1, 4, v255
v_add_u32 v2, s74, v2
v_lshlrev_b32 v2, 7, v2
v_min_u32 v2, L_codeend-L_pc-4, v2
s_mov_b64 exec, 0xffff
{"global_load_dword v253, v2, s[70:71]" + C64 if "--nocodepf" not in sys.argv else ""}
s_mov_b64 exec, -1
s_mov_b32 s38, {2048*896}
s_mov_b32 s39, 0x20000
s_mov_b32 s42, {448*3584}
s_mov_b32 s43, 0x20000
s_mov_b32 s50, {WS_SIZE}
s_mov_b32 s51, 0x20000
v_lshlrev_b32 v{vL16}, 4, v255
s_mov_b32 {sMask}, 0xffff0000
s_cmp_lt_u32 {sj}, 4
s_cbranch_scc1 L_helper
""")

a(f"""
s_sub_u32 {sj}, {sj}, 4
s_mul_i32 s74, {sxcd}, 28
s_add_u32 {sjc}, s74, {sj}
s_lshl_b32 s74, {sjc}, 10
s_lshl_b32 s75, {sw}, 8
s_add_u32 s74, s74, s75
v_lshl_add_u32 v4, v255, 2, s74
s_lshr_b32 s79, s74, 9
s_lshl_b32 s74, s79, 1
v_mov_b32 v5, s74
s_lshr_b32 {sc2}, {sj}, 2
s_lshr_b32 s74, {sxcd}, 1
s_lshl_b32 s74, s74, 2
s_add_u32 {sr1}, s74, {sq}
s_lshl_b32 {stg}, {sr1}, 2
s_add_u32 {stg}, {stg}, {sw}
s_mul_i32 {sXoff}, {stg}, {32*896}
s_lshl_b32 {sw4k}, {sw}, 12
s_and_b32 s74, {sxcd}, 1
s_mul_i32 s74, s74, 7
s_add_u32 {sc1_}, s74, {sc2}
s_lshl_b32 {sWoff}, {sc1_}, 8
s_lshr_b32 s84, {sw}, 1
s_and_b32 s85, {sw}, 1
s_lshl_b32 s74, s85, 13
s_lshl_b32 s75, s84, 12
s_add_u32 {sWl}, s74, s75
v_and_b32 v{fC}, 3, v255
v_bfe_u32 v{fR}, v255, 2, 2
v_lshrrev_b32 v{fKG}, 5, v255
v_lshrrev_b32 v{fQ}, 4, v255
v_and_b32 v{fG}, 1, v{fQ}
v_lshrrev_b32 v6, 3, v255
v_mul_u32_u24 v1, 896, v6
v_and_b32 v2, 7, v255
v_xor_b32 v2, v2, v{fQ}
v_lshl_add_u32 v{vXD}, v2, 4, v1
v_xor_b32 v{vXD+1}, 64, v{vXD}
v_add_u32 v{vXD+1}, {8*896-1024}, v{vXD+1}
v_add_u32 v{vXD+2}, {2*(8*896-1024)}, v{vXD}
v_add_u32 v{vXD+3}, {2*(8*896-1024)}, v{vXD+1}
s_lshl_b32 s74, s84, 4
v_add_u32 v1, s74, v{fR}
v_mul_u32_u24 v1, 3584, v1
v_lshl_add_u32 v1, v{fQ}, 6, v1
s_lshl_b32 s76, s85, 1
v_xor_b32 v2, s76, v{fC}
v_lshl_add_u32 v{vWD}, v2, 4, v1
v_add_u32 v{vWD+1}, {4*3584-1024}, v{vWD}
v_add_u32 v{vWD+2}, {2*(4*3584-1024)}, v{vWD}
v_add_u32 v{vWD+3}, {3*(4*3584-1024)}, v{vWD}
""")
if STAMP:
    a("v_mov_b32 v254, 0\ns_waitcnt lgkmcnt(0)\nv_writelane_b32 v254, s100, 0")
    nstamp[0] = 1
stamp(SEL[0])
a(f"""
s_waitcnt lgkmcnt(0)
global_load_ushort v134, v5, s[{sLdt}:{sLdt+1}]
global_load_dword v128, v4, s[{sAre}:{sAre+1}]
global_load_dword v129, v4, s[{sAim}:{sAim+1}]
global_load_dword v130, v4, s[{sBre}:{sBre+1}]
global_load_dword v131, v4, s[{sBim}:{sBim+1}]
global_load_dword v132, v4, s[{sCre}:{sCre+1}]
global_load_dword v133, v4, s[{sCim}:{sCim+1}]
global_load_ushort v135, v5, s[{sDsk}:{sDsk+1}]
s_mov_b32 s36, s{sX}
s_mov_b32 s37, s{sX+1}
s_bitcmp1_b32 {sw}, 0
s_cselect_b32 s40, s{sWu}, s{sWg}
s_cselect_b32 s41, s{sWu+1}, s{sWg+1}
s_cselect_b64 {sOdd}, -1, 0
""")
if "--tlb" in sys.argv:
    a(f"""
v_min_u32 v14, 5, v255
v_lshlrev_b32 v14, 21, v14
v_mov_b32 v15, 0
s_mov_b64 exec, 0x3f
global_load_dword v152, v14, s[{sWs}:{sWs+1}]
s_mov_b64 exec, 1
global_load_dword v153, v15, s[{sOut}:{sOut+1}]
global_load_dword v154, v15, s[{sWd}:{sWd+1}]
global_load_dword v155, v15, s[{sDbg}:{sDbg+1}]
s_mov_b64 exec, -1
""")
LATE = opt('late', 0)
first_dma = x_block(0) + w_unit(0) + [("vt", "u0")]
if not LATE:
    put(first_dma)
a(f"""
s_add_u32 s74, {sw4k}, {SC}
v_add_u32 v{vKX}, s74, v{vL16}
v_xor_b32 v{vKX+1}, 4096, v{vKX}
v_bfe_u32 v1, v255, 1, 2
v_lshlrev_b32 v7, 4, v1
v_lshl_add_u32 v7, v255, 6, v7
v_add_u32 v{vKL}, s74, v7
v_xor_b32 v{vKL+1}, 16, v{vKL}
v_xor_b32 v{vKL+2}, 32, v{vKL}
v_xor_b32 v{vKL+3}, 48, v{vKL}
v_lshl_add_u32 v7, v{fKG}, 3, v{fR}
v_lshlrev_b32 v7, 6, v7
v_bfe_u32 v8, v255, 1, 1
v_lshl_add_u32 v8, v{fG}, 1, v8
v_lshrrev_b32 v9, 1, v{fR}
v_xor_b32 v8, v8, v9
v_lshl_add_u32 v7, v8, 4, v7
v_and_b32 v10, 1, v255
v_lshl_add_u32 v7, v10, 3, v7
v_add_u32 v{vKL+4}, s74, v7
v_xor_b32 v{vKL+5}, 32, v{vKL+4}
v_add_u32 v{vKL+5}, 256, v{vKL+5}
s_lshl_b32 s76, s85, 5
v_xor_b32 v{vKL+6}, s76, v{vKL+4}
v_xor_b32 v{vKL+7}, s76, v{vKL+5}
v_and_b32 v11, 31, v255
v_bfe_u32 v12, v255, 1, 3
v_xor_b32 v7, v12, v{fKG}
v_lshlrev_b32 v7, 4, v7
v_lshl_add_u32 v7, v11, 7, v7
s_and_b32 s74, {sw4k}, {0x2000 if T64 else 0x3000}
s_add_u32 s74, s74, {XB}
v_add_u32 v{vXR}, s74, v7
v_xor_b32 v{vXR+1}, 32, v{vXR}
v_xor_b32 v{vXR+2}, 64, v{vXR}
v_xor_b32 v{vXR+3}, 96, v{vXR}
v_add_u32 v{vXR+4}, 0x10000, v{vXR}
v_add_u32 v{vXR+5}, 0x10000, v{vXR+1}
v_add_u32 v{vXR+6}, 0x10000, v{vXR+2}
v_add_u32 v{vXR+7}, 0x10000, v{vXR+3}
v_lshlrev_b32 v13, 3, v{fC}
v_lshl_add_u32 v13, v{fR}, 6, v13
v_mul_u32_u24 v7, {8192+32}, v{fG}
v_lshl_add_u32 v7, v{fKG}, 11, v7
s_mul_i32 s74, s85, {512 if T64 else 0}
v_add3_u32 v{vWF}, v7, v13, s74
v_xor_b32 v{vWF+1}, 32, v{vWF}
v_lshl_add_u32 v7, v{fG}, 5, v13
v_lshl_add_u32 v7, v{fKG}, 9, v7
s_lshl_b32 s74, s85, 8
s_add_u32 s74, s74, {sw4k}
s_add_u32 s74, s74, 65536
v_add_u32 v{vDF}, s74, v7
v_xor_b32 v{vDF+1}, 256, v{vDF}
v_add_u32 v{vDF+2}, 0x10000, v{vDF}
v_add_u32 v{vDF+3}, 0x10000, v{vDF+1}
s_mul_i32 s74, {sw}, 448
v_lshl_add_u32 v7, v{fKG}, 2, v{fR}
v_add_u32 v7, s74, v7
v_mul_u32_u24 v7, 896, v7
v_lshl_add_u32 v7, v{fG}, 6, v7
v_lshl_add_u32 v{vDD}, v{fC}, 4, v7
v_add_u32 v{vDD+1}, {8*896-1024}, v{vDD}
v_add_u32 v{vDD+2}, {2*(8*896-1024)}, v{vDD}
v_add_u32 v{vDD+3}, {3*(8*896-1024)}, v{vDD}
v_lshlrev_b32 v{vN4}, 2, v11
v_lshlrev_b32 v{vN8}, 3, v11
""")
setup2 = lines(f"""s_mul_i32 {sKC}, s84, {KC_CH}
s_add_u32 {sKC}, {sKC}, {KC0}
s_lshl_b32 s74, s85, 10
s_sub_u32 s74, {sKC}, s74
s_add_u32 s74, s74, {16*255-12}
v_sub_u32 v{vKC}, s74, v{vL16}
v_add_u32 v{vKC+1}, {KC_CP+4}, v{vKC}
v_add_u32 v{vKC+2}, {2*(KC_CP+4)}, v{vKC}
v_add_u32 v{vKC+3}, {3*(KC_CP+4)}, v{vKC}
v_lshlrev_b32 v7, 9, v{fKG}
v_sub_u32 v7, v{vKC}, v7
s_mul_i32 s74, s85, 1536
s_sub_u32 s74, 2560, s74
v_subrev_u32 v{vKC+4}, s74, v7
v_add_u32 v{vKC+5}, {KC_CP+4}, v{vKC+4}
v_add_u32 v{vKC+6}, {2*(KC_CP+4)}, v{vKC+4}
v_add_u32 v{vKC+7}, {3*(KC_CP+4)}, v{vKC+4}
v_and_b32 v11, 15, v255
v_mul_u32_u24 v7, {KC_CP+4}, v{fQ}
v_lshl_add_u32 v7, v11, 2, v7
v_add_u32 v{vKZ}, {sKC}, v7
v_lshlrev_b32 v7, 2, v11
v_lshlrev_b32 v{vCS}, 2, v{vN4}
{f"v_min_u32 v7, 108, v{vN4}" if T64 else "v_min_u32 v7, 52, v7"}
v_mul_u32_u24 v8, {FSP}, v{fKG if T64 else fG}
v_add_u32 v{vFH}, v7, v8
s_mul_i32 s75, s84, {U_CH}
s_add_u32 s75, s75, {UB}
s_mul_i32 s74, s85, {U1_OFF}
s_add_u32 s74, s74, s75
v_min_u32 v7, 55, v255
v_lshl_add_u32 v{vUZ}, v7, 3, s74
s_lshl_b32 s74, s85, 11
s_add_u32 {sUl}, s75, s74
s_mul_i32 {sUg}, s79, {XTS}
s_add_u32 {sUg}, {sUg}, s74
s_add_u32 {sUg}, {sUg}, {WS_XT}
v_mul_u32_u24 v7, {U1_OFF}, v10
v_lshl_add_u32 v7, v12, 6, v7
v_lshl_add_u32 v7, v{fQ}, 4, v7
s_lshl_b32 s74, s85, 6
s_sub_u32 s75, s75, s74
s_add_u32 s75, s75, {448-384}
v_add_u32 v{vCU}, s75, v7
v_mul_u32_u24 v7, {KC_CP}, v{fC}
v_sub_u32 v8, v{fQ}, v{fR}
v_lshl_add_u32 v7, v8, 4, v7
s_sub_u32 s74, {sKC}, s74
s_add_u32 s74, s74, {16*255-64*62}
v_add_u32 v{vCK}, s74, v7
s_lshl_b32 s74, {sw}, 10
s_add_u32 s74, s74, {YX}
v_add_u32 v{vYW}, s74, v{vL16}
v_lshlrev_b32 v7, 8, v1
v_lshl_add_u32 v7, v6, 5, v7
v_lshl_add_u32 v7, v10, 3, v7
s_lshl_b32 s74, {sw}, 13
s_add_u32 s75, s74, {YX+4096}
v_add_u32 v{vYR}, s75, v7
s_add_u32 s74, s74, 8192
s_and_b32 s74, s74, 0x7fff
s_add_u32 s74, s74, {YX}
v_add_u32 v{vYR+1}, s74, v7
s_mul_i32 s74, s84, {112*1024}
v_add_u32 v{vH}, s74, v{vL16}
s_sub_u32 s74, {112*1024}, s74
v_add_u32 v{vH+1}, s74, v{vL16}
v_mov_b32 v{vZ}, 0
s_lshl_b32 s74, {sxcd}, 2
s_add_u32 {sr2}, s74, {sq}
s_lshl_b32 s74, {sr2}, 1
s_add_u32 s74, s74, s84
s_lshl_b32 s97, s74, 5
s_lshl_b32 s74, {sc2}, 1
s_add_u32 s74, s74, s85
s_lshl_b32 s17, s74, 6
s_mul_i32 s74, s97, 896
s_add_u32 s16, s74, s17
v_lshrrev_b32 v7, 2, v255
v_mul_u32_u24 v7, 896, v7
v_xor_b32 v8, v{fC}, v{fQ}
v_lshl_add_u32 v227, v8, 4, v7""")
put(setup2[:opt('s2', len(setup2))])
setup2 = setup2[opt('s2', len(setup2)):]
a(f"""
v_lshlrev_b32 v134, 16, v134
v_mul_f32 v134, 0x3fb8aa3b, v134
v_exp_f32 v134, v134
v_cvt_pk_bf16_f32 v134, v134, v134
v_lshlrev_b32 v134, 16, v134
""")
stamp()

PA = [64, 96]
PB = 8
KF = [(160, 176, 192, 208), (96, 112, 128, 144) if T64 else (224, 240, 80, 96)]
R1, R8, E, T = 146, [148, 150], 0, 2
l1s = [0, 1, 2, 3, 4, 5, 6, 7, 8, 256, 258, 260, 262, 264, 512, 516, 520, 768, 772, 776,
       1024, 1032, 1280, 1288, 1536, 1544, 1792, 1800]
ra = {l: 8 + 2 * i for i, l in enumerate(l1s)}
cols = [0, 1, 2, 3, 256, 256, 258, 260, 4, 5, 6, 7, 260, 260, 262, 264,
        512, 516, 520, 1024, 768, 772, 776, 1536, 1032, 1280, 1288, 1288, 1544, 1792, 1800, 1800]


def cmul(d, x, r, t):
    return [f"v_pk_mul_f32 v[{t}:{t+1}], v[{x}:{x+1}], v[{r}:{r+1}] op_sel_hi:[1,0]",
            f"v_pk_fma_f32 v[{d}:{d+1}], v[{x}:{x+1}], v[{r}:{r+1}], v[{t}:{t+1}] op_sel:[1,1,0] op_sel_hi:[0,1,1] neg_lo:[1,0,0]"]


def k_write(ck, i, cq):
    P = (PA[ck] + 16 * i) if i < 2 else (PB + 16 * (i - 2))
    return f"ds_write_b128 v{vKL+cq}, v[{P+4*cq}:{P+4*cq+3}]"


def k_reads(ck, i):
    fr = KF[ck][i]
    base = vKL + 6 if i < 2 else vKL + 4
    return "\n".join(f"ds_read_b64_tr_b16 a[{fr+4*s+2*rd}:{fr+4*s+2*rd+1}], v{base+rd} offset:{1024*s}"
                     for s in range(4) for rd in range(2))


def kgen_head(ck):
    L = []
    un = (lambda d, s: f"v_lshlrev_b32 v{d}, 16, v{s}") if ck == 0 else (lambda d, s: f"v_and_b32 v{d}, {sMask}, v{s}")
    L += [un(136 + i, 128 + i) for i in range(6)]
    L += ["v_mul_f32 v142, v134, v136", "v_mul_f32 v143, v134, v137",
          "v_mul_f32 v142, 0x3fb8aa3b, v142", "v_mul_f32 v143, 0.15915494, v143"]

    def ev(d, l):
        s = []
        if l == 1:
            s += ["v_exp_f32 v144, v142", "v_fract_f32 v145, v143"]
        else:
            f = {8: "0x41000000", 256: "0x43800000"}[l]
            s += [f"v_mul_f32 v144, {f}, v142", f"v_mul_f32 v145, {f}, v143", "v_exp_f32 v144, v144", "v_fract_f32 v145, v145"]
        s += [f"v_cos_f32 v{d}, v145", f"v_sin_f32 v{d+1}, v145"]
        return s, f"v_pk_mul_f32 v[{d}:{d+1}], v[{d}:{d+1}], v[144:145] op_sel_hi:[1,0]"
    wm = cmul(ra[0], 140, 138, T) + [f"v_pk_mul_f32 v[{ra[0]}:{ra[0]+1}], v[{ra[0]}:{ra[0]+1}], v[134:135] op_sel_hi:[1,0]"]
    for (d, l), fill in zip(((R1, 1), (R8[ck], 8), (E, 256)), wm):
        s, last = ev(d, l)
        L += s + [fill, last]
    for l in range(1, 9):
        L += cmul(ra[l], ra[l - 1], R1, T)
    for l in l1s[9:]:
        L += cmul(ra[l], ra[l - 256], E, T)
    for k in range(16):
        c0, c1 = ra[cols[2 * k]], ra[cols[2 * k + 1]]
        L += [f"v_cvt_pk_bf16_f32 v{PA[ck]+k}, v{c0}, v{c1}", f"v_cvt_pk_bf16_f32 v{PA[ck]+16+k}, -v{c0+1}, -v{c1+1}"]
    return L


def kgen_chain(ck):
    r8 = R8[ck]
    rb = lambda j: r8 if j == 1 else 4 + 2 * (j % 2)
    B = [f"v_cvt_pk_bf16_f32 v{PB}, 1.0, v{r8}", f"v_cvt_pk_bf16_f32 v{PB+16}, 0, v{r8+1}"]
    for j in range(2, 32):
        B += cmul(rb(j), rb(j - 1), r8, T)
        if j % 2:
            B += [f"v_cvt_pk_bf16_f32 v{PB+j//2}, v{rb(j-1)}, v{rb(j)}",
                  f"v_cvt_pk_bf16_f32 v{PB+16+j//2}, v{rb(j-1)+1}, v{rb(j)+1}"]
    return B


def k_pass(ck, i):
    return [k_write(ck, i, cq) for cq in range(4)] + [k_reads(ck, i)]


def at(stream, items):
    out = []
    for i, x in enumerate(stream):
        out += [y for p, y in items if p == i]
        out.append(x)
    return out + [y for p, y in items if p >= len(stream)]


def kgen_mfma(ck):
    f = KF[ck]
    return [f"v_mfma_f32_32x32x16_bf16 a[{KA}:{KA+15}], a[{f[s>>2]+4*(s&3)}:{f[s>>2]+4*(s&3)+3}], "
            f"a[{f[2+(s>>2)]+4*(s&3)}:{f[2+(s>>2)]+4*(s&3)+3}], "
            + ("0" if (ck == 0 and s == 0) else f"a[{KA}:{KA+15}]") for s in range(8)]


XF = (lambda s, ta=0: 8 * s + 4 * ta) if T64 else (lambda s, ta=0: 4 * s)


def x_read(s, ta=0):
    cb = s >> 2
    return f"ds_read_b128 a[{XF(s, ta)}:{XF(s, ta)+3}], v{vXR + (0 if cb < 4 else 4) + (s & 3)} offset:{(cb % 4)*16384+ta*4096}"


WM = opt('wm', 0)
if WM == 0:
    warm = [f"""s_cmp_eq_u32 {sw}, 0
s_cselect_b32 s12, s{sWg}, s{sWu}
s_cselect_b32 s13, s{sWg+1}, s{sWu+1}
s_cmp_lt_u32 {sw}, 2
s_cselect_b32 s12, s12, s{sWd}
s_cselect_b32 s13, s13, s{sWd+1}
s_mul_i32 s74, {sjc}, {56*128}
v_min_u32 v251, 55, v255
v_lshl_add_u32 v251, v251, 7, s74
global_load_dword v252, v251, s[12:13]"""]
    if opt('w64', 0) == 1:
        warm += ["global_load_dword v157, v251, s[12:13] offset:64"]
    if opt('w64', 0) == 2:
        warm[0] = warm[0].replace("global_load_dword", f"s_cmp_eq_u32 {sw}, 3\ns_cselect_b32 s75, 64, 0\nv_add_u32 v251, s75, v251\nglobal_load_dword")
elif WM >= 1:
    warm = [f"""s_lshl_b32 s74, {sjc}, 1
s_add_u32 s74, s74, s84
s_mul_i32 s74, s74, 3584
v_min_u32 v251, 27, v255
v_lshlrev_b32 v251, 7, v251
s_mov_b64 exec, 0xfffffff
buffer_load_dword v252, v251, {rW}, s74 offen
s_mov_b64 exec, -1"""]
warm2 = []
if WM >= 2:
    warm2 = [f"""s_lshl_b32 s74, {sjc}, 2
s_add_u32 s74, s74, {sw}
s_mul_i32 s74, s74, {14*128}
v_lshl_add_u32 v251, v255, 7, s74
s_mov_b64 exec, 0x3fff
global_load_dword v156, v251, s[{sWd}:{sWd+1}]
s_mov_b64 exec, -1"""]
WAT = opt('wat', 0)
for _ in range(opt('dmain', 0)):
    a("s_sleep 16")
stamp("k")
early = x_block(1) + [("vt", "x1")] + w_unit(1) + [("vt", "u1")]
if LATE == 1:
    put(weave(kgen_head(0), first_dma + early))
elif LATE == 2:
    put(weave(kgen_head(0), first_dma))
    warm = early + warm
elif LATE == 3:
    put(weave(kgen_head(0), first_dma + warm))
    warm = early
else:
    put(weave(kgen_head(0), early))
stamp("k")
XRES = [f"buffer_load_dwordx4 v[242:245], v227, {rX}, s16 offen",
        f"s_add_u32 s74, s16, {16*896}\nbuffer_load_dwordx4 v[246:249], v227, {rX}, s74 offen"]
XRAT = opt('xrat', 0)
if XRAT == 0:
    warm += XRES
wA = warm if WAT == 0 else [e for e in warm if "v251" not in str(e)]
wB = [] if WAT == 0 else [e for e in warm if "v251" in str(e)]
XH = opt('xh', 0)
wA = sum((x_block(cb) + [("vt", f"x{cb}")] for cb in range(2, 2 + XH)), []) + wA if opt('xhf', 1) else \
    wA + sum((x_block(cb) + [("vt", f"x{cb}")] for cb in range(2, 2 + XH)), [])
put(weave(kgen_head(1), wA))
stamp("ak"[SEL == "k"])
RD = opt('rd', 3)
p0, p1, p2 = k_pass(0, 0), k_pass(0, 1), k_pass(0, 2)
XE = opt('xe', 0)
xe = sum((x_block(cb) + [("vt", f"x{cb}")] for cb in range(2, 2 + XE)), [])
n0 = 7 * opt('xe0', 3)
put(weave(at(kgen_chain(0), list(zip((0, 7, 14, 21, 21 + RD), p0)) + list(zip((30, 37, 44, 51, 51 + RD), p1))
             + list(zip((62, 70, 80, 92), p2))), xe[:n0] + (wB if WAT == 1 else []) + (warm2 if WM == 2 else [])))
stamp("k")
p3, q0, q1, q2 = k_pass(0, 3), k_pass(1, 0), k_pass(1, 1), k_pass(1, 2)
ch = kgen_chain(1)
put([p2[4], p3[0], p3[1]] + weave(at(ch[2:], [(0, p3[2]), (4, p3[3]), (4, ch[0]), (4, ch[1]), (4 + RD, p3[4])]
                                      + list(zip((14, 20, 26, 32, 32 + RD), q0)) + list(zip((42, 48, 54, 60, 60 + RD), q1))
                                      + list(zip((70, 76, 82, 90), q2))), xe[n0:] + (wB if WAT == 2 else []) + (warm2 if WM == 3 else [])))
stamp("ak"[SEL == "k"])
sc = lines(f"""s_lshl_b32 {sWdoff}, {sc2}, 7
s_mov_b32 s44, s{sWd}
s_mov_b32 s45, s{sWd+1}
s_mov_b32 s46, {1792*896}
s_mov_b32 s47, 0x20000
s_add_u32 s48, s{sWs}, {WSOFF};;s_addc_u32 s49, s{sWs+1}, 0
s_mov_b32 s52, s{sOut}
s_mov_b32 s53, s{sOut+1}
s_mov_b32 s54, {2048*896}
s_mov_b32 s55, 0x20000
s_mul_i32 {sFL}, {sxcd}, {FSP}
s_add_u32 {sFL}, {sFL}, {WS_FL}
s_and_b32 {stg}, {stg}, {0xfe if T64 else 0xff}
s_lshl_b32 {sST}, {stg}, 8
s_add_u32 {sST}, {sST}, {WS_ST}
s_lshl_b32 s18, {sc1_}, 1
s_add_u32 s18, s18, {"s85" if T64 else 0}
s_lshl_b32 {sCS}, s18, 9
s_add_u32 {sCS}, {sCS}, {WS_CS}
v_lshlrev_b32 v135, 16, v135""")
lp = k_pass(1, 3)
put(weave(kgen_mfma(0), [q2[4], lp[0]] + sc[:7] + [lp[1]] + sc[7:14] + [lp[2]] + sc[14:]
          + ([lp[3], lp[4], ("wv", "x1")] if T64 else [lp[3], ("wv", "u0")] + [x_read(s) for s in range(4)] + [lp[4]])))
stamp("k")
a("s_waitcnt lgkmcnt(0)")
stamp("k")
a("s_barrier")
stamp("ak"[SEL == "k"])

fillg = {s: [] for s in range(28)}
fillg[2] += lines(f"""v_readfirstlane_b32 {sDs}, v135
s_mul_i32 {sH0}, {stg}, {112*1024}
s_lshl_b32 s74, s18, 12
s_add_u32 {sH0}, {sH0}, s74
s_add_u32 {sH1}, {sH0}, {112*1024 if T64 else 4096}
s_mul_i32 s74, {stg}, {FSP}
s_lshl_b32 s75, s18, {2 if T64 else 1}
s_add_u32 s74, s74, s75
s_add_u32 {sFHw}, s74, {WS_FH}""")
fillg[3] += [f"v_accvgpr_read_b32 v{128+r}, a{KA+r}" for r in range(8)]
fillg[6] += [f"v_accvgpr_read_b32 v148, a{KA+13}", f"v_accvgpr_read_b32 v149, a{KA+14}",
             "v_add_f32 v148, v148, v145", "v_add_f32 v149, v149, v146"]
fillg[2] += []
fillg[4] += [f"ds_read_b128 v[136:139], v{vKX+1}", f"ds_read_b128 v[140:143], v{vKX+1} offset:1024",
             f"ds_read_b128 v[144:147], v{vKX+1} offset:2048", ("lt", "kr")]
fillg[5] += lines(f"""s_mul_i32 {sFHr}, {sr2}, {2*FSP}
s_add_u32 {sFHr}, {sFHr}, {WS_FH}
s_mul_i32 {sHoff}, {sr2}, {2*112*1024}
s_mul_i32 s74, {sw}, {28*1024}
s_add_u32 {sHoff}, {sHoff}, s74
s_add_u32 {sHoff}, {sHoff}, {16*1024}""")
fillg[7] += [f"v_add_f32 v{128+r}, v{128+r}, v{136+r}" for r in range(8)]
fillg[9] += lines(f"""v_cmp_eq_u32 vcc, 0, v255
v_mov_b32 v140, {sDs}
v_cndmask_b32 v148, v148, v131, {sOdd}
v_cndmask_b32 v149, v149, v132, {sOdd}
v_cndmask_b32 v140, 0, v140, vcc
v_add_f32 v140, v128, v140""")
fillg[11] += lines(f"""s_mov_b32 s74, 0xaaaaaaaa
s_mov_b32 s75, 0xaaaaaaaa
v_cvt_pk_bf16_f32 v144, v149, v149
v_cndmask_b32 v141, v148, v149, s[74:75]
v_cvt_pk_bf16_f32 v146, v148, v148
v_cvt_pk_bf16_f32 v147, v148, v148
v_cvt_pk_bf16_f32 v145, v149, v141""")
fillg[13] += lines(f"""v_cvt_pk_bf16_f32 v136, v135, v134
v_cvt_pk_bf16_f32 v137, v133, v132
v_cvt_pk_bf16_f32 v138, v131, v130
v_cvt_pk_bf16_f32 v139, v129, v140
v_cvt_pk_bf16_f32 v140, v130, v130
v_cvt_pk_bf16_f32 v141, v129, v129
v_cvt_pk_bf16_f32 v142, v129, v128
v_cvt_pk_bf16_f32 v143, v128, v128""")
fillg[15] += [f"v_cndmask_b32 v{136+r}, v{136+r}, v{140+r}, {sOdd}" for r in range(4)]
fillg[17] += lines(f"""s_mul_i32 {sY}, {sjc}, {YS}
s_lshl_b32 s74, {sw}, 11
s_add_u32 {sY}, {sY}, s74
s_add_u32 {sY}, {sY}, {WS_Y}""")
fillg[19] += [f"v_mov_b32 v{r}, 0" for r in (190, 191, 193, 194)]
fillg[21] += [f"v_mov_b32 v{r}, 0" for r in (195, 196, 198, 199)]


def wd_read(kk, r):
    off = PS[(kk >> 1) % 6] - 65536 + (kk & 1) * 2048
    base = vDF if off < 65536 else vDF + 2
    return [f"ds_read_b64_tr_b16 a[{r+4*da+2*rd}:{r+4*da+2*rd+1}], v{base+da} offset:{off % 65536+rd*1024}"
            for da in range(2) for rd in range(2)]


def wd_move(kk):
    return wd_read(kk, 8 * kk)


def wfrag_read(s, t, r):
    off = SLOT[(s >> 1) % 4] + (s & 1) * 4096 + (t >> 1) * 256
    return [f"ds_read_b64_tr_b16 a[{r+2*rd}:{r+2*rd+1}], v{vWF+(t & 1)} offset:{off+rd*1024}" for rd in range(2)]


WF = (lambda t: 224 + 4 * t) if T64 else (lambda t: 112 + 4 * t)
if T64:
    rd = [x_read(s, ta) for s in range(8) for ta in range(2)] + [("lt", "x1")] + sum((wfrag_read(0, t, WF(t)) for t in range(4)), [])
    put(pack([[m] for m in kgen_mfma(1)], rd + fillg[2], 24))
    put([("wl", "x1"), "s_barrier"] + w_unit(2) + [("vt", "u2")])
else:
    put(pack([[m] + wfrag_read(0, t, WF(t)) for t, m in enumerate(kgen_mfma(1))], w_unit(2) + [("vt", "u2")] + fillg[2], 24))
fillg[2] = []
X20 = opt('x20', 1)
if XE == 0 and XH == 0 and not X20:
    put(x_block(2) + [("vt", "x2")])
put([f"ds_write_b128 v{vKX}, a[{KA+8}:{KA+11}]", f"ds_write_b128 v{vKX}, a[{KA+12}:{KA+15}] offset:1024",
     f"ds_write_b128 v{vKX}, a[{KA+4}:{KA+7}] offset:2048", ("lt", "kx")])
stamp("k")

FL_LOAD = f"buffer_load_dword v{vF}, v{vN4}, {rWs}, {sFL} offen sc1"
F_CMP = f"v_cmp_ne_u32 vcc, {snonce}, v{vF}"
NC_LOAD = f"global_load_dword v{vNo}, v{vZ}, s[{sDbg}:{sDbg+1}] sc1"
NC_CMP = f"v_cmp_eq_u32 vcc, 0, v{vNo}"
if XE == 5:
    XD = {}
    XRD = {1: 2, 2: 3, 3: 4, 4: 5, 5: 6}
    NP = opt('np', 11)
    WDD = dict(zip([4, 6, 8, 10, 12, 14, 16, 18, 20, 22, 24][:NP], range(NP)))
    PSORD = {0: "x2", 1: "x3", 2: "x4", 3: "x5", 4: "x6", 5: None}
    PS[:] = PS[1:] + PS[:1]
    MV = dict(zip([9, 10, 11, 12, 13, 14, 15, 17, 19, 20, 22, 24][:opt('nmv', 2 * (NP - 5))], range(12)))
else:
    XD = {s: 2 + s // 2 for s in ((0,) if X20 else ()) + (2, 4, 6, 8)}
    XRD = {s: s // 2 for s in (4, 6, 8, 10, 12)}
    NP = opt('np', 8)
    WDD = dict(zip([int(c) for c in opt('wdd', '10,12,14,16,18,20,22,24').split(',')][:NP], range(NP)))
    PSORD = {0: None, 1: "x2", 2: "x3", 3: "x4", 4: "x5", 5: "x6"}
    MV = {s: s - 14 for s in range(14, 14 + opt('nmv', 8))}
if XH:
    left = list(range(2 + XH, 7))
    XD = {2 * k: cb for k, cb in enumerate(left)}
    XRD = {1 + k: 2 + k for k in range(XH)}
    XRD.update({2 * k + 4: cb for k, cb in enumerate(left)})
    w0 = max(6, 2 * len(left)) + opt('wsh', 0)
    NP = opt('np', 9)
    WDD = dict(zip(list(range(w0, 25, 2)) + [23], range(NP)))
    assert len(WDD) == NP and sorted(WDD) == sorted(WDD, key=WDD.get) or True
    order = sorted(WDD)
    WDD = dict(zip(order, range(NP)))
    MV, t_ = {}, 0
    for kk in range(opt('nmv', 2 * (NP - 5))):
        t_ = max(t_ + 1, order[kk >> 1] + 4, 2 * kk + 2)
        MV[t_] = kk
    assert max(MV) <= 24
    for p_ in range(6, NP):
        assert order[p_] > [k for k, v in MV.items() if v == 2 * (p_ - 6) + 1][0], (p_, order, MV)
    for p_ in range(1, 6):
        assert order[p_] > [k for k, v in XRD.items() if v == p_ + 1][0]
MV = {k: [v] for k, v in MV.items()}
if opt('mvp', 6 if T64 else 0):
    MV = {14 + 2 * q + opt('mvo', 0): [2 * q, 2 * q + 1] for q in range(opt('mvp', 6 if T64 else 0))}
NMV = sum(len(v) for v in MV.values())
carry, pre = [], []
DG = opt('dg', 1)
for s in range(25):
    if s % 2 == 0 and s > 0:
        stamp("g")
    if 1 <= s <= 4:
        stamp("k")
    if s == opt('dat', -1):
        a("s_sleep 16\ns_sleep 16")
    extra, dma = [], None
    if s % 2 == 1:
        u = (s + 1) // 2
        lt = {1: "kx" if T64 else "x1", 5: "kr"}.get(s)
        a.wait_both(tok[f"u{u}"], ltok[lt] if lt else None)
        a("s_barrier")
        if u + 2 < 14:
            dma = ([], w_unit(u + 2), f"u{u+2}")
    if T64 and 5 <= s <= 14:
        extra += [x_read(k, ta) for k in (2 * s - 2, 2 * s - 1) for ta in range(2)]
    if s == 0 and not T64:
        extra += [("wv", "x1")] + [x_read(k) for k in range(4, 8)] + [("lt", "x1")]
    if s in XD:
        dma = ([], x_block(XD[s]), f"x{XD[s]}")
    if s in XRD and not T64:
        cb = XRD[s]
        extra += [("wv", f"x{cb}")] + [x_read(k) for k in range(4 * cb, 4 * cb + 4)] + [("lt", f"x{cb}")]
    if s in WDD:
        p = WDD[s]
        need = (None if T64 else PSORD[p]) if p < 6 else f"mv{2*(p-6)+1}"
        dma = ([("wl", need)] if need else [], wd_pair(2 * p), f"wd{2*p}")
    for kk in MV.get(s, []):
        assert s >= (kk + 1 if T64 else 2 * kk + 2)
        if kk % 2 == 0:
            extra += [("wv", f"wd{kk}")]
        extra += wd_move(kk) + [("lt", f"mv{kk}")]
    if s == 12:
        extra += [NC_LOAD]
    if s == 16:
        poll("nc", NC_LOAD, NC_CMP)
        a(f"v_readfirstlane_b32 {snonce}, v{vNo}")
    if s == FL_AT:
        extra += [FL_LOAD]
    if s == FL_POLL:
        poll("fl", FL_LOAD, F_CMP)
        extra += [f"buffer_load_dword v{vF}, v{vN8}, {rWs}, {sST} offen sc1",
                  f"s_lshl_b32 s74, s97, 3\ns_add_u32 s74, s74, {WS_ST+4}\nbuffer_load_dword v228, v{vN8}, {rWs}, s74 offen sc1"]
        if T64:
            extra += [f"buffer_load_dwordx4 v[156:159], v{vCS}, {rWs}, {sCS} offen sc1",
                      f"buffer_load_dword v154, v{vN8}, {rWs}, {sST} offen offset:256 sc1"]
        else:
            extra += [f"buffer_load_dwordx4 a[{160+4*t}:{163+4*t}], v{vCS}, {rWs}, {sCS} offen offset:{512*t} sc1" for t in range(2)]
    extra += fillg[s]
    AB = opt('ab', '')
    if dma and (('x' in AB and dma[2][0] == 'x') or ('w' in AB and dma[2][0] == 'w') or ('u' in AB and dma[2][0] == 'u')):
        dma = (dma[0], ["s_nop 0"] * 6, dma[2])
    main = []
    for t in range(8):
        tl, ta = (t >> 1, t & 1) if T64 else (t, 0)
        j = 4 * ta + tl if T64 else t
        if t % WG == 0 and s > 0:
            (main[-1] if main else pre).append(("wl", f"f{(t+WG-1) >> T64}"))
        c = "0" if s == 0 else f"v[{16*j}:{16*j+15}]"
        m = [f"v_mfma_f32_32x32x16_bf16 v[{16*j}:{16*j+15}], a[{WF(tl)}:{WF(tl)+3}], a[{XF(s, ta)}:{XF(s, ta)+3}], {c}"]
        if dma and t == 0:
            m += dma[0] + [dma[1][0]]
        if not T64 or ta == 1:
            m += wfrag_read(s + 1, tl, WF(tl)) + [("lt", f"f{tl}")]
        if dma and (t % 2 == 0 and t > 0 or t == 1 if T64 and DG else t % 2 == 1):
            k = (t // 2 if t > 1 else 0) if T64 and DG else t // 2
            m.append(dma[1][1 + k])
            if k == 3:
                m += [("vt", dma[2]), dma[1][5]]
        main.append(m)
    if s == 24 and opt('b13', 1):
        main[4] += [("wv", "u13"), "s_barrier"]
        main[6] += wfrag_read(26, 0, 144 if T64 else 168)
        main[7] += wfrag_read(27, 0, 148 if T64 else 172)
    put(pre + pack(main, extra, 24))
    pre = []
stamp("g")
TF = 144 if T64 else 168
if not opt('b13', 1):
    a.wait_vm(tok["u13"])
    a("s_barrier")
    put(wfrag_read(26, 0, TF) + wfrag_read(27, 0, TF + 4))
first = [f"v_cmp_gt_u32 vcc, 32, v255", "v_mov_b32 v152, 0", "v_mov_b32 v153, 0",
         f"s_add_u32 m0, {sUl}, {U1_OFF+448}", f"buffer_load_dwordx4 v{vL16}, {rWs}, {sUg} offen sc1 lds",
         f"buffer_load_dwordx4 v{vL16}, {rWs}, {sUg} offen offset:1024 sc1 lds",
         f"v_cndmask_b32 v192, 0, v{vF}, vcc\nv_cndmask_b32 v197, 0, v{vF}, vcc"]
second = [f"s_sub_u32 {sUg}, {sUg}, 2\ns_add_u32 m0, {sUl}, 448", f"buffer_load_dwordx4 v{vL16}, {rWs}, {sUg} offen sc1 lds",
          f"buffer_load_dwordx4 v{vL16}, {rWs}, {sUg} offen offset:1024 sc1 lds", ("vt", "u")]
main, epi = [], []
for t in range(8):
    r = TF + 8 * (t % 2)
    cb = (192, 196, 190, 194)[t & 3]
    tl, ta = (t & 3, t >> 2) if T64 else (t, 0)
    xf = lambda s: f"a[{XF(s, ta)}:{XF(s, ta)+3}]"
    ops = [(f"a[{WF(tl)}:{WF(tl)+3}]", xf(25)), (f"a[{r}:{r+3}]", xf(26)), (f"a[{r+4}:{r+7}]", xf(27)),
           ("v[156:159]" if T64 else f"a[{160+(t & 4)}:{163+(t & 4)}]", f"v[{cb}:{cb+3}]")]
    for k, (A, B) in enumerate(ops):
        m = [f"v_mfma_f32_32x32x16_bf16 v[{16*t}:{16*t+15}], {A}, {B}, v[{16*t}:{16*t+15}]"]
        if t < 7 and k in (0, 1):
            m += wfrag_read(26 + k, (t + 1) & (3 if T64 else 7), TF + 8 * ((t + 1) % 2) + 4 * k)
        if T64 and t == 4 and k == 0:
            m += ["v_cndmask_b32 v192, 0, v154, vcc", "v_cndmask_b32 v197, 0, v154, vcc"]
        main.append(m)
    b = 16 * t
    L = [f"v_max_f32 v{b+r}, 0, v{b+r}" for r in range(8)]
    if t < 6:
        L += [f"v_mul_f32 v{b+r}, v{b+r}, v{b+8+r}" for r in range(8)]
    else:
        L += [f"v_pk_mul_f32 v[{b+r}:{b+r+1}], v[{b+r}:{b+r+1}], v[{b+8+r}:{b+9+r}]" for r in range(0, 8, 2)]
    L += [f"v_cvt_pk_bf16_f32 v{b+8+r}, v{b+2*r}, v{b+2*r+1}" for r in range(4)]
    L += [f"buffer_store_dwordx4 v[{b+8}:{b+11}], v{vL16}, {rWs}, {(sH0, sH1)[t >> 2]} offen offset:{1024*(t & 3)} sc1"]
    epi.append(L)
stamp("t")
if opt('usp', 1):
    main[0] += first[:5]
    main[1] += [first[1 + 5]]
    main[2] += [first[5]]
    main[3] += second[:1]
    main[4] += second[1:2]
    main[6] += second[2:]
    put(sum(main[:6], []))
else:
    put(pack(main[:3], first, 24) + pack(main[3:6], second, 24))
for t in range(6):
    stamp("t")
    put(pack(main[4 * t + 6:4 * t + 10], epi[t], 24))
stamp("t")
put(pack(main[30:], epi[6][:8], 24))
rest = epi[6][8:] + epi[7]
stamp()
stamp("t")
a("s_barrier")
stamp("t")


def octet_writes(d, ar, off):
    return [f"ds_write_b128 v{ar+3}, v[{d}:{d+3}] offset:{off}",
            f"ds_write2_b64 v{ar+1}, v[{d}:{d+1}], v[{d+2}:{d+3}] offset0:{off//8} offset1:{off//8+1}"] + \
           [f"ds_write2_b32 v{ar+c}, v{d+k}, v{d+k+1} offset0:{off//4+k} offset1:{off//4+k+1}" for c in (0, 2) for k in (0, 2)]


put(weave(rest, octet_writes(136, vKC, 0) + octet_writes(144, vKC + 4, 0)
          + [f"ds_write_b32 v{vKZ}, v152 offset:{4096-12}", f"ds_write_b64 v{vUZ}, v[152:153]"]))
tok["h"] = a.vm_tok()
stamp("t")
stamp("t")
a(f"s_andn2_b64 exec, 1, {sOdd}")
a.wait_vm(tok["u"])
a(f"""ds_write_b16 v{vUZ}, v152 offset:448
s_mov_b64 exec, -1
s_waitcnt lgkmcnt(0)""")
stamp("t")
a("s_barrier")
stamp()
stamp("t")


def a_read(n):
    return f"ds_read_b128 a[{128+4*(n % 4)}:{131+4*(n % 4)}], v{vCK} offset:{64*(62-2*n)}"


def u_read(be, i):
    return f"ds_read_b128 v[{16*be+4*i}:{16*be+4*i+3}], v{vCU} offset:{512*be-128*i+384}"


NH = opt('nh', 8)
ORD = list(range(16, 28)) + list(range(16))


def h_load(i):
    g = []
    for ta in range(2):
        r = 96 + 8 * (i % NH) + 4 * ta
        g.append(f"buffer_load_dwordx4 v[{r}:{r+3}], v{vH+ta}, {rWs}, {sHoff} offen offset:{1024*(i % 4)} {HFL}")
    if i % 4 == 3:
        if ROT:
            g[-1] += "\n" + wrap(sHoff, 4096, "s11", "s10")
        else:
            g[-1] += f"\ns_add_u32 {sHoff}, {sHoff}, 4096" if i != 11 else f"\ns_sub_u32 {sHoff}, {sHoff}, {24*1024}"
    return g


put([a_read(0)] + [u_read(be, 0) for be in range(8)] + [a_read(1), a_read(2)])
FH_LOAD = f"buffer_load_dword v{vF}, v{vFH}, {rWs}, {sFHr} offen sc1"
fill = {n: [] for n in range(32)}
for i in range(1, 4):
    fill[i - 1] += [u_read(be, i) for be in range(8)]
fill[2] += [("lt", "ub")]
if XRAT:
    fill[3] += XRES
if T64:
    fill[FHW_AT] += [f"v_mul_u32_u24 v155, {FSP}, v255", ("wv", "h"),
                     f"s_mov_b64 exec, 3\nbuffer_store_dword v{vNo}, v155, {rWs}, {sFHw} offen sc1\ns_mov_b64 exec, -1"]
else:
    fill[FHW_AT] += [("wv", "h"), f"s_mov_b64 exec, 1\nbuffer_store_dword v{vNo}, v{vZ}, {rWs}, {sFHw} offen sc1\ns_mov_b64 exec, -1"]
SPR = opt('spr', 1)
vq = {n: [] for n in range(32)}
if SPR:
    assert NMV % 2 == 0
    n, at_, mv_ = (0 if NP < 9 else 1), {}, {}
    nm = 3
    for p in range(NP, 14):
        q = p - 6
        if 2 * q >= NMV:
            nm = max(nm, at_.get(q, -9) + opt('lag', 6))
            for kk in (2 * q, 2 * q + 1):
                fill[nm] += ([("wv", f"wd{kk}")] if kk % 2 == 0 else []) + wd_move(kk) + [("lt", f"mv{kk}")]
            n = max(n, nm + 1)
            nm += 1
        g = wd_pair(2 * p)
        if n > 0:
            (vq[n - 1][-1] if vq[n - 1] else fill[n - 1]).append(g[0])
        vq[n] += [([("wl", f"mv{2*q+1}")] if 2 * q >= NMV else []) + g[(n > 0):2], [g[2]]]
        vq[n + 1] += [[g[3]], [g[4], ("vt", f"wd{2*p}"), g[5]]]
        at_[p] = n
        n += 2
else:
    n = opt('mv0', 3)
    pend = [p for p in range(NP, 14) if 2 * (p - 6) + 1 < NMV]
    for k, p in enumerate(pend):
        fill[1 + k] = wd_pair(2 * p) + [("vt", f"wd{2*p}")] + fill[1 + k]
    for kk in range(NMV, 16):
        if kk % 2 == 0:
            fill[n] += [("wv", f"wd{kk}")]
        fill[n] += wd_move(kk) + [("lt", f"mv{kk}")]
        if kk % 2 == 1:
            fill[n + 2] += [("wl", f"mv{kk}")] + wd_pair(kk + 11) + [("vt", f"wd{kk+11}")]
        n += 1
YB, YW = opt('yb', 5), opt('yw', 16)
fill[FH_AT] += [FH_LOAD]
for j in range(7):
    fill[(YW, YW + 1, YW + 2, max(17, YW + 3), 21, 25, 29)[j]] += [f"ds_write_b128 v{vYW}, a[{224+4*j}:{227+4*j}] offset:{4096*((j+1) % 8)}"]
hl = [(i, g) for i in range(28) for g in h_load(i)]
for n in range(FH_POLL, 32):
    if hl[0][0] < NH:
        fill[n] += [hl.pop(0)[1]]
for P in range(8):
    for i in range(4):
        n = 4 * P + i
        if n % 4 == 0 or n in (2, 6, 10):
            stamp("c")
        if n == YB:
            a.wait_lg(ltok["ub"])
            a("s_barrier")
        if n == FH_POLL:
            poll("fh", FH_LOAD, F_CMP)
        main = []
        for be in range(8 - P):
            j = P + be
            c = "0" if n == 0 else f"a[{224+4*j}:{227+4*j}]"
            main.append(f"v_mfma_f32_16x16x32_bf16 a[{224+4*j}:{227+4*j}], a[{128+4*(n % 4)}:{131+4*(n % 4)}], v[{16*be+4*i}:{16*be+4*i+3}], {c}")
        main = [[m] for m in main]
        for k, v in enumerate(vq[n]):
            main[k * len(main) // len(vq[n])] += v
        put(pack(main, ([a_read(n + 3)] if n + 3 < 32 else []) + fill[n], 8))
stamp()
stamp("f")
put([("wv", "wd16")] + wd_read(16, 128))
a(f"ds_write_b128 v{vYW}, a[252:255]")
ltok["y7"] = a.lg_tok()
stamp()
stamp("f")

XS = lambda g, e: (80 if g < 4 else 0) + 4 * g + 2 * e
FY_LOAD = f"buffer_load_dword v{vF}, v{vN4}, {rWs}, s80 offen sc1"
fill = {k: [] for k in range(28)}
fill[0] += [("wl", "y7"), "s_barrier"]
for jj in range(2):
    r = 64 + 16 * jj
    fill[0] += [f"ds_read_b64 v[{r+4*src+2*ph}:{r+4*src+2*ph+1}], v{vYR+jj} offset:{1024*src+16*ph}"
                for src in range(4) for ph in range(2)]
    fill[1 + jj] += [f"v_add_f32 v{r+k}, v{r+k}, v{r+k+4}" for k in (0, 1, 2, 3, 8, 9, 10, 11)]
    fill[1 + jj] += [f"v_cvt_pk_bf16_f32 v{r+4+k}, v{r+o}, v{r+8+o}" for k, o in enumerate((0, 2, 1, 3))] + \
        [f"buffer_store_dwordx4 v[{r+4}:{r+7}], v{vL16}, {rWs}, {sY} offen offset:{1024*jj} sc1", ("vt", "y")]
fill[4] += lines(f"""s_lshr_b32 s74, {sjc}, 5
s_lshl_b32 s74, s74, 2
s_add_u32 s74, s74, {sw}
s_mul_i32 s74, s74, {FSP}
s_and_b32 s75, {sjc}, 31
s_lshl_b32 s75, s75, 2
s_add_u32 s74, s74, s75
s_add_u32 s95, s74, {WS_FY}""", 2)
fill[FYW_AT] += [("wv", "y"), f"s_mov_b64 exec, 1\nbuffer_store_dword v{vNo}, v{vZ}, {rWs}, s95 offen sc1\ns_mov_b64 exec, -1"]
fill[5] += lines(f"""s_lshl_b32 s80, {sc2}, 2
s_lshr_b32 s74, {sr2}, 3
s_add_u32 s80, s80, s74
s_mul_i32 s80, s80, {FSP}
s_add_u32 s80, s80, {WS_FY}
s_add_u32 s13, {sw4k}, {RX}
v_add_u32 v230, s13, v{vL16}""", 2)
fill[9] += [f"ds_write_b128 v230, v[242:245] offset:{XR}"] + lines(f"""v_mul_u32_u24 v234, 224, v{vN4}
v_lshl_add_u32 v234, v{fKG}, 4, v234""")
fill[10] += [f"ds_write_b128 v230, v[246:249] offset:{XR+1024}"] + lines(f"""v_lshlrev_b32 v231, 4, v{fR}
v_lshl_add_u32 v231, v{vN4}, 4, v231
v_lshl_add_u32 v231, v{fKG}, 3, v231""")
fill[12] += lines(f"""v_add_u32 v236, s13, v231
v_xor_b32 v237, 16, v236
v_xor_b32 v238, 32, v236
v_xor_b32 v239, 48, v236
v_mul_u32_u24 v235, {2*YS}, v{fKG}
v_add_u32 v235, v235, v{vN4}""") + [f"ds_read_b64 v[{64+2*g}:{65+2*g}], v{236+g} offset:{XR}" for g in range(4)] + [("lt", "xr")]
fill[13] += lines(f"""s_mul_i32 s74, s17, {YS//4}
s_lshl_b32 s75, s97, 2
s_add_u32 s74, s74, s75
s_add_u32 s96, s74, {WS_Y}""", 2)
fill[14] += [f"v_xor_b32 v{240+k}, {4096*k}, v230" for k in range(1, 4)]
fill[FY_AT] += [FY_LOAD]
for g in range(4):
    for e in range(2):
        fill[17 + g] += [f"v_lshlrev_b32 v{XS(g, e)}, 16, v{64+2*g+e}", f"v_and_b32 v{XS(g, e)+1}, {sMask}, v{64+2*g+e}"]
for g in range(4):
    for e in range(2):
        fill[min(27, FY_POLL + g // 2)] += [f"buffer_load_dword v{72+2*g+e}, v235, {rWs}, s96 offen sc1\ns_add_u32 s96, s96, {YS if e == 0 else 3*YS}"]
DEF = opt('def', NH)
late = []
HL0 = opt('hl0', 1)
for i in range(28):
    kk = ORD[i]
    if i % 2 == 0 and i > 0:
        stamp("h")
    if i < 14:
        stamp("j")
    extra = []
    if i + 1 < 12:
        if (kk + 1) % 2 == 0:
            extra += [("wv", f"wd{kk+1}")]
        extra += wd_read(kk + 1, 128 + 8 * ((kk + 1) % 2))
    if i == FY_POLL:
        poll("fy", FY_LOAD, F_CMP)
    main = []
    for ta in range(2):
        for da in range(2):
            acc = 16 * (da + 2 * ta)
            c = "0" if i == 0 else f"v[{acc}:{acc+15}]"
            fa = (8 * kk if kk < 16 else 128 + 8 * (kk % 2)) + 4 * da
            fb = 96 + 8 * (i % NH) + 4 * ta
            m = [f"v_mfma_f32_32x32x16_bf16 v[{acc}:{acc+15}], a[{fa}:{fa+3}], v[{fb}:{fb+3}], {c}"]
            if acc == 0 and i >= 28 - DEF:
                late.append(m)
                continue
            if hl and i >= HL0 and (da, ta) != (0, 0) and (hl[0][0] < i + NH or (hl[0][0] == i + NH and da == 1 and len(hl) % 2 == ta % 2)):
                m.append(hl.pop(0)[1])
            main.append(m)
    AB = opt('ab', '')
    fl_ = fill[i]
    if 'X' in AB:
        fl_ = [e for e in fl_ if isinstance(e, tuple) or not (" lds" in e or "v80," in e)]
    if 'Y' in AB and i == FYW_AT:
        fl_ = [e for e in fl_ if e != ("wv", "y")]
    if 'D' in AB:
        extra = [e for e in extra if not isinstance(e, tuple)]
    put(pack(main, extra + fl_, 24))
assert not hl
stamp()
stamp("f")
wr = [f"ds_write_b128 v230, v[{16*k+4*g}:{16*k+4*g+3}] offset:{(k-1)*16384+1024*g}" for k in range(1, 4) for g in range(4)]
yadd = []
for g in range(4):
    for e in range(2):
        yr, d = 72 + 2 * g + e, XS(g, e)
        yadd += [f"v_lshlrev_b32 v64, 16, v{yr}", f"v_and_b32 v65, {sMask}, v{yr}",
                 f"v_add_f32 v{d}, v{d}, v64", f"v_add_f32 v{d+1}, v{d+1}, v65"]
YIN = opt('yin', 1)
w1 = weave(late, wr[:8]) if late else wr[:8]
put(w1 + (weave(wr[8:], yadd) if YIN else wr[8:]))
stamp("f")
a("s_waitcnt lgkmcnt(0)")
stamp("f")
a("s_barrier")
stamp("f")
for g in range(4):
    for k in range(1, 4):
        a(f"ds_read_b128 v[{16*k+4*g}:{16*k+4*g+3}], v{240+k} offset:{(k-1)*16384+1024*g}")
stamp("f")
if not YIN:
    put(yadd)
stamp("f")
for g in range(4):
    for e in range(2):
        r = 4 * g + 2 * e
        for k in range(1, 4):
            a(f"v_pk_add_f32 v[{r}:{r+1}], v[{r}:{r+1}], v[{16*k+r}:{16*k+r+1}]")
        a(f"v_pk_fma_f32 v[{r}:{r+1}], v[{r}:{r+1}], v[228:229], v[{XS(g, e)}:{XS(g, e)+1}] op_sel_hi:[1,0,1]")
    a(f"v_cvt_pk_bf16_f32 v{116+2*g}, v{4*g}, v{4*g+1}\nv_cvt_pk_bf16_f32 v{117+2*g}, v{4*g+2}, v{4*g+3}")
    if g % 2 == 1:
        b = 116 + 2 * (g - 1)
        a(f"v_permlane32_swap_b32 v{b}, v{b+2}\nv_permlane32_swap_b32 v{b+1}, v{b+3}")
        a(f"buffer_store_dwordx4 v[{b}:{b+3}], v234, {rOut}, s16 offen offset:{16*(g-1)} {OUTFL}")
        stamp("f")
stamp()


def stamp_out():
    if not STAMP:
        return
    a(f"""
s_waitcnt vmcnt(0) lgkmcnt(0)
v_writelane_b32 v254, s98, {nstamp[0]-1}
{CLK} s[98:99]
s_waitcnt lgkmcnt(0)
v_writelane_b32 v254, s98, 15
s_lshl_b32 s84, s2, 2
s_add_u32 s84, s84, {sw}
s_lshl_b32 s84, s84, 6
s_add_u32 s84, s84, {WS_TS}
v_lshlrev_b32 v1, 2, v255
s_mov_b64 exec, 0xffff
buffer_store_dword v254, v1, {rWs}, s84 offen
""")


stamp_out()
a("s_endpgm")

a.reset()
NC_LOAD = f"global_load_dword v202, v203, s[{sDbg}:{sDbg+1}] sc1"
NC_CMP = "v_cmp_eq_u32 vcc, 0, v202"
shq = "s59"
a(f"""
L_helper:
s_lshl_b32 {shq}, {sxcd}, 2
s_add_u32 {shq}, {shq}, {sj}
v_mov_b32 v203, 0
v_lshrrev_b32 v1, 2, v255
s_lshl_b32 s83, {shq}, 2
s_add_u32 s83, s83, {sw}
s_lshl_b32 s72, s83, 4
v_add_u32 v4, s72, v1
v_mul_u32_u24 v5, 896, v4
v_and_b32 v2, 3, v255
v_lshl_add_u32 v5, v2, 4, v5
s_lshr_b32 s73, {sxcd}, 1
s_lshl_b32 s73, s73, 2
s_add_u32 s60, s73, {sj}
s_min_u32 s73, s60, 13
s_and_b32 s74, {sxcd}, 1
s_mul_i32 s74, s74, 14
s_add_u32 s61, s73, s74
s_lshr_b32 s73, s61, 1
s_lshl_b32 s82, s73, 8
v_lshrrev_b32 v6, 4, v255
s_lshl_b32 s75, {sw}, 2
v_add_u32 v6, s75, v6
v_mul_u32_u24 v7, 3584, v6
v_and_b32 v3, 15, v255
v_lshl_add_u32 v7, v3, 4, v7
s_mov_b32 s72, {WS_EP}
s_waitcnt lgkmcnt(0)
""")
if STAMP:
    a("v_mov_b32 v254, 0\nv_writelane_b32 v254, s100, 0")
    nstamp[0] = 1
stamp(SEL[0])
a(f"""
s_mov_b32 s36, s{sX}
s_mov_b32 s37, s{sX+1}
s_add_u32 s48, s{sWs}, {WSOFF}
s_addc_u32 s49, s{sWs+1}, 0
buffer_load_dword v202, v203, {rWs}, s72 offen sc1
""")
for i in range(14):
    a(f"buffer_load_dwordx4 v[{8+4*i}:{11+4*i}], v5, {rX}, 0 offen offset:{64*i}")
a(f"""
s_mov_b32 s73, 1664525
v_mul_lo_u32 v202, v202, s73
s_cmp_eq_u32 s83, 127
v_add_u32 v202, 1013904225, v202
v_or_b32 v202, 1, v202
s_cbranch_scc0 L_hnoep
s_mov_b64 exec, 1
""")
a.items.append(("raw", f"    global_store_dword v203, v202, s[{sDbg}:{sDbg+1}] sc1"))
a.items.append(("raw", f"    buffer_store_dword v202, v203, {rWs}, s72 offen sc1"))
a(f"""
s_mov_b64 exec, -1
L_hnoep:
s_bitcmp1_b32 s61, 0
s_cselect_b32 s40, s{sWu}, s{sWg}
s_cselect_b32 s41, s{sWu+1}, s{sWg+1}
""")
wl = [f"buffer_load_dwordx4 v[{72+4*i}:{75+4*i}], v7, {rW}, s82 offen\ns_add_u32 s82, s82, {16*3584}" for i in range(28)]
HW0 = opt('hw0', 0)
put(wl[:HW0])
wl = wl[HW0:]
a(f"""
s_mov_b32 s76, 0x3f803f80
s_mov_b32 s77, 0x00003f80
s_mov_b32 s79, 0x3f800000
""")
for _ in range(opt('dhelp', 0)):
    a("s_sleep 16")
EXACT = "--noexact" not in sys.argv
L = []
for i in range(56):
    c0, c1 = ("0", "0") if i == 0 else ("v64", "v68")
    L.append([f"v_dot2_f32_bf16 v64, v{8+i}, s76, {c0}", f"v_dot2_f32_bf16 v68, v{8+i}, v{8+i}, {c1}"])
HW1 = opt('hw1', 0)
put(L[0] + weave(L[1:], wl[:HW1]))
wl = wl[HW1:]
stamp()
a(f"""
v_add_f32_dpp v64, v64, v64 quad_perm:[1,0,3,2] row_mask:0xf bank_mask:0xf
v_add_f32_dpp v68, v68, v68 quad_perm:[1,0,3,2] row_mask:0xf bank_mask:0xf
v_lshlrev_b32 v4, 3, v4
v_add_f32_dpp v64, v64, v64 quad_perm:[2,3,0,1] row_mask:0xf bank_mask:0xf
v_add_f32_dpp v68, v68, v68 quad_perm:[2,3,0,1] row_mask:0xf bank_mask:0xf
v_mul_f32 v64, {hex(0x3b124925)}, v64
v_mul_f32 v68, {hex(0x3b124925)}, v68
v_fma_f32 v68, -v64, v64, v68
v_cvt_pk_bf16_f32 v64, -v64, -v64
v_max_f32 v68, 0, v68
v_cvt_pk_bf16_f32 v68, v68, v68
v_and_b32 v68, {sMask}, v68
v_add_f32 v68, 0x3727c5ac, v68
v_cvt_pk_bf16_f32 v68, v68, v68
v_and_b32 v68, {sMask}, v68
v_sqrt_f32 v68, v68
v_and_b32 v66, {sMask}, v64
v_cvt_pk_bf16_f32 v68, v68, v68
v_and_b32 v68, {sMask}, v68
v_rcp_f32 v70, v68
s_mov_b32 s74, {WS_ST}
v_fma_f32 v71, -v68, v70, 1.0
v_fma_f32 v70, v70, v71, v70
v_mul_f32 v65, v70, v70
v_mul_f32 v71, v66, v70
s_mov_b32 s80, 0x11111111
s_mov_b32 s81, 0x11111111
s_mov_b64 exec, s[80:81]
buffer_store_dwordx2 v[64:65], v4, {rWs}, s74 offen sc1
s_mov_b64 exec, -1
v_mul_u32_u24 v5, 960, v1
s_mul_i32 s75, {sw}, {16*960}
v_lshl_add_u32 v5, v2, 4, v5
v_add_u32 v5, s75, v5
""")
L2B = 64 * 960
L3B = L2B + 448 * 144
a(f"""
v_lshrrev_b32 v1, 5, v255
v_bfe_u32 v2, v255, 2, 2
v_lshl_add_u32 v2, v1, 3, v2
v_mul_u32_u24 v2, 960, v2
v_bfe_u32 v4, v255, 4, 1
v_lshl_add_u32 v2, v4, 5, v2
v_and_b32 v4, 3, v255
v_lshl_add_u32 v2, v4, 3, v2
v_add_u32 v194, s75, v2
v_and_b32 v4, 31, v255
v_mul_u32_u24 v4, 144, v4
s_lshl_b32 s74, {sw}, 5
s_add_u32 s74, s74, {L2B}
v_lshl_add_u32 v4, v1, 4, v4
v_add_u32 v195, s74, v4
v_lshlrev_b32 v6, 9, v6
v_lshl_add_u32 v6, v3, 5, v6
v_add_u32 v6, {L3B}, v6
v_lshrrev_b32 v1, 3, v255
v_and_b32 v2, 7, v255
v_lshlrev_b32 v2, 4, v2
v_mul_u32_u24 v197, {XTS}, v1
v_add_u32 v197, v197, v2
v_mul_u32_u24 v1, 144, v1
v_add_u32 v1, v1, v2
s_mul_i32 s74, {sw}, {112*144}
s_add_u32 s74, s74, {L2B}
v_add_u32 v196, s74, v1
s_lshl_b32 s74, {shq}, 7
s_mul_i32 s75, {sw}, {112*XTS}
s_add_u32 s74, s74, s75
s_add_u32 s62, s74, {WS_XT}
s_and_b32 s75, {sw}, 1
s_lshl_b32 s75, s75, 8
v_lshl_add_u32 v2, v255, 2, s75
v_add_u32 v198, {L3B}, v2
""")


L = []
for i in range(56):
    t = 186 + 2 * (i % 4)
    if EXACT:
        g = [f"v_dot2_f32_bf16 v{t}, v{8+i}, s77, v66", f"v_dot2_f32_bf16 v{t+1}, v{8+i}, s79, v66"]
        if i > 0:
            p = 186 + 2 * ((i - 1) % 4)
            g += [f"v_cvt_pk_bf16_f32 v{7+i}, v{p}, v{p+1}", f"v_lshlrev_b32 v{p}, 16, v{7+i}", f"v_and_b32 v{p+1}, {sMask}, v{7+i}",
                  f"v_pk_mul_f32 v[{p}:{p+1}], v[{p}:{p+1}], v[70:71] op_sel_hi:[1,0]", f"v_cvt_pk_bf16_f32 v{7+i}, v{p}, v{p+1}"]
            if i % 4 == 0:
                g.append(f"ds_write_b128 v5, v[{4+i}:{7+i}] offset:{64*(i//4-1)}")
        if i == 55:
            g += ["s_nop 0", f"v_cvt_pk_bf16_f32 v63, v{t}, v{t+1}", f"v_lshlrev_b32 v{t}, 16, v63", f"v_and_b32 v{t+1}, {sMask}, v63",
                  f"v_pk_mul_f32 v[{t}:{t+1}], v[{t}:{t+1}], v[70:71] op_sel_hi:[1,0]", f"v_cvt_pk_bf16_f32 v63, v{t}, v{t+1}",
                  f"ds_write_b128 v5, v[60:63] offset:{64*13}"]
    else:
        g = [f"v_lshlrev_b32 v{t}, 16, v{8+i}", f"v_and_b32 v{t+1}, {sMask}, v{8+i}",
             f"v_pk_fma_f32 v[{t}:{t+1}], v[{t}:{t+1}], v[70:71], v[70:71] op_sel:[0,0,1] op_sel_hi:[1,0,1]",
             f"v_cvt_pk_bf16_f32 v{8+i}, v{t}, v{t+1}"]
        if i % 4 == 3:
            g.append(f"ds_write_b128 v5, v[{8+i-3}:{8+i}] offset:{64*(i//4)}")
    L.append(g)
HW2 = opt('hw2', 10)
put(weave(L, wl[:HW2]))
wl = wl[HW2:]
stamp()
if WM == 1:
    a(f"""
s_mul_i32 s74, s83, {98*128}
v_min_u32 v199, 48, v255
v_lshlrev_b32 v199, 7, v199
v_add_u32 v199, s74, v199
global_load_dword v200, v199, s[{sWd}:{sWd+1}]
global_load_dword v201, v199, s[{sWd}:{sWd+1}] offset:{0}
""".replace("global_load_dword v201, v199, s[28:29] offset:0", f"v_add_u32 v199, {49*128}, v199\nglobal_load_dword v201, v199, s[28:29]"))
HW3 = opt('hw3', 99)
put(wl[:min(HW3, 12)])
wl2 = wl[min(HW3, 12):HW3]
wl = wl[HW3:]
for b in range(14):
    a(f"ds_read_b64_tr_b16 v[{8+4*b}:{9+4*b}], v194 offset:{64*b}\nds_read_b64_tr_b16 v[{10+4*b}:{11+4*b}], v194 offset:{64*b+4*960}")
cs = []
for i in range(28):
    for d in range(4):
        c0, c1 = ("0", "0") if i == 0 else (f"v{64+2*d}", f"v{65+2*d}")
        cs += [f"v_dot2_f32_bf16 v{64+2*d}, v{72+4*i+d}, s77, {c0}", f"v_dot2_f32_bf16 v{65+2*d}, v{72+4*i+d}, s79, {c1}"]
NC0 = opt('nc0', 0)
put(weave([f"ds_write_b128 v195, v[{8+4*b}:{11+4*b}] offset:{32*144*b}" for b in range(14)], wl2 + cs[:NC0]))
a(f"{NC_LOAD}\ns_waitcnt lgkmcnt(0)\ns_barrier")
stamp()
for b in range(14):
    a(f"ds_read_b128 v[{8+4*b}:{11+4*b}], v196 offset:{8*144*b}")
put(weave([f"buffer_store_dwordx4 v[{8+4*b}:{11+4*b}], v197, {rWs}, s62 offen sc1\ns_add_u32 s62, s62, {8*XTS}" for b in range(14)], [] if wl else cs[NC0:]))
if wl:
    put(wl + cs[NC0:])
a("""
ds_write_b128 v6, v[64:67]
ds_write_b128 v6, v[68:71] offset:16
s_waitcnt lgkmcnt(0)
s_barrier
""")
stamp()
for r in range(16):
    a(f"ds_read_b32 v{72+r}, v198 offset:{512*r}")
for st_ in (8, 4, 2, 1):
    for r in range(st_):
        a(f"v_add_f32 v{72+r}, v{72+r}, v{72+r+st_}")
a(f"""
v_cvt_pk_bf16_f32 v73, v72, v72
v_and_b32 v73, {sMask}, v73
v_sub_f32 v74, v72, v73
v_cvt_pk_bf16_f32 v73, v73, v74
v_lshlrev_b32 v2, 4, v3
v_lshrrev_b32 v1, 4, v255
v_lshl_add_u32 v2, v1, 2, v2
s_lshr_b32 s74, s61, 1
s_lshl_b32 s74, s74, 1
s_add_u32 s74, s74, {sw}
s_lshl_b32 s74, s74, 1
s_and_b32 s75, s61, 1
s_add_u32 s74, s74, s75
s_lshl_b32 s74, s74, 8
s_add_u32 s74, s74, {WS_CS}
s_cmp_lt_u32 s60, 14
s_cselect_b32 s74, s74, {WS_SIZE}
s_cmp_lt_u32 {sw}, 2
s_cselect_b32 s74, s74, {WS_SIZE}
buffer_store_dword v73, v2, {rWs}, s74 offen sc1
""")
stamp()
poll("hnc", NC_LOAD, NC_CMP)
a(f"""
v_mul_u32_u24 v1, {FSP}, v255
s_lshl_b32 s74, {shq}, 2
s_add_u32 s74, s74, {WS_FL}
s_waitcnt vmcnt(0)
s_barrier
s_cmp_eq_u32 {sw}, 0
s_cbranch_scc0 L_hdone
s_mov_b64 exec, 0xff
buffer_store_dword v202, v1, {rWs}, s74 offen sc1
s_mov_b64 exec, -1
L_hdone:
""")
stamp()
stamp_out()
a("L_end:\ns_endpgm")
for sp in slow:
    a.reset()
    a(sp)
a("L_codeend:\ns_endpgm")

body = a.render()
if opt('align', 1):
    from align import align
    body, info = align(body, opt('nopc', 50.0))
    a.stats.update(info)
here = os.path.dirname(os.path.abspath(__file__))
ref = open(os.path.join(here, "..", "cdna_kernels", NAME + ".s.ref")).read()
head = [l for l in ref.split("\n") if l.startswith(";") and "@launch" not in l and "Override" not in l and "grid=ceil" not in l]
txt = "\n".join(head) + f"""
; Generated by tools/gen.py (hand-written generator).  WSOFF={WSOFF} XTS={XTS} YS={YS} CSL=1
; @launch grid=(256,1,1) block=(256,1,1) lds=163840
.amdgcn_target "amdgcn-amd-amdhsa--gfx950"
.text
.globl {NAME}_kernel
.p2align 8
.type {NAME}_kernel,@function
{NAME}_kernel:
{body}
.section .rodata,"a"
.p2align 6
.amdhsa_kernel {NAME}_kernel
  .amdhsa_next_free_vgpr 512
  .amdhsa_next_free_sgpr 102
  .amdhsa_accum_offset 256
  .amdhsa_group_segment_fixed_size 0
  .amdhsa_kernarg_size 128
  .amdhsa_user_sgpr_count 2
  .amdhsa_user_sgpr_kernarg_segment_ptr 1
  .amdhsa_system_sgpr_workgroup_id_x 1
.end_amdhsa_kernel
"""
out = [x for x in sys.argv[1:] if not x.startswith("--")]
path = out[0] if out else os.path.join(here, "..", "cdna_kernels", NAME + ".s")
open(path, "w").write(txt)
print(path, a.stats, file=sys.stderr)
```

```python
import sys, os
sys.path.insert(0, os.path.dirname(os.path.abspath(__file__)))
from asmdsl import Asm

NAME = "parallel_sum__ssm_conv_s4__glu_gated_reglu__prompt"
STAMP = "--stamp" in sys.argv


def opt(name, dflt):
    v = [x.split('=')[1] for x in sys.argv if x.startswith('--' + name + '=')]
    return type(dflt)(v[0]) if v else dflt


WS_H, WS_XT, WS_Y = 0x0, 0x700000, 0x900000
XTS, YS = 4096 + opt('xtp', 128), 8192 + opt('yp', 128)
WS_ST, WS_CS = 0xB00000, 0xB04000
WS_FH, WS_FY, WS_FL, WS_EP = 0xB10000, 0xB20000, 0xB28000, 0xB2C000
WS_TS = 0xB30000
WS_SIZE = 0xB80000
WSOFF = opt('wsoff', 0) << 20
FSP = 1024
SLOT = [0, 16384, 32768, 49152]
XB = 32768
SC = 147456
UB = 33536
U1_OFF = 4640
U_CH = 9280
KC0, KC_CH, KC_CP = 16, 16656, 4160
YX = 32768
RX = 65536
XR = 49152
PS = [SC] + [XB + k * 16384 for k in range(2, 7)]
SPIN = 200000
C64 = "\nv_add_u32 v2, 64, v2\nv_min_u32 v2, L_codeend-L_pc-4, v2\nglobal_load_dword v229, v2, s[70:71]" if opt('c64', 0) else ''
FHW_AT, FH_AT, FH_POLL = opt('fhw', 2), opt('fh', 16), opt('fhp', 20)
FYW_AT, FY_AT, FY_POLL = opt('fyw', 6), opt('fy', 19), opt('fyp', 24)
FL_AT, FL_POLL = opt('fl', 20), opt('flp', 23)
OUTFL = 'sc1' if '--outsc1' in sys.argv else ''
SEL = opt('sel', 'a')
CV = opt('cv', 20)
PAT = opt('pat', 0)
WG = opt('wg', 4)

sX, sAre, sAim, sBre, sBim, sCre, sCim, sLdt, sDsk = 4, 6, 8, 10, 12, 14, 16, 18, 20
sWg, sWu, sWd, sOut, sDbg, sWs = 24, 26, 28, 30, 32, 34
rX, rW, rWd, rWs, rOut = "s[36:39]", "s[40:43]", "s[44:47]", "s[48:51]", "s[52:55]"
sw, sxcd, sj, sr1, sc1_, sjc, sr2, sc2, snonce = "s56", "s57", "s58", "s59", "s60", "s61", "s62", "s63", "s64"
sWoff, sWdoff, sDs, scnt = "s65", "s66", "s67", "s68"
sq, sXoff, sw4k, sWl, sMask = "s69", "s72", "s73", "s77", "s78"
sFL, stg, sUl, sUg, sH0, sH1, sKC, sHoff = "s80", "s81", "s82", "s83", "s86", "s87", "s88", "s89"
sST, sCS, sFHw, sFHr, sY = "s90", "s91", "s92", "s93", "s94"
sOdd = "s[22:23]"

vKC, vKZ, vUZ, vKX, vXR, vXD, vWD, vWF, vKL = 160, 168, 169, 170, 172, 180, 184, 188, 190
vDD, vDF, vCU, vCK, vN4, vN8, vCS, vF, vYW, vYR, vFH, vH = 200, 204, 208, 209, 210, 211, 212, 213, 214, 215, 217, 218
fC, fR, fKG, fQ, fG, vNo, vZ, vL16 = 220, 221, 222, 223, 226, 224, 225, 250

a = Asm()
slow = []
nstamp = [0]
tok, ltok = {}, {}


def stamp(kind="a"):
    if not STAMP or kind not in SEL:
        return
    k = nstamp[0]
    nstamp[0] += 1
    if k > 1:
        a.items.append(("raw", f"    v_writelane_b32 v254, s98, {k-1}"))
    a.items.append(("raw", f"    {CLK} s[98:99]"))


def poll(name, load, cmp_):
    a(cmp_)
    a(f"s_cbranch_vccnz L_slow_{name}")
    a(f"L_back_{name}:")
    slow.append(f"""L_slow_{name}:
s_mov_b32 {scnt}, 0
L_retry_{name}:
s_add_u32 {scnt}, {scnt}, 1
s_cmp_gt_u32 {scnt}, {SPIN}
s_cbranch_scc1 L_back_{name}
{load}
s_waitcnt vmcnt(0)
{cmp_}
s_cbranch_vccnz L_retry_{name}
s_branch L_back_{name}""")


def put(items):
    for e in items:
        if isinstance(e, tuple):
            if e[0] == "vt": tok[e[1]] = a.vm_tok()
            if e[0] == "lt": ltok[e[1]] = a.lg_tok()
            if e[0] == "wv": a.wait_vm(tok[e[1]])
            if e[0] == "wl": a.wait_lg(ltok[e[1]])
        else:
            a(e)


def weave(main, extra):
    nreal = sum(1 for e in extra if not isinstance(e, tuple))
    out, k, done = [], 0, 0
    for t, m in enumerate(main):
        out += m if isinstance(m, list) else [m]
        goal = -(-(nreal * (t + 1)) // len(main))
        while k < len(extra) and (isinstance(extra[k], tuple) or done < goal):
            out.append(extra[k])
            done += not isinstance(extra[k], tuple)
            k += 1
    return out


def cost(e):
    if isinstance(e, tuple):
        return 4 if e[0] in ("wv", "wl") else 0
    c = 0
    for l in e.split("\n"):
        op = l.split()[0]
        if op.startswith(("buffer_", "global_")):
            c += CV if "x4" in op else 12
        elif op.startswith("ds_write"):
            c += 28 if "b128" in op or "2_b64" in op else 14
        else:
            c += 4
    return c


def pack(main, extra, cap):
    base = [sum(cost(x) for x in m[1:]) for m in main]
    n, G = len(extra), len(main)
    cs = [cost(e) for e in extra]
    INF = 1 << 60
    best = [[INF] * (n + 1) for _ in range(G + 1)]
    frm = [[0] * (n + 1) for _ in range(G + 1)]
    best[0][0] = 0
    for g in range(G):
        for i in range(n + 1):
            if best[g][i] == INF:
                continue
            load = base[g]
            for j in range(i, n + 1):
                if j > i:
                    load += cs[j - 1]
                v = best[g][i] + 1000 * max(0, load - cap) + load * load // 16
                if v < best[g + 1][j]:
                    best[g + 1][j] = v
                    frm[g + 1][j] = i
    cuts, j = [], n
    for g in range(G, 0, -1):
        cuts.append((frm[g][j], j))
        j = frm[g][j]
    cuts.reverse()
    out = []
    for m, (i, j) in zip(main, cuts):
        out += m + extra[i:j]
    return out


def lines(txt, per=1):
    L = [l.replace(";;", "\n") for l in txt.strip().split("\n")]
    return ["\n".join(L[i:i + per]) for i in range(0, len(L), per)]


T64 = opt('t64', 1)
KA = 240 if T64 else 144
ROT = opt('rot', 0)
HFL = opt('hfl', 'sc1').replace('_', ' ').replace('none', '')


def wrap(reg, step, lim, base):
    return f"s_add_u32 {reg}, {reg}, {step}\ns_cmp_eq_u32 {reg}, {lim}\ns_cselect_b32 {reg}, {base}, {reg}"


def dma4(m0, vo, srd, soff, step, fl=""):
    g = [m0, f"buffer_load_dwordx4 v{vo}, {srd}, {soff} offen {fl} lds"]
    for i in range(1, 4):
        g.append(f"buffer_load_dwordx4 v{vo+i}, {srd}, {soff} offen offset:{1024*i} {fl} lds")
    g.append(f"s_add_u32 {soff}, {soff}, {step}")
    return g


def w_unit(u):
    return dma4(f"s_add_u32 m0, {sWl}, {SLOT[u % 4]}", vWD, rW, sWoff, 32 * 3584)


def x_block(cb):
    return dma4(f"s_add_u32 m0, {sw4k}, {XB+cb*16384}", vXD, rX, sXoff, 128)


def wd_pair(kk):
    g = dma4(f"s_add_u32 m0, {sw4k}, {PS[(kk >> 1) % 6]}", vDD, rWd, sWdoff, 32 * 896)
    if ROT and kk % 4 == 2:
        g[-1] = wrap(sWdoff, 32 * 896, "s9", "s8")
    return g


CLK = "s_memtime" if "--cyc" in sys.argv else "s_memrealtime"
if STAMP:
    a(f"{CLK} s[100:101]")
a(f"""
s_cmp_ge_u32 s2, 256
s_cbranch_scc1 L_end
s_load_dwordx16 s[4:19], s[0:1], 0
s_load_dwordx16 s[20:35], s[0:1], 64
s_getpc_b64 s[70:71]
L_pc:
s_and_b32 {sxcd}, s2, 7
s_lshr_b32 {sj}, s2, 3
v_lshrrev_b32 v1, 6, v0
v_and_b32 v255, 63, v0
v_readfirstlane_b32 {sw}, v1
""")
a(f"""
s_and_b32 {sq}, {sj}, 3
s_lshl_b32 s74, {sq}, 6
v_lshl_add_u32 v2, v1, 4, v255
v_add_u32 v2, s74, v2
v_lshlrev_b32 v2, 7, v2
v_min_u32 v2, L_codeend-L_pc-4, v2
s_mov_b64 exec, 0xffff
{"global_load_dword v253, v2, s[70:71]" + C64 if "--nocodepf" not in sys.argv else ""}
s_mov_b64 exec, -1
s_mov_b32 s38, {2048*896}
s_mov_b32 s39, 0x20000
s_mov_b32 s42, {448*3584}
s_mov_b32 s43, 0x20000
s_mov_b32 s50, {WS_SIZE}
s_mov_b32 s51, 0x20000
v_lshlrev_b32 v{vL16}, 4, v255
s_mov_b32 {sMask}, 0xffff0000
s_cmp_lt_u32 {sj}, 4
s_cbranch_scc1 L_helper
""")

a(f"""
s_sub_u32 {sj}, {sj}, 4
s_mul_i32 s74, {sxcd}, 28
s_add_u32 {sjc}, s74, {sj}
s_lshl_b32 s74, {sjc}, 10
s_lshl_b32 s75, {sw}, 8
s_add_u32 s74, s74, s75
v_lshl_add_u32 v4, v255, 2, s74
s_lshr_b32 s79, s74, 9
s_lshl_b32 s74, s79, 1
v_mov_b32 v5, s74
s_lshr_b32 {sc2}, {sj}, 2
s_lshr_b32 s74, {sxcd}, 1
s_lshl_b32 s74, s74, 2
s_add_u32 {sr1}, s74, {sq}
s_lshl_b32 {stg}, {sr1}, 2
s_add_u32 {stg}, {stg}, {sw}
s_mul_i32 {sXoff}, {stg}, {32*896}
s_lshl_b32 {sw4k}, {sw}, 12
s_and_b32 s74, {sxcd}, 1
s_mul_i32 s74, s74, 7
s_add_u32 {sc1_}, s74, {sc2}
s_lshl_b32 {sWoff}, {sc1_}, 8
s_lshr_b32 s84, {sw}, 1
s_and_b32 s85, {sw}, 1
s_lshl_b32 s74, s85, 13
s_lshl_b32 s75, s84, 12
s_add_u32 {sWl}, s74, s75
v_and_b32 v{fC}, 3, v255
v_bfe_u32 v{fR}, v255, 2, 2
v_lshrrev_b32 v{fKG}, 5, v255
v_lshrrev_b32 v{fQ}, 4, v255
v_and_b32 v{fG}, 1, v{fQ}
v_lshrrev_b32 v6, 3, v255
v_mul_u32_u24 v1, 896, v6
v_and_b32 v2, 7, v255
v_xor_b32 v2, v2, v{fQ}
v_lshl_add_u32 v{vXD}, v2, 4, v1
v_xor_b32 v{vXD+1}, 64, v{vXD}
v_add_u32 v{vXD+1}, {8*896-1024}, v{vXD+1}
v_add_u32 v{vXD+2}, {2*(8*896-1024)}, v{vXD}
v_add_u32 v{vXD+3}, {2*(8*896-1024)}, v{vXD+1}
s_lshl_b32 s74, s84, 4
v_add_u32 v1, s74, v{fR}
v_mul_u32_u24 v1, 3584, v1
v_lshl_add_u32 v1, v{fQ}, 6, v1
s_lshl_b32 s76, s85, 1
v_xor_b32 v2, s76, v{fC}
v_lshl_add_u32 v{vWD}, v2, 4, v1
v_add_u32 v{vWD+1}, {4*3584-1024}, v{vWD}
v_add_u32 v{vWD+2}, {2*(4*3584-1024)}, v{vWD}
v_add_u32 v{vWD+3}, {3*(4*3584-1024)}, v{vWD}
""")
if STAMP:
    a("v_mov_b32 v254, 0\ns_waitcnt lgkmcnt(0)\nv_writelane_b32 v254, s100, 0")
    nstamp[0] = 1
stamp(SEL[0])
a(f"""
s_waitcnt lgkmcnt(0)
global_load_ushort v134, v5, s[{sLdt}:{sLdt+1}]
global_load_dword v128, v4, s[{sAre}:{sAre+1}]
global_load_dword v129, v4, s[{sAim}:{sAim+1}]
global_load_dword v130, v4, s[{sBre}:{sBre+1}]
global_load_dword v131, v4, s[{sBim}:{sBim+1}]
global_load_dword v132, v4, s[{sCre}:{sCre+1}]
global_load_dword v133, v4, s[{sCim}:{sCim+1}]
global_load_ushort v135, v5, s[{sDsk}:{sDsk+1}]
s_mov_b32 s36, s{sX}
s_mov_b32 s37, s{sX+1}
s_bitcmp1_b32 {sw}, 0
s_cselect_b32 s40, s{sWu}, s{sWg}
s_cselect_b32 s41, s{sWu+1}, s{sWg+1}
s_cselect_b64 {sOdd}, -1, 0
""")
if "--tlb" in sys.argv:
    a(f"""
v_min_u32 v14, 5, v255
v_lshlrev_b32 v14, 21, v14
v_mov_b32 v15, 0
s_mov_b64 exec, 0x3f
global_load_dword v152, v14, s[{sWs}:{sWs+1}]
s_mov_b64 exec, 1
global_load_dword v153, v15, s[{sOut}:{sOut+1}]
global_load_dword v154, v15, s[{sWd}:{sWd+1}]
global_load_dword v155, v15, s[{sDbg}:{sDbg+1}]
s_mov_b64 exec, -1
""")
LATE = opt('late', 0)
first_dma = x_block(0) + w_unit(0) + [("vt", "u0")]
if not LATE:
    put(first_dma)
a(f"""
s_add_u32 s74, {sw4k}, {SC}
v_add_u32 v{vKX}, s74, v{vL16}
v_xor_b32 v{vKX+1}, 4096, v{vKX}
v_bfe_u32 v1, v255, 1, 2
v_lshlrev_b32 v7, 4, v1
v_lshl_add_u32 v7, v255, 6, v7
v_add_u32 v{vKL}, s74, v7
v_xor_b32 v{vKL+1}, 16, v{vKL}
v_xor_b32 v{vKL+2}, 32, v{vKL}
v_xor_b32 v{vKL+3}, 48, v{vKL}
v_lshl_add_u32 v7, v{fKG}, 3, v{fR}
v_lshlrev_b32 v7, 6, v7
v_bfe_u32 v8, v255, 1, 1
v_lshl_add_u32 v8, v{fG}, 1, v8
v_lshrrev_b32 v9, 1, v{fR}
v_xor_b32 v8, v8, v9
v_lshl_add_u32 v7, v8, 4, v7
v_and_b32 v10, 1, v255
v_lshl_add_u32 v7, v10, 3, v7
v_add_u32 v{vKL+4}, s74, v7
v_xor_b32 v{vKL+5}, 32, v{vKL+4}
v_add_u32 v{vKL+5}, 256, v{vKL+5}
s_lshl_b32 s76, s85, 5
v_xor_b32 v{vKL+6}, s76, v{vKL+4}
v_xor_b32 v{vKL+7}, s76, v{vKL+5}
v_and_b32 v11, 31, v255
v_bfe_u32 v12, v255, 1, 3
v_xor_b32 v7, v12, v{fKG}
v_lshlrev_b32 v7, 4, v7
v_lshl_add_u32 v7, v11, 7, v7
s_and_b32 s74, {sw4k}, {0x2000 if T64 else 0x3000}
s_add_u32 s74, s74, {XB}
v_add_u32 v{vXR}, s74, v7
v_xor_b32 v{vXR+1}, 32, v{vXR}
v_xor_b32 v{vXR+2}, 64, v{vXR}
v_xor_b32 v{vXR+3}, 96, v{vXR}
v_add_u32 v{vXR+4}, 0x10000, v{vXR}
v_add_u32 v{vXR+5}, 0x10000, v{vXR+1}
v_add_u32 v{vXR+6}, 0x10000, v{vXR+2}
v_add_u32 v{vXR+7}, 0x10000, v{vXR+3}
v_lshlrev_b32 v13, 3, v{fC}
v_lshl_add_u32 v13, v{fR}, 6, v13
v_mul_u32_u24 v7, {8192+32}, v{fG}
v_lshl_add_u32 v7, v{fKG}, 11, v7
s_mul_i32 s74, s85, {512 if T64 else 0}
v_add3_u32 v{vWF}, v7, v13, s74
v_xor_b32 v{vWF+1}, 32, v{vWF}
v_lshl_add_u32 v7, v{fG}, 5, v13
v_lshl_add_u32 v7, v{fKG}, 9, v7
s_lshl_b32 s74, s85, 8
s_add_u32 s74, s74, {sw4k}
s_add_u32 s74, s74, 65536
v_add_u32 v{vDF}, s74, v7
v_xor_b32 v{vDF+1}, 256, v{vDF}
v_add_u32 v{vDF+2}, 0x10000, v{vDF}
v_add_u32 v{vDF+3}, 0x10000, v{vDF+1}
s_mul_i32 s74, {sw}, 448
v_lshl_add_u32 v7, v{fKG}, 2, v{fR}
v_add_u32 v7, s74, v7
v_mul_u32_u24 v7, 896, v7
v_lshl_add_u32 v7, v{fG}, 6, v7
v_lshl_add_u32 v{vDD}, v{fC}, 4, v7
v_add_u32 v{vDD+1}, {8*896-1024}, v{vDD}
v_add_u32 v{vDD+2}, {2*(8*896-1024)}, v{vDD}
v_add_u32 v{vDD+3}, {3*(8*896-1024)}, v{vDD}
v_lshlrev_b32 v{vN4}, 2, v11
v_lshlrev_b32 v{vN8}, 3, v11
""")
setup2 = lines(f"""s_mul_i32 {sKC}, s84, {KC_CH}
s_add_u32 {sKC}, {sKC}, {KC0}
s_lshl_b32 s74, s85, 10
s_sub_u32 s74, {sKC}, s74
s_add_u32 s74, s74, {16*255-12}
v_sub_u32 v{vKC}, s74, v{vL16}
v_add_u32 v{vKC+1}, {KC_CP+4}, v{vKC}
v_add_u32 v{vKC+2}, {2*(KC_CP+4)}, v{vKC}
v_add_u32 v{vKC+3}, {3*(KC_CP+4)}, v{vKC}
v_lshlrev_b32 v7, 9, v{fKG}
v_sub_u32 v7, v{vKC}, v7
s_mul_i32 s74, s85, 1536
s_sub_u32 s74, 2560, s74
v_subrev_u32 v{vKC+4}, s74, v7
v_add_u32 v{vKC+5}, {KC_CP+4}, v{vKC+4}
v_add_u32 v{vKC+6}, {2*(KC_CP+4)}, v{vKC+4}
v_add_u32 v{vKC+7}, {3*(KC_CP+4)}, v{vKC+4}
v_and_b32 v11, 15, v255
v_mul_u32_u24 v7, {KC_CP+4}, v{fQ}
v_lshl_add_u32 v7, v11, 2, v7
v_add_u32 v{vKZ}, {sKC}, v7
v_lshlrev_b32 v7, 2, v11
v_lshlrev_b32 v{vCS}, 2, v{vN4}
{f"v_min_u32 v7, 108, v{vN4}" if T64 else "v_min_u32 v7, 52, v7"}
v_mul_u32_u24 v8, {FSP}, v{fKG if T64 else fG}
v_add_u32 v{vFH}, v7, v8
s_mul_i32 s75, s84, {U_CH}
s_add_u32 s75, s75, {UB}
s_mul_i32 s74, s85, {U1_OFF}
s_add_u32 s74, s74, s75
v_min_u32 v7, 55, v255
v_lshl_add_u32 v{vUZ}, v7, 3, s74
s_lshl_b32 s74, s85, 11
s_add_u32 {sUl}, s75, s74
s_mul_i32 {sUg}, s79, {XTS}
s_add_u32 {sUg}, {sUg}, s74
s_add_u32 {sUg}, {sUg}, {WS_XT}
v_mul_u32_u24 v7, {U1_OFF}, v10
v_lshl_add_u32 v7, v12, 6, v7
v_lshl_add_u32 v7, v{fQ}, 4, v7
s_lshl_b32 s74, s85, 6
s_sub_u32 s75, s75, s74
s_add_u32 s75, s75, {448-384}
v_add_u32 v{vCU}, s75, v7
v_mul_u32_u24 v7, {KC_CP}, v{fC}
v_sub_u32 v8, v{fQ}, v{fR}
v_lshl_add_u32 v7, v8, 4, v7
s_sub_u32 s74, {sKC}, s74
s_add_u32 s74, s74, {16*255-64*62}
v_add_u32 v{vCK}, s74, v7
s_lshl_b32 s74, {sw}, 10
s_add_u32 s74, s74, {YX}
v_add_u32 v{vYW}, s74, v{vL16}
v_lshlrev_b32 v7, 8, v1
v_lshl_add_u32 v7, v6, 5, v7
v_lshl_add_u32 v7, v10, 3, v7
s_lshl_b32 s74, {sw}, 13
s_add_u32 s75, s74, {YX+4096}
v_add_u32 v{vYR}, s75, v7
s_add_u32 s74, s74, 8192
s_and_b32 s74, s74, 0x7fff
s_add_u32 s74, s74, {YX}
v_add_u32 v{vYR+1}, s74, v7
s_mul_i32 s74, s84, {112*1024}
v_add_u32 v{vH}, s74, v{vL16}
s_sub_u32 s74, {112*1024}, s74
v_add_u32 v{vH+1}, s74, v{vL16}
v_mov_b32 v{vZ}, 0
s_lshl_b32 s74, {sxcd}, 2
s_add_u32 {sr2}, s74, {sq}
s_lshl_b32 s74, {sr2}, 1
s_add_u32 s74, s74, s84
s_lshl_b32 s97, s74, 5
s_lshl_b32 s74, {sc2}, 1
s_add_u32 s74, s74, s85
s_lshl_b32 s17, s74, 6
s_mul_i32 s74, s97, 896
s_add_u32 s16, s74, s17
v_lshrrev_b32 v7, 2, v255
v_mul_u32_u24 v7, 896, v7
v_xor_b32 v8, v{fC}, v{fQ}
v_lshl_add_u32 v227, v8, 4, v7""")
put(setup2[:opt('s2', len(setup2))])
setup2 = setup2[opt('s2', len(setup2)):]
a(f"""
v_lshlrev_b32 v134, 16, v134
v_mul_f32 v134, 0x3fb8aa3b, v134
v_exp_f32 v134, v134
v_cvt_pk_bf16_f32 v134, v134, v134
v_lshlrev_b32 v134, 16, v134
""")
stamp()

PA = [64, 96]
PB = 8
KF = [(160, 176, 192, 208), (96, 112, 128, 144) if T64 else (224, 240, 80, 96)]
R1, R8, E, T = 146, [148, 150], 0, 2
l1s = [0, 1, 2, 3, 4, 5, 6, 7, 8, 256, 258, 260, 262, 264, 512, 516, 520, 768, 772, 776,
       1024, 1032, 1280, 1288, 1536, 1544, 1792, 1800]
ra = {l: 8 + 2 * i for i, l in enumerate(l1s)}
cols = [0, 1, 2, 3, 256, 256, 258, 260, 4, 5, 6, 7, 260, 260, 262, 264,
        512, 516, 520, 1024, 768, 772, 776, 1536, 1032, 1280, 1288, 1288, 1544, 1792, 1800, 1800]


def cmul(d, x, r, t):
    return [f"v_pk_mul_f32 v[{t}:{t+1}], v[{x}:{x+1}], v[{r}:{r+1}] op_sel_hi:[1,0]",
            f"v_pk_fma_f32 v[{d}:{d+1}], v[{x}:{x+1}], v[{r}:{r+1}], v[{t}:{t+1}] op_sel:[1,1,0] op_sel_hi:[0,1,1] neg_lo:[1,0,0]"]


def k_write(ck, i, cq):
    P = (PA[ck] + 16 * i) if i < 2 else (PB + 16 * (i - 2))
    return f"ds_write_b128 v{vKL+cq}, v[{P+4*cq}:{P+4*cq+3}]"


def k_reads(ck, i):
    fr = KF[ck][i]
    base = vKL + 6 if i < 2 else vKL + 4
    return "\n".join(f"ds_read_b64_tr_b16 a[{fr+4*s+2*rd}:{fr+4*s+2*rd+1}], v{base+rd} offset:{1024*s}"
                     for s in range(4) for rd in range(2))


def kgen_head(ck):
    L = []
    un = (lambda d, s: f"v_lshlrev_b32 v{d}, 16, v{s}") if ck == 0 else (lambda d, s: f"v_and_b32 v{d}, {sMask}, v{s}")
    L += [un(136 + i, 128 + i) for i in range(6)]
    L += ["v_mul_f32 v142, v134, v136", "v_mul_f32 v143, v134, v137",
          "v_mul_f32 v142, 0x3fb8aa3b, v142", "v_mul_f32 v143, 0.15915494, v143"]

    def ev(d, l):
        s = []
        if l == 1:
            s += ["v_exp_f32 v144, v142", "v_fract_f32 v145, v143"]
        else:
            f = {8: "0x41000000", 256: "0x43800000"}[l]
            s += [f"v_mul_f32 v144, {f}, v142", f"v_mul_f32 v145, {f}, v143", "v_exp_f32 v144, v144", "v_fract_f32 v145, v145"]
        s += [f"v_cos_f32 v{d}, v145", f"v_sin_f32 v{d+1}, v145"]
        return s, f"v_pk_mul_f32 v[{d}:{d+1}], v[{d}:{d+1}], v[144:145] op_sel_hi:[1,0]"
    wm = cmul(ra[0], 140, 138, T) + [f"v_pk_mul_f32 v[{ra[0]}:{ra[0]+1}], v[{ra[0]}:{ra[0]+1}], v[134:135] op_sel_hi:[1,0]"]
    for (d, l), fill in zip(((R1, 1), (R8[ck], 8), (E, 256)), wm):
        s, last = ev(d, l)
        L += s + [fill, last]
    for l in range(1, 9):
        L += cmul(ra[l], ra[l - 1], R1, T)
    for l in l1s[9:]:
        L += cmul(ra[l], ra[l - 256], E, T)
    for k in range(16):
        c0, c1 = ra[cols[2 * k]], ra[cols[2 * k + 1]]
        L += [f"v_cvt_pk_bf16_f32 v{PA[ck]+k}, v{c0}, v{c1}", f"v_cvt_pk_bf16_f32 v{PA[ck]+16+k}, -v{c0+1}, -v{c1+1}"]
    return L


def kgen_chain(ck):
    r8 = R8[ck]
    rb = lambda j: r8 if j == 1 else 4 + 2 * (j % 2)
    B = [f"v_cvt_pk_bf16_f32 v{PB}, 1.0, v{r8}", f"v_cvt_pk_bf16_f32 v{PB+16}, 0, v{r8+1}"]
    for j in range(2, 32):
        B += cmul(rb(j), rb(j - 1), r8, T)
        if j % 2:
            B += [f"v_cvt_pk_bf16_f32 v{PB+j//2}, v{rb(j-1)}, v{rb(j)}",
                  f"v_cvt_pk_bf16_f32 v{PB+16+j//2}, v{rb(j-1)+1}, v{rb(j)+1}"]
    return B


def k_pass(ck, i):
    return [k_write(ck, i, cq) for cq in range(4)] + [k_reads(ck, i)]


def at(stream, items):
    out = []
    for i, x in enumerate(stream):
        out += [y for p, y in items if p == i]
        out.append(x)
    return out + [y for p, y in items if p >= len(stream)]


def kgen_mfma(ck):
    f = KF[ck]
    return [f"v_mfma_f32_32x32x16_bf16 a[{KA}:{KA+15}], a[{f[s>>2]+4*(s&3)}:{f[s>>2]+4*(s&3)+3}], "
            f"a[{f[2+(s>>2)]+4*(s&3)}:{f[2+(s>>2)]+4*(s&3)+3}], "
            + ("0" if (ck == 0 and s == 0) else f"a[{KA}:{KA+15}]") for s in range(8)]


XF = (lambda s, ta=0: 8 * s + 4 * ta) if T64 else (lambda s, ta=0: 4 * s)


def x_read(s, ta=0):
    cb = s >> 2
    return f"ds_read_b128 a[{XF(s, ta)}:{XF(s, ta)+3}], v{vXR + (0 if cb < 4 else 4) + (s & 3)} offset:{(cb % 4)*16384+ta*4096}"


WM = opt('wm', 0)
if WM == 0:
    warm = [f"""s_cmp_eq_u32 {sw}, 0
s_cselect_b32 s12, s{sWg}, s{sWu}
s_cselect_b32 s13, s{sWg+1}, s{sWu+1}
s_cmp_lt_u32 {sw}, 2
s_cselect_b32 s12, s12, s{sWd}
s_cselect_b32 s13, s13, s{sWd+1}
s_mul_i32 s74, {sjc}, {56*128}
v_min_u32 v251, 55, v255
v_lshl_add_u32 v251, v251, 7, s74
global_load_dword v252, v251, s[12:13]"""]
    if opt('w64', 0) == 1:
        warm += ["global_load_dword v157, v251, s[12:13] offset:64"]
    if opt('w64', 0) == 2:
        warm[0] = warm[0].replace("global_load_dword", f"s_cmp_eq_u32 {sw}, 3\ns_cselect_b32 s75, 64, 0\nv_add_u32 v251, s75, v251\nglobal_load_dword")
elif WM >= 1:
    warm = [f"""s_lshl_b32 s74, {sjc}, 1
s_add_u32 s74, s74, s84
s_mul_i32 s74, s74, 3584
v_min_u32 v251, 27, v255
v_lshlrev_b32 v251, 7, v251
s_mov_b64 exec, 0xfffffff
buffer_load_dword v252, v251, {rW}, s74 offen
s_mov_b64 exec, -1"""]
warm2 = []
if WM >= 2:
    warm2 = [f"""s_lshl_b32 s74, {sjc}, 2
s_add_u32 s74, s74, {sw}
s_mul_i32 s74, s74, {14*128}
v_lshl_add_u32 v251, v255, 7, s74
s_mov_b64 exec, 0x3fff
global_load_dword v156, v251, s[{sWd}:{sWd+1}]
s_mov_b64 exec, -1"""]
WAT = opt('wat', 0)
for _ in range(opt('dmain', 0)):
    a("s_sleep 16")
stamp("k")
early = x_block(1) + [("vt", "x1")] + w_unit(1) + [("vt", "u1")]
if LATE == 1:
    put(weave(kgen_head(0), first_dma + early))
elif LATE == 2:
    put(weave(kgen_head(0), first_dma))
    warm = early + warm
elif LATE == 3:
    put(weave(kgen_head(0), first_dma + warm))
    warm = early
else:
    put(weave(kgen_head(0), early))
stamp("k")
XRES = [f"buffer_load_dwordx4 v[242:245], v227, {rX}, s16 offen",
        f"s_add_u32 s74, s16, {16*896}\nbuffer_load_dwordx4 v[246:249], v227, {rX}, s74 offen"]
XRAT = opt('xrat', 0)
if XRAT == 0:
    warm += XRES
wA = warm if WAT == 0 else [e for e in warm if "v251" not in str(e)]
wB = [] if WAT == 0 else [e for e in warm if "v251" in str(e)]
XH = opt('xh', 0)
wA = sum((x_block(cb) + [("vt", f"x{cb}")] for cb in range(2, 2 + XH)), []) + wA if opt('xhf', 1) else \
    wA + sum((x_block(cb) + [("vt", f"x{cb}")] for cb in range(2, 2 + XH)), [])
put(weave(kgen_head(1), wA))
stamp("ak"[SEL == "k"])
RD = opt('rd', 3)
p0, p1, p2 = k_pass(0, 0), k_pass(0, 1), k_pass(0, 2)
XE = opt('xe', 0)
xe = sum((x_block(cb) + [("vt", f"x{cb}")] for cb in range(2, 2 + XE)), [])
n0 = 7 * opt('xe0', 3)
put(weave(at(kgen_chain(0), list(zip((0, 7, 14, 21, 21 + RD), p0)) + list(zip((30, 37, 44, 51, 51 + RD), p1))
             + list(zip((62, 70, 80, 92), p2))), xe[:n0] + (wB if WAT == 1 else []) + (warm2 if WM == 2 else [])))
stamp("k")
p3, q0, q1, q2 = k_pass(0, 3), k_pass(1, 0), k_pass(1, 1), k_pass(1, 2)
ch = kgen_chain(1)
put([p2[4], p3[0], p3[1]] + weave(at(ch[2:], [(0, p3[2]), (4, p3[3]), (4, ch[0]), (4, ch[1]), (4 + RD, p3[4])]
                                      + list(zip((14, 20, 26, 32, 32 + RD), q0)) + list(zip((42, 48, 54, 60, 60 + RD), q1))
                                      + list(zip((70, 76, 82, 90), q2))), xe[n0:] + (wB if WAT == 2 else []) + (warm2 if WM == 3 else [])))
stamp("ak"[SEL == "k"])
sc = lines(f"""s_lshl_b32 {sWdoff}, {sc2}, 7
s_mov_b32 s44, s{sWd}
s_mov_b32 s45, s{sWd+1}
s_mov_b32 s46, {1792*896}
s_mov_b32 s47, 0x20000
s_add_u32 s48, s{sWs}, {WSOFF};;s_addc_u32 s49, s{sWs+1}, 0
s_mov_b32 s52, s{sOut}
s_mov_b32 s53, s{sOut+1}
s_mov_b32 s54, {2048*896}
s_mov_b32 s55, 0x20000
s_mul_i32 {sFL}, {sxcd}, {FSP}
s_add_u32 {sFL}, {sFL}, {WS_FL}
s_and_b32 {stg}, {stg}, {0xfe if T64 else 0xff}
s_lshl_b32 {sST}, {stg}, 8
s_add_u32 {sST}, {sST}, {WS_ST}
s_lshl_b32 s18, {sc1_}, 1
s_add_u32 s18, s18, {"s85" if T64 else 0}
s_lshl_b32 {sCS}, s18, 9
s_add_u32 {sCS}, {sCS}, {WS_CS}
v_lshlrev_b32 v135, 16, v135""")
for _ in range(opt('dm2', 0)):
    a("s_sleep 16")
lp = k_pass(1, 3)
put(weave(kgen_mfma(0), [q2[4], lp[0]] + sc[:7] + [lp[1]] + sc[7:14] + [lp[2]] + sc[14:]
          + ([lp[3], lp[4], ("wv", "x1")] if T64 else [lp[3], ("wv", "u0")] + [x_read(s) for s in range(4)] + [lp[4]])))
stamp("k")
a("s_waitcnt lgkmcnt(0)")
stamp("k")
a("s_barrier")
stamp("ak"[SEL == "k"])

fillg = {s: [] for s in range(28)}
fillg[2] += lines(f"""v_readfirstlane_b32 {sDs}, v135
s_mul_i32 {sH0}, {stg}, {112*1024}
s_lshl_b32 s74, s18, 12
s_add_u32 {sH0}, {sH0}, s74
s_add_u32 {sH1}, {sH0}, {112*1024 if T64 else 4096}
s_mul_i32 s74, {stg}, {FSP}
s_lshl_b32 s75, s18, {2 if T64 else 1}
s_add_u32 s74, s74, s75
s_add_u32 {sFHw}, s74, {WS_FH}""")
fillg[3] += [f"v_accvgpr_read_b32 v{128+r}, a{KA+r}" for r in range(8)]
fillg[6] += [f"v_accvgpr_read_b32 v148, a{KA+13}", f"v_accvgpr_read_b32 v149, a{KA+14}",
             "v_add_f32 v148, v148, v145", "v_add_f32 v149, v149, v146"]
fillg[2] += []
fillg[4] += [f"ds_read_b128 v[136:139], v{vKX+1}", f"ds_read_b128 v[140:143], v{vKX+1} offset:1024",
             f"ds_read_b128 v[144:147], v{vKX+1} offset:2048", ("lt", "kr")]
fillg[5] += lines(f"""s_mul_i32 {sFHr}, {sr2}, {2*FSP}
s_add_u32 {sFHr}, {sFHr}, {WS_FH}
s_mul_i32 {sHoff}, {sr2}, {2*112*1024}
s_mul_i32 s74, {sw}, {28*1024}
s_add_u32 {sHoff}, {sHoff}, s74
s_add_u32 {sHoff}, {sHoff}, {16*1024}""")
fillg[7] += [f"v_add_f32 v{128+r}, v{128+r}, v{136+r}" for r in range(8)]
fillg[9] += lines(f"""v_cmp_eq_u32 vcc, 0, v255
v_mov_b32 v140, {sDs}
v_cndmask_b32 v148, v148, v131, {sOdd}
v_cndmask_b32 v149, v149, v132, {sOdd}
v_cndmask_b32 v140, 0, v140, vcc
v_add_f32 v140, v128, v140""")
fillg[11] += lines(f"""s_mov_b32 s74, 0xaaaaaaaa
s_mov_b32 s75, 0xaaaaaaaa
v_cvt_pk_bf16_f32 v144, v149, v149
v_cndmask_b32 v141, v148, v149, s[74:75]
v_cvt_pk_bf16_f32 v146, v148, v148
v_cvt_pk_bf16_f32 v147, v148, v148
v_cvt_pk_bf16_f32 v145, v149, v141""")
fillg[13] += lines(f"""v_cvt_pk_bf16_f32 v136, v135, v134
v_cvt_pk_bf16_f32 v137, v133, v132
v_cvt_pk_bf16_f32 v138, v131, v130
v_cvt_pk_bf16_f32 v139, v129, v140
v_cvt_pk_bf16_f32 v140, v130, v130
v_cvt_pk_bf16_f32 v141, v129, v129
v_cvt_pk_bf16_f32 v142, v129, v128
v_cvt_pk_bf16_f32 v143, v128, v128""")
fillg[15] += [f"v_cndmask_b32 v{136+r}, v{136+r}, v{140+r}, {sOdd}" for r in range(4)]
fillg[17] += lines(f"""s_mul_i32 {sY}, {sjc}, {YS}
s_lshl_b32 s74, {sw}, 11
s_add_u32 {sY}, {sY}, s74
s_add_u32 {sY}, {sY}, {WS_Y}""")
fillg[19] += [f"v_mov_b32 v{r}, 0" for r in (190, 191, 193, 194)]
fillg[21] += [f"v_mov_b32 v{r}, 0" for r in (195, 196, 198, 199)]


def wd_read(kk, r):
    off = PS[(kk >> 1) % 6] - 65536 + (kk & 1) * 2048
    base = vDF if off < 65536 else vDF + 2
    return [f"ds_read_b64_tr_b16 a[{r+4*da+2*rd}:{r+4*da+2*rd+1}], v{base+da} offset:{off % 65536+rd*1024}"
            for da in range(2) for rd in range(2)]


def wd_move(kk):
    return wd_read(kk, 8 * kk)


def wfrag_read(s, t, r):
    off = SLOT[(s >> 1) % 4] + (s & 1) * 4096 + (t >> 1) * 256
    return [f"ds_read_b64_tr_b16 a[{r+2*rd}:{r+2*rd+1}], v{vWF+(t & 1)} offset:{off+rd*1024}" for rd in range(2)]


WF = (lambda t: 224 + 4 * t) if T64 else (lambda t: 112 + 4 * t)
if T64:
    rd = [x_read(s, ta) for s in range(8) for ta in range(2)] + [("lt", "x1")] + sum((wfrag_read(0, t, WF(t)) for t in range(4)), [])
    put(pack([[m] for m in kgen_mfma(1)], rd + fillg[2], 24))
    SH = opt('sh', 1)
    put([("wl", "x1"), "s_barrier"] + ([] if SH else w_unit(2) + [("vt", "u2")]))
else:
    put(pack([[m] + wfrag_read(0, t, WF(t)) for t, m in enumerate(kgen_mfma(1))], w_unit(2) + [("vt", "u2")] + fillg[2], 24))
fillg[2] = []
X20 = opt('x20', 1)
if XE == 0 and XH == 0 and not X20:
    put(x_block(2) + [("vt", "x2")])
kxw = [f"ds_write_b128 v{vKX}, a[{KA+8}:{KA+11}]", f"ds_write_b128 v{vKX}, a[{KA+12}:{KA+15}] offset:1024",
       f"ds_write_b128 v{vKX}, a[{KA+4}:{KA+7}] offset:2048", ("lt", "kx")]
if opt('kxs', 0):
    fillg[0] += kxw
else:
    put(kxw)
stamp("k")

FL_LOAD = f"buffer_load_dword v{vF}, v{vN4}, {rWs}, {sFL} offen sc1"
F_CMP = f"v_cmp_ne_u32 vcc, {snonce}, v{vF}"
NC_LOAD = f"global_load_dword v{vNo}, v{vZ}, s[{sDbg}:{sDbg+1}] sc1"
NC_CMP = f"v_cmp_eq_u32 vcc, 0, v{vNo}"
if XE == 5:
    XD = {}
    XRD = {1: 2, 2: 3, 3: 4, 4: 5, 5: 6}
    NP = opt('np', 11)
    WDD = dict(zip([4, 6, 8, 10, 12, 14, 16, 18, 20, 22, 24][:NP], range(NP)))
    PSORD = {0: "x2", 1: "x3", 2: "x4", 3: "x5", 4: "x6", 5: None}
    PS[:] = PS[1:] + PS[:1]
    MV = dict(zip([9, 10, 11, 12, 13, 14, 15, 17, 19, 20, 22, 24][:opt('nmv', 2 * (NP - 5))], range(12)))
else:
    XD = {s: 2 + s // 2 for s in ((0,) if X20 else ()) + (2, 4, 6, 8)}
    XRD = {s: s // 2 for s in (4, 6, 8, 10, 12)}
    NP = opt('np', 8)
    WDD = dict(zip([int(c) for c in opt('wdd', '10,12,14,16,18,20,22,24').split(',')][:NP], range(NP)))
    PSORD = {0: None, 1: "x2", 2: "x3", 3: "x4", 4: "x5", 5: "x6"}
    MV = {s: s - 14 for s in range(14, 14 + opt('nmv', 8))}
if XH:
    left = list(range(2 + XH, 7))
    XD = {2 * k: cb for k, cb in enumerate(left)}
    XRD = {1 + k: 2 + k for k in range(XH)}
    XRD.update({2 * k + 4: cb for k, cb in enumerate(left)})
    w0 = max(6, 2 * len(left)) + opt('wsh', 0)
    NP = opt('np', 9)
    WDD = dict(zip(list(range(w0, 25, 2)) + [23], range(NP)))
    assert len(WDD) == NP and sorted(WDD) == sorted(WDD, key=WDD.get) or True
    order = sorted(WDD)
    WDD = dict(zip(order, range(NP)))
    MV, t_ = {}, 0
    for kk in range(opt('nmv', 2 * (NP - 5))):
        t_ = max(t_ + 1, order[kk >> 1] + 4, 2 * kk + 2)
        MV[t_] = kk
    assert max(MV) <= 24
    for p_ in range(6, NP):
        assert order[p_] > [k for k, v in MV.items() if v == 2 * (p_ - 6) + 1][0], (p_, order, MV)
    for p_ in range(1, 6):
        assert order[p_] > [k for k, v in XRD.items() if v == p_ + 1][0]
XS0 = 5
if T64 and SH:
    XD = {2 + 2 * k: 2 + k for k in range(5)}
    NP = opt('np', 7)
    WDD = dict(zip([12, 14, 16, 18, 20, 22, 24, 23][:NP], range(NP)))
    WDD = dict(zip(sorted(WDD), range(NP)))
    XS0 = 7
MV = {k: [v] for k, v in MV.items()}
if opt('mvp', 6 if T64 else 0):
    MV = {sorted(WDD)[q] + 4 + opt('mvo', 0): [2 * q, 2 * q + 1] for q in range(opt('mvp', 6 if T64 else 0)) if sorted(WDD)[q] + 4 <= 24}
NMV = sum(len(v) for v in MV.values())
carry, pre = [], []
DG = opt('dg', 2)
for s in range(25):
    if s % 2 == 0 and s > 0:
        stamp("g")
    if 1 <= s <= 4:
        stamp("k")
    if s == opt('dat', -1):
        a("s_sleep 16\ns_sleep 16")
    extra, dma = [], None
    if s % 2 == 1:
        u = (s + 1) // 2
        lt = {1: "kx" if T64 else "x1", 5: "kr"}.get(s)
        a.wait_both(tok[f"u{u}"], ltok[lt] if lt else None)
        a("s_barrier")
        if u + 2 < 14:
            dma = ([], w_unit(u + 2), f"u{u+2}")
    if T64 and XS0 <= s < XS0 + 10:
        extra = [x_read(k, ta) for k in (8 + 2 * (s - XS0), 9 + 2 * (s - XS0)) for ta in range(2)] + extra
    if T64 and SH and s == 0:
        dma = ([], w_unit(2), "u2")
    if s == 0 and not T64:
        extra += [("wv", "x1")] + [x_read(k) for k in range(4, 8)] + [("lt", "x1")]
    if s in XD:
        dma = ([], x_block(XD[s]), f"x{XD[s]}")
    if s in XRD and not T64:
        cb = XRD[s]
        extra += [("wv", f"x{cb}")] + [x_read(k) for k in range(4 * cb, 4 * cb + 4)] + [("lt", f"x{cb}")]
    if s in WDD:
        p = WDD[s]
        need = (None if T64 else PSORD[p]) if p < 6 else f"mv{2*(p-6)+1}"
        dma = ([("wl", need)] if need else [], wd_pair(2 * p), f"wd{2*p}")
    for kk in MV.get(s, []):
        assert s >= (kk + 1 if T64 else 2 * kk + 2)
        if kk % 2 == 0:
            extra += [("wv", f"wd{kk}")]
        extra += wd_move(kk) + [("lt", f"mv{kk}")]
    if s == 12:
        extra += [NC_LOAD]
    if s == 16:
        poll("nc", NC_LOAD, NC_CMP)
        a(f"v_readfirstlane_b32 {snonce}, v{vNo}")
    if s == FL_AT:
        extra += [FL_LOAD]
    if s == FL_POLL:
        poll("fl", FL_LOAD, F_CMP)
        extra += [f"buffer_load_dword v{vF}, v{vN8}, {rWs}, {sST} offen sc1",
                  f"s_lshl_b32 s74, s97, 3\ns_add_u32 s74, s74, {WS_ST+4}\nbuffer_load_dword v228, v{vN8}, {rWs}, s74 offen sc1"]
        if T64:
            extra += [f"buffer_load_dwordx4 v[156:159], v{vCS}, {rWs}, {sCS} offen sc1",
                      f"buffer_load_dword v154, v{vN8}, {rWs}, {sST} offen offset:256 sc1"]
        else:
            extra += [f"buffer_load_dwordx4 a[{160+4*t}:{163+4*t}], v{vCS}, {rWs}, {sCS} offen offset:{512*t} sc1" for t in range(2)]
    extra += fillg[s]
    AB = opt('ab', '')
    if dma and (('x' in AB and dma[2][0] == 'x') or ('w' in AB and dma[2][0] == 'w') or ('u' in AB and dma[2][0] == 'u')):
        dma = (dma[0], ["s_nop 0"] * 6, dma[2])
    main = []
    for t in range(8):
        tl, ta = (t >> 1, t & 1) if T64 else (t, 0)
        j = 4 * ta + tl if T64 else t
        if t % WG == 0 and s > 0:
            (main[-1] if main else pre).append(("wl", f"f{(t+WG-1) >> T64}"))
        c = "0" if s == 0 else f"v[{16*j}:{16*j+15}]"
        m = [f"v_mfma_f32_32x32x16_bf16 v[{16*j}:{16*j+15}], a[{WF(tl)}:{WF(tl)+3}], a[{XF(s, ta)}:{XF(s, ta)+3}], {c}"]
        if dma and t == 0:
            if T64 and DG == 2:
                pre = dma[0] + [dma[1][0]] + pre
            else:
                m += dma[0] + [dma[1][0]]
        if not T64 or ta == 1:
            m += wfrag_read(s + 1, tl, WF(tl)) + [("lt", f"f{tl}")]
        pos = {0: (1, 3, 5, 7), 1: (1, 2, 4, 6), 2: (0, 2, 4, 6)}[DG if T64 else 0]
        if dma and t in pos:
            k = pos.index(t)
            m.append(dma[1][1 + k])
            if k == 3:
                m += [("vt", dma[2]), dma[1][5]]
        main.append(m)
    if s == 24 and opt('b13', 1):
        main[4] += [("wv", "u13"), "s_barrier"]
        main[6] += wfrag_read(26, 0, 144 if T64 else 168)
        main[7] += wfrag_read(27, 0, 148 if T64 else 172)
    put(pre + pack(main, extra, 24))
    pre = []
stamp("g")
TF = 144 if T64 else 168
if not opt('b13', 1):
    a.wait_vm(tok["u13"])
    a("s_barrier")
    put(wfrag_read(26, 0, TF) + wfrag_read(27, 0, TF + 4))
first = [f"v_cmp_gt_u32 vcc, 32, v255", "v_mov_b32 v152, 0", "v_mov_b32 v153, 0",
         f"s_add_u32 m0, {sUl}, {U1_OFF+448}", f"buffer_load_dwordx4 v{vL16}, {rWs}, {sUg} offen sc1 lds",
         f"buffer_load_dwordx4 v{vL16}, {rWs}, {sUg} offen offset:1024 sc1 lds",
         f"v_cndmask_b32 v192, 0, v{vF}, vcc\nv_cndmask_b32 v197, 0, v{vF}, vcc"]
second = [f"s_sub_u32 {sUg}, {sUg}, 2\ns_add_u32 m0, {sUl}, 448", f"buffer_load_dwordx4 v{vL16}, {rWs}, {sUg} offen sc1 lds",
          f"buffer_load_dwordx4 v{vL16}, {rWs}, {sUg} offen offset:1024 sc1 lds", ("vt", "u")]
main, epi = [], []
for t in range(8):
    r = TF + 8 * (t % 2)
    cb = (192, 196, 190, 194)[t & 3]
    tl, ta = (t & 3, t >> 2) if T64 else (t, 0)
    xf = lambda s: f"a[{XF(s, ta)}:{XF(s, ta)+3}]"
    ops = [(f"a[{WF(tl)}:{WF(tl)+3}]", xf(25)), (f"a[{r}:{r+3}]", xf(26)), (f"a[{r+4}:{r+7}]", xf(27)),
           ("v[156:159]" if T64 else f"a[{160+(t & 4)}:{163+(t & 4)}]", f"v[{cb}:{cb+3}]")]
    for k, (A, B) in enumerate(ops):
        m = [f"v_mfma_f32_32x32x16_bf16 v[{16*t}:{16*t+15}], {A}, {B}, v[{16*t}:{16*t+15}]"]
        if t < 7 and k in (0, 1):
            m += wfrag_read(26 + k, (t + 1) & (3 if T64 else 7), TF + 8 * ((t + 1) % 2) + 4 * k)
        if T64 and t == 4 and k == 0:
            m += ["v_cndmask_b32 v192, 0, v154, vcc", "v_cndmask_b32 v197, 0, v154, vcc"]
        main.append(m)
    b = 16 * t
    L = [f"v_max_f32 v{b+r}, 0, v{b+r}" for r in range(8)]
    if t < 6:
        L += [f"v_mul_f32 v{b+r}, v{b+r}, v{b+8+r}" for r in range(8)]
    else:
        L += [f"v_pk_mul_f32 v[{b+r}:{b+r+1}], v[{b+r}:{b+r+1}], v[{b+8+r}:{b+9+r}]" for r in range(0, 8, 2)]
    L += [f"v_cvt_pk_bf16_f32 v{b+8+r}, v{b+2*r}, v{b+2*r+1}" for r in range(4)]
    L += [f"buffer_store_dwordx4 v[{b+8}:{b+11}], v{vL16}, {rWs}, {(sH0, sH1)[t >> 2]} offen offset:{1024*(t & 3)} sc1"]
    epi.append(L)
stamp("t")
if opt('usp', 1):
    main[0] += first[:5]
    main[1] += [first[1 + 5]]
    main[2] += [first[5]]
    main[3] += second[:1]
    main[4] += second[1:2]
    main[6] += second[2:]
    put(sum(main[:6], []))
else:
    put(pack(main[:3], first, 24) + pack(main[3:6], second, 24))
for t in range(6):
    stamp("t")
    put(pack(main[4 * t + 6:4 * t + 10], epi[t], 24))
stamp("t")
put(pack(main[30:], epi[6][:8], 24))
rest = epi[6][8:] + epi[7]
stamp()
stamp("t")
a("s_barrier")
stamp("t")


def octet_writes(d, ar, off):
    return [f"ds_write_b128 v{ar+3}, v[{d}:{d+3}] offset:{off}",
            f"ds_write2_b64 v{ar+1}, v[{d}:{d+1}], v[{d+2}:{d+3}] offset0:{off//8} offset1:{off//8+1}"] + \
           [f"ds_write2_b32 v{ar+c}, v{d+k}, v{d+k+1} offset0:{off//4+k} offset1:{off//4+k+1}" for c in (0, 2) for k in (0, 2)]


put(weave(rest, octet_writes(136, vKC, 0) + octet_writes(144, vKC + 4, 0)
          + [f"ds_write_b32 v{vKZ}, v152 offset:{4096-12}", f"ds_write_b64 v{vUZ}, v[152:153]"]))
tok["h"] = a.vm_tok()
stamp("t")
stamp("t")
a(f"s_andn2_b64 exec, 1, {sOdd}")
a.wait_vm(tok["u"])
a(f"""ds_write_b16 v{vUZ}, v152 offset:448
s_mov_b64 exec, -1
s_waitcnt lgkmcnt(0)""")
stamp("t")
a("s_barrier")
stamp()
stamp("t")


def a_read(n):
    return f"ds_read_b128 a[{128+4*(n % 4)}:{131+4*(n % 4)}], v{vCK} offset:{64*(62-2*n)}"


def u_read(be, i):
    return f"ds_read_b128 v[{16*be+4*i}:{16*be+4*i+3}], v{vCU} offset:{512*be-128*i+384}"


NH = opt('nh', 8)
ORD = list(range(16, 28)) + list(range(16))


def h_load(i):
    g = []
    for ta in range(2):
        r = 96 + 8 * (i % NH) + 4 * ta
        g.append(f"buffer_load_dwordx4 v[{r}:{r+3}], v{vH+ta}, {rWs}, {sHoff} offen offset:{1024*(i % 4)} {HFL}")
    if i % 4 == 3:
        if ROT:
            g[-1] += "\n" + wrap(sHoff, 4096, "s11", "s10")
        else:
            g[-1] += f"\ns_add_u32 {sHoff}, {sHoff}, 4096" if i != 11 else f"\ns_sub_u32 {sHoff}, {sHoff}, {24*1024}"
    return g


put([a_read(0)] + [u_read(be, 0) for be in range(8)] + [a_read(1), a_read(2)])
FH_LOAD = f"buffer_load_dword v{vF}, v{vFH}, {rWs}, {sFHr} offen sc1"
fill = {n: [] for n in range(32)}
for i in range(1, 4):
    fill[i - 1] += [u_read(be, i) for be in range(8)]
fill[2] += [("lt", "ub")]
if XRAT:
    fill[3] += XRES
if T64:
    fill[FHW_AT] += [f"v_mul_u32_u24 v155, {FSP}, v255", ("wv", "h"),
                     f"s_mov_b64 exec, 3\nbuffer_store_dword v{vNo}, v155, {rWs}, {sFHw} offen sc1\ns_mov_b64 exec, -1"]
else:
    fill[FHW_AT] += [("wv", "h"), f"s_mov_b64 exec, 1\nbuffer_store_dword v{vNo}, v{vZ}, {rWs}, {sFHw} offen sc1\ns_mov_b64 exec, -1"]
SPR = opt('spr', 1)
vq = {n: [] for n in range(32)}
if SPR:
    assert NMV % 2 == 0
    n, at_, mv_ = (0 if NP < 9 else 1), {}, {}
    nm = 3
    for p in range(NP, 14):
        q = p - 6
        if 2 * q >= NMV:
            nm = max(nm, at_.get(q, -9) + opt('lag', 6))
            for kk in (2 * q, 2 * q + 1):
                fill[nm] += ([("wv", f"wd{kk}")] if kk % 2 == 0 else []) + wd_move(kk) + [("lt", f"mv{kk}")]
            n = max(n, nm + 1)
            nm += 1
        g = wd_pair(2 * p)
        if n > 0:
            (vq[n - 1][-1] if vq[n - 1] else fill[n - 1]).append(g[0])
        vq[n] += [([("wl", f"mv{2*q+1}")] if 2 * q >= NMV else []) + g[(n > 0):2], [g[2]]]
        vq[n + 1] += [[g[3]], [g[4], ("vt", f"wd{2*p}"), g[5]]]
        at_[p] = n
        n += 2
else:
    n = opt('mv0', 3)
    pend = [p for p in range(NP, 14) if 2 * (p - 6) + 1 < NMV]
    for k, p in enumerate(pend):
        fill[1 + k] = wd_pair(2 * p) + [("vt", f"wd{2*p}")] + fill[1 + k]
    for kk in range(NMV, 16):
        if kk % 2 == 0:
            fill[n] += [("wv", f"wd{kk}")]
        fill[n] += wd_move(kk) + [("lt", f"mv{kk}")]
        if kk % 2 == 1:
            fill[n + 2] += [("wl", f"mv{kk}")] + wd_pair(kk + 11) + [("vt", f"wd{kk+11}")]
        n += 1
YB, YW = opt('yb', 5), opt('yw', 16)
fill[FH_AT] += [FH_LOAD]
YL = opt('yl', 0)
ywr = [f"ds_write_b128 v{vYW}, a[{224+4*j}:{227+4*j}] offset:{4096*((j+1) % 8)}" for j in range(8)]
for j in range(min(7, 8 - YL)):
    fill[(YW, YW + 1, YW + 2, max(17, YW + 3), 21, 25, 29)[j]] += [ywr[j]]
hl = [(i, g) for i in range(28) for g in h_load(i)]
for n in range(FH_POLL, 32):
    if hl[0][0] < NH:
        fill[n] += [hl.pop(0)[1]]
for P in range(8):
    for i in range(4):
        n = 4 * P + i
        if n % 4 == 0 or n in (2, 6, 10):
            stamp("c")
        if n == YB:
            a.wait_lg(ltok["ub"])
            a("s_barrier")
        if n == FH_POLL:
            poll("fh", FH_LOAD, F_CMP)
        main = []
        for be in range(8 - P):
            j = P + be
            c = "0" if n == 0 else f"a[{224+4*j}:{227+4*j}]"
            main.append(f"v_mfma_f32_16x16x32_bf16 a[{224+4*j}:{227+4*j}], a[{128+4*(n % 4)}:{131+4*(n % 4)}], v[{16*be+4*i}:{16*be+4*i+3}], {c}")
        main = [[m] for m in main]
        for k, v in enumerate(vq[n]):
            main[k * len(main) // len(vq[n])] += v
        put(pack(main, ([a_read(n + 3)] if n + 3 < 32 else []) + fill[n], 8))
stamp()
stamp("f")
put([("wv", "wd16")] + wd_read(16, 128))
if not YL:
    a(ywr[7])
    ltok["y7"] = a.lg_tok()
stamp()
stamp("f")

XS = lambda g, e: (80 if g < 4 else 0) + 4 * g + 2 * e
FY_LOAD = f"buffer_load_dword v{vF}, v{vN4}, {rWs}, s80 offen sc1"
fill = {k: [] for k in range(28)}
Y0 = (YL + 3) // 4
for k, e in enumerate(ywr[8 - YL:]):
    fill[k // 4] += [e, ("lt", "y7")]
fill[Y0] += [("wl", "y7"), "s_barrier"]
for jj in range(2):
    r = 64 + 16 * jj
    fill[Y0] += [f"ds_read_b64 v[{r+4*src+2*ph}:{r+4*src+2*ph+1}], v{vYR+jj} offset:{1024*src+16*ph}"
                for src in range(4) for ph in range(2)]
    fill[Y0 + 1 + jj] += [f"v_add_f32 v{r+k}, v{r+k}, v{r+k+4}" for k in (0, 1, 2, 3, 8, 9, 10, 11)]
    fill[Y0 + 1 + jj] += [f"v_cvt_pk_bf16_f32 v{r+4+k}, v{r+o}, v{r+8+o}" for k, o in enumerate((0, 2, 1, 3))] + \
        [f"buffer_store_dwordx4 v[{r+4}:{r+7}], v{vL16}, {rWs}, {sY} offen offset:{1024*jj} sc1", ("vt", "y")]
fill[4] += lines(f"""s_lshr_b32 s74, {sjc}, 5
s_lshl_b32 s74, s74, 2
s_add_u32 s74, s74, {sw}
s_mul_i32 s74, s74, {FSP}
s_and_b32 s75, {sjc}, 31
s_lshl_b32 s75, s75, 2
s_add_u32 s74, s74, s75
s_add_u32 s95, s74, {WS_FY}""", 2)
fill[FYW_AT + Y0] += [("wv", "y"), f"s_mov_b64 exec, 1\nbuffer_store_dword v{vNo}, v{vZ}, {rWs}, s95 offen sc1\ns_mov_b64 exec, -1"]
fill[5] += lines(f"""s_lshl_b32 s80, {sc2}, 2
s_lshr_b32 s74, {sr2}, 3
s_add_u32 s80, s80, s74
s_mul_i32 s80, s80, {FSP}
s_add_u32 s80, s80, {WS_FY}
s_add_u32 s13, {sw4k}, {RX}
v_add_u32 v230, s13, v{vL16}""", 2)
fill[9] += [f"ds_write_b128 v230, v[242:245] offset:{XR}"] + lines(f"""v_mul_u32_u24 v234, 224, v{vN4}
v_lshl_add_u32 v234, v{fKG}, 4, v234""")
fill[10] += [f"ds_write_b128 v230, v[246:249] offset:{XR+1024}"] + lines(f"""v_lshlrev_b32 v231, 4, v{fR}
v_lshl_add_u32 v231, v{vN4}, 4, v231
v_lshl_add_u32 v231, v{fKG}, 3, v231""")
fill[12] += lines(f"""v_add_u32 v236, s13, v231
v_xor_b32 v237, 16, v236
v_xor_b32 v238, 32, v236
v_xor_b32 v239, 48, v236
v_mul_u32_u24 v235, {2*YS}, v{fKG}
v_add_u32 v235, v235, v{vN4}""") + [f"ds_read_b64 v[{64+2*g}:{65+2*g}], v{236+g} offset:{XR}" for g in range(4)] + [("lt", "xr")]
fill[13] += lines(f"""s_mul_i32 s74, s17, {YS//4}
s_lshl_b32 s75, s97, 2
s_add_u32 s74, s74, s75
s_add_u32 s96, s74, {WS_Y}""", 2)
fill[14] += [f"v_xor_b32 v{240+k}, {4096*k}, v230" for k in range(1, 4)]
fill[FY_AT] += [FY_LOAD]
for g in range(4):
    for e in range(2):
        fill[17 + g] += [f"v_lshlrev_b32 v{XS(g, e)}, 16, v{64+2*g+e}", f"v_and_b32 v{XS(g, e)+1}, {sMask}, v{64+2*g+e}"]
for g in range(4):
    for e in range(2):
        fill[min(27, FY_POLL + g // 2)] += [f"buffer_load_dword v{72+2*g+e}, v235, {rWs}, s96 offen sc1\ns_add_u32 s96, s96, {YS if e == 0 else 3*YS}"]
DEF = opt('def', NH)
late = []
HL0 = opt('hl0', 1)
for i in range(28):
    kk = ORD[i]
    if i % 2 == 0 and i > 0:
        stamp("h")
    if i < 14:
        stamp("j")
    extra = []
    if i + 1 < 12:
        if (kk + 1) % 2 == 0:
            extra += [("wv", f"wd{kk+1}")]
        extra += wd_read(kk + 1, 128 + 8 * ((kk + 1) % 2))
    if i == FY_POLL:
        poll("fy", FY_LOAD, F_CMP)
    main = []
    for ta in range(2):
        for da in range(2):
            acc = 16 * (da + 2 * ta)
            c = "0" if i == 0 else f"v[{acc}:{acc+15}]"
            fa = (8 * kk if kk < 16 else 128 + 8 * (kk % 2)) + 4 * da
            fb = 96 + 8 * (i % NH) + 4 * ta
            m = [f"v_mfma_f32_32x32x16_bf16 v[{acc}:{acc+15}], a[{fa}:{fa+3}], v[{fb}:{fb+3}], {c}"]
            if acc == 0 and i >= 28 - DEF:
                late.append(m)
                continue
            if hl and i >= HL0 and (da, ta) != (0, 0) and (hl[0][0] < i + NH or (hl[0][0] == i + NH and da == 1 and len(hl) % 2 == ta % 2)):
                m.append(hl.pop(0)[1])
            main.append(m)
    AB = opt('ab', '')
    fl_ = fill[i]
    if 'X' in AB:
        fl_ = [e for e in fl_ if isinstance(e, tuple) or not (" lds" in e or "v80," in e)]
    if 'Y' in AB and i == FYW_AT:
        fl_ = [e for e in fl_ if e != ("wv", "y")]
    if 'D' in AB:
        extra = [e for e in extra if not isinstance(e, tuple)]
    put(pack(main, extra + fl_, 24))
assert not hl
stamp()
stamp("f")
wr = [f"ds_write_b128 v230, v[{16*k+4*g}:{16*k+4*g+3}] offset:{(k-1)*16384+1024*g}" for k in range(1, 4) for g in range(4)]
yadd = []
for g in range(4):
    for e in range(2):
        yr, d = 72 + 2 * g + e, XS(g, e)
        yadd += [f"v_lshlrev_b32 v64, 16, v{yr}", f"v_and_b32 v65, {sMask}, v{yr}",
                 f"v_add_f32 v{d}, v{d}, v64", f"v_add_f32 v{d+1}, v{d+1}, v65"]
YIN = opt('yin', 1)
w1 = weave(late, wr[:8]) if late else wr[:8]
put(w1 + (weave(wr[8:], yadd) if YIN else wr[8:]))
stamp("f")
a("s_waitcnt lgkmcnt(0)")
stamp("f")
a("s_barrier")
stamp("f")
for g in range(4):
    for k in range(1, 4):
        a(f"ds_read_b128 v[{16*k+4*g}:{16*k+4*g+3}], v{240+k} offset:{(k-1)*16384+1024*g}")
stamp("f")
if not YIN:
    put(yadd)
stamp("f")
for g in range(4):
    for e in range(2):
        r = 4 * g + 2 * e
        for k in range(1, 4):
            a(f"v_pk_add_f32 v[{r}:{r+1}], v[{r}:{r+1}], v[{16*k+r}:{16*k+r+1}]")
        a(f"v_pk_fma_f32 v[{r}:{r+1}], v[{r}:{r+1}], v[228:229], v[{XS(g, e)}:{XS(g, e)+1}] op_sel_hi:[1,0,1]")
    a(f"v_cvt_pk_bf16_f32 v{116+2*g}, v{4*g}, v{4*g+1}\nv_cvt_pk_bf16_f32 v{117+2*g}, v{4*g+2}, v{4*g+3}")
    if g % 2 == 1:
        b = 116 + 2 * (g - 1)
        a(f"v_permlane32_swap_b32 v{b}, v{b+2}\nv_permlane32_swap_b32 v{b+1}, v{b+3}")
        a(f"buffer_store_dwordx4 v[{b}:{b+3}], v234, {rOut}, s16 offen offset:{16*(g-1)} {OUTFL}")
        stamp("f")
stamp()


def stamp_out():
    if not STAMP:
        return
    a(f"""
s_waitcnt vmcnt(0) lgkmcnt(0)
v_writelane_b32 v254, s98, {nstamp[0]-1}
{CLK} s[98:99]
s_waitcnt lgkmcnt(0)
v_writelane_b32 v254, s98, 15
s_lshl_b32 s84, s2, 2
s_add_u32 s84, s84, {sw}
s_lshl_b32 s84, s84, 6
s_add_u32 s84, s84, {WS_TS}
v_lshlrev_b32 v1, 2, v255
s_mov_b64 exec, 0xffff
buffer_store_dword v254, v1, {rWs}, s84 offen
""")


stamp_out()
a("s_endpgm")

a.reset()
NC_LOAD = f"global_load_dword v202, v203, s[{sDbg}:{sDbg+1}] sc1"
NC_CMP = "v_cmp_eq_u32 vcc, 0, v202"
shq = "s59"
a(f"""
L_helper:
s_lshl_b32 {shq}, {sxcd}, 2
s_add_u32 {shq}, {shq}, {sj}
v_mov_b32 v203, 0
v_lshrrev_b32 v1, 2, v255
s_lshl_b32 s83, {shq}, 2
s_add_u32 s83, s83, {sw}
s_lshl_b32 s72, s83, 4
v_add_u32 v4, s72, v1
v_mul_u32_u24 v5, 896, v4
v_and_b32 v2, 3, v255
v_lshl_add_u32 v5, v2, 4, v5
s_lshr_b32 s73, {sxcd}, 1
s_lshl_b32 s73, s73, 2
s_add_u32 s60, s73, {sj}
s_min_u32 s73, s60, 13
s_and_b32 s74, {sxcd}, 1
s_mul_i32 s74, s74, 14
s_add_u32 s61, s73, s74
s_lshr_b32 s73, s61, 1
s_lshl_b32 s82, s73, 8
v_lshrrev_b32 v6, 4, v255
s_lshl_b32 s75, {sw}, 2
v_add_u32 v6, s75, v6
v_mul_u32_u24 v7, 3584, v6
v_and_b32 v3, 15, v255
v_lshl_add_u32 v7, v3, 4, v7
s_mov_b32 s72, {WS_EP}
s_waitcnt lgkmcnt(0)
""")
if STAMP:
    a("v_mov_b32 v254, 0\nv_writelane_b32 v254, s100, 0")
    nstamp[0] = 1
stamp(SEL[0])
a(f"""
s_mov_b32 s36, s{sX}
s_mov_b32 s37, s{sX+1}
s_add_u32 s48, s{sWs}, {WSOFF}
s_addc_u32 s49, s{sWs+1}, 0
buffer_load_dword v202, v203, {rWs}, s72 offen sc1
""")
for i in range(14):
    a(f"buffer_load_dwordx4 v[{8+4*i}:{11+4*i}], v5, {rX}, 0 offen offset:{64*i}")
a(f"""
s_mov_b32 s73, 1664525
v_mul_lo_u32 v202, v202, s73
s_cmp_eq_u32 s83, 127
v_add_u32 v202, 1013904225, v202
v_or_b32 v202, 1, v202
s_cbranch_scc0 L_hnoep
s_mov_b64 exec, 1
""")
a.items.append(("raw", f"    global_store_dword v203, v202, s[{sDbg}:{sDbg+1}] sc1"))
a.items.append(("raw", f"    buffer_store_dword v202, v203, {rWs}, s72 offen sc1"))
a(f"""
s_mov_b64 exec, -1
L_hnoep:
s_bitcmp1_b32 s61, 0
s_cselect_b32 s40, s{sWu}, s{sWg}
s_cselect_b32 s41, s{sWu+1}, s{sWg+1}
""")
wl = [f"buffer_load_dwordx4 v[{72+4*i}:{75+4*i}], v7, {rW}, s82 offen\ns_add_u32 s82, s82, {16*3584}" for i in range(28)]
HW0 = opt('hw0', 0)
put(wl[:HW0])
wl = wl[HW0:]
a(f"""
s_mov_b32 s76, 0x3f803f80
s_mov_b32 s77, 0x00003f80
s_mov_b32 s79, 0x3f800000
""")
for _ in range(opt('dhelp', 0)):
    a("s_sleep 16")
EXACT = "--noexact" not in sys.argv
L = []
for i in range(56):
    c0, c1 = ("0", "0") if i == 0 else ("v64", "v68")
    L.append([f"v_dot2_f32_bf16 v64, v{8+i}, s76, {c0}", f"v_dot2_f32_bf16 v68, v{8+i}, v{8+i}, {c1}"])
HW1 = opt('hw1', 0)
put(L[0] + weave(L[1:], wl[:HW1]))
wl = wl[HW1:]
stamp()
a(f"""
v_add_f32_dpp v64, v64, v64 quad_perm:[1,0,3,2] row_mask:0xf bank_mask:0xf
v_add_f32_dpp v68, v68, v68 quad_perm:[1,0,3,2] row_mask:0xf bank_mask:0xf
v_lshlrev_b32 v4, 3, v4
v_add_f32_dpp v64, v64, v64 quad_perm:[2,3,0,1] row_mask:0xf bank_mask:0xf
v_add_f32_dpp v68, v68, v68 quad_perm:[2,3,0,1] row_mask:0xf bank_mask:0xf
v_mul_f32 v64, {hex(0x3b124925)}, v64
v_mul_f32 v68, {hex(0x3b124925)}, v68
v_fma_f32 v68, -v64, v64, v68
v_cvt_pk_bf16_f32 v64, -v64, -v64
v_max_f32 v68, 0, v68
v_cvt_pk_bf16_f32 v68, v68, v68
v_and_b32 v68, {sMask}, v68
v_add_f32 v68, 0x3727c5ac, v68
v_cvt_pk_bf16_f32 v68, v68, v68
v_and_b32 v68, {sMask}, v68
v_sqrt_f32 v68, v68
v_and_b32 v66, {sMask}, v64
v_cvt_pk_bf16_f32 v68, v68, v68
v_and_b32 v68, {sMask}, v68
v_rcp_f32 v70, v68
s_mov_b32 s74, {WS_ST}
v_fma_f32 v71, -v68, v70, 1.0
v_fma_f32 v70, v70, v71, v70
v_mul_f32 v65, v70, v70
v_mul_f32 v71, v66, v70
s_mov_b32 s80, 0x11111111
s_mov_b32 s81, 0x11111111
s_mov_b64 exec, s[80:81]
buffer_store_dwordx2 v[64:65], v4, {rWs}, s74 offen sc1
s_mov_b64 exec, -1
v_mul_u32_u24 v5, 960, v1
s_mul_i32 s75, {sw}, {16*960}
v_lshl_add_u32 v5, v2, 4, v5
v_add_u32 v5, s75, v5
""")
L2B = 64 * 960
L3B = L2B + 448 * 144
a(f"""
v_lshrrev_b32 v1, 5, v255
v_bfe_u32 v2, v255, 2, 2
v_lshl_add_u32 v2, v1, 3, v2
v_mul_u32_u24 v2, 960, v2
v_bfe_u32 v4, v255, 4, 1
v_lshl_add_u32 v2, v4, 5, v2
v_and_b32 v4, 3, v255
v_lshl_add_u32 v2, v4, 3, v2
v_add_u32 v194, s75, v2
v_and_b32 v4, 31, v255
v_mul_u32_u24 v4, 144, v4
s_lshl_b32 s74, {sw}, 5
s_add_u32 s74, s74, {L2B}
v_lshl_add_u32 v4, v1, 4, v4
v_add_u32 v195, s74, v4
v_lshlrev_b32 v6, 9, v6
v_lshl_add_u32 v6, v3, 5, v6
v_add_u32 v6, {L3B}, v6
v_lshrrev_b32 v1, 3, v255
v_and_b32 v2, 7, v255
v_lshlrev_b32 v2, 4, v2
v_mul_u32_u24 v197, {XTS}, v1
v_add_u32 v197, v197, v2
v_mul_u32_u24 v1, 144, v1
v_add_u32 v1, v1, v2
s_mul_i32 s74, {sw}, {112*144}
s_add_u32 s74, s74, {L2B}
v_add_u32 v196, s74, v1
s_lshl_b32 s74, {shq}, 7
s_mul_i32 s75, {sw}, {112*XTS}
s_add_u32 s74, s74, s75
s_add_u32 s62, s74, {WS_XT}
s_and_b32 s75, {sw}, 1
s_lshl_b32 s75, s75, 8
v_lshl_add_u32 v2, v255, 2, s75
v_add_u32 v198, {L3B}, v2
""")


L = []
for i in range(56):
    t = 186 + 2 * (i % 4)
    if EXACT:
        g = [f"v_dot2_f32_bf16 v{t}, v{8+i}, s77, v66", f"v_dot2_f32_bf16 v{t+1}, v{8+i}, s79, v66"]
        if i > 0:
            p = 186 + 2 * ((i - 1) % 4)
            g += [f"v_cvt_pk_bf16_f32 v{7+i}, v{p}, v{p+1}", f"v_lshlrev_b32 v{p}, 16, v{7+i}", f"v_and_b32 v{p+1}, {sMask}, v{7+i}",
                  f"v_pk_mul_f32 v[{p}:{p+1}], v[{p}:{p+1}], v[70:71] op_sel_hi:[1,0]", f"v_cvt_pk_bf16_f32 v{7+i}, v{p}, v{p+1}"]
            if i % 4 == 0:
                g.append(f"ds_write_b128 v5, v[{4+i}:{7+i}] offset:{64*(i//4-1)}")
        if i == 55:
            g += ["s_nop 0", f"v_cvt_pk_bf16_f32 v63, v{t}, v{t+1}", f"v_lshlrev_b32 v{t}, 16, v63", f"v_and_b32 v{t+1}, {sMask}, v63",
                  f"v_pk_mul_f32 v[{t}:{t+1}], v[{t}:{t+1}], v[70:71] op_sel_hi:[1,0]", f"v_cvt_pk_bf16_f32 v63, v{t}, v{t+1}",
                  f"ds_write_b128 v5, v[60:63] offset:{64*13}"]
    else:
        g = [f"v_lshlrev_b32 v{t}, 16, v{8+i}", f"v_and_b32 v{t+1}, {sMask}, v{8+i}",
             f"v_pk_fma_f32 v[{t}:{t+1}], v[{t}:{t+1}], v[70:71], v[70:71] op_sel:[0,0,1] op_sel_hi:[1,0,1]",
             f"v_cvt_pk_bf16_f32 v{8+i}, v{t}, v{t+1}"]
        if i % 4 == 3:
            g.append(f"ds_write_b128 v5, v[{8+i-3}:{8+i}] offset:{64*(i//4)}")
    L.append(g)
HW2 = opt('hw2', 10)
put(weave(L, wl[:HW2]))
wl = wl[HW2:]
stamp()
if WM == 1:
    a(f"""
s_mul_i32 s74, s83, {98*128}
v_min_u32 v199, 48, v255
v_lshlrev_b32 v199, 7, v199
v_add_u32 v199, s74, v199
global_load_dword v200, v199, s[{sWd}:{sWd+1}]
global_load_dword v201, v199, s[{sWd}:{sWd+1}] offset:{0}
""".replace("global_load_dword v201, v199, s[28:29] offset:0", f"v_add_u32 v199, {49*128}, v199\nglobal_load_dword v201, v199, s[28:29]"))
HW3 = opt('hw3', 99)
put(wl[:min(HW3, 12)])
wl2 = wl[min(HW3, 12):HW3]
wl = wl[HW3:]
for b in range(14):
    a(f"ds_read_b64_tr_b16 v[{8+4*b}:{9+4*b}], v194 offset:{64*b}\nds_read_b64_tr_b16 v[{10+4*b}:{11+4*b}], v194 offset:{64*b+4*960}")
cs = []
for i in range(28):
    for d in range(4):
        c0, c1 = ("0", "0") if i == 0 else (f"v{64+2*d}", f"v{65+2*d}")
        cs += [f"v_dot2_f32_bf16 v{64+2*d}, v{72+4*i+d}, s77, {c0}", f"v_dot2_f32_bf16 v{65+2*d}, v{72+4*i+d}, s79, {c1}"]
NC0 = opt('nc0', 0)
put(weave([f"ds_write_b128 v195, v[{8+4*b}:{11+4*b}] offset:{32*144*b}" for b in range(14)], wl2 + cs[:NC0]))
a(f"{NC_LOAD}\ns_waitcnt lgkmcnt(0)\ns_barrier")
stamp()
for b in range(14):
    a(f"ds_read_b128 v[{8+4*b}:{11+4*b}], v196 offset:{8*144*b}")
put(weave([f"buffer_store_dwordx4 v[{8+4*b}:{11+4*b}], v197, {rWs}, s62 offen sc1\ns_add_u32 s62, s62, {8*XTS}" for b in range(14)], [] if wl else cs[NC0:]))
if wl:
    put(wl + cs[NC0:])
a("""
ds_write_b128 v6, v[64:67]
ds_write_b128 v6, v[68:71] offset:16
s_waitcnt lgkmcnt(0)
s_barrier
""")
stamp()
for r in range(16):
    a(f"ds_read_b32 v{72+r}, v198 offset:{512*r}")
for st_ in (8, 4, 2, 1):
    for r in range(st_):
        a(f"v_add_f32 v{72+r}, v{72+r}, v{72+r+st_}")
a(f"""
v_cvt_pk_bf16_f32 v73, v72, v72
v_and_b32 v73, {sMask}, v73
v_sub_f32 v74, v72, v73
v_cvt_pk_bf16_f32 v73, v73, v74
v_lshlrev_b32 v2, 4, v3
v_lshrrev_b32 v1, 4, v255
v_lshl_add_u32 v2, v1, 2, v2
s_lshr_b32 s74, s61, 1
s_lshl_b32 s74, s74, 1
s_add_u32 s74, s74, {sw}
s_lshl_b32 s74, s74, 1
s_and_b32 s75, s61, 1
s_add_u32 s74, s74, s75
s_lshl_b32 s74, s74, 8
s_add_u32 s74, s74, {WS_CS}
s_cmp_lt_u32 s60, 14
s_cselect_b32 s74, s74, {WS_SIZE}
s_cmp_lt_u32 {sw}, 2
s_cselect_b32 s74, s74, {WS_SIZE}
buffer_store_dword v73, v2, {rWs}, s74 offen sc1
""")
stamp()
for _ in range(opt('dh2', 0)):
    a("s_sleep 16")
poll("hnc", NC_LOAD, NC_CMP)
a(f"""
v_mul_u32_u24 v1, {FSP}, v255
s_lshl_b32 s74, {shq}, 2
s_add_u32 s74, s74, {WS_FL}
s_waitcnt vmcnt(0)
s_barrier
s_cmp_eq_u32 {sw}, 0
s_cbranch_scc0 L_hdone
s_mov_b64 exec, 0xff
buffer_store_dword v202, v1, {rWs}, s74 offen sc1
s_mov_b64 exec, -1
L_hdone:
""")
stamp()
stamp_out()
a("L_end:\ns_endpgm")
for sp in slow:
    a.reset()
    a(sp)
a("L_codeend:\ns_endpgm")

body = a.render()
if opt('align', 1):
    from align import align
    body, info = align(body, opt('nopc', 50.0))
    a.stats.update(info)
here = os.path.dirname(os.path.abspath(__file__))
ref = open(os.path.join(here, "..", "cdna_kernels", NAME + ".s.ref")).read()
head = [l for l in ref.split("\n") if l.startswith(";") and "@launch" not in l and "Override" not in l and "grid=ceil" not in l]
txt = "\n".join(head) + f"""
; Generated by tools/gen.py (hand-written generator).  WSOFF={WSOFF} XTS={XTS} YS={YS} CSL=1
; @launch grid=(256,1,1) block=(256,1,1) lds=163840
.amdgcn_target "amdgcn-amd-amdhsa--gfx950"
.text
.globl {NAME}_kernel
.p2align 8
.type {NAME}_kernel,@function
{NAME}_kernel:
{body}
.section .rodata,"a"
.p2align 6
.amdhsa_kernel {NAME}_kernel
  .amdhsa_next_free_vgpr 512
  .amdhsa_next_free_sgpr 102
  .amdhsa_accum_offset 256
  .amdhsa_group_segment_fixed_size 0
  .amdhsa_kernarg_size 128
  .amdhsa_user_sgpr_count 2
  .amdhsa_user_sgpr_kernarg_segment_ptr 1
  .amdhsa_system_sgpr_workgroup_id_x 1
.end_amdhsa_kernel
"""
out = [x for x in sys.argv[1:] if not x.startswith("--")]
path = out[0] if out else os.path.join(here, "..", "cdna_kernels", NAME + ".s")
open(path, "w").write(txt)
print(path, a.stats, file=sys.stderr)
```

```python
import re

TRANS = ("v_exp_f32", "v_log_f32", "v_rcp_f32", "v_rsq_f32", "v_sqrt_f32", "v_sin_f32", "v_cos_f32")


def regs_of(tok):
    tok = tok.strip()
    if tok.startswith("-"):
        tok = tok[1:]
    m = re.fullmatch(r"abs\((.*)\)", tok) or re.fullmatch(r"\|(.*)\|", tok)
    if m:
        tok = m.group(1)
    m = re.fullmatch(r"([vas])(\d+)", tok)
    if m:
        return {(m.group(1), int(m.group(2)))}
    m = re.fullmatch(r"([vas])\[(\d+):(\d+)\]", tok)
    if m:
        return {(m.group(1), i) for i in range(int(m.group(2)), int(m.group(3)) + 1)}
    if tok == "vcc":
        return {("s", "vcc")}
    if tok == "m0":
        return {("s", "m0")}
    if tok == "exec":
        return {("s", "exec")}
    return set()


class I:
    __slots__ = ("text", "op", "rd", "wr", "kind", "ops", "mods")

    def __init__(self, text):
        self.text = text
        parts = text.split(None, 1)
        self.op = op = parts[0]
        rest = parts[1] if len(parts) > 1 else ""
        raw = [p.strip() for p in re.split(r",(?![^\[]*\])", rest)] if rest else []
        mods = ""
        if raw:
            last = raw[-1].split(None, 1)
            raw[-1] = last[0] if last else ""
            mods = last[1] if len(last) > 1 else ""
        self.ops = raw
        self.mods = mods
        R = [regs_of(o) for o in raw]
        rd, wr = set(), set()
        U = lambda xs: set().union(*xs) if xs else set()
        if op.startswith("v_mfma"):
            self.kind = "mfma"
            wr = R[0]
            rd = U(R[1:])
        elif op.startswith("ds_read") or op.startswith("ds_bpermute") or op.startswith("ds_swizzle"):
            self.kind = "ds"
            wr = R[0]
            rd = U(R[1:])
        elif op.startswith("ds_"):
            self.kind = "ds"
            rd = U(R)
        elif op.startswith("buffer_load") or op.startswith("global_load"):
            self.kind = "vm"
            if re.search(r"\blds\b", mods):
                rd = U(R) | {("s", "m0")}
            else:
                wr = R[0]
                rd = U(R[1:])
        elif op.startswith("buffer_store") or op.startswith("global_store") or op.startswith("buffer_atomic"):
            self.kind = "vm"
            rd = U(R)
        elif op.startswith("s_load") or op.startswith("s_memtime") or op.startswith("s_memrealtime"):
            self.kind = "smem"
            wr = R[0]
            rd = U(R[1:])
        elif op.startswith("v_"):
            self.kind = "valu"
            wr = set(R[0])
            rd = U(R[1:])
            if op.startswith("v_permlane32_swap") or op.startswith("v_permlane16_swap"):
                wr |= R[1]
                rd |= R[0]
            if op.startswith("v_fmac") or op.startswith("v_dot2c") or "_dpp" in op or op.startswith("v_writelane"):
                rd |= R[0]
            if op.startswith("v_cndmask") and len(raw) == 3:
                rd |= {("s", "vcc")}
            if op.startswith("v_add_co") or op.startswith("v_addc_co"):
                wr |= R[1]
        elif op.startswith("s_"):
            self.kind = "salu"
            if op.startswith(("s_cmp", "s_waitcnt", "s_barrier", "s_nop", "s_branch", "s_cbranch", "s_endpgm",
                              "s_sleep", "s_setprio", "s_setpc", "s_bitcmp")):
                rd = U(R)
            else:
                wr = set(R[0]) if R else set()
                rd = U(R[1:])
                if "saveexec" in op:
                    wr |= {("s", "exec")}
                if op.startswith(("s_addk", "s_mulk")):
                    rd |= R[0]
        else:
            raise ValueError("unknown op " + text)
        self.rd, self.wr = rd, wr


class State:
    def __init__(self):
        self.vm = []
        self.lg = []
        self.smem = set()
        self.t = 0
        self.valu_w = {}
        self.trans_w = {}
        self.dot_w = {}
        self.mfma_w = {}
        self.m0_w = -99
        self.store_r = {}

    def copy(self):
        s = State()
        s.vm = list(self.vm); s.lg = list(self.lg); s.smem = set(self.smem); s.t = self.t
        s.valu_w = dict(self.valu_w); s.trans_w = dict(self.trans_w); s.dot_w = dict(self.dot_w)
        s.mfma_w = dict(self.mfma_w); s.m0_w = self.m0_w; s.store_r = dict(self.store_r)
        return s


class Asm:
    def __init__(self):
        self.items = []
        self.nid = 0
        self.last_vm = None
        self.last_lg = None

    def __call__(self, text):
        for line in text.split("\n"):
            line = line.split(";")[0].strip()
            if not line:
                continue
            if line.endswith(":") or line.startswith("."):
                self.items.append(("raw", line))
                continue
            ins = I(line)
            self.nid += 1
            if ins.kind == "vm":
                self.last_vm = self.nid
            if ins.kind == "ds":
                self.last_lg = self.nid
            self.items.append(("ins", ins, self.nid))

    def comment(self, s):
        self.items.append(("raw", "; " + s))

    def vm_tok(self):
        return self.last_vm

    def lg_tok(self):
        return self.last_lg

    def wait_vm(self, tok):
        self.items.append(("wvm", tok))

    def wait_lg(self, tok):
        self.items.append(("wlg", tok))

    def wait_both(self, vt, lt):
        self.items.append(("wboth", vt, lt))

    def fork(self, name):
        self.items.append(("fork", name))

    def other(self, name):
        self.items.append(("other", name))

    def join(self, name):
        self.items.append(("join", name))

    def reset(self):
        self.items.append(("reset",))

    def render(self):
        out = []
        st = State()
        saved = {}
        self.stats = {"nop": 0, "wait": 0, "ins": 0}

        def emit(t):
            out.append("    " + t)

        def cnt_after(q, tok):
            for k, (i, _) in enumerate(q):
                if i == tok:
                    return len(q) - 1 - k
            return None

        def do_wait(nv, nl):
            s = []
            if nv is not None:
                nv = min(nv, 63)
                if nv < len(st.vm):
                    s.append(f"vmcnt({nv})")
                    st.vm = st.vm[len(st.vm) - nv:] if nv else []
            if nl is not None:
                nl = min(nl, 15)
                if st.smem:
                    nl = 0
                if nl < len(st.lg) or st.smem:
                    s.append(f"lgkmcnt({nl})")
                    st.lg = st.lg[len(st.lg) - nl:] if nl else []
                    st.smem = set()
            if s:
                emit("s_waitcnt " + " ".join(s))
                st.t += 1
                self.stats["wait"] += 1

        for it in self.items:
            k = it[0]
            if k == "raw":
                out.append(it[1])
                continue
            if k == "wvm":
                do_wait(cnt_after(st.vm, it[1]), None); continue
            if k == "wlg":
                do_wait(None, cnt_after(st.lg, it[1])); continue
            if k == "wboth":
                do_wait(cnt_after(st.vm, it[1]), cnt_after(st.lg, it[2])); continue
            if k == "fork":
                saved[it[1]] = st.copy(); continue
            if k == "other":
                saved[it[1] + "/then"] = st
                st = saved[it[1]].copy(); continue
            if k == "join":
                a = saved.pop(it[1] + "/then", None) or saved[it[1]]
                b = st
                assert not a.smem and not b.smem
                m = b.copy()

                def merge(qa, qb):
                    n = max(len(qa), len(qb))
                    pa = [(None, set())] * (n - len(qa)) + qa
                    pb = [(None, set())] * (n - len(qb)) + qb
                    return [(ib if ib is not None else ia, ra | rb) for (ia, ra), (ib, rb) in zip(pa, pb)]
                m.vm = merge(a.vm, b.vm)
                m.lg = merge(a.lg, b.lg)
                for name in ("valu_w", "trans_w", "store_r"):
                    da, dm = getattr(a, name), getattr(m, name)
                    for r, t in da.items():
                        t2 = t - a.t + m.t
                        if dm.get(r, -99) < t2:
                            dm[r] = t2
                for name in ("dot_w", "mfma_w"):
                    da, dm = getattr(a, name), getattr(m, name)
                    for r, v in da.items():
                        t2 = v[0] - a.t + m.t
                        if r not in dm or dm[r][0] < t2:
                            dm[r] = (t2,) + tuple(v[1:])
                m.m0_w = max(m.m0_w, a.m0_w - a.t + m.t)
                st = m
                continue
            if k == "reset":
                st = State(); continue
            ins, iid = it[1], it[2]
            touched = ins.rd | ins.wr
            if ins.op == "s_waitcnt":
                mv = re.search(r"vmcnt\((\d+)\)", ins.text); ml = re.search(r"lgkmcnt\((\d+)\)", ins.text)
                if mv:
                    n = int(mv.group(1)); st.vm = st.vm[max(0, len(st.vm) - n):] if n else []
                if ml:
                    n = int(ml.group(1))
                    if n == 0:
                        st.lg = []; st.smem = set()
                    elif not st.smem:
                        st.lg = st.lg[max(0, len(st.lg) - n):]
                emit(ins.text); st.t += 1
                continue
            nv = nl = None
            for kx, (i, rs) in enumerate(st.vm):
                if rs & touched:
                    nv = len(st.vm) - 1 - kx
            for kx, (i, rs) in enumerate(st.lg):
                if rs & touched:
                    nl = len(st.lg) - 1 - kx
            if st.smem & touched:
                nl = 0
            do_wait(nv, nl)
            need = 0

            def req(tw, ws):
                nonlocal need
                need = max(need, ws - (st.t - tw - 1))

            isv = ins.kind == "valu"
            for r in touched:
                if r in st.mfma_w:
                    tw, ps, dset = st.mfma_w[r]
                    if ins.kind == "mfma":
                        cset = regs_of(ins.ops[3]); ab = regs_of(ins.ops[1]) | regs_of(ins.ops[2])
                        if r in ab:
                            req(tw, 12 if ps == 8 else 8)
                        elif cset == dset and ins.wr == dset:
                            pass
                        else:
                            req(tw, 10 if ps == 8 else 6)
                    else:
                        req(tw, 12 if ps == 8 else 8)
                if r in st.dot_w and ins.kind in ("valu", "mfma", "vm", "ds"):
                    tw, op = st.dot_w[r]
                    srcc = ins.op == op and ((len(ins.ops) == 4 and r in regs_of(ins.ops[3])
                                              and r not in regs_of(ins.ops[1]) | regs_of(ins.ops[2])))
                    if not srcc:
                        req(tw, 3)
            for r in ins.rd:
                if r in st.valu_w:
                    tw = st.valu_w[r]
                    if r[0] in "va":
                        if ins.kind == "mfma":
                            req(tw, 2)
                        if ins.op.startswith(("v_readfirstlane", "v_readlane")):
                            req(tw, 1)
                        if "_dpp" in ins.op or ins.op.startswith("v_permlane"):
                            req(tw, 2)
                    else:
                        if ins.kind == "vm":
                            req(tw, 5)
                        elif isv:
                            req(tw, 4 if ins.op.startswith(("v_readlane", "v_writelane")) else 2)
                        elif ins.kind in ("salu", "smem"):
                            req(tw, 1)
                if r in st.trans_w and ins.kind in ("valu", "mfma") and not ins.op.startswith(TRANS):
                    req(st.trans_w[r], 1)
                if r == ("s", "m0") and ins.kind == "vm":
                    req(st.m0_w, 1)
            if isv:
                for r in ins.wr:
                    if r in st.store_r:
                        req(st.store_r[r], 2)
            if need == 1 and ins.kind == "vm" and ("s", "m0") in ins.rd and st.m0_w == st.t - 1 and len(out) >= 2:
                prev = out[-2].strip()
                pop = prev.split()[0]
                if pop.startswith("ds_read"):
                    out[-1], out[-2] = out[-2], out[-1]
                    need = 0
            while need > 0:
                n = min(need, 16)
                emit(f"s_nop {n - 1}")
                st.t += n
                need -= n
                self.stats["nop"] += 1
            emit(ins.text)
            self.stats["ins"] += 1
            t = st.t
            st.t += 1
            if ins.op == "s_nop":
                st.t += int(ins.ops[0])
            for r in ins.wr:
                st.valu_w.pop(r, None); st.trans_w.pop(r, None); st.dot_w.pop(r, None); st.mfma_w.pop(r, None)
            if ins.kind == "valu":
                for r in ins.wr:
                    st.valu_w[r] = t
                    if ins.op.startswith(TRANS):
                        st.trans_w[r] = t
                    if ins.op.startswith("v_dot2"):
                        st.dot_w[r] = (t, ins.op)
            elif ins.kind == "mfma":
                ps = 8 if "32x32" in ins.op else 4
                for r in ins.wr:
                    st.mfma_w[r] = (t, ps, frozenset(ins.wr))
            elif ins.kind == "salu":
                if ("s", "m0") in ins.wr:
                    st.m0_w = t
            elif ins.kind == "vm":
                st.vm.append((iid, set(ins.wr)))
                if ("store" in ins.op) and ("x4" in ins.op or "x3" in ins.op):
                    data = regs_of(ins.ops[0]) if ins.op.startswith("buffer") else regs_of(ins.ops[1])
                    for r in data:
                        st.store_r[r] = t
                assert len(st.vm) <= 63 or True
            elif ins.kind == "ds":
                st.lg.append((iid, set(ins.wr)))
            elif ins.kind == "smem":
                st.smem |= set(ins.wr) | {("s", "smem")}
        return "\n".join(out) + "\n"
```

```python
import sys, os
sys.path.insert(0, os.path.dirname(os.path.abspath(__file__)))
from asmdsl import Asm

NAME = "parallel_sum__ssm_conv_s4__glu_gated_reglu__prompt"
STAMP = "--stamp" in sys.argv


def opt(name, dflt):
    v = [x.split('=')[1] for x in sys.argv if x.startswith('--' + name + '=')]
    return type(dflt)(v[0]) if v else dflt


WS_H, WS_XT, WS_Y = 0x0, 0x700000, 0x900000
XTS, YS = 4096 + opt('xtp', 128), 8192 + opt('yp', 128)
WS_ST, WS_CS = 0xB00000, 0xB04000
WS_FH, WS_FY, WS_FL, WS_EP = 0xB10000, 0xB20000, 0xB28000, 0xB2C000
WS_TS = 0xB30000
WS_SIZE = 0xB80000
WSOFF = opt('wsoff', 0) << 20
FSP = 1024
SLOT = [0, 16384, 32768, 49152]
XB = 32768
SC = 147456
UB = 33536
U1_OFF = 4640
U_CH = 9280
KC0, KC_CH, KC_CP = 16, 16656, 4160
YX = 32768
RX = 65536
XR = 49152
PS = [SC] + [XB + k * 16384 for k in range(2, 7)]
SPIN = 200000
C64 = "\nv_add_u32 v2, 64, v2\nv_min_u32 v2, L_codeend-L_pc-4, v2\nglobal_load_dword v229, v2, s[70:71]" if opt('c64', 0) else ''
FHW_AT, FH_AT, FH_POLL = opt('fhw', 2), opt('fh', 16), opt('fhp', 20)
FYW_AT, FY_AT, FY_POLL = opt('fyw', 6), opt('fy', 19), opt('fyp', 24)
FL_AT, FL_POLL = opt('fl', 20), opt('flp', 23)
OUTFL = 'sc1' if '--outsc1' in sys.argv else ''
SEL = opt('sel', 'a')
CV = opt('cv', 20)
PAT = opt('pat', 0)
WG = opt('wg', 4)

sX, sAre, sAim, sBre, sBim, sCre, sCim, sLdt, sDsk = 4, 6, 8, 10, 12, 14, 16, 18, 20
sWg, sWu, sWd, sOut, sDbg, sWs = 24, 26, 28, 30, 32, 34
rX, rW, rWd, rWs, rOut = "s[36:39]", "s[40:43]", "s[44:47]", "s[48:51]", "s[52:55]"
sw, sxcd, sj, sr1, sc1_, sjc, sr2, sc2, snonce = "s56", "s57", "s58", "s59", "s60", "s61", "s62", "s63", "s64"
sWoff, sWdoff, sDs, scnt = "s65", "s66", "s67", "s68"
sq, sXoff, sw4k, sWl, sMask = "s69", "s72", "s73", "s77", "s78"
sFL, stg, sUl, sUg, sH0, sH1, sKC, sHoff = "s80", "s81", "s82", "s83", "s86", "s87", "s88", "s89"
sST, sCS, sFHw, sFHr, sY = "s90", "s91", "s92", "s93", "s94"
sOdd = "s[22:23]"

vKC, vKZ, vUZ, vKX, vXR, vXD, vWD, vWF, vKL = 160, 168, 169, 170, 172, 180, 184, 188, 190
vDD, vDF, vCU, vCK, vN4, vN8, vCS, vF, vYW, vYR, vFH, vH = 200, 204, 208, 209, 210, 211, 212, 213, 214, 215, 217, 218
fC, fR, fKG, fQ, fG, vNo, vZ, vL16 = 220, 221, 222, 223, 226, 224, 225, 250

a = Asm()
slow = []
nstamp = [0]
tok, ltok = {}, {}


def stamp(kind="a"):
    if not STAMP or kind not in SEL:
        return
    k = nstamp[0]
    nstamp[0] += 1
    if k > 1:
        a.items.append(("raw", f"    v_writelane_b32 v254, s98, {k-1}"))
    a.items.append(("raw", f"    {CLK} s[98:99]"))


def poll(name, load, cmp_):
    a(cmp_)
    a(f"s_cbranch_vccnz L_slow_{name}")
    a(f"L_back_{name}:")
    slow.append(f"""L_slow_{name}:
s_mov_b32 {scnt}, 0
L_retry_{name}:
s_add_u32 {scnt}, {scnt}, 1
s_cmp_gt_u32 {scnt}, {SPIN}
s_cbranch_scc1 L_back_{name}
{load}
s_waitcnt vmcnt(0)
{cmp_}
s_cbranch_vccnz L_retry_{name}
s_branch L_back_{name}""")


def put(items):
    for e in items:
        if isinstance(e, tuple):
            if e[0] == "vt": tok[e[1]] = a.vm_tok()
            if e[0] == "lt": ltok[e[1]] = a.lg_tok()
            if e[0] == "wv": a.wait_vm(tok[e[1]])
            if e[0] == "wl": a.wait_lg(ltok[e[1]])
        else:
            a(e)


def weave(main, extra):
    nreal = sum(1 for e in extra if not isinstance(e, tuple))
    out, k, done = [], 0, 0
    for t, m in enumerate(main):
        out += m if isinstance(m, list) else [m]
        goal = -(-(nreal * (t + 1)) // len(main))
        while k < len(extra) and (isinstance(extra[k], tuple) or done < goal):
            out.append(extra[k])
            done += not isinstance(extra[k], tuple)
            k += 1
    return out


def cost(e):
    if isinstance(e, tuple):
        return 4 if e[0] in ("wv", "wl") else 0
    c = 0
    for l in e.split("\n"):
        op = l.split()[0]
        if op.startswith(("buffer_", "global_")):
            c += CV if "x4" in op else 12
        elif op.startswith("ds_write"):
            c += 28 if "b128" in op or "2_b64" in op else 14
        else:
            c += 4
    return c


def pack(main, extra, cap):
    base = [sum(cost(x) for x in m[1:]) for m in main]
    n, G = len(extra), len(main)
    cs = [cost(e) for e in extra]
    INF = 1 << 60
    best = [[INF] * (n + 1) for _ in range(G + 1)]
    frm = [[0] * (n + 1) for _ in range(G + 1)]
    best[0][0] = 0
    for g in range(G):
        for i in range(n + 1):
            if best[g][i] == INF:
                continue
            load = base[g]
            for j in range(i, n + 1):
                if j > i:
                    load += cs[j - 1]
                v = best[g][i] + 1000 * max(0, load - cap) + load * load // 16
                if v < best[g + 1][j]:
                    best[g + 1][j] = v
                    frm[g + 1][j] = i
    cuts, j = [], n
    for g in range(G, 0, -1):
        cuts.append((frm[g][j], j))
        j = frm[g][j]
    cuts.reverse()
    out = []
    for m, (i, j) in zip(main, cuts):
        out += m + extra[i:j]
    return out


def lines(txt, per=1):
    L = [l.replace(";;", "\n") for l in txt.strip().split("\n")]
    return ["\n".join(L[i:i + per]) for i in range(0, len(L), per)]


T64 = opt('t64', 1)
KA = 240 if T64 else 144
ROT = opt('rot', 0)
HFL = opt('hfl', 'sc1').replace('_', ' ').replace('none', '')


def wrap(reg, step, lim, base):
    return f"s_add_u32 {reg}, {reg}, {step}\ns_cmp_eq_u32 {reg}, {lim}\ns_cselect_b32 {reg}, {base}, {reg}"


def dma4(m0, vo, srd, soff, step, fl=""):
    g = [m0, f"buffer_load_dwordx4 v{vo}, {srd}, {soff} offen {fl} lds"]
    for i in range(1, 4):
        g.append(f"buffer_load_dwordx4 v{vo+i}, {srd}, {soff} offen offset:{1024*i} {fl} lds")
    g.append(f"s_add_u32 {soff}, {soff}, {step}")
    return g


def w_unit(u):
    return dma4(f"s_add_u32 m0, {sWl}, {SLOT[u % 4]}", vWD, rW, sWoff, 32 * 3584)


def x_block(cb):
    return dma4(f"s_add_u32 m0, {sw4k}, {XB+cb*16384}", vXD, rX, sXoff, 128)


def wd_pair(kk):
    g = dma4(f"s_add_u32 m0, {sw4k}, {PS[(kk >> 1) % 6]}", vDD, rWd, sWdoff, 32 * 896)
    if ROT and kk % 4 == 2:
        g[-1] = wrap(sWdoff, 32 * 896, "s9", "s8")
    return g


CLK = "s_memtime" if "--cyc" in sys.argv else "s_memrealtime"
if STAMP:
    a(f"{CLK} s[100:101]")
a(f"""
s_cmp_ge_u32 s2, 256
s_cbranch_scc1 L_end
s_load_dwordx16 s[4:19], s[0:1], 0
s_load_dwordx16 s[20:35], s[0:1], 64
s_getpc_b64 s[70:71]
L_pc:
s_and_b32 {sxcd}, s2, 7
s_lshr_b32 {sj}, s2, 3
v_lshrrev_b32 v1, 6, v0
v_and_b32 v255, 63, v0
v_readfirstlane_b32 {sw}, v1
""")
a(f"""
s_and_b32 {sq}, {sj}, 3
s_lshl_b32 s74, {sq}, 6
v_lshl_add_u32 v2, v1, 4, v255
v_add_u32 v2, s74, v2
v_lshlrev_b32 v2, 7, v2
v_min_u32 v2, L_codeend-L_pc-4, v2
s_mov_b64 exec, 0xffff
{"global_load_dword v253, v2, s[70:71]" + C64 if "--nocodepf" not in sys.argv else ""}
s_mov_b64 exec, -1
s_mov_b32 s38, {2048*896}
s_mov_b32 s39, 0x20000
s_mov_b32 s42, {448*3584}
s_mov_b32 s43, 0x20000
s_mov_b32 s50, {WS_SIZE}
s_mov_b32 s51, 0x20000
v_lshlrev_b32 v{vL16}, 4, v255
s_mov_b32 {sMask}, 0xffff0000
s_cmp_lt_u32 {sj}, 4
s_cbranch_scc1 L_helper
""")

a(f"""
s_sub_u32 {sj}, {sj}, 4
s_mul_i32 s74, {sxcd}, 28
s_add_u32 {sjc}, s74, {sj}
s_lshl_b32 s74, {sjc}, 10
s_lshl_b32 s75, {sw}, 8
s_add_u32 s74, s74, s75
v_lshl_add_u32 v4, v255, 2, s74
s_lshr_b32 s79, s74, 9
s_lshl_b32 s74, s79, 1
v_mov_b32 v5, s74
s_lshr_b32 {sc2}, {sj}, 2
s_lshr_b32 s74, {sxcd}, 1
s_lshl_b32 s74, s74, 2
s_add_u32 {sr1}, s74, {sq}
s_lshl_b32 {stg}, {sr1}, 2
s_add_u32 {stg}, {stg}, {sw}
s_mul_i32 {sXoff}, {stg}, {32*896}
s_lshl_b32 {sw4k}, {sw}, 12
s_and_b32 s74, {sxcd}, 1
s_mul_i32 s74, s74, 7
s_add_u32 {sc1_}, s74, {sc2}
s_lshl_b32 {sWoff}, {sc1_}, 8
s_lshr_b32 s84, {sw}, 1
s_and_b32 s85, {sw}, 1
s_lshl_b32 s74, s85, 13
s_lshl_b32 s75, s84, 12
s_add_u32 {sWl}, s74, s75
v_and_b32 v{fC}, 3, v255
v_bfe_u32 v{fR}, v255, 2, 2
v_lshrrev_b32 v{fKG}, 5, v255
v_lshrrev_b32 v{fQ}, 4, v255
v_and_b32 v{fG}, 1, v{fQ}
v_lshrrev_b32 v6, 3, v255
v_mul_u32_u24 v1, 896, v6
v_and_b32 v2, 7, v255
v_xor_b32 v2, v2, v{fQ}
v_lshl_add_u32 v{vXD}, v2, 4, v1
v_xor_b32 v{vXD+1}, 64, v{vXD}
v_add_u32 v{vXD+1}, {8*896-1024}, v{vXD+1}
v_add_u32 v{vXD+2}, {2*(8*896-1024)}, v{vXD}
v_add_u32 v{vXD+3}, {2*(8*896-1024)}, v{vXD+1}
s_lshl_b32 s74, s84, 4
v_add_u32 v1, s74, v{fR}
v_mul_u32_u24 v1, 3584, v1
v_lshl_add_u32 v1, v{fQ}, 6, v1
s_lshl_b32 s76, s85, 1
v_xor_b32 v2, s76, v{fC}
v_lshl_add_u32 v{vWD}, v2, 4, v1
v_add_u32 v{vWD+1}, {4*3584-1024}, v{vWD}
v_add_u32 v{vWD+2}, {2*(4*3584-1024)}, v{vWD}
v_add_u32 v{vWD+3}, {3*(4*3584-1024)}, v{vWD}
""")
if STAMP:
    a("v_mov_b32 v254, 0\ns_waitcnt lgkmcnt(0)\nv_writelane_b32 v254, s100, 0")
    nstamp[0] = 1
stamp(SEL[0])
a(f"""
s_waitcnt lgkmcnt(0)
global_load_ushort v134, v5, s[{sLdt}:{sLdt+1}]
global_load_dword v128, v4, s[{sAre}:{sAre+1}]
global_load_dword v129, v4, s[{sAim}:{sAim+1}]
global_load_dword v130, v4, s[{sBre}:{sBre+1}]
global_load_dword v131, v4, s[{sBim}:{sBim+1}]
global_load_dword v132, v4, s[{sCre}:{sCre+1}]
global_load_dword v133, v4, s[{sCim}:{sCim+1}]
global_load_ushort v135, v5, s[{sDsk}:{sDsk+1}]
s_mov_b32 s36, s{sX}
s_mov_b32 s37, s{sX+1}
s_bitcmp1_b32 {sw}, 0
s_cselect_b32 s40, s{sWu}, s{sWg}
s_cselect_b32 s41, s{sWu+1}, s{sWg+1}
s_cselect_b64 {sOdd}, -1, 0
""")
if "--tlb" in sys.argv:
    a(f"""
v_min_u32 v14, 5, v255
v_lshlrev_b32 v14, 21, v14
v_mov_b32 v15, 0
s_mov_b64 exec, 0x3f
global_load_dword v152, v14, s[{sWs}:{sWs+1}]
s_mov_b64 exec, 1
global_load_dword v153, v15, s[{sOut}:{sOut+1}]
global_load_dword v154, v15, s[{sWd}:{sWd+1}]
global_load_dword v155, v15, s[{sDbg}:{sDbg+1}]
s_mov_b64 exec, -1
""")
LATE = opt('late', 0)
first_dma = x_block(0) + w_unit(0) + [("vt", "u0")]
if not LATE:
    put(first_dma)
a(f"""
s_add_u32 s74, {sw4k}, {SC}
v_add_u32 v{vKX}, s74, v{vL16}
v_xor_b32 v{vKX+1}, 4096, v{vKX}
v_bfe_u32 v1, v255, 1, 2
v_lshlrev_b32 v7, 4, v1
v_lshl_add_u32 v7, v255, 6, v7
v_add_u32 v{vKL}, s74, v7
v_xor_b32 v{vKL+1}, 16, v{vKL}
v_xor_b32 v{vKL+2}, 32, v{vKL}
v_xor_b32 v{vKL+3}, 48, v{vKL}
v_lshl_add_u32 v7, v{fKG}, 3, v{fR}
v_lshlrev_b32 v7, 6, v7
v_bfe_u32 v8, v255, 1, 1
v_lshl_add_u32 v8, v{fG}, 1, v8
v_lshrrev_b32 v9, 1, v{fR}
v_xor_b32 v8, v8, v9
v_lshl_add_u32 v7, v8, 4, v7
v_and_b32 v10, 1, v255
v_lshl_add_u32 v7, v10, 3, v7
v_add_u32 v{vKL+4}, s74, v7
v_xor_b32 v{vKL+5}, 32, v{vKL+4}
v_add_u32 v{vKL+5}, 256, v{vKL+5}
s_lshl_b32 s76, s85, 5
v_xor_b32 v{vKL+6}, s76, v{vKL+4}
v_xor_b32 v{vKL+7}, s76, v{vKL+5}
v_and_b32 v11, 31, v255
v_bfe_u32 v12, v255, 1, 3
v_xor_b32 v7, v12, v{fKG}
v_lshlrev_b32 v7, 4, v7
v_lshl_add_u32 v7, v11, 7, v7
s_and_b32 s74, {sw4k}, {0x2000 if T64 else 0x3000}
s_add_u32 s74, s74, {XB}
v_add_u32 v{vXR}, s74, v7
v_xor_b32 v{vXR+1}, 32, v{vXR}
v_xor_b32 v{vXR+2}, 64, v{vXR}
v_xor_b32 v{vXR+3}, 96, v{vXR}
v_add_u32 v{vXR+4}, 0x10000, v{vXR}
v_add_u32 v{vXR+5}, 0x10000, v{vXR+1}
v_add_u32 v{vXR+6}, 0x10000, v{vXR+2}
v_add_u32 v{vXR+7}, 0x10000, v{vXR+3}
v_lshlrev_b32 v13, 3, v{fC}
v_lshl_add_u32 v13, v{fR}, 6, v13
v_mul_u32_u24 v7, {8192+32}, v{fG}
v_lshl_add_u32 v7, v{fKG}, 11, v7
s_mul_i32 s74, s85, {512 if T64 else 0}
v_add3_u32 v{vWF}, v7, v13, s74
v_xor_b32 v{vWF+1}, 32, v{vWF}
v_lshl_add_u32 v7, v{fG}, 5, v13
v_lshl_add_u32 v7, v{fKG}, 9, v7
s_lshl_b32 s74, s85, 8
s_add_u32 s74, s74, {sw4k}
s_add_u32 s74, s74, 65536
v_add_u32 v{vDF}, s74, v7
v_xor_b32 v{vDF+1}, 256, v{vDF}
v_add_u32 v{vDF+2}, 0x10000, v{vDF}
v_add_u32 v{vDF+3}, 0x10000, v{vDF+1}
s_mul_i32 s74, {sw}, 448
v_lshl_add_u32 v7, v{fKG}, 2, v{fR}
v_add_u32 v7, s74, v7
v_mul_u32_u24 v7, 896, v7
v_lshl_add_u32 v7, v{fG}, 6, v7
v_lshl_add_u32 v{vDD}, v{fC}, 4, v7
v_add_u32 v{vDD+1}, {8*896-1024}, v{vDD}
v_add_u32 v{vDD+2}, {2*(8*896-1024)}, v{vDD}
v_add_u32 v{vDD+3}, {3*(8*896-1024)}, v{vDD}
v_lshlrev_b32 v{vN4}, 2, v11
v_lshlrev_b32 v{vN8}, 3, v11
""")
setup2 = lines(f"""s_mul_i32 {sKC}, s84, {KC_CH}
s_add_u32 {sKC}, {sKC}, {KC0}
s_lshl_b32 s74, s85, 10
s_sub_u32 s74, {sKC}, s74
s_add_u32 s74, s74, {16*255-12}
v_sub_u32 v{vKC}, s74, v{vL16}
v_add_u32 v{vKC+1}, {KC_CP+4}, v{vKC}
v_add_u32 v{vKC+2}, {2*(KC_CP+4)}, v{vKC}
v_add_u32 v{vKC+3}, {3*(KC_CP+4)}, v{vKC}
v_lshlrev_b32 v7, 9, v{fKG}
v_sub_u32 v7, v{vKC}, v7
s_mul_i32 s74, s85, 1536
s_sub_u32 s74, 2560, s74
v_subrev_u32 v{vKC+4}, s74, v7
v_add_u32 v{vKC+5}, {KC_CP+4}, v{vKC+4}
v_add_u32 v{vKC+6}, {2*(KC_CP+4)}, v{vKC+4}
v_add_u32 v{vKC+7}, {3*(KC_CP+4)}, v{vKC+4}
v_and_b32 v11, 15, v255
v_mul_u32_u24 v7, {KC_CP+4}, v{fQ}
v_lshl_add_u32 v7, v11, 2, v7
v_add_u32 v{vKZ}, {sKC}, v7
v_lshlrev_b32 v7, 2, v11
v_lshlrev_b32 v{vCS}, 2, v{vN4}
{f"v_min_u32 v7, 108, v{vN4}" if T64 else "v_min_u32 v7, 52, v7"}
v_mul_u32_u24 v8, {FSP}, v{fKG if T64 else fG}
v_add_u32 v{vFH}, v7, v8
s_mul_i32 s75, s84, {U_CH}
s_add_u32 s75, s75, {UB}
s_mul_i32 s74, s85, {U1_OFF}
s_add_u32 s74, s74, s75
v_min_u32 v7, 55, v255
v_lshl_add_u32 v{vUZ}, v7, 3, s74
s_lshl_b32 s74, s85, 11
s_add_u32 {sUl}, s75, s74
s_mul_i32 {sUg}, s79, {XTS}
s_add_u32 {sUg}, {sUg}, s74
s_add_u32 {sUg}, {sUg}, {WS_XT}
v_mul_u32_u24 v7, {U1_OFF}, v10
v_lshl_add_u32 v7, v12, 6, v7
v_lshl_add_u32 v7, v{fQ}, 4, v7
s_lshl_b32 s74, s85, 6
s_sub_u32 s75, s75, s74
s_add_u32 s75, s75, {448-384}
v_add_u32 v{vCU}, s75, v7
v_mul_u32_u24 v7, {KC_CP}, v{fC}
v_sub_u32 v8, v{fQ}, v{fR}
v_lshl_add_u32 v7, v8, 4, v7
s_sub_u32 s74, {sKC}, s74
s_add_u32 s74, s74, {16*255-64*62}
v_add_u32 v{vCK}, s74, v7
s_lshl_b32 s74, {sw}, 10
s_add_u32 s74, s74, {YX}
v_add_u32 v{vYW}, s74, v{vL16}
v_lshlrev_b32 v7, 8, v1
v_lshl_add_u32 v7, v6, 5, v7
v_lshl_add_u32 v7, v10, 3, v7
s_lshl_b32 s74, {sw}, 13
s_add_u32 s75, s74, {YX+4096}
v_add_u32 v{vYR}, s75, v7
s_add_u32 s74, s74, 8192
s_and_b32 s74, s74, 0x7fff
s_add_u32 s74, s74, {YX}
v_add_u32 v{vYR+1}, s74, v7
s_mul_i32 s74, s84, {112*1024}
v_add_u32 v{vH}, s74, v{vL16}
s_sub_u32 s74, {112*1024}, s74
v_add_u32 v{vH+1}, s74, v{vL16}
v_mov_b32 v{vZ}, 0
s_lshl_b32 s74, {sxcd}, 2
s_add_u32 {sr2}, s74, {sq}
s_lshl_b32 s74, {sr2}, 1
s_add_u32 s74, s74, s84
s_lshl_b32 s97, s74, 5
s_lshl_b32 s74, {sc2}, 1
s_add_u32 s74, s74, s85
s_lshl_b32 s17, s74, 6
s_mul_i32 s74, s97, 896
s_add_u32 s16, s74, s17
v_lshrrev_b32 v7, 2, v255
v_mul_u32_u24 v7, 896, v7
v_xor_b32 v8, v{fC}, v{fQ}
v_lshl_add_u32 v227, v8, 4, v7""")
put(setup2[:opt('s2', len(setup2))])
setup2 = setup2[opt('s2', len(setup2)):]
a(f"""
v_lshlrev_b32 v134, 16, v134
v_mul_f32 v134, 0x3fb8aa3b, v134
v_exp_f32 v134, v134
v_cvt_pk_bf16_f32 v134, v134, v134
v_lshlrev_b32 v134, 16, v134
""")
stamp()

PA = [64, 96]
PBS = [8, 64]
KF = [(160, 176, 192, 208), (96, 112, 128, 144) if T64 else (224, 240, 80, 96)]
KS = opt('ks', 1)
R1, R8, E, T = 146, [148, 150], 0, 2
l1s = [0, 1, 2, 3, 4, 5, 6, 7, 8, 256, 258, 260, 262, 264, 512, 516, 520, 768, 772, 776,
       1024, 1032, 1280, 1288, 1536, 1544, 1792, 1800]
ra = {l: 8 + 2 * i for i, l in enumerate(l1s)}
cols = [0, 1, 2, 3, 256, 256, 258, 260, 4, 5, 6, 7, 260, 260, 262, 264,
        512, 516, 520, 1024, 768, 772, 776, 1536, 1032, 1280, 1288, 1288, 1544, 1792, 1800, 1800]


def cmul(d, x, r, t):
    return [f"v_pk_mul_f32 v[{t}:{t+1}], v[{x}:{x+1}], v[{r}:{r+1}] op_sel_hi:[1,0]",
            f"v_pk_fma_f32 v[{d}:{d+1}], v[{x}:{x+1}], v[{r}:{r+1}], v[{t}:{t+1}] op_sel:[1,1,0] op_sel_hi:[0,1,1] neg_lo:[1,0,0]"]


def k_write(ck, i, cq):
    P = (PA[ck] + 16 * i) if i < 2 else (PBS[ck if KS else 0] + 16 * (i - 2))
    return f"ds_write_b128 v{vKL+cq}, v[{P+4*cq}:{P+4*cq+3}]"


def k_reads(ck, i):
    fr = KF[ck][i]
    base = vKL + 6 if i < 2 else vKL + 4
    return "\n".join(f"ds_read_b64_tr_b16 a[{fr+4*s+2*rd}:{fr+4*s+2*rd+1}], v{base+rd} offset:{1024*s}"
                     for s in range(4) for rd in range(2))


def kgen_head(ck):
    L = []
    un = (lambda d, s: f"v_lshlrev_b32 v{d}, 16, v{s}") if ck == 0 else (lambda d, s: f"v_and_b32 v{d}, {sMask}, v{s}")
    L += [un(136 + i, 128 + i) for i in range(6)]
    L += ["v_mul_f32 v142, v134, v136", "v_mul_f32 v143, v134, v137",
          "v_mul_f32 v142, 0x3fb8aa3b, v142", "v_mul_f32 v143, 0.15915494, v143"]

    def ev(d, l):
        s = []
        if l == 1:
            s += ["v_exp_f32 v144, v142", "v_fract_f32 v145, v143"]
        else:
            f = {8: "0x41000000", 256: "0x43800000"}[l]
            s += [f"v_mul_f32 v144, {f}, v142", f"v_mul_f32 v145, {f}, v143", "v_exp_f32 v144, v144", "v_fract_f32 v145, v145"]
        s += [f"v_cos_f32 v{d}, v145", f"v_sin_f32 v{d+1}, v145"]
        return s, f"v_pk_mul_f32 v[{d}:{d+1}], v[{d}:{d+1}], v[144:145] op_sel_hi:[1,0]"
    wm = cmul(ra[0], 140, 138, T) + [f"v_pk_mul_f32 v[{ra[0]}:{ra[0]+1}], v[{ra[0]}:{ra[0]+1}], v[134:135] op_sel_hi:[1,0]"]
    for (d, l), fill in zip(((R1, 1), (R8[ck], 8), (E, 256)), wm):
        s, last = ev(d, l)
        L += s + [fill, last]
    for l in range(1, 9):
        L += cmul(ra[l], ra[l - 1], R1, T)
    for l in l1s[9:]:
        L += cmul(ra[l], ra[l - 256], E, T)
    for k in range(16):
        c0, c1 = ra[cols[2 * k]], ra[cols[2 * k + 1]]
        L += [f"v_cvt_pk_bf16_f32 v{PA[ck]+k}, v{c0}, v{c1}", f"v_cvt_pk_bf16_f32 v{PA[ck]+16+k}, -v{c0+1}, -v{c1+1}"]
    return L


def kgen_chain(ck):
    r8 = R8[ck]
    PB = PBS[ck if KS else 0]
    rb = lambda j: r8 if j == 1 else 4 + 2 * (j % 2)
    B = [f"v_cvt_pk_bf16_f32 v{PB}, 1.0, v{r8}", f"v_cvt_pk_bf16_f32 v{PB+16}, 0, v{r8+1}"]
    for j in range(2, 32):
        B += cmul(rb(j), rb(j - 1), r8, T)
        if j % 2:
            B += [f"v_cvt_pk_bf16_f32 v{PB+j//2}, v{rb(j-1)}, v{rb(j)}",
                  f"v_cvt_pk_bf16_f32 v{PB+16+j//2}, v{rb(j-1)+1}, v{rb(j)+1}"]
    return B


def k_pass(ck, i):
    return [k_write(ck, i, cq) for cq in range(4)] + [k_reads(ck, i)]


def at(stream, items):
    out = []
    for i, x in enumerate(stream):
        out += [y for p, y in items if p == i]
        out.append(x)
    return out + [y for p, y in items if p >= len(stream)]


def kgen_mfma(ck):
    f = KF[ck]
    return [f"v_mfma_f32_32x32x16_bf16 a[{KA}:{KA+15}], a[{f[s>>2]+4*(s&3)}:{f[s>>2]+4*(s&3)+3}], "
            f"a[{f[2+(s>>2)]+4*(s&3)}:{f[2+(s>>2)]+4*(s&3)+3}], "
            + ("0" if (ck == 0 and s == 0) else f"a[{KA}:{KA+15}]") for s in range(8)]


XF = (lambda s, ta=0: 8 * s + 4 * ta) if T64 else (lambda s, ta=0: 4 * s)


def x_read(s, ta=0):
    cb = s >> 2
    return f"ds_read_b128 a[{XF(s, ta)}:{XF(s, ta)+3}], v{vXR + (0 if cb < 4 else 4) + (s & 3)} offset:{(cb % 4)*16384+ta*4096}"


WM = opt('wm', 0)
if WM == 0:
    warm = [f"""s_cmp_eq_u32 {sw}, 0
s_cselect_b32 s12, s{sWg}, s{sWu}
s_cselect_b32 s13, s{sWg+1}, s{sWu+1}
s_cmp_lt_u32 {sw}, 2
s_cselect_b32 s12, s12, s{sWd}
s_cselect_b32 s13, s13, s{sWd+1}
s_mul_i32 s74, {sjc}, {56*128}
v_min_u32 v251, 55, v255
v_lshl_add_u32 v251, v251, 7, s74
global_load_dword v252, v251, s[12:13]"""]
    if opt('w64', 0) == 1:
        warm += ["global_load_dword v157, v251, s[12:13] offset:64"]
    if opt('w64', 0) == 2:
        warm[0] = warm[0].replace("global_load_dword", f"s_cmp_eq_u32 {sw}, 3\ns_cselect_b32 s75, 64, 0\nv_add_u32 v251, s75, v251\nglobal_load_dword")
elif WM >= 1:
    warm = [f"""s_lshl_b32 s74, {sjc}, 1
s_add_u32 s74, s74, s84
s_mul_i32 s74, s74, 3584
v_min_u32 v251, 27, v255
v_lshlrev_b32 v251, 7, v251
s_mov_b64 exec, 0xfffffff
buffer_load_dword v252, v251, {rW}, s74 offen
s_mov_b64 exec, -1"""]
warm2 = []
if WM >= 2:
    warm2 = [f"""s_lshl_b32 s74, {sjc}, 2
s_add_u32 s74, s74, {sw}
s_mul_i32 s74, s74, {14*128}
v_lshl_add_u32 v251, v255, 7, s74
s_mov_b64 exec, 0x3fff
global_load_dword v156, v251, s[{sWd}:{sWd+1}]
s_mov_b64 exec, -1"""]
WAT = opt('wat', 0)
for _ in range(opt('dmain', 0)):
    a("s_sleep 16")
stamp("k")
early = x_block(1) + [("vt", "x1")] + w_unit(1) + [("vt", "u1")]
if LATE == 1:
    put(weave(kgen_head(0), first_dma + early))
elif LATE == 2:
    put(weave(kgen_head(0), first_dma))
    warm = early + warm
elif LATE == 3:
    put(weave(kgen_head(0), first_dma + warm))
    warm = early
else:
    put(weave(kgen_head(0), early))
stamp("k")
XRES = [f"buffer_load_dwordx4 v[242:245], v227, {rX}, s16 offen",
        f"s_add_u32 s74, s16, {16*896}\nbuffer_load_dwordx4 v[246:249], v227, {rX}, s74 offen"]
XRAT = opt('xrat', 0)
if XRAT == 0:
    warm += XRES
wA = warm if WAT == 0 else [e for e in warm if "v251" not in str(e)]
wB = [] if WAT == 0 else [e for e in warm if "v251" in str(e)]
XH = opt('xh', 0)
wA = sum((x_block(cb) + [("vt", f"x{cb}")] for cb in range(2, 2 + XH)), []) + wA if opt('xhf', 1) else \
    wA + sum((x_block(cb) + [("vt", f"x{cb}")] for cb in range(2, 2 + XH)), [])
if KS:
    RD, HP = opt('rd', 3), opt('hp', 0)
    XE = 0
    P_ = [k_pass(0, 0), k_pass(0, 1), k_pass(1, 0), k_pass(0, 2), k_pass(0, 3), k_pass(1, 1), k_pass(1, 2)]

    def spread(passes, lo, hi, last=None):
        n = 4 * len(passes)
        out = []
        for k in range(n):
            pos = lo + (hi - lo) * k // max(1, n - 1)
            if last is not None and k >= n - 4:
                pos = max(pos, last[k - (n - 4)])
            out.append((pos, passes[k // 4][k % 4]))
            if k % 4 == 3 and not (last is not None and k == n - 1):
                out.append((pos + RD, passes[k // 4][4]))
        return out
    h1 = weave(kgen_head(1), wA)
    put(at(h1, spread(P_[:HP], len(h1) - 30 * HP, len(h1) - RD - 2)) if HP else h1)
    stamp("ak"[SEL == "k"])
    n0 = opt('kp0', 3 if HP == 0 else 4)
    order = [0, 1, 2, 3] if n0 == 4 else [0, 1, 3]
    rest_ = [4, 5, 6] if n0 == 4 else [4, 2, 5, 6]
    put(at(kgen_chain(0), spread([P_[i] for i in order[HP:]], 0, 92, (20, 44, 68, 92))))
    stamp("k")
    put([P_[3][4]] + at(kgen_chain(1), spread([P_[i] for i in rest_], 2, 92, (20, 44, 68, 92))))
    q2 = P_[6]
    stamp("ak"[SEL == "k"])
else:
    put(weave(kgen_head(1), wA))
    stamp("ak"[SEL == "k"])
    RD = opt('rd', 3)
    p0, p1, p2 = k_pass(0, 0), k_pass(0, 1), k_pass(0, 2)
    XE = opt('xe', 0)
    xe = sum((x_block(cb) + [("vt", f"x{cb}")] for cb in range(2, 2 + XE)), [])
    n0 = 7 * opt('xe0', 3)
    put(weave(at(kgen_chain(0), list(zip((0, 7, 14, 21, 21 + RD), p0)) + list(zip((30, 37, 44, 51, 51 + RD), p1))
                 + list(zip((62, 70, 80, 92), p2))), xe[:n0] + (wB if WAT == 1 else []) + (warm2 if WM == 2 else [])))
    stamp("k")
    p3, q0, q1, q2 = k_pass(0, 3), k_pass(1, 0), k_pass(1, 1), k_pass(1, 2)
    ch = kgen_chain(1)
    put([p2[4], p3[0], p3[1]] + weave(at(ch[2:], [(0, p3[2]), (4, p3[3]), (4, ch[0]), (4, ch[1]), (4 + RD, p3[4])]
                                          + list(zip((14, 20, 26, 32, 32 + RD), q0)) + list(zip((42, 48, 54, 60, 60 + RD), q1))
                                          + list(zip((70, 76, 82, 90), q2))), xe[n0:] + (wB if WAT == 2 else []) + (warm2 if WM == 3 else [])))
    stamp("ak"[SEL == "k"])
sc = lines(f"""s_lshl_b32 {sWdoff}, {sc2}, 7
s_mov_b32 s44, s{sWd}
s_mov_b32 s45, s{sWd+1}
s_mov_b32 s46, {1792*896}
s_mov_b32 s47, 0x20000
s_add_u32 s48, s{sWs}, {WSOFF};;s_addc_u32 s49, s{sWs+1}, 0
s_mov_b32 s52, s{sOut}
s_mov_b32 s53, s{sOut+1}
s_mov_b32 s54, {2048*896}
s_mov_b32 s55, 0x20000
s_mul_i32 {sFL}, {sxcd}, {FSP}
s_add_u32 {sFL}, {sFL}, {WS_FL}
s_and_b32 {stg}, {stg}, {0xfe if T64 else 0xff}
s_lshl_b32 {sST}, {stg}, 8
s_add_u32 {sST}, {sST}, {WS_ST}
s_lshl_b32 s18, {sc1_}, 1
s_add_u32 s18, s18, {"s85" if T64 else 0}
s_lshl_b32 {sCS}, s18, 9
s_add_u32 {sCS}, {sCS}, {WS_CS}
v_lshlrev_b32 v135, 16, v135""")
for _ in range(opt('dm2', 0)):
    a("s_sleep 16")
lp = k_pass(1, 3)
put(weave(kgen_mfma(0), [q2[4], lp[0]] + sc[:7] + [lp[1]] + sc[7:14] + [lp[2]] + sc[14:]
          + ([lp[3], lp[4], ("wv", "x1")] if T64 else [lp[3], ("wv", "u0")] + [x_read(s) for s in range(4)] + [lp[4]])))
stamp("k")
a("s_waitcnt lgkmcnt(0)")
stamp("k")
a("s_barrier")
stamp("ak"[SEL == "k"])

fillg = {s: [] for s in range(28)}
fillg[2] += lines(f"""v_readfirstlane_b32 {sDs}, v135
s_mul_i32 {sH0}, {stg}, {112*1024}
s_lshl_b32 s74, s18, 12
s_add_u32 {sH0}, {sH0}, s74
s_add_u32 {sH1}, {sH0}, {112*1024 if T64 else 4096}
s_mul_i32 s74, {stg}, {FSP}
s_lshl_b32 s75, s18, {2 if T64 else 1}
s_add_u32 s74, s74, s75
s_add_u32 {sFHw}, s74, {WS_FH}""")
fillg[3] += [f"v_accvgpr_read_b32 v{128+r}, a{KA+r}" for r in range(8)]
fillg[6] += [f"v_accvgpr_read_b32 v148, a{KA+13}", f"v_accvgpr_read_b32 v149, a{KA+14}",
             "v_add_f32 v148, v148, v145", "v_add_f32 v149, v149, v146"]
fillg[2] += []
fillg[4] += [f"ds_read_b128 v[136:139], v{vKX+1}", f"ds_read_b128 v[140:143], v{vKX+1} offset:1024",
             f"ds_read_b128 v[144:147], v{vKX+1} offset:2048", ("lt", "kr")]
fillg[5] += lines(f"""s_mul_i32 {sFHr}, {sr2}, {2*FSP}
s_add_u32 {sFHr}, {sFHr}, {WS_FH}
s_mul_i32 {sHoff}, {sr2}, {2*112*1024}
s_mul_i32 s74, {sw}, {28*1024}
s_add_u32 {sHoff}, {sHoff}, s74
s_add_u32 {sHoff}, {sHoff}, {16*1024}""")
fillg[7] += [f"v_add_f32 v{128+r}, v{128+r}, v{136+r}" for r in range(8)]
fillg[9] += lines(f"""v_cmp_eq_u32 vcc, 0, v255
v_mov_b32 v140, {sDs}
v_cndmask_b32 v148, v148, v131, {sOdd}
v_cndmask_b32 v149, v149, v132, {sOdd}
v_cndmask_b32 v140, 0, v140, vcc
v_add_f32 v140, v128, v140""")
fillg[11] += lines(f"""s_mov_b32 s74, 0xaaaaaaaa
s_mov_b32 s75, 0xaaaaaaaa
v_cvt_pk_bf16_f32 v144, v149, v149
v_cndmask_b32 v141, v148, v149, s[74:75]
v_cvt_pk_bf16_f32 v146, v148, v148
v_cvt_pk_bf16_f32 v147, v148, v148
v_cvt_pk_bf16_f32 v145, v149, v141""")
fillg[13] += lines(f"""v_cvt_pk_bf16_f32 v136, v135, v134
v_cvt_pk_bf16_f32 v137, v133, v132
v_cvt_pk_bf16_f32 v138, v131, v130
v_cvt_pk_bf16_f32 v139, v129, v140
v_cvt_pk_bf16_f32 v140, v130, v130
v_cvt_pk_bf16_f32 v141, v129, v129
v_cvt_pk_bf16_f32 v142, v129, v128
v_cvt_pk_bf16_f32 v143, v128, v128""")
fillg[15] += [f"v_cndmask_b32 v{136+r}, v{136+r}, v{140+r}, {sOdd}" for r in range(4)]
fillg[17] += lines(f"""s_mul_i32 {sY}, {sjc}, {YS}
s_lshl_b32 s74, {sw}, 11
s_add_u32 {sY}, {sY}, s74
s_add_u32 {sY}, {sY}, {WS_Y}""")
fillg[19] += [f"v_mov_b32 v{r}, 0" for r in (190, 191, 193, 194)]
fillg[21] += [f"v_mov_b32 v{r}, 0" for r in (195, 196, 198, 199)]


def wd_read(kk, r):
    off = PS[(kk >> 1) % 6] - 65536 + (kk & 1) * 2048
    base = vDF if off < 65536 else vDF + 2
    return [f"ds_read_b64_tr_b16 a[{r+4*da+2*rd}:{r+4*da+2*rd+1}], v{base+da} offset:{off % 65536+rd*1024}"
            for da in range(2) for rd in range(2)]


def wd_move(kk):
    return wd_read(kk, 8 * kk)


def wfrag_read(s, t, r):
    off = SLOT[(s >> 1) % 4] + (s & 1) * 4096 + (t >> 1) * 256
    return [f"ds_read_b64_tr_b16 a[{r+2*rd}:{r+2*rd+1}], v{vWF+(t & 1)} offset:{off+rd*1024}" for rd in range(2)]


WF = (lambda t: 224 + 4 * t) if T64 else (lambda t: 112 + 4 * t)
if T64:
    rd = [x_read(s, ta) for s in range(8) for ta in range(2)] + [("lt", "x1")] + sum((wfrag_read(0, t, WF(t)) for t in range(4)), [])
    put(pack([[m] for m in kgen_mfma(1)], rd + fillg[2], 24))
    SH = opt('sh', 1)
    put([("wl", "x1"), "s_barrier"] + ([] if SH else w_unit(2) + [("vt", "u2")]))
else:
    put(pack([[m] + wfrag_read(0, t, WF(t)) for t, m in enumerate(kgen_mfma(1))], w_unit(2) + [("vt", "u2")] + fillg[2], 24))
fillg[2] = []
X20 = opt('x20', 1)
if XE == 0 and XH == 0 and not X20:
    put(x_block(2) + [("vt", "x2")])
kxw = [f"ds_write_b128 v{vKX}, a[{KA+8}:{KA+11}]", f"ds_write_b128 v{vKX}, a[{KA+12}:{KA+15}] offset:1024",
       f"ds_write_b128 v{vKX}, a[{KA+4}:{KA+7}] offset:2048", ("lt", "kx")]
if opt('kxs', 0):
    fillg[0] += kxw
else:
    put(kxw)
stamp("k")

FL_LOAD = f"buffer_load_dword v{vF}, v{vN4}, {rWs}, {sFL} offen sc1"
F_CMP = f"v_cmp_ne_u32 vcc, {snonce}, v{vF}"
NC_LOAD = f"global_load_dword v{vNo}, v{vZ}, s[{sDbg}:{sDbg+1}] sc1"
NC_CMP = f"v_cmp_eq_u32 vcc, 0, v{vNo}"
if XE == 5:
    XD = {}
    XRD = {1: 2, 2: 3, 3: 4, 4: 5, 5: 6}
    NP = opt('np', 11)
    WDD = dict(zip([4, 6, 8, 10, 12, 14, 16, 18, 20, 22, 24][:NP], range(NP)))
    PSORD = {0: "x2", 1: "x3", 2: "x4", 3: "x5", 4: "x6", 5: None}
    PS[:] = PS[1:] + PS[:1]
    MV = dict(zip([9, 10, 11, 12, 13, 14, 15, 17, 19, 20, 22, 24][:opt('nmv', 2 * (NP - 5))], range(12)))
else:
    XD = {s: 2 + s // 2 for s in ((0,) if X20 else ()) + (2, 4, 6, 8)}
    XRD = {s: s // 2 for s in (4, 6, 8, 10, 12)}
    NP = opt('np', 8)
    WDD = dict(zip([int(c) for c in opt('wdd', '10,12,14,16,18,20,22,24').split(',')][:NP], range(NP)))
    PSORD = {0: None, 1: "x2", 2: "x3", 3: "x4", 4: "x5", 5: "x6"}
    MV = {s: s - 14 for s in range(14, 14 + opt('nmv', 8))}
if XH:
    left = list(range(2 + XH, 7))
    XD = {2 * k: cb for k, cb in enumerate(left)}
    XRD = {1 + k: 2 + k for k in range(XH)}
    XRD.update({2 * k + 4: cb for k, cb in enumerate(left)})
    w0 = max(6, 2 * len(left)) + opt('wsh', 0)
    NP = opt('np', 9)
    WDD = dict(zip(list(range(w0, 25, 2)) + [23], range(NP)))
    assert len(WDD) == NP and sorted(WDD) == sorted(WDD, key=WDD.get) or True
    order = sorted(WDD)
    WDD = dict(zip(order, range(NP)))
    MV, t_ = {}, 0
    for kk in range(opt('nmv', 2 * (NP - 5))):
        t_ = max(t_ + 1, order[kk >> 1] + 4, 2 * kk + 2)
        MV[t_] = kk
    assert max(MV) <= 24
    for p_ in range(6, NP):
        assert order[p_] > [k for k, v in MV.items() if v == 2 * (p_ - 6) + 1][0], (p_, order, MV)
    for p_ in range(1, 6):
        assert order[p_] > [k for k, v in XRD.items() if v == p_ + 1][0]
XS0 = 5
if T64 and SH:
    XD = {2 + 2 * k: 2 + k for k in range(5)}
    NP = opt('np', 7)
    WDD = dict(zip([12, 14, 16, 18, 20, 22, 24, 23][:NP], range(NP)))
    WDD = dict(zip(sorted(WDD), range(NP)))
    XS0 = 7
MV = {k: [v] for k, v in MV.items()}
if opt('mvp', 6 if T64 else 0):
    MV = {sorted(WDD)[q] + 4 + opt('mvo', 0): [2 * q, 2 * q + 1] for q in range(opt('mvp', 6 if T64 else 0)) if sorted(WDD)[q] + 4 <= 24}
NMV = sum(len(v) for v in MV.values())
carry, pre = [], []
DG = opt('dg', 2)
for s in range(25):
    if s % 2 == 0 and s > 0:
        stamp("g")
    if 1 <= s <= 4:
        stamp("k")
    if s == opt('dat', -1):
        a("s_sleep 16\ns_sleep 16")
    extra, dma = [], None
    if s % 2 == 1:
        u = (s + 1) // 2
        lt = {1: "kx" if T64 else "x1", 5: "kr"}.get(s)
        a.wait_both(tok[f"u{u}"], ltok[lt] if lt else None)
        a("s_barrier")
        if u + 2 < 14:
            dma = ([], w_unit(u + 2), f"u{u+2}")
    if T64 and XS0 <= s < XS0 + 10:
        extra = [x_read(k, ta) for k in (8 + 2 * (s - XS0), 9 + 2 * (s - XS0)) for ta in range(2)] + extra
    if T64 and SH and s == 0:
        dma = ([], w_unit(2), "u2")
    if s == 0 and not T64:
        extra += [("wv", "x1")] + [x_read(k) for k in range(4, 8)] + [("lt", "x1")]
    if s in XD:
        dma = ([], x_block(XD[s]), f"x{XD[s]}")
    if s in XRD and not T64:
        cb = XRD[s]
        extra += [("wv", f"x{cb}")] + [x_read(k) for k in range(4 * cb, 4 * cb + 4)] + [("lt", f"x{cb}")]
    if s in WDD:
        p = WDD[s]
        need = (None if T64 else PSORD[p]) if p < 6 else f"mv{2*(p-6)+1}"
        dma = ([("wl", need)] if need else [], wd_pair(2 * p), f"wd{2*p}")
    for kk in MV.get(s, []):
        assert s >= (kk + 1 if T64 else 2 * kk + 2)
        if kk % 2 == 0:
            extra += [("wv", f"wd{kk}")]
        extra += wd_move(kk) + [("lt", f"mv{kk}")]
    if s == 12:
        extra += [NC_LOAD]
    if s == 16:
        poll("nc", NC_LOAD, NC_CMP)
        a(f"v_readfirstlane_b32 {snonce}, v{vNo}")
    if s == FL_AT:
        extra += [FL_LOAD]
    if s == FL_POLL:
        poll("fl", FL_LOAD, F_CMP)
        extra += [f"buffer_load_dword v{vF}, v{vN8}, {rWs}, {sST} offen sc1",
                  f"s_lshl_b32 s74, s97, 3\ns_add_u32 s74, s74, {WS_ST+4}\nbuffer_load_dword v228, v{vN8}, {rWs}, s74 offen sc1"]
        if T64:
            extra += [f"buffer_load_dwordx4 v[156:159], v{vCS}, {rWs}, {sCS} offen sc1",
                      f"buffer_load_dword v154, v{vN8}, {rWs}, {sST} offen offset:256 sc1"]
        else:
            extra += [f"buffer_load_dwordx4 a[{160+4*t}:{163+4*t}], v{vCS}, {rWs}, {sCS} offen offset:{512*t} sc1" for t in range(2)]
    extra += fillg[s]
    AB = opt('ab', '')
    if dma and (('x' in AB and dma[2][0] == 'x') or ('w' in AB and dma[2][0] == 'w') or ('u' in AB and dma[2][0] == 'u')):
        dma = (dma[0], ["s_nop 0"] * 6, dma[2])
    main = []
    for t in range(8):
        tl, ta = (t >> 1, t & 1) if T64 else (t, 0)
        j = 4 * ta + tl if T64 else t
        if t % WG == 0 and s > 0:
            (main[-1] if main else pre).append(("wl", f"f{(t+WG-1) >> T64}"))
        c = "0" if s == 0 else f"v[{16*j}:{16*j+15}]"
        m = [f"v_mfma_f32_32x32x16_bf16 v[{16*j}:{16*j+15}], a[{WF(tl)}:{WF(tl)+3}], a[{XF(s, ta)}:{XF(s, ta)+3}], {c}"]
        if dma and t == 0:
            if T64 and DG == 2:
                pre = dma[0] + [dma[1][0]] + pre
            else:
                m += dma[0] + [dma[1][0]]
        if not T64 or ta == 1:
            m += wfrag_read(s + 1, tl, WF(tl)) + [("lt", f"f{tl}")]
        pos = {0: (1, 3, 5, 7), 1: (1, 2, 4, 6), 2: (0, 2, 4, 6)}[DG if T64 else 0]
        if dma and t in pos:
            k = pos.index(t)
            m.append(dma[1][1 + k])
            if k == 3:
                m += [("vt", dma[2]), dma[1][5]]
        main.append(m)
    if s == 24 and opt('b13', 1):
        main[4] += [("wv", "u13"), "s_barrier"]
        main[6] += wfrag_read(26, 0, 144 if T64 else 168)
        main[7] += wfrag_read(27, 0, 148 if T64 else 172)
    put(pre + pack(main, extra, 24))
    pre = []
stamp("g")
TF = 144 if T64 else 168
if not opt('b13', 1):
    a.wait_vm(tok["u13"])
    a("s_barrier")
    put(wfrag_read(26, 0, TF) + wfrag_read(27, 0, TF + 4))
first = [f"v_cmp_gt_u32 vcc, 32, v255", "v_mov_b32 v152, 0", "v_mov_b32 v153, 0",
         f"s_add_u32 m0, {sUl}, {U1_OFF+448}", f"buffer_load_dwordx4 v{vL16}, {rWs}, {sUg} offen sc1 lds",
         f"buffer_load_dwordx4 v{vL16}, {rWs}, {sUg} offen offset:1024 sc1 lds",
         f"v_cndmask_b32 v192, 0, v{vF}, vcc\nv_cndmask_b32 v197, 0, v{vF}, vcc"]
second = [f"s_sub_u32 {sUg}, {sUg}, 2\ns_add_u32 m0, {sUl}, 448", f"buffer_load_dwordx4 v{vL16}, {rWs}, {sUg} offen sc1 lds",
          f"buffer_load_dwordx4 v{vL16}, {rWs}, {sUg} offen offset:1024 sc1 lds", ("vt", "u")]
main, epi = [], []
for t in range(8):
    r = TF + 8 * (t % 2)
    cb = (192, 196, 190, 194)[t & 3]
    tl, ta = (t & 3, t >> 2) if T64 else (t, 0)
    xf = lambda s: f"a[{XF(s, ta)}:{XF(s, ta)+3}]"
    ops = [(f"a[{WF(tl)}:{WF(tl)+3}]", xf(25)), (f"a[{r}:{r+3}]", xf(26)), (f"a[{r+4}:{r+7}]", xf(27)),
           ("v[156:159]" if T64 else f"a[{160+(t & 4)}:{163+(t & 4)}]", f"v[{cb}:{cb+3}]")]
    for k, (A, B) in enumerate(ops):
        m = [f"v_mfma_f32_32x32x16_bf16 v[{16*t}:{16*t+15}], {A}, {B}, v[{16*t}:{16*t+15}]"]
        if t < 7 and k in (0, 1):
            m += wfrag_read(26 + k, (t + 1) & (3 if T64 else 7), TF + 8 * ((t + 1) % 2) + 4 * k)
        if T64 and t == 4 and k == 0:
            m += ["v_cndmask_b32 v192, 0, v154, vcc", "v_cndmask_b32 v197, 0, v154, vcc"]
        main.append(m)
    b = 16 * t
    L = [f"v_max_f32 v{b+r}, 0, v{b+r}" for r in range(8)]
    if t < 6:
        L += [f"v_mul_f32 v{b+r}, v{b+r}, v{b+8+r}" for r in range(8)]
    else:
        L += [f"v_pk_mul_f32 v[{b+r}:{b+r+1}], v[{b+r}:{b+r+1}], v[{b+8+r}:{b+9+r}]" for r in range(0, 8, 2)]
    L += [f"v_cvt_pk_bf16_f32 v{b+8+r}, v{b+2*r}, v{b+2*r+1}" for r in range(4)]
    L += [f"buffer_store_dwordx4 v[{b+8}:{b+11}], v{vL16}, {rWs}, {(sH0, sH1)[t >> 2]} offen offset:{1024*(t & 3)} sc1"]
    epi.append(L)
stamp("t")
if opt('usp', 1):
    main[0] += first[:5]
    main[1] += [first[1 + 5]]
    main[2] += [first[5]]
    main[3] += second[:1]
    main[4] += second[1:2]
    main[6] += second[2:]
    put(sum(main[:6], []))
else:
    put(pack(main[:3], first, 24) + pack(main[3:6], second, 24))
for t in range(6):
    stamp("t")
    put(pack(main[4 * t + 6:4 * t + 10], epi[t], 24))
stamp("t")
put(pack(main[30:], epi[6][:8], 24))
rest = epi[6][8:] + epi[7]
stamp()
stamp("t")
a("s_barrier")
stamp("t")


def octet_writes(d, ar, off):
    return [f"ds_write_b128 v{ar+3}, v[{d}:{d+3}] offset:{off}",
            f"ds_write2_b64 v{ar+1}, v[{d}:{d+1}], v[{d+2}:{d+3}] offset0:{off//8} offset1:{off//8+1}"] + \
           [f"ds_write2_b32 v{ar+c}, v{d+k}, v{d+k+1} offset0:{off//4+k} offset1:{off//4+k+1}" for c in (0, 2) for k in (0, 2)]


put(weave(rest, octet_writes(136, vKC, 0) + octet_writes(144, vKC + 4, 0)
          + [f"ds_write_b32 v{vKZ}, v152 offset:{4096-12}", f"ds_write_b64 v{vUZ}, v[152:153]"]))
tok["h"] = a.vm_tok()
stamp("t")
stamp("t")
a(f"s_andn2_b64 exec, 1, {sOdd}")
a.wait_vm(tok["u"])
a(f"""ds_write_b16 v{vUZ}, v152 offset:448
s_mov_b64 exec, -1
s_waitcnt lgkmcnt(0)""")
stamp("t")
a("s_barrier")
stamp()
stamp("t")


def a_read(n):
    return f"ds_read_b128 a[{128+4*(n % 4)}:{131+4*(n % 4)}], v{vCK} offset:{64*(62-2*n)}"


def u_read(be, i):
    return f"ds_read_b128 v[{16*be+4*i}:{16*be+4*i+3}], v{vCU} offset:{512*be-128*i+384}"


NH = opt('nh', 8)
ORD = list(range(16, 28)) + list(range(16))


def h_load(i):
    g = []
    for ta in range(2):
        r = 96 + 8 * (i % NH) + 4 * ta
        g.append(f"buffer_load_dwordx4 v[{r}:{r+3}], v{vH+ta}, {rWs}, {sHoff} offen offset:{1024*(i % 4)} {HFL}")
    if i % 4 == 3:
        if ROT:
            g[-1] += "\n" + wrap(sHoff, 4096, "s11", "s10")
        else:
            g[-1] += f"\ns_add_u32 {sHoff}, {sHoff}, 4096" if i != 11 else f"\ns_sub_u32 {sHoff}, {sHoff}, {24*1024}"
    return g


put([a_read(0)] + [u_read(be, 0) for be in range(8)] + [a_read(1), a_read(2)])
FH_LOAD = f"buffer_load_dword v{vF}, v{vFH}, {rWs}, {sFHr} offen sc1"
fill = {n: [] for n in range(32)}
for i in range(1, 4):
    fill[i - 1] += [u_read(be, i) for be in range(8)]
fill[2] += [("lt", "ub")]
if XRAT:
    fill[3] += XRES
if T64:
    fill[FHW_AT] += [f"v_mul_u32_u24 v155, {FSP}, v255", ("wv", "h"),
                     f"s_mov_b64 exec, 3\nbuffer_store_dword v{vNo}, v155, {rWs}, {sFHw} offen sc1\ns_mov_b64 exec, -1"]
else:
    fill[FHW_AT] += [("wv", "h"), f"s_mov_b64 exec, 1\nbuffer_store_dword v{vNo}, v{vZ}, {rWs}, {sFHw} offen sc1\ns_mov_b64 exec, -1"]
SPR = opt('spr', 1)
vq = {n: [] for n in range(32)}
if SPR:
    assert NMV % 2 == 0
    n, at_, mv_ = (0 if NP < 9 else 1), {}, {}
    nm = 3
    for p in range(NP, 14):
        q = p - 6
        if 2 * q >= NMV:
            nm = max(nm, at_.get(q, -9) + opt('lag', 6))
            for kk in (2 * q, 2 * q + 1):
                fill[nm] += ([("wv", f"wd{kk}")] if kk % 2 == 0 else []) + wd_move(kk) + [("lt", f"mv{kk}")]
            n = max(n, nm + 1)
            nm += 1
        g = wd_pair(2 * p)
        if n > 0:
            (vq[n - 1][-1] if vq[n - 1] else fill[n - 1]).append(g[0])
        vq[n] += [([("wl", f"mv{2*q+1}")] if 2 * q >= NMV else []) + g[(n > 0):2], [g[2]]]
        vq[n + 1] += [[g[3]], [g[4], ("vt", f"wd{2*p}"), g[5]]]
        at_[p] = n
        n += 2
else:
    n = opt('mv0', 3)
    pend = [p for p in range(NP, 14) if 2 * (p - 6) + 1 < NMV]
    for k, p in enumerate(pend):
        fill[1 + k] = wd_pair(2 * p) + [("vt", f"wd{2*p}")] + fill[1 + k]
    for kk in range(NMV, 16):
        if kk % 2 == 0:
            fill[n] += [("wv", f"wd{kk}")]
        fill[n] += wd_move(kk) + [("lt", f"mv{kk}")]
        if kk % 2 == 1:
            fill[n + 2] += [("wl", f"mv{kk}")] + wd_pair(kk + 11) + [("vt", f"wd{kk+11}")]
        n += 1
YB, YW = opt('yb', 5), opt('yw', 16)
fill[FH_AT] += [FH_LOAD]
YL = opt('yl', 0)
ywr = [f"ds_write_b128 v{vYW}, a[{224+4*j}:{227+4*j}] offset:{4096*((j+1) % 8)}" for j in range(8)]
for j in range(min(7, 8 - YL)):
    fill[(YW, YW + 1, YW + 2, max(17, YW + 3), 21, 25, 29)[j]] += [ywr[j]]
hl = [(i, g) for i in range(28) for g in h_load(i)]
for n in range(FH_POLL, 32):
    if hl[0][0] < NH:
        fill[n] += [hl.pop(0)[1]]
for P in range(8):
    for i in range(4):
        n = 4 * P + i
        if n % 4 == 0 or n in (2, 6, 10):
            stamp("c")
        if n == YB:
            a.wait_lg(ltok["ub"])
            a("s_barrier")
        if n == FH_POLL:
            poll("fh", FH_LOAD, F_CMP)
        main = []
        for be in range(8 - P):
            j = P + be
            c = "0" if n == 0 else f"a[{224+4*j}:{227+4*j}]"
            main.append(f"v_mfma_f32_16x16x32_bf16 a[{224+4*j}:{227+4*j}], a[{128+4*(n % 4)}:{131+4*(n % 4)}], v[{16*be+4*i}:{16*be+4*i+3}], {c}")
        main = [[m] for m in main]
        for k, v in enumerate(vq[n]):
            main[k * len(main) // len(vq[n])] += v
        put(pack(main, ([a_read(n + 3)] if n + 3 < 32 else []) + fill[n], 8))
stamp()
stamp("f")
put([("wv", "wd16")] + wd_read(16, 128))
if not YL:
    a(ywr[7])
    ltok["y7"] = a.lg_tok()
stamp()
stamp("f")

XS = lambda g, e: (80 if g < 4 else 0) + 4 * g + 2 * e
FY_LOAD = f"buffer_load_dword v{vF}, v{vN4}, {rWs}, s80 offen sc1"
fill = {k: [] for k in range(28)}
Y0 = (YL + 3) // 4
for k, e in enumerate(ywr[8 - YL:]):
    fill[k // 4] += [e, ("lt", "y7")]
fill[Y0] += [("wl", "y7"), "s_barrier"]
for jj in range(2):
    r = 64 + 16 * jj
    fill[Y0] += [f"ds_read_b64 v[{r+4*src+2*ph}:{r+4*src+2*ph+1}], v{vYR+jj} offset:{1024*src+16*ph}"
                for src in range(4) for ph in range(2)]
    fill[Y0 + 1 + jj] += [f"v_add_f32 v{r+k}, v{r+k}, v{r+k+4}" for k in (0, 1, 2, 3, 8, 9, 10, 11)]
    fill[Y0 + 1 + jj] += [f"v_cvt_pk_bf16_f32 v{r+4+k}, v{r+o}, v{r+8+o}" for k, o in enumerate((0, 2, 1, 3))] + \
        [f"buffer_store_dwordx4 v[{r+4}:{r+7}], v{vL16}, {rWs}, {sY} offen offset:{1024*jj} sc1", ("vt", "y")]
fill[4] += lines(f"""s_lshr_b32 s74, {sjc}, 5
s_lshl_b32 s74, s74, 2
s_add_u32 s74, s74, {sw}
s_mul_i32 s74, s74, {FSP}
s_and_b32 s75, {sjc}, 31
s_lshl_b32 s75, s75, 2
s_add_u32 s74, s74, s75
s_add_u32 s95, s74, {WS_FY}""", 2)
fill[FYW_AT + Y0] += [("wv", "y"), f"s_mov_b64 exec, 1\nbuffer_store_dword v{vNo}, v{vZ}, {rWs}, s95 offen sc1\ns_mov_b64 exec, -1"]
fill[5] += lines(f"""s_lshl_b32 s80, {sc2}, 2
s_lshr_b32 s74, {sr2}, 3
s_add_u32 s80, s80, s74
s_mul_i32 s80, s80, {FSP}
s_add_u32 s80, s80, {WS_FY}
s_add_u32 s13, {sw4k}, {RX}
v_add_u32 v230, s13, v{vL16}""", 2)
fill[9] += [f"ds_write_b128 v230, v[242:245] offset:{XR}"] + lines(f"""v_mul_u32_u24 v234, 224, v{vN4}
v_lshl_add_u32 v234, v{fKG}, 4, v234""")
fill[10] += [f"ds_write_b128 v230, v[246:249] offset:{XR+1024}"] + lines(f"""v_lshlrev_b32 v231, 4, v{fR}
v_lshl_add_u32 v231, v{vN4}, 4, v231
v_lshl_add_u32 v231, v{fKG}, 3, v231""")
fill[12] += lines(f"""v_add_u32 v236, s13, v231
v_xor_b32 v237, 16, v236
v_xor_b32 v238, 32, v236
v_xor_b32 v239, 48, v236
v_mul_u32_u24 v235, {2*YS}, v{fKG}
v_add_u32 v235, v235, v{vN4}""") + [f"ds_read_b64 v[{64+2*g}:{65+2*g}], v{236+g} offset:{XR}" for g in range(4)] + [("lt", "xr")]
fill[13] += lines(f"""s_mul_i32 s74, s17, {YS//4}
s_lshl_b32 s75, s97, 2
s_add_u32 s74, s74, s75
s_add_u32 s96, s74, {WS_Y}""", 2)
fill[14] += [f"v_xor_b32 v{240+k}, {4096*k}, v230" for k in range(1, 4)]
fill[FY_AT] += [FY_LOAD]
for g in range(4):
    for e in range(2):
        fill[17 + g] += [f"v_lshlrev_b32 v{XS(g, e)}, 16, v{64+2*g+e}", f"v_and_b32 v{XS(g, e)+1}, {sMask}, v{64+2*g+e}"]
for g in range(4):
    for e in range(2):
        fill[min(27, FY_POLL + g // 2)] += [f"buffer_load_dword v{72+2*g+e}, v235, {rWs}, s96 offen sc1\ns_add_u32 s96, s96, {YS if e == 0 else 3*YS}"]
DEF = opt('def', NH)
late = []
HL0 = opt('hl0', 1)
for i in range(28):
    kk = ORD[i]
    if i % 2 == 0 and i > 0:
        stamp("h")
    if i < 14:
        stamp("j")
    extra = []
    if i + 1 < 12:
        if (kk + 1) % 2 == 0:
            extra += [("wv", f"wd{kk+1}")]
        extra += wd_read(kk + 1, 128 + 8 * ((kk + 1) % 2))
    if i == FY_POLL:
        poll("fy", FY_LOAD, F_CMP)
    main = []
    for ta in range(2):
        for da in range(2):
            acc = 16 * (da + 2 * ta)
            c = "0" if i == 0 else f"v[{acc}:{acc+15}]"
            fa = (8 * kk if kk < 16 else 128 + 8 * (kk % 2)) + 4 * da
            fb = 96 + 8 * (i % NH) + 4 * ta
            m = [f"v_mfma_f32_32x32x16_bf16 v[{acc}:{acc+15}], a[{fa}:{fa+3}], v[{fb}:{fb+3}], {c}"]
            if acc == 0 and i >= 28 - DEF:
                late.append(m)
                continue
            if hl and i >= HL0 and (da, ta) != (0, 0) and (hl[0][0] < i + NH or (hl[0][0] == i + NH and da == 1 and len(hl) % 2 == ta % 2)):
                m.append(hl.pop(0)[1])
            main.append(m)
    AB = opt('ab', '')
    fl_ = fill[i]
    if 'X' in AB:
        fl_ = [e for e in fl_ if isinstance(e, tuple) or not (" lds" in e or "v80," in e)]
    if 'Y' in AB and i == FYW_AT:
        fl_ = [e for e in fl_ if e != ("wv", "y")]
    if 'D' in AB:
        extra = [e for e in extra if not isinstance(e, tuple)]
    put(pack(main, extra + fl_, 24))
assert not hl
stamp()
stamp("f")
wr = [f"ds_write_b128 v230, v[{16*k+4*g}:{16*k+4*g+3}] offset:{(k-1)*16384+1024*g}" for k in range(1, 4) for g in range(4)]
yadd = []
for g in range(4):
    for e in range(2):
        yr, d = 72 + 2 * g + e, XS(g, e)
        yadd += [f"v_lshlrev_b32 v64, 16, v{yr}", f"v_and_b32 v65, {sMask}, v{yr}",
                 f"v_add_f32 v{d}, v{d}, v64", f"v_add_f32 v{d+1}, v{d+1}, v65"]
def fin(g):
    L = []
    for e in range(2):
        r = 4 * g + 2 * e
        L += [f"v_pk_add_f32 v[{r}:{r+1}], v[{r}:{r+1}], v[{rr(k, g)+2*e}:{rr(k, g)+2*e+1}]" for k in range(1, 4)]
        L += [f"v_pk_fma_f32 v[{r}:{r+1}], v[{r}:{r+1}], v[228:229], v[{XS(g, e)}:{XS(g, e)+1}] op_sel_hi:[1,0,1]"]
    L += [f"v_cvt_pk_bf16_f32 v{116+2*g}, v{4*g}, v{4*g+1}", f"v_cvt_pk_bf16_f32 v{117+2*g}, v{4*g+2}, v{4*g+3}"]
    if g % 2 == 1:
        b = 116 + 2 * (g - 1)
        L += [f"v_permlane32_swap_b32 v{b}, v{b+2}\nv_permlane32_swap_b32 v{b+1}, v{b+3}",
              f"buffer_store_dwordx4 v[{b}:{b+3}], v234, {rOut}, s16 offen offset:{16*(g-1)} {OUTFL}"]
    return L


if opt('f2', 1):
    rr = lambda k, g: 16 * k + 4 * g
    wg = lambda gs: [wr[4 * (k - 1) + g] for g in gs for k in range(1, 4)]
    rd = lambda gs: [f"ds_read_b128 v[{rr(k, g)}:{rr(k, g)+3}], v{240+k} offset:{(k-1)*16384+1024*g}" for g in gs for k in range(1, 4)]
    put(weave(late, wg((0, 1))) + yadd[:16])
    stamp("f")
    a("s_waitcnt lgkmcnt(0)\ns_barrier")
    stamp("f")
    put(rd((0, 1)) + weave(wg((2, 3)), yadd[16:] + fin(0)) + [("lt", "w2")] + fin(1))
    stamp("f")
    put([("wl", "w2"), "s_barrier"] + rd((2, 3)))
    stamp("f")
    put(fin(2) + fin(3))
    stamp("f")
else:
    YIN = opt('yin', 1)
    w1 = weave(late, wr[:8]) if late else wr[:8]
    put(w1 + (weave(wr[8:], yadd) if YIN else wr[8:]))
    stamp("f")
    a("s_waitcnt lgkmcnt(0)")
    stamp("f")
    a("s_barrier")
    stamp("f")
    for g in range(4):
        for k in range(1, 4):
            a(f"ds_read_b128 v[{16*k+4*g}:{16*k+4*g+3}], v{240+k} offset:{(k-1)*16384+1024*g}")
    stamp("f")
    if not YIN:
        put(yadd)
    stamp("f")
    for g in range(4):
        for e in range(2):
            r = 4 * g + 2 * e
            for k in range(1, 4):
                a(f"v_pk_add_f32 v[{r}:{r+1}], v[{r}:{r+1}], v[{16*k+r}:{16*k+r+1}]")
            a(f"v_pk_fma_f32 v[{r}:{r+1}], v[{r}:{r+1}], v[228:229], v[{XS(g, e)}:{XS(g, e)+1}] op_sel_hi:[1,0,1]")
        a(f"v_cvt_pk_bf16_f32 v{116+2*g}, v{4*g}, v{4*g+1}\nv_cvt_pk_bf16_f32 v{117+2*g}, v{4*g+2}, v{4*g+3}")
        if g % 2 == 1:
            b = 116 + 2 * (g - 1)
            a(f"v_permlane32_swap_b32 v{b}, v{b+2}\nv_permlane32_swap_b32 v{b+1}, v{b+3}")
            a(f"buffer_store_dwordx4 v[{b}:{b+3}], v234, {rOut}, s16 offen offset:{16*(g-1)} {OUTFL}")
            stamp("f")
stamp()


def stamp_out():
    if not STAMP:
        return
    a(f"""
s_waitcnt vmcnt(0) lgkmcnt(0)
v_writelane_b32 v254, s98, {nstamp[0]-1}
{CLK} s[98:99]
s_waitcnt lgkmcnt(0)
v_writelane_b32 v254, s98, 15
s_lshl_b32 s84, s2, 2
s_add_u32 s84, s84, {sw}
s_lshl_b32 s84, s84, 6
s_add_u32 s84, s84, {WS_TS}
v_lshlrev_b32 v1, 2, v255
s_mov_b64 exec, 0xffff
buffer_store_dword v254, v1, {rWs}, s84 offen
""")


stamp_out()
a("s_endpgm")

a.reset()
NC_LOAD = f"global_load_dword v202, v203, s[{sDbg}:{sDbg+1}] sc1"
NC_CMP = "v_cmp_eq_u32 vcc, 0, v202"
shq = "s59"
a(f"""
L_helper:
s_lshl_b32 {shq}, {sxcd}, 2
s_add_u32 {shq}, {shq}, {sj}
v_mov_b32 v203, 0
v_lshrrev_b32 v1, 2, v255
s_lshl_b32 s83, {shq}, 2
s_add_u32 s83, s83, {sw}
s_lshl_b32 s72, s83, 4
v_add_u32 v4, s72, v1
v_mul_u32_u24 v5, 896, v4
v_and_b32 v2, 3, v255
v_lshl_add_u32 v5, v2, 4, v5
s_lshr_b32 s73, {sxcd}, 1
s_lshl_b32 s73, s73, 2
s_add_u32 s60, s73, {sj}
s_min_u32 s73, s60, 13
s_and_b32 s74, {sxcd}, 1
s_mul_i32 s74, s74, 14
s_add_u32 s61, s73, s74
s_lshr_b32 s73, s61, 1
s_lshl_b32 s82, s73, 8
v_lshrrev_b32 v6, 4, v255
s_lshl_b32 s75, {sw}, 2
v_add_u32 v6, s75, v6
v_mul_u32_u24 v7, 3584, v6
v_and_b32 v3, 15, v255
v_lshl_add_u32 v7, v3, 4, v7
s_mov_b32 s72, {WS_EP}
s_waitcnt lgkmcnt(0)
""")
if STAMP:
    a("v_mov_b32 v254, 0\nv_writelane_b32 v254, s100, 0")
    nstamp[0] = 1
stamp(SEL[0])
a(f"""
s_mov_b32 s36, s{sX}
s_mov_b32 s37, s{sX+1}
s_add_u32 s48, s{sWs}, {WSOFF}
s_addc_u32 s49, s{sWs+1}, 0
buffer_load_dword v202, v203, {rWs}, s72 offen sc1
""")
for i in range(14):
    a(f"buffer_load_dwordx4 v[{8+4*i}:{11+4*i}], v5, {rX}, 0 offen offset:{64*i}")
a(f"""
s_mov_b32 s73, 1664525
v_mul_lo_u32 v202, v202, s73
s_cmp_eq_u32 s83, 127
v_add_u32 v202, 1013904225, v202
v_or_b32 v202, 1, v202
s_cbranch_scc0 L_hnoep
s_mov_b64 exec, 1
""")
a.items.append(("raw", f"    global_store_dword v203, v202, s[{sDbg}:{sDbg+1}] sc1"))
a.items.append(("raw", f"    buffer_store_dword v202, v203, {rWs}, s72 offen sc1"))
a(f"""
s_mov_b64 exec, -1
L_hnoep:
s_bitcmp1_b32 s61, 0
s_cselect_b32 s40, s{sWu}, s{sWg}
s_cselect_b32 s41, s{sWu+1}, s{sWg+1}
""")
wl = [f"buffer_load_dwordx4 v[{72+4*i}:{75+4*i}], v7, {rW}, s82 offen\ns_add_u32 s82, s82, {16*3584}" for i in range(28)]
HW0 = opt('hw0', 0)
put(wl[:HW0])
wl = wl[HW0:]
a(f"""
s_mov_b32 s76, 0x3f803f80
s_mov_b32 s77, 0x00003f80
s_mov_b32 s79, 0x3f800000
""")
for _ in range(opt('dhelp', 0)):
    a("s_sleep 16")
EXACT = "--noexact" not in sys.argv
L = []
for i in range(56):
    c0, c1 = ("0", "0") if i == 0 else ("v64", "v68")
    L.append([f"v_dot2_f32_bf16 v64, v{8+i}, s76, {c0}", f"v_dot2_f32_bf16 v68, v{8+i}, v{8+i}, {c1}"])
HW1 = opt('hw1', 0)
put(L[0] + weave(L[1:], wl[:HW1]))
wl = wl[HW1:]
stamp()
a(f"""
v_add_f32_dpp v64, v64, v64 quad_perm:[1,0,3,2] row_mask:0xf bank_mask:0xf
v_add_f32_dpp v68, v68, v68 quad_perm:[1,0,3,2] row_mask:0xf bank_mask:0xf
v_lshlrev_b32 v4, 3, v4
v_add_f32_dpp v64, v64, v64 quad_perm:[2,3,0,1] row_mask:0xf bank_mask:0xf
v_add_f32_dpp v68, v68, v68 quad_perm:[2,3,0,1] row_mask:0xf bank_mask:0xf
v_mul_f32 v64, {hex(0x3b124925)}, v64
v_mul_f32 v68, {hex(0x3b124925)}, v68
v_fma_f32 v68, -v64, v64, v68
v_cvt_pk_bf16_f32 v64, -v64, -v64
v_max_f32 v68, 0, v68
v_cvt_pk_bf16_f32 v68, v68, v68
v_and_b32 v68, {sMask}, v68
v_add_f32 v68, 0x3727c5ac, v68
v_cvt_pk_bf16_f32 v68, v68, v68
v_and_b32 v68, {sMask}, v68
v_sqrt_f32 v68, v68
v_and_b32 v66, {sMask}, v64
v_cvt_pk_bf16_f32 v68, v68, v68
v_and_b32 v68, {sMask}, v68
v_rcp_f32 v70, v68
s_mov_b32 s74, {WS_ST}
v_fma_f32 v71, -v68, v70, 1.0
v_fma_f32 v70, v70, v71, v70
v_mul_f32 v65, v70, v70
v_mul_f32 v71, v66, v70
s_mov_b32 s80, 0x11111111
s_mov_b32 s81, 0x11111111
s_mov_b64 exec, s[80:81]
buffer_store_dwordx2 v[64:65], v4, {rWs}, s74 offen sc1
s_mov_b64 exec, -1
v_mul_u32_u24 v5, 960, v1
s_mul_i32 s75, {sw}, {16*960}
v_lshl_add_u32 v5, v2, 4, v5
v_add_u32 v5, s75, v5
""")
L2B = 64 * 960
L3B = L2B + 448 * 144
a(f"""
v_lshrrev_b32 v1, 5, v255
v_bfe_u32 v2, v255, 2, 2
v_lshl_add_u32 v2, v1, 3, v2
v_mul_u32_u24 v2, 960, v2
v_bfe_u32 v4, v255, 4, 1
v_lshl_add_u32 v2, v4, 5, v2
v_and_b32 v4, 3, v255
v_lshl_add_u32 v2, v4, 3, v2
v_add_u32 v194, s75, v2
v_and_b32 v4, 31, v255
v_mul_u32_u24 v4, 144, v4
s_lshl_b32 s74, {sw}, 5
s_add_u32 s74, s74, {L2B}
v_lshl_add_u32 v4, v1, 4, v4
v_add_u32 v195, s74, v4
v_lshlrev_b32 v6, 9, v6
v_lshl_add_u32 v6, v3, 5, v6
v_add_u32 v6, {L3B}, v6
v_lshrrev_b32 v1, 3, v255
v_and_b32 v2, 7, v255
v_lshlrev_b32 v2, 4, v2
v_mul_u32_u24 v197, {XTS}, v1
v_add_u32 v197, v197, v2
v_mul_u32_u24 v1, 144, v1
v_add_u32 v1, v1, v2
s_mul_i32 s74, {sw}, {112*144}
s_add_u32 s74, s74, {L2B}
v_add_u32 v196, s74, v1
s_lshl_b32 s74, {shq}, 7
s_mul_i32 s75, {sw}, {112*XTS}
s_add_u32 s74, s74, s75
s_add_u32 s62, s74, {WS_XT}
s_and_b32 s75, {sw}, 1
s_lshl_b32 s75, s75, 8
v_lshl_add_u32 v2, v255, 2, s75
v_add_u32 v198, {L3B}, v2
""")


L = []
for i in range(56):
    t = 186 + 2 * (i % 4)
    if EXACT:
        g = [f"v_dot2_f32_bf16 v{t}, v{8+i}, s77, v66", f"v_dot2_f32_bf16 v{t+1}, v{8+i}, s79, v66"]
        if i > 0:
            p = 186 + 2 * ((i - 1) % 4)
            g += [f"v_cvt_pk_bf16_f32 v{7+i}, v{p}, v{p+1}", f"v_lshlrev_b32 v{p}, 16, v{7+i}", f"v_and_b32 v{p+1}, {sMask}, v{7+i}",
                  f"v_pk_mul_f32 v[{p}:{p+1}], v[{p}:{p+1}], v[70:71] op_sel_hi:[1,0]", f"v_cvt_pk_bf16_f32 v{7+i}, v{p}, v{p+1}"]
            if i % 4 == 0:
                g.append(f"ds_write_b128 v5, v[{4+i}:{7+i}] offset:{64*(i//4-1)}")
        if i == 55:
            g += ["s_nop 0", f"v_cvt_pk_bf16_f32 v63, v{t}, v{t+1}", f"v_lshlrev_b32 v{t}, 16, v63", f"v_and_b32 v{t+1}, {sMask}, v63",
                  f"v_pk_mul_f32 v[{t}:{t+1}], v[{t}:{t+1}], v[70:71] op_sel_hi:[1,0]", f"v_cvt_pk_bf16_f32 v63, v{t}, v{t+1}",
                  f"ds_write_b128 v5, v[60:63] offset:{64*13}"]
    else:
        g = [f"v_lshlrev_b32 v{t}, 16, v{8+i}", f"v_and_b32 v{t+1}, {sMask}, v{8+i}",
             f"v_pk_fma_f32 v[{t}:{t+1}], v[{t}:{t+1}], v[70:71], v[70:71] op_sel:[0,0,1] op_sel_hi:[1,0,1]",
             f"v_cvt_pk_bf16_f32 v{8+i}, v{t}, v{t+1}"]
        if i % 4 == 3:
            g.append(f"ds_write_b128 v5, v[{8+i-3}:{8+i}] offset:{64*(i//4)}")
    L.append(g)
HW2 = opt('hw2', 10)
put(weave(L, wl[:HW2]))
wl = wl[HW2:]
stamp()
if WM == 1:
    a(f"""
s_mul_i32 s74, s83, {98*128}
v_min_u32 v199, 48, v255
v_lshlrev_b32 v199, 7, v199
v_add_u32 v199, s74, v199
global_load_dword v200, v199, s[{sWd}:{sWd+1}]
global_load_dword v201, v199, s[{sWd}:{sWd+1}] offset:{0}
""".replace("global_load_dword v201, v199, s[28:29] offset:0", f"v_add_u32 v199, {49*128}, v199\nglobal_load_dword v201, v199, s[28:29]"))
HW3 = opt('hw3', 99)
put(wl[:min(HW3, 12)])
wl2 = wl[min(HW3, 12):HW3]
wl = wl[HW3:]
for b in range(14):
    a(f"ds_read_b64_tr_b16 v[{8+4*b}:{9+4*b}], v194 offset:{64*b}\nds_read_b64_tr_b16 v[{10+4*b}:{11+4*b}], v194 offset:{64*b+4*960}")
cs = []
for i in range(28):
    for d in range(4):
        c0, c1 = ("0", "0") if i == 0 else (f"v{64+2*d}", f"v{65+2*d}")
        cs += [f"v_dot2_f32_bf16 v{64+2*d}, v{72+4*i+d}, s77, {c0}", f"v_dot2_f32_bf16 v{65+2*d}, v{72+4*i+d}, s79, {c1}"]
NC0 = opt('nc0', 0)
put(weave([f"ds_write_b128 v195, v[{8+4*b}:{11+4*b}] offset:{32*144*b}" for b in range(14)], wl2 + cs[:NC0]))
a(f"{NC_LOAD}\ns_waitcnt lgkmcnt(0)\ns_barrier")
stamp()
for b in range(14):
    a(f"ds_read_b128 v[{8+4*b}:{11+4*b}], v196 offset:{8*144*b}")
put(weave([f"buffer_store_dwordx4 v[{8+4*b}:{11+4*b}], v197, {rWs}, s62 offen sc1\ns_add_u32 s62, s62, {8*XTS}" for b in range(14)], [] if wl else cs[NC0:]))
if wl:
    put(wl + cs[NC0:])
a("""
ds_write_b128 v6, v[64:67]
ds_write_b128 v6, v[68:71] offset:16
s_waitcnt lgkmcnt(0)
s_barrier
""")
stamp()
for r in range(16):
    a(f"ds_read_b32 v{72+r}, v198 offset:{512*r}")
for st_ in (8, 4, 2, 1):
    for r in range(st_):
        a(f"v_add_f32 v{72+r}, v{72+r}, v{72+r+st_}")
a(f"""
v_cvt_pk_bf16_f32 v73, v72, v72
v_and_b32 v73, {sMask}, v73
v_sub_f32 v74, v72, v73
v_cvt_pk_bf16_f32 v73, v73, v74
v_lshlrev_b32 v2, 4, v3
v_lshrrev_b32 v1, 4, v255
v_lshl_add_u32 v2, v1, 2, v2
s_lshr_b32 s74, s61, 1
s_lshl_b32 s74, s74, 1
s_add_u32 s74, s74, {sw}
s_lshl_b32 s74, s74, 1
s_and_b32 s75, s61, 1
s_add_u32 s74, s74, s75
s_lshl_b32 s74, s74, 8
s_add_u32 s74, s74, {WS_CS}
s_cmp_lt_u32 s60, 14
s_cselect_b32 s74, s74, {WS_SIZE}
s_cmp_lt_u32 {sw}, 2
s_cselect_b32 s74, s74, {WS_SIZE}
buffer_store_dword v73, v2, {rWs}, s74 offen sc1
""")
stamp()
for _ in range(opt('dh2', 0)):
    a("s_sleep 16")
poll("hnc", NC_LOAD, NC_CMP)
a(f"""
v_mul_u32_u24 v1, {FSP}, v255
s_lshl_b32 s74, {shq}, 2
s_add_u32 s74, s74, {WS_FL}
s_waitcnt vmcnt(0)
s_barrier
s_cmp_eq_u32 {sw}, 0
s_cbranch_scc0 L_hdone
s_mov_b64 exec, 0xff
buffer_store_dword v202, v1, {rWs}, s74 offen sc1
s_mov_b64 exec, -1
L_hdone:
""")
stamp()
stamp_out()
a("L_end:\ns_endpgm")
for sp in slow:
    a.reset()
    a(sp)
a("L_codeend:\ns_endpgm")

body = a.render()
if opt('align', 1):
    from align import align
    body, info = align(body, opt('nopc', 50.0))
    a.stats.update(info)
here = os.path.dirname(os.path.abspath(__file__))
ref = open(os.path.join(here, "..", "cdna_kernels", NAME + ".s.ref")).read()
head = [l for l in ref.split("\n") if l.startswith(";") and "@launch" not in l and "Override" not in l and "grid=ceil" not in l]
txt = "\n".join(head) + f"""
; Generated by tools/gen.py (hand-written generator).  WSOFF={WSOFF} XTS={XTS} YS={YS} CSL=1
; @launch grid=(256,1,1) block=(256,1,1) lds=163840
.amdgcn_target "amdgcn-amd-amdhsa--gfx950"
.text
.globl {NAME}_kernel
.p2align 8
.type {NAME}_kernel,@function
{NAME}_kernel:
{body}
.section .rodata,"a"
.p2align 6
.amdhsa_kernel {NAME}_kernel
  .amdhsa_next_free_vgpr 512
  .amdhsa_next_free_sgpr 102
  .amdhsa_accum_offset 256
  .amdhsa_group_segment_fixed_size 0
  .amdhsa_kernarg_size 128
  .amdhsa_user_sgpr_count 2
  .amdhsa_user_sgpr_kernarg_segment_ptr 1
  .amdhsa_system_sgpr_workgroup_id_x 1
.end_amdhsa_kernel
"""
out = [x for x in sys.argv[1:] if not x.startswith("--")]
path = out[0] if out else os.path.join(here, "..", "cdna_kernels", NAME + ".s")
open(path, "w").write(txt)
print(path, a.stats, file=sys.stderr)
```

```python
import sys, os
sys.path.insert(0, os.path.dirname(os.path.abspath(__file__)))
from asmdsl import Asm

NAME = "parallel_sum__ssm_conv_s4__glu_gated_reglu__prompt"
STAMP = "--stamp" in sys.argv


def opt(name, dflt):
    v = [x.split('=')[1] for x in sys.argv if x.startswith('--' + name + '=')]
    return type(dflt)(v[0]) if v else dflt


WS_H, WS_XT, WS_Y = 0x0, 0x700000, 0x900000
XTS, YS = 4096 + opt('xtp', 128), 8192 + opt('yp', 128)
WS_ST, WS_CS = 0xB00000, 0xB04000
WS_FH, WS_FY, WS_FL, WS_EP = 0xB10000, 0xB20000, 0xB28000, 0xB2C000
WS_TS = 0xB30000
WS_SIZE = 0xB80000
WSOFF = opt('wsoff', 0) << 20
FSP = 1024
SLOT = [0, 16384, 32768, 49152]
XB = 32768
SC = 147456
UB = 33536
U1_OFF = 4640
U_CH = 9280
KC0, KC_CH, KC_CP = 16, 16656, 4160
YX = 32768
RX = 65536
XR = 49152
PS = [SC] + [XB + k * 16384 for k in range(2, 7)]
SPIN = 200000
C64 = "\nv_add_u32 v2, 64, v2\nv_min_u32 v2, L_codeend-L_pc-4, v2\nglobal_load_dword v229, v2, s[70:71]" if opt('c64', 0) else ''
FHW_AT, FH_AT, FH_POLL = opt('fhw', 2), opt('fh', 16), opt('fhp', 20)
FYW_AT, FY_AT, FY_POLL = opt('fyw', 6), opt('fy', 19), opt('fyp', 24)
FL_AT, FL_POLL = opt('fl', 20), opt('flp', 23)
OUTFL = 'sc1' if '--outsc1' in sys.argv else ''
SEL = opt('sel', 'a')
CV = opt('cv', 20)
PAT = opt('pat', 0)
WG = opt('wg', 4)

sX, sAre, sAim, sBre, sBim, sCre, sCim, sLdt, sDsk = 4, 6, 8, 10, 12, 14, 16, 18, 20
sWg, sWu, sWd, sOut, sDbg, sWs = 24, 26, 28, 30, 32, 34
rX, rW, rWd, rWs, rOut = "s[36:39]", "s[40:43]", "s[44:47]", "s[48:51]", "s[52:55]"
sw, sxcd, sj, sr1, sc1_, sjc, sr2, sc2, snonce = "s56", "s57", "s58", "s59", "s60", "s61", "s62", "s63", "s64"
sWoff, sWdoff, sDs, scnt = "s65", "s66", "s67", "s68"
sq, sXoff, sw4k, sWl, sMask = "s69", "s72", "s73", "s77", "s78"
sFL, stg, sUl, sUg, sH0, sH1, sKC, sHoff = "s80", "s81", "s82", "s83", "s86", "s87", "s88", "s89"
sST, sCS, sFHw, sFHr, sY = "s90", "s91", "s92", "s93", "s94"
sOdd = "s[22:23]"

vKC, vKZ, vUZ, vKX, vXR, vXD, vWD, vWF, vKL = 160, 168, 169, 170, 172, 180, 184, 188, 190
vDD, vDF, vCU, vCK, vN4, vN8, vCS, vF, vYW, vYR, vFH, vH = 200, 204, 208, 209, 210, 211, 212, 213, 214, 215, 217, 218
fC, fR, fKG, fQ, fG, vNo, vZ, vL16 = 220, 221, 222, 223, 226, 224, 225, 250

a = Asm()
slow = []
nstamp = [0]
tok, ltok = {}, {}


def stamp(kind="a"):
    if not STAMP or kind not in SEL:
        return
    k = nstamp[0]
    nstamp[0] += 1
    if k > 1:
        a.items.append(("raw", f"    v_writelane_b32 v254, s98, {k-1}"))
    a.items.append(("raw", f"    {CLK} s[98:99]"))


def poll(name, load, cmp_):
    a(cmp_)
    a(f"s_cbranch_vccnz L_slow_{name}")
    a(f"L_back_{name}:")
    slow.append(f"""L_slow_{name}:
s_mov_b32 {scnt}, 0
L_retry_{name}:
s_add_u32 {scnt}, {scnt}, 1
s_cmp_gt_u32 {scnt}, {SPIN}
s_cbranch_scc1 L_back_{name}
{load}
s_waitcnt vmcnt(0)
{cmp_}
s_cbranch_vccnz L_retry_{name}
s_branch L_back_{name}""")


def put(items):
    for e in items:
        if isinstance(e, tuple):
            if e[0] == "vt": tok[e[1]] = a.vm_tok()
            if e[0] == "lt": ltok[e[1]] = a.lg_tok()
            if e[0] == "wv": a.wait_vm(tok[e[1]])
            if e[0] == "wl": a.wait_lg(ltok[e[1]])
        else:
            a(e)


def weave(main, extra):
    nreal = sum(1 for e in extra if not isinstance(e, tuple))
    out, k, done = [], 0, 0
    for t, m in enumerate(main):
        out += m if isinstance(m, list) else [m]
        goal = -(-(nreal * (t + 1)) // len(main))
        while k < len(extra) and (isinstance(extra[k], tuple) or done < goal):
            out.append(extra[k])
            done += not isinstance(extra[k], tuple)
            k += 1
    return out


def cost(e):
    if isinstance(e, tuple):
        return 4 if e[0] in ("wv", "wl") else 0
    c = 0
    for l in e.split("\n"):
        op = l.split()[0]
        if op.startswith(("buffer_", "global_")):
            c += CV if "x4" in op else 12
        elif op.startswith("ds_write"):
            c += 28 if "b128" in op or "2_b64" in op else 14
        else:
            c += 4
    return c


def pack(main, extra, cap):
    base = [sum(cost(x) for x in m[1:]) for m in main]
    n, G = len(extra), len(main)
    cs = [cost(e) for e in extra]
    INF = 1 << 60
    best = [[INF] * (n + 1) for _ in range(G + 1)]
    frm = [[0] * (n + 1) for _ in range(G + 1)]
    best[0][0] = 0
    for g in range(G):
        for i in range(n + 1):
            if best[g][i] == INF:
                continue
            load = base[g]
            for j in range(i, n + 1):
                if j > i:
                    load += cs[j - 1]
                v = best[g][i] + 1000 * max(0, load - cap) + load * load // 16
                if v < best[g + 1][j]:
                    best[g + 1][j] = v
                    frm[g + 1][j] = i
    cuts, j = [], n
    for g in range(G, 0, -1):
        cuts.append((frm[g][j], j))
        j = frm[g][j]
    cuts.reverse()
    out = []
    for m, (i, j) in zip(main, cuts):
        out += m + extra[i:j]
    return out


def lines(txt, per=1):
    L = [l.replace(";;", "\n") for l in txt.strip().split("\n")]
    return ["\n".join(L[i:i + per]) for i in range(0, len(L), per)]


T64 = opt('t64', 1)
KA = 240 if T64 else 144
ROT = opt('rot', 0)
HFL = opt('hfl', 'sc1').replace('_', ' ').replace('none', '')


def wrap(reg, step, lim, base):
    return f"s_add_u32 {reg}, {reg}, {step}\ns_cmp_eq_u32 {reg}, {lim}\ns_cselect_b32 {reg}, {base}, {reg}"


def dma4(m0, vo, srd, soff, step, fl=""):
    g = [m0, f"buffer_load_dwordx4 v{vo}, {srd}, {soff} offen {fl} lds"]
    for i in range(1, 4):
        g.append(f"buffer_load_dwordx4 v{vo+i}, {srd}, {soff} offen offset:{1024*i} {fl} lds")
    g.append(f"s_add_u32 {soff}, {soff}, {step}")
    return g


def w_unit(u):
    return dma4(f"s_add_u32 m0, {sWl}, {SLOT[u % 4]}", vWD, rW, sWoff, 32 * 3584)


def x_block(cb):
    return dma4(f"s_add_u32 m0, {sw4k}, {XB+cb*16384}", vXD, rX, sXoff, 128)


def wd_pair(kk):
    g = dma4(f"s_add_u32 m0, {sw4k}, {PS[(kk >> 1) % 6]}", vDD, rWd, sWdoff, 32 * 896)
    if ROT and kk % 4 == 2:
        g[-1] = wrap(sWdoff, 32 * 896, "s9", "s8")
    return g


CLK = "s_memtime" if "--cyc" in sys.argv else "s_memrealtime"
if STAMP:
    a(f"{CLK} s[100:101]")
a(f"""
s_cmp_ge_u32 s2, 256
s_cbranch_scc1 L_end
s_load_dwordx16 s[4:19], s[0:1], 0
s_load_dwordx16 s[20:35], s[0:1], 64
s_getpc_b64 s[70:71]
L_pc:
s_and_b32 {sxcd}, s2, 7
s_lshr_b32 {sj}, s2, 3
v_lshrrev_b32 v1, 6, v0
v_and_b32 v255, 63, v0
v_readfirstlane_b32 {sw}, v1
""")
a(f"""
s_and_b32 {sq}, {sj}, 3
s_lshl_b32 s74, {sq}, 6
v_lshl_add_u32 v2, v1, 4, v255
v_add_u32 v2, s74, v2
v_lshlrev_b32 v2, 7, v2
v_min_u32 v2, L_codeend-L_pc-4, v2
s_mov_b64 exec, 0xffff
{"global_load_dword v253, v2, s[70:71]" + C64 if "--nocodepf" not in sys.argv else ""}
s_mov_b64 exec, -1
s_mov_b32 s38, {2048*896}
s_mov_b32 s39, 0x20000
s_mov_b32 s42, {448*3584}
s_mov_b32 s43, 0x20000
s_mov_b32 s50, {WS_SIZE}
s_mov_b32 s51, 0x20000
v_lshlrev_b32 v{vL16}, 4, v255
s_mov_b32 {sMask}, 0xffff0000
s_cmp_lt_u32 {sj}, 4
s_cbranch_scc1 L_helper
""")

a(f"""
s_sub_u32 {sj}, {sj}, 4
s_mul_i32 s74, {sxcd}, 28
s_add_u32 {sjc}, s74, {sj}
s_lshl_b32 s74, {sjc}, 10
s_lshl_b32 s75, {sw}, 8
s_add_u32 s74, s74, s75
v_lshl_add_u32 v4, v255, 2, s74
s_lshr_b32 s79, s74, 9
s_lshl_b32 s74, s79, 1
v_mov_b32 v5, s74
s_lshr_b32 {sc2}, {sj}, 2
s_lshr_b32 s74, {sxcd}, 1
s_lshl_b32 s74, s74, 2
s_add_u32 {sr1}, s74, {sq}
s_lshl_b32 {stg}, {sr1}, 2
s_add_u32 {stg}, {stg}, {sw}
s_mul_i32 {sXoff}, {stg}, {32*896}
s_lshl_b32 {sw4k}, {sw}, 12
s_and_b32 s74, {sxcd}, 1
s_mul_i32 s74, s74, 7
s_add_u32 {sc1_}, s74, {sc2}
s_lshl_b32 {sWoff}, {sc1_}, 8
s_lshr_b32 s84, {sw}, 1
s_and_b32 s85, {sw}, 1
s_lshl_b32 s74, s85, 13
s_lshl_b32 s75, s84, 12
s_add_u32 {sWl}, s74, s75
v_and_b32 v{fC}, 3, v255
v_bfe_u32 v{fR}, v255, 2, 2
v_lshrrev_b32 v{fKG}, 5, v255
v_lshrrev_b32 v{fQ}, 4, v255
v_and_b32 v{fG}, 1, v{fQ}
v_lshrrev_b32 v6, 3, v255
v_mul_u32_u24 v1, 896, v6
v_and_b32 v2, 7, v255
v_xor_b32 v2, v2, v{fQ}
v_lshl_add_u32 v{vXD}, v2, 4, v1
v_xor_b32 v{vXD+1}, 64, v{vXD}
v_add_u32 v{vXD+1}, {8*896-1024}, v{vXD+1}
v_add_u32 v{vXD+2}, {2*(8*896-1024)}, v{vXD}
v_add_u32 v{vXD+3}, {2*(8*896-1024)}, v{vXD+1}
s_lshl_b32 s74, s84, 4
v_add_u32 v1, s74, v{fR}
v_mul_u32_u24 v1, 3584, v1
v_lshl_add_u32 v1, v{fQ}, 6, v1
s_lshl_b32 s76, s85, 1
v_xor_b32 v2, s76, v{fC}
v_lshl_add_u32 v{vWD}, v2, 4, v1
v_add_u32 v{vWD+1}, {4*3584-1024}, v{vWD}
v_add_u32 v{vWD+2}, {2*(4*3584-1024)}, v{vWD}
v_add_u32 v{vWD+3}, {3*(4*3584-1024)}, v{vWD}
""")
if STAMP:
    a("v_mov_b32 v254, 0\ns_waitcnt lgkmcnt(0)\nv_writelane_b32 v254, s100, 0")
    nstamp[0] = 1
stamp(SEL[0])
a(f"""
s_waitcnt lgkmcnt(0)
global_load_ushort v134, v5, s[{sLdt}:{sLdt+1}]
global_load_dword v128, v4, s[{sAre}:{sAre+1}]
global_load_dword v129, v4, s[{sAim}:{sAim+1}]
global_load_dword v130, v4, s[{sBre}:{sBre+1}]
global_load_dword v131, v4, s[{sBim}:{sBim+1}]
global_load_dword v132, v4, s[{sCre}:{sCre+1}]
global_load_dword v133, v4, s[{sCim}:{sCim+1}]
global_load_ushort v135, v5, s[{sDsk}:{sDsk+1}]
s_mov_b32 s36, s{sX}
s_mov_b32 s37, s{sX+1}
s_bitcmp1_b32 {sw}, 0
s_cselect_b32 s40, s{sWu}, s{sWg}
s_cselect_b32 s41, s{sWu+1}, s{sWg+1}
s_cselect_b64 {sOdd}, -1, 0
""")
if "--tlb" in sys.argv:
    a(f"""
v_min_u32 v14, 5, v255
v_lshlrev_b32 v14, 21, v14
v_mov_b32 v15, 0
s_mov_b64 exec, 0x3f
global_load_dword v152, v14, s[{sWs}:{sWs+1}]
s_mov_b64 exec, 1
global_load_dword v153, v15, s[{sOut}:{sOut+1}]
global_load_dword v154, v15, s[{sWd}:{sWd+1}]
global_load_dword v155, v15, s[{sDbg}:{sDbg+1}]
s_mov_b64 exec, -1
""")
LATE = opt('late', 0)
first_dma = x_block(0) + w_unit(0) + [("vt", "u0")]
if not LATE:
    put(first_dma)
setup1 = lines(f"""
s_add_u32 s74, {sw4k}, {SC}
v_add_u32 v{vKX}, s74, v{vL16}
v_xor_b32 v{vKX+1}, 4096, v{vKX}
v_bfe_u32 v1, v255, 1, 2
v_lshlrev_b32 v7, 4, v1
v_lshl_add_u32 v7, v255, 6, v7
v_add_u32 v{vKL}, s74, v7
v_xor_b32 v{vKL+1}, 16, v{vKL}
v_xor_b32 v{vKL+2}, 32, v{vKL}
v_xor_b32 v{vKL+3}, 48, v{vKL}
v_lshl_add_u32 v7, v{fKG}, 3, v{fR}
v_lshlrev_b32 v7, 6, v7
v_bfe_u32 v8, v255, 1, 1
v_lshl_add_u32 v8, v{fG}, 1, v8
v_lshrrev_b32 v9, 1, v{fR}
v_xor_b32 v8, v8, v9
v_lshl_add_u32 v7, v8, 4, v7
v_and_b32 v10, 1, v255
v_lshl_add_u32 v7, v10, 3, v7
v_add_u32 v{vKL+4}, s74, v7
v_xor_b32 v{vKL+5}, 32, v{vKL+4}
v_add_u32 v{vKL+5}, 256, v{vKL+5}
s_lshl_b32 s76, s85, 5
v_xor_b32 v{vKL+6}, s76, v{vKL+4}
v_xor_b32 v{vKL+7}, s76, v{vKL+5}
v_and_b32 v11, 31, v255
v_bfe_u32 v12, v255, 1, 3
v_xor_b32 v7, v12, v{fKG}
v_lshlrev_b32 v7, 4, v7
v_lshl_add_u32 v7, v11, 7, v7
s_and_b32 s74, {sw4k}, {0x2000 if T64 else 0x3000}
s_add_u32 s74, s74, {XB}
v_add_u32 v{vXR}, s74, v7
v_xor_b32 v{vXR+1}, 32, v{vXR}
v_xor_b32 v{vXR+2}, 64, v{vXR}
v_xor_b32 v{vXR+3}, 96, v{vXR}
v_add_u32 v{vXR+4}, 0x10000, v{vXR}
v_add_u32 v{vXR+5}, 0x10000, v{vXR+1}
v_add_u32 v{vXR+6}, 0x10000, v{vXR+2}
v_add_u32 v{vXR+7}, 0x10000, v{vXR+3}
v_lshlrev_b32 v13, 3, v{fC}
v_lshl_add_u32 v13, v{fR}, 6, v13
v_mul_u32_u24 v7, {8192+32}, v{fG}
v_lshl_add_u32 v7, v{fKG}, 11, v7
s_mul_i32 s74, s85, {512 if T64 else 0}
v_add3_u32 v{vWF}, v7, v13, s74
v_xor_b32 v{vWF+1}, 32, v{vWF}
v_lshl_add_u32 v7, v{fG}, 5, v13
v_lshl_add_u32 v7, v{fKG}, 9, v7
s_lshl_b32 s74, s85, 8
s_add_u32 s74, s74, {sw4k}
s_add_u32 s74, s74, 65536
v_add_u32 v{vDF}, s74, v7
v_xor_b32 v{vDF+1}, 256, v{vDF}
v_add_u32 v{vDF+2}, 0x10000, v{vDF}
v_add_u32 v{vDF+3}, 0x10000, v{vDF+1}
s_mul_i32 s74, {sw}, 448
v_lshl_add_u32 v7, v{fKG}, 2, v{fR}
v_add_u32 v7, s74, v7
v_mul_u32_u24 v7, 896, v7
v_lshl_add_u32 v7, v{fG}, 6, v7
v_lshl_add_u32 v{vDD}, v{fC}, 4, v7
v_add_u32 v{vDD+1}, {8*896-1024}, v{vDD}
v_add_u32 v{vDD+2}, {2*(8*896-1024)}, v{vDD}
v_add_u32 v{vDD+3}, {3*(8*896-1024)}, v{vDD}
v_lshlrev_b32 v{vN4}, 2, v11
v_lshlrev_b32 v{vN8}, 3, v11
""")
setup2 = lines(f"""s_mul_i32 {sKC}, s84, {KC_CH}
s_add_u32 {sKC}, {sKC}, {KC0}
s_lshl_b32 s74, s85, 10
s_sub_u32 s74, {sKC}, s74
s_add_u32 s74, s74, {16*255-12}
v_sub_u32 v{vKC}, s74, v{vL16}
v_add_u32 v{vKC+1}, {KC_CP+4}, v{vKC}
v_add_u32 v{vKC+2}, {2*(KC_CP+4)}, v{vKC}
v_add_u32 v{vKC+3}, {3*(KC_CP+4)}, v{vKC}
v_lshlrev_b32 v7, 9, v{fKG}
v_sub_u32 v7, v{vKC}, v7
s_mul_i32 s74, s85, 1536
s_sub_u32 s74, 2560, s74
v_subrev_u32 v{vKC+4}, s74, v7
v_add_u32 v{vKC+5}, {KC_CP+4}, v{vKC+4}
v_add_u32 v{vKC+6}, {2*(KC_CP+4)}, v{vKC+4}
v_add_u32 v{vKC+7}, {3*(KC_CP+4)}, v{vKC+4}
v_and_b32 v11, 15, v255
v_mul_u32_u24 v7, {KC_CP+4}, v{fQ}
v_lshl_add_u32 v7, v11, 2, v7
v_add_u32 v{vKZ}, {sKC}, v7
v_lshlrev_b32 v7, 2, v11
v_lshlrev_b32 v{vCS}, 2, v{vN4}
{f"v_min_u32 v7, 108, v{vN4}" if T64 else "v_min_u32 v7, 52, v7"}
v_mul_u32_u24 v8, {FSP}, v{fKG if T64 else fG}
v_add_u32 v{vFH}, v7, v8
s_mul_i32 s75, s84, {U_CH}
s_add_u32 s75, s75, {UB}
s_mul_i32 s74, s85, {U1_OFF}
s_add_u32 s74, s74, s75
v_min_u32 v7, 55, v255
v_lshl_add_u32 v{vUZ}, v7, 3, s74
s_lshl_b32 s74, s85, 11
s_add_u32 {sUl}, s75, s74
s_mul_i32 {sUg}, s79, {XTS}
s_add_u32 {sUg}, {sUg}, s74
s_add_u32 {sUg}, {sUg}, {WS_XT}
v_mul_u32_u24 v7, {U1_OFF}, v10
v_lshl_add_u32 v7, v12, 6, v7
v_lshl_add_u32 v7, v{fQ}, 4, v7
s_lshl_b32 s74, s85, 6
s_sub_u32 s75, s75, s74
s_add_u32 s75, s75, {448-384}
v_add_u32 v{vCU}, s75, v7
v_mul_u32_u24 v7, {KC_CP}, v{fC}
v_sub_u32 v8, v{fQ}, v{fR}
v_lshl_add_u32 v7, v8, 4, v7
s_sub_u32 s74, {sKC}, s74
s_add_u32 s74, s74, {16*255-64*62}
v_add_u32 v{vCK}, s74, v7
s_lshl_b32 s74, {sw}, 10
s_add_u32 s74, s74, {YX}
v_add_u32 v{vYW}, s74, v{vL16}
v_lshlrev_b32 v7, 8, v1
v_lshl_add_u32 v7, v6, 5, v7
v_lshl_add_u32 v7, v10, 3, v7
s_lshl_b32 s74, {sw}, 13
s_add_u32 s75, s74, {YX+4096}
v_add_u32 v{vYR}, s75, v7
s_add_u32 s74, s74, 8192
s_and_b32 s74, s74, 0x7fff
s_add_u32 s74, s74, {YX}
v_add_u32 v{vYR+1}, s74, v7
s_mul_i32 s74, s84, {112*1024}
v_add_u32 v{vH}, s74, v{vL16}
s_sub_u32 s74, {112*1024}, s74
v_add_u32 v{vH+1}, s74, v{vL16}
v_mov_b32 v{vZ}, 0
s_lshl_b32 s74, {sxcd}, 2
s_add_u32 {sr2}, s74, {sq}
s_lshl_b32 s74, {sr2}, 1
s_add_u32 s74, s74, s84
s_lshl_b32 s97, s74, 5
s_lshl_b32 s74, {sc2}, 1
s_add_u32 s74, s74, s85
s_lshl_b32 s17, s74, 6
s_mul_i32 s74, s97, 896
s_add_u32 s16, s74, s17
v_lshrrev_b32 v7, 2, v255
v_mul_u32_u24 v7, 896, v7
v_xor_b32 v8, v{fC}, v{fQ}
v_lshl_add_u32 v227, v8, 4, v7""")
LS = opt('ls', 0)
if LS:
    def idx(L, pat):
        return [k for k, l in enumerate(L) if l.startswith(pat)][0]
    k0, k1 = idx(setup1, f"v_add_u32 v{vXR+4},"), idx(setup1, "v_lshlrev_b32 v13, 3,")
    k2 = idx(setup1, f"v_lshl_add_u32 v7, v{fG}, 5, v13")
    k3 = idx(setup2, f"s_lshl_b32 s74, {sxcd}, 2")
    late1 = setup1[k0:k1] + [f"v_lshlrev_b32 v13, 3, v{fC}", f"v_lshl_add_u32 v13, v{fR}, 6, v13", "v_and_b32 v11, 31, v255"] + setup1[k2:] \
        + [setup2[k3 - 1]]
    late2 = ["v_bfe_u32 v1, v255, 1, 2", "v_lshrrev_b32 v6, 3, v255", "v_and_b32 v10, 1, v255", "v_bfe_u32 v12, v255, 1, 3"] + setup2[:k3 - 1]
    ren = {"v7": "v232", "v8": "v233", "v11": "v234", "v1": "v235", "v6": "v236", "v10": "v237", "v12": "v238", "v13": "v239",
           "s74": "s12", "s75": "s13"}
    import re
    late_setup = [re.sub(r"\b(v7|v8|v11|v1|v6|v10|v12|v13|s74|s75)\b", lambda m: ren[m.group(1)], l) for l in late1 + late2]
    put(setup1[:k0] + setup1[k1:k2] + setup2[k3:])
else:
    late_setup = []
    put(setup1 + setup2)
a(f"""
v_lshlrev_b32 v134, 16, v134
v_mul_f32 v134, 0x3fb8aa3b, v134
v_exp_f32 v134, v134
v_cvt_pk_bf16_f32 v134, v134, v134
v_lshlrev_b32 v134, 16, v134
""")
stamp()

PA = [64, 96]
PBS = [8, 64]
KF = [(160, 176, 192, 208), (96, 112, 128, 144) if T64 else (224, 240, 80, 96)]
KS = opt('ks', 1)
R1, R8, E, T = 146, [148, 150], 0, 2
l1s = [0, 1, 2, 3, 4, 5, 6, 7, 8, 256, 258, 260, 262, 264, 512, 516, 520, 768, 772, 776,
       1024, 1032, 1280, 1288, 1536, 1544, 1792, 1800]
ra = {l: 8 + 2 * i for i, l in enumerate(l1s)}
cols = [0, 1, 2, 3, 256, 256, 258, 260, 4, 5, 6, 7, 260, 260, 262, 264,
        512, 516, 520, 1024, 768, 772, 776, 1536, 1032, 1280, 1288, 1288, 1544, 1792, 1800, 1800]


def cmul(d, x, r, t):
    return [f"v_pk_mul_f32 v[{t}:{t+1}], v[{x}:{x+1}], v[{r}:{r+1}] op_sel_hi:[1,0]",
            f"v_pk_fma_f32 v[{d}:{d+1}], v[{x}:{x+1}], v[{r}:{r+1}], v[{t}:{t+1}] op_sel:[1,1,0] op_sel_hi:[0,1,1] neg_lo:[1,0,0]"]


def k_write(ck, i, cq):
    P = (PA[ck] + 16 * i) if i < 2 else (PBS[ck if KS else 0] + 16 * (i - 2))
    return f"ds_write_b128 v{vKL+cq}, v[{P+4*cq}:{P+4*cq+3}]"


def k_reads(ck, i):
    fr = KF[ck][i]
    base = vKL + 6 if i < 2 else vKL + 4
    return "\n".join(f"ds_read_b64_tr_b16 a[{fr+4*s+2*rd}:{fr+4*s+2*rd+1}], v{base+rd} offset:{1024*s}"
                     for s in range(4) for rd in range(2))


def kgen_head(ck):
    L = []
    un = (lambda d, s: f"v_lshlrev_b32 v{d}, 16, v{s}") if ck == 0 else (lambda d, s: f"v_and_b32 v{d}, {sMask}, v{s}")
    L += [un(136 + i, 128 + i) for i in range(6)]
    L += ["v_mul_f32 v142, v134, v136", "v_mul_f32 v143, v134, v137",
          "v_mul_f32 v142, 0x3fb8aa3b, v142", "v_mul_f32 v143, 0.15915494, v143"]

    def ev(d, l):
        s = []
        if l == 1:
            s += ["v_exp_f32 v144, v142", "v_fract_f32 v145, v143"]
        else:
            f = {8: "0x41000000", 256: "0x43800000"}[l]
            s += [f"v_mul_f32 v144, {f}, v142", f"v_mul_f32 v145, {f}, v143", "v_exp_f32 v144, v144", "v_fract_f32 v145, v145"]
        s += [f"v_cos_f32 v{d}, v145", f"v_sin_f32 v{d+1}, v145"]
        return s, f"v_pk_mul_f32 v[{d}:{d+1}], v[{d}:{d+1}], v[144:145] op_sel_hi:[1,0]"
    wm = cmul(ra[0], 140, 138, T) + [f"v_pk_mul_f32 v[{ra[0]}:{ra[0]+1}], v[{ra[0]}:{ra[0]+1}], v[134:135] op_sel_hi:[1,0]"]
    for (d, l), fill in zip(((R1, 1), (R8[ck], 8), (E, 256)), wm):
        s, last = ev(d, l)
        L += s + [fill, last]
    for l in range(1, 9):
        L += cmul(ra[l], ra[l - 1], R1, T)
    for l in l1s[9:]:
        L += cmul(ra[l], ra[l - 256], E, T)
    for k in range(16):
        c0, c1 = ra[cols[2 * k]], ra[cols[2 * k + 1]]
        L += [f"v_cvt_pk_bf16_f32 v{PA[ck]+k}, v{c0}, v{c1}", f"v_cvt_pk_bf16_f32 v{PA[ck]+16+k}, -v{c0+1}, -v{c1+1}"]
    return L


def kgen_chain(ck):
    r8 = R8[ck]
    PB = PBS[ck if KS else 0]
    rb = lambda j: r8 if j == 1 else 4 + 2 * (j % 2)
    B = [f"v_cvt_pk_bf16_f32 v{PB}, 1.0, v{r8}", f"v_cvt_pk_bf16_f32 v{PB+16}, 0, v{r8+1}"]
    for j in range(2, 32):
        B += cmul(rb(j), rb(j - 1), r8, T)
        if j % 2:
            B += [f"v_cvt_pk_bf16_f32 v{PB+j//2}, v{rb(j-1)}, v{rb(j)}",
                  f"v_cvt_pk_bf16_f32 v{PB+16+j//2}, v{rb(j-1)+1}, v{rb(j)+1}"]
    return B


def k_pass(ck, i):
    return [k_write(ck, i, cq) for cq in range(4)] + [k_reads(ck, i)]


def at(stream, items):
    out = []
    for i, x in enumerate(stream):
        out += [y for p, y in items if p == i]
        out.append(x)
    return out + [y for p, y in items if p >= len(stream)]


def kgen_mfma(ck):
    f = KF[ck]
    return [f"v_mfma_f32_32x32x16_bf16 a[{KA}:{KA+15}], a[{f[s>>2]+4*(s&3)}:{f[s>>2]+4*(s&3)+3}], "
            f"a[{f[2+(s>>2)]+4*(s&3)}:{f[2+(s>>2)]+4*(s&3)+3}], "
            + ("0" if (ck == 0 and s == 0) else f"a[{KA}:{KA+15}]") for s in range(8)]


XF = (lambda s, ta=0: 8 * s + 4 * ta) if T64 else (lambda s, ta=0: 4 * s)


def x_read(s, ta=0):
    cb = s >> 2
    return f"ds_read_b128 a[{XF(s, ta)}:{XF(s, ta)+3}], v{vXR + (0 if cb < 4 else 4) + (s & 3)} offset:{(cb % 4)*16384+ta*4096}"


WM = opt('wm', 0)
if WM == 0:
    warm = [f"""s_cmp_eq_u32 {sw}, 0
s_cselect_b32 s12, s{sWg}, s{sWu}
s_cselect_b32 s13, s{sWg+1}, s{sWu+1}
s_cmp_lt_u32 {sw}, 2
s_cselect_b32 s12, s12, s{sWd}
s_cselect_b32 s13, s13, s{sWd+1}
s_mul_i32 s74, {sjc}, {56*128}
v_min_u32 v251, 55, v255
v_lshl_add_u32 v251, v251, 7, s74
global_load_dword v252, v251, s[12:13]"""]
    if opt('w64', 0) == 1:
        warm += ["global_load_dword v157, v251, s[12:13] offset:64"]
    if opt('w64', 0) == 2:
        warm[0] = warm[0].replace("global_load_dword", f"s_cmp_eq_u32 {sw}, 3\ns_cselect_b32 s75, 64, 0\nv_add_u32 v251, s75, v251\nglobal_load_dword")
elif WM >= 1:
    warm = [f"""s_lshl_b32 s74, {sjc}, 1
s_add_u32 s74, s74, s84
s_mul_i32 s74, s74, 3584
v_min_u32 v251, 27, v255
v_lshlrev_b32 v251, 7, v251
s_mov_b64 exec, 0xfffffff
buffer_load_dword v252, v251, {rW}, s74 offen
s_mov_b64 exec, -1"""]
warm2 = []
if WM >= 2:
    warm2 = [f"""s_lshl_b32 s74, {sjc}, 2
s_add_u32 s74, s74, {sw}
s_mul_i32 s74, s74, {14*128}
v_lshl_add_u32 v251, v255, 7, s74
s_mov_b64 exec, 0x3fff
global_load_dword v156, v251, s[{sWd}:{sWd+1}]
s_mov_b64 exec, -1"""]
WAT = opt('wat', 0)
for _ in range(opt('dmain', 0)):
    a("s_sleep 16")
stamp("k")
early = x_block(1) + [("vt", "x1")] + w_unit(1) + [("vt", "u1")]
if LATE == 1:
    put(weave(kgen_head(0), first_dma + early))
elif LATE == 2:
    put(weave(kgen_head(0), first_dma))
    warm = early + warm
elif LATE == 3:
    put(weave(kgen_head(0), first_dma + warm))
    warm = early
else:
    put(weave(kgen_head(0), early))
stamp("k")
XRES = [f"buffer_load_dwordx4 v[242:245], v227, {rX}, s16 offen",
        f"s_add_u32 s74, s16, {16*896}\nbuffer_load_dwordx4 v[246:249], v227, {rX}, s74 offen"]
XRAT = opt('xrat', 0)
if XRAT == 0:
    warm += XRES
wA = warm if WAT == 0 else [e for e in warm if "v251" not in str(e)]
wB = [] if WAT == 0 else [e for e in warm if "v251" in str(e)]
XH = opt('xh', 0)
wA = sum((x_block(cb) + [("vt", f"x{cb}")] for cb in range(2, 2 + XH)), []) + wA if opt('xhf', 1) else \
    wA + sum((x_block(cb) + [("vt", f"x{cb}")] for cb in range(2, 2 + XH)), [])
if KS:
    RD, HP = opt('rd', 3), opt('hp', 0)
    XE = 0
    P_ = [k_pass(0, 0), k_pass(0, 1), k_pass(1, 0), k_pass(0, 2), k_pass(0, 3), k_pass(1, 1), k_pass(1, 2)]

    def spread(passes, lo, hi, last=None):
        n = 4 * len(passes)
        out = []
        for k in range(n):
            pos = lo + (hi - lo) * k // max(1, n - 1)
            if last is not None and k >= n - 4:
                pos = max(pos, last[k - (n - 4)])
            out.append((pos, passes[k // 4][k % 4]))
            if k % 4 == 3 and not (last is not None and k == n - 1):
                out.append((pos + RD, passes[k // 4][4]))
        return out
    h1 = weave(kgen_head(1), wA)
    put(at(h1, spread(P_[:HP], len(h1) - 30 * HP, len(h1) - RD - 2)) if HP else h1)
    stamp("ak"[SEL == "k"])
    n0 = opt('kp0', 3 if HP == 0 else 4)
    order = [0, 1, 2, 3] if n0 == 4 else [0, 1, 3]
    rest_ = [4, 5, 6] if n0 == 4 else [4, 2, 5, 6]
    put(at(kgen_chain(0), spread([P_[i] for i in order[HP:]], 0, 92, (20, 44, 68, 92))))
    stamp("k")
    put([P_[3][4]] + at(kgen_chain(1), spread([P_[i] for i in rest_], 2, 92, (20, 44, 68, 92))))
    q2 = P_[6]
    stamp("ak"[SEL == "k"])
else:
    put(weave(kgen_head(1), wA))
    stamp("ak"[SEL == "k"])
    RD = opt('rd', 3)
    p0, p1, p2 = k_pass(0, 0), k_pass(0, 1), k_pass(0, 2)
    XE = opt('xe', 0)
    xe = sum((x_block(cb) + [("vt", f"x{cb}")] for cb in range(2, 2 + XE)), [])
    n0 = 7 * opt('xe0', 3)
    put(weave(at(kgen_chain(0), list(zip((0, 7, 14, 21, 21 + RD), p0)) + list(zip((30, 37, 44, 51, 51 + RD), p1))
                 + list(zip((62, 70, 80, 92), p2))), xe[:n0] + (wB if WAT == 1 else []) + (warm2 if WM == 2 else [])))
    stamp("k")
    p3, q0, q1, q2 = k_pass(0, 3), k_pass(1, 0), k_pass(1, 1), k_pass(1, 2)
    ch = kgen_chain(1)
    put([p2[4], p3[0], p3[1]] + weave(at(ch[2:], [(0, p3[2]), (4, p3[3]), (4, ch[0]), (4, ch[1]), (4 + RD, p3[4])]
                                          + list(zip((14, 20, 26, 32, 32 + RD), q0)) + list(zip((42, 48, 54, 60, 60 + RD), q1))
                                          + list(zip((70, 76, 82, 90), q2))), xe[n0:] + (wB if WAT == 2 else []) + (warm2 if WM == 3 else [])))
    stamp("ak"[SEL == "k"])
sc = lines(f"""s_lshl_b32 {sWdoff}, {sc2}, 7
s_mov_b32 s44, s{sWd}
s_mov_b32 s45, s{sWd+1}
s_mov_b32 s46, {1792*896}
s_mov_b32 s47, 0x20000
s_add_u32 s48, s{sWs}, {WSOFF};;s_addc_u32 s49, s{sWs+1}, 0
s_mov_b32 s52, s{sOut}
s_mov_b32 s53, s{sOut+1}
s_mov_b32 s54, {2048*896}
s_mov_b32 s55, 0x20000
s_mul_i32 {sFL}, {sxcd}, {FSP}
s_add_u32 {sFL}, {sFL}, {WS_FL}
s_and_b32 {stg}, {stg}, {0xfe if T64 else 0xff}
s_lshl_b32 {sST}, {stg}, 8
s_add_u32 {sST}, {sST}, {WS_ST}
s_lshl_b32 s18, {sc1_}, 1
s_add_u32 s18, s18, {"s85" if T64 else 0}
s_lshl_b32 {sCS}, s18, 9
s_add_u32 {sCS}, {sCS}, {WS_CS}
v_lshlrev_b32 v135, 16, v135""")
for _ in range(opt('dm2', 0)):
    a("s_sleep 16")
SCL = opt('scl', 1)
sc_late = []
if SCL:
    sc_late, sc = sc[:-1], sc[-1:]
lp = k_pass(1, 3)
put(weave(kgen_mfma(0), [q2[4], lp[0]] + sc[:7] + [lp[1]] + sc[7:14] + [lp[2]] + sc[14:]
          + ([lp[3], lp[4], ("wv", "x1")] if T64 else [lp[3], ("wv", "u0")] + [x_read(s) for s in range(4)] + [lp[4]])))
stamp("k")
a("s_waitcnt lgkmcnt(0)")
stamp("k")
a("s_barrier")
stamp("ak"[SEL == "k"])

fillg = {s: [] for s in range(28)}
fillg[2] += lines(f"""v_readfirstlane_b32 {sDs}, v135
s_mul_i32 {sH0}, {stg}, {112*1024}
s_lshl_b32 s74, s18, 12
s_add_u32 {sH0}, {sH0}, s74
s_add_u32 {sH1}, {sH0}, {112*1024 if T64 else 4096}
s_mul_i32 s74, {stg}, {FSP}
s_lshl_b32 s75, s18, {2 if T64 else 1}
s_add_u32 s74, s74, s75
s_add_u32 {sFHw}, s74, {WS_FH}""")
fillg[3] += [f"v_accvgpr_read_b32 v{128+r}, a{KA+r}" for r in range(8)]
fillg[6] += [f"v_accvgpr_read_b32 v148, a{KA+13}", f"v_accvgpr_read_b32 v149, a{KA+14}",
             "v_add_f32 v148, v148, v145", "v_add_f32 v149, v149, v146"]
fillg[2] += []
fillg[4] += [f"ds_read_b128 v[136:139], v{vKX+1}", f"ds_read_b128 v[140:143], v{vKX+1} offset:1024",
             f"ds_read_b128 v[144:147], v{vKX+1} offset:2048", ("lt", "kr")]
fillg[5] += lines(f"""s_mul_i32 {sFHr}, {sr2}, {2*FSP}
s_add_u32 {sFHr}, {sFHr}, {WS_FH}
s_mul_i32 {sHoff}, {sr2}, {2*112*1024}
s_mul_i32 s74, {sw}, {28*1024}
s_add_u32 {sHoff}, {sHoff}, s74
s_add_u32 {sHoff}, {sHoff}, {16*1024}""")
fillg[7] += [f"v_add_f32 v{128+r}, v{128+r}, v{136+r}" for r in range(8)]
fillg[9] += lines(f"""v_cmp_eq_u32 vcc, 0, v255
v_mov_b32 v140, {sDs}
v_cndmask_b32 v148, v148, v131, {sOdd}
v_cndmask_b32 v149, v149, v132, {sOdd}
v_cndmask_b32 v140, 0, v140, vcc
v_add_f32 v140, v128, v140""")
fillg[11] += lines(f"""s_mov_b32 s74, 0xaaaaaaaa
s_mov_b32 s75, 0xaaaaaaaa
v_cvt_pk_bf16_f32 v144, v149, v149
v_cndmask_b32 v141, v148, v149, s[74:75]
v_cvt_pk_bf16_f32 v146, v148, v148
v_cvt_pk_bf16_f32 v147, v148, v148
v_cvt_pk_bf16_f32 v145, v149, v141""")
fillg[13] += lines(f"""v_cvt_pk_bf16_f32 v136, v135, v134
v_cvt_pk_bf16_f32 v137, v133, v132
v_cvt_pk_bf16_f32 v138, v131, v130
v_cvt_pk_bf16_f32 v139, v129, v140
v_cvt_pk_bf16_f32 v140, v130, v130
v_cvt_pk_bf16_f32 v141, v129, v129
v_cvt_pk_bf16_f32 v142, v129, v128
v_cvt_pk_bf16_f32 v143, v128, v128""")
fillg[15] += [f"v_cndmask_b32 v{136+r}, v{136+r}, v{140+r}, {sOdd}" for r in range(4)]
fillg[17] += lines(f"""s_mul_i32 {sY}, {sjc}, {YS}
s_lshl_b32 s74, {sw}, 11
s_add_u32 {sY}, {sY}, s74
s_add_u32 {sY}, {sY}, {WS_Y}""")
fillg[19] += [f"v_mov_b32 v{r}, 0" for r in (190, 191, 193, 194)]
fillg[21] += [f"v_mov_b32 v{r}, 0" for r in (195, 196, 198, 199)]


def wd_read(kk, r):
    off = PS[(kk >> 1) % 6] - 65536 + (kk & 1) * 2048
    base = vDF if off < 65536 else vDF + 2
    return [f"ds_read_b64_tr_b16 a[{r+4*da+2*rd}:{r+4*da+2*rd+1}], v{base+da} offset:{off % 65536+rd*1024}"
            for da in range(2) for rd in range(2)]


def wd_move(kk):
    return wd_read(kk, 8 * kk)


def wfrag_read(s, t, r):
    off = SLOT[(s >> 1) % 4] + (s & 1) * 4096 + (t >> 1) * 256
    return [f"ds_read_b64_tr_b16 a[{r+2*rd}:{r+2*rd+1}], v{vWF+(t & 1)} offset:{off+rd*1024}" for rd in range(2)]


if SCL:
    fillg[0] += sc_late[:12]
    fillg[1] += sc_late[12:]
    fillg[3] = fillg[2][1:] + fillg[3] if False else fillg[3]
    fillg[8] += fillg[2][1:]
    fillg[2] = fillg[2][:1]
for k, st_ in enumerate((2, 4, 6, 9, 10, 12, 14, 16, 18, 19)):
    fillg[st_ if st_ != 2 else 1] += late_setup[10 * k:10 * k + 10]
assert len(late_setup) <= 100
WF = (lambda t: 224 + 4 * t) if T64 else (lambda t: 112 + 4 * t)
if T64:
    rd = [x_read(s, ta) for s in range(8) for ta in range(2)] + [("lt", "x1")] + sum((wfrag_read(0, t, WF(t)) for t in range(4)), [])
    put(pack([[m] for m in kgen_mfma(1)], rd + fillg[2], 24))
    SH = opt('sh', 1)
    put([("wl", "x1"), "s_barrier"] + ([] if SH else w_unit(2) + [("vt", "u2")]))
else:
    put(pack([[m] + wfrag_read(0, t, WF(t)) for t, m in enumerate(kgen_mfma(1))], w_unit(2) + [("vt", "u2")] + fillg[2], 24))
fillg[2] = []
X20 = opt('x20', 1)
if XE == 0 and XH == 0 and not X20:
    put(x_block(2) + [("vt", "x2")])
kxw = [f"ds_write_b128 v{vKX}, a[{KA+8}:{KA+11}]", f"ds_write_b128 v{vKX}, a[{KA+12}:{KA+15}] offset:1024",
       f"ds_write_b128 v{vKX}, a[{KA+4}:{KA+7}] offset:2048", ("lt", "kx")]
if opt('kxs', 0):
    fillg[0] += kxw
else:
    put(kxw)
stamp("k")

FL_LOAD = f"buffer_load_dword v{vF}, v{vN4}, {rWs}, {sFL} offen sc1"
F_CMP = f"v_cmp_ne_u32 vcc, {snonce}, v{vF}"
NC_LOAD = f"global_load_dword v{vNo}, v{vZ}, s[{sDbg}:{sDbg+1}] sc1"
NC_CMP = f"v_cmp_eq_u32 vcc, 0, v{vNo}"
if XE == 5:
    XD = {}
    XRD = {1: 2, 2: 3, 3: 4, 4: 5, 5: 6}
    NP = opt('np', 11)
    WDD = dict(zip([4, 6, 8, 10, 12, 14, 16, 18, 20, 22, 24][:NP], range(NP)))
    PSORD = {0: "x2", 1: "x3", 2: "x4", 3: "x5", 4: "x6", 5: None}
    PS[:] = PS[1:] + PS[:1]
    MV = dict(zip([9, 10, 11, 12, 13, 14, 15, 17, 19, 20, 22, 24][:opt('nmv', 2 * (NP - 5))], range(12)))
else:
    XD = {s: 2 + s // 2 for s in ((0,) if X20 else ()) + (2, 4, 6, 8)}
    XRD = {s: s // 2 for s in (4, 6, 8, 10, 12)}
    NP = opt('np', 8)
    WDD = dict(zip([int(c) for c in opt('wdd', '10,12,14,16,18,20,22,24').split(',')][:NP], range(NP)))
    PSORD = {0: None, 1: "x2", 2: "x3", 3: "x4", 4: "x5", 5: "x6"}
    MV = {s: s - 14 for s in range(14, 14 + opt('nmv', 8))}
if XH:
    left = list(range(2 + XH, 7))
    XD = {2 * k: cb for k, cb in enumerate(left)}
    XRD = {1 + k: 2 + k for k in range(XH)}
    XRD.update({2 * k + 4: cb for k, cb in enumerate(left)})
    w0 = max(6, 2 * len(left)) + opt('wsh', 0)
    NP = opt('np', 9)
    WDD = dict(zip(list(range(w0, 25, 2)) + [23], range(NP)))
    assert len(WDD) == NP and sorted(WDD) == sorted(WDD, key=WDD.get) or True
    order = sorted(WDD)
    WDD = dict(zip(order, range(NP)))
    MV, t_ = {}, 0
    for kk in range(opt('nmv', 2 * (NP - 5))):
        t_ = max(t_ + 1, order[kk >> 1] + 4, 2 * kk + 2)
        MV[t_] = kk
    assert max(MV) <= 24
    for p_ in range(6, NP):
        assert order[p_] > [k for k, v in MV.items() if v == 2 * (p_ - 6) + 1][0], (p_, order, MV)
    for p_ in range(1, 6):
        assert order[p_] > [k for k, v in XRD.items() if v == p_ + 1][0]
XS0 = 5
if T64 and SH:
    XD = {2 + 2 * k: 2 + k for k in range(5)}
    NP = opt('np', 7)
    WDD = dict(zip([12, 14, 16, 18, 20, 22, 24, 23][:NP], range(NP)))
    WDD = dict(zip(sorted(WDD), range(NP)))
    XS0 = 7
MV = {k: [v] for k, v in MV.items()}
if opt('mvp', 6 if T64 else 0):
    MV = {sorted(WDD)[q] + 4 + opt('mvo', 0): [2 * q, 2 * q + 1] for q in range(opt('mvp', 6 if T64 else 0)) if sorted(WDD)[q] + 4 <= 24}
NMV = sum(len(v) for v in MV.values())
carry, pre = [], []
DG = opt('dg', 2)
for s in range(25):
    if s % 2 == 0 and s > 0:
        stamp("g")
    if 1 <= s <= 4:
        stamp("k")
    if s == opt('dat', -1):
        a("s_sleep 16\ns_sleep 16")
    extra, dma = [], None
    if s % 2 == 1:
        u = (s + 1) // 2
        lt = {1: "kx" if T64 else "x1", 5: "kr"}.get(s)
        a.wait_both(tok[f"u{u}"], ltok[lt] if lt else None)
        a("s_barrier")
        if u + 2 < 14:
            dma = ([], w_unit(u + 2), f"u{u+2}")
    if T64 and XS0 <= s < XS0 + 10:
        extra = [x_read(k, ta) for k in (8 + 2 * (s - XS0), 9 + 2 * (s - XS0)) for ta in range(2)] + extra
    if T64 and SH and s == 0:
        dma = ([], w_unit(2), "u2")
    if s == 0 and not T64:
        extra += [("wv", "x1")] + [x_read(k) for k in range(4, 8)] + [("lt", "x1")]
    if s in XD:
        dma = ([], x_block(XD[s]), f"x{XD[s]}")
    if s in XRD and not T64:
        cb = XRD[s]
        extra += [("wv", f"x{cb}")] + [x_read(k) for k in range(4 * cb, 4 * cb + 4)] + [("lt", f"x{cb}")]
    if s in WDD:
        p = WDD[s]
        need = (None if T64 else PSORD[p]) if p < 6 else f"mv{2*(p-6)+1}"
        dma = ([("wl", need)] if need else [], wd_pair(2 * p), f"wd{2*p}")
    for kk in MV.get(s, []):
        assert s >= (kk + 1 if T64 else 2 * kk + 2)
        if kk % 2 == 0:
            extra += [("wv", f"wd{kk}")]
        extra += wd_move(kk) + [("lt", f"mv{kk}")]
    if s == 12:
        extra += [NC_LOAD]
    if s == 16:
        poll("nc", NC_LOAD, NC_CMP)
        a(f"v_readfirstlane_b32 {snonce}, v{vNo}")
    if s == FL_AT:
        extra += [FL_LOAD]
    if s == FL_POLL:
        poll("fl", FL_LOAD, F_CMP)
        extra += [f"buffer_load_dword v{vF}, v{vN8}, {rWs}, {sST} offen sc1",
                  f"s_lshl_b32 s74, s97, 3\ns_add_u32 s74, s74, {WS_ST+4}\nbuffer_load_dword v228, v{vN8}, {rWs}, s74 offen sc1"]
        if T64:
            extra += [f"buffer_load_dwordx4 v[156:159], v{vCS}, {rWs}, {sCS} offen sc1",
                      f"buffer_load_dword v154, v{vN8}, {rWs}, {sST} offen offset:256 sc1"]
        else:
            extra += [f"buffer_load_dwordx4 a[{160+4*t}:{163+4*t}], v{vCS}, {rWs}, {sCS} offen offset:{512*t} sc1" for t in range(2)]
    extra += fillg[s]
    AB = opt('ab', '')
    if dma and (('x' in AB and dma[2][0] == 'x') or ('w' in AB and dma[2][0] == 'w') or ('u' in AB and dma[2][0] == 'u')):
        dma = (dma[0], ["s_nop 0"] * 6, dma[2])
    main = []
    for t in range(8):
        tl, ta = (t >> 1, t & 1) if T64 else (t, 0)
        j = 4 * ta + tl if T64 else t
        if t % WG == 0 and s > 0:
            (main[-1] if main else pre).append(("wl", f"f{(t+WG-1) >> T64}"))
        c = "0" if s == 0 else f"v[{16*j}:{16*j+15}]"
        m = [f"v_mfma_f32_32x32x16_bf16 v[{16*j}:{16*j+15}], a[{WF(tl)}:{WF(tl)+3}], a[{XF(s, ta)}:{XF(s, ta)+3}], {c}"]
        if dma and t == 0:
            if T64 and DG == 2:
                pre = dma[0] + [dma[1][0]] + pre
            else:
                m += dma[0] + [dma[1][0]]
        if not T64 or ta == 1:
            m += wfrag_read(s + 1, tl, WF(tl)) + [("lt", f"f{tl}")]
        pos = {0: (1, 3, 5, 7), 1: (1, 2, 4, 6), 2: (0, 2, 4, 6)}[DG if T64 else 0]
        if dma and t in pos:
            k = pos.index(t)
            m.append(dma[1][1 + k])
            if k == 3:
                m += [("vt", dma[2]), dma[1][5]]
        main.append(m)
    if s == 24 and opt('b13', 1):
        main[4] += [("wv", "u13"), "s_barrier"]
        main[6] += wfrag_read(26, 0, 144 if T64 else 168)
        main[7] += wfrag_read(27, 0, 148 if T64 else 172)
    put(pre + pack(main, extra, 24))
    pre = []
stamp("g")
TF = 144 if T64 else 168
if not opt('b13', 1):
    a.wait_vm(tok["u13"])
    a("s_barrier")
    put(wfrag_read(26, 0, TF) + wfrag_read(27, 0, TF + 4))
first = [f"v_cmp_gt_u32 vcc, 32, v255", "v_mov_b32 v152, 0", "v_mov_b32 v153, 0",
         f"s_add_u32 m0, {sUl}, {U1_OFF+448}", f"buffer_load_dwordx4 v{vL16}, {rWs}, {sUg} offen sc1 lds",
         f"buffer_load_dwordx4 v{vL16}, {rWs}, {sUg} offen offset:1024 sc1 lds",
         f"v_cndmask_b32 v192, 0, v{vF}, vcc\nv_cndmask_b32 v197, 0, v{vF}, vcc"]
second = [f"s_sub_u32 {sUg}, {sUg}, 2\ns_add_u32 m0, {sUl}, 448", f"buffer_load_dwordx4 v{vL16}, {rWs}, {sUg} offen sc1 lds",
          f"buffer_load_dwordx4 v{vL16}, {rWs}, {sUg} offen offset:1024 sc1 lds", ("vt", "u")]
main, epi = [], []
for t in range(8):
    r = TF + 8 * (t % 2)
    cb = (192, 196, 190, 194)[t & 3]
    tl, ta = (t & 3, t >> 2) if T64 else (t, 0)
    xf = lambda s: f"a[{XF(s, ta)}:{XF(s, ta)+3}]"
    ops = [(f"a[{WF(tl)}:{WF(tl)+3}]", xf(25)), (f"a[{r}:{r+3}]", xf(26)), (f"a[{r+4}:{r+7}]", xf(27)),
           ("v[156:159]" if T64 else f"a[{160+(t & 4)}:{163+(t & 4)}]", f"v[{cb}:{cb+3}]")]
    for k, (A, B) in enumerate(ops):
        m = [f"v_mfma_f32_32x32x16_bf16 v[{16*t}:{16*t+15}], {A}, {B}, v[{16*t}:{16*t+15}]"]
        if t < 7 and k in (0, 1):
            m += wfrag_read(26 + k, (t + 1) & (3 if T64 else 7), TF + 8 * ((t + 1) % 2) + 4 * k)
        if T64 and t == 4 and k == 0:
            m += ["v_cndmask_b32 v192, 0, v154, vcc", "v_cndmask_b32 v197, 0, v154, vcc"]
        main.append(m)
    b = 16 * t
    L = [f"v_max_f32 v{b+r}, 0, v{b+r}" for r in range(8)]
    if t < 6:
        L += [f"v_mul_f32 v{b+r}, v{b+r}, v{b+8+r}" for r in range(8)]
    else:
        L += [f"v_pk_mul_f32 v[{b+r}:{b+r+1}], v[{b+r}:{b+r+1}], v[{b+8+r}:{b+9+r}]" for r in range(0, 8, 2)]
    L += [f"v_cvt_pk_bf16_f32 v{b+8+r}, v{b+2*r}, v{b+2*r+1}" for r in range(4)]
    L += [f"buffer_store_dwordx4 v[{b+8}:{b+11}], v{vL16}, {rWs}, {(sH0, sH1)[t >> 2]} offen offset:{1024*(t & 3)} sc1"]
    epi.append(L)
stamp("t")
if opt('usp', 1):
    main[0] += first[:5]
    main[1] += [first[1 + 5]]
    main[2] += [first[5]]
    main[3] += second[:1]
    main[4] += second[1:2]
    main[6] += second[2:]
    put(sum(main[:6], []))
else:
    put(pack(main[:3], first, 24) + pack(main[3:6], second, 24))
for t in range(6):
    stamp("t")
    put(pack(main[4 * t + 6:4 * t + 10], epi[t], 24))
stamp("t")
put(pack(main[30:], epi[6][:8], 24))
rest = epi[6][8:] + epi[7]
stamp()
stamp("t")
a("s_barrier")
stamp("t")


def octet_writes(d, ar, off):
    return [f"ds_write_b128 v{ar+3}, v[{d}:{d+3}] offset:{off}",
            f"ds_write2_b64 v{ar+1}, v[{d}:{d+1}], v[{d+2}:{d+3}] offset0:{off//8} offset1:{off//8+1}"] + \
           [f"ds_write2_b32 v{ar+c}, v{d+k}, v{d+k+1} offset0:{off//4+k} offset1:{off//4+k+1}" for c in (0, 2) for k in (0, 2)]


put(weave(rest, octet_writes(136, vKC, 0) + octet_writes(144, vKC + 4, 0)
          + [f"ds_write_b32 v{vKZ}, v152 offset:{4096-12}", f"ds_write_b64 v{vUZ}, v[152:153]"]))
tok["h"] = a.vm_tok()
stamp("t")
stamp("t")
a(f"s_andn2_b64 exec, 1, {sOdd}")
a.wait_vm(tok["u"])
a(f"""ds_write_b16 v{vUZ}, v152 offset:448
s_mov_b64 exec, -1
s_waitcnt lgkmcnt(0)""")
stamp("t")
a("s_barrier")
stamp()
stamp("t")


def a_read(n):
    return f"ds_read_b128 a[{128+4*(n % 4)}:{131+4*(n % 4)}], v{vCK} offset:{64*(62-2*n)}"


def u_read(be, i):
    return f"ds_read_b128 v[{16*be+4*i}:{16*be+4*i+3}], v{vCU} offset:{512*be-128*i+384}"


NH = opt('nh', 8)
ORD = list(range(16, 28)) + list(range(16))


def h_load(i):
    g = []
    for ta in range(2):
        r = 96 + 8 * (i % NH) + 4 * ta
        g.append(f"buffer_load_dwordx4 v[{r}:{r+3}], v{vH+ta}, {rWs}, {sHoff} offen offset:{1024*(i % 4)} {HFL}")
    if i % 4 == 3:
        if ROT:
            g[-1] += "\n" + wrap(sHoff, 4096, "s11", "s10")
        else:
            g[-1] += f"\ns_add_u32 {sHoff}, {sHoff}, 4096" if i != 11 else f"\ns_sub_u32 {sHoff}, {sHoff}, {24*1024}"
    return g


put([a_read(0)] + [u_read(be, 0) for be in range(8)] + [a_read(1), a_read(2)])
FH_LOAD = f"buffer_load_dword v{vF}, v{vFH}, {rWs}, {sFHr} offen sc1"
fill = {n: [] for n in range(32)}
for i in range(1, 4):
    fill[i - 1] += [u_read(be, i) for be in range(8)]
fill[2] += [("lt", "ub")]
if XRAT:
    fill[3] += XRES
if T64:
    fill[FHW_AT] += [f"v_mul_u32_u24 v155, {FSP}, v255", ("wv", "h"),
                     f"s_mov_b64 exec, 3\nbuffer_store_dword v{vNo}, v155, {rWs}, {sFHw} offen sc1\ns_mov_b64 exec, -1"]
else:
    fill[FHW_AT] += [("wv", "h"), f"s_mov_b64 exec, 1\nbuffer_store_dword v{vNo}, v{vZ}, {rWs}, {sFHw} offen sc1\ns_mov_b64 exec, -1"]
SPR = opt('spr', 1)
vq = {n: [] for n in range(32)}
if SPR:
    assert NMV % 2 == 0
    n, at_, mv_ = (0 if NP < 9 else 1), {}, {}
    nm = 3
    for p in range(NP, 14):
        q = p - 6
        if 2 * q >= NMV:
            nm = max(nm, at_.get(q, -9) + opt('lag', 6))
            for kk in (2 * q, 2 * q + 1):
                fill[nm] += ([("wv", f"wd{kk}")] if kk % 2 == 0 else []) + wd_move(kk) + [("lt", f"mv{kk}")]
            n = max(n, nm + 1)
            nm += 1
        g = wd_pair(2 * p)
        if n > 0:
            (vq[n - 1][-1] if vq[n - 1] else fill[n - 1]).append(g[0])
        vq[n] += [([("wl", f"mv{2*q+1}")] if 2 * q >= NMV else []) + g[(n > 0):2], [g[2]]]
        vq[n + 1] += [[g[3]], [g[4], ("vt", f"wd{2*p}"), g[5]]]
        at_[p] = n
        n += 2
else:
    n = opt('mv0', 3)
    pend = [p for p in range(NP, 14) if 2 * (p - 6) + 1 < NMV]
    for k, p in enumerate(pend):
        fill[1 + k] = wd_pair(2 * p) + [("vt", f"wd{2*p}")] + fill[1 + k]
    for kk in range(NMV, 16):
        if kk % 2 == 0:
            fill[n] += [("wv", f"wd{kk}")]
        fill[n] += wd_move(kk) + [("lt", f"mv{kk}")]
        if kk % 2 == 1:
            fill[n + 2] += [("wl", f"mv{kk}")] + wd_pair(kk + 11) + [("vt", f"wd{kk+11}")]
        n += 1
YB, YW = opt('yb', 5), opt('yw', 16)
fill[FH_AT] += [FH_LOAD]
YL = opt('yl', 0)
ywr = [f"ds_write_b128 v{vYW}, a[{224+4*j}:{227+4*j}] offset:{4096*((j+1) % 8)}" for j in range(8)]
for j in range(min(7, 8 - YL)):
    fill[(YW, YW + 1, YW + 2, max(17, YW + 3), 21, 25, 29)[j]] += [ywr[j]]
hl = [(i, g) for i in range(28) for g in h_load(i)]
for n in range(FH_POLL, 32):
    if hl[0][0] < NH:
        fill[n] += [hl.pop(0)[1]]
for P in range(8):
    for i in range(4):
        n = 4 * P + i
        if n % 4 == 0 or n in (2, 6, 10):
            stamp("c")
        if n == YB:
            a.wait_lg(ltok["ub"])
            a("s_barrier")
        if n == FH_POLL:
            poll("fh", FH_LOAD, F_CMP)
        main = []
        for be in range(8 - P):
            j = P + be
            c = "0" if n == 0 else f"a[{224+4*j}:{227+4*j}]"
            main.append(f"v_mfma_f32_16x16x32_bf16 a[{224+4*j}:{227+4*j}], a[{128+4*(n % 4)}:{131+4*(n % 4)}], v[{16*be+4*i}:{16*be+4*i+3}], {c}")
        main = [[m] for m in main]
        for k, v in enumerate(vq[n]):
            main[k * len(main) // len(vq[n])] += v
        put(pack(main, ([a_read(n + 3)] if n + 3 < 32 else []) + fill[n], 8))
stamp()
stamp("f")
put([("wv", "wd16")] + wd_read(16, 128))
if not YL:
    a(ywr[7])
    ltok["y7"] = a.lg_tok()
stamp()
stamp("f")

XS = lambda g, e: (80 if g < 4 else 0) + 4 * g + 2 * e
FY_LOAD = f"buffer_load_dword v{vF}, v{vN4}, {rWs}, s80 offen sc1"
fill = {k: [] for k in range(28)}
Y0 = (YL + 3) // 4
for k, e in enumerate(ywr[8 - YL:]):
    fill[k // 4] += [e, ("lt", "y7")]
fill[Y0] += [("wl", "y7"), "s_barrier"]
for jj in range(2):
    r = 64 + 16 * jj
    fill[Y0] += [f"ds_read_b64 v[{r+4*src+2*ph}:{r+4*src+2*ph+1}], v{vYR+jj} offset:{1024*src+16*ph}"
                for src in range(4) for ph in range(2)]
    fill[Y0 + 1 + jj] += [f"v_add_f32 v{r+k}, v{r+k}, v{r+k+4}" for k in (0, 1, 2, 3, 8, 9, 10, 11)]
    fill[Y0 + 1 + jj] += [f"v_cvt_pk_bf16_f32 v{r+4+k}, v{r+o}, v{r+8+o}" for k, o in enumerate((0, 2, 1, 3))] + \
        [f"buffer_store_dwordx4 v[{r+4}:{r+7}], v{vL16}, {rWs}, {sY} offen offset:{1024*jj} sc1", ("vt", "y")]
fill[4] += lines(f"""s_lshr_b32 s74, {sjc}, 5
s_lshl_b32 s74, s74, 2
s_add_u32 s74, s74, {sw}
s_mul_i32 s74, s74, {FSP}
s_and_b32 s75, {sjc}, 31
s_lshl_b32 s75, s75, 2
s_add_u32 s74, s74, s75
s_add_u32 s95, s74, {WS_FY}""", 2)
fill[FYW_AT + Y0] += [("wv", "y"), f"s_mov_b64 exec, 1\nbuffer_store_dword v{vNo}, v{vZ}, {rWs}, s95 offen sc1\ns_mov_b64 exec, -1"]
fill[5] += lines(f"""s_lshl_b32 s80, {sc2}, 2
s_lshr_b32 s74, {sr2}, 3
s_add_u32 s80, s80, s74
s_mul_i32 s80, s80, {FSP}
s_add_u32 s80, s80, {WS_FY}
s_add_u32 s13, {sw4k}, {RX}
v_add_u32 v230, s13, v{vL16}""", 2)
fill[9] += [f"ds_write_b128 v230, v[242:245] offset:{XR}"] + lines(f"""v_mul_u32_u24 v234, 224, v{vN4}
v_lshl_add_u32 v234, v{fKG}, 4, v234""")
fill[10] += [f"ds_write_b128 v230, v[246:249] offset:{XR+1024}"] + lines(f"""v_lshlrev_b32 v231, 4, v{fR}
v_lshl_add_u32 v231, v{vN4}, 4, v231
v_lshl_add_u32 v231, v{fKG}, 3, v231""")
fill[12] += lines(f"""v_add_u32 v236, s13, v231
v_xor_b32 v237, 16, v236
v_xor_b32 v238, 32, v236
v_xor_b32 v239, 48, v236
v_mul_u32_u24 v235, {2*YS}, v{fKG}
v_add_u32 v235, v235, v{vN4}""") + [f"ds_read_b64 v[{64+2*g}:{65+2*g}], v{236+g} offset:{XR}" for g in range(4)] + [("lt", "xr")]
fill[13] += lines(f"""s_mul_i32 s74, s17, {YS//4}
s_lshl_b32 s75, s97, 2
s_add_u32 s74, s74, s75
s_add_u32 s96, s74, {WS_Y}""", 2)
fill[14] += [f"v_xor_b32 v{240+k}, {4096*k}, v230" for k in range(1, 4)]
fill[FY_AT] += [FY_LOAD]
for g in range(4):
    for e in range(2):
        fill[17 + g] += [f"v_lshlrev_b32 v{XS(g, e)}, 16, v{64+2*g+e}", f"v_and_b32 v{XS(g, e)+1}, {sMask}, v{64+2*g+e}"]
for g in range(4):
    for e in range(2):
        fill[min(27, FY_POLL + g // 2)] += [f"buffer_load_dword v{72+2*g+e}, v235, {rWs}, s96 offen sc1\ns_add_u32 s96, s96, {YS if e == 0 else 3*YS}"]
DEF = opt('def', NH)
late = []
HL0 = opt('hl0', 0)
for i in range(28):
    kk = ORD[i]
    if i % 2 == 0 and i > 0:
        stamp("h")
    if i < 14:
        stamp("j")
    extra = []
    if i + 1 < 12:
        if (kk + 1) % 2 == 0:
            extra += [("wv", f"wd{kk+1}")]
        extra += wd_read(kk + 1, 128 + 8 * ((kk + 1) % 2))
    if i == FY_POLL:
        poll("fy", FY_LOAD, F_CMP)
    main = []
    for ta in range(2):
        for da in range(2):
            acc = 16 * (da + 2 * ta)
            c = "0" if i == 0 else f"v[{acc}:{acc+15}]"
            fa = (8 * kk if kk < 16 else 128 + 8 * (kk % 2)) + 4 * da
            fb = 96 + 8 * (i % NH) + 4 * ta
            m = [f"v_mfma_f32_32x32x16_bf16 v[{acc}:{acc+15}], a[{fa}:{fa+3}], v[{fb}:{fb+3}], {c}"]
            if acc == 0 and i >= 28 - DEF:
                late.append(m)
                continue
            if hl and i >= HL0 and ((da, ta) != (0, 0) or opt('l4', 0)) and (hl[0][0] < i + NH or (hl[0][0] == i + NH and da == 1 and len(hl) % 2 == ta % 2)):
                m.append(hl.pop(0)[1])
            main.append(m)
    AB = opt('ab', '')
    fl_ = fill[i]
    if 'X' in AB:
        fl_ = [e for e in fl_ if isinstance(e, tuple) or not (" lds" in e or "v80," in e)]
    if 'Y' in AB and i == FYW_AT:
        fl_ = [e for e in fl_ if e != ("wv", "y")]
    if 'D' in AB:
        extra = [e for e in extra if not isinstance(e, tuple)]
    put(pack(main, extra + fl_, 24))
assert not hl
stamp()
stamp("f")
wr = [f"ds_write_b128 v230, v[{16*k+4*g}:{16*k+4*g+3}] offset:{(k-1)*16384+1024*g}" for k in range(1, 4) for g in range(4)]
yadd = []
for g in range(4):
    for e in range(2):
        yr, d = 72 + 2 * g + e, XS(g, e)
        yadd += [f"v_lshlrev_b32 v64, 16, v{yr}", f"v_and_b32 v65, {sMask}, v{yr}",
                 f"v_add_f32 v{d}, v{d}, v64", f"v_add_f32 v{d+1}, v{d+1}, v65"]
def fin(g):
    L = []
    for e in range(2):
        r = 4 * g + 2 * e
        L += [f"v_pk_add_f32 v[{r}:{r+1}], v[{r}:{r+1}], v[{rr(k, g)+2*e}:{rr(k, g)+2*e+1}]" for k in range(1, 4)]
        L += [f"v_pk_fma_f32 v[{r}:{r+1}], v[{r}:{r+1}], v[228:229], v[{XS(g, e)}:{XS(g, e)+1}] op_sel_hi:[1,0,1]"]
    L += [f"v_cvt_pk_bf16_f32 v{116+2*g}, v{4*g}, v{4*g+1}", f"v_cvt_pk_bf16_f32 v{117+2*g}, v{4*g+2}, v{4*g+3}"]
    if g % 2 == 1:
        b = 116 + 2 * (g - 1)
        L += [f"v_permlane32_swap_b32 v{b}, v{b+2}\nv_permlane32_swap_b32 v{b+1}, v{b+3}",
              f"buffer_store_dwordx4 v[{b}:{b+3}], v234, {rOut}, s16 offen offset:{16*(g-1)} {OUTFL}"]
    return L


if opt('f2', 1):
    rr = lambda k, g: 16 * k + 4 * g
    wg = lambda gs: [wr[4 * (k - 1) + g] for g in gs for k in range(1, 4)]
    rd = lambda gs: [f"ds_read_b128 v[{rr(k, g)}:{rr(k, g)+3}], v{240+k} offset:{(k-1)*16384+1024*g}" for g in gs for k in range(1, 4)]
    put(weave(late, wg((0, 1))) + yadd[:16])
    stamp("f")
    a("s_waitcnt lgkmcnt(0)\ns_barrier")
    stamp("f")
    put(rd((0, 1)) + weave(wg((2, 3)), yadd[16:] + fin(0)) + [("lt", "w2")] + fin(1))
    stamp("f")
    put([("wl", "w2"), "s_barrier"] + rd((2, 3)))
    stamp("f")
    put(fin(2) + fin(3))
    stamp("f")
else:
    YIN = opt('yin', 1)
    w1 = weave(late, wr[:8]) if late else wr[:8]
    put(w1 + (weave(wr[8:], yadd) if YIN else wr[8:]))
    stamp("f")
    a("s_waitcnt lgkmcnt(0)")
    stamp("f")
    a("s_barrier")
    stamp("f")
    for g in range(4):
        for k in range(1, 4):
            a(f"ds_read_b128 v[{16*k+4*g}:{16*k+4*g+3}], v{240+k} offset:{(k-1)*16384+1024*g}")
    stamp("f")
    if not YIN:
        put(yadd)
    stamp("f")
    for g in range(4):
        for e in range(2):
            r = 4 * g + 2 * e
            for k in range(1, 4):
                a(f"v_pk_add_f32 v[{r}:{r+1}], v[{r}:{r+1}], v[{16*k+r}:{16*k+r+1}]")
            a(f"v_pk_fma_f32 v[{r}:{r+1}], v[{r}:{r+1}], v[228:229], v[{XS(g, e)}:{XS(g, e)+1}] op_sel_hi:[1,0,1]")
        a(f"v_cvt_pk_bf16_f32 v{116+2*g}, v{4*g}, v{4*g+1}\nv_cvt_pk_bf16_f32 v{117+2*g}, v{4*g+2}, v{4*g+3}")
        if g % 2 == 1:
            b = 116 + 2 * (g - 1)
            a(f"v_permlane32_swap_b32 v{b}, v{b+2}\nv_permlane32_swap_b32 v{b+1}, v{b+3}")
            a(f"buffer_store_dwordx4 v[{b}:{b+3}], v234, {rOut}, s16 offen offset:{16*(g-1)} {OUTFL}")
            stamp("f")
stamp()


def stamp_out():
    if not STAMP:
        return
    a(f"""
s_waitcnt vmcnt(0) lgkmcnt(0)
v_writelane_b32 v254, s98, {nstamp[0]-1}
{CLK} s[98:99]
s_waitcnt lgkmcnt(0)
v_writelane_b32 v254, s98, 15
s_lshl_b32 s84, s2, 2
s_add_u32 s84, s84, {sw}
s_lshl_b32 s84, s84, 6
s_add_u32 s84, s84, {WS_TS}
v_lshlrev_b32 v1, 2, v255
s_mov_b64 exec, 0xffff
buffer_store_dword v254, v1, {rWs}, s84 offen
""")


stamp_out()
a("s_endpgm")

a.reset()
NC_LOAD = f"global_load_dword v202, v203, s[{sDbg}:{sDbg+1}] sc1"
NC_CMP = "v_cmp_eq_u32 vcc, 0, v202"
shq = "s59"
a(f"""
L_helper:
s_lshl_b32 {shq}, {sxcd}, 2
s_add_u32 {shq}, {shq}, {sj}
v_mov_b32 v203, 0
v_lshrrev_b32 v1, 2, v255
s_lshl_b32 s83, {shq}, 2
s_add_u32 s83, s83, {sw}
s_lshl_b32 s72, s83, 4
v_add_u32 v4, s72, v1
v_mul_u32_u24 v5, 896, v4
v_and_b32 v2, 3, v255
v_lshl_add_u32 v5, v2, 4, v5
s_lshr_b32 s73, {sxcd}, 1
s_lshl_b32 s73, s73, 2
s_add_u32 s60, s73, {sj}
s_min_u32 s73, s60, 13
s_and_b32 s74, {sxcd}, 1
s_mul_i32 s74, s74, 14
s_add_u32 s61, s73, s74
s_lshr_b32 s73, s61, 1
s_lshl_b32 s82, s73, 8
v_lshrrev_b32 v6, 4, v255
s_lshl_b32 s75, {sw}, 2
v_add_u32 v6, s75, v6
v_mul_u32_u24 v7, 3584, v6
v_and_b32 v3, 15, v255
v_lshl_add_u32 v7, v3, 4, v7
s_mov_b32 s72, {WS_EP}
s_waitcnt lgkmcnt(0)
""")
if STAMP:
    a("v_mov_b32 v254, 0\nv_writelane_b32 v254, s100, 0")
    nstamp[0] = 1
stamp(SEL[0])
a(f"""
s_mov_b32 s36, s{sX}
s_mov_b32 s37, s{sX+1}
s_add_u32 s48, s{sWs}, {WSOFF}
s_addc_u32 s49, s{sWs+1}, 0
buffer_load_dword v202, v203, {rWs}, s72 offen sc1
""")
for i in range(14):
    a(f"buffer_load_dwordx4 v[{8+4*i}:{11+4*i}], v5, {rX}, 0 offen offset:{64*i}")
a(f"""
s_mov_b32 s73, 1664525
v_mul_lo_u32 v202, v202, s73
s_cmp_eq_u32 s83, 127
v_add_u32 v202, 1013904225, v202
v_or_b32 v202, 1, v202
s_cbranch_scc0 L_hnoep
s_mov_b64 exec, 1
""")
a.items.append(("raw", f"    global_store_dword v203, v202, s[{sDbg}:{sDbg+1}] sc1"))
a.items.append(("raw", f"    buffer_store_dword v202, v203, {rWs}, s72 offen sc1"))
a(f"""
s_mov_b64 exec, -1
L_hnoep:
s_bitcmp1_b32 s61, 0
s_cselect_b32 s40, s{sWu}, s{sWg}
s_cselect_b32 s41, s{sWu+1}, s{sWg+1}
""")
wl = [f"buffer_load_dwordx4 v[{72+4*i}:{75+4*i}], v7, {rW}, s82 offen\ns_add_u32 s82, s82, {16*3584}" for i in range(28)]
HW0 = opt('hw0', 0)
put(wl[:HW0])
wl = wl[HW0:]
a(f"""
s_mov_b32 s76, 0x3f803f80
s_mov_b32 s77, 0x00003f80
s_mov_b32 s79, 0x3f800000
""")
for _ in range(opt('dhelp', 0)):
    a("s_sleep 16")
EXACT = "--noexact" not in sys.argv
L = []
for i in range(56):
    c0, c1 = ("0", "0") if i == 0 else ("v64", "v68")
    L.append([f"v_dot2_f32_bf16 v64, v{8+i}, s76, {c0}", f"v_dot2_f32_bf16 v68, v{8+i}, v{8+i}, {c1}"])
HW1 = opt('hw1', 0)
put(L[0] + weave(L[1:], wl[:HW1]))
wl = wl[HW1:]
stamp()
a(f"""
v_add_f32_dpp v64, v64, v64 quad_perm:[1,0,3,2] row_mask:0xf bank_mask:0xf
v_add_f32_dpp v68, v68, v68 quad_perm:[1,0,3,2] row_mask:0xf bank_mask:0xf
v_lshlrev_b32 v4, 3, v4
v_add_f32_dpp v64, v64, v64 quad_perm:[2,3,0,1] row_mask:0xf bank_mask:0xf
v_add_f32_dpp v68, v68, v68 quad_perm:[2,3,0,1] row_mask:0xf bank_mask:0xf
v_mul_f32 v64, {hex(0x3b124925)}, v64
v_mul_f32 v68, {hex(0x3b124925)}, v68
v_fma_f32 v68, -v64, v64, v68
v_cvt_pk_bf16_f32 v64, -v64, -v64
v_max_f32 v68, 0, v68
v_cvt_pk_bf16_f32 v68, v68, v68
v_and_b32 v68, {sMask}, v68
v_add_f32 v68, 0x3727c5ac, v68
v_cvt_pk_bf16_f32 v68, v68, v68
v_and_b32 v68, {sMask}, v68
v_sqrt_f32 v68, v68
v_and_b32 v66, {sMask}, v64
v_cvt_pk_bf16_f32 v68, v68, v68
v_and_b32 v68, {sMask}, v68
v_rcp_f32 v70, v68
s_mov_b32 s74, {WS_ST}
v_fma_f32 v71, -v68, v70, 1.0
v_fma_f32 v70, v70, v71, v70
v_mul_f32 v65, v70, v70
v_mul_f32 v71, v66, v70
s_mov_b32 s80, 0x11111111
s_mov_b32 s81, 0x11111111
s_mov_b64 exec, s[80:81]
buffer_store_dwordx2 v[64:65], v4, {rWs}, s74 offen sc1
s_mov_b64 exec, -1
v_mul_u32_u24 v5, 960, v1
s_mul_i32 s75, {sw}, {16*960}
v_lshl_add_u32 v5, v2, 4, v5
v_add_u32 v5, s75, v5
""")
L2B = 64 * 960
L3B = L2B + 448 * 144
a(f"""
v_lshrrev_b32 v1, 5, v255
v_bfe_u32 v2, v255, 2, 2
v_lshl_add_u32 v2, v1, 3, v2
v_mul_u32_u24 v2, 960, v2
v_bfe_u32 v4, v255, 4, 1
v_lshl_add_u32 v2, v4, 5, v2
v_and_b32 v4, 3, v255
v_lshl_add_u32 v2, v4, 3, v2
v_add_u32 v194, s75, v2
v_and_b32 v4, 31, v255
v_mul_u32_u24 v4, 144, v4
s_lshl_b32 s74, {sw}, 5
s_add_u32 s74, s74, {L2B}
v_lshl_add_u32 v4, v1, 4, v4
v_add_u32 v195, s74, v4
v_lshlrev_b32 v6, 9, v6
v_lshl_add_u32 v6, v3, 5, v6
v_add_u32 v6, {L3B}, v6
v_lshrrev_b32 v1, 3, v255
v_and_b32 v2, 7, v255
v_lshlrev_b32 v2, 4, v2
v_mul_u32_u24 v197, {XTS}, v1
v_add_u32 v197, v197, v2
v_mul_u32_u24 v1, 144, v1
v_add_u32 v1, v1, v2
s_mul_i32 s74, {sw}, {112*144}
s_add_u32 s74, s74, {L2B}
v_add_u32 v196, s74, v1
s_lshl_b32 s74, {shq}, 7
s_mul_i32 s75, {sw}, {112*XTS}
s_add_u32 s74, s74, s75
s_add_u32 s62, s74, {WS_XT}
s_and_b32 s75, {sw}, 1
s_lshl_b32 s75, s75, 8
v_lshl_add_u32 v2, v255, 2, s75
v_add_u32 v198, {L3B}, v2
""")


L = []
for i in range(56):
    t = 186 + 2 * (i % 4)
    if EXACT:
        g = [f"v_dot2_f32_bf16 v{t}, v{8+i}, s77, v66", f"v_dot2_f32_bf16 v{t+1}, v{8+i}, s79, v66"]
        if i > 0:
            p = 186 + 2 * ((i - 1) % 4)
            g += [f"v_cvt_pk_bf16_f32 v{7+i}, v{p}, v{p+1}", f"v_lshlrev_b32 v{p}, 16, v{7+i}", f"v_and_b32 v{p+1}, {sMask}, v{7+i}",
                  f"v_pk_mul_f32 v[{p}:{p+1}], v[{p}:{p+1}], v[70:71] op_sel_hi:[1,0]", f"v_cvt_pk_bf16_f32 v{7+i}, v{p}, v{p+1}"]
            if i % 4 == 0:
                g.append(f"ds_write_b128 v5, v[{4+i}:{7+i}] offset:{64*(i//4-1)}")
        if i == 55:
            g += ["s_nop 0", f"v_cvt_pk_bf16_f32 v63, v{t}, v{t+1}", f"v_lshlrev_b32 v{t}, 16, v63", f"v_and_b32 v{t+1}, {sMask}, v63",
                  f"v_pk_mul_f32 v[{t}:{t+1}], v[{t}:{t+1}], v[70:71] op_sel_hi:[1,0]", f"v_cvt_pk_bf16_f32 v63, v{t}, v{t+1}",
                  f"ds_write_b128 v5, v[60:63] offset:{64*13}"]
    else:
        g = [f"v_lshlrev_b32 v{t}, 16, v{8+i}", f"v_and_b32 v{t+1}, {sMask}, v{8+i}",
             f"v_pk_fma_f32 v[{t}:{t+1}], v[{t}:{t+1}], v[70:71], v[70:71] op_sel:[0,0,1] op_sel_hi:[1,0,1]",
             f"v_cvt_pk_bf16_f32 v{8+i}, v{t}, v{t+1}"]
        if i % 4 == 3:
            g.append(f"ds_write_b128 v5, v[{8+i-3}:{8+i}] offset:{64*(i//4)}")
    L.append(g)
HW2 = opt('hw2', 10)
put(weave(L, wl[:HW2]))
wl = wl[HW2:]
stamp()
if WM == 1:
    a(f"""
s_mul_i32 s74, s83, {98*128}
v_min_u32 v199, 48, v255
v_lshlrev_b32 v199, 7, v199
v_add_u32 v199, s74, v199
global_load_dword v200, v199, s[{sWd}:{sWd+1}]
global_load_dword v201, v199, s[{sWd}:{sWd+1}] offset:{0}
""".replace("global_load_dword v201, v199, s[28:29] offset:0", f"v_add_u32 v199, {49*128}, v199\nglobal_load_dword v201, v199, s[28:29]"))
HW3 = opt('hw3', 99)
put(wl[:min(HW3, 12)])
wl2 = wl[min(HW3, 12):HW3]
wl = wl[HW3:]
for b in range(14):
    a(f"ds_read_b64_tr_b16 v[{8+4*b}:{9+4*b}], v194 offset:{64*b}\nds_read_b64_tr_b16 v[{10+4*b}:{11+4*b}], v194 offset:{64*b+4*960}")
cs = []
for i in range(28):
    for d in range(4):
        c0, c1 = ("0", "0") if i == 0 else (f"v{64+2*d}", f"v{65+2*d}")
        cs += [f"v_dot2_f32_bf16 v{64+2*d}, v{72+4*i+d}, s77, {c0}", f"v_dot2_f32_bf16 v{65+2*d}, v{72+4*i+d}, s79, {c1}"]
NC0 = opt('nc0', 0)
put(weave([f"ds_write_b128 v195, v[{8+4*b}:{11+4*b}] offset:{32*144*b}" for b in range(14)], wl2 + cs[:NC0]))
a(f"{NC_LOAD}\ns_waitcnt lgkmcnt(0)\ns_barrier")
stamp()
for b in range(14):
    a(f"ds_read_b128 v[{8+4*b}:{11+4*b}], v196 offset:{8*144*b}")
put(weave([f"buffer_store_dwordx4 v[{8+4*b}:{11+4*b}], v197, {rWs}, s62 offen sc1\ns_add_u32 s62, s62, {8*XTS}" for b in range(14)], [] if wl else cs[NC0:]))
if wl:
    put(wl + cs[NC0:])
a("""
ds_write_b128 v6, v[64:67]
ds_write_b128 v6, v[68:71] offset:16
s_waitcnt lgkmcnt(0)
s_barrier
""")
stamp()
for r in range(16):
    a(f"ds_read_b32 v{72+r}, v198 offset:{512*r}")
for st_ in (8, 4, 2, 1):
    for r in range(st_):
        a(f"v_add_f32 v{72+r}, v{72+r}, v{72+r+st_}")
a(f"""
v_cvt_pk_bf16_f32 v73, v72, v72
v_and_b32 v73, {sMask}, v73
v_sub_f32 v74, v72, v73
v_cvt_pk_bf16_f32 v73, v73, v74
v_lshlrev_b32 v2, 4, v3
v_lshrrev_b32 v1, 4, v255
v_lshl_add_u32 v2, v1, 2, v2
s_lshr_b32 s74, s61, 1
s_lshl_b32 s74, s74, 1
s_add_u32 s74, s74, {sw}
s_lshl_b32 s74, s74, 1
s_and_b32 s75, s61, 1
s_add_u32 s74, s74, s75
s_lshl_b32 s74, s74, 8
s_add_u32 s74, s74, {WS_CS}
s_cmp_lt_u32 s60, 14
s_cselect_b32 s74, s74, {WS_SIZE}
s_cmp_lt_u32 {sw}, 2
s_cselect_b32 s74, s74, {WS_SIZE}
buffer_store_dword v73, v2, {rWs}, s74 offen sc1
""")
stamp()
for _ in range(opt('dh2', 0)):
    a("s_sleep 16")
poll("hnc", NC_LOAD, NC_CMP)
a(f"""
v_mul_u32_u24 v1, {FSP}, v255
s_lshl_b32 s74, {shq}, 2
s_add_u32 s74, s74, {WS_FL}
s_waitcnt vmcnt(0)
s_barrier
s_cmp_eq_u32 {sw}, 0
s_cbranch_scc0 L_hdone
s_mov_b64 exec, 0xff
buffer_store_dword v202, v1, {rWs}, s74 offen sc1
s_mov_b64 exec, -1
L_hdone:
""")
stamp()
stamp_out()
a("L_end:\ns_endpgm")
for sp in slow:
    a.reset()
    a(sp)
a("L_codeend:\ns_endpgm")

body = a.render()
if opt('align', 1):
    from align import align
    body, info = align(body, opt('nopc', 50.0))
    a.stats.update(info)
here = os.path.dirname(os.path.abspath(__file__))
ref = open(os.path.join(here, "..", "cdna_kernels", NAME + ".s.ref")).read()
head = [l for l in ref.split("\n") if l.startswith(";") and "@launch" not in l and "Override" not in l and "grid=ceil" not in l]
txt = "\n".join(head) + f"""
; Generated by tools/gen.py (hand-written generator).  WSOFF={WSOFF} XTS={XTS} YS={YS} CSL=1
; @launch grid=(256,1,1) block=(256,1,1) lds=163840
.amdgcn_target "amdgcn-amd-amdhsa--gfx950"
.text
.globl {NAME}_kernel
.p2align 8
.type {NAME}_kernel,@function
{NAME}_kernel:
{body}
.section .rodata,"a"
.p2align 6
.amdhsa_kernel {NAME}_kernel
  .amdhsa_next_free_vgpr 512
  .amdhsa_next_free_sgpr 102
  .amdhsa_accum_offset 256
  .amdhsa_group_segment_fixed_size 0
  .amdhsa_kernarg_size 128
  .amdhsa_user_sgpr_count 2
  .amdhsa_user_sgpr_kernarg_segment_ptr 1
  .amdhsa_system_sgpr_workgroup_id_x 1
.end_amdhsa_kernel
"""
out = [x for x in sys.argv[1:] if not x.startswith("--")]
path = out[0] if out else os.path.join(here, "..", "cdna_kernels", NAME + ".s")
open(path, "w").write(txt)
print(path, a.stats, file=sys.stderr)
```
